```python
import torch

def _softmax(x, axis=-1):
    return torch.softmax(x, dim=axis)

def _gelu(x):
    return torch.nn.functional.gelu(x, approximate='tanh')

def _silu(x):
    return torch.nn.functional.silu(x)

def _sigmoid(x):
    return torch.sigmoid(x)

def _layernorm(x, axis=-1, eps=1e-05):
    m = x.mean(dim=axis, keepdim=True)
    v = x.var(dim=axis, keepdim=True, unbiased=False)
    return (x - m) / torch.sqrt(v + eps)

def _scatter_add(tgt, idx, src, axis=0):
    return tgt.clone().index_add_(axis, idx, src)

def _segment_sum(src, seg, n):
    out = torch.zeros((n,) + src.shape[1:], dtype=src.dtype)
    return out.index_add_(0, seg, src)

def _pad(x, pw):
    flat = tuple((v for pair in reversed(pw) for v in pair))
    return torch.nn.functional.pad(x, flat)
kernel_name = 'gated_mix__ssm_conv_s4__mixer_gmlp__prompt'

def setup_inputs():

    _w = lambda a: (lambda t: t.to(torch.bfloat16) if t.is_floating_point() else t)(torch.as_tensor(a))

    def _A_setup():
        B, L, D, N = (1, 2048, 640, 192)
        A_re = -(lambda _x: torch.exp(torch.as_tensor(_x)))((lambda *s: torch.randn(*s, dtype=torch.bfloat16) * 3.2)(D, N))
        A_im = torch.pi * (lambda *s: torch.randn(*s, dtype=torch.bfloat16) * 0.1)(D, N)
        B_re = (lambda *s: torch.randn(*s, dtype=torch.bfloat16) * 0.8)(D, N)
        B_im = (lambda *s: torch.randn(*s, dtype=torch.bfloat16) * 0.8)(D, N)
        C_re = (lambda *s: torch.randn(*s, dtype=torch.bfloat16) * 0.8)(D, N)
        C_im = (lambda *s: torch.randn(*s, dtype=torch.bfloat16) * 0.8)(D, N)
        log_dt = (lambda *s: torch.randn(*s, dtype=torch.bfloat16) * 0.1)(D) * 0.5 - 4.0
        Dskip = (lambda *s: torch.randn(*s, dtype=torch.bfloat16) * 0.8)(D)
        return {'u': _w((lambda *s: torch.randn(*s, dtype=torch.bfloat16) * 0.05)(B, L, D)), 'A_re': _w(A_re), 'A_im': _w(A_im), 'B_re': _w(B_re), 'B_im': _w(B_im), 'C_re': _w(C_re), 'C_im': _w(C_im), 'log_dt': _w(log_dt), 'Dskip': _w(Dskip)}
    _A_in = _A_setup()

    def _B_setup():
        B, S, D, F = (1, 2048, 640, 1536)
        Fh = F // 2
        return {'x': _w((lambda *s: torch.randn(*s, dtype=torch.bfloat16) * 0.05)(B, S, D)), 'w_in': _w((lambda *s: torch.randn(*s, dtype=torch.bfloat16) * 0.4)(D, 2 * Fh)), 'w_sp': _w(0.01 * (lambda *s: torch.randn(*s, dtype=torch.bfloat16) * 0.4)(S, S)), 'b_sp': _w(1.0 + 0.01 * (lambda *s: torch.randn(*s, dtype=torch.bfloat16) * 0.05)(S)), 'w_out': _w((lambda *s: torch.randn(*s, dtype=torch.bfloat16) * 0.05)(Fh, D))}
    _B_in = _B_setup()
    return {'A_u': _A_in['u'], 'A_A_re': _A_in['A_re'], 'A_A_im': _A_in['A_im'], 'A_B_re': _A_in['B_re'], 'A_B_im': _A_in['B_im'], 'A_C_re': _A_in['C_re'], 'A_C_im': _A_in['C_im'], 'A_log_dt': _A_in['log_dt'], 'A_Dskip': _A_in['Dskip'], 'B_x': _B_in['x'], 'B_w_in': _B_in['w_in'], 'B_w_sp': _B_in['w_sp'], 'B_b_sp': _B_in['b_sp'], 'B_w_out': _B_in['w_out'], 'gate_w': _w((lambda *s: torch.randn(*s, dtype=torch.bfloat16) * 0.05)(640) * 16.0)}

def reference(A_u, A_A_re, A_A_im, A_B_re, A_B_im, A_C_re, A_C_im, A_log_dt, A_Dskip, B_x, B_w_in, B_w_sp, B_b_sp, B_w_out, gate_w):

    def _A_ref(u, A_re, A_im, B_re, B_im, C_re, C_im, log_dt, Dskip):
        Bsz, L, D = u.shape
        dt = torch.exp(log_dt)[:, None]
        A = A_re + 1j * A_im
        Bc = B_re + 1j * B_im
        Cc = C_re + 1j * C_im
        logdA = dt * A
        dB = dt * Bc
        l = (lambda x, dt: x.to(dt))(torch.arange(L), A_re.dtype)
        P = torch.exp(logdA[:, :, None] * l[None, None, :])
        K = torch.einsum('dn,dnl,dn->dl', Cc, P, dB).real
        L2 = 2 * L
        Kp = _pad(K, ((0, 0), (0, L)))
        up = (lambda x, *d: x.permute(*d))(u, 0, 2, 1)
        up = _pad(up, ((0, 0), (0, 0), (0, L)))
        Kf = (lambda x, axes=(-2, -1): torch.fft.rfft2(x.float(), dim=axes))(Kp[:, None, :], axes=(-2, -1))
        Uf = (lambda x, axes=(-2, -1): torch.fft.rfft2(x.float(), dim=axes))(up[:, :, None, :], axes=(-2, -1))
        Yf = Uf * Kf[None, :, :, :]
        y = (lambda x, s, axes=(-2, -1): torch.fft.irfft2(x, s=s, dim=axes).to(torch.bfloat16))(Yf, (1, L2), axes=(-2, -1))[:, :, 0, :L]
        y = (lambda x, *d: x.permute(*d))(y, 0, 2, 1) + u * Dskip[None, None, :]
        return y

    def _B_ref(x, w_in, w_sp, b_sp, w_out):
        B, S, D = x.shape
        F = w_in.shape[-1]
        Fh = F // 2
        z = _gelu(torch.einsum('bsd,df->bsf', x, w_in))
        z1 = z[..., :Fh].clone()
        z2 = _layernorm(z[..., Fh:], axis=-1)
        g = torch.einsum('ts,bsf->btf', w_sp, z2) + b_sp[None, :, None]
        return torch.einsum('bsf,fd->bsd', z1 * g, w_out)
    x = A_u
    g = _sigmoid((x * gate_w).sum(-1, keepdims=True))
    a = _A_ref(x, A_A_re, A_A_im, A_B_re, A_B_im, A_C_re, A_C_im, A_log_dt, A_Dskip)
    b = _B_ref(x, B_w_in, B_w_sp, B_b_sp, B_w_out)
    return g * a + (1 - g) * b
```

```python
import re

TRANS = ('v_exp_f32', 'v_log_f32', 'v_rcp_f32', 'v_rsq_f32', 'v_sqrt_f32', 'v_sin_f32', 'v_cos_f32', 'v_rcp_iflag_f32')

def parse_regs(tok):
    tok = tok.strip()
    neg = tok.startswith('-')
    if neg: tok = tok[1:]
    m = re.fullmatch(r'abs\((.*)\)', tok)
    if m: tok = m.group(1)
    m = re.fullmatch(r'\|(.*)\|', tok)
    if m: tok = m.group(1)
    m = re.fullmatch(r'([vsa])(\d+)', tok)
    if m: return m.group(1), {int(m.group(2))}
    m = re.fullmatch(r'([vsa])\[(\d+):(\d+)\]', tok)
    if m: return m.group(1), set(range(int(m.group(2)), int(m.group(3)) + 1))
    if tok == 'vcc': return 's', {106, 107}
    if tok == 'vcc_lo': return 's', {106}
    if tok == 'vcc_hi': return 's', {107}
    if tok == 'exec': return 's', {126, 127}
    if tok == 'm0': return 's', {124}
    return None

class Ins:
    __slots__ = ('text', 'op', 'vw', 'vr', 'sw', 'sr', 'cls', 'passes', 'srcc', 'srcab', 'dpp', 'stdata', 'states')

def analyze(text):
    t = text.split(';')[0].strip()
    parts = t.split(None, 1)
    op = parts[0]
    rest = parts[1] if len(parts) > 1 else ''
    ops = []
    cur = ''; depth = 0
    for ch in rest:
        if ch in '[(': depth += 1
        if ch in '])': depth -= 1
        if ch == ',' and depth == 0:
            ops.append(cur.strip()); cur = ''
        else:
            cur += ch
    if cur.strip(): ops.append(cur.strip())
    mods = ''
    if ops:
        sp = ops[-1].split(None, 1)
        ops[-1] = sp[0]
        mods = sp[1] if len(sp) > 1 else ''
    I = Ins()
    I.text = text; I.op = op
    I.vw = set(); I.vr = set(); I.sw = set(); I.sr = set()
    I.cls = 'other'; I.passes = 0; I.srcc = set(); I.srcab = set(); I.dpp = False; I.stdata = set(); I.states = 1
    regs = [parse_regs(o) for o in ops]
    def addr(i):
        r = regs[i]
        if r is None: return
        (I.vr if r[0] in 'va' else I.sr).update({(x + (1000 if r[0] == 'a' else 0)) for x in r[1]})
    def addw(i):
        r = regs[i]
        if r is None: return
        (I.vw if r[0] in 'va' else I.sw).update({(x + (1000 if r[0] == 'a' else 0)) for x in r[1]})
    n = len(ops)
    if op == 's_nop':
        I.cls = 'nop'; I.states = int(ops[0], 0) + 1
    elif op.startswith('v_mfma'):
        I.cls = 'mfma'
        I.passes = 8 if '32x32' in op else 4
        addw(0)
        for i in (1, 2, 3): addr(i)
        I.srcc = set(regs[3][1]) if regs[3] else set()
        I.srcab = set(regs[1][1]) | set(regs[2][1])
    elif op.startswith('v_cmp'):
        I.cls = 'valu'; addw(0)
        for i in range(1, n): addr(i)
        if op.startswith('v_cmpx'): I.sw.update({126, 127})
    elif op in ('v_readfirstlane_b32', 'v_readlane_b32'):
        I.cls = 'valu'; addw(0)
        for i in range(1, n): addr(i)
    elif op.startswith('v_permlane'):
        I.cls = 'valu'; addw(0); addw(1); addr(0); addr(1)
    elif op.startswith('v_'):
        I.cls = 'trans' if op.replace('_e32', '').replace('_e64', '') in TRANS else 'valu'
        addw(0)
        st = 1
        if op.startswith(('v_add_co', 'v_sub_co', 'v_addc_co', 'v_subb_co', 'v_subrev_co', 'v_div_scale', 'v_mad_u64')):
            addw(1); st = 2
        for i in range(st, n): addr(i)
        if op.startswith(('v_fmac', 'v_mac', 'v_pk_fmac', 'v_dot2c')) or 'd16' in op or '_sdwa' in op and 'PRESERVE' in mods: addr(0)
        if op.startswith('v_cndmask') and n == 3: I.sr.update({106, 107})
        if '_dpp' in op:
            I.dpp = True
            addr(0)
    elif op.startswith('ds_'):
        I.cls = 'ds'
        if op.startswith(('ds_read', 'ds_bpermute', 'ds_permute', 'ds_swizzle')):
            addw(0)
            for i in range(1, n): addr(i)
        else:
            for i in range(n): addr(i)
    elif op.startswith(('buffer_', 'global_', 'flat_')):
        I.cls = 'vmem'
        lds = ' lds' in (' ' + mods) or '_lds_' in op
        if 'load' in op and not lds:
            addw(0)
            for i in range(1, n): addr(i)
            if 'd16' in op: addr(0)
        else:
            for i in range(n): addr(i)
            if lds: I.sr.add(124)
            if 'store' in op and ('x4' in op or 'x3' in op):
                di = 0 if op.startswith('buffer_') else 1
                I.stdata = set(regs[di][1])
        if 'atomic' in op and 'sc0' in mods: addw(0)
    elif op.startswith('s_'):
        I.cls = 'salu'
        if op.startswith(('s_cmp', 's_cbranch', 's_branch', 's_waitcnt', 's_barrier', 's_endpgm', 's_sleep', 's_setprio', 's_bitcmp', 's_setpc')):
            for i in range(n): addr(i)
        else:
            addw(0)
            for i in range(1, n): addr(i)
            if 'saveexec' in op: I.sw.update({126, 127})
    return I

def need(prev, cur):
    w = 0
    pv = prev.cls in ('valu', 'trans')
    cv = cur.cls in ('valu', 'trans')
    if pv:
        if cur.cls == 'mfma' and prev.vw & cur.vr: w = max(w, 2)
        if cv and cur.dpp and prev.vw & cur.vr: w = max(w, 2)
        if cur.op.startswith('v_permlane') and prev.vw & cur.vr: w = max(w, 2)
        if cur.op in ('v_readfirstlane_b32', 'v_readlane_b32') and prev.vw & cur.vr: w = max(w, 1)
        if prev.cls == 'trans' and cur.cls != 'trans' and prev.vw & cur.vr: w = max(w, 1)
        if prev.cls == 'trans' and cur.cls == 'trans' and prev.vw & cur.vr: w = max(w, 1)
        if prev.sw:
            if cv and prev.sw & cur.sr: w = max(w, 4 if cur.op in ('v_readlane_b32', 'v_writelane_b32') else 2)
            if cur.cls == 'vmem' and prev.sw & cur.sr: w = max(w, 5)
            if cur.cls == 'salu' and prev.sw & cur.sr: w = max(w, 4)
            if prev.sw & {126, 127}:
                if cur.cls == 'mfma': w = max(w, 4)
                if cur.dpp: w = max(w, 5)
                if cur.op.startswith(('v_permlane', 'v_readlane', 'v_readfirstlane')): w = max(w, 4)
        if ('_sdwa' in prev.op or 'op_sel' in prev.text and not prev.op.startswith('v_pk_')) and cv and prev.vw & cur.vr: w = max(w, 1)
    if prev.cls == 'mfma':
        P = prev.passes
        if cur.cls == 'mfma':
            if prev.vw & cur.srcab: w = max(w, 8 if P == 4 else 12)
            ov = prev.vw & cur.srcc
            if ov and not (prev.vw == cur.srcc and prev.passes == cur.passes): w = max(w, 6 if P == 4 else 10)
            if prev.vw & cur.vw and not (prev.vw == cur.srcc): w = max(w, 6 if P == 4 else 10)
        elif cur.cls in ('valu', 'trans', 'vmem', 'ds'):
            if prev.vw & (cur.vr | cur.vw): w = max(w, 8 if P == 4 else 12)
            if cv and prev.srcc & cur.vw: w = max(w, 3 if P == 4 else 7)
    if prev.cls == 'salu' and 124 in prev.sw and 124 in cur.sr and cur.cls in ('vmem', 'ds'): w = max(w, 1)
    if prev.stdata and prev.stdata & cur.vw: w = max(w, 2)
    return w

class Asm:
    def __init__(self):
        self.L = []
        self.hist = []
        self.nnops = 0
    def raw(self, s):
        self.L.append(s)
    def __call__(self, txt):
        for line in txt.strip().split('\n'):
            line = line.strip()
            if not line: continue
            if line.startswith(';'):
                self.L.append('    ' + line); continue
            if line.endswith(':'):
                self.L.append(line); continue
            self.emit(line)
    def emit(self, line):
        I = analyze(line)
        req = 0
        dist = 0
        for p in reversed(self.hist):
            r = need(p, I)
            if r - dist > req: req = r - dist
            dist += p.states
            if dist > 24: break
        if req > 0:
            self.nnops += 1
            N = analyze(f's_nop {req-1}')
            self.L.append(f'    s_nop {req-1}')
            self.hist.append(N)
        self.L.append('    ' + line)
        self.hist.append(I)
        if len(self.hist) > 40: self.hist = self.hist[-40:]
    def lab(self, name):
        self.L.append(name + ':')
    def fence(self, n=12):
        while n > 0:
            k = min(n, 16)
            self.emit(f's_nop {k-1}')
            n -= k
    def text(self):
        return '\n'.join(self.L) + '\n'
```

```python
import numpy as np
from gen import *

SLOT = 20480
BOFF = 8192
S_RB, S_CB, S_WI, S_WJ = 82, 83, 86, 87
S_KC, S_AO, S_BO, S_T, S_T2, S_CNT = 88, 89, 90, 91, 92, 93
S_ABASE, S_BBASE = 94, 95
S_M_A, S_M_B = 3, 4
S_K1 = 6
S_ONE = 8
S_KC0 = 10
S_M_C = 5
S_TMP2 = 12
V_L = 1
V_AD = 2
V_BD = 4
V_AR = 7
V_BR = 11
V_UR, V_US = 13, 14
V_T = 16
ACC2, ACC1, WF, XF = 24, 48, 72, 96

class VM:
    def __init__(self): self.ops = []
    def issue(self, tag, n=1): self.ops += [tag] * n
    def n_after(self, tag):
        idx = max(i for i, t in enumerate(self.ops) if t == tag)
        return len(self.ops) - 1 - idx

def gelu_pairs(a, pairs, k0v, emit_after):
    for idx, c in enumerate(pairs):
        t = V_T + 4 * (idx & 1)
        a(f'v_cvt_pk_bf16_f32 v{t+2}, v{c}, v{c+1}')
        a(f'v_lshlrev_b32 v{t}, 16, v{t+2}')
        a(f'v_and_b32 v{t+1}, 0xffff0000, v{t+2}')
        a(f'v_pk_mul_f32 {vr(t+2,2)}, {vr(t,2)}, {vr(t,2)}')
        a(f'v_pk_fma_f32 {vr(t+2,2)}, {vr(t+2,2)}, {sp(S_K1)}, {vr(k0v,2)}')
        a(f'v_pk_mul_f32 {vr(t+2,2)}, {vr(t+2,2)}, {vr(t,2)}')
        a(f'v_exp_f32 v{t+2}, v{t+2}')
        a(f'v_exp_f32 v{t+3}, v{t+3}')
        a(f'v_pk_add_f32 {vr(t+2,2)}, {vr(t+2,2)}, {sp(S_ONE)}')
        a(f'v_rcp_f32 v{t+2}, v{t+2}')
        a(f'v_rcp_f32 v{t+3}, v{t+3}')
        a(f'v_pk_mul_f32 {vr(t+2,2)}, {vr(t+2,2)}, {vr(t,2)}')
        emit_after(idx, c, t)

def flag_store(a, soff_expr_sgpr, vtmp):
    a(f'v_mov_b32 v{vtmp}, s{S_TAG}')
    a(f's_mov_b64 {sp(S_TMP2)}, exec')
    a('s_mov_b64 exec, 1')
    a(f'buffer_store_dword v{vtmp}, off, {srd(SRD_WS)}, s{soff_expr_sgpr} sc1')
    a(f's_mov_b64 exec, {sp(S_TMP2)}')

def gemm_role(a, opt):
    vm = VM()
    stop = opt.get('stop', 99)
    a('s_setprio 2')
    a(f's_and_b32 s{S_T}, s2, 7')
    a(f's_lshr_b32 s{S_T2}, s2, 3')
    a(f's_lshr_b32 s{S_RB}, s{S_T}, 1')
    a(f's_lshl_b32 s{S_RB}, s{S_RB}, 3')
    a(f's_lshr_b32 s{S_CNT}, s{S_T2}, 2')
    a(f's_add_u32 s{S_RB}, s{S_RB}, s{S_CNT}')
    a(f's_and_b32 s{S_CB}, s{S_T}, 1')
    a(f's_lshl_b32 s{S_CB}, s{S_CB}, 2')
    a(f's_and_b32 s{S_CNT}, s{S_T2}, 3')
    a(f's_add_u32 s{S_CB}, s{S_CB}, s{S_CNT}')
    a(f's_lshr_b32 s{S_WI}, s{S_W}, 1')
    a(f's_and_b32 s{S_WJ}, s{S_W}, 1')
    mk_srd(a, SRD_X, P_U, 2048 * 640 * 2)
    mk_srd(a, SRD_WIN, P_WIN, 640 * 1536 * 2)
    mk_srd(a, SRD_WSP, P_WSP, 2048 * 2048 * 2)
    mk_srd(a, SRD_WOUT, P_WOUT, 768 * 640 * 2)
    mk_srd(a, SRD_OUT, P_OUT, 2048 * 640 * 2)
    a(f's_add_u32 s{S_KC}, s{S_RB}, s{S_CB}')
    a(f's_mul_i32 s{S_T}, s{S_KC}, 26')
    a(f's_lshr_b32 s{S_T}, s{S_T}, 8')
    a(f's_mul_i32 s{S_T}, s{S_T}, 10')
    a(f's_sub_u32 s{S_KC}, s{S_KC}, s{S_T}')
    a(f's_mov_b32 s{S_KC0}, s{S_KC}')
    a(f's_lshl_b32 s{S_M_A}, s{S_W}, 11')
    a(f's_mul_i32 s{S_M_B}, s{S_W}, 3072')
    a(f's_add_u32 s{S_M_B}, s{S_M_B}, {BOFF}')
    a(f's_mul_i32 s{S_ABASE}, s{S_RB}, {64*1280}')
    a(f's_mul_i32 s{S_BBASE}, s{S_CB}, 192')
    a(f's_add_u32 s{S_BBASE}, s{S_BBASE}, 1536')
    t0, t1, t2, t3 = V_T, V_T + 1, V_T + 2, V_T + 3
    def row_dma_offsets(pitch):
        a(f'v_lshrrev_b32 v{t0}, 3, v{V_L}')
        a(f'v_and_b32 v{t1}, 7, v{V_L}')
        a(f'v_bfe_u32 v{t2}, v{V_L}, 4, 1')
        a(f'v_xor_b32 v{t1}, v{t1}, v{t2}')
        a(f's_lshl_b32 s{S_T}, s{S_W}, 4')
        a(f'v_add_u32 v{t0}, s{S_T}, v{t0}')
        a(f's_movk_i32 s{S_T2}, {pitch}')
        a(f'v_mul_lo_u32 v{t0}, v{t0}, s{S_T2}')
        a(f's_lshl_b32 s{S_T}, s{S_WJ}, 2')
        a(f'v_xor_b32 v{t1}, s{S_T}, v{t1}')
        a(f'v_lshl_add_u32 v{V_AD}, v{t1}, 4, v{t0}')
        a(f'v_xor_b32 v{t1}, 2, v{t1}')
        a(f'v_lshl_add_u32 v{V_AD+1}, v{t1}, 4, v{t0}')
        a(f'v_add_u32 v{V_AD+1}, {8*pitch-1024}, v{V_AD+1}')
    row_dma_offsets(1280)
    a(f's_mul_i32 s{S_T}, s{S_W}, 192')
    for j in range(3):
        a(f'v_add_u32 v{t0}, s{S_T}, v{V_L}')
        if j: a(f'v_add_u32 v{t0}, {64*j}, v{t0}')
        a(f'v_mul_u32_u24 v{t1}, 43691, v{t0}')
        a(f'v_lshrrev_b32 v{t1}, 19, v{t1}')
        a(f'v_mul_u32_u24 v{t2}, 12, v{t1}')
        a(f'v_sub_u32 v{t0}, v{t0}, v{t2}')
        a(f'v_bfe_u32 v{t2}, v{t1}, 3, 1')
        a(f'v_mad_u32_u24 v{t0}, v{t2}, 6, v{t0}')
        a(f'v_subrev_u32 v{t2}, 12, v{t0}')
        a(f'v_min_u32 v{t0}, v{t0}, v{t2}')
        a(f'v_mul_u32_u24 v{t1}, 3072, v{t1}')
        a(f'v_lshl_add_u32 v{V_BD+j}, v{t0}, 4, v{t1}')
        if j: a(f'v_subrev_u32 v{V_BD+j}, {1024*j}, v{V_BD+j}')

    def dma_p1(stage):
        slot = (stage & 3) * SLOT
        isA = stage < 10
        if isA:
            a(f's_lshl_b32 s{S_AO}, s{S_KC}, 7')
            a(f's_add_u32 s{S_AO}, s{S_AO}, s{S_ABASE}')
            a(f's_add_u32 m0, s{S_M_A}, {slot}')
            a(f's_mul_i32 s{S_BO}, s{S_KC}, {64*3072}')
            a(f'buffer_load_dwordx4 v{V_AD}, {srd(SRD_X)}, s{S_AO} offen lds')
            a(f'buffer_load_dwordx4 v{V_AD+1}, {srd(SRD_X)}, s{S_AO} offen offset:1024 lds')
            vm.issue(('A', stage), 2)
        else:
            a(f's_mul_i32 s{S_BO}, s{S_KC}, {64*3072}')
        a(f's_add_u32 s{S_BO}, s{S_BO}, s{S_BBASE}')
        a(f's_add_u32 m0, s{S_M_B}, {slot}')
        a(f's_add_u32 s{S_KC}, s{S_KC}, 1')
        for j in range(3):
            a(f'buffer_load_dwordx4 v{V_BD+j}, {srd(SRD_WIN)}, s{S_BO} offen offset:{1024*j} lds')
        vm.issue(('B', stage), 3)
        a(f's_cmp_eq_u32 s{S_KC}, 10')
        a(f's_cselect_b32 s{S_KC}, 0, s{S_KC}')
        if stage == 9:
            a(f's_sub_u32 s{S_BBASE}, s{S_BBASE}, 1536')
    vm.issue('epoch')
    for s in range(4): dma_p1(s)

    a(f'v_and_b32 v{t0}, 15, v{V_L}')
    a(f'v_lshrrev_b32 v{t1}, 4, v{V_L}')
    a(f'v_lshrrev_b32 v{t2}, 2, v{t0}')
    a(f'v_lshlrev_b32 v{t3}, 3, v{t2}')
    a(f'v_and_b32 v{V_AR}, 3, v{t0}')
    a(f'v_add_u32 v{t3}, v{t3}, v{V_AR}')
    a(f's_lshl_b32 s{S_T}, s{S_WI}, 5')
    a(f'v_add_u32 v{t3}, s{S_T}, v{t3}')
    a(f'v_lshlrev_b32 v{t3}, 7, v{t3}')
    a(f'v_lshlrev_b32 v{t2}, 1, v{t2}')
    a(f'v_bfe_u32 v{V_AR}, v{t0}, 1, 1')
    a(f'v_or_b32 v{t2}, v{t2}, v{V_AR}')
    a(f'v_xor_b32 v{t2}, v{t2}, v{t1}')
    a(f'v_lshl_add_u32 v{V_AR}, v{t2}, 4, v{t3}')
    a(f'v_xor_b32 v{V_AR+1}, 64, v{V_AR}')
    a(f'v_add_u32 v{V_AR+2}, {2*SLOT}, v{V_AR}')
    a(f'v_add_u32 v{V_AR+3}, {2*SLOT}, v{V_AR+1}')
    def br_p1(perm):
        a(f'v_lshrrev_b32 v{t2}, 2, v{t0}')
        a(f'v_lshl_add_u32 v{t2}, v{t1}, 3, v{t2}')
        a(f'v_mul_u32_u24 v{t2}, 192, v{t2}')
        a(f'v_and_b32 v{t3}, 1, v{t1}')
        a(f'v_xor_b32 v{t3}, s{S_WJ}, v{t3}')
        a(f'v_mad_u32_u24 v{t2}, v{t3}, 96, v{t2}') if False else None
        a(f'v_mul_u32_u24 v{t3}, 96, v{t3}')
        a(f'v_add_u32 v{t2}, v{t2}, v{t3}')
        a(f'v_and_b32 v{t3}, 3, v{V_L}')
        if perm:
            a(f'v_lshrrev_b32 v{V_BR}, 1, v{t3}')
            a(f'v_xor_b32 v{t3}, v{t3}, v{V_BR}')
        a(f'v_lshl_add_u32 v{V_BR}, v{t3}, 3, v{t2}')
        a(f'v_add_u32 v{V_BR}, {BOFF}, v{V_BR}')
        a(f'v_add_u32 v{V_BR+1}, {2*SLOT}, v{V_BR}')
    br_p1(False)
    a(f'v_lshrrev_b32 v{t2}, 2, v{t0}')
    a(f'v_lshl_add_u32 v{t3}, v{t1}, 3, v{t2}')
    a(f'v_lshlrev_b32 v{V_UR}, 7, v{t3}')
    a(f'v_lshrrev_b32 v{t2}, 1, v{t2}')
    a(f'v_lshl_or_b32 v{t2}, v{t1}, 1, v{t2}')
    a(f'v_bfe_u32 v{t3}, v{V_L}, 1, 1')
    a(f's_lshl_b32 s{S_T}, s{S_W}, 1')
    a(f'v_add_u32 v{t3}, s{S_T}, v{t3}')
    a(f'v_xor_b32 v{t3}, v{t3}, v{t2}')
    a(f'v_lshl_add_u32 v{V_UR}, v{t3}, 4, v{V_UR}')
    a(f'v_and_b32 v{t3}, 1, v{V_L}')
    a(f'v_lshl_add_u32 v{V_UR}, v{t3}, 3, v{V_UR}')
    a(f's_lshl_b32 s{S_T}, s{S_W}, 4')
    a(f'v_add_u32 v{V_US}, s{S_T}, v{t0}')
    a(f'v_lshlrev_b32 v{V_US}, 12, v{V_US}')
    a(f'v_lshl_add_u32 v{V_US}, v{t1}, 4, v{V_US}')
    for i in range(24):
        a(f'v_mov_b32 v{ACC2+i}, 0')
    c0 = np.sqrt(2 / np.pi)
    k0 = -2 * c0 * LOG2E; k1 = k0 * 0.044715
    a(f's_mov_b32 s{S_K1}, {hx(k1)}')
    a(f's_mov_b32 s{S_K1+1}, {hx(k1)}')
    a(f's_mov_b32 s{S_ONE}, 1.0')
    a(f's_mov_b32 s{S_ONE+1}, 1.0')
    a(f's_waitcnt vmcnt({vm.n_after("epoch")})')
    a(f'v_readfirstlane_b32 s{S_TAG}, v15')
    a(f's_add_u32 s{S_TAG}, s{S_TAG}, 1')

    def ar(stage, ks): return V_AR + ks + (2 if (stage & 2) else 0)
    def so(stage): return (stage & 1) * SLOT
    def br(stage): return V_BR + (1 if (stage & 2) else 0)
    def reads_p1(stage, ks):
        n = 0
        if stage < 10:
            for tau in range(2):
                a(f'ds_read_b128 {vr(XF+16*stage+8*ks+4*tau,4)}, v{ar(stage,ks)} offset:{so(stage)+512*tau}'); n += 1
        for phi in range(3):
            for half in range(2):
                a(f'ds_read_b64_tr_b16 {vr(WF+12*ks+4*phi+2*half,2)}, v{br(stage)} offset:{so(stage)+6144*ks+768*half+32*phi}'); n += 1
        return n
    def mfma_p1(stage, ks):
        i = stage % 10
        for tau in range(2):
            for phi in range(3):
                x = vr(XF + 16 * i + 8 * ks + 4 * tau, 4); w = vr(WF + 12 * ks + 4 * phi, 4)
                if stage < 10:
                    c = vr(ACC2 + 4 * (3 * tau + phi), 4)
                    a(f'v_mfma_f32_16x16x32_bf16 {c}, {x}, {w}, {c}')
                else:
                    c = vr(ACC1 + 4 * (2 * phi + tau), 4)
                    a(f'v_mfma_f32_16x16x32_bf16 {c}, {w}, {x}, {c}')

    def dma_p2_A(stage, track=True):
        slot = (stage & 3) * SLOT
        a(f's_lshl_b32 s{S_AO}, s{S_KC}, 7')
        a(f's_add_u32 s{S_AO}, s{S_AO}, s{S_ABASE}')
        a(f's_add_u32 m0, s{S_M_A}, {slot}')
        a(f's_add_u32 s{S_KC}, s{S_KC}, 1')
        a(f'buffer_load_dwordx4 v{V_AD}, {srd(SRD_WSP)}, s{S_AO} offen lds')
        a(f'buffer_load_dwordx4 v{V_AD+1}, {srd(SRD_WSP)}, s{S_AO} offen offset:1024 lds')
        a(f's_and_b32 s{S_KC}, s{S_KC}, 31')
        if track: vm.issue(('A', stage), 2)
    S_KZ = S_KC0
    def dma_p2_B(stage, track=True):
        slot = (stage & 3) * SLOT
        a(f's_mul_i32 s{S_BO}, s{S_KZ}, 12288')
        a(f's_add_u32 s{S_BO}, s{S_BO}, s{S_BBASE}')
        a(f's_add_u32 m0, s{S_M_B}, {slot}')
        a(f's_add_u32 s{S_KZ}, s{S_KZ}, 1')
        for j in range(3):
            a(f'buffer_load_dwordx4 v{V_BD}, {srd(SRD_WS)}, s{S_BO} offen offset:{1024*j} sc1 lds')
        a(f's_and_b32 s{S_KZ}, s{S_KZ}, 31')
        if track: vm.issue(('B', stage), 3)

    UT = V_T
    a(f's_waitcnt vmcnt({vm.n_after(("B", 0))})')
    a('s_barrier')
    reads_p1(0, 0)
    for s in range(20):
        if s == 10:
            p1a_epilogue(a, opt, vm, k0)
            if stop == 1:
                a('s_endpgm'); return
        n1 = reads_p1(s, 1)
        ut = s in (0, 8)
        if ut:
            if s == 8:
                a(f's_cmp_ge_u32 s{S_CB}, 2')
                a('s_cbranch_scc1 L_ut8_skip')
            for h2 in range(2):
                for half in range(2):
                    a(f'ds_read_b64_tr_b16 {vr(UT+4*h2+2*half,2)}, v{V_UR} offset:{(s&3)*SLOT+4096*h2+512*half}')
            if s == 8:
                a.lab('L_ut8_skip')
        a(f's_waitcnt lgkmcnt({n1})' if not ut else f's_waitcnt lgkmcnt({n1})' if s == 8 else f's_waitcnt lgkmcnt({n1+4})')
        mfma_p1(s, 0)
        if s < 19:
            a(f's_waitcnt vmcnt({vm.n_after(("B", s+1))}) lgkmcnt(0)')
        else:
            a('s_waitcnt lgkmcnt(0)')
        a('s_barrier')
        if ut:
            if s == 8:
                a(f's_cmp_ge_u32 s{S_CB}, 2')
                a('s_cbranch_scc1 L_us8_skip')
                a(f's_add_u32 s{S_T}, s{S_KC0}, 8')
                a(f's_sub_u32 s{S_T2}, s{S_T}, 10')
                a(f's_min_u32 s{S_T}, s{S_T}, s{S_T2}')
            else:
                a(f's_mov_b32 s{S_T}, s{S_KC0}')
            a(f's_lshl_b32 s{S_T}, s{S_T}, 18')
            a(f's_lshl_b32 s{S_T2}, s{S_RB}, 7')
            a(f's_add_u32 s{S_T}, s{S_T}, s{S_T2}')
            a(f's_add_u32 s{S_T}, s{S_T}, {WS_UT}')
            for h2 in range(2):
                a(f'buffer_store_dwordx4 {vr(UT+4*h2,4)}, v{V_US}, {srd(SRD_WS)}, s{S_T} offen offset:{64*h2} sc1')
            if s == 8:
                a.lab('L_us8_skip')
            else:
                vm.issue('ut0', 2)
        if s in (3, 11):
            a(f's_cmp_lg_u32 s{S_W}, 0')
            a(f's_cbranch_scc1 L_fu{s}_skip')
            if s == 11:
                a(f's_cmp_ge_u32 s{S_CB}, 2')
                a(f's_cbranch_scc1 L_fu{s}_skip')
                a(f's_add_u32 s{S_T}, s{S_KC0}, 8')
                a(f's_sub_u32 s{S_T2}, s{S_T}, 10')
                a(f's_min_u32 s{S_T}, s{S_T}, s{S_T2}')
            else:
                a(f's_mov_b32 s{S_T}, s{S_KC0}')
            a(f's_lshl_b32 s{S_T}, s{S_T}, 5')
            a(f's_add_u32 s{S_T}, s{S_T}, s{S_RB}')
            a(f's_lshl_b32 s{S_T}, s{S_T}, 2')
            a(f's_add_u32 s{S_T}, s{S_T}, {WS_FU}')
            flag_store(a, S_T, V_T)
            a.lab(f'L_fu{s}_skip')
        if s + 4 < 20:
            dma_p1(s + 4)
        else:
            if s == 16:
                row_dma_offsets(4096)
                a(f's_lshl_b32 s{S_ABASE}, s{S_RB}, 18')
                a(f's_and_b32 s{S_KC}, s{S_RB}, 24')
            dma_p2_A(s + 4)
        if s == 9:
            a(f'v_and_b32 v{t0}, 15, v{V_L}')
            a(f'v_lshrrev_b32 v{t1}, 4, v{V_L}')
            br_p1(True)
        if s < 19:
            reads_p1(s + 1, 0)
        mfma_p1(s, 1)
    p1b_epilogue(a, opt, vm, k0)
    if stop == 2:
        a('s_endpgm'); return
    ZF = 72
    G2 = ACC2
    a(f's_lshl_b32 s{S_T}, s{S_CB}, 7')
    a(f's_add_u32 s{S_T}, s{S_T}, {WS_FZ}')
    a(f'v_and_b32 v{t0}, 31, v{V_L}')
    a(f'v_lshlrev_b32 v{t0}, 2, v{t0}')
    poll(a, 'L_pz', [(t0, f's{S_T}')], t1, S_CNT)
    vm.ops = []
    a(f's_and_b32 s{S_KZ}, s{S_RB}, 24')
    a(f's_mul_i32 s{S_BBASE}, s{S_CB}, {32*12288}')
    a(f's_add_u32 s{S_BBASE}, s{S_BBASE}, {WS_Z}')
    a(f's_mul_i32 s{S_T}, s{S_W}, 3072')
    a(f'v_lshlrev_b32 v{V_BD}, 4, v{V_L}')
    a(f'v_add_u32 v{V_BD}, s{S_T}, v{V_BD}')
    for s in range(20, 24): dma_p2_B(s)
    a(f'v_and_b32 v{t0}, 15, v{V_L}')
    a(f'v_lshrrev_b32 v{t1}, 4, v{V_L}')
    a(f'v_lshrrev_b32 v{t2}, 3, v{t0}')
    a(f'v_lshlrev_b32 v{t2}, 2, v{t2}')
    a(f'v_xor_b32 v{t2}, v{t2}, v{t0}')
    a(f'v_mul_u32_u24 v{t3}, 96, v{t1}')
    a(f'v_add_u32 v{t2}, v{t2}, v{t3}')
    a(f's_mul_i32 s{S_T}, s{S_WJ}, 48')
    a(f'v_add_u32 v{t2}, s{S_T}, v{t2}')
    a(f'v_lshlrev_b32 v{V_BR}, 4, v{t2}')
    a(f'v_add_u32 v{V_BR}, {BOFF}, v{V_BR}')
    a(f'v_add_u32 v{V_BR+1}, {2*SLOT}, v{V_BR}')
    for i in range(24):
        a(f'v_mov_b32 v{G2+i}, 0')
    def reads_p2(stage, ks):
        f = ZF + 20 * ks
        for phi in range(3):
            a(f'ds_read_b128 {vr(f+4*phi,4)}, v{br(stage)} offset:{so(stage)+6144*ks+256*phi}')
        for tau in range(2):
            a(f'ds_read_b128 {vr(f+12+4*tau,4)}, v{ar(stage,ks)} offset:{so(stage)+512*tau}')
    def mfma_p2(ks):
        f = ZF + 20 * ks
        for tau in range(2):
            for phi in range(3):
                c = vr(G2 + 4 * (2 * phi + tau), 4)
                a(f'v_mfma_f32_16x16x32_bf16 {c}, {vr(f+4*phi,4)}, {vr(f+12+4*tau,4)}, {c}')
    V_OD = 112
    V_PD = 115
    S_K3 = S_KC
    def dma_p3_B(stage):
        slot = (stage & 3) * SLOT
        j = stage - 52
        a(f's_add_u32 m0, s{S_M_A}, {slot+BOFF}')
        a(f's_add_u32 s{S_BO}, s{S_T2}, {j*64*1280}')
        a(f'buffer_load_dwordx4 v{V_OD}, {srd(SRD_WOUT)}, s{S_BO} offen lds')
        a(f'buffer_load_dwordx4 v{V_OD+1}, {srd(SRD_WOUT)}, s{S_BO} offen offset:1024 lds')
        a(f's_add_u32 m0, s{S_M_C}, {slot}')
        a(f'buffer_load_dwordx4 v{V_OD+2}, {srd(SRD_WOUT)}, s{S_BO} offen lds')
        vm.issue(('B', stage), 3)
    def dma_p3_A(stage):
        slot = (stage & 3) * SLOT
        j = stage - 52
        a(f's_add_u32 m0, s{S_M_A}, {slot}')
        a(f's_add_u32 s{S_AO}, s{S_ABASE}, {j*8192}')
        a(f'buffer_load_dwordx4 v{V_PD}, {srd(SRD_WS)}, s{S_AO} offen sc1 lds')
        a(f'buffer_load_dwordx4 v{V_PD}, {srd(SRD_WS)}, s{S_AO} offen offset:1024 sc1 lds')
        vm.issue(('A', stage), 2)
    a(f's_lshl_b32 s{S_T}, s{S_W}, 7')
    a(f's_lshl_b32 s{S_T2}, s{S_WJ}, 6')
    a(f's_add_u32 s{S_T2}, s{S_T2}, 512')
    for j in range(3):
        a(f'v_add_u32 v{t0}, s{S_T if j < 2 else S_T2}, v{V_L}')
        if j == 1: a(f'v_add_u32 v{t0}, 64, v{t0}')
        a(f'v_mul_u32_u24 v{t1}, 52429, v{t0}')
        a(f'v_lshrrev_b32 v{t1}, 19, v{t1}')
        a(f'v_mul_u32_u24 v{t2}, 10, v{t1}')
        a(f'v_sub_u32 v{t0}, v{t0}, v{t2}')
        a(f'v_mul_u32_u24 v{t1}, 1280, v{t1}')
        a(f'v_lshl_add_u32 v{V_OD+j}, v{t0}, 4, v{t1}')
        if j == 1: a(f'v_subrev_u32 v{V_OD+j}, 1024, v{V_OD+j}')
    a(f's_lshl_b32 s{S_M_C}, s{S_WJ}, 10')
    a(f's_add_u32 s{S_M_C}, s{S_M_C}, {BOFF+8192}')
    a(f's_lshl_b32 s{S_T}, s{S_W}, 11')
    a(f'v_lshlrev_b32 v{V_PD}, 4, v{V_L}')
    a(f'v_add_u32 v{V_PD}, s{S_T}, v{V_PD}')
    a(f's_mul_i32 s{S_T2}, s{S_CB}, 160')

    def stage_p2(s, mode):
        reads_p2(s, 1)
        a('s_waitcnt lgkmcnt(5)')
        mfma_p2(0)
        if mode == 'loop':
            a('s_waitcnt vmcnt(10) lgkmcnt(0)')
        elif s < 51:
            a(f's_waitcnt vmcnt({vm.n_after(("B", s+1))}) lgkmcnt(0)')
        else:
            a('s_waitcnt lgkmcnt(0)')
        a('s_barrier')
        if mode == 'last':
            dma_p3_B(s + 4)
        else:
            dma_p2_A(s + 4, mode != 'loop'); dma_p2_B(s + 4, mode != 'loop')
        if s < 51:
            reads_p2(s + 1, 0)
        mfma_p2(1)
    a(f's_waitcnt vmcnt({vm.n_after(("B", 20))})')
    a('s_barrier')
    reads_p2(20, 0)
    for s in range(20, 24): stage_p2(s, 'first')
    a(f's_mov_b32 s{S_CNT}, 6')
    a.lab('L_p2_loop')
    for s in range(24, 28): stage_p2(s, 'loop')
    a(f's_sub_u32 s{S_CNT}, s{S_CNT}, 1')
    a(f's_cmp_lg_u32 s{S_CNT}, 0')
    a('s_cbranch_scc1 L_p2_loop')
    vm.ops = []
    for s in range(49, 52): vm.issue(('A', s), 2); vm.issue(('B', s), 3)
    for s in range(48, 52): stage_p2(s, 'last')
    BSP = 116
    PQ = 72
    a(f'v_and_b32 v{t0}, 15, v{V_L}')
    a(f'v_lshrrev_b32 v{t1}, 4, v{V_L}')
    a(f'v_lshrrev_b32 v{t2}, 1, v{t1}')
    a(f'v_lshlrev_b32 v{t2}, 6, v{t2}')
    a(f'v_lshrrev_b32 v{t3}, 2, v{t0}')
    a(f'v_lshl_add_u32 v{t2}, v{t3}, 3, v{t2}')
    a(f'v_and_b32 v{t3}, 1, v{t1}')
    a(f'v_lshl_add_u32 v{t2}, v{t3}, 2, v{t2}')
    a(f'v_and_b32 v{t3}, 3, v{t0}')
    a(f'v_add_u32 v{t2}, v{t2}, v{t3}')
    a(f's_mul_i32 s{S_T}, s{S_WJ}, 384')
    a(f's_lshl_b32 s{S_AO}, s{S_WI}, 5')
    a(f's_add_u32 s{S_T}, s{S_T}, s{S_AO}')
    a(f'v_add_u32 v{t2}, s{S_T}, v{t2}')
    a(f'v_lshlrev_b32 v{V_US}, 4, v{t2}')
    a(f's_mul_i32 s{S_ABASE}, s{S_RB}, 98304')
    a(f's_add_u32 s{S_ABASE}, s{S_ABASE}, {WS_P}')
    a(f's_mul_i32 s{S_T}, s{S_CB}, 12288')
    a(f's_add_u32 s{S_T}, s{S_T}, s{S_ABASE}')
    for phi in range(3):
        for tau in range(2):
            for hh in range(2):
                c = G2 + 4 * (2 * phi + tau) + 2 * hh
                z = ACC1 + 4 * (2 * phi + tau) + 2 * hh
                t = V_T + 4 * (hh & 1)
                a(f'v_cvt_pk_bf16_f32 v{t+2}, v{c}, v{c+1}')
                a(f'v_lshlrev_b32 v{t}, 16, v{t+2}')
                a(f'v_and_b32 v{t+1}, 0xffff0000, v{t+2}')
                a(f'v_pk_add_f32 {vr(t,2)}, {vr(t,2)}, {vr(BSP,2)} op_sel:[0,{tau}] op_sel_hi:[1,{tau}]')
                a(f'v_cvt_pk_bf16_f32 v{t+2}, v{t}, v{t+1}')
                a(f'v_lshlrev_b32 v{t}, 16, v{t+2}')
                a(f'v_and_b32 v{t+1}, 0xffff0000, v{t+2}')
                a(f'v_pk_mul_f32 {vr(t,2)}, {vr(t,2)}, {vr(z,2)}')
                a(f'v_cvt_pk_bf16_f32 v{PQ+4*phi+2*tau+hh}, v{t}, v{t+1}')
        q = PQ + 4 * phi
        a(f'v_permlane16_swap_b32 v{q}, v{q+2}')
        a(f'v_permlane16_swap_b32 v{q+1}, v{q+3}')
        a(f'buffer_store_dwordx4 {vr(q,4)}, v{V_US}, {srd(SRD_WS)}, s{S_T} offen offset:{2048*phi if phi < 2 else 0} sc1' if phi < 2 else
          f's_add_u32 s{S_T}, s{S_T}, 4096')
        if phi == 2:
            a(f'buffer_store_dwordx4 {vr(q,4)}, v{V_US}, {srd(SRD_WS)}, s{S_T} offen sc1')
    a('s_waitcnt vmcnt(0)')
    a('s_barrier')
    a(f's_cmp_lg_u32 s{S_W}, 0')
    a('s_cbranch_scc1 L_fp_skip')
    a(f's_lshl_b32 s{S_T}, s{S_RB}, 3')
    a(f's_add_u32 s{S_T}, s{S_T}, s{S_CB}')
    a(f's_lshl_b32 s{S_T}, s{S_T}, 2')
    a(f's_add_u32 s{S_T}, s{S_T}, {WS_FP}')
    flag_store(a, S_T, V_T)
    a.lab('L_fp_skip')
    if stop == 3:
        a('s_endpgm'); return
    a(f'v_and_b32 v{t0}, 7, v{V_L}')
    a(f'v_lshlrev_b32 v{t0}, 2, v{t0}')
    a(f's_lshl_b32 s{S_T}, s{S_RB}, 5')
    a(f'v_add_u32 v{t0}, s{S_T}, v{t0}')
    a(f'v_add_u32 v{t1}, {WS_FP}, v{t0}')
    a(f'v_add_u32 v{t2}, {WS_FG}, v{t0}')
    a(f'v_bfe_u32 v{t3}, v{V_L}, 3, 1')
    a(f'v_cmp_eq_u32 vcc, 1, v{t3}')
    a(f'v_cndmask_b32 v{t1}, v{t1}, v{t2}, vcc')
    a(f's_mul_i32 s{S_T}, s{S_CB}, 320')
    a(f's_add_u32 s{S_T}, s{S_T}, {WS_FA}')
    a(f'v_lshlrev_b32 v{t2}, 2, v{V_L}')
    a(f'v_add_u32 v{t2}, s{S_T}, v{t2}')
    a(f'v_and_b32 v{t3}, 15, v{V_L}')
    a(f'v_lshlrev_b32 v{t3}, 2, v{t3}')
    a(f'v_add_u32 v{t3}, s{S_T}, v{t3}')
    a(f'v_add_u32 v{t3}, 256, v{t3}')
    a(f'v_bfe_u32 v{t0}, v{V_L}, 4, 1')
    a(f'v_cmp_eq_u32 vcc, 1, v{t0}')
    a(f'v_cndmask_b32 v{t1}, v{t1}, v{t3}, vcc')
    poll(a, 'L_pp', [(t1, '0'), (t2, '0')], V_T + 4, S_CNT)
    vm.ops = []
    for s in range(52, 56): dma_p3_A(s)
    AT = 120
    GT = 132
    a(f's_lshl_b32 s{S_T}, s{S_W}, 7')
    a(f'v_add_u32 v{t0}, s{S_T}, v{V_L}')
    a(f's_lshl_b32 s{S_T}, s{S_WJ}, 6')
    a(f's_add_u32 s{S_T}, s{S_T}, 512')
    a(f'v_add_u32 v{t1}, s{S_T}, v{V_L}')
    V_AW = 134
    a(f'v_lshlrev_b32 v{V_AW}, 4, v{t0}')
    a(f'v_lshlrev_b32 v{V_AW+1}, 4, v{t1}')
    for tt in (t0, t1):
        a(f'v_lshrrev_b32 v{t2}, 3, v{tt}')
        a(f'v_and_b32 v{tt}, 7, v{tt}')
        a(f'v_lshlrev_b32 v{t2}, 12, v{t2}')
        a(f'v_lshl_add_u32 v{tt}, v{tt}, 4, v{t2}')
    a(f's_mul_i32 s{S_T}, s{S_CB}, {80*4096}')
    a(f's_lshl_b32 s{S_AO}, s{S_RB}, 7')
    a(f's_add_u32 s{S_T}, s{S_T}, s{S_AO}')
    a(f's_add_u32 s{S_T}, s{S_T}, {WS_AT}')
    a(f's_add_u32 s{S_AO}, s{S_T}, {8*4096}')
    a(f'buffer_load_dwordx4 {vr(AT,4)}, v{t0}, {srd(SRD_WS)}, s{S_T} offen sc1')
    a(f'buffer_load_dwordx4 {vr(AT+4,4)}, v{t0}, {srd(SRD_WS)}, s{S_AO} offen sc1')
    a(f'buffer_load_dwordx4 {vr(AT+8,4)}, v{t1}, {srd(SRD_WS)}, s{S_T} offen sc1')
    a(f'v_and_b32 v{t0}, 15, v{V_L}')
    a(f'v_lshrrev_b32 v{t1}, 4, v{V_L}')
    a(f's_lshl_b32 s{S_T}, s{S_RB}, 6')
    a(f's_lshl_b32 s{S_AO}, s{S_W}, 4')
    a(f's_add_u32 s{S_T}, s{S_T}, s{S_AO}')
    a(f'v_add_u32 v{t2}, s{S_T}, v{t0}')
    a(f'v_lshlrev_b32 v{t3}, 3, v{t2}')
    a(f'v_add_u32 v{t3}, {WS_G}, v{t3}')
    a(f'buffer_load_dwordx2 {vr(GT,2)}, v{t3}, {srd(SRD_WS)}, 0 offen sc1')
    vm.issue('at', 4)
    V_O1, V_O2 = 136, 137
    a(f'v_mul_u32_u24 v{t2}, 1280, v{t2}')
    a(f'v_add_u32 v{t2}, s{S_T2}, v{t2}')
    a(f'v_and_b32 v{t3}, 1, v{t1}')
    a(f'v_lshl_add_u32 v{V_O1}, v{t3}, 5, v{t2}')
    a(f'v_lshrrev_b32 v{t3}, 1, v{t1}')
    a(f'v_lshl_add_u32 v{V_O1}, v{t3}, 4, v{V_O1}')
    a(f'v_lshl_add_u32 v{V_O2}, v{t1}, 3, v{t2}')
    a(f'v_add_u32 v{V_O2}, 128, v{V_O2}')
    a(f'v_lshl_add_u32 v{t2}, v{t1}, 6, v{t0}')
    a(f's_lshl_b32 s{S_AO}, s{S_W}, 4')
    a(f'v_add_u32 v{t2}, s{S_AO}, v{t2}')
    a(f'v_lshlrev_b32 v{V_AR}, 4, v{t2}')
    a(f'v_add_u32 v{V_AR+2}, {2*SLOT}, v{V_AR}')
    V_B2 = 138
    a(f'v_lshrrev_b32 v{t2}, 2, v{t0}')
    a(f'v_lshl_add_u32 v{t2}, v{t1}, 3, v{t2}')
    a(f'v_and_b32 v{t3}, 1, v{t1}')
    a(f'v_lshl_add_u32 v{t2}, v{t3}, 2, v{t2}')
    a(f'v_xor_b32 v{t3}, 4, v{t2}')
    a(f'v_mul_u32_u24 v{t2}, 160, v{t2}')
    a(f'v_mul_u32_u24 v{t3}, 160, v{t3}')
    a(f'v_and_b32 v{V_BR}, 3, v{V_L}')
    a(f'v_lshlrev_b32 v{V_BR}, 3, v{V_BR}')
    a(f'v_add_u32 v{V_BR}, {BOFF}, v{V_BR}')
    a(f'v_add_u32 v{V_B2}, v{V_BR}, v{t3}')
    a(f'v_add_u32 v{V_BR}, v{V_BR}, v{t2}')
    a(f'v_add_u32 v{V_BR+1}, {2*SLOT}, v{V_BR}')
    a(f'v_add_u32 v{V_B2+1}, {2*SLOT}, v{V_B2}')
    V_ATR = 140
    a(f'v_lshrrev_b32 v{t2}, 2, v{t0}')
    a(f'v_lshl_add_u32 v{t2}, v{t1}, 2, v{t2}')
    a(f'v_lshlrev_b32 v{t2}, 7, v{t2}')
    a(f'v_and_b32 v{t3}, 3, v{V_L}')
    a(f'v_lshl_add_u32 v{t2}, v{t3}, 3, v{t2}')
    a(f's_lshl_b32 s{S_AO}, s{S_W}, 5')
    a(f'v_add_u32 v{V_ATR}, s{S_AO}, v{t2}')
    O3 = 24
    F3 = 72 - 24
    F3 = 48
    for i in range(20):
        a(f'v_mov_b32 v{O3+i}, 0')
    def reads_p3(stage, ks):
        f = F3 + 24 * ks
        hi = 1 if (stage & 2) else 0
        a(f'ds_read_b128 {vr(f,4)}, v{V_AR+2*hi} offset:{so(stage)+4096*ks}')
        for dl in range(5):
            a(f'ds_read_b64_tr_b16 {vr(f+4+4*dl,2)}, v{V_BR+hi} offset:{so(stage)+5120*ks+32*dl}')
            a(f'ds_read_b64_tr_b16 {vr(f+6+4*dl,2)}, v{V_B2+hi} offset:{so(stage)+5120*ks+32*dl}')
    def mfma_p3(ks):
        f = F3 + 24 * ks
        for dl in range(5):
            c = vr(O3 + 4 * dl, 4)
            a(f'v_mfma_f32_16x16x32_bf16 {c}, {vr(f+4+4*dl,4)}, {vr(f,4)}, {c}')
    a(f's_waitcnt vmcnt({vm.n_after(("A", 52))})')
    a('s_barrier')
    reads_p3(52, 0)
    for s in range(52, 64):
        reads_p3(s, 1)
        a('s_waitcnt lgkmcnt(11)')
        mfma_p3(0)
        if s < 63:
            last = ('A', s + 1)
            a(f's_waitcnt vmcnt({vm.n_after(last)}) lgkmcnt(0)')
        else:
            a('s_waitcnt lgkmcnt(0)')
        a('s_barrier')
        if s + 4 < 64:
            dma_p3_B(s + 4); dma_p3_A(s + 4)
        if s == 60:
            a(f'ds_write_b128 v{V_AW}, {vr(AT,4)}')
            a(f'ds_write_b128 v{V_AW}, {vr(AT+4,4)} offset:1024')
            a(f'ds_write_b128 v{V_AW+1}, {vr(AT+8,4)}')
        if s < 63:
            reads_p3(s + 1, 0)
        mfma_p3(1)
    AV = 96
    for dl in range(5):
        a(f'ds_read_b64_tr_b16 {vr(AV+2*dl,2)}, v{V_ATR} offset:{2048*dl}')
    a('s_waitcnt lgkmcnt(0)')
    RQ = 108
    for dl in range(5):
        for hh in range(2):
            c = O3 + 4 * dl + 2 * hh
            t = V_T + 4 * hh
            av = AV + 2 * dl + hh
            a(f'v_cvt_pk_bf16_f32 v{t+2}, v{c}, v{c+1}')
            a(f'v_lshlrev_b32 v{t}, 16, v{av}')
            a(f'v_and_b32 v{t+1}, 0xffff0000, v{av}')
            a(f'v_lshlrev_b32 v{c}, 16, v{t+2}')
            a(f'v_and_b32 v{c+1}, 0xffff0000, v{t+2}')
            a(f'v_pk_mul_f32 {vr(t,2)}, {vr(t,2)}, {vr(GT,2)} op_sel:[0,0] op_sel_hi:[1,0]')
            a(f'v_pk_mul_f32 {vr(c,2)}, {vr(c,2)}, {vr(GT,2)} op_sel:[0,1] op_sel_hi:[1,1]')
            a(f'v_cvt_pk_bf16_f32 v{t+2}, v{t}, v{t+1}')
            a(f'v_cvt_pk_bf16_f32 v{t+3}, v{c}, v{c+1}')
            a(f'v_lshlrev_b32 v{t}, 16, v{t+2}')
            a(f'v_and_b32 v{t+1}, 0xffff0000, v{t+2}')
            a(f'v_lshlrev_b32 v{c}, 16, v{t+3}')
            a(f'v_and_b32 v{c+1}, 0xffff0000, v{t+3}')
            a(f'v_pk_add_f32 {vr(t,2)}, {vr(t,2)}, {vr(c,2)}')
            a(f'v_cvt_pk_bf16_f32 v{RQ+2*dl+hh}, v{t}, v{t+1}')
        if dl in (1, 3):
            q = RQ + 2 * (dl - 1)
            a(f'v_permlane16_swap_b32 v{q}, v{q+2}')
            a(f'v_permlane16_swap_b32 v{q+1}, v{q+3}')
            a(f'buffer_store_dwordx4 {vr(q,4)}, v{V_O1}, {srd(SRD_OUT)}, 0 offen offset:{32*(dl-1)}')
        if dl == 4:
            a(f'buffer_store_dwordx2 {vr(RQ+8,2)}, v{V_O2}, {srd(SRD_OUT)}, 0 offen')
    a('s_endpgm')

Z2P = 24 + 0

def p1a_epilogue(a, opt, vm, k0):
    t0, t1, t2, t3 = V_T, V_T + 1, V_T + 2, V_T + 3
    SS, QQ = ACC1, ACC1 + 8
    K0 = ACC1 + 16
    ZT = ACC1 + 18
    PKD = ACC1 + 20
    a(f'v_mov_b32 v{K0}, {hx(k0)}')
    a(f'v_mov_b32 v{K0+1}, {hx(k0)}')
    for i in range(16):
        a(f'v_mov_b32 v{SS+i}, 0')
    order = [(tau, phi, hh) for tau in range(2) for phi in range(3) for hh in range(2)]
    pairs = [ACC2 + 4 * (3 * tau + phi) + 2 * hh for (tau, phi, hh) in order]
    def after(idx, c, t):
        tau, phi, hh = order[idx]
        a(f'v_cvt_pk_bf16_f32 v{c}, v{t+2}, v{t+3}')
        a(f'v_lshlrev_b32 v{t}, 16, v{c}')
        a(f'v_and_b32 v{t+1}, 0xffff0000, v{c}')
        r = 4 * tau + 2 * hh
        a(f'v_pk_add_f32 {vr(SS+r,2)}, {vr(SS+r,2)}, {vr(t,2)}')
        a(f'v_pk_fma_f32 {vr(QQ+r,2)}, {vr(t,2)}, {vr(t,2)}, {vr(QQ+r,2)}')
    gelu_pairs(a, pairs, K0, after)
    for rot in (8, 4, 2, 1):
        for i in range(16):
            a(f'v_add_f32_dpp v{SS+i}, v{SS+i}, v{SS+i} row_ror:{rot} row_mask:0xf bank_mask:0xf')
    a(f'v_and_b32 v{t0}, 15, v{V_L}')
    a(f'v_lshrrev_b32 v{t1}, 4, v{V_L}')
    GQ = V_T + 4
    a(f'v_mov_b32 v{GQ}, v{SS}')
    a(f'v_mov_b32 v{GQ+1}, v{QQ}')
    for j in range(1, 8):
        a(f'v_cmp_eq_u32 vcc, {j}, v{t0}')
        a(f'v_cndmask_b32 v{GQ}, v{GQ}, v{SS+j}, vcc')
        a(f'v_cndmask_b32 v{GQ+1}, v{GQ+1}, v{QQ+j}, vcc')
    a(f'v_mov_b32 v{GQ+2}, s{S_TAG}')
    a(f'v_mov_b32 v{GQ+3}, s{S_TAG}')
    a(f'v_lshl_add_u32 v{t2}, v{t1}, 3, v{t0}')
    a(f's_lshl_b32 s{S_T}, s{S_WI}, 5')
    a(f'v_add_u32 v{t2}, s{S_T}, v{t2}')
    a(f'v_lshlrev_b32 v{t2}, 8, v{t2}')
    a(f's_lshl_b32 s{S_T}, s{S_RB}, 14')
    a(f's_lshl_b32 s{S_T2}, s{S_CB}, 5')
    a(f's_add_u32 s{S_T}, s{S_T}, s{S_T2}')
    a(f's_lshl_b32 s{S_T2}, s{S_WJ}, 4')
    a(f's_add_u32 s{S_T}, s{S_T}, s{S_T2}')
    a(f's_add_u32 s{S_T}, s{S_T}, {WS_ST}')
    a(f'v_cmp_gt_u32 vcc, 8, v{t0}')
    a(f's_and_saveexec_b64 {sp(S_TMP2)}, vcc')
    a(f'buffer_store_dwordx4 {vr(GQ,4)}, v{t2}, {srd(SRD_WS)}, s{S_T} offen sc1')
    a(f's_mov_b64 exec, {sp(S_TMP2)}')
    vm.issue('st', 1)
    for i in range(24):
        a(f'v_mov_b32 v{ACC1+i}, 0')

def p1b_epilogue(a, opt, vm, k0):
    t0, t1, t2, t3 = V_T, V_T + 1, V_T + 2, V_T + 3
    ST = 96
    a(f'v_lshrrev_b32 v{t0}, 2, v{V_L}')
    a(f's_lshl_b32 s{S_T}, s{S_W}, 4')
    a(f'v_add_u32 v{t0}, s{S_T}, v{t0}')
    a(f'v_and_b32 v{t1}, 3, v{V_L}')
    a(f'v_lshlrev_b32 v{t2}, 8, v{t0}')
    a(f'v_lshl_add_u32 v{t2}, v{t1}, 6, v{t2}')
    a(f's_lshl_b32 s{S_T}, s{S_RB}, 14')
    a(f's_add_u32 s{S_T}, s{S_T}, {WS_ST}')
    BSP = 116
    a(f'v_bfe_u32 v{t3}, v{V_L}, 2, 2')
    a(f'v_lshlrev_b32 v{t3}, 3, v{t3}')
    a(f'v_add_u32 v{t3}, v{t3}, v{t1}')
    a(f's_lshl_b32 s{S_T2}, s{S_RB}, 6')
    a(f's_lshl_b32 s{S_AO}, s{S_WI}, 5')
    a(f's_add_u32 s{S_T2}, s{S_T2}, s{S_AO}')
    a(f'v_add_u32 v{t3}, s{S_T2}, v{t3}')
    a(f'v_lshlrev_b32 v{t3}, 1, v{t3}')
    a(f'global_load_ushort v{BSP}, v{t3}, {sp(P_BSP)}')
    a(f'global_load_ushort v{BSP+1}, v{t3}, {sp(P_BSP)} offset:8')
    a(f's_mov_b32 s{S_CNT}, {SPIN_MAX}')
    a.lab('L_ln_spin')
    for k in range(4):
        a(f'buffer_load_dwordx4 {vr(ST+4*k,4)}, v{t2}, {srd(SRD_WS)}, s{S_T} offen offset:{16*k} sc1')
    a('s_waitcnt vmcnt(0)')
    a(f'v_cmp_ne_u32 vcc, s{S_TAG}, v{ST+2}')
    for k in range(4):
        for e in (2, 3):
            if k == 0 and e == 2: continue
            a(f'v_cmp_ne_u32 s[84:85], s{S_TAG}, v{ST+4*k+e}')
            a('s_or_b64 vcc, vcc, s[84:85]')
    a('s_cbranch_vccz L_ln_done')
    a('s_sleep 1')
    a(f's_sub_u32 s{S_CNT}, s{S_CNT}, 1')
    a(f's_cmp_lg_u32 s{S_CNT}, 0')
    a('s_cbranch_scc1 L_ln_spin')
    a.lab('L_ln_done')
    vm.ops = []
    a(f'v_pk_add_f32 {vr(ST,2)}, {vr(ST,2)}, {vr(ST+4,2)}')
    a(f'v_pk_add_f32 {vr(ST+8,2)}, {vr(ST+8,2)}, {vr(ST+12,2)}')
    a(f'v_pk_add_f32 {vr(ST,2)}, {vr(ST,2)}, {vr(ST+8,2)}')
    for qp in ('[1,0,3,2]', '[2,3,0,1]'):
        a(f'v_add_f32_dpp v{ST}, v{ST}, v{ST} quad_perm:{qp} row_mask:0xf bank_mask:0xf')
        a(f'v_add_f32_dpp v{ST+1}, v{ST+1}, v{ST+1} quad_perm:{qp} row_mask:0xf bank_mask:0xf')
    a(f'v_mul_f32 v{ST}, {hx(1/768)}, v{ST}')
    a(f'v_mul_f32 v{ST+1}, {hx(1/768)}, v{ST+1}')
    a(f'v_fma_f32 v{ST+1}, -v{ST}, v{ST}, v{ST+1}')
    a(f'v_max_f32 v{ST+1}, 0, v{ST+1}')
    a(f'v_cvt_pk_bf16_f32 v{ST+2}, v{ST}, v{ST+1}')
    a(f'v_lshlrev_b32 v{ST}, 16, v{ST+2}')
    a(f'v_and_b32 v{ST+1}, 0xffff0000, v{ST+2}')
    a(f'v_add_f32 v{ST+1}, {hx(1e-5)}, v{ST+1}')
    a(f'v_cvt_pk_bf16_f32 v{ST+1}, v{ST+1}, v{ST+1}')
    a(f'v_and_b32 v{ST+1}, 0xffff0000, v{ST+1}')
    a(f'v_sqrt_f32 v{ST+1}, v{ST+1}')
    a(f'v_cvt_pk_bf16_f32 v{ST+1}, v{ST+1}, v{ST+1}')
    a(f'v_and_b32 v{ST+1}, 0xffff0000, v{ST+1}')
    a(f'v_rcp_f32 v{ST+1}, v{ST+1}')
    LN = BOFF
    a(f'v_lshlrev_b32 v{t0}, 2, v{t0}')
    a(f'ds_write_b32 v{t0}, v{ST} offset:{LN}')
    a(f'ds_write_b32 v{t0}, v{ST+1} offset:{LN+256}')
    a(f'v_lshlrev_b32 v{BSP}, 16, v{BSP}')
    a(f'v_lshlrev_b32 v{BSP+1}, 16, v{BSP+1}')
    a(f'v_lshrrev_b32 v{t1}, 4, v{V_L}')
    a(f's_lshl_b32 s{S_T}, s{S_WI}, 7')
    a(f'v_lshlrev_b32 v{t2}, 5, v{t1}')
    a(f'v_add_u32 v{t2}, s{S_T}, v{t2}')
    a('s_waitcnt lgkmcnt(0)')
    a('s_barrier')
    MM, RR = 100, 108
    a(f'ds_read_b128 {vr(MM,4)}, v{t2} offset:{LN}')
    a(f'ds_read_b128 {vr(MM+4,4)}, v{t2} offset:{LN+16}')
    a(f'ds_read_b128 {vr(RR,4)}, v{t2} offset:{LN+256}')
    a(f'ds_read_b128 {vr(RR+4,4)}, v{t2} offset:{LN+272}')
    a(f'v_and_b32 v{t0}, 15, v{V_L}')
    a(f'v_mul_u32_u24 v{t1}, 96, v{t1}')
    a(f'v_add_u32 v{t0}, v{t0}, v{t1}')
    a(f's_mul_i32 s{S_T}, s{S_WI}, 384')
    a(f's_mul_i32 s{S_T2}, s{S_WJ}, 48')
    a(f's_add_u32 s{S_T}, s{S_T}, s{S_T2}')
    a(f'v_add_u32 v{t0}, s{S_T}, v{t0}')
    a(f'v_lshlrev_b32 v{V_US}, 4, v{t0}')
    a(f's_lshl_b32 s{S_T}, s{S_CB}, 5')
    a(f's_add_u32 s{S_T}, s{S_T}, s{S_RB}')
    a(f's_lshl_b32 s{S_AO}, s{S_T}, 2')
    a(f's_add_u32 s{S_AO}, s{S_AO}, {WS_FZ}')
    a(f's_mul_i32 s{S_T}, s{S_T}, 12288')
    a(f's_add_u32 s{S_T}, s{S_T}, {WS_Z}')
    a('s_waitcnt lgkmcnt(0)')
    ZQ = 72
    for phi in range(3):
        for tau in range(2):
            for hh in range(2):
                c = ACC2 + 4 * (3 * tau + phi) + 2 * hh
                r = 4 * tau + 2 * hh
                t = V_T + 4 * hh
                a(f'v_lshlrev_b32 v{t}, 16, v{c}')
                a(f'v_and_b32 v{t+1}, 0xffff0000, v{c}')
                a(f'v_pk_add_f32 {vr(t,2)}, {vr(t,2)}, {vr(MM+r,2)} neg_lo:[0,1] neg_hi:[0,1]')
                a(f'v_cvt_pk_bf16_f32 v{t+2}, v{t}, v{t+1}')
                a(f'v_lshlrev_b32 v{t}, 16, v{t+2}')
                a(f'v_and_b32 v{t+1}, 0xffff0000, v{t+2}')
                a(f'v_pk_mul_f32 {vr(t,2)}, {vr(t,2)}, {vr(RR+r,2)}')
                a(f'v_cvt_pk_bf16_f32 v{ZQ+4*phi+2*tau+hh}, v{t}, v{t+1}')
        a(f'buffer_store_dwordx4 {vr(ZQ+4*phi,4)}, v{V_US}, {srd(SRD_WS)}, s{S_T} offen offset:{256*phi} sc1')
    K0 = 118
    a(f'v_mov_b32 v{K0}, {hx(k0)}')
    a(f'v_mov_b32 v{K0+1}, {hx(k0)}')
    pairs = [ACC1 + 2 * i for i in range(12)]
    def after(idx, c, t):
        a(f'v_cvt_pk_bf16_f32 v{t}, v{t+2}, v{t+3}')
        a(f'v_lshlrev_b32 v{c}, 16, v{t}')
        a(f'v_and_b32 v{c+1}, 0xffff0000, v{t}')
    gelu_pairs(a, pairs[:4], K0, after)
    a('s_waitcnt vmcnt(0)')
    a('s_barrier')
    a(f's_cmp_lg_u32 s{S_W}, 0')
    a('s_cbranch_scc1 L_fz_skip')
    flag_store(a, S_AO, V_T)
    a.lab('L_fz_skip')
    gelu_pairs(a, pairs[4:], K0, after)
    if opt.get('dump_z1'):
        a(f's_lshl_b32 s{S_T}, s2, 2')
        a(f's_add_u32 s{S_T}, s{S_T}, s{S_W}')
        a(f's_mul_i32 s{S_T}, s{S_T}, {24*256}')
        a(f's_add_u32 s{S_T}, s{S_T}, {WS_DBG}')
        a(f'v_lshlrev_b32 v{t0}, 2, v{V_L}')
        for i in range(24):
            a(f'buffer_store_dword v{ACC1+i}, v{t0}, {srd(SRD_WS)}, s{S_T} offen offset:{256*(i%16)}')
            if i == 15: a(f's_add_u32 s{S_T}, s{S_T}, 4096')
        a('s_waitcnt vmcnt(0)')
```

```python
import sys, struct
import numpy as np
sys.path.insert(0, 'gen')
from asmlib import Asm

KNAME = 'gated_mix__ssm_conv_s4__mixer_gmlp__prompt_kernel'

def f2u(x): return struct.unpack('<I', struct.pack('<f', x))[0]
def hx(x): return '0x%08x' % f2u(x)

WS_EPOCH = 0x0
WS_FZ = 0x1000
WS_FU = 0x2000
WS_FP = 0x3000
WS_FA = 0x4000
WS_FG = 0x5000
WS_G = 0x8000
WS_ST = 0x10000
WS_Z = 0x100000
WS_P = 0x400000
WS_UT = 0x700000
WS_AT = 0xA00000
WS_DBG = 0x1000000
WS_SIZE = 0x4000000

P_U, P_ARE, P_AIM, P_BRE, P_BIM, P_CRE, P_CIM, P_LDT = 16, 18, 20, 22, 24, 26, 28, 30
P_DSK, P_BX, P_WIN, P_WSP, P_BSP, P_WOUT, P_GW, P_OUT = 32, 34, 36, 38, 40, 42, 44, 46
P_DBG, P_WS = 48, 50
SRD_X, SRD_WIN, SRD_WSP, SRD_WOUT, SRD_WS, SRD_OUT = 52, 56, 60, 64, 68, 72
S_TAG, S_W = 80, 81
def srd(n): return f's[{n}:{n+3}]'
def sp(n): return f's[{n}:{n+1}]'
def vr(a, n): return f'v[{a}:{a+n-1}]'

LOG2E = 1.4426950408889634
SPIN_MAX = 200000

def mk_srd(a, dst, ptr, size):
    a(f's_mov_b32 s{dst}, s{ptr}')
    a(f's_and_b32 s{dst+1}, s{ptr+1}, 0xffff')
    a(f's_mov_b32 s{dst+2}, {size}')
    a(f's_mov_b32 s{dst+3}, 0x00020000')

def cmul(a, dst, x, y, tmp):
    a(f'v_pk_mul_f32 {vr(tmp,2)}, {vr(x,2)}, {vr(y,2)} op_sel:[0,0] op_sel_hi:[0,1]')
    a(f'v_pk_fma_f32 {vr(dst,2)}, {vr(x,2)}, {vr(y,2)}, {vr(tmp,2)} op_sel:[1,1,0] op_sel_hi:[1,0,1] neg_lo:[1,0,0]')

def poll(a, name, loads, vtmp, scount, nlanes_mask=None):
    a(f's_mov_b32 s{scount}, {SPIN_MAX}')
    a.lab(f'{name}_spin')
    for i, (va, so) in enumerate(loads):
        a(f'buffer_load_dword v{vtmp+i}, v{va}, {srd(SRD_WS)}, {so} offen sc1')
    a('s_waitcnt vmcnt(0)')
    a(f'v_cmp_ne_u32 vcc, s{S_TAG}, v{vtmp}')
    for i in range(1, len(loads)):
        a(f'v_cmp_ne_u32 s[84:85], s{S_TAG}, v{vtmp+i}')
        a('s_or_b64 vcc, vcc, s[84:85]')
    a(f's_cbranch_vccz {name}_done')
    a('s_sleep 2')
    a(f's_sub_u32 s{scount}, s{scount}, 1')
    a(f's_cmp_lg_u32 s{scount}, 0')
    a(f's_cbranch_scc1 {name}_spin')
    a.lab(f'{name}_done')

WAVE_LDS = 26624
CP = 4160
UOFF = 16640
def side_channel(a, opt):
    sD, sLB, sT, sT2, sUns = 82, 83, 86, 87, 88
    vL = 1
    a(f's_mul_i32 s{sLB}, s{S_W}, {WAVE_LDS}')
    a(f's_mul_i32 s{sT}, s{sD}, 384')
    a(f'v_lshlrev_b32 v2, 1, v{vL}')
    a(f'v_add_u32 v2, s{sT}, v2')
    PR = 10
    arrs = [P_ARE, P_AIM, P_BRE, P_BIM, P_CRE, P_CIM]
    a(f's_lshl_b32 s{sT}, s{sD}, 1')
    a(f'v_mov_b32 v3, s{sT}')
    a(f'global_load_ushort v28, v3, {sp(P_LDT)}')
    a(f'global_load_ushort v29, v3, {sp(P_DSK)}')
    for ch in range(3):
        for k, p in enumerate(arrs):
            a(f'global_load_ushort v{PR+6*ch+k}, v2, {sp(p)} offset:{128*ch}')
    vWr, vRd = 4, 5
    a(f'v_lshlrev_b32 v{vWr}, 2, v{vL}')
    a(f'v_add_u32 v{vWr}, s{sLB}, v{vWr}')
    a(f'v_and_b32 v6, 31, v{vL}')
    a(f'v_mul_u32_u24 v{vRd}, 272, v6')
    a(f'v_lshrrev_b32 v7, 5, v{vL}')
    a(f'v_lshl_add_u32 v{vRd}, v7, 4, v{vRd}')
    a(f'v_add_u32 v{vRd}, s{sLB}, v{vRd}')
    hi = struct.unpack('<f', struct.pack('<I', f2u(LOG2E) & 0xFFFFF000))[0]
    lo = LOG2E - hi
    a('s_waitcnt vmcnt(18)')
    a('v_lshlrev_b32 v28, 16, v28')
    a('v_lshlrev_b32 v29, 16, v29')
    a(f'v_mul_f32 v8, {hx(hi)}, v28')
    a('v_rndne_f32 v9, v8')
    a('v_sub_f32 v8, v8, v9')
    a(f'v_fmac_f32 v8, {hx(lo)}, v28')
    a('v_exp_f32 v8, v8')
    a('v_cvt_i32_f32 v9, v9')
    a('v_ldexp_f32 v8, v8, v9')
    a('v_cvt_pk_bf16_f32 v8, v8, v8')
    a('v_lshlrev_b32 v28, 16, v8')
    a('s_waitcnt vmcnt(0)')
    for i in range(18):
        a(f'v_lshlrev_b32 v{PR+i}, 16, v{PR+i}')
    WR = 32
    AW = 38
    for ch in range(3):
        b = PR + 6 * ch
        a(f'v_mul_f32 v{b}, v28, v{b}')
        a(f'v_mul_f32 v{b+1}, v28, v{b+1}')
        a(f'v_mul_f32 v{b+2}, v28, v{b+2}')
        a(f'v_mul_f32 v{b+3}, v28, v{b+3}')
        a(f'v_mul_f32 v{AW+2*ch}, {hx(LOG2E)}, v{b}')
        a(f'v_mul_f32 v{AW+2*ch+1}, {hx(1/(2*np.pi))}, v{b+1}')
        cmul(a, WR + 2 * ch, b + 4, b + 2, 8)
    a(f'v_max3_f32 v8, abs(v{WR}), abs(v{WR+1}), abs(v{WR+2})')
    a(f'v_max3_f32 v8, v8, abs(v{WR+3}), abs(v{WR+4})')
    a(f'v_max_f32 v8, v8, abs(v{WR+5})')
    for r in (8, 4, 2, 1):
        a(f'v_max_f32_dpp v8, v8, v8 row_ror:{r} row_mask:0xf bank_mask:0xf')
    a(f'v_readlane_b32 s{sT}, v8, 0')
    a(f'v_readlane_b32 s{sT2}, v8, 16')
    a(f's_max_u32 s{sT}, s{sT}, s{sT2}')
    a(f'v_readlane_b32 s{sT2}, v8, 32')
    a(f's_max_u32 s{sT}, s{sT}, s{sT2}')
    a(f'v_readlane_b32 s{sT2}, v8, 48')
    a(f's_max_u32 s{sT}, s{sT}, s{sT2}')
    a(f's_lshr_b32 s{sT}, s{sT}, 23')
    a(f's_min_u32 s{sT}, s{sT}, 252')
    a(f's_add_u32 s{sUns}, s{sT}, 1')
    a(f's_lshl_b32 s{sUns}, s{sUns}, 23')
    a(f's_sub_u32 s{sT}, 253, s{sT}')
    a(f's_lshl_b32 s{sT}, s{sT}, 23')
    for i in range(6):
        a(f'v_mul_f32 v{WR+i}, s{sT}, v{WR+i}')
    D = 72
    for i in range(16):
        a(f'v_mov_b32 v{D+i}, 0')
    E1, E8, GG = 44, 46, 48
    X = 50
    T = 8
    PK = 68
    FR = 88
    YB = 8704
    sCnt = 89
    a(f's_mov_b32 s{sCnt}, 3')
    a.lab('L_kg_chunk')
    def cexp(dst, P):
        if P == 1:
            a(f'v_exp_f32 v{T}, v{AW}')
            a(f'v_fract_f32 v{T+1}, v{AW+1}')
        else:
            a(f'v_mul_f32 v{T}, {hx(float(P))}, v{AW}')
            a(f'v_mul_f32 v{T+1}, {hx(float(P))}, v{AW+1}')
            a(f'v_exp_f32 v{T}, v{T}')
            a(f'v_fract_f32 v{T+1}, v{T+1}')
        a(f'v_cos_f32 v{dst}, v{T+1}')
        a(f'v_sin_f32 v{dst+1}, v{T+1}')
        a(f'v_pk_mul_f32 {vr(dst,2)}, {vr(dst,2)}, {vr(T,2)} op_sel:[0,0] op_sel_hi:[1,0]')
    cexp(E1, 1); cexp(E8, 8); cexp(GG, 256)
    pk = [0]
    def putX(pair, rows):
        r = PK + (pk[0] & 3); pk[0] += 1
        a(f'v_cvt_pk_f16_f32 v{r}, v{pair}, v{pair+1}')
        for row in rows:
            a(f'ds_write_b32 v{vWr}, v{r} offset:{row*272}')
    def putY(pair, row):
        r = PK + (pk[0] & 3); pk[0] += 1
        a(f'v_cvt_pk_f16_f32 v{r}, v{pair}, -v{pair+1}')
        a(f'ds_write_b32 v{vWr}, v{r} offset:{YB+row*272}')
    def row_of(h, reg): return 8 * (reg >> 2) + 4 * h + (reg & 3)
    a(f'v_mov_b32 v{X}, v{WR}')
    a(f'v_mov_b32 v{X+1}, v{WR+1}')
    putX(X, [row_of(0, 0)])
    for k in range(1, 9):
        cmul(a, X + 2 * k, X + 2 * (k - 1), E1, T)
        if k < 8: putX(X + 2 * k, [row_of(0, k)])
    rows256 = {0: [row_of(1, 0), row_of(1, 1)], 2: [row_of(1, 2)], 4: [row_of(1, 3), row_of(1, 4), row_of(1, 5)], 6: [row_of(1, 6)], 8: [row_of(1, 7)]}
    for k in (0, 2, 4, 6, 8):
        cmul(a, X + 2 * k, X + 2 * k, GG, T); putX(X + 2 * k, rows256[k])
    for h in (0, 1):
        for j, k in enumerate((0, 4, 8)):
            cmul(a, X + 2 * k, X + 2 * k, GG, T); putX(X + 2 * k, [row_of(h, 8 + j)])
    for step in range(4):
        h = step >> 1
        for j, k in enumerate((0, 8)):
            cmul(a, X + 2 * k, X + 2 * k, GG, T); putX(X + 2 * k, [row_of(h, 11 + 2 * (step & 1) + j)])
    a(f'v_mov_b32 v{PK}, 0x00003c00')
    a(f'ds_write_b32 v{vWr}, v{PK} offset:{YB}')
    putY(E8, 1)
    Y = X
    cmul(a, Y, E8, E8, T); putY(Y, 2)
    for k in range(3, 32):
        cmul(a, Y, Y, E8, T); putY(Y, k)
    for ks in range(2):
        a(f'ds_read_b128 {vr(FR+8*ks,4)}, v{vRd} offset:{32*ks}')
        a(f'ds_read_b128 {vr(FR+8*ks+4,4)}, v{vRd} offset:{YB+32*ks}')
    for i in range(4):
        a(f'v_mov_b32 v{WR+i}, v{WR+2+i}')
    for i in range(4):
        a(f'v_mov_b32 v{AW+i}, v{AW+2+i}')
    for ks in range(8):
        f = FR + 8 * (ks & 1)
        a('s_waitcnt lgkmcnt(2)' if ks < 7 else 's_waitcnt lgkmcnt(0)')
        a(f'v_mfma_f32_32x32x16_f16 {vr(D,16)}, {vr(f,4)}, {vr(f+4,4)}, {vr(D,16)}')
        if ks + 2 < 8:
            a(f'ds_read_b128 {vr(f,4)}, v{vRd} offset:{32*(ks+2)}')
            a(f'ds_read_b128 {vr(f+4,4)}, v{vRd} offset:{YB+32*(ks+2)}')
    a(f's_sub_u32 s{sCnt}, s{sCnt}, 1')
    a(f's_cmp_lg_u32 s{sCnt}, 0')
    a('s_cbranch_scc1 L_kg_chunk')
    a(f'v_lshlrev_b32 v10, 4, v6')
    a(f'v_sub_u32 v10, {16*255}, v10')
    a(f'v_add_u32 v10, s{sLB}, v10')
    a(f'v_lshlrev_b32 v11, 9, v7')
    a(f'v_sub_u32 v12, v10, v11')
    a(f'v_subrev_u32 v12, 1024, v12')
    a(f'v_sub_u32 v13, v10, v11')
    a(f'v_sub_u32 v13, v13, v11')
    a(f'v_subrev_u32 v13, 2560, v13')
    a(f'v_and_b32 v14, 1, v{vL}')
    a('v_cmp_eq_u32 vcc, 0, v14')
    a.fence(8)
    for i in range(15):
        a(f'v_mul_f32 v{D+i}, s{sUns}, v{D+i}')
    O = 16
    O = 88
    for j in range(4):
        a(f'v_cvt_pk_bf16_f32 v{O+j}, v{D+7-2*j}, v{D+6-2*j}')
    a(f'ds_write_b128 v12, {vr(O,4)} offset:1024')
    w0, w4, w8 = D + 8, D + 9, D + 10
    for j, (lo_, hi_) in enumerate([(w8, w8), (w4, w4), (w4, w0), (w0, w0)]):
        a(f'v_cvt_pk_bf16_f32 v{O+4+j}, v{lo_}, v{hi_}')
    a(f'ds_write_b128 v12, {vr(O+4,4)}')
    for s, (x0, x8, off) in enumerate([(D + 11, D + 12, 512), (D + 13, D + 14, 0)]):
        q = O + 8 + 4 * s
        a(f'v_cndmask_b32 v14, v{x8}, v{x0}, vcc')
        a(f'v_cvt_pk_bf16_f32 v{q}, v{x8}, v{x8}')
        a(f'v_cvt_pk_bf16_f32 v{q+1}, v{x8}, v14')
        a(f'v_cvt_pk_bf16_f32 v{q+2}, v{x0}, v{x0}')
        a(f'v_mov_b32 v{q+3}, v{q+2}')
        a(f'ds_write_b128 v13, {vr(q,4)} offset:{off}')
    a(f'v_lshrrev_b32 v10, 2, v{vL}')
    a(f'v_mul_u32_u24 v10, {CP}, v10')
    a(f'v_and_b32 v11, 3, v{vL}')
    a(f'v_lshl_add_u32 v10, v11, 4, v10')
    a(f'v_add_u32 v10, 4096, v10')
    a(f'v_subrev_u32 v11, 16, v{vL}')
    a(f'v_min_u32 v11, 29, v11')
    a(f'v_lshlrev_b32 v11, 4, v11')
    a(f'v_add_u32 v11, {UOFF}, v11')
    a(f'v_cmp_gt_u32 vcc, 16, v{vL}')
    a('v_cndmask_b32 v10, v11, v10, vcc')
    a(f'v_add_u32 v10, s{sLB}, v10')
    for i in range(4):
        a(f'v_mov_b32 v{16+i}, 0')
    a(f'ds_write_b128 v10, v[16:19]')
    a(f'v_lshlrev_b32 v10, 4, v{vL}')
    a(f'v_add_u32 v10, s{sLB}, v10')
    Wd = 32
    for it in range(4):
        a(f'ds_read_b128 {vr(Wd+8*it,4)}, v10 offset:{1024*it}')
        a(f'ds_read_b64 {vr(Wd+8*it+4,2)}, v10 offset:{1024*it+16}')
    for it in range(4):
        w = Wd + 8 * it
        q = 64 + 12 * (it & 1)
        a(f's_waitcnt lgkmcnt({min(15, 6 - 2*it + 3*it)})' if False else f's_waitcnt lgkmcnt({(3-it)*2 + (3*it if it else 0) if False else 0})' if it == 0 else '; (already waited)')
        for k in range(4):
            a(f'v_alignbyte_b32 v{q+k}, v{w+k+1}, v{w+k}, 2')
        a(f'ds_write_b128 v10, {vr(q,4)} offset:{CP+1024*it}')
        for k in range(4):
            a(f'v_mov_b32 v{q+4+k}, v{w+k+1}')
        a(f'ds_write_b128 v10, {vr(q+4,4)} offset:{2*CP+1024*it}')
        for k in range(4):
            a(f'v_alignbyte_b32 v{q+8+k}, v{w+k+2}, v{w+k+1}, 2')
        a(f'ds_write_b128 v10, {vr(q+8,4)} offset:{3*CP+1024*it}')
    if opt.get('dump_k'):
        a('s_waitcnt lgkmcnt(0)')
        a(f's_mul_i32 s{sT}, s{sD}, 17408')
        a(f's_add_u32 s{sT}, s{sT}, {WS_DBG}')
        a(f'v_lshlrev_b32 v11, 4, v{vL}')
        for it in range(17):
            a(f'ds_read_b128 v[16:19], v10 offset:{1024*it}')
            a('s_waitcnt lgkmcnt(0)')
            a(f'buffer_store_dwordx4 v[16:19], v11, {srd(SRD_WS)}, s{sT} offen')
            a(f's_add_u32 s{sT}, s{sT}, 1024')
        a('s_waitcnt vmcnt(0)')
    a(f's_lshr_b32 s{sT}, s{sD}, 6')
    a(f's_lshl_b32 s{sT}, s{sT}, 7')
    a(f's_add_u32 s{sT}, s{sT}, {WS_FU}')
    a(f'v_lshlrev_b32 v11, 2, v6')
    poll(a, 'L_pu', [(11, f's{sT}')], 12, 89)
    a(f's_lshl_b32 s{sT}, s{sD}, 12')
    a(f's_add_u32 s{sT2}, s{sT}, {WS_UT}')
    a(f'v_lshlrev_b32 v11, 4, v{vL}')
    for it in range(4):
        a(f'buffer_load_dwordx4 {vr(32+4*it,4)}, v11, {srd(SRD_WS)}, s{sT2} offen offset:{1024*it} sc1')
    vKA, vUB = 4, 5
    a(f'v_and_b32 v12, 15, v{vL}')
    a(f'v_lshrrev_b32 v13, 4, v{vL}')
    a('v_sub_u32 v14, 3, v12')
    a('v_and_b32 v14, 3, v14')
    a(f'v_mul_u32_u24 v{vKA}, {CP}, v14')
    a('v_add_u32 v15, v12, v14')
    a('v_sub_u32 v15, 2031, v15')
    a('v_lshl_add_u32 v15, v13, 3, v15')
    a(f'v_lshl_add_u32 v{vKA}, v15, 1, v{vKA}')
    a(f'v_subrev_u32 v{vKA}, {512*7}, v{vKA}')
    a(f'v_add_u32 v{vKA}, s{sLB}, v{vKA}')
    a(f'v_lshlrev_b32 v{vUB}, 5, v12')
    a(f'v_lshl_add_u32 v{vUB}, v13, 4, v{vUB}')
    a(f'v_add_u32 v{vUB}, {UOFF+448}, v{vUB}')
    a(f'v_add_u32 v{vUB}, s{sLB}, v{vUB}')
    a('v_lshlrev_b32 v6, 5, v12')
    a('v_lshl_add_u32 v6, v13, 3, v6')
    a(f'v_add_u32 v6, {UOFF+480}, v6')
    a(f'v_add_u32 v6, s{sLB}, v6')
    a('v_lshlrev_b32 v7, 5, v12')
    a('v_lshrrev_b32 v15, 1, v13')
    a('v_lshl_add_u32 v7, v15, 4, v7')
    a('v_and_b32 v15, 1, v13')
    a('v_lshl_add_u32 v7, v15, 9, v7')
    ACC = 64
    for i in range(32):
        a(f'v_mov_b32 v{ACC+i}, 0')
    for it in range(4):
        a(f's_waitcnt vmcnt({3-it})')
        a(f'ds_write_b128 v10, {vr(32+4*it,4)} offset:{UOFF+480+1024*it}')
    FA = [96, 160]
    def loads(s):
        L = []
        for g in range(8):
            L.append(f'ds_read_b64 {vr(FA[s]+4*g,2)}, v{vKA} offset:{512*(7-g)}')
            L.append(f'ds_read_b64 {vr(FA[s]+4*g+2,2)}, v{vKA} offset:{512*(7-g)+8}')
            L.append(f'ds_read_b128 {vr(FA[s]+32+4*g,4)}, v{vUB} offset:{512*g}')
        return L
    for l in loads(0): a(l)
    a(f's_mov_b32 s{sCnt}, 4')
    a.lab('L_conv')
    for s in range(2):
        a(f'v_subrev_u32 v{vKA}, 64, v{vKA}')
        a(f'v_subrev_u32 v{vUB}, 64, v{vUB}')
        a('s_waitcnt lgkmcnt(0)')
        nxt = loads(1 - s)
        pairs = [(g, i) for tot in range(8) for g in range(tot + 1) for i in [tot - g]]
        pairs = sorted(pairs, key=lambda p: (p[0], p[1]))
        k = 0
        for idx, (g, i) in enumerate(pairs):
            jt = g + i
            a(f'v_mfma_f32_16x16x32_bf16 {vr(ACC+4*jt,4)}, {vr(FA[s]+4*g,4)}, {vr(FA[s]+32+4*i,4)}, {vr(ACC+4*jt,4)}')
            if k < len(nxt) and idx >= 2:
                a(nxt[k]); k += 1
        while k < len(nxt):
            a(nxt[k]); k += 1
    a(f's_sub_u32 s{sCnt}, s{sCnt}, 1')
    a(f's_cmp_lg_u32 s{sCnt}, 0')
    a('s_cbranch_scc1 L_conv')
    a('s_waitcnt lgkmcnt(0)')
    UU = 32
    for jt in range(8):
        a(f'ds_read_b64 {vr(UU+2*jt,2)}, v6 offset:{512*jt}')
    a(f's_add_u32 s{sT2}, s{sT}, {WS_AT}')
    a('s_waitcnt lgkmcnt(0)')
    RES = 96
    for jt in range(8):
        c = ACC + 4 * jt
        t = 112 + 8 * (jt & 1)
        a(f'v_cvt_pk_bf16_f32 v{t}, v{c}, v{c+1}')
        a(f'v_cvt_pk_bf16_f32 v{t+1}, v{c+2}, v{c+3}')
        a(f'v_lshlrev_b32 v{c}, 16, v{UU+2*jt}')
        a(f'v_and_b32 v{c+1}, 0xffff0000, v{UU+2*jt}')
        a(f'v_lshlrev_b32 v{c+2}, 16, v{UU+2*jt+1}')
        a(f'v_and_b32 v{c+3}, 0xffff0000, v{UU+2*jt+1}')
        a(f'v_pk_mul_f32 {vr(c,2)}, {vr(c,2)}, {vr(28,2)} op_sel:[0,1] op_sel_hi:[1,1]')
        a(f'v_pk_mul_f32 {vr(c+2,2)}, {vr(c+2,2)}, {vr(28,2)} op_sel:[0,1] op_sel_hi:[1,1]')
        a(f'v_cvt_pk_bf16_f32 v{t+2}, v{c}, v{c+1}')
        a(f'v_cvt_pk_bf16_f32 v{t+3}, v{c+2}, v{c+3}')
        a(f'v_lshlrev_b32 v{c}, 16, v{t}')
        a(f'v_and_b32 v{c+1}, 0xffff0000, v{t}')
        a(f'v_lshlrev_b32 v{c+2}, 16, v{t+1}')
        a(f'v_and_b32 v{c+3}, 0xffff0000, v{t+1}')
        a(f'v_lshlrev_b32 v{t+4}, 16, v{t+2}')
        a(f'v_and_b32 v{t+5}, 0xffff0000, v{t+2}')
        a(f'v_lshlrev_b32 v{t+6}, 16, v{t+3}')
        a(f'v_and_b32 v{t+7}, 0xffff0000, v{t+3}')
        a(f'v_pk_add_f32 {vr(c,2)}, {vr(c,2)}, {vr(t+4,2)}')
        a(f'v_pk_add_f32 {vr(c+2,2)}, {vr(c+2,2)}, {vr(t+6,2)}')
        q = RES + 4 * (jt >> 1) + 2 * (jt & 1)
        a(f'v_cvt_pk_bf16_f32 v{q}, v{c}, v{c+1}')
        a(f'v_cvt_pk_bf16_f32 v{q+1}, v{c+2}, v{c+3}')
        if jt & 1:
            q0 = RES + 4 * (jt >> 1)
            a(f'v_permlane16_swap_b32 v{q0}, v{q0+2}')
            a(f'v_permlane16_swap_b32 v{q0+1}, v{q0+3}')
            a(f'buffer_store_dwordx4 {vr(q0,4)}, v7, {srd(SRD_WS)}, s{sT2} offen offset:{1024*(jt>>1)} sc1')
    a('s_waitcnt vmcnt(0)')
    a(f's_lshl_b32 s{sT}, s{sD}, 2')
    a(f's_add_u32 s{sT}, s{sT}, {WS_FA}')
    a(f'v_mov_b32 v8, s{S_TAG}')
    a('s_mov_b64 exec, 1')
    a(f'buffer_store_dword v8, off, {srd(SRD_WS)}, s{sT} sc1')
    a('s_endpgm')

def side_gate(a, opt):
    sK, sT = 82, 86
    vL = 1
    a(f's_sub_u32 s{sK}, s2, 256')
    a(f's_mul_i32 s{sT}, s{sK}, {8*1280}')
    a(f'v_lshrrev_b32 v2, 3, v{vL}')
    a(f'v_and_b32 v3, 7, v{vL}')
    a('v_lshlrev_b32 v4, 4, v3')
    a('v_mul_u32_u24 v5, 1280, v2')
    a('v_add_u32 v5, v5, v4')
    a(f'v_add_u32 v5, s{sT}, v5')
    XR, WR = 16, 56
    for it in range(10):
        a(f'global_load_dwordx4 {vr(XR+4*it,4)}, v5, {sp(P_U)} offset:{128*it}')
        a(f'global_load_dwordx4 {vr(WR+4*it,4)}, v4, {sp(P_GW)} offset:{128*it}')
    a('v_mov_b32 v6, 0')
    a('v_mov_b32 v7, 0')
    for it in range(10):
        a(f's_waitcnt vmcnt({18-2*it})')
        for k in range(4):
            x, w = XR + 4 * it + k, WR + 4 * it + k
            a(f'v_lshlrev_b32 v8, 16, v{x}')
            a(f'v_and_b32 v9, 0xffff0000, v{x}')
            a(f'v_lshlrev_b32 v10, 16, v{w}')
            a(f'v_and_b32 v11, 0xffff0000, v{w}')
            a('v_pk_mul_f32 v[8:9], v[8:9], v[10:11]')
            a('v_cvt_pk_bf16_f32 v12, v8, v9')
            a('v_lshlrev_b32 v8, 16, v12')
            a('v_and_b32 v9, 0xffff0000, v12')
            a('v_pk_add_f32 v[6:7], v[6:7], v[8:9]')
    a('v_add_f32 v6, v6, v7')
    a('v_add_f32_dpp v6, v6, v6 quad_perm:[1,0,3,2] row_mask:0xf bank_mask:0xf')
    a('v_add_f32_dpp v6, v6, v6 quad_perm:[2,3,0,1] row_mask:0xf bank_mask:0xf')
    a('v_add_f32_dpp v6, v6, v6 row_half_mirror row_mask:0xf bank_mask:0xf')
    a('v_cvt_pk_bf16_f32 v6, v6, v6')
    a('v_lshlrev_b32 v6, 16, v6')
    a(f'v_mul_f32 v6, {hx(-LOG2E)}, v6')
    a('v_exp_f32 v6, v6')
    a('v_add_f32 v6, 1.0, v6')
    a('v_rcp_f32 v6, v6')
    a('v_cvt_pk_bf16_f32 v6, v6, v6')
    a('v_lshlrev_b32 v8, 16, v6')
    a('v_sub_f32 v9, 1.0, v8')
    a('v_cvt_pk_bf16_f32 v9, v9, v9')
    a('v_lshlrev_b32 v9, 16, v9')
    a(f's_lshl_b32 s{sT}, s{sK}, 6')
    a(f's_add_u32 s{sT}, s{sT}, {WS_G}')
    a('v_lshlrev_b32 v10, 3, v2')
    a('v_cmp_eq_u32 vcc, 0, v3')
    a('s_and_saveexec_b64 s[84:85], vcc')
    a(f'buffer_store_dwordx2 v[8:9], v10, {srd(SRD_WS)}, s{sT} offen sc1')
    a('s_waitcnt vmcnt(0)')
    a(f's_lshl_b32 s{sT}, s{sK}, 2')
    a(f's_add_u32 s{sT}, s{sT}, {WS_FG}')
    a(f'v_mov_b32 v8, s{S_TAG}')
    a('s_mov_b64 exec, 1')
    a(f'buffer_store_dword v8, off, {srd(SRD_WS)}, s{sT} sc1')
    a('s_endpgm')

def side_keeper(a, opt):
    vL = 1
    a(f'v_lshlrev_b32 v2, 2, v{vL}')
    loads = [(2, WS_FZ + 256 * i) for i in range(4)] + [(2, WS_FA + 256 * i) for i in range(10)] + [(2, WS_FG + 256 * i) for i in range(4)]
    a(f's_mov_b32 s86, {WS_FZ}')
    a(f's_mov_b32 s87, {WS_FA}')
    a(f's_mov_b32 s88, {WS_FG}')
    L = [(2, f's86 offen offset:{256*i} ;') for i in range(4)]
    a(f's_mov_b32 s89, {SPIN_MAX}')
    a.lab('L_keep_spin')
    n = 0
    for base, cnt in ((86, 4), (87, 10), (88, 4)):
        for i in range(cnt):
            a(f'buffer_load_dword v{8+n}, v2, {srd(SRD_WS)}, s{base} offen offset:{256*i} sc1'); n += 1
    a('s_waitcnt vmcnt(0)')
    a(f'v_cmp_ne_u32 vcc, s{S_TAG}, v8')
    for i in range(1, n):
        a(f'v_cmp_ne_u32 s[84:85], s{S_TAG}, v{8+i}')
        a('s_or_b64 vcc, vcc, s[84:85]')
    a('s_cbranch_vccz L_keep_done')
    a('s_sleep 16')
    a('s_sub_u32 s89, s89, 1')
    a('s_cmp_lg_u32 s89, 0')
    a('s_cbranch_scc1 L_keep_spin')
    a.lab('L_keep_done')
    a(f'v_mov_b32 v8, s{S_TAG}')
    a('s_mov_b64 exec, 1')
    a(f'buffer_store_dword v8, off, {srd(SRD_WS)}, 0 sc1')
    a('s_endpgm')

def build(opt):
    a = Asm()
    a.raw(f'; @launch kernel={KNAME} grid=(512,1,1) block=(256,1,1) lds=81920')
    a.raw('.amdgcn_target "amdgcn-amd-amdhsa--gfx950"')
    a.raw('.text')
    a.raw(f'.globl {KNAME}')
    a.raw('.p2align 8')
    a.raw(f'.type {KNAME},@function')
    a.lab(KNAME)
    a('s_cmp_ge_u32 s2, 512')
    a('s_cbranch_scc1 L_end')
    a('s_load_dwordx16 s[16:31], s[0:1], 0')
    a('s_load_dwordx16 s[32:47], s[0:1], 64')
    a('s_load_dwordx4 s[48:51], s[0:1], 128')
    a('v_and_b32 v1, 63, v0')
    a('v_lshrrev_b32 v2, 6, v0')
    a(f'v_readfirstlane_b32 s{S_W}, v2')
    a('s_waitcnt lgkmcnt(0)')
    mk_srd(a, SRD_WS, P_WS, WS_SIZE)
    a(f'buffer_load_dword v15, off, {srd(SRD_WS)}, 0 sc1')
    a('s_cmp_lt_u32 s2, 256')
    a('s_cbranch_scc1 L_gemm')
    a('s_waitcnt vmcnt(0)')
    a(f'v_readfirstlane_b32 s{S_TAG}, v15')
    a(f's_add_u32 s{S_TAG}, s{S_TAG}, 1')
    a(f's_cmp_eq_u32 s{S_W}, 3')
    a('s_cbranch_scc1 L_gate')
    a(f's_lshl_b32 s82, s{S_W}, 8')
    a('s_add_u32 s82, s82, s2')
    a('s_sub_u32 s82, s82, 256')
    a('s_cmp_lt_u32 s82, 640')
    a('s_cbranch_scc1 L_chan')
    a('s_cmp_eq_u32 s2, 511')
    a('s_cbranch_scc1 L_keep')
    a.lab('L_end')
    a('s_endpgm')
    a.lab('L_chan')
    side_channel(a, opt)
    a.lab('L_gate')
    side_gate(a, opt)
    a.lab('L_keep')
    side_keeper(a, opt)
    a.lab('L_gemm')
    if opt.get('no_gemm'):
        a('s_endpgm')
    else:
        import gen_gemm
        gen_gemm.gemm_role(a, opt)
    a.raw('.section .rodata,"a"')
    a.raw('.p2align 6')
    a.raw(f'.amdhsa_kernel {KNAME}')
    a.raw('  .amdhsa_next_free_vgpr 256')
    a.raw('  .amdhsa_next_free_sgpr 96')
    a.raw('  .amdhsa_accum_offset 256')
    a.raw('  .amdhsa_group_segment_fixed_size 0')
    a.raw('  .amdhsa_kernarg_size 144')
    a.raw('  .amdhsa_user_sgpr_count 2')
    a.raw('  .amdhsa_user_sgpr_kernarg_segment_ptr 1')
    a.raw('  .amdhsa_system_sgpr_workgroup_id_x 1')
    a.raw('.end_amdhsa_kernel')
    return a.text()

if __name__ == '__main__':
    opt = {}
    for x in sys.argv[2:]:
        k, _, v = x.partition('=')
        opt[k] = int(v) if v else 1
    open(sys.argv[1], 'w').write(build(opt))
```

```python
import numpy as np
from gen import *
import gen as _g

SLOT = 20480
BOFF = 8192
S_RB, S_CB, S_WI, S_WJ = 82, 83, 86, 87
S_KC, S_AO, S_BO, S_T, S_T2, S_CNT = 88, 89, 90, 91, 92, 93
S_ABASE, S_BBASE = 94, 95
S_M_A, S_M_B = 3, 4
S_K1 = 6
S_ONE = 8
S_KC0 = 10
S_M_C = 5
S_TMP2 = 12
V_L = 1
V_AD = 2
V_BD = 4
V_AR = 7
V_BR = 11
V_UR, V_US = 13, 14
V_T = 16
ACC2, ACC1, WF, XF = 24, 48, 72, 96

class VM:
    def __init__(self): self.ops = []
    def issue(self, tag, n=1): self.ops += [tag] * n
    def n_after(self, tag):
        idx = max(i for i, t in enumerate(self.ops) if t == tag)
        return len(self.ops) - 1 - idx

def gelu_pairs(a, pairs, k0v, emit_after):
    for idx, c in enumerate(pairs):
        t = V_T + 4 * (idx & 1)
        a(f'v_cvt_pk_bf16_f32 v{t+2}, v{c}, v{c+1}')
        a(f'v_lshlrev_b32 v{t}, 16, v{t+2}')
        a(f'v_and_b32 v{t+1}, 0xffff0000, v{t+2}')
        a(f'v_pk_mul_f32 {vr(t+2,2)}, {vr(t,2)}, {vr(t,2)}')
        a(f'v_pk_fma_f32 {vr(t+2,2)}, {vr(t+2,2)}, {sp(S_K1)}, {vr(k0v,2)}')
        a(f'v_pk_mul_f32 {vr(t+2,2)}, {vr(t+2,2)}, {vr(t,2)}')
        a(f'v_exp_f32 v{t+2}, v{t+2}')
        a(f'v_exp_f32 v{t+3}, v{t+3}')
        a(f'v_pk_add_f32 {vr(t+2,2)}, {vr(t+2,2)}, {sp(S_ONE)}')
        a(f'v_rcp_f32 v{t+2}, v{t+2}')
        a(f'v_rcp_f32 v{t+3}, v{t+3}')
        a(f'v_pk_mul_f32 {vr(t+2,2)}, {vr(t+2,2)}, {vr(t,2)}')
        emit_after(idx, c, t)

def flag_store(a, soff_expr_sgpr, vtmp):
    a(f'v_mov_b32 v{vtmp}, s{S_TAG}')
    a(f's_mov_b64 {sp(S_TMP2)}, exec')
    a('s_mov_b64 exec, 1')
    a(f'buffer_store_dword v{vtmp}, off, {srd(SRD_WS)}, s{soff_expr_sgpr} sc1')
    a(f's_mov_b64 exec, {sp(S_TMP2)}')

def gemm_role(a, opt):
    vm = VM()
    stop = opt.get('stop', 99)
    a(f's_setprio {opt.get("prio", 2)}')
    stamp(a, 0)
    a(f's_and_b32 s{S_T}, s2, 7')
    a(f's_lshr_b32 s{S_T2}, s2, 3')
    a(f's_lshr_b32 s{S_RB}, s{S_T}, 1')
    a(f's_lshl_b32 s{S_RB}, s{S_RB}, 3')
    a(f's_lshr_b32 s{S_CNT}, s{S_T2}, 2')
    a(f's_add_u32 s{S_RB}, s{S_RB}, s{S_CNT}')
    a(f's_and_b32 s{S_CB}, s{S_T}, 1')
    a(f's_lshl_b32 s{S_CB}, s{S_CB}, 2')
    a(f's_and_b32 s{S_CNT}, s{S_T2}, 3')
    a(f's_add_u32 s{S_CB}, s{S_CB}, s{S_CNT}')
    a(f's_lshr_b32 s{S_WI}, s{S_W}, 1')
    a(f's_and_b32 s{S_WJ}, s{S_W}, 1')
    mk_srd(a, SRD_X, P_U, 2048 * 640 * 2)
    mk_srd(a, SRD_WIN, P_WIN, 640 * 1536 * 2)
    mk_srd(a, SRD_WSP, P_WSP, 2048 * 2048 * 2)
    mk_srd(a, SRD_WOUT, P_WOUT, 768 * 640 * 2)
    mk_srd(a, SRD_OUT, P_OUT, 2048 * 640 * 2)
    a(f's_mul_i32 s{S_KC}, s{S_CB}, 3')
    a(f's_add_u32 s{S_KC}, s{S_KC}, s{S_RB}')
    a(f's_mul_i32 s{S_T}, s{S_KC}, 205')
    a(f's_lshr_b32 s{S_T}, s{S_T}, 11')
    a(f's_mul_i32 s{S_T}, s{S_T}, 10')
    a(f's_sub_u32 s{S_KC}, s{S_KC}, s{S_T}')
    a(f's_mov_b32 s{S_KC0}, s{S_KC}')
    a(f's_lshl_b32 s{S_M_A}, s{S_W}, 11')
    a(f's_mul_i32 s{S_M_B}, s{S_W}, 3072')
    a(f's_add_u32 s{S_M_B}, s{S_M_B}, {BOFF}')
    a(f's_mul_i32 s{S_ABASE}, s{S_RB}, {64*1280}')
    a(f's_mul_i32 s{S_BBASE}, s{S_CB}, 192')
    a(f's_add_u32 s{S_BBASE}, s{S_BBASE}, 1536')
    t0, t1, t2, t3 = V_T, V_T + 1, V_T + 2, V_T + 3
    def row_dma_offsets(pitch):
        a(f'v_lshrrev_b32 v{t0}, 3, v{V_L}')
        a(f'v_and_b32 v{t1}, 7, v{V_L}')
        a(f'v_bfe_u32 v{t2}, v{V_L}, 4, 1')
        a(f'v_xor_b32 v{t1}, v{t1}, v{t2}')
        a(f's_lshl_b32 s{S_T}, s{S_W}, 4')
        a(f'v_add_u32 v{t0}, s{S_T}, v{t0}')
        a(f's_movk_i32 s{S_T2}, {pitch}')
        a(f'v_mul_lo_u32 v{t0}, v{t0}, s{S_T2}')
        a(f's_lshl_b32 s{S_T}, s{S_WJ}, 2')
        a(f'v_xor_b32 v{t1}, s{S_T}, v{t1}')
        a(f'v_lshl_add_u32 v{V_AD}, v{t1}, 4, v{t0}')
        a(f'v_xor_b32 v{t1}, 2, v{t1}')
        a(f'v_lshl_add_u32 v{V_AD+1}, v{t1}, 4, v{t0}')
        a(f'v_add_u32 v{V_AD+1}, {8*pitch-1024}, v{V_AD+1}')
    row_dma_offsets(1280)
    a(f's_mul_i32 s{S_T}, s{S_W}, 192')
    for j in range(3):
        a(f'v_add_u32 v{t0}, s{S_T}, v{V_L}')
        if j: a(f'v_add_u32 v{t0}, {64*j}, v{t0}')
        a(f'v_mul_u32_u24 v{t1}, 43691, v{t0}')
        a(f'v_lshrrev_b32 v{t1}, 19, v{t1}')
        a(f'v_mul_u32_u24 v{t2}, 12, v{t1}')
        a(f'v_sub_u32 v{t0}, v{t0}, v{t2}')
        a(f'v_bfe_u32 v{t2}, v{t1}, 3, 1')
        a(f'v_mad_u32_u24 v{t0}, v{t2}, 6, v{t0}')
        a(f'v_subrev_u32 v{t2}, 12, v{t0}')
        a(f'v_min_u32 v{t0}, v{t0}, v{t2}')
        a(f'v_mul_u32_u24 v{t1}, 3072, v{t1}')
        a(f'v_lshl_add_u32 v{V_BD+j}, v{t0}, 4, v{t1}')
        if j: a(f'v_subrev_u32 v{V_BD+j}, {1024*j}, v{V_BD+j}')

    def run_units(units, track=True):
        for (lines, tag) in units:
            for l in lines: a(l)
            if track: vm.issue(tag, 1)
    def dma_p1(stage):
        slot = (stage & 3) * SLOT
        U = []
        if stage < 10:
            U.append(([f's_lshl_b32 s{S_AO}, s{S_KC}, 7', f's_add_u32 s{S_AO}, s{S_AO}, s{S_ABASE}', f's_add_u32 m0, s{S_M_A}, {slot}',
                       f's_mul_i32 s{S_BO}, s{S_KC}, {64*3072}',
                       f'buffer_load_dwordx4 v{V_AD}, {srd(SRD_X)}, s{S_AO} offen lds'], ('A', stage)))
            U.append(([f'buffer_load_dwordx4 v{V_AD+1}, {srd(SRD_X)}, s{S_AO} offen offset:1024 lds'], ('A', stage)))
            pre = []
        else:
            pre = [f's_mul_i32 s{S_BO}, s{S_KC}, {64*3072}']
        pre += [f's_add_u32 s{S_BO}, s{S_BO}, s{S_BBASE}', f's_add_u32 m0, s{S_M_B}, {slot}', f's_add_u32 s{S_KC}, s{S_KC}, 1']
        for j in range(3):
            L = (pre if j == 0 else []) + [f'buffer_load_dwordx4 v{V_BD+j}, {srd(SRD_WIN)}, s{S_BO} offen offset:{1024*j} lds']
            if j == 2:
                L += [f's_cmp_eq_u32 s{S_KC}, 10', f's_cselect_b32 s{S_KC}, 0, s{S_KC}']
                if stage == 9: L += [f's_sub_u32 s{S_BBASE}, s{S_BBASE}, 1536']
            U.append((L, ('B', stage)))
        return U
    vm.issue('epoch')
    for s in range(4): run_units(dma_p1(s))
    PAT = {5: ([0, 2, 4], [1, 3]), 3: ([1, 4], [2]), 2: ([1], [2]), 0: ([], [])}
    if opt.get('pat') == 1: PAT = {5: ([0, 1, 2, 3, 4], []), 3: ([0, 2, 4], []), 2: ([0, 2], []), 0: ([], [])}
    if opt.get('pat') == 2: PAT = {5: ([0, 3], [0, 2, 4]), 3: ([2], [1, 3]), 2: ([2], [2]), 0: ([], [])}
    pend = []
    def with_units(mf_lines, pos_units, track=True):
        for i, l in enumerate(mf_lines):
            a(l)
            for (p, u) in pos_units:
                if p == i: run_units([u], track)
        for (p, u) in pos_units:
            if p >= len(mf_lines): run_units([u], track)
    def split_units(U):
        first, second = PAT[len(U)]
        return list(zip(first, U[:len(first)])), list(zip(second, U[len(first):]))

    a(f'v_and_b32 v{t0}, 15, v{V_L}')
    a(f'v_lshrrev_b32 v{t1}, 4, v{V_L}')
    a(f'v_lshrrev_b32 v{t2}, 2, v{t0}')
    a(f'v_lshlrev_b32 v{t3}, 3, v{t2}')
    a(f'v_and_b32 v{V_AR}, 3, v{t0}')
    a(f'v_add_u32 v{t3}, v{t3}, v{V_AR}')
    a(f's_lshl_b32 s{S_T}, s{S_WI}, 5')
    a(f'v_add_u32 v{t3}, s{S_T}, v{t3}')
    a(f'v_lshlrev_b32 v{t3}, 7, v{t3}')
    a(f'v_lshlrev_b32 v{t2}, 1, v{t2}')
    a(f'v_bfe_u32 v{V_AR}, v{t0}, 1, 1')
    a(f'v_or_b32 v{t2}, v{t2}, v{V_AR}')
    a(f'v_xor_b32 v{t2}, v{t2}, v{t1}')
    a(f'v_lshl_add_u32 v{V_AR}, v{t2}, 4, v{t3}')
    a(f'v_xor_b32 v{V_AR+1}, 64, v{V_AR}')
    a(f'v_add_u32 v{V_AR+2}, {2*SLOT}, v{V_AR}')
    a(f'v_add_u32 v{V_AR+3}, {2*SLOT}, v{V_AR+1}')
    def br_p1(perm):
        a(f'v_lshrrev_b32 v{t2}, 2, v{t0}')
        a(f'v_lshl_add_u32 v{t2}, v{t1}, 3, v{t2}')
        a(f'v_mul_u32_u24 v{t2}, 192, v{t2}')
        a(f'v_and_b32 v{t3}, 1, v{t1}')
        a(f'v_xor_b32 v{t3}, s{S_WJ}, v{t3}')
        a(f'v_mad_u32_u24 v{t2}, v{t3}, 96, v{t2}') if False else None
        a(f'v_mul_u32_u24 v{t3}, 96, v{t3}')
        a(f'v_add_u32 v{t2}, v{t2}, v{t3}')
        a(f'v_and_b32 v{t3}, 3, v{V_L}')
        if perm:
            a(f'v_lshrrev_b32 v{V_BR}, 1, v{t3}')
            a(f'v_xor_b32 v{t3}, v{t3}, v{V_BR}')
        a(f'v_lshl_add_u32 v{V_BR}, v{t3}, 3, v{t2}')
        a(f'v_add_u32 v{V_BR}, {BOFF}, v{V_BR}')
        a(f'v_add_u32 v{V_BR+1}, {2*SLOT}, v{V_BR}')
    br_p1(False)
    a(f'v_lshrrev_b32 v{t2}, 2, v{t0}')
    a(f'v_lshl_add_u32 v{t3}, v{t1}, 3, v{t2}')
    a(f'v_lshlrev_b32 v{V_UR}, 7, v{t3}')
    a(f'v_lshrrev_b32 v{t2}, 1, v{t2}')
    a(f'v_lshl_or_b32 v{t2}, v{t1}, 1, v{t2}')
    a(f'v_bfe_u32 v{t3}, v{V_L}, 1, 1')
    a(f's_lshl_b32 s{S_T}, s{S_W}, 1')
    a(f'v_add_u32 v{t3}, s{S_T}, v{t3}')
    a(f'v_xor_b32 v{t3}, v{t3}, v{t2}')
    a(f'v_lshl_add_u32 v{V_UR}, v{t3}, 4, v{V_UR}')
    a(f'v_and_b32 v{t3}, 1, v{V_L}')
    a(f'v_lshl_add_u32 v{V_UR}, v{t3}, 3, v{V_UR}')
    a(f's_lshl_b32 s{S_T}, s{S_W}, 4')
    a(f'v_add_u32 v{V_US}, s{S_T}, v{t0}')
    a(f'v_lshlrev_b32 v{V_US}, 12, v{V_US}')
    a(f'v_lshl_add_u32 v{V_US}, v{t1}, 4, v{V_US}')
    for i in range(24):
        a(f'v_mov_b32 v{ACC2+i}, 0')
    c0 = np.sqrt(2 / np.pi)
    k0 = -2 * c0 * LOG2E; k1 = k0 * 0.044715
    a(f's_mov_b32 s{S_K1}, {hx(k1)}')
    a(f's_mov_b32 s{S_K1+1}, {hx(k1)}')
    a(f's_mov_b32 s{S_ONE}, 1.0')
    a(f's_mov_b32 s{S_ONE+1}, 1.0')
    a(f's_waitcnt vmcnt({vm.n_after("epoch")})')
    a(f'v_readfirstlane_b32 s{S_TAG}, v15')
    a(f's_add_u32 s{S_TAG}, s{S_TAG}, 1')

    def ar(stage, ks): return V_AR + ks + (2 if (stage & 2) else 0)
    def so(stage): return (stage & 1) * SLOT
    def br(stage): return V_BR + (1 if (stage & 2) else 0)
    def reads_p1(stage, ks):
        n = 0
        if stage < 10:
            for tau in range(2):
                a(f'ds_read_b128 {vr(XF+16*stage+8*ks+4*tau,4)}, v{ar(stage,ks)} offset:{so(stage)+512*tau}'); n += 1
        for phi in range(3):
            for half in range(2):
                a(f'ds_read_b64_tr_b16 {vr(WF+12*ks+4*phi+2*half,2)}, v{br(stage)} offset:{so(stage)+6144*ks+768*half+32*phi}'); n += 1
        return n
    def mfma_p1(stage, ks):
        i = stage % 10
        L = []
        for tau in range(2):
            for phi in range(3):
                x = vr(XF + 16 * i + 8 * ks + 4 * tau, 4); w = vr(WF + 12 * ks + 4 * phi, 4)
                if stage < 10:
                    c = vr(ACC2 + 4 * (3 * tau + phi), 4)
                    L.append(f'v_mfma_f32_16x16x32_bf16 {c}, {x}, {w}, {c}')
                else:
                    c = vr(ACC1 + 4 * (2 * phi + tau), 4)
                    L.append(f'v_mfma_f32_16x16x32_bf16 {c}, {w}, {x}, {c}')
        return L

    def dma_p2_A(stage):
        slot = (stage & 3) * SLOT
        return [([f's_lshl_b32 s{S_AO}, s{S_KC}, 7', f's_add_u32 s{S_AO}, s{S_AO}, s{S_ABASE}', f's_add_u32 m0, s{S_M_A}, {slot}', f's_add_u32 s{S_KC}, s{S_KC}, 1',
                  f'buffer_load_dwordx4 v{V_AD}, {srd(SRD_WSP)}, s{S_AO} offen lds'], ('A', stage)),
                ([f'buffer_load_dwordx4 v{V_AD+1}, {srd(SRD_WSP)}, s{S_AO} offen offset:1024 lds', f's_and_b32 s{S_KC}, s{S_KC}, 31'], ('A', stage))]
    S_KZ = S_KC0
    def dma_p2_B(stage):
        slot = (stage & 3) * SLOT
        U = []
        for j in range(3):
            L = [f's_mul_i32 s{S_BO}, s{S_KZ}, 12288', f's_add_u32 s{S_BO}, s{S_BO}, s{S_BBASE}', f's_add_u32 m0, s{S_M_B}, {slot}', f's_add_u32 s{S_KZ}, s{S_KZ}, 1'] if j == 0 else []
            L += [f'buffer_load_dwordx4 v{V_BD}, {srd(SRD_WS)}, s{S_BO} offen offset:{1024*j} sc1 lds']
            if j == 2: L += [f's_and_b32 s{S_KZ}, s{S_KZ}, 31']
            U.append((L, ('B', stage)))
        return U

    def rot2(dst):
        mode = opt.get('rot2', 1)
        if mode == 0:
            a(f's_and_b32 s{dst}, s{S_RB}, 24')
        elif mode == 1:
            a(f's_lshl_b32 s{dst}, s{S_CB}, 3')
            a(f's_add_u32 s{dst}, s{dst}, s{S_RB}')
            a(f's_and_b32 s{dst}, s{dst}, 31')
        elif mode == 2:
            a(f's_lshl_b32 s{dst}, s{S_CB}, 1')
            a(f's_add_u32 s{dst}, s{dst}, s{S_RB}')
            a(f's_lshl_b32 s{dst}, s{dst}, 2')
            a(f's_and_b32 s{dst}, s{dst}, 31')
        elif mode == 3:
            a(f's_mov_b32 s{dst}, s{S_RB}')
    U2 = 4
    UT = V_T
    a(f's_waitcnt vmcnt({vm.n_after(("B", 0))})')
    a('s_barrier')
    stamp(a, 1)
    reads_p1(0, 0)
    for s in range(20):
        if s == 10:
            stamp(a, 2)
            p1a_epilogue(a, opt, vm, k0)
            stamp(a, 3)
            if stop == 1:
                a('s_endpgm'); return
        n1 = reads_p1(s, 1)
        ut = s in (0, U2)
        if ut:
            if s == U2:
                a(f's_cmp_ge_u32 s{S_CB}, 2')
                a('s_cbranch_scc1 L_ut8_skip')
            for h2 in range(2):
                for half in range(2):
                    a(f'ds_read_b64_tr_b16 {vr(UT+4*h2+2*half,2)}, v{V_UR} offset:{(s&3)*SLOT+4096*h2+512*half}')
            if s == U2:
                a.lab('L_ut8_skip')
        a(f's_waitcnt lgkmcnt({n1})' if not ut else f's_waitcnt lgkmcnt({n1})' if s == U2 else f's_waitcnt lgkmcnt({n1+4})')
        with_units(mfma_p1(s, 0), pend); pend = []
        if s < 19:
            a(f's_waitcnt vmcnt({vm.n_after(("B", s+1))}) lgkmcnt(0)')
        else:
            a('s_waitcnt lgkmcnt(0)')
        a('s_barrier')
        if ut:
            if s == U2:
                a(f's_cmp_ge_u32 s{S_CB}, 2')
                a('s_cbranch_scc1 L_us8_skip')
                a(f's_add_u32 s{S_T}, s{S_KC0}, {U2}')
                a(f's_sub_u32 s{S_T2}, s{S_T}, 10')
                a(f's_min_u32 s{S_T}, s{S_T}, s{S_T2}')
            else:
                a(f's_mov_b32 s{S_T}, s{S_KC0}')
            a(f's_lshl_b32 s{S_T}, s{S_T}, 18')
            a(f's_lshl_b32 s{S_T2}, s{S_RB}, 7')
            a(f's_add_u32 s{S_T}, s{S_T}, s{S_T2}')
            a(f's_add_u32 s{S_T}, s{S_T}, {WS_UT}')
            for h2 in range(2):
                a(f'buffer_store_dwordx4 {vr(UT+4*h2,4)}, v{V_US}, {srd(SRD_WS)}, s{S_T} offen offset:{64*h2} sc1')
            if s == U2:
                a.lab('L_us8_skip')
            else:
                vm.issue('ut0', 2)
        if s in (3, U2 + 3):
            a(f's_cmp_lg_u32 s{S_W}, 0')
            a(f's_cbranch_scc1 L_fu{s}_skip')
            if s == U2 + 3:
                a(f's_cmp_ge_u32 s{S_CB}, 2')
                a(f's_cbranch_scc1 L_fu{s}_skip')
                a(f's_add_u32 s{S_T}, s{S_KC0}, {U2}')
                a(f's_sub_u32 s{S_T2}, s{S_T}, 10')
                a(f's_min_u32 s{S_T}, s{S_T}, s{S_T2}')
            else:
                a(f's_mov_b32 s{S_T}, s{S_KC0}')
            a(f's_lshl_b32 s{S_T}, s{S_T}, 5')
            a(f's_add_u32 s{S_T}, s{S_T}, s{S_RB}')
            a(f's_lshl_b32 s{S_T}, s{S_T}, 2')
            a(f's_add_u32 s{S_T}, s{S_T}, {WS_FU}')
            flag_store(a, S_T, V_T)
            a.lab(f'L_fu{s}_skip')
        if s + 4 < 20:
            U = dma_p1(s + 4)
        else:
            if s == 16:
                row_dma_offsets(4096)
                a(f's_lshl_b32 s{S_ABASE}, s{S_RB}, 18')
                rot2(S_KC)
            U = dma_p2_A(s + 4)
        now, pend = split_units(U)
        if s in (9, 19):
            now = now + [(99, u) for (_, u) in pend]; pend = []
        if s == 9:
            a(f'v_and_b32 v{t0}, 15, v{V_L}')
            a(f'v_lshrrev_b32 v{t1}, 4, v{V_L}')
            br_p1(True)
        if s < 19:
            reads_p1(s + 1, 0)
        with_units(mfma_p1(s, 1), now)
    stamp(a, 4)
    p1b_epilogue(a, opt, vm, k0)
    stamp(a, 7)
    if stop == 2:
        a('s_endpgm'); return
    ZF = 72
    G2 = ACC2
    a(f's_lshl_b32 s{S_T}, s{S_CB}, 7')
    a(f's_add_u32 s{S_T}, s{S_T}, {WS_FZ}')
    a(f'v_and_b32 v{t0}, 31, v{V_L}')
    a(f'v_lshlrev_b32 v{t0}, 2, v{t0}')
    poll(a, 'L_pz', [(t0, f's{S_T}')], t1, S_CNT)
    stamp(a, 8)
    vm.ops = []
    rot2(S_KZ)
    a(f's_mul_i32 s{S_BBASE}, s{S_CB}, {32*12288}')
    a(f's_add_u32 s{S_BBASE}, s{S_BBASE}, {WS_Z}')
    a(f's_mul_i32 s{S_T}, s{S_W}, 3072')
    a(f'v_lshlrev_b32 v{V_BD}, 4, v{V_L}')
    a(f'v_add_u32 v{V_BD}, s{S_T}, v{V_BD}')
    for s in range(20, 24): run_units(dma_p2_B(s))
    a(f'v_and_b32 v{t0}, 15, v{V_L}')
    a(f'v_lshrrev_b32 v{t1}, 4, v{V_L}')
    a(f'v_lshrrev_b32 v{t2}, 3, v{t0}')
    a(f'v_lshlrev_b32 v{t2}, 2, v{t2}')
    a(f'v_xor_b32 v{t2}, v{t2}, v{t0}')
    a(f'v_mul_u32_u24 v{t3}, 96, v{t1}')
    a(f'v_add_u32 v{t2}, v{t2}, v{t3}')
    a(f's_mul_i32 s{S_T}, s{S_WJ}, 48')
    a(f'v_add_u32 v{t2}, s{S_T}, v{t2}')
    a(f'v_lshlrev_b32 v{V_BR}, 4, v{t2}')
    a(f'v_add_u32 v{V_BR}, {BOFF}, v{V_BR}')
    a(f'v_add_u32 v{V_BR+1}, {2*SLOT}, v{V_BR}')
    for i in range(24):
        a(f'v_mov_b32 v{G2+i}, 0')
    def reads_p2(stage, ks):
        f = ZF + 20 * ks
        for phi in range(3):
            a(f'ds_read_b128 {vr(f+4*phi,4)}, v{br(stage)} offset:{so(stage)+6144*ks+256*phi}')
        for tau in range(2):
            a(f'ds_read_b128 {vr(f+12+4*tau,4)}, v{ar(stage,ks)} offset:{so(stage)+512*tau}')
    def mfma_p2(ks):
        f = ZF + 20 * ks
        L = []
        for tau in range(2):
            for phi in range(3):
                c = vr(G2 + 4 * (2 * phi + tau), 4)
                L.append(f'v_mfma_f32_16x16x32_bf16 {c}, {vr(f+4*phi,4)}, {vr(f+12+4*tau,4)}, {c}')
        return L
    V_OD = 112
    V_PD = 115
    S_K3 = S_KC
    def dma_p3_B(stage):
        slot = (stage & 3) * SLOT
        j = stage - 52
        return [([f's_add_u32 m0, s{S_M_A}, {slot+BOFF}', f's_add_u32 s{S_BO}, s{S_T2}, {j*64*1280}', f'buffer_load_dwordx4 v{V_OD}, {srd(SRD_WOUT)}, s{S_BO} offen lds'], ('B', stage)),
                ([f'buffer_load_dwordx4 v{V_OD+1}, {srd(SRD_WOUT)}, s{S_BO} offen offset:1024 lds'], ('B', stage)),
                ([f's_add_u32 m0, s{S_M_C}, {slot}', f'buffer_load_dwordx4 v{V_OD+2}, {srd(SRD_WOUT)}, s{S_BO} offen lds'], ('B', stage))]
    def dma_p3_A(stage):
        slot = (stage & 3) * SLOT
        j = stage - 52
        return [([f's_add_u32 m0, s{S_M_A}, {slot}', f's_add_u32 s{S_AO}, s{S_ABASE}, {j*8192}', f'buffer_load_dwordx4 v{V_PD}, {srd(SRD_WS)}, s{S_AO} offen sc1 lds'], ('A', stage)),
                ([f'buffer_load_dwordx4 v{V_PD}, {srd(SRD_WS)}, s{S_AO} offen offset:1024 sc1 lds'], ('A', stage))]
    a(f's_lshl_b32 s{S_T}, s{S_W}, 7')
    a(f's_lshl_b32 s{S_T2}, s{S_WJ}, 6')
    a(f's_add_u32 s{S_T2}, s{S_T2}, 512')
    for j in range(3):
        a(f'v_add_u32 v{t0}, s{S_T if j < 2 else S_T2}, v{V_L}')
        if j == 1: a(f'v_add_u32 v{t0}, 64, v{t0}')
        a(f'v_mul_u32_u24 v{t1}, 52429, v{t0}')
        a(f'v_lshrrev_b32 v{t1}, 19, v{t1}')
        a(f'v_mul_u32_u24 v{t2}, 10, v{t1}')
        a(f'v_sub_u32 v{t0}, v{t0}, v{t2}')
        a(f'v_mul_u32_u24 v{t1}, 1280, v{t1}')
        a(f'v_lshl_add_u32 v{V_OD+j}, v{t0}, 4, v{t1}')
        if j == 1: a(f'v_subrev_u32 v{V_OD+j}, 1024, v{V_OD+j}')
    a(f's_lshl_b32 s{S_M_C}, s{S_WJ}, 10')
    a(f's_add_u32 s{S_M_C}, s{S_M_C}, {BOFF+8192}')
    a(f's_lshl_b32 s{S_T}, s{S_W}, 11')
    a(f'v_lshlrev_b32 v{V_PD}, 4, v{V_L}')
    a(f'v_add_u32 v{V_PD}, s{S_T}, v{V_PD}')
    a(f's_mul_i32 s{S_T2}, s{S_CB}, 160')

    pend2 = [[]]
    def stage_p2(s, mode):
        tr = mode != 'loop'
        reads_p2(s, 1)
        a('s_waitcnt lgkmcnt(5)')
        with_units(mfma_p2(0), pend2[0], tr); pend2[0] = []
        if mode == 'loop':
            a('s_waitcnt vmcnt(10) lgkmcnt(0)')
        elif s < 51:
            a(f's_waitcnt vmcnt({vm.n_after(("B", s+1))}) lgkmcnt(0)')
        else:
            a('s_waitcnt lgkmcnt(0)')
        a('s_barrier')
        U = dma_p3_B(s + 4) if mode == 'last' else dma_p2_A(s + 4) + dma_p2_B(s + 4)
        now, pend2[0] = split_units(U)
        if s == 51:
            now = now + [(99, u) for (_, u) in pend2[0]]; pend2[0] = []
        if s < 51:
            reads_p2(s + 1, 0)
        with_units(mfma_p2(1), now, tr)
    a(f's_waitcnt vmcnt({vm.n_after(("B", 20))})')
    a('s_barrier')
    stamp(a, 9)
    reads_p2(20, 0)
    for s in range(20, 24): stage_p2(s, 'first')
    a(f's_mov_b32 s{S_CNT}, 6')
    a.lab('L_p2_loop')
    for s in range(24, 28): stage_p2(s, 'loop')
    a(f's_sub_u32 s{S_CNT}, s{S_CNT}, 1')
    a(f's_cmp_lg_u32 s{S_CNT}, 0')
    a('s_cbranch_scc1 L_p2_loop')
    vm.ops = []
    for s in range(49, 51): vm.issue(('A', s), 2); vm.issue(('B', s), 3)
    U51 = dma_p2_A(51) + dma_p2_B(51)
    for (_, u) in split_units(U51)[0]: vm.issue(u[1], 1)
    pend2[0] = split_units(U51)[1]
    for s in range(48, 52): stage_p2(s, 'last')
    stamp(a, 10)
    BSP = 116
    PQ = 72
    a(f'v_and_b32 v{t0}, 15, v{V_L}')
    a(f'v_lshrrev_b32 v{t1}, 4, v{V_L}')
    a(f'v_lshrrev_b32 v{t2}, 1, v{t1}')
    a(f'v_lshlrev_b32 v{t2}, 6, v{t2}')
    a(f'v_lshrrev_b32 v{t3}, 2, v{t0}')
    a(f'v_lshl_add_u32 v{t2}, v{t3}, 3, v{t2}')
    a(f'v_and_b32 v{t3}, 1, v{t1}')
    a(f'v_lshl_add_u32 v{t2}, v{t3}, 2, v{t2}')
    a(f'v_and_b32 v{t3}, 3, v{t0}')
    a(f'v_add_u32 v{t2}, v{t2}, v{t3}')
    a(f's_mul_i32 s{S_T}, s{S_WJ}, 384')
    a(f's_lshl_b32 s{S_AO}, s{S_WI}, 5')
    a(f's_add_u32 s{S_T}, s{S_T}, s{S_AO}')
    a(f'v_add_u32 v{t2}, s{S_T}, v{t2}')
    a(f'v_lshlrev_b32 v{V_US}, 4, v{t2}')
    a(f's_mul_i32 s{S_ABASE}, s{S_RB}, 98304')
    a(f's_add_u32 s{S_ABASE}, s{S_ABASE}, {WS_P}')
    a(f's_mul_i32 s{S_T}, s{S_CB}, 12288')
    a(f's_add_u32 s{S_T}, s{S_T}, s{S_ABASE}')
    for phi in range(3):
        for tau in range(2):
            for hh in range(2):
                c = G2 + 4 * (2 * phi + tau) + 2 * hh
                z = ACC1 + 4 * (2 * phi + tau) + 2 * hh
                t = V_T + 4 * (hh & 1)
                a(f'v_cvt_pk_bf16_f32 v{t+2}, v{c}, v{c+1}')
                a(f'v_lshlrev_b32 v{t}, 16, v{t+2}')
                a(f'v_and_b32 v{t+1}, 0xffff0000, v{t+2}')
                a(f'v_pk_add_f32 {vr(t,2)}, {vr(t,2)}, {vr(BSP,2)} op_sel:[0,{tau}] op_sel_hi:[1,{tau}]')
                a(f'v_cvt_pk_bf16_f32 v{t+2}, v{t}, v{t+1}')
                a(f'v_lshlrev_b32 v{t}, 16, v{t+2}')
                a(f'v_and_b32 v{t+1}, 0xffff0000, v{t+2}')
                a(f'v_pk_mul_f32 {vr(t,2)}, {vr(t,2)}, {vr(z,2)}')
                a(f'v_cvt_pk_bf16_f32 v{PQ+4*phi+2*tau+hh}, v{t}, v{t+1}')
        q = PQ + 4 * phi
        a(f'v_permlane16_swap_b32 v{q}, v{q+2}')
        a(f'v_permlane16_swap_b32 v{q+1}, v{q+3}')
        a(f'buffer_store_dwordx4 {vr(q,4)}, v{V_US}, {srd(SRD_WS)}, s{S_T} offen offset:{2048*phi if phi < 2 else 0} sc1' if phi < 2 else
          f's_add_u32 s{S_T}, s{S_T}, 4096')
        if phi == 2:
            a(f'buffer_store_dwordx4 {vr(q,4)}, v{V_US}, {srd(SRD_WS)}, s{S_T} offen sc1')
    a('s_waitcnt vmcnt(0)')
    a('s_barrier')
    a(f's_cmp_lg_u32 s{S_W}, 0')
    a('s_cbranch_scc1 L_fp_skip')
    a(f's_lshl_b32 s{S_T}, s{S_RB}, 3')
    a(f's_add_u32 s{S_T}, s{S_T}, s{S_CB}')
    a(f's_lshl_b32 s{S_T}, s{S_T}, 2')
    a(f's_add_u32 s{S_T}, s{S_T}, {WS_FP}')
    flag_store(a, S_T, V_T)
    a.lab('L_fp_skip')
    stamp(a, 11)
    if stop == 3:
        a('s_endpgm'); return
    a(f'v_and_b32 v{t0}, 7, v{V_L}')
    a(f'v_lshlrev_b32 v{t0}, 2, v{t0}')
    a(f's_lshl_b32 s{S_T}, s{S_RB}, 5')
    a(f'v_add_u32 v{t0}, s{S_T}, v{t0}')
    a(f'v_add_u32 v{t1}, {WS_FP}, v{t0}')
    a(f'v_add_u32 v{t2}, {WS_FG}, v{t0}')
    a(f'v_bfe_u32 v{t3}, v{V_L}, 3, 1')
    a(f'v_cmp_eq_u32 vcc, 1, v{t3}')
    a(f'v_cndmask_b32 v{t1}, v{t1}, v{t2}, vcc')
    a(f's_mul_i32 s{S_T}, s{S_CB}, 320')
    a(f's_add_u32 s{S_T}, s{S_T}, {WS_FA}')
    a(f'v_lshlrev_b32 v{t2}, 2, v{V_L}')
    a(f'v_add_u32 v{t2}, s{S_T}, v{t2}')
    a(f'v_and_b32 v{t3}, 15, v{V_L}')
    a(f'v_lshlrev_b32 v{t3}, 2, v{t3}')
    a(f'v_add_u32 v{t3}, s{S_T}, v{t3}')
    a(f'v_add_u32 v{t3}, 256, v{t3}')
    a(f'v_bfe_u32 v{t0}, v{V_L}, 4, 1')
    a(f'v_cmp_eq_u32 vcc, 1, v{t0}')
    a(f'v_cndmask_b32 v{t1}, v{t1}, v{t3}, vcc')
    if opt.get('no_side'):
        a(f'v_and_b32 v{t0}, 7, v{V_L}')
        a(f'v_lshlrev_b32 v{t0}, 2, v{t0}')
        a(f's_lshl_b32 s{S_T}, s{S_RB}, 5')
        a(f'v_add_u32 v{t0}, s{S_T}, v{t0}')
        a(f'v_add_u32 v{t1}, {WS_FP}, v{t0}')
        poll(a, 'L_pp', [(t1, '0')], V_T + 4, S_CNT)
    else:
        poll(a, 'L_pp', [(t1, '0'), (t2, '0')], V_T + 4, S_CNT)
    stamp(a, 12)
    vm.ops = []
    for s in range(52, 56): run_units(dma_p3_A(s))
    AT = 120
    GT = 132
    a(f's_lshl_b32 s{S_T}, s{S_W}, 7')
    a(f'v_add_u32 v{t0}, s{S_T}, v{V_L}')
    a(f's_lshl_b32 s{S_T}, s{S_WJ}, 6')
    a(f's_add_u32 s{S_T}, s{S_T}, 512')
    a(f'v_add_u32 v{t1}, s{S_T}, v{V_L}')
    V_AW = 134
    a(f'v_lshlrev_b32 v{V_AW}, 4, v{t0}')
    a(f'v_lshlrev_b32 v{V_AW+1}, 4, v{t1}')
    for tt in (t0, t1):
        a(f'v_lshrrev_b32 v{t2}, 3, v{tt}')
        a(f'v_and_b32 v{tt}, 7, v{tt}')
        a(f'v_lshlrev_b32 v{t2}, 12, v{t2}')
        a(f'v_lshl_add_u32 v{tt}, v{tt}, 4, v{t2}')
    a(f's_mul_i32 s{S_T}, s{S_CB}, {80*4096}')
    a(f's_lshl_b32 s{S_AO}, s{S_RB}, 7')
    a(f's_add_u32 s{S_T}, s{S_T}, s{S_AO}')
    a(f's_add_u32 s{S_T}, s{S_T}, {WS_AT}')
    a(f's_add_u32 s{S_AO}, s{S_T}, {8*4096}')
    a(f'buffer_load_dwordx4 {vr(AT,4)}, v{t0}, {srd(SRD_WS)}, s{S_T} offen sc1')
    a(f'buffer_load_dwordx4 {vr(AT+4,4)}, v{t0}, {srd(SRD_WS)}, s{S_AO} offen sc1')
    a(f'buffer_load_dwordx4 {vr(AT+8,4)}, v{t1}, {srd(SRD_WS)}, s{S_T} offen sc1')
    a(f'v_and_b32 v{t0}, 15, v{V_L}')
    a(f'v_lshrrev_b32 v{t1}, 4, v{V_L}')
    a(f's_lshl_b32 s{S_T}, s{S_RB}, 6')
    a(f's_lshl_b32 s{S_AO}, s{S_W}, 4')
    a(f's_add_u32 s{S_T}, s{S_T}, s{S_AO}')
    a(f'v_add_u32 v{t2}, s{S_T}, v{t0}')
    a(f'v_lshlrev_b32 v{t3}, 3, v{t2}')
    a(f'v_add_u32 v{t3}, {WS_G}, v{t3}')
    a(f'buffer_load_dwordx2 {vr(GT,2)}, v{t3}, {srd(SRD_WS)}, 0 offen sc1')
    vm.issue('at', 4)
    V_O1, V_O2 = 136, 137
    a(f'v_mul_u32_u24 v{t2}, 1280, v{t2}')
    a(f'v_add_u32 v{t2}, s{S_T2}, v{t2}')
    a(f'v_and_b32 v{t3}, 1, v{t1}')
    a(f'v_lshl_add_u32 v{V_O1}, v{t3}, 5, v{t2}')
    a(f'v_lshrrev_b32 v{t3}, 1, v{t1}')
    a(f'v_lshl_add_u32 v{V_O1}, v{t3}, 4, v{V_O1}')
    a(f'v_lshl_add_u32 v{V_O2}, v{t1}, 3, v{t2}')
    a(f'v_add_u32 v{V_O2}, 128, v{V_O2}')
    a(f'v_lshl_add_u32 v{t2}, v{t1}, 6, v{t0}')
    a(f's_lshl_b32 s{S_AO}, s{S_W}, 4')
    a(f'v_add_u32 v{t2}, s{S_AO}, v{t2}')
    a(f'v_lshlrev_b32 v{V_AR}, 4, v{t2}')
    a(f'v_add_u32 v{V_AR+2}, {2*SLOT}, v{V_AR}')
    V_B2 = 138
    a(f'v_lshrrev_b32 v{t2}, 2, v{t0}')
    a(f'v_lshl_add_u32 v{t2}, v{t1}, 3, v{t2}')
    a(f'v_and_b32 v{t3}, 1, v{t1}')
    a(f'v_lshl_add_u32 v{t2}, v{t3}, 2, v{t2}')
    a(f'v_xor_b32 v{t3}, 4, v{t2}')
    a(f'v_mul_u32_u24 v{t2}, 160, v{t2}')
    a(f'v_mul_u32_u24 v{t3}, 160, v{t3}')
    a(f'v_and_b32 v{V_BR}, 3, v{V_L}')
    a(f'v_lshlrev_b32 v{V_BR}, 3, v{V_BR}')
    a(f'v_add_u32 v{V_BR}, {BOFF}, v{V_BR}')
    a(f'v_add_u32 v{V_B2}, v{V_BR}, v{t3}')
    a(f'v_add_u32 v{V_BR}, v{V_BR}, v{t2}')
    a(f'v_add_u32 v{V_BR+1}, {2*SLOT}, v{V_BR}')
    a(f'v_add_u32 v{V_B2+1}, {2*SLOT}, v{V_B2}')
    V_ATR = 140
    a(f'v_lshrrev_b32 v{t2}, 2, v{t0}')
    a(f'v_lshl_add_u32 v{t2}, v{t1}, 2, v{t2}')
    a(f'v_lshlrev_b32 v{t2}, 7, v{t2}')
    a(f'v_and_b32 v{t3}, 3, v{V_L}')
    a(f'v_lshl_add_u32 v{t2}, v{t3}, 3, v{t2}')
    a(f's_lshl_b32 s{S_AO}, s{S_W}, 5')
    a(f'v_add_u32 v{V_ATR}, s{S_AO}, v{t2}')
    O3 = 24
    F3 = 72 - 24
    F3 = 48
    for i in range(20):
        a(f'v_mov_b32 v{O3+i}, 0')
    def reads_p3(stage, ks):
        f = F3 + 24 * ks
        hi = 1 if (stage & 2) else 0
        a(f'ds_read_b128 {vr(f,4)}, v{V_AR+2*hi} offset:{so(stage)+4096*ks}')
        for dl in range(5):
            a(f'ds_read_b64_tr_b16 {vr(f+4+4*dl,2)}, v{V_BR+hi} offset:{so(stage)+5120*ks+32*dl}')
            a(f'ds_read_b64_tr_b16 {vr(f+6+4*dl,2)}, v{V_B2+hi} offset:{so(stage)+5120*ks+32*dl}')
    def mfma_p3(ks):
        f = F3 + 24 * ks
        L = []
        for dl in range(5):
            c = vr(O3 + 4 * dl, 4)
            L.append(f'v_mfma_f32_16x16x32_bf16 {c}, {vr(f+4+4*dl,4)}, {vr(f,4)}, {c}')
        return L
    a(f's_waitcnt vmcnt({vm.n_after(("A", 52))})')
    a('s_barrier')
    stamp(a, 13)
    reads_p3(52, 0)
    for s in range(52, 64):
        reads_p3(s, 1)
        a('s_waitcnt lgkmcnt(11)')
        with_units(mfma_p3(0), pend); pend = []
        if s < 63:
            last = ('A', s + 1)
            a(f's_waitcnt vmcnt({vm.n_after(last)}) lgkmcnt(0)')
        else:
            a('s_waitcnt lgkmcnt(0)')
        a('s_barrier')
        now, pend = split_units(dma_p3_B(s + 4) + dma_p3_A(s + 4) if s + 4 < 64 else [])
        if s == 60:
            a(f'ds_write_b128 v{V_AW}, {vr(AT,4)}')
            a(f'ds_write_b128 v{V_AW}, {vr(AT+4,4)} offset:1024')
            a(f'ds_write_b128 v{V_AW+1}, {vr(AT+8,4)}')
        if s < 63:
            reads_p3(s + 1, 0)
        with_units(mfma_p3(1), now)
    stamp(a, 14)
    AV = 96
    for dl in range(5):
        a(f'ds_read_b64_tr_b16 {vr(AV+2*dl,2)}, v{V_ATR} offset:{2048*dl}')
    a('s_waitcnt lgkmcnt(0)')
    RQ = 108
    for dl in range(5):
        for hh in range(2):
            c = O3 + 4 * dl + 2 * hh
            t = V_T + 4 * hh
            av = AV + 2 * dl + hh
            a(f'v_cvt_pk_bf16_f32 v{t+2}, v{c}, v{c+1}')
            a(f'v_lshlrev_b32 v{t}, 16, v{av}')
            a(f'v_and_b32 v{t+1}, 0xffff0000, v{av}')
            a(f'v_lshlrev_b32 v{c}, 16, v{t+2}')
            a(f'v_and_b32 v{c+1}, 0xffff0000, v{t+2}')
            a(f'v_pk_mul_f32 {vr(t,2)}, {vr(t,2)}, {vr(GT,2)} op_sel:[0,0] op_sel_hi:[1,0]')
            a(f'v_pk_mul_f32 {vr(c,2)}, {vr(c,2)}, {vr(GT,2)} op_sel:[0,1] op_sel_hi:[1,1]')
            a(f'v_cvt_pk_bf16_f32 v{t+2}, v{t}, v{t+1}')
            a(f'v_cvt_pk_bf16_f32 v{t+3}, v{c}, v{c+1}')
            a(f'v_lshlrev_b32 v{t}, 16, v{t+2}')
            a(f'v_and_b32 v{t+1}, 0xffff0000, v{t+2}')
            a(f'v_lshlrev_b32 v{c}, 16, v{t+3}')
            a(f'v_and_b32 v{c+1}, 0xffff0000, v{t+3}')
            a(f'v_pk_add_f32 {vr(t,2)}, {vr(t,2)}, {vr(c,2)}')
            a(f'v_cvt_pk_bf16_f32 v{RQ+2*dl+hh}, v{t}, v{t+1}')
        if dl in (1, 3):
            q = RQ + 2 * (dl - 1)
            a(f'v_permlane16_swap_b32 v{q}, v{q+2}')
            a(f'v_permlane16_swap_b32 v{q+1}, v{q+3}')
            a(f'buffer_store_dwordx4 {vr(q,4)}, v{V_O1}, {srd(SRD_OUT)}, 0 offen offset:{32*(dl-1)}')
        if dl == 4:
            a(f'buffer_store_dwordx2 {vr(RQ+8,2)}, v{V_O2}, {srd(SRD_OUT)}, 0 offen')
    if _g.PROF['on']:
        a('s_waitcnt vmcnt(0)')
    stamp(a, 15)
    stamp_dump(a, 16)
    a('s_endpgm')

Z2P = 24 + 0

def p1a_epilogue(a, opt, vm, k0):
    t0, t1, t2, t3 = V_T, V_T + 1, V_T + 2, V_T + 3
    SS, QQ = ACC1, ACC1 + 8
    K0 = ACC1 + 16
    ZT = ACC1 + 18
    PKD = ACC1 + 20
    a(f'v_mov_b32 v{K0}, {hx(k0)}')
    a(f'v_mov_b32 v{K0+1}, {hx(k0)}')
    for i in range(16):
        a(f'v_mov_b32 v{SS+i}, 0')
    order = [(tau, phi, hh) for tau in range(2) for phi in range(3) for hh in range(2)]
    pairs = [ACC2 + 4 * (3 * tau + phi) + 2 * hh for (tau, phi, hh) in order]
    def after(idx, c, t):
        tau, phi, hh = order[idx]
        a(f'v_cvt_pk_bf16_f32 v{c}, v{t+2}, v{t+3}')
        a(f'v_lshlrev_b32 v{t}, 16, v{c}')
        a(f'v_and_b32 v{t+1}, 0xffff0000, v{c}')
        r = 4 * tau + 2 * hh
        a(f'v_pk_add_f32 {vr(SS+r,2)}, {vr(SS+r,2)}, {vr(t,2)}')
        a(f'v_pk_fma_f32 {vr(QQ+r,2)}, {vr(t,2)}, {vr(t,2)}, {vr(QQ+r,2)}')
    gelu_pairs(a, pairs, K0, after)
    for rot in (8, 4, 2, 1):
        for i in range(16):
            a(f'v_add_f32_dpp v{SS+i}, v{SS+i}, v{SS+i} row_ror:{rot} row_mask:0xf bank_mask:0xf')
    a(f'v_and_b32 v{t0}, 15, v{V_L}')
    a(f'v_lshrrev_b32 v{t1}, 4, v{V_L}')
    GQ = V_T + 4
    a(f'v_mov_b32 v{GQ}, v{SS}')
    a(f'v_mov_b32 v{GQ+1}, v{QQ}')
    for j in range(1, 8):
        a(f'v_cmp_eq_u32 vcc, {j}, v{t0}')
        a(f'v_cndmask_b32 v{GQ}, v{GQ}, v{SS+j}, vcc')
        a(f'v_cndmask_b32 v{GQ+1}, v{GQ+1}, v{QQ+j}, vcc')
    a(f'v_mov_b32 v{GQ+2}, s{S_TAG}')
    a(f'v_mov_b32 v{GQ+3}, s{S_TAG}')
    a(f'v_lshl_add_u32 v{t2}, v{t1}, 3, v{t0}')
    a(f's_lshl_b32 s{S_T}, s{S_WI}, 5')
    a(f'v_add_u32 v{t2}, s{S_T}, v{t2}')
    a(f'v_lshlrev_b32 v{t2}, 8, v{t2}')
    a(f's_lshl_b32 s{S_T}, s{S_RB}, 14')
    a(f's_lshl_b32 s{S_T2}, s{S_CB}, 5')
    a(f's_add_u32 s{S_T}, s{S_T}, s{S_T2}')
    a(f's_lshl_b32 s{S_T2}, s{S_WJ}, 4')
    a(f's_add_u32 s{S_T}, s{S_T}, s{S_T2}')
    a(f's_add_u32 s{S_T}, s{S_T}, {WS_ST}')
    a(f'v_cmp_gt_u32 vcc, 8, v{t0}')
    a(f's_and_saveexec_b64 {sp(S_TMP2)}, vcc')
    a(f'buffer_store_dwordx4 {vr(GQ,4)}, v{t2}, {srd(SRD_WS)}, s{S_T} offen sc1')
    a(f's_mov_b64 exec, {sp(S_TMP2)}')
    vm.issue('st', 1)
    for i in range(24):
        a(f'v_mov_b32 v{ACC1+i}, 0')

def p1b_epilogue(a, opt, vm, k0):
    t0, t1, t2, t3 = V_T, V_T + 1, V_T + 2, V_T + 3
    ST = 96
    a(f'v_lshrrev_b32 v{t0}, 2, v{V_L}')
    a(f's_lshl_b32 s{S_T}, s{S_W}, 4')
    a(f'v_add_u32 v{t0}, s{S_T}, v{t0}')
    a(f'v_and_b32 v{t1}, 3, v{V_L}')
    a(f'v_lshlrev_b32 v{t2}, 8, v{t0}')
    a(f'v_lshl_add_u32 v{t2}, v{t1}, 6, v{t2}')
    a(f's_lshl_b32 s{S_T}, s{S_RB}, 14')
    a(f's_add_u32 s{S_T}, s{S_T}, {WS_ST}')
    BSP = 116
    a(f'v_bfe_u32 v{t3}, v{V_L}, 2, 2')
    a(f'v_lshlrev_b32 v{t3}, 3, v{t3}')
    a(f'v_add_u32 v{t3}, v{t3}, v{t1}')
    a(f's_lshl_b32 s{S_T2}, s{S_RB}, 6')
    a(f's_lshl_b32 s{S_AO}, s{S_WI}, 5')
    a(f's_add_u32 s{S_T2}, s{S_T2}, s{S_AO}')
    a(f'v_add_u32 v{t3}, s{S_T2}, v{t3}')
    a(f'v_lshlrev_b32 v{t3}, 1, v{t3}')
    a(f'global_load_ushort v{BSP}, v{t3}, {sp(P_BSP)}')
    a(f'global_load_ushort v{BSP+1}, v{t3}, {sp(P_BSP)} offset:8')
    a(f's_mov_b32 s{S_CNT}, {SPIN_MAX}')
    a.lab('L_ln_spin')
    for k in range(4):
        a(f'buffer_load_dwordx4 {vr(ST+4*k,4)}, v{t2}, {srd(SRD_WS)}, s{S_T} offen offset:{16*k} sc1')
    a('s_waitcnt vmcnt(0)')
    a(f'v_cmp_ne_u32 vcc, s{S_TAG}, v{ST+2}')
    for k in range(4):
        for e in (2, 3):
            if k == 0 and e == 2: continue
            a(f'v_cmp_ne_u32 s[84:85], s{S_TAG}, v{ST+4*k+e}')
            a('s_or_b64 vcc, vcc, s[84:85]')
    a('s_cbranch_vccz L_ln_done')
    a('s_sleep 1')
    a(f's_sub_u32 s{S_CNT}, s{S_CNT}, 1')
    a(f's_cmp_lg_u32 s{S_CNT}, 0')
    a('s_cbranch_scc1 L_ln_spin')
    a.lab('L_ln_done')
    stamp(a, 5)
    vm.ops = []
    a(f'v_pk_add_f32 {vr(ST,2)}, {vr(ST,2)}, {vr(ST+4,2)}')
    a(f'v_pk_add_f32 {vr(ST+8,2)}, {vr(ST+8,2)}, {vr(ST+12,2)}')
    a(f'v_pk_add_f32 {vr(ST,2)}, {vr(ST,2)}, {vr(ST+8,2)}')
    for qp in ('[1,0,3,2]', '[2,3,0,1]'):
        a(f'v_add_f32_dpp v{ST}, v{ST}, v{ST} quad_perm:{qp} row_mask:0xf bank_mask:0xf')
        a(f'v_add_f32_dpp v{ST+1}, v{ST+1}, v{ST+1} quad_perm:{qp} row_mask:0xf bank_mask:0xf')
    a(f'v_mul_f32 v{ST}, {hx(1/768)}, v{ST}')
    a(f'v_mul_f32 v{ST+1}, {hx(1/768)}, v{ST+1}')
    a(f'v_fma_f32 v{ST+1}, -v{ST}, v{ST}, v{ST+1}')
    a(f'v_max_f32 v{ST+1}, 0, v{ST+1}')
    a(f'v_cvt_pk_bf16_f32 v{ST+2}, v{ST}, v{ST+1}')
    a(f'v_lshlrev_b32 v{ST}, 16, v{ST+2}')
    a(f'v_and_b32 v{ST+1}, 0xffff0000, v{ST+2}')
    a(f'v_add_f32 v{ST+1}, {hx(1e-5)}, v{ST+1}')
    a(f'v_cvt_pk_bf16_f32 v{ST+1}, v{ST+1}, v{ST+1}')
    a(f'v_and_b32 v{ST+1}, 0xffff0000, v{ST+1}')
    a(f'v_sqrt_f32 v{ST+1}, v{ST+1}')
    a(f'v_cvt_pk_bf16_f32 v{ST+1}, v{ST+1}, v{ST+1}')
    a(f'v_and_b32 v{ST+1}, 0xffff0000, v{ST+1}')
    a(f'v_rcp_f32 v{ST+1}, v{ST+1}')
    LN = BOFF
    a(f'v_lshlrev_b32 v{t0}, 2, v{t0}')
    a(f'ds_write_b32 v{t0}, v{ST} offset:{LN}')
    a(f'ds_write_b32 v{t0}, v{ST+1} offset:{LN+256}')
    a(f'v_lshlrev_b32 v{BSP}, 16, v{BSP}')
    a(f'v_lshlrev_b32 v{BSP+1}, 16, v{BSP+1}')
    a(f'v_lshrrev_b32 v{t1}, 4, v{V_L}')
    a(f's_lshl_b32 s{S_T}, s{S_WI}, 7')
    a(f'v_lshlrev_b32 v{t2}, 5, v{t1}')
    a(f'v_add_u32 v{t2}, s{S_T}, v{t2}')
    a('s_waitcnt lgkmcnt(0)')
    a('s_barrier')
    MM, RR = 100, 108
    a(f'ds_read_b128 {vr(MM,4)}, v{t2} offset:{LN}')
    a(f'ds_read_b128 {vr(MM+4,4)}, v{t2} offset:{LN+16}')
    a(f'ds_read_b128 {vr(RR,4)}, v{t2} offset:{LN+256}')
    a(f'ds_read_b128 {vr(RR+4,4)}, v{t2} offset:{LN+272}')
    a(f'v_and_b32 v{t0}, 15, v{V_L}')
    a(f'v_mul_u32_u24 v{t1}, 96, v{t1}')
    a(f'v_add_u32 v{t0}, v{t0}, v{t1}')
    a(f's_mul_i32 s{S_T}, s{S_WI}, 384')
    a(f's_mul_i32 s{S_T2}, s{S_WJ}, 48')
    a(f's_add_u32 s{S_T}, s{S_T}, s{S_T2}')
    a(f'v_add_u32 v{t0}, s{S_T}, v{t0}')
    a(f'v_lshlrev_b32 v{V_US}, 4, v{t0}')
    a(f's_lshl_b32 s{S_T}, s{S_CB}, 5')
    a(f's_add_u32 s{S_T}, s{S_T}, s{S_RB}')
    a(f's_lshl_b32 s{S_AO}, s{S_T}, 2')
    a(f's_add_u32 s{S_AO}, s{S_AO}, {WS_FZ}')
    a(f's_mul_i32 s{S_T}, s{S_T}, 12288')
    a(f's_add_u32 s{S_T}, s{S_T}, {WS_Z}')
    a('s_waitcnt lgkmcnt(0)')
    ZQ = 72
    for phi in range(3):
        for tau in range(2):
            for hh in range(2):
                c = ACC2 + 4 * (3 * tau + phi) + 2 * hh
                r = 4 * tau + 2 * hh
                t = V_T + 4 * hh
                a(f'v_lshlrev_b32 v{t}, 16, v{c}')
                a(f'v_and_b32 v{t+1}, 0xffff0000, v{c}')
                a(f'v_pk_add_f32 {vr(t,2)}, {vr(t,2)}, {vr(MM+r,2)} neg_lo:[0,1] neg_hi:[0,1]')
                a(f'v_cvt_pk_bf16_f32 v{t+2}, v{t}, v{t+1}')
                a(f'v_lshlrev_b32 v{t}, 16, v{t+2}')
                a(f'v_and_b32 v{t+1}, 0xffff0000, v{t+2}')
                a(f'v_pk_mul_f32 {vr(t,2)}, {vr(t,2)}, {vr(RR+r,2)}')
                a(f'v_cvt_pk_bf16_f32 v{ZQ+4*phi+2*tau+hh}, v{t}, v{t+1}')
        a(f'buffer_store_dwordx4 {vr(ZQ+4*phi,4)}, v{V_US}, {srd(SRD_WS)}, s{S_T} offen offset:{256*phi} sc1')
    K0 = 118
    a(f'v_mov_b32 v{K0}, {hx(k0)}')
    a(f'v_mov_b32 v{K0+1}, {hx(k0)}')
    pairs = [ACC1 + 2 * i for i in range(12)]
    def after(idx, c, t):
        a(f'v_cvt_pk_bf16_f32 v{t}, v{t+2}, v{t+3}')
        a(f'v_lshlrev_b32 v{c}, 16, v{t}')
        a(f'v_and_b32 v{c+1}, 0xffff0000, v{t}')
    gelu_pairs(a, pairs[:4], K0, after)
    a('s_waitcnt vmcnt(0)')
    a('s_barrier')
    a(f's_cmp_lg_u32 s{S_W}, 0')
    a('s_cbranch_scc1 L_fz_skip')
    flag_store(a, S_AO, V_T)
    a.lab('L_fz_skip')
    stamp(a, 6)
    gelu_pairs(a, pairs[4:], K0, after)
    if opt.get('dump_z1'):
        a(f's_lshl_b32 s{S_T}, s2, 2')
        a(f's_add_u32 s{S_T}, s{S_T}, s{S_W}')
        a(f's_mul_i32 s{S_T}, s{S_T}, {24*256}')
        a(f's_add_u32 s{S_T}, s{S_T}, {WS_DBG}')
        a(f'v_lshlrev_b32 v{t0}, 2, v{V_L}')
        for i in range(24):
            a(f'buffer_store_dword v{ACC1+i}, v{t0}, {srd(SRD_WS)}, s{S_T} offen offset:{256*(i%16)}')
            if i == 15: a(f's_add_u32 s{S_T}, s{S_T}, 4096')
        a('s_waitcnt vmcnt(0)')
```

```python
import sys, struct
import numpy as np
sys.path.insert(0, 'gen')
from asmlib import Asm

KNAME = 'gated_mix__ssm_conv_s4__mixer_gmlp__prompt_kernel'

def f2u(x): return struct.unpack('<I', struct.pack('<f', x))[0]
def hx(x): return '0x%08x' % f2u(x)

WS_EPOCH = 0x0
WS_FZ = 0x1000
WS_FU = 0x2000
WS_FP = 0x3000
WS_FA = 0x4000
WS_FG = 0x5000
WS_G = 0x8000
WS_ST = 0x10000
WS_Z = 0x100000
WS_P = 0x400000
WS_UT = 0x700000
WS_AT = 0xA00000
WS_DBG = 0x1000000
WS_SIZE = 0x4000000

P_U, P_ARE, P_AIM, P_BRE, P_BIM, P_CRE, P_CIM, P_LDT = 16, 18, 20, 22, 24, 26, 28, 30
P_DSK, P_BX, P_WIN, P_WSP, P_BSP, P_WOUT, P_GW, P_OUT = 32, 34, 36, 38, 40, 42, 44, 46
P_DBG, P_WS = 48, 50
SRD_X, SRD_WIN, SRD_WSP, SRD_WOUT, SRD_WS, SRD_OUT = 52, 56, 60, 64, 68, 72
S_TAG, S_W = 80, 81
def srd(n): return f's[{n}:{n+3}]'
def sp(n): return f's[{n}:{n+1}]'
def vr(a, n): return f'v[{a}:{a+n-1}]'

LOG2E = 1.4426950408889634
SPIN_MAX = 200000

def mk_srd(a, dst, ptr, size):
    a(f's_mov_b32 s{dst}, s{ptr}')
    a(f's_and_b32 s{dst+1}, s{ptr+1}, 0xffff')
    a(f's_mov_b32 s{dst+2}, {size}')
    a(f's_mov_b32 s{dst+3}, 0x00020000')

def cmul(a, dst, x, y, tmp):
    a(f'v_pk_mul_f32 {vr(tmp,2)}, {vr(x,2)}, {vr(y,2)} op_sel:[0,0] op_sel_hi:[0,1]')
    a(f'v_pk_fma_f32 {vr(dst,2)}, {vr(x,2)}, {vr(y,2)}, {vr(tmp,2)} op_sel:[1,1,0] op_sel_hi:[1,0,1] neg_lo:[1,0,0]')

PROF = {'on': False}
WS_PROF = 0x2000000
def stamp(a, i, base=18):
    if not PROF['on']: return
    a('s_memrealtime s[14:15]')
    a('s_waitcnt lgkmcnt(0)')
    a(f's_mov_b32 s{base+i}, s14')
def stamp_dump(a, n, base=18):
    if not PROF['on']: return
    a('s_mov_b64 exec, 1')
    a('s_lshl_b32 s14, s2, 2')
    a(f's_add_u32 s14, s14, s{S_W}')
    a('s_lshl_b32 s14, s14, 6')
    a(f's_add_u32 s14, s14, {WS_PROF}')
    for i in range(n):
        a(f'v_mov_b32 v2, s{base+i}')
        a(f'buffer_store_dword v2, off, {srd(SRD_WS)}, s14 offset:{4*i}')
    a('s_waitcnt vmcnt(0)')

def poll(a, name, loads, vtmp, scount, nlanes_mask=None):
    a(f's_mov_b32 s{scount}, {SPIN_MAX}')
    a.lab(f'{name}_spin')
    for i, (va, so) in enumerate(loads):
        a(f'buffer_load_dword v{vtmp+i}, v{va}, {srd(SRD_WS)}, {so} offen sc1')
    a('s_waitcnt vmcnt(0)')
    a(f'v_cmp_ne_u32 vcc, s{S_TAG}, v{vtmp}')
    for i in range(1, len(loads)):
        a(f'v_cmp_ne_u32 s[84:85], s{S_TAG}, v{vtmp+i}')
        a('s_or_b64 vcc, vcc, s[84:85]')
    a(f's_cbranch_vccz {name}_done')
    a('s_sleep 2')
    a(f's_sub_u32 s{scount}, s{scount}, 1')
    a(f's_cmp_lg_u32 s{scount}, 0')
    a(f's_cbranch_scc1 {name}_spin')
    a.lab(f'{name}_done')

WAVE_LDS = 26624
CP = 4160
UOFF = 16640
def side_channel(a, opt):
    sD, sLB, sT, sT2, sUns = 82, 83, 86, 87, 88
    vL = 1
    stamp(a, 0, 52)
    a(f's_mul_i32 s{sLB}, s{S_W}, {WAVE_LDS}')
    a(f's_mul_i32 s{sT}, s{sD}, 384')
    a(f'v_lshlrev_b32 v2, 1, v{vL}')
    a(f'v_add_u32 v2, s{sT}, v2')
    PR = 10
    arrs = [P_ARE, P_AIM, P_BRE, P_BIM, P_CRE, P_CIM]
    a(f's_lshl_b32 s{sT}, s{sD}, 1')
    a(f'v_mov_b32 v3, s{sT}')
    a(f'global_load_ushort v28, v3, {sp(P_LDT)}')
    a(f'global_load_ushort v29, v3, {sp(P_DSK)}')
    for ch in range(3):
        for k, p in enumerate(arrs):
            a(f'global_load_ushort v{PR+6*ch+k}, v2, {sp(p)} offset:{128*ch}')
    vWr, vRd = 4, 5
    a(f'v_lshlrev_b32 v{vWr}, 2, v{vL}')
    a(f'v_add_u32 v{vWr}, s{sLB}, v{vWr}')
    a(f'v_and_b32 v6, 31, v{vL}')
    a(f'v_mul_u32_u24 v{vRd}, 272, v6')
    a(f'v_lshrrev_b32 v7, 5, v{vL}')
    a(f'v_lshl_add_u32 v{vRd}, v7, 4, v{vRd}')
    a(f'v_add_u32 v{vRd}, s{sLB}, v{vRd}')
    hi = struct.unpack('<f', struct.pack('<I', f2u(LOG2E) & 0xFFFFF000))[0]
    lo = LOG2E - hi
    a('s_waitcnt vmcnt(18)')
    a('v_lshlrev_b32 v28, 16, v28')
    a('v_lshlrev_b32 v29, 16, v29')
    a(f'v_mul_f32 v8, {hx(hi)}, v28')
    a('v_rndne_f32 v9, v8')
    a('v_sub_f32 v8, v8, v9')
    a(f'v_fmac_f32 v8, {hx(lo)}, v28')
    a('v_exp_f32 v8, v8')
    a('v_cvt_i32_f32 v9, v9')
    a('v_ldexp_f32 v8, v8, v9')
    a('v_cvt_pk_bf16_f32 v8, v8, v8')
    a('v_lshlrev_b32 v28, 16, v8')
    a('s_waitcnt vmcnt(0)')
    for i in range(18):
        a(f'v_lshlrev_b32 v{PR+i}, 16, v{PR+i}')
    WR = 32
    AW = 38
    for ch in range(3):
        b = PR + 6 * ch
        a(f'v_mul_f32 v{b}, v28, v{b}')
        a(f'v_mul_f32 v{b+1}, v28, v{b+1}')
        a(f'v_mul_f32 v{b+2}, v28, v{b+2}')
        a(f'v_mul_f32 v{b+3}, v28, v{b+3}')
        a(f'v_mul_f32 v{AW+2*ch}, {hx(LOG2E)}, v{b}')
        a(f'v_mul_f32 v{AW+2*ch+1}, {hx(1/(2*np.pi))}, v{b+1}')
        cmul(a, WR + 2 * ch, b + 4, b + 2, 8)
    a(f'v_max3_f32 v8, abs(v{WR}), abs(v{WR+1}), abs(v{WR+2})')
    a(f'v_max3_f32 v8, v8, abs(v{WR+3}), abs(v{WR+4})')
    a(f'v_max_f32 v8, v8, abs(v{WR+5})')
    for r in (8, 4, 2, 1):
        a(f'v_max_f32_dpp v8, v8, v8 row_ror:{r} row_mask:0xf bank_mask:0xf')
    a(f'v_readlane_b32 s{sT}, v8, 0')
    a(f'v_readlane_b32 s{sT2}, v8, 16')
    a(f's_max_u32 s{sT}, s{sT}, s{sT2}')
    a(f'v_readlane_b32 s{sT2}, v8, 32')
    a(f's_max_u32 s{sT}, s{sT}, s{sT2}')
    a(f'v_readlane_b32 s{sT2}, v8, 48')
    a(f's_max_u32 s{sT}, s{sT}, s{sT2}')
    a(f's_lshr_b32 s{sT}, s{sT}, 23')
    a(f's_min_u32 s{sT}, s{sT}, 252')
    a(f's_add_u32 s{sUns}, s{sT}, 1')
    a(f's_lshl_b32 s{sUns}, s{sUns}, 23')
    a(f's_sub_u32 s{sT}, 253, s{sT}')
    a(f's_lshl_b32 s{sT}, s{sT}, 23')
    for i in range(6):
        a(f'v_mul_f32 v{WR+i}, s{sT}, v{WR+i}')
    D = 72
    for i in range(16):
        a(f'v_mov_b32 v{D+i}, 0')
    E1, E8, GG = 44, 46, 48
    X = 50
    T = 8
    PK = 68
    FR = 88
    YB = 8704
    sCnt = 89
    a(f's_mov_b32 s{sCnt}, 3')
    a.lab('L_kg_chunk')
    def cexp(dst, P):
        if P == 1:
            a(f'v_exp_f32 v{T}, v{AW}')
            a(f'v_fract_f32 v{T+1}, v{AW+1}')
        else:
            a(f'v_mul_f32 v{T}, {hx(float(P))}, v{AW}')
            a(f'v_mul_f32 v{T+1}, {hx(float(P))}, v{AW+1}')
            a(f'v_exp_f32 v{T}, v{T}')
            a(f'v_fract_f32 v{T+1}, v{T+1}')
        a(f'v_cos_f32 v{dst}, v{T+1}')
        a(f'v_sin_f32 v{dst+1}, v{T+1}')
        a(f'v_pk_mul_f32 {vr(dst,2)}, {vr(dst,2)}, {vr(T,2)} op_sel:[0,0] op_sel_hi:[1,0]')
    cexp(E1, 1); cexp(E8, 8); cexp(GG, 256)
    pk = [0]
    def putX(pair, rows):
        r = PK + (pk[0] & 3); pk[0] += 1
        a(f'v_cvt_pk_f16_f32 v{r}, v{pair}, v{pair+1}')
        for row in rows:
            a(f'ds_write_b32 v{vWr}, v{r} offset:{row*272}')
    def putY(pair, row):
        r = PK + (pk[0] & 3); pk[0] += 1
        a(f'v_cvt_pk_f16_f32 v{r}, v{pair}, -v{pair+1}')
        a(f'ds_write_b32 v{vWr}, v{r} offset:{YB+row*272}')
    def row_of(h, reg): return 8 * (reg >> 2) + 4 * h + (reg & 3)
    a(f'v_mov_b32 v{X}, v{WR}')
    a(f'v_mov_b32 v{X+1}, v{WR+1}')
    putX(X, [row_of(0, 0)])
    for k in range(1, 9):
        cmul(a, X + 2 * k, X + 2 * (k - 1), E1, T)
        if k < 8: putX(X + 2 * k, [row_of(0, k)])
    rows256 = {0: [row_of(1, 0), row_of(1, 1)], 2: [row_of(1, 2)], 4: [row_of(1, 3), row_of(1, 4), row_of(1, 5)], 6: [row_of(1, 6)], 8: [row_of(1, 7)]}
    for k in (0, 2, 4, 6, 8):
        cmul(a, X + 2 * k, X + 2 * k, GG, T); putX(X + 2 * k, rows256[k])
    for h in (0, 1):
        for j, k in enumerate((0, 4, 8)):
            cmul(a, X + 2 * k, X + 2 * k, GG, T); putX(X + 2 * k, [row_of(h, 8 + j)])
    for step in range(4):
        h = step >> 1
        for j, k in enumerate((0, 8)):
            cmul(a, X + 2 * k, X + 2 * k, GG, T); putX(X + 2 * k, [row_of(h, 11 + 2 * (step & 1) + j)])
    a(f'v_mov_b32 v{PK}, 0x00003c00')
    a(f'ds_write_b32 v{vWr}, v{PK} offset:{YB}')
    putY(E8, 1)
    Y = X
    cmul(a, Y, E8, E8, T); putY(Y, 2)
    for k in range(3, 32):
        cmul(a, Y, Y, E8, T); putY(Y, k)
    for ks in range(2):
        a(f'ds_read_b128 {vr(FR+8*ks,4)}, v{vRd} offset:{32*ks}')
        a(f'ds_read_b128 {vr(FR+8*ks+4,4)}, v{vRd} offset:{YB+32*ks}')
    for i in range(4):
        a(f'v_mov_b32 v{WR+i}, v{WR+2+i}')
    for i in range(4):
        a(f'v_mov_b32 v{AW+i}, v{AW+2+i}')
    for ks in range(8):
        f = FR + 8 * (ks & 1)
        a('s_waitcnt lgkmcnt(2)' if ks < 7 else 's_waitcnt lgkmcnt(0)')
        a(f'v_mfma_f32_32x32x16_f16 {vr(D,16)}, {vr(f,4)}, {vr(f+4,4)}, {vr(D,16)}')
        if ks + 2 < 8:
            a(f'ds_read_b128 {vr(f,4)}, v{vRd} offset:{32*(ks+2)}')
            a(f'ds_read_b128 {vr(f+4,4)}, v{vRd} offset:{YB+32*(ks+2)}')
    a(f's_sub_u32 s{sCnt}, s{sCnt}, 1')
    a(f's_cmp_lg_u32 s{sCnt}, 0')
    a('s_cbranch_scc1 L_kg_chunk')
    stamp(a, 1, 52)
    a(f'v_lshlrev_b32 v10, 4, v6')
    a(f'v_sub_u32 v10, {16*255}, v10')
    a(f'v_add_u32 v10, s{sLB}, v10')
    a(f'v_lshlrev_b32 v11, 9, v7')
    a(f'v_sub_u32 v12, v10, v11')
    a(f'v_subrev_u32 v12, 1024, v12')
    a(f'v_sub_u32 v13, v10, v11')
    a(f'v_sub_u32 v13, v13, v11')
    a(f'v_subrev_u32 v13, 2560, v13')
    a(f'v_and_b32 v14, 1, v{vL}')
    a('v_cmp_eq_u32 vcc, 0, v14')
    a.fence(8)
    for i in range(15):
        a(f'v_mul_f32 v{D+i}, s{sUns}, v{D+i}')
    O = 16
    O = 88
    for j in range(4):
        a(f'v_cvt_pk_bf16_f32 v{O+j}, v{D+7-2*j}, v{D+6-2*j}')
    a(f'ds_write_b128 v12, {vr(O,4)} offset:1024')
    w0, w4, w8 = D + 8, D + 9, D + 10
    for j, (lo_, hi_) in enumerate([(w8, w8), (w4, w4), (w4, w0), (w0, w0)]):
        a(f'v_cvt_pk_bf16_f32 v{O+4+j}, v{lo_}, v{hi_}')
    a(f'ds_write_b128 v12, {vr(O+4,4)}')
    for s, (x0, x8, off) in enumerate([(D + 11, D + 12, 512), (D + 13, D + 14, 0)]):
        q = O + 8 + 4 * s
        a(f'v_cndmask_b32 v14, v{x8}, v{x0}, vcc')
        a(f'v_cvt_pk_bf16_f32 v{q}, v{x8}, v{x8}')
        a(f'v_cvt_pk_bf16_f32 v{q+1}, v{x8}, v14')
        a(f'v_cvt_pk_bf16_f32 v{q+2}, v{x0}, v{x0}')
        a(f'v_mov_b32 v{q+3}, v{q+2}')
        a(f'ds_write_b128 v13, {vr(q,4)} offset:{off}')
    a(f'v_lshrrev_b32 v10, 2, v{vL}')
    a(f'v_mul_u32_u24 v10, {CP}, v10')
    a(f'v_and_b32 v11, 3, v{vL}')
    a(f'v_lshl_add_u32 v10, v11, 4, v10')
    a(f'v_add_u32 v10, 4096, v10')
    a(f'v_subrev_u32 v11, 16, v{vL}')
    a(f'v_min_u32 v11, 29, v11')
    a(f'v_lshlrev_b32 v11, 4, v11')
    a(f'v_add_u32 v11, {UOFF}, v11')
    a(f'v_cmp_gt_u32 vcc, 16, v{vL}')
    a('v_cndmask_b32 v10, v11, v10, vcc')
    a(f'v_add_u32 v10, s{sLB}, v10')
    for i in range(4):
        a(f'v_mov_b32 v{16+i}, 0')
    a(f'ds_write_b128 v10, v[16:19]')
    a(f'v_lshlrev_b32 v10, 4, v{vL}')
    a(f'v_add_u32 v10, s{sLB}, v10')
    Wd = 32
    for it in range(4):
        a(f'ds_read_b128 {vr(Wd+8*it,4)}, v10 offset:{1024*it}')
        a(f'ds_read_b64 {vr(Wd+8*it+4,2)}, v10 offset:{1024*it+16}')
    for it in range(4):
        w = Wd + 8 * it
        q = 64 + 12 * (it & 1)
        a(f's_waitcnt lgkmcnt({min(15, 6 - 2*it + 3*it)})' if False else f's_waitcnt lgkmcnt({(3-it)*2 + (3*it if it else 0) if False else 0})' if it == 0 else '; (already waited)')
        for k in range(4):
            a(f'v_alignbyte_b32 v{q+k}, v{w+k+1}, v{w+k}, 2')
        a(f'ds_write_b128 v10, {vr(q,4)} offset:{CP+1024*it}')
        for k in range(4):
            a(f'v_mov_b32 v{q+4+k}, v{w+k+1}')
        a(f'ds_write_b128 v10, {vr(q+4,4)} offset:{2*CP+1024*it}')
        for k in range(4):
            a(f'v_alignbyte_b32 v{q+8+k}, v{w+k+2}, v{w+k+1}, 2')
        a(f'ds_write_b128 v10, {vr(q+8,4)} offset:{3*CP+1024*it}')
    if opt.get('dump_k'):
        a('s_waitcnt lgkmcnt(0)')
        a(f's_mul_i32 s{sT}, s{sD}, 17408')
        a(f's_add_u32 s{sT}, s{sT}, {WS_DBG}')
        a(f'v_lshlrev_b32 v11, 4, v{vL}')
        for it in range(17):
            a(f'ds_read_b128 v[16:19], v10 offset:{1024*it}')
            a('s_waitcnt lgkmcnt(0)')
            a(f'buffer_store_dwordx4 v[16:19], v11, {srd(SRD_WS)}, s{sT} offen')
            a(f's_add_u32 s{sT}, s{sT}, 1024')
        a('s_waitcnt vmcnt(0)')
    stamp(a, 2, 52)
    a(f's_lshr_b32 s{sT}, s{sD}, 6')
    a(f's_lshl_b32 s{sT}, s{sT}, 7')
    a(f's_add_u32 s{sT}, s{sT}, {WS_FU}')
    a(f'v_lshlrev_b32 v11, 2, v6')
    poll(a, 'L_pu', [(11, f's{sT}')], 12, 89)
    stamp(a, 3, 52)
    a(f's_lshl_b32 s{sT}, s{sD}, 12')
    a(f's_add_u32 s{sT2}, s{sT}, {WS_UT}')
    a(f'v_lshlrev_b32 v11, 4, v{vL}')
    for it in range(4):
        a(f'buffer_load_dwordx4 {vr(32+4*it,4)}, v11, {srd(SRD_WS)}, s{sT2} offen offset:{1024*it} sc1')
    vKA, vUB = 4, 5
    a(f'v_and_b32 v12, 15, v{vL}')
    a(f'v_lshrrev_b32 v13, 4, v{vL}')
    a('v_sub_u32 v14, 3, v12')
    a('v_and_b32 v14, 3, v14')
    a(f'v_mul_u32_u24 v{vKA}, {CP}, v14')
    a('v_add_u32 v15, v12, v14')
    a('v_sub_u32 v15, 2031, v15')
    a('v_lshl_add_u32 v15, v13, 3, v15')
    a(f'v_lshl_add_u32 v{vKA}, v15, 1, v{vKA}')
    a(f'v_subrev_u32 v{vKA}, {512*7}, v{vKA}')
    a(f'v_add_u32 v{vKA}, s{sLB}, v{vKA}')
    a(f'v_lshlrev_b32 v{vUB}, 5, v12')
    a(f'v_lshl_add_u32 v{vUB}, v13, 4, v{vUB}')
    a(f'v_add_u32 v{vUB}, {UOFF+448}, v{vUB}')
    a(f'v_add_u32 v{vUB}, s{sLB}, v{vUB}')
    a('v_lshlrev_b32 v6, 5, v12')
    a('v_lshl_add_u32 v6, v13, 3, v6')
    a(f'v_add_u32 v6, {UOFF+480}, v6')
    a(f'v_add_u32 v6, s{sLB}, v6')
    a('v_lshlrev_b32 v7, 5, v12')
    a('v_lshrrev_b32 v15, 1, v13')
    a('v_lshl_add_u32 v7, v15, 4, v7')
    a('v_and_b32 v15, 1, v13')
    a('v_lshl_add_u32 v7, v15, 9, v7')
    ACC = 64
    for i in range(32):
        a(f'v_mov_b32 v{ACC+i}, 0')
    for it in range(4):
        a(f's_waitcnt vmcnt({3-it})')
        a(f'ds_write_b128 v10, {vr(32+4*it,4)} offset:{UOFF+480+1024*it}')
    FA = [96, 160]
    def loads(s):
        L = []
        for g in range(8):
            L.append(f'ds_read_b64 {vr(FA[s]+4*g,2)}, v{vKA} offset:{512*(7-g)}')
            L.append(f'ds_read_b64 {vr(FA[s]+4*g+2,2)}, v{vKA} offset:{512*(7-g)+8}')
            L.append(f'ds_read_b128 {vr(FA[s]+32+4*g,4)}, v{vUB} offset:{512*g}')
        return L
    stamp(a, 4, 52)
    for l in loads(0): a(l)
    a(f's_mov_b32 s{sCnt}, 4')
    a.lab('L_conv')
    for s in range(2):
        a(f'v_subrev_u32 v{vKA}, 64, v{vKA}')
        a(f'v_subrev_u32 v{vUB}, 64, v{vUB}')
        a('s_waitcnt lgkmcnt(0)')
        nxt = loads(1 - s)
        pairs = [(g, i) for tot in range(8) for g in range(tot + 1) for i in [tot - g]]
        pairs = sorted(pairs, key=lambda p: (p[0], p[1]))
        k = 0
        for idx, (g, i) in enumerate(pairs):
            jt = g + i
            a(f'v_mfma_f32_16x16x32_bf16 {vr(ACC+4*jt,4)}, {vr(FA[s]+4*g,4)}, {vr(FA[s]+32+4*i,4)}, {vr(ACC+4*jt,4)}')
            if k < len(nxt) and idx >= 2:
                a(nxt[k]); k += 1
        while k < len(nxt):
            a(nxt[k]); k += 1
    a(f's_sub_u32 s{sCnt}, s{sCnt}, 1')
    a(f's_cmp_lg_u32 s{sCnt}, 0')
    a('s_cbranch_scc1 L_conv')
    a('s_waitcnt lgkmcnt(0)')
    stamp(a, 5, 52)
    UU = 32
    for jt in range(8):
        a(f'ds_read_b64 {vr(UU+2*jt,2)}, v6 offset:{512*jt}')
    a(f's_add_u32 s{sT2}, s{sT}, {WS_AT}')
    a('s_waitcnt lgkmcnt(0)')
    RES = 96
    for jt in range(8):
        c = ACC + 4 * jt
        t = 112 + 8 * (jt & 1)
        a(f'v_cvt_pk_bf16_f32 v{t}, v{c}, v{c+1}')
        a(f'v_cvt_pk_bf16_f32 v{t+1}, v{c+2}, v{c+3}')
        a(f'v_lshlrev_b32 v{c}, 16, v{UU+2*jt}')
        a(f'v_and_b32 v{c+1}, 0xffff0000, v{UU+2*jt}')
        a(f'v_lshlrev_b32 v{c+2}, 16, v{UU+2*jt+1}')
        a(f'v_and_b32 v{c+3}, 0xffff0000, v{UU+2*jt+1}')
        a(f'v_pk_mul_f32 {vr(c,2)}, {vr(c,2)}, {vr(28,2)} op_sel:[0,1] op_sel_hi:[1,1]')
        a(f'v_pk_mul_f32 {vr(c+2,2)}, {vr(c+2,2)}, {vr(28,2)} op_sel:[0,1] op_sel_hi:[1,1]')
        a(f'v_cvt_pk_bf16_f32 v{t+2}, v{c}, v{c+1}')
        a(f'v_cvt_pk_bf16_f32 v{t+3}, v{c+2}, v{c+3}')
        a(f'v_lshlrev_b32 v{c}, 16, v{t}')
        a(f'v_and_b32 v{c+1}, 0xffff0000, v{t}')
        a(f'v_lshlrev_b32 v{c+2}, 16, v{t+1}')
        a(f'v_and_b32 v{c+3}, 0xffff0000, v{t+1}')
        a(f'v_lshlrev_b32 v{t+4}, 16, v{t+2}')
        a(f'v_and_b32 v{t+5}, 0xffff0000, v{t+2}')
        a(f'v_lshlrev_b32 v{t+6}, 16, v{t+3}')
        a(f'v_and_b32 v{t+7}, 0xffff0000, v{t+3}')
        a(f'v_pk_add_f32 {vr(c,2)}, {vr(c,2)}, {vr(t+4,2)}')
        a(f'v_pk_add_f32 {vr(c+2,2)}, {vr(c+2,2)}, {vr(t+6,2)}')
        q = RES + 4 * (jt >> 1) + 2 * (jt & 1)
        a(f'v_cvt_pk_bf16_f32 v{q}, v{c}, v{c+1}')
        a(f'v_cvt_pk_bf16_f32 v{q+1}, v{c+2}, v{c+3}')
        if jt & 1:
            q0 = RES + 4 * (jt >> 1)
            a(f'v_permlane16_swap_b32 v{q0}, v{q0+2}')
            a(f'v_permlane16_swap_b32 v{q0+1}, v{q0+3}')
            a(f'buffer_store_dwordx4 {vr(q0,4)}, v7, {srd(SRD_WS)}, s{sT2} offen offset:{1024*(jt>>1)} sc1')
    a('s_waitcnt vmcnt(0)')
    a(f's_lshl_b32 s{sT}, s{sD}, 2')
    a(f's_add_u32 s{sT}, s{sT}, {WS_FA}')
    a(f'v_mov_b32 v8, s{S_TAG}')
    a('s_mov_b64 exec, 1')
    a(f'buffer_store_dword v8, off, {srd(SRD_WS)}, s{sT} sc1')
    stamp(a, 6, 52)
    stamp_dump(a, 7, 52)
    a('s_endpgm')

def side_gate(a, opt):
    sK, sT = 82, 86
    vL = 1
    a(f's_sub_u32 s{sK}, s2, 256')
    a(f's_mul_i32 s{sT}, s{sK}, {8*1280}')
    a(f'v_lshrrev_b32 v2, 3, v{vL}')
    a(f'v_and_b32 v3, 7, v{vL}')
    a('v_lshlrev_b32 v4, 4, v3')
    a('v_mul_u32_u24 v5, 1280, v2')
    a('v_add_u32 v5, v5, v4')
    a(f'v_add_u32 v5, s{sT}, v5')
    XR, WR = 16, 56
    for it in range(10):
        a(f'global_load_dwordx4 {vr(XR+4*it,4)}, v5, {sp(P_U)} offset:{128*it}')
        a(f'global_load_dwordx4 {vr(WR+4*it,4)}, v4, {sp(P_GW)} offset:{128*it}')
    a('v_mov_b32 v6, 0')
    a('v_mov_b32 v7, 0')
    for it in range(10):
        a(f's_waitcnt vmcnt({18-2*it})')
        for k in range(4):
            x, w = XR + 4 * it + k, WR + 4 * it + k
            a(f'v_lshlrev_b32 v8, 16, v{x}')
            a(f'v_and_b32 v9, 0xffff0000, v{x}')
            a(f'v_lshlrev_b32 v10, 16, v{w}')
            a(f'v_and_b32 v11, 0xffff0000, v{w}')
            a('v_pk_mul_f32 v[8:9], v[8:9], v[10:11]')
            a('v_cvt_pk_bf16_f32 v12, v8, v9')
            a('v_lshlrev_b32 v8, 16, v12')
            a('v_and_b32 v9, 0xffff0000, v12')
            a('v_pk_add_f32 v[6:7], v[6:7], v[8:9]')
    a('v_add_f32 v6, v6, v7')
    a('v_add_f32_dpp v6, v6, v6 quad_perm:[1,0,3,2] row_mask:0xf bank_mask:0xf')
    a('v_add_f32_dpp v6, v6, v6 quad_perm:[2,3,0,1] row_mask:0xf bank_mask:0xf')
    a('v_add_f32_dpp v6, v6, v6 row_half_mirror row_mask:0xf bank_mask:0xf')
    a('v_cvt_pk_bf16_f32 v6, v6, v6')
    a('v_lshlrev_b32 v6, 16, v6')
    a(f'v_mul_f32 v6, {hx(-LOG2E)}, v6')
    a('v_exp_f32 v6, v6')
    a('v_add_f32 v6, 1.0, v6')
    a('v_rcp_f32 v6, v6')
    a('v_cvt_pk_bf16_f32 v6, v6, v6')
    a('v_lshlrev_b32 v8, 16, v6')
    a('v_sub_f32 v9, 1.0, v8')
    a('v_cvt_pk_bf16_f32 v9, v9, v9')
    a('v_lshlrev_b32 v9, 16, v9')
    a(f's_lshl_b32 s{sT}, s{sK}, 6')
    a(f's_add_u32 s{sT}, s{sT}, {WS_G}')
    a('v_lshlrev_b32 v10, 3, v2')
    a('v_cmp_eq_u32 vcc, 0, v3')
    a('s_and_saveexec_b64 s[84:85], vcc')
    a(f'buffer_store_dwordx2 v[8:9], v10, {srd(SRD_WS)}, s{sT} offen sc1')
    a('s_waitcnt vmcnt(0)')
    a(f's_lshl_b32 s{sT}, s{sK}, 2')
    a(f's_add_u32 s{sT}, s{sT}, {WS_FG}')
    a(f'v_mov_b32 v8, s{S_TAG}')
    a('s_mov_b64 exec, 1')
    a(f'buffer_store_dword v8, off, {srd(SRD_WS)}, s{sT} sc1')
    pf = opt.get('pf', 128)
    if pf:
        a('s_mov_b64 exec, -1')
        mk_srd(a, SRD_WSP, P_WSP, 2048 * 2048 * 2)
        mk_srd(a, SRD_WOUT, P_WOUT, 768 * 640 * 2)
        a('s_and_b32 s86, s2, 7')
        a('s_lshr_b32 s87, s86, 1')
        a('s_lshl_b32 s87, s87, 21')
        a(f's_lshr_b32 s88, s{sK}, 3')
        a('s_lshl_b32 s89, s88, 16')
        a('s_add_u32 s87, s87, s89')
        sh = {128: 7, 64: 6, 16: 4}[pf]
        a(f'v_lshlrev_b32 v2, {sh}, v{vL}')
        n = 65536 // (64 * pf)
        for i in range(n):
            if pf == 16:
                a(f'buffer_load_dwordx4 v[{8+4*(i%16)}:{11+4*(i%16)}], v2, {srd(SRD_WSP)}, s87 offen')
            else:
                a(f'buffer_load_dword v{8+i}, v2, {srd(SRD_WSP)}, s87 offen')
            a(f's_add_u32 s87, s87, {64*pf}')
        a('s_mul_i32 s89, s88, 30720')
        a('s_and_b32 s86, s86, 1')
        a('s_mul_i32 s86, s86, 640')
        a('s_add_u32 s89, s89, s86')
        for i in range(4):
            a(f'v_add_u32 v3, {64*i}, v{vL}')
            a('v_min_u32 v3, 239, v3')
            a('v_mul_u32_u24 v4, 52429, v3')
            a('v_lshrrev_b32 v4, 19, v4')
            a('v_mul_u32_u24 v5, 10, v4')
            a('v_sub_u32 v3, v3, v5')
            a('v_mul_u32_u24 v4, 1280, v4')
            a('v_lshl_add_u32 v3, v3, 6, v4')
            a(f'buffer_load_dword v{100+i}, v3, {srd(SRD_WOUT)}, s89 offen')
    a('s_endpgm')

def side_keeper(a, opt):
    vL = 1
    a(f'v_lshlrev_b32 v2, 2, v{vL}')
    loads = [(2, WS_FZ + 256 * i) for i in range(4)] + [(2, WS_FA + 256 * i) for i in range(10)] + [(2, WS_FG + 256 * i) for i in range(4)]
    a(f's_mov_b32 s86, {WS_FZ}')
    a(f's_mov_b32 s87, {WS_FA}')
    a(f's_mov_b32 s88, {WS_FG}')
    L = [(2, f's86 offen offset:{256*i} ;') for i in range(4)]
    a(f's_mov_b32 s89, {SPIN_MAX}')
    a.lab('L_keep_spin')
    n = 0
    for base, cnt in (((86, 4), (87, 10), (88, 4)) if not opt.get('no_side') else ((86, 4),)):
        for i in range(cnt):
            a(f'buffer_load_dword v{8+n}, v2, {srd(SRD_WS)}, s{base} offen offset:{256*i} sc1'); n += 1
    a('s_waitcnt vmcnt(0)')
    a(f'v_cmp_ne_u32 vcc, s{S_TAG}, v8')
    for i in range(1, n):
        a(f'v_cmp_ne_u32 s[84:85], s{S_TAG}, v{8+i}')
        a('s_or_b64 vcc, vcc, s[84:85]')
    a('s_cbranch_vccz L_keep_done')
    a('s_sleep 16')
    a('s_sub_u32 s89, s89, 1')
    a('s_cmp_lg_u32 s89, 0')
    a('s_cbranch_scc1 L_keep_spin')
    a.lab('L_keep_done')
    a(f'v_mov_b32 v8, s{S_TAG}')
    a('s_mov_b64 exec, 1')
    a(f'buffer_store_dword v8, off, {srd(SRD_WS)}, 0 sc1')
    a('s_endpgm')

def build(opt):
    PROF['on'] = bool(opt.get('prof'))
    a = Asm()
    a.raw(f'; @launch kernel={KNAME} grid=(512,1,1) block=(256,1,1) lds=81920' if not opt.get('plain') else '; @launch grid=(512,1,1) block=(256,1,1) lds=81920')
    a.raw('.amdgcn_target "amdgcn-amd-amdhsa--gfx950"')
    a.raw('.text')
    a.raw(f'.globl {KNAME}')
    a.raw('.p2align 8')
    a.raw(f'.type {KNAME},@function')
    a.lab(KNAME)
    a('s_cmp_ge_u32 s2, 512')
    a('s_cbranch_scc1 L_end')
    a('s_load_dwordx16 s[16:31], s[0:1], 0')
    a('s_load_dwordx16 s[32:47], s[0:1], 64')
    a('s_load_dwordx4 s[48:51], s[0:1], 128')
    a('v_and_b32 v1, 63, v0')
    a('v_lshrrev_b32 v2, 6, v0')
    a(f'v_readfirstlane_b32 s{S_W}, v2')
    a('s_waitcnt lgkmcnt(0)')
    mk_srd(a, SRD_WS, P_WS, WS_SIZE)
    a(f'buffer_load_dword v15, off, {srd(SRD_WS)}, 0 sc1')
    a('s_cmp_lt_u32 s2, 256')
    a('s_cbranch_scc1 L_gemm')
    if opt.get('no_side') == 1:
        a('s_cmp_eq_u32 s2, 511')
        a('s_cbranch_scc0 L_end')
        a(f's_cmp_eq_u32 s{S_W}, 2')
        a('s_cbranch_scc0 L_end')
    a('s_waitcnt vmcnt(0)')
    a(f'v_readfirstlane_b32 s{S_TAG}, v15')
    a(f's_add_u32 s{S_TAG}, s{S_TAG}, 1')
    a(f's_cmp_eq_u32 s{S_W}, 3')
    a('s_cbranch_scc1 L_gate')
    if opt.get('no_side') == 2:
        a('s_cmp_eq_u32 s2, 511')
        a('s_cbranch_scc0 L_end')
        a(f's_cmp_eq_u32 s{S_W}, 2')
        a('s_cbranch_scc0 L_end')
    a(f's_lshl_b32 s82, s{S_W}, 8')
    a('s_add_u32 s82, s82, s2')
    a('s_sub_u32 s82, s82, 256')
    a('s_cmp_lt_u32 s82, 640')
    a('s_cbranch_scc1 L_chan')
    a('s_cmp_eq_u32 s2, 511')
    a('s_cbranch_scc1 L_keep')
    a.lab('L_end')
    a('s_endpgm')
    a.lab('L_chan')
    side_channel(a, opt)
    a.lab('L_gate')
    side_gate(a, opt)
    a.lab('L_keep')
    side_keeper(a, opt)
    a.lab('L_gemm')
    if opt.get('no_gemm'):
        a('s_endpgm')
    else:
        import gen_gemm
        gen_gemm.gemm_role(a, opt)
    a.raw('.section .rodata,"a"')
    a.raw('.p2align 6')
    a.raw(f'.amdhsa_kernel {KNAME}')
    a.raw('  .amdhsa_next_free_vgpr 256')
    a.raw('  .amdhsa_next_free_sgpr 96')
    a.raw('  .amdhsa_accum_offset 256')
    a.raw('  .amdhsa_group_segment_fixed_size 0')
    a.raw('  .amdhsa_kernarg_size 144')
    a.raw('  .amdhsa_user_sgpr_count 2')
    a.raw('  .amdhsa_user_sgpr_kernarg_segment_ptr 1')
    a.raw('  .amdhsa_system_sgpr_workgroup_id_x 1')
    a.raw('.end_amdhsa_kernel')
    return a.text()

if __name__ == '__main__':
    opt = {}
    for x in sys.argv[2:]:
        k, _, v = x.partition('=')
        opt[k] = int(v) if v else 1
    import gen as _self
    open(sys.argv[1], 'w').write(_self.build(opt))
```

```python
import numpy as np
from gen import *
import gen as _g
_stamp0 = stamp
PST = {'start': None}
def stamp(a, i, base=18):
    if PST['start'] is not None and i not in (0, 15): return
    _stamp0(a, i, base)
def sstamp(a, stage):
    if PST['start'] is None: return
    k = stage - PST['start']
    if 0 <= k < 14: _stamp0(a, 1 + k)

SLOT = 20480
BOFF = 8192
S_RB, S_CB, S_WI, S_WJ = 82, 83, 86, 87
S_KC, S_AO, S_BO, S_T, S_T2, S_CNT = 88, 89, 90, 91, 92, 93
S_ABASE, S_BBASE = 94, 95
S_M_A, S_M_B, S_M_C = 3, 4, 5
S_K1 = 6
S_ONE = 8
S_KC0 = 10
S_FZA = 11
S_TMP2 = 12
S_WOB = 76
S_M1, S_M2, S_M3 = 78, 72 - 72 + 78, 78
V_L = 1
V_AD = 2
V_BD = 4
V_AR = 7
V_BR = 11
V_UR, V_US = 13, 14
V_T = 16
ACC2, ACC1, WF, XF = 24, 48, 72, 96
t0, t1, t2, t3 = V_T, V_T + 1, V_T + 2, V_T + 3
ST, MM, RR, ZQ, BSP, K0V = 96, 112, 120, 128, 140, 142
LN = 3 * SLOT

class VM:
    def __init__(self): self.ops = []
    def issue(self, tag, n=1): self.ops += [tag] * n
    def n_after(self, tag):
        idx = max(i for i, t in enumerate(self.ops) if t == tag)
        return len(self.ops) - 1 - idx

def gelu2(a, cs, k0v, after):
    T = [V_T, V_T + 4]
    def both(f):
        for c, t in zip(cs, T): a(f(c, t))
    both(lambda c, t: f'v_cvt_pk_bf16_f32 v{t+2}, v{c}, v{c+1}')
    both(lambda c, t: f'v_lshlrev_b32 v{t}, 16, v{t+2}')
    both(lambda c, t: f'v_and_b32 v{t+1}, 0xffff0000, v{t+2}')
    both(lambda c, t: f'v_pk_mul_f32 {vr(t+2,2)}, {vr(t,2)}, {vr(t,2)}')
    both(lambda c, t: f'v_pk_fma_f32 {vr(t+2,2)}, {vr(t+2,2)}, {sp(S_K1)}, {vr(k0v,2)}')
    both(lambda c, t: f'v_pk_mul_f32 {vr(t+2,2)}, {vr(t+2,2)}, {vr(t,2)}')
    both(lambda c, t: f'v_exp_f32 v{t+2}, v{t+2}')
    both(lambda c, t: f'v_exp_f32 v{t+3}, v{t+3}')
    both(lambda c, t: f'v_pk_add_f32 {vr(t+2,2)}, {vr(t+2,2)}, {sp(S_ONE)}')
    both(lambda c, t: f'v_rcp_f32 v{t+2}, v{t+2}')
    both(lambda c, t: f'v_rcp_f32 v{t+3}, v{t+3}')
    both(lambda c, t: f'v_pk_mul_f32 {vr(t+2,2)}, {vr(t+2,2)}, {vr(t,2)}')
    steps = [after(c, t) for c, t in zip(cs, T)]
    for x, y in zip(*steps):
        a(x); a(y)

def flag_store(a, sreg, vtmp):
    a(f'v_mov_b32 v{vtmp}, s{S_TAG}')
    a(f's_mov_b64 {sp(S_TMP2)}, exec')
    a('s_mov_b64 exec, 1')
    a(f'buffer_store_dword v{vtmp}, off, {srd(SRD_WS)}, s{sreg} sc1')
    a(f's_mov_b64 exec, {sp(S_TMP2)}')

def gemm_role(a, opt):
    vm = VM()
    PST['start'] = opt.get('pst')
    stop = opt.get('stop', 99)
    LNS = opt.get('lns', 16)
    LDS_ = opt.get('lds', 15)
    FZS = opt.get('fzs', 1)
    c0 = np.sqrt(2 / np.pi)
    k0 = -2 * c0 * LOG2E; k1 = k0 * 0.044715
    a(f's_setprio {opt.get("prio", 2)}')
    stamp(a, 0)
    a(f's_and_b32 s{S_T}, s2, 7')
    a(f's_lshr_b32 s{S_T2}, s2, 3')
    a(f's_lshr_b32 s{S_RB}, s{S_T}, 1')
    a(f's_lshl_b32 s{S_RB}, s{S_RB}, 3')
    a(f's_lshr_b32 s{S_CNT}, s{S_T2}, 2')
    a(f's_add_u32 s{S_RB}, s{S_RB}, s{S_CNT}')
    a(f's_and_b32 s{S_CB}, s{S_T}, 1')
    a(f's_lshl_b32 s{S_CB}, s{S_CB}, 2')
    a(f's_and_b32 s{S_CNT}, s{S_T2}, 3')
    a(f's_add_u32 s{S_CB}, s{S_CB}, s{S_CNT}')
    a(f's_lshr_b32 s{S_WI}, s{S_W}, 1')
    a(f's_and_b32 s{S_WJ}, s{S_W}, 1')
    mk_srd(a, SRD_X, P_U, 2048 * 640 * 2)
    mk_srd(a, SRD_WIN, P_WIN, 640 * 1536 * 2)
    a(f's_mul_i32 s{S_KC}, s{S_CB}, 3')
    a(f's_add_u32 s{S_KC}, s{S_KC}, s{S_RB}')
    a(f's_mul_i32 s{S_T}, s{S_KC}, 205')
    a(f's_lshr_b32 s{S_T}, s{S_T}, 11')
    a(f's_mul_i32 s{S_T}, s{S_T}, 10')
    a(f's_sub_u32 s{S_KC}, s{S_KC}, s{S_T}')
    a(f's_mov_b32 s{S_KC0}, s{S_KC}')
    a(f's_lshl_b32 s{S_M_A}, s{S_W}, 11')
    a(f's_mul_i32 s{S_M_B}, s{S_W}, 3072')
    a(f's_add_u32 s{S_M_B}, s{S_M_B}, {BOFF}')
    a(f's_mul_i32 s{S_ABASE}, s{S_RB}, {64*1280}')
    a(f's_mul_i32 s{S_BBASE}, s{S_CB}, 192')
    a(f's_add_u32 s{S_BBASE}, s{S_BBASE}, 1536')
    def row_dma_offsets(pitch):
        a(f'v_lshrrev_b32 v{t0}, 3, v{V_L}')
        a(f'v_and_b32 v{t1}, 7, v{V_L}')
        a(f'v_bfe_u32 v{t2}, v{V_L}, 4, 1')
        a(f'v_xor_b32 v{t1}, v{t1}, v{t2}')
        a(f's_lshl_b32 s{S_T}, s{S_W}, 4')
        a(f'v_add_u32 v{t0}, s{S_T}, v{t0}')
        a(f'v_mul_u32_u24 v{t0}, {pitch}, v{t0}')
        a(f's_lshl_b32 s{S_T}, s{S_WJ}, 2')
        a(f'v_xor_b32 v{t1}, s{S_T}, v{t1}')
        a(f'v_lshl_add_u32 v{V_AD}, v{t1}, 4, v{t0}')
        a(f'v_xor_b32 v{t1}, 2, v{t1}')
        a(f'v_lshl_add_u32 v{V_AD+1}, v{t1}, 4, v{t0}')
        a(f'v_add_u32 v{V_AD+1}, {8*pitch-1024}, v{V_AD+1}')
    row_dma_offsets(1280)
    def run_units(units, track=True):
        for (lines, tag) in units:
            for l in lines: a(l)
            if track: vm.issue(tag, 1)
    def dma_p1_A(stage, kc=None):
        slot = (stage & 3) * SLOT
        return [([f's_lshl_b32 s{S_AO}, s{S_KC}, 7', f's_add_u32 s{S_AO}, s{S_AO}, s{S_ABASE}', f's_add_u32 m0, s{S_M_A}, {slot}',
                  f'buffer_load_dwordx4 v{V_AD}, {srd(SRD_X)}, s{S_AO} offen lds'], ('A', stage)),
                ([f'buffer_load_dwordx4 v{V_AD+1}, {srd(SRD_X)}, s{S_AO} offen offset:1024 lds'], ('A', stage))]
    def dma_p1_B(stage):
        slot = (stage & 3) * SLOT
        U = []
        pre = [f's_mul_i32 s{S_BO}, s{S_KC}, {64*3072}', f's_add_u32 s{S_BO}, s{S_BO}, s{S_BBASE}', f's_add_u32 m0, s{S_M_B}, {slot}', f's_add_u32 s{S_KC}, s{S_KC}, 1']
        for j in range(3):
            L = (pre if j == 0 else []) + [f'buffer_load_dwordx4 v{V_BD+j}, {srd(SRD_WIN)}, s{S_BO} offen offset:{1024*j} lds']
            if j == 2:
                L += [f's_cmp_eq_u32 s{S_KC}, 10', f's_cselect_b32 s{S_KC}, 0, s{S_KC}']
                if stage == 9: L += [f's_sub_u32 s{S_BBASE}, s{S_BBASE}, 1536']
            U.append((L, ('B', stage)))
        return U
    def dma_p1(stage): return (dma_p1_A(stage) if stage < 10 else []) + dma_p1_B(stage)
    vm.issue('epoch')
    run_units(dma_p1_A(0))
    a(f's_mul_i32 s{S_T}, s{S_W}, 192')
    for j in range(3):
        a(f'v_add_u32 v{t0}, s{S_T}, v{V_L}')
        if j: a(f'v_add_u32 v{t0}, {64*j}, v{t0}')
        a(f'v_mul_u32_u24 v{t1}, 43691, v{t0}')
        a(f'v_lshrrev_b32 v{t1}, 19, v{t1}')
        a(f'v_mul_u32_u24 v{t2}, 12, v{t1}')
        a(f'v_sub_u32 v{t0}, v{t0}, v{t2}')
        a(f'v_bfe_u32 v{t2}, v{t1}, 3, 1')
        a(f'v_mad_u32_u24 v{t0}, v{t2}, 6, v{t0}')
        a(f'v_subrev_u32 v{t2}, 12, v{t0}')
        a(f'v_min_u32 v{t0}, v{t0}, v{t2}')
        a(f'v_mul_u32_u24 v{t1}, 3072, v{t1}')
        a(f'v_lshl_add_u32 v{V_BD+j}, v{t0}, 4, v{t1}')
        if j: a(f'v_subrev_u32 v{V_BD+j}, {1024*j}, v{V_BD+j}')
    run_units(dma_p1_B(0))
    for s in range(1, 4): run_units(dma_p1(s))
    mk_srd(a, SRD_WSP, P_WSP, 2048 * 2048 * 2)
    mk_srd(a, SRD_OUT, P_OUT, 2048 * 640 * 2)
    PAT = {5: ([0, 2, 4], [1, 3]), 3: ([1, 4], [2]), 2: ([1], [2]), 0: ([], [])}
    if opt.get('pat') == 1: PAT = {5: ([9, 9, 9], [9, 9]), 3: ([9, 9], [9]), 2: ([9], [9]), 0: ([], [])}
    if opt.get('pat') == 2: PAT = {5: ([9, 9, 9, 9, 9], []), 3: ([9, 9, 9], []), 2: ([9, 9], []), 0: ([], [])}
    if opt.get('pat') == 3: PAT = {5: ([-1, -1, 9], [-1, 9]), 3: ([-1, 9], [9]), 2: ([9], [9]), 0: ([], [])}
    def with_units(mf_lines, pos_units, track=True):
        for (p, u) in pos_units:
            if p < 0: run_units([u], track)
        for i, l in enumerate(mf_lines):
            a(l)
            for (p, u) in pos_units:
                if p == i: run_units([u], track)
        for (p, u) in pos_units:
            if p >= len(mf_lines): run_units([u], track)
    def split_units(U):
        first, second = PAT[len(U)]
        return list(zip(first, U[:len(first)])), list(zip(second, U[len(first):]))
    def lane_mq():
        a(f'v_and_b32 v{t0}, 15, v{V_L}')
        a(f'v_lshrrev_b32 v{t1}, 4, v{V_L}')
    lane_mq()
    a(f'v_lshrrev_b32 v{t2}, 2, v{t0}')
    a(f'v_lshlrev_b32 v{t3}, 3, v{t2}')
    a(f'v_and_b32 v{V_AR}, 3, v{t0}')
    a(f'v_add_u32 v{t3}, v{t3}, v{V_AR}')
    a(f's_lshl_b32 s{S_T}, s{S_WI}, 5')
    a(f'v_add_u32 v{t3}, s{S_T}, v{t3}')
    a(f'v_lshlrev_b32 v{t3}, 7, v{t3}')
    a(f'v_lshlrev_b32 v{t2}, 1, v{t2}')
    a(f'v_bfe_u32 v{V_AR}, v{t0}, 1, 1')
    a(f'v_or_b32 v{t2}, v{t2}, v{V_AR}')
    a(f'v_xor_b32 v{t2}, v{t2}, v{t1}')
    a(f'v_lshl_add_u32 v{V_AR}, v{t2}, 4, v{t3}')
    a(f'v_xor_b32 v{V_AR+1}, 64, v{V_AR}')
    a(f'v_add_u32 v{V_AR+2}, {2*SLOT}, v{V_AR}')
    a(f'v_add_u32 v{V_AR+3}, {2*SLOT}, v{V_AR+1}')
    a(f'v_lshrrev_b32 v{t2}, 2, v{t0}')
    a(f'v_lshl_add_u32 v{t2}, v{t1}, 3, v{t2}')
    a(f'v_mul_u32_u24 v{t2}, 192, v{t2}')
    a(f'v_and_b32 v{t3}, 1, v{t1}')
    a(f'v_xor_b32 v{t3}, s{S_WJ}, v{t3}')
    a(f'v_mul_u32_u24 v{t3}, 96, v{t3}')
    a(f'v_add_u32 v{t2}, v{t2}, v{t3}')
    a(f'v_and_b32 v{t3}, 3, v{V_L}')
    a(f'v_lshl_add_u32 v{V_BR}, v{t3}, 3, v{t2}')
    a(f'v_add_u32 v{V_BR}, {BOFF}, v{V_BR}')
    a(f'v_add_u32 v{V_BR+1}, {2*SLOT}, v{V_BR}')
    a(f'v_lshrrev_b32 v{t2}, 2, v{t0}')
    a(f'v_lshl_add_u32 v{t3}, v{t1}, 3, v{t2}')
    a(f'v_lshlrev_b32 v{V_UR}, 7, v{t3}')
    a(f'v_lshrrev_b32 v{t2}, 1, v{t2}')
    a(f'v_lshl_or_b32 v{t2}, v{t1}, 1, v{t2}')
    a(f'v_bfe_u32 v{t3}, v{V_L}, 1, 1')
    a(f's_lshl_b32 s{S_T}, s{S_W}, 1')
    a(f'v_add_u32 v{t3}, s{S_T}, v{t3}')
    a(f'v_xor_b32 v{t3}, v{t3}, v{t2}')
    a(f'v_lshl_add_u32 v{V_UR}, v{t3}, 4, v{V_UR}')
    a(f'v_and_b32 v{t3}, 1, v{V_L}')
    a(f'v_lshl_add_u32 v{V_UR}, v{t3}, 3, v{V_UR}')
    a(f's_lshl_b32 s{S_T}, s{S_W}, 4')
    a(f'v_add_u32 v{V_US}, s{S_T}, v{t0}')
    a(f'v_lshlrev_b32 v{V_US}, 12, v{V_US}')
    a(f'v_lshl_add_u32 v{V_US}, v{t1}, 4, v{V_US}')
    for i in range(24):
        a(f'v_mov_b32 v{ACC2+i}, 0')
    a(f's_mov_b32 s{S_K1}, {hx(k1)}')
    a(f's_mov_b32 s{S_K1+1}, {hx(k1)}')
    a(f's_mov_b32 s{S_ONE}, 1.0')
    a(f's_mov_b32 s{S_ONE+1}, 1.0')
    a(f's_waitcnt vmcnt({vm.n_after("epoch")})')
    a(f'v_readfirstlane_b32 s{S_TAG}, v15')
    a(f's_add_u32 s{S_TAG}, s{S_TAG}, 1')

    def ar(stage, ks): return V_AR + ks + (2 if (stage & 2) else 0)
    def so(stage): return (stage & 1) * SLOT
    def br(stage): return V_BR + (1 if (stage & 2) else 0)
    def reads_p1(stage, ks):
        n = 0
        if stage < 10:
            for tau in range(2):
                a(f'ds_read_b128 {vr(XF+16*stage+8*ks+4*tau,4)}, v{ar(stage,ks)} offset:{so(stage)+512*tau}'); n += 1
        for phi in range(3):
            for half in range(2):
                a(f'ds_read_b64_tr_b16 {vr(WF+12*ks+4*phi+2*half,2)}, v{br(stage)} offset:{so(stage)+6144*ks+768*half+32*phi}'); n += 1
        return n
    def mfma_p1(stage, ks):
        i = stage % 10
        L = []
        for tau in range(2):
            for phi in range(3):
                x = vr(XF + 16 * i + 8 * ks + 4 * tau, 4); w = vr(WF + 12 * ks + 4 * phi, 4)
                if stage < 10:
                    c = vr(ACC2 + 4 * (3 * tau + phi), 4)
                    L.append(f'v_mfma_f32_16x16x32_bf16 {c}, {x}, {w}, {c}')
                else:
                    c = vr(ACC1 + 4 * (2 * phi + tau), 4)
                    L.append(f'v_mfma_f32_16x16x32_bf16 {c}, {w}, {x}, {c}')
        return L
    def dma_p2_A(stage):
        slot = (stage & 3) * SLOT
        return [([f's_lshl_b32 s{S_AO}, s{S_KC}, 7', f's_add_u32 s{S_AO}, s{S_AO}, s{S_ABASE}', f's_add_u32 m0, s{S_M_A}, {slot}', f's_add_u32 s{S_KC}, s{S_KC}, 1',
                  f'buffer_load_dwordx4 v{V_AD}, {srd(SRD_WSP)}, s{S_AO} offen lds'], ('A', stage)),
                ([f'buffer_load_dwordx4 v{V_AD+1}, {srd(SRD_WSP)}, s{S_AO} offen offset:1024 lds', f's_and_b32 s{S_KC}, s{S_KC}, 31'], ('A', stage))]
    S_KZ = S_KC0
    def dma_p2_B(stage):
        slot = (stage & 3) * SLOT
        U = []
        for j in range(3):
            L = [f's_mul_i32 s{S_BO}, s{S_KZ}, 12288', f's_add_u32 s{S_BO}, s{S_BO}, s{S_BBASE}', f's_add_u32 m0, s{S_M_B}, {slot}', f's_add_u32 s{S_KZ}, s{S_KZ}, 1'] if j == 0 else []
            L += [f'buffer_load_dwordx4 v{V_BD}, {srd(SRD_WS)}, s{S_BO} offen offset:{1024*j} sc1 lds']
            if j == 2: L += [f's_and_b32 s{S_KZ}, s{S_KZ}, 31']
            U.append((L, ('B', stage)))
        return U
    def rot2(dst):
        a(f's_lshl_b32 s{dst}, s{S_CB}, 3')
        a(f's_add_u32 s{dst}, s{dst}, s{S_RB}')
        a(f's_and_b32 s{dst}, s{dst}, 31')
    def ut_chunk(extra):
        if extra:
            a(f's_add_u32 s{S_T}, s{S_KC0}, {extra}')
            a(f's_sub_u32 s{S_T2}, s{S_T}, 10')
            a(f's_min_u32 s{S_T}, s{S_T}, s{S_T2}')
        else:
            a(f's_mov_b32 s{S_T}, s{S_KC0}')
    U2 = 4
    UT = V_T
    pend = []
    a(f's_waitcnt vmcnt({vm.n_after(("B", 0))})')
    a('s_barrier')
    stamp(a, 1)
    reads_p1(0, 0)
    for s in range(20):
        if s == 10:
            stamp(a, 2)
            e1_z2(a, opt, vm, k0)
            stamp(a, 3)
        if s == LDS_:
            e2_loads(a, vm)
        if s == LNS:
            stamp(a, 4)
            e2_layernorm(a, opt, vm)
            stamp(a, 5)
        n1 = reads_p1(s, 1)
        ut = s in (0, U2)
        if ut:
            if s == U2:
                a(f's_cmp_ge_u32 s{S_CB}, 2')
                a('s_cbranch_scc1 L_ut2_skip')
            for h2 in range(2):
                for half in range(2):
                    a(f'ds_read_b64_tr_b16 {vr(UT+4*h2+2*half,2)}, v{V_UR} offset:{(s&3)*SLOT+4096*h2+512*half}')
            if s == U2:
                a.lab('L_ut2_skip')
        a(f's_waitcnt lgkmcnt({n1+4 if s == 0 else n1})')
        with_units(mfma_p1(s, 0), pend); pend = []
        if s < 19:
            n = vm.n_after(('B', s + 1))
            if s == LNS + FZS: n = min(n, vm.n_after('z'))
            a(f's_waitcnt vmcnt({n}) lgkmcnt(0)')
        else:
            a('s_waitcnt lgkmcnt(0)')
        a('s_barrier')
        sstamp(a, s)
        if ut:
            if s == U2:
                a(f's_cmp_ge_u32 s{S_CB}, 2')
                a('s_cbranch_scc1 L_us2_skip')
            ut_chunk(s)
            a(f's_lshl_b32 s{S_T}, s{S_T}, 18')
            a(f's_lshl_b32 s{S_T2}, s{S_RB}, 7')
            a(f's_add_u32 s{S_T}, s{S_T}, s{S_T2}')
            a(f's_add_u32 s{S_T}, s{S_T}, {WS_UT}')
            for h2 in range(2):
                a(f'buffer_store_dwordx4 {vr(UT+4*h2,4)}, v{V_US}, {srd(SRD_WS)}, s{S_T} offen offset:{64*h2} sc1')
            if s == U2:
                a.lab('L_us2_skip')
            else:
                vm.issue('ut0', 2)
        if s in (3, U2 + 3):
            a(f's_cmp_lg_u32 s{S_W}, 0')
            a(f's_cbranch_scc1 L_fu{s}_skip')
            if s == U2 + 3:
                a(f's_cmp_ge_u32 s{S_CB}, 2')
                a(f's_cbranch_scc1 L_fu{s}_skip')
            ut_chunk(s - 3)
            a(f's_lshl_b32 s{S_T}, s{S_T}, 5')
            a(f's_add_u32 s{S_T}, s{S_T}, s{S_RB}')
            a(f's_lshl_b32 s{S_T}, s{S_T}, 2')
            a(f's_add_u32 s{S_T}, s{S_T}, {WS_FU}')
            flag_store(a, S_T, V_T)
            a.lab(f'L_fu{s}_skip')
        if s == LNS + FZS:
            a(f's_cmp_lg_u32 s{S_W}, 0')
            a('s_cbranch_scc1 L_fz_skip')
            flag_store(a, S_FZA, V_T)
            a.lab('L_fz_skip')
            stamp(a, 6)
        if s + 4 < 20:
            U = dma_p1(s + 4)
        else:
            if s == 16:
                row_dma_offsets(4096)
                a(f's_lshl_b32 s{S_ABASE}, s{S_RB}, 18')
                rot2(S_KC)
            U = dma_p2_A(s + 4)
        now, pend = split_units(U)
        if s + 1 in (10, LNS, 20):
            now = now + [(99, u) for (_, u) in pend]; pend = []
        if s < 19:
            reads_p1(s + 1, 0)
        with_units(mfma_p1(s, 1), now)
    stamp(a, 7)
    a(f's_lshl_b32 s{S_T}, s{S_CB}, 7')
    a(f's_add_u32 s{S_T}, s{S_T}, {WS_FZ}')
    V_PA = V_UR
    a(f'v_lshlrev_b32 v{V_PA}, 2, v{V_L}')
    a(f'v_add_u32 v{V_PA}, s{S_T}, v{V_PA}')
    if opt.get('no_side') == 1:
        a(f'v_subrev_u32 v{t0}, 128, v{V_PA}')
    else:
        a(f'v_subrev_u32 v{t0}, 32, v{V_L}')
        a(f'v_min_u32 v{t0}, 23, v{t0}')
        a(f's_mul_i32 s{S_T}, s{S_CB}, 24')
        a(f'v_add_u32 v{t0}, s{S_T}, v{t0}')
        a(f'v_lshlrev_b32 v{t0}, 2, v{t0}')
        a(f'v_add_u32 v{t0}, {WS_FW}, v{t0}')
    a(f'v_cmp_gt_u32 vcc, 32, v{V_L}')
    a(f'v_cndmask_b32 v{V_PA}, v{t0}, v{V_PA}, vcc')
    a(f'v_mov_b32 v{K0V}, {hx(k0)}')
    a(f'v_mov_b32 v{K0V+1}, {hx(k0)}')
    rot2(S_KZ)
    a(f's_mul_i32 s{S_BBASE}, s{S_CB}, {32*12288}')
    a(f's_add_u32 s{S_BBASE}, s{S_BBASE}, {WS_Z}')
    a(f's_mul_i32 s{S_T}, s{S_W}, 3072')
    a(f'v_lshlrev_b32 v{V_BD}, 4, v{V_L}')
    a(f'v_add_u32 v{V_BD}, s{S_T}, v{V_BD}')
    def z1_after(c, t):
        return [f'v_cvt_pk_bf16_f32 v{t}, v{t+2}, v{t+3}', f'v_lshlrev_b32 v{c}, 16, v{t}', f'v_and_b32 v{c+1}, 0xffff0000, v{t}']
    z1p = [[ACC1 + 4 * i, ACC1 + 4 * i + 2] for i in range(6)]
    NG1 = opt.get('ng1', 2)
    for cs in z1p[:NG1]: gelu2(a, cs, K0V, z1_after)
    poll1(a, 'L_pz', [V_PA], 96, S_CNT)
    stamp(a, 8)
    vm.ops = []
    for s in range(20, 24): run_units(dma_p2_B(s))
    NG2 = opt.get('ng2', 5)
    for cs in z1p[NG1:NG2]: gelu2(a, cs, K0V, z1_after)
    a(f's_cmp_lg_u32 s{S_W}, 3')
    a('s_cbranch_scc1 L_fs_skip')
    a(f's_lshl_b32 s{S_T}, s2, 2')
    a(f's_add_u32 s{S_T}, s{S_T}, {WS_FS}')
    flag_store(a, S_T, 98)
    a.lab('L_fs_skip')
    for cs in z1p[NG2:]: gelu2(a, cs, K0V, z1_after)
    ZF = 72
    G2 = ACC2
    lane_mq()
    a(f'v_mul_u32_u24 v{t3}, 96, v{t1}')
    a(f'v_add_u32 v{t2}, v{t0}, v{t3}')
    a(f's_mul_i32 s{S_T}, s{S_WJ}, 48')
    a(f'v_add_u32 v{t2}, s{S_T}, v{t2}')
    a(f'v_lshlrev_b32 v{V_BR}, 4, v{t2}')
    a(f'v_add_u32 v{V_BR}, {BOFF}, v{V_BR}')
    a(f'v_add_u32 v{V_BR+1}, {2*SLOT}, v{V_BR}')
    for i in range(24):
        a(f'v_mov_b32 v{G2+i}, 0')
    def reads_p2(stage, ks):
        f = ZF + 20 * ks
        for phi in range(3):
            a(f'ds_read_b128 {vr(f+4*phi,4)}, v{br(stage)} offset:{so(stage)+6144*ks+256*phi}')
        for tau in range(2):
            a(f'ds_read_b128 {vr(f+12+4*tau,4)}, v{ar(stage,ks)} offset:{so(stage)+512*tau}')
    def mfma_p2(ks):
        f = ZF + 20 * ks
        L = []
        for tau in range(2):
            for phi in range(3):
                c = vr(G2 + 4 * (2 * phi + tau), 4)
                L.append(f'v_mfma_f32_16x16x32_bf16 {c}, {vr(f+4*phi,4)}, {vr(f+12+4*tau,4)}, {c}')
        return L
    V_PD, V_OD3 = 112, 113
    def dma_p3_B(stage):
        slot = (stage & 3) * SLOT
        j = stage - 52
        return [([f's_add_u32 m0, s{S_M_A}, {slot+BOFF}', f's_add_u32 s{S_BO}, s{S_WOB}, {j*10240}', f'buffer_load_dwordx4 v{V_PD}, {srd(SRD_WS)}, s{S_BO} offen sc1 lds'], ('B', stage)),
                ([f'buffer_load_dwordx4 v{V_PD}, {srd(SRD_WS)}, s{S_BO} offen offset:1024 sc1 lds'], ('B', stage)),
                ([f's_add_u32 m0, s{S_M_C}, {slot}', f'buffer_load_dwordx4 v{V_OD3}, {srd(SRD_WS)}, s{S_BO} offen sc1 lds'], ('B', stage))]
    def dma_p3_A(stage):
        slot = (stage & 3) * SLOT
        j = stage - 52
        return [([f's_add_u32 m0, s{S_M_A}, {slot}', f's_add_u32 s{S_AO}, s{S_ABASE}, {j*8192}', f'buffer_load_dwordx4 v{V_PD}, {srd(SRD_WS)}, s{S_AO} offen sc1 lds'], ('A', stage)),
                ([f'buffer_load_dwordx4 v{V_PD}, {srd(SRD_WS)}, s{S_AO} offen offset:1024 sc1 lds'], ('A', stage))]
    a(f's_lshl_b32 s{S_M_C}, s{S_WJ}, 10')
    a(f's_add_u32 s{S_M_C}, s{S_M_C}, {BOFF+8192}')
    a(f's_lshl_b32 s{S_T}, s{S_W}, 11')
    a(f'v_lshlrev_b32 v{V_PD}, 4, v{V_L}')
    a(f's_lshl_b32 s{S_T2}, s{S_WJ}, 10')
    a(f's_add_u32 s{S_T2}, s{S_T2}, 8192')
    a(f'v_add_u32 v{V_OD3}, s{S_T2}, v{V_PD}')
    a(f'v_add_u32 v{V_PD}, s{S_T}, v{V_PD}')
    a(f's_mul_i32 s{S_WOB}, s{S_CB}, {24*5120}')
    a(f's_add_u32 s{S_WOB}, s{S_WOB}, {WS_WO}')

    pend2 = [[]]
    def stage_p2(s, mode):
        tr = mode != 'loop'
        reads_p2(s, 1)
        a('s_waitcnt lgkmcnt(5)')
        with_units(mfma_p2(0), pend2[0], tr); pend2[0] = []
        if mode == 'loop':
            a('s_waitcnt vmcnt(10) lgkmcnt(0)')
        elif s < 51:
            a(f's_waitcnt vmcnt({vm.n_after(("B", s+1))}) lgkmcnt(0)')
        else:
            a('s_waitcnt lgkmcnt(0)')
        a('s_barrier')
        U = dma_p3_B(s + 4) if mode == 'last' else dma_p2_A(s + 4) + dma_p2_B(s + 4)
        now, pend2[0] = split_units(U)
        if s == 51:
            now = now + [(99, u) for (_, u) in pend2[0]]; pend2[0] = []
        if s < 51:
            reads_p2(s + 1, 0)
        with_units(mfma_p2(1), now, tr)
    a(f's_waitcnt vmcnt({vm.n_after(("B", 20))})')
    a('s_barrier')
    stamp(a, 9)
    reads_p2(20, 0)
    for s in range(20, 24): stage_p2(s, 'first')
    a(f's_mov_b32 s{S_CNT}, 6')
    a.lab('L_p2_loop')
    for s in range(24, 28): stage_p2(s, 'loop')
    a(f's_sub_u32 s{S_CNT}, s{S_CNT}, 1')
    a(f's_cmp_lg_u32 s{S_CNT}, 0')
    a('s_cbranch_scc1 L_p2_loop')
    vm.ops = []
    U51 = dma_p2_A(51) + dma_p2_B(51)
    for s in range(49, 51): vm.issue(('A', s), 2); vm.issue(('B', s), 3)
    for (_, u) in split_units(U51)[0]: vm.issue(u[1], 1)
    pend2[0] = split_units(U51)[1]
    for s in range(48, 52): stage_p2(s, 'last')
    stamp(a, 10)
    PQ = 72
    lane_mq()
    a(f'v_lshrrev_b32 v{t2}, 1, v{t1}')
    a(f'v_lshlrev_b32 v{t2}, 6, v{t2}')
    a(f'v_lshrrev_b32 v{t3}, 2, v{t0}')
    a(f'v_lshl_add_u32 v{t2}, v{t3}, 3, v{t2}')
    a(f'v_and_b32 v{t3}, 1, v{t1}')
    a(f'v_lshl_add_u32 v{t2}, v{t3}, 2, v{t2}')
    a(f'v_and_b32 v{t3}, 3, v{t0}')
    a(f'v_add_u32 v{t2}, v{t2}, v{t3}')
    a(f's_mul_i32 s{S_T}, s{S_WJ}, 384')
    a(f's_lshl_b32 s{S_AO}, s{S_WI}, 5')
    a(f's_add_u32 s{S_T}, s{S_T}, s{S_AO}')
    a(f'v_add_u32 v{t2}, s{S_T}, v{t2}')
    a(f'v_lshlrev_b32 v{V_US}, 4, v{t2}')
    a(f's_mul_i32 s{S_ABASE}, s{S_RB}, 98304')
    a(f's_add_u32 s{S_ABASE}, s{S_ABASE}, {WS_P}')
    a(f's_mul_i32 s{S_T}, s{S_CB}, 12288')
    a(f's_add_u32 s{S_T}, s{S_T}, s{S_ABASE}')
    a(f's_add_u32 s{S_T2}, s{S_T}, 4096')
    for phi in range(3):
        for tau in range(2):
            cs = [G2 + 4 * (2 * phi + tau) + 2 * hh for hh in range(2)]
            T = [V_T, V_T + 4]
            def both(f):
                for hh in range(2): a(f(cs[hh], T[hh], hh))
            both(lambda c, t, hh: f'v_cvt_pk_bf16_f32 v{t+2}, v{c}, v{c+1}')
            both(lambda c, t, hh: f'v_lshlrev_b32 v{t}, 16, v{t+2}')
            both(lambda c, t, hh: f'v_and_b32 v{t+1}, 0xffff0000, v{t+2}')
            both(lambda c, t, hh: f'v_pk_add_f32 {vr(t,2)}, {vr(t,2)}, {vr(BSP,2)} op_sel:[0,{tau}] op_sel_hi:[1,{tau}]')
            both(lambda c, t, hh: f'v_cvt_pk_bf16_f32 v{t+2}, v{t}, v{t+1}')
            both(lambda c, t, hh: f'v_lshlrev_b32 v{t}, 16, v{t+2}')
            both(lambda c, t, hh: f'v_and_b32 v{t+1}, 0xffff0000, v{t+2}')
            both(lambda c, t, hh: f'v_pk_mul_f32 {vr(t,2)}, {vr(t,2)}, {vr(c-G2+ACC1,2)}')
            both(lambda c, t, hh: f'v_cvt_pk_bf16_f32 v{PQ+4*phi+2*tau+hh}, v{t}, v{t+1}')
        q = PQ + 4 * phi
        a(f'v_permlane16_swap_b32 v{q}, v{q+2}')
        a(f'v_permlane16_swap_b32 v{q+1}, v{q+3}')
        a(f'buffer_store_dwordx4 {vr(q,4)}, v{V_US}, {srd(SRD_WS)}, s{S_T if phi < 2 else S_T2} offen offset:{2048*phi if phi < 2 else 0} sc1')
    a.fence(2)
    lane_mq()
    V_PP = 114
    a(f'v_and_b32 v{V_PP}, 7, v{V_L}')
    a(f'v_lshlrev_b32 v{V_PP}, 2, v{V_PP}')
    a(f's_lshl_b32 s{S_T}, s{S_RB}, 5')
    a(f's_add_u32 s{S_T}, s{S_T}, {WS_FP}')
    a(f'v_add_u32 v{V_PP}, s{S_T}, v{V_PP}')
    a(f's_lshl_b32 s{S_T2}, s{S_CB}, 2')
    a(f's_add_u32 s{S_T}, s{S_T}, s{S_T2}')
    V_PL0, V_PL1 = 115, 116
    a(f'v_add_u32 v{V_PL0}, {WS_FG-WS_FP}, v{V_PP}')
    a(f's_mul_i32 s{S_T2}, s{S_CB}, 320')
    a(f's_add_u32 s{S_T2}, s{S_T2}, {WS_FA}')
    a(f'v_lshlrev_b32 v{V_PL1}, 2, v{V_L}')
    a(f'v_add_u32 v{V_PL1}, s{S_T2}, v{V_PL1}')
    a(f'v_lshlrev_b32 v{t3}, 2, v{t0}')
    a(f'v_add_u32 v{t3}, s{S_T2}, v{t3}')
    a(f'v_add_u32 v{t3}, 256, v{t3}')
    a(f'v_bfe_u32 v{t2}, v{V_L}, 4, 1')
    a(f'v_cmp_eq_u32 vcc, 1, v{t2}')
    a(f'v_cndmask_b32 v{V_PL0}, v{V_PL0}, v{t3}, vcc')
    AT, GT, V_AW, V_O1, V_O2, V_ATR, V_AG = 120, 132, 134, 136, 137, 138, 140
    a(f's_lshl_b32 s{S_AO}, s{S_W}, 7')
    a(f'v_add_u32 v{t2}, s{S_AO}, v{V_L}')
    a(f's_lshl_b32 s{S_AO}, s{S_WJ}, 6')
    a(f's_add_u32 s{S_AO}, s{S_AO}, 512')
    a(f'v_add_u32 v{t3}, s{S_AO}, v{V_L}')
    a(f'v_lshlrev_b32 v{V_AW}, 4, v{t2}')
    a(f'v_lshlrev_b32 v{V_AW+1}, 4, v{t3}')
    for k, tt in enumerate((t2, t3)):
        a(f'v_lshrrev_b32 v{V_AG+k}, 3, v{tt}')
        a(f'v_and_b32 v{tt}, 7, v{tt}')
        a(f'v_lshlrev_b32 v{V_AG+k}, 12, v{V_AG+k}')
        a(f'v_lshl_add_u32 v{V_AG+k}, v{tt}, 4, v{V_AG+k}')
    a(f's_lshl_b32 s{S_AO}, s{S_RB}, 6')
    a(f's_lshl_b32 s{S_BO}, s{S_W}, 4')
    a(f's_add_u32 s{S_AO}, s{S_AO}, s{S_BO}')
    a(f'v_add_u32 v{t2}, s{S_AO}, v{t0}')
    a(f'v_lshlrev_b32 v{V_AG+2}, 3, v{t2}')
    a(f'v_add_u32 v{V_AG+2}, {WS_G}, v{V_AG+2}')
    a(f'v_mul_u32_u24 v{t2}, 1280, v{t2}')
    a(f's_mul_i32 s{S_AO}, s{S_CB}, 160')
    a(f'v_add_u32 v{t2}, s{S_AO}, v{t2}')
    a(f'v_and_b32 v{t3}, 1, v{t1}')
    a(f'v_lshl_add_u32 v{V_O1}, v{t3}, 5, v{t2}')
    a(f'v_lshrrev_b32 v{t3}, 1, v{t1}')
    a(f'v_lshl_add_u32 v{V_O1}, v{t3}, 4, v{V_O1}')
    a(f'v_lshl_add_u32 v{V_O2}, v{t1}, 3, v{t2}')
    a(f'v_add_u32 v{V_O2}, 128, v{V_O2}')
    a(f'v_lshl_add_u32 v{t2}, v{t1}, 6, v{t0}')
    a(f'v_add_u32 v{t2}, s{S_BO}, v{t2}')
    a(f'v_lshlrev_b32 v{V_AR}, 4, v{t2}')
    a(f'v_add_u32 v{V_AR+2}, {2*SLOT}, v{V_AR}')
    a(f'v_lshlrev_b32 v{V_BR}, 4, v{V_L}')
    a(f'v_add_u32 v{V_BR}, {BOFF}, v{V_BR}')
    a(f'v_add_u32 v{V_BR+1}, {2*SLOT}, v{V_BR}')
    a(f'v_lshrrev_b32 v{t2}, 2, v{t0}')
    a(f'v_lshl_add_u32 v{t2}, v{t1}, 2, v{t2}')
    a(f'v_lshlrev_b32 v{t2}, 7, v{t2}')
    a(f'v_and_b32 v{t3}, 3, v{V_L}')
    a(f'v_lshl_add_u32 v{t2}, v{t3}, 3, v{t2}')
    a(f's_lshl_b32 s{S_AO}, s{S_W}, 5')
    a(f'v_add_u32 v{V_ATR}, s{S_AO}, v{t2}')
    O3, F3 = 24, 48
    for i in range(20):
        a(f'v_mov_b32 v{O3+i}, 0')
    a('s_waitcnt vmcnt(0)')
    a('s_barrier')
    a(f's_cmp_lg_u32 s{S_W}, 0')
    a('s_cbranch_scc1 L_fp_skip')
    flag_store(a, S_T, V_T)
    a.lab('L_fp_skip')
    stamp(a, 11)
    poll1(a, 'L_pp', [V_PP], 96, S_CNT)
    stamp(a, 12)
    vm.ops = []
    for s in range(52, 56): run_units(dma_p3_A(s))
    def reads_p3(stage, ks):
        f = F3 + 24 * ks
        hi = 1 if (stage & 2) else 0
        a(f'ds_read_b128 {vr(f,4)}, v{V_AR+2*hi} offset:{so(stage)+4096*ks}')
        for dl in range(5):
            a(f'ds_read_b128 {vr(f+4+4*dl,4)}, v{V_BR+hi} offset:{so(stage)+5120*ks+1024*dl}')
    def mfma_p3(ks):
        f = F3 + 24 * ks
        return [f'v_mfma_f32_16x16x32_bf16 {vr(O3+4*dl,4)}, {vr(f+4+4*dl,4)}, {vr(f,4)}, {vr(O3+4*dl,4)}' for dl in range(5)]
    a(f's_waitcnt vmcnt({vm.n_after(("A", 52))})')
    a('s_barrier')
    stamp(a, 13)
    reads_p3(52, 0)
    pend = []
    for s in range(52, 64):
        if s == 58 and not opt.get('no_side'):
            a(f'buffer_load_dword v96, v{V_PL0}, {srd(SRD_WS)}, 0 offen sc1')
            a(f'buffer_load_dword v97, v{V_PL1}, {srd(SRD_WS)}, 0 offen sc1')
            vm.issue('pl', 2)
        if s == 60:
            if not opt.get('no_side'):
                a(f's_waitcnt vmcnt({vm.n_after("pl")})')
                a(f'v_cmp_ne_u32 vcc, s{S_TAG}, v96')
                a(f'v_cmp_ne_u32 s[84:85], s{S_TAG}, v97')
                a('s_or_b64 vcc, vcc, s[84:85]')
                a('s_cbranch_vccz L_pa_done')
                poll(a, 'L_pa', [(V_PL0, '0'), (V_PL1, '0')], 96, S_CNT)
            a(f's_mul_i32 s{S_T}, s{S_CB}, {80*4096}')
            a(f's_lshl_b32 s{S_AO}, s{S_RB}, 7')
            a(f's_add_u32 s{S_T}, s{S_T}, s{S_AO}')
            a(f's_add_u32 s{S_T}, s{S_T}, {WS_AT}')
            a(f's_add_u32 s{S_AO}, s{S_T}, {8*4096}')
            a(f'buffer_load_dwordx4 {vr(AT,4)}, v{V_AG}, {srd(SRD_WS)}, s{S_T} offen sc1')
            a(f'buffer_load_dwordx4 {vr(AT+4,4)}, v{V_AG}, {srd(SRD_WS)}, s{S_AO} offen sc1')
            a(f'buffer_load_dwordx4 {vr(AT+8,4)}, v{V_AG+1}, {srd(SRD_WS)}, s{S_T} offen sc1')
            a(f'buffer_load_dwordx2 {vr(GT,2)}, v{V_AG+2}, {srd(SRD_WS)}, 0 offen sc1')
            vm.issue('at', 4)
        reads_p3(s, 1)
        a('s_waitcnt lgkmcnt(6)')
        with_units(mfma_p3(0), pend); pend = []
        if s < 63:
            n = vm.n_after(('A', s + 1))
            if s == 62: n = 0
            a(f's_waitcnt vmcnt({n}) lgkmcnt(0)')
        else:
            a('s_waitcnt lgkmcnt(0)')
        if s == 62:
            a(f'ds_write_b128 v{V_AW}, {vr(AT,4)}')
            a(f'ds_write_b128 v{V_AW}, {vr(AT+4,4)} offset:1024')
            a(f'ds_write_b128 v{V_AW+1}, {vr(AT+8,4)}')
        a('s_barrier')
        sstamp(a, s)
        now, pend = split_units(dma_p3_B(s + 4) + dma_p3_A(s + 4) if s + 4 < 64 else [])
        if s == 59:
            now = now + [(99, u) for (_, u) in pend]; pend = []
        if s < 63:
            reads_p3(s + 1, 0)
        with_units(mfma_p3(1), now)
    stamp(a, 14)
    AV = 96
    for dl in range(5):
        a(f'ds_read_b64_tr_b16 {vr(AV+2*dl,2)}, v{V_ATR} offset:{2048*dl}')
    a('s_waitcnt lgkmcnt(0)')
    RQ = 108
    for dl in range(5):
        T = [V_T, V_T + 4]
        def both(f):
            for hh in range(2): a(f(O3 + 4 * dl + 2 * hh, T[hh], AV + 2 * dl + hh, hh))
        both(lambda c, t, av, hh: f'v_cvt_pk_bf16_f32 v{t+2}, v{c}, v{c+1}')
        both(lambda c, t, av, hh: f'v_lshlrev_b32 v{t}, 16, v{av}')
        both(lambda c, t, av, hh: f'v_and_b32 v{t+1}, 0xffff0000, v{av}')
        both(lambda c, t, av, hh: f'v_lshlrev_b32 v{c}, 16, v{t+2}')
        both(lambda c, t, av, hh: f'v_and_b32 v{c+1}, 0xffff0000, v{t+2}')
        both(lambda c, t, av, hh: f'v_pk_mul_f32 {vr(t,2)}, {vr(t,2)}, {vr(GT,2)} op_sel:[0,0] op_sel_hi:[1,0]')
        both(lambda c, t, av, hh: f'v_pk_mul_f32 {vr(c,2)}, {vr(c,2)}, {vr(GT,2)} op_sel:[0,1] op_sel_hi:[1,1]')
        both(lambda c, t, av, hh: f'v_cvt_pk_bf16_f32 v{t+2}, v{t}, v{t+1}')
        both(lambda c, t, av, hh: f'v_cvt_pk_bf16_f32 v{t+3}, v{c}, v{c+1}')
        both(lambda c, t, av, hh: f'v_lshlrev_b32 v{t}, 16, v{t+2}')
        both(lambda c, t, av, hh: f'v_and_b32 v{t+1}, 0xffff0000, v{t+2}')
        both(lambda c, t, av, hh: f'v_lshlrev_b32 v{c}, 16, v{t+3}')
        both(lambda c, t, av, hh: f'v_and_b32 v{c+1}, 0xffff0000, v{t+3}')
        both(lambda c, t, av, hh: f'v_pk_add_f32 {vr(t,2)}, {vr(t,2)}, {vr(c,2)}')
        both(lambda c, t, av, hh: f'v_cvt_pk_bf16_f32 v{RQ+2*dl+hh}, v{t}, v{t+1}')
        if dl in (1, 3):
            q = RQ + 2 * (dl - 1)
            a(f'v_permlane16_swap_b32 v{q}, v{q+2}')
            a(f'v_permlane16_swap_b32 v{q+1}, v{q+3}')
            a(f'buffer_store_dwordx4 {vr(q,4)}, v{V_O1}, {srd(SRD_OUT)}, 0 offen offset:{32*(dl-1)}')
        if dl == 4:
            a(f'buffer_store_dwordx2 {vr(RQ+8,2)}, v{V_O2}, {srd(SRD_OUT)}, 0 offen')
    if _g.PROF['on']:
        a('s_waitcnt vmcnt(0)')
    stamp(a, 15)
    stamp_dump(a, 16)
    a('s_endpgm')

def poll1(a, name, vaddrs, vtmp, scount):
    a(f's_cmp_lg_u32 s{S_W}, 0')
    a(f's_cbranch_scc1 {name}_out')
    va = vaddrs[0]
    a(f's_mov_b32 s{scount}, {SPIN_MAX}')
    a(f'buffer_load_dword v{vtmp}, v{va}, {srd(SRD_WS)}, 0 offen sc1')
    a.lab(f'{name}_spin')
    a(f'buffer_load_dword v{vtmp+1}, v{va}, {srd(SRD_WS)}, 0 offen sc1')
    a('s_waitcnt vmcnt(1)')
    a(f'v_cmp_ne_u32 vcc, s{S_TAG}, v{vtmp}')
    a(f's_cbranch_vccz {name}_done')
    a(f'buffer_load_dword v{vtmp}, v{va}, {srd(SRD_WS)}, 0 offen sc1')
    a('s_waitcnt vmcnt(1)')
    a(f'v_cmp_ne_u32 vcc, s{S_TAG}, v{vtmp+1}')
    a(f's_cbranch_vccz {name}_done')
    a(f's_sub_u32 s{scount}, s{scount}, 1')
    a(f's_cmp_lg_u32 s{scount}, 0')
    a(f's_cbranch_scc1 {name}_spin')
    a.lab(f'{name}_done')
    a.lab(f'{name}_out')
    a('s_barrier')

def e1_z2(a, opt, vm, k0):
    SS, QQ = ACC1, ACC1 + 8
    K0 = ACC1 + 16
    pf = opt.get('gpf', 0)
    if pf:
        a(f's_lshl_b32 s{S_T}, s{S_RB}, 18')
        a(f's_and_b32 s{S_T2}, s{S_CB}, 3')
        a(f's_lshl_b32 s{S_T2}, s{S_T2}, 16')
        a(f's_add_u32 s{S_T}, s{S_T}, s{S_T2}')
        a(f's_lshl_b32 s{S_T2}, s{S_W}, 14')
        a(f's_add_u32 s{S_T}, s{S_T}, s{S_T2}')
        a(f'v_lshlrev_b32 v{t0}, {7 if pf == 128 else 6}, v{V_L}')
        for i in range(16384 // (64 * pf)):
            a(f'buffer_load_dword v{ACC1+20+i}, v{t0}, {srd(SRD_WSP)}, s{S_T} offen')
            a(f's_add_u32 s{S_T}, s{S_T}, {64*pf}')
            vm.issue('pf', 1)
    a(f'v_mov_b32 v{K0}, {hx(k0)}')
    a(f'v_mov_b32 v{K0+1}, {hx(k0)}')
    first = {}
    for phi in range(3):
        for tau in range(2):
            cs = [ACC2 + 4 * (3 * tau + phi) + 2 * hh for hh in range(2)]
            def after(c, t):
                r = 4 * tau + (c - cs[0])
                L = [f'v_cvt_pk_bf16_f32 v{c}, v{t+2}, v{t+3}']
                if phi == 0:
                    L += [f'v_lshlrev_b32 v{SS+r}, 16, v{c}', f'v_and_b32 v{SS+r+1}, 0xffff0000, v{c}',
                          f'v_pk_mul_f32 {vr(QQ+r,2)}, {vr(SS+r,2)}, {vr(SS+r,2)}']
                else:
                    L += [f'v_lshlrev_b32 v{t}, 16, v{c}', f'v_and_b32 v{t+1}, 0xffff0000, v{c}',
                          f'v_pk_add_f32 {vr(SS+r,2)}, {vr(SS+r,2)}, {vr(t,2)}', f'v_pk_fma_f32 {vr(QQ+r,2)}, {vr(t,2)}, {vr(t,2)}, {vr(QQ+r,2)}']
                return L
            gelu2(a, cs, K0, after)
    for j in range(8):
        a(f'v_add_f32_dpp v{SS+j}, v{SS+j}, v{SS+j} row_ror:8 row_mask:0xf bank_mask:0x3')
    for j in range(8):
        a(f'v_add_f32_dpp v{SS+j}, v{QQ+j}, v{QQ+j} row_ror:8 row_mask:0xf bank_mask:0xc')
    for j in range(4):
        a(f'v_add_f32_dpp v{SS+j}, v{SS+j}, v{SS+j} row_half_mirror row_mask:0xf bank_mask:0x5')
    for j in range(4):
        a(f'v_add_f32_dpp v{SS+j}, v{SS+j+4}, v{SS+j+4} row_half_mirror row_mask:0xf bank_mask:0xa')
    a(f'v_and_b32 v{t0}, 15, v{V_L}')
    a(f'v_lshrrev_b32 v{t1}, 4, v{V_L}')
    a(f'v_and_b32 v{t2}, 3, v{V_L}')
    for qp in ('[3,2,1,0]', '[1,0,3,2]'):
        for j in range(4):
            a(f'v_add_f32_dpp v{SS+j}, v{SS+j}, v{SS+j} quad_perm:{qp} row_mask:0xf bank_mask:0xf')
    GQ = V_T + 4
    a(f'v_cmp_eq_u32 vcc, 1, v{t2}')
    a(f'v_cmp_eq_u32 s[84:85], 2, v{t2}')
    a(f'v_cmp_eq_u32 {sp(S_TMP2)}, 3, v{t2}')
    a(f'v_lshl_add_u32 v{t2}, v{t1}, 3, v{t0}')
    a(f'v_cndmask_b32 v{GQ}, v{SS}, v{SS+1}, vcc')
    a(f'v_cndmask_b32 v{GQ}, v{GQ}, v{SS+2}, s[84:85]')
    a(f'v_cndmask_b32 v{GQ}, v{GQ}, v{SS+3}, {sp(S_TMP2)}')
    a(f'v_mov_b32 v{GQ+2}, s{S_TAG}')
    a(f'v_mov_b32 v{GQ+3}, s{S_TAG}')
    a(f'v_mov_b32_dpp v{GQ+1}, v{GQ} row_ror:8 row_mask:0xf bank_mask:0xf')
    a(f's_lshl_b32 s{S_T}, s{S_WI}, 5')
    a(f'v_add_u32 v{t2}, s{S_T}, v{t2}')
    a(f'v_lshlrev_b32 v{t2}, 8, v{t2}')
    a(f's_lshl_b32 s{S_T}, s{S_RB}, 14')
    a(f's_lshl_b32 s{S_T2}, s{S_CB}, 5')
    a(f's_add_u32 s{S_T}, s{S_T}, s{S_T2}')
    a(f's_lshl_b32 s{S_T2}, s{S_WJ}, 4')
    a(f's_add_u32 s{S_T}, s{S_T}, s{S_T2}')
    a(f's_add_u32 s{S_T}, s{S_T}, {WS_ST}')
    a(f'v_cmp_gt_u32 vcc, 8, v{t0}')
    a(f's_and_saveexec_b64 {sp(S_TMP2)}, vcc')
    a(f'buffer_store_dwordx4 {vr(GQ,4)}, v{t2}, {srd(SRD_WS)}, s{S_T} offen sc1')
    a(f's_mov_b64 exec, {sp(S_TMP2)}')
    vm.issue('st', 1)
    if pf:
        a(f's_waitcnt vmcnt({vm.n_after("pf")})')
    for i in range(24):
        a(f'v_mov_b32 v{ACC1+i}, 0')

V_SA = 13
def e2_loads(a, vm):
    a(f'v_lshrrev_b32 v{t0}, 2, v{V_L}')
    a(f's_lshl_b32 s{S_T}, s{S_W}, 4')
    a(f'v_add_u32 v{t0}, s{S_T}, v{t0}')
    a(f'v_and_b32 v{t1}, 3, v{V_L}')
    a(f'v_lshlrev_b32 v{V_SA}, 8, v{t0}')
    a(f'v_lshl_add_u32 v{V_SA}, v{t1}, 6, v{V_SA}')
    a(f's_lshl_b32 s{S_T}, s{S_RB}, 14')
    a(f's_add_u32 s{S_T}, s{S_T}, {WS_ST}')
    a(f'v_add_u32 v{V_SA}, s{S_T}, v{V_SA}')
    for k in range(4):
        a(f'buffer_load_dwordx4 {vr(ST+4*k,4)}, v{V_SA}, {srd(SRD_WS)}, 0 offen offset:{16*k} sc1')
    vm.issue('stl', 4)
    a(f'v_bfe_u32 v{t3}, v{V_L}, 2, 2')
    a(f'v_lshl_add_u32 v{t3}, v{t3}, 3, v{t1}')
    a(f's_lshl_b32 s{S_T2}, s{S_RB}, 6')
    a(f's_lshl_b32 s{S_T}, s{S_WI}, 5')
    a(f's_add_u32 s{S_T2}, s{S_T2}, s{S_T}')
    a(f'v_add_u32 v{t3}, s{S_T2}, v{t3}')
    a(f'v_lshlrev_b32 v{t3}, 1, v{t3}')
    a(f'global_load_ushort v{BSP}, v{t3}, {sp(P_BSP)}')
    a(f'global_load_ushort v{BSP+1}, v{t3}, {sp(P_BSP)} offset:8')
    vm.issue('bsp', 2)

def e2_layernorm(a, opt, vm):
    a('; ---- LayerNorm hand-off')
    a(f's_mov_b32 s{S_CNT}, {SPIN_MAX}')
    a(f's_waitcnt vmcnt({vm.n_after("bsp")})')
    a.lab('L_ln_check')
    a(f'v_and_b32 v{t0}, v{ST+2}, v{ST+3}')
    a(f'v_or_b32 v{t1}, v{ST+2}, v{ST+3}')
    for k in range(1, 4):
        a(f'v_and_b32 v{t0}, v{t0}, v{ST+4*k+2}')
        a(f'v_or3_b32 v{t1}, v{t1}, v{ST+4*k+2}, v{ST+4*k+3}')
        a(f'v_and_b32 v{t0}, v{t0}, v{ST+4*k+3}')
    a(f'v_cmp_ne_u32 vcc, s{S_TAG}, v{t0}')
    a(f'v_cmp_ne_u32 s[84:85], s{S_TAG}, v{t1}')
    a('s_or_b64 vcc, vcc, s[84:85]')
    a('s_cbranch_vccz L_ln_done')
    for k in range(4):
        a(f'buffer_load_dwordx4 {vr(ST+4*k,4)}, v{V_SA}, {srd(SRD_WS)}, 0 offen offset:{16*k} sc1')
    a('s_waitcnt vmcnt(0)')
    a(f's_sub_u32 s{S_CNT}, s{S_CNT}, 1')
    a(f's_cmp_lg_u32 s{S_CNT}, 0')
    a('s_cbranch_scc1 L_ln_check')
    a.lab('L_ln_done')
    a(f'v_pk_add_f32 {vr(ST,2)}, {vr(ST,2)}, {vr(ST+4,2)}')
    a(f'v_pk_add_f32 {vr(ST+8,2)}, {vr(ST+8,2)}, {vr(ST+12,2)}')
    a(f'v_lshrrev_b32 v{t0}, 2, v{V_L}')
    a(f's_lshl_b32 s{S_T}, s{S_W}, 4')
    a(f'v_pk_add_f32 {vr(ST,2)}, {vr(ST,2)}, {vr(ST+8,2)}')
    a(f'v_add_u32 v{t0}, s{S_T}, v{t0}')
    a(f'v_lshlrev_b32 v{t0}, 2, v{t0}')
    for qp in ('[1,0,3,2]', '[2,3,0,1]'):
        a(f'v_add_f32_dpp v{ST}, v{ST}, v{ST} quad_perm:{qp} row_mask:0xf bank_mask:0xf')
        a(f'v_add_f32_dpp v{ST+1}, v{ST+1}, v{ST+1} quad_perm:{qp} row_mask:0xf bank_mask:0xf')
    a(f'v_mul_f32 v{ST}, {hx(1/768)}, v{ST}')
    a(f'v_mul_f32 v{ST+1}, {hx(1/768)}, v{ST+1}')
    a(f'v_fma_f32 v{ST+1}, -v{ST}, v{ST}, v{ST+1}')
    a(f'v_max_f32 v{ST+1}, 0, v{ST+1}')
    a(f'v_cvt_pk_bf16_f32 v{ST+2}, v{ST}, v{ST+1}')
    a(f'v_lshlrev_b32 v{ST}, 16, v{ST+2}')
    a(f'v_and_b32 v{ST+1}, 0xffff0000, v{ST+2}')
    a(f'ds_write_b32 v{t0}, v{ST} offset:{LN}')
    a(f'v_add_f32 v{ST+1}, {hx(1e-5)}, v{ST+1}')
    a(f'v_cvt_pk_bf16_f32 v{ST+1}, v{ST+1}, v{ST+1}')
    a(f'v_and_b32 v{ST+1}, 0xffff0000, v{ST+1}')
    a(f'v_sqrt_f32 v{ST+1}, v{ST+1}')
    a(f'v_lshrrev_b32 v{t1}, 4, v{V_L}')
    a(f'v_cvt_pk_bf16_f32 v{ST+1}, v{ST+1}, v{ST+1}')
    a(f'v_and_b32 v{ST+1}, 0xffff0000, v{ST+1}')
    a(f'v_rcp_f32 v{ST+1}, v{ST+1}')
    a(f's_lshl_b32 s{S_T}, s{S_WI}, 7')
    a(f'v_lshlrev_b32 v{t2}, 5, v{t1}')
    a(f'ds_write_b32 v{t0}, v{ST+1} offset:{LN+256}')
    a(f'v_add_u32 v{t2}, s{S_T}, v{t2}')
    a(f'v_lshlrev_b32 v{BSP}, 16, v{BSP}')
    a(f'v_lshlrev_b32 v{BSP+1}, 16, v{BSP+1}')
    a('s_waitcnt lgkmcnt(0)')
    a('s_barrier')
    a(f'ds_read_b128 {vr(MM,4)}, v{t2} offset:{LN}')
    a(f'ds_read_b128 {vr(MM+4,4)}, v{t2} offset:{LN+16}')
    a(f'ds_read_b128 {vr(RR,4)}, v{t2} offset:{LN+256}')
    a(f'ds_read_b128 {vr(RR+4,4)}, v{t2} offset:{LN+272}')
    a(f'v_and_b32 v{t0}, 15, v{V_L}')
    a(f'v_mul_u32_u24 v{t1}, 96, v{t1}')
    a(f'v_add_u32 v{t0}, v{t0}, v{t1}')
    a(f's_mul_i32 s{S_T}, s{S_WI}, 384')
    a(f's_mul_i32 s{S_T2}, s{S_WJ}, 48')
    a(f's_add_u32 s{S_T}, s{S_T}, s{S_T2}')
    a(f'v_add_u32 v{t0}, s{S_T}, v{t0}')
    a(f'v_lshlrev_b32 v{V_US}, 4, v{t0}')
    a(f's_lshl_b32 s{S_T}, s{S_CB}, 5')
    a(f's_add_u32 s{S_T}, s{S_T}, s{S_RB}')
    a(f's_lshl_b32 s{S_FZA}, s{S_T}, 2')
    a(f's_add_u32 s{S_FZA}, s{S_FZA}, {WS_FZ}')
    a(f's_mul_i32 s{S_T}, s{S_T}, 12288')
    a(f's_add_u32 s{S_T}, s{S_T}, {WS_Z}')
    a('s_waitcnt lgkmcnt(0)')
    for phi in range(3):
        for tau in range(2):
            T = [V_T, V_T + 4]
            def both(f):
                for hh in range(2): a(f(ACC2 + 4 * (3 * tau + phi) + 2 * hh, T[hh], 4 * tau + 2 * hh, hh))
            both(lambda c, t, r, hh: f'v_lshlrev_b32 v{t}, 16, v{c}')
            both(lambda c, t, r, hh: f'v_and_b32 v{t+1}, 0xffff0000, v{c}')
            both(lambda c, t, r, hh: f'v_pk_add_f32 {vr(t,2)}, {vr(t,2)}, {vr(MM+r,2)} neg_lo:[0,1] neg_hi:[0,1]')
            both(lambda c, t, r, hh: f'v_cvt_pk_bf16_f32 v{t+2}, v{t}, v{t+1}')
            both(lambda c, t, r, hh: f'v_lshlrev_b32 v{t}, 16, v{t+2}')
            both(lambda c, t, r, hh: f'v_and_b32 v{t+1}, 0xffff0000, v{t+2}')
            both(lambda c, t, r, hh: f'v_pk_mul_f32 {vr(t,2)}, {vr(t,2)}, {vr(RR+r,2)}')
            both(lambda c, t, r, hh: f'v_cvt_pk_bf16_f32 v{ZQ+4*phi+2*tau+hh}, v{t}, v{t+1}')
        a(f'buffer_store_dwordx4 {vr(ZQ+4*phi,4)}, v{V_US}, {srd(SRD_WS)}, s{S_T} offen offset:{256*phi} sc1')
    vm.issue('z', 3)
```

```python
import sys, struct
import numpy as np
sys.path.insert(0, 'gen')
from asmlib import Asm

KNAME = 'gated_mix__ssm_conv_s4__mixer_gmlp__prompt_kernel'

def f2u(x): return struct.unpack('<I', struct.pack('<f', x))[0]
def hx(x): return '0x%08x' % f2u(x)

WS_EPOCH = 0x0
WS_FZ = 0x1000
WS_FU = 0x2000
WS_FP = 0x3000
WS_FA = 0x4000
WS_FG = 0x5000
WS_FS = 0x7000
WS_FW = 0x6000
WS_WO = 0xD00000
WS_G = 0x8000
WS_ST = 0x10000
WS_Z = 0x100000
WS_P = 0x400000
WS_UT = 0x700000
WS_AT = 0xA00000
WS_DBG = 0x1000000
WS_SIZE = 0x4000000

P_U, P_ARE, P_AIM, P_BRE, P_BIM, P_CRE, P_CIM, P_LDT = 16, 18, 20, 22, 24, 26, 28, 30
P_DSK, P_BX, P_WIN, P_WSP, P_BSP, P_WOUT, P_GW, P_OUT = 32, 34, 36, 38, 40, 42, 44, 46
P_DBG, P_WS = 48, 50
SRD_X, SRD_WIN, SRD_WSP, SRD_WOUT, SRD_WS, SRD_OUT = 52, 56, 60, 64, 68, 72
S_TAG, S_W = 80, 81
def srd(n): return f's[{n}:{n+3}]'
def sp(n): return f's[{n}:{n+1}]'
def vr(a, n): return f'v[{a}:{a+n-1}]'

LOG2E = 1.4426950408889634
SPIN_MAX = 20000

def mk_srd(a, dst, ptr, size):
    a(f's_mov_b32 s{dst}, s{ptr}')
    a(f's_and_b32 s{dst+1}, s{ptr+1}, 0xffff')
    a(f's_mov_b32 s{dst+2}, {size}')
    a(f's_mov_b32 s{dst+3}, 0x00020000')

def cmul(a, dst, x, y, tmp):
    a(f'v_pk_mul_f32 {vr(tmp,2)}, {vr(x,2)}, {vr(y,2)} op_sel:[0,0] op_sel_hi:[0,1]')
    a(f'v_pk_fma_f32 {vr(dst,2)}, {vr(x,2)}, {vr(y,2)}, {vr(tmp,2)} op_sel:[1,1,0] op_sel_hi:[1,0,1] neg_lo:[1,0,0]')

PROF = {'on': False}
WS_PROF = 0x2000000
def stamp(a, i, base=18):
    if not PROF['on']: return
    a('s_memrealtime s[14:15]')
    a('s_waitcnt lgkmcnt(0)')
    a(f's_mov_b32 s{base+i}, s14')
def stamp_dump(a, n, base=18):
    if not PROF['on']: return
    a('s_mov_b64 exec, 1')
    a('s_lshl_b32 s14, s2, 2')
    a(f's_add_u32 s14, s14, s{S_W}')
    a('s_lshl_b32 s14, s14, 6')
    a(f's_add_u32 s14, s14, {WS_PROF}')
    for i in range(n):
        a(f'v_mov_b32 v2, s{base+i}')
        a(f'buffer_store_dword v2, off, {srd(SRD_WS)}, s14 offset:{4*i}')
    a('s_waitcnt vmcnt(0)')

def poll(a, name, loads, vtmp, scount, nlanes_mask=None):
    a(f's_mov_b32 s{scount}, {SPIN_MAX}')
    a.lab(f'{name}_spin')
    for i, (va, so) in enumerate(loads):
        a(f'buffer_load_dword v{vtmp+i}, v{va}, {srd(SRD_WS)}, {so} offen sc1')
    a('s_waitcnt vmcnt(0)')
    a(f'v_cmp_ne_u32 vcc, s{S_TAG}, v{vtmp}')
    for i in range(1, len(loads)):
        a(f'v_cmp_ne_u32 s[84:85], s{S_TAG}, v{vtmp+i}')
        a('s_or_b64 vcc, vcc, s[84:85]')
    a(f's_cbranch_vccz {name}_done')
    a('s_sleep 2')
    a(f's_sub_u32 s{scount}, s{scount}, 1')
    a(f's_cmp_lg_u32 s{scount}, 0')
    a(f's_cbranch_scc1 {name}_spin')
    a.lab(f'{name}_done')

WAVE_LDS = 26624
CP = 4160
UOFF = 16640
def side_channel(a, opt):
    sD, sLB, sT, sT2, sUns = 82, 83, 86, 87, 88
    vL = 1
    if opt.get('sprio'): a(f's_setprio {opt["sprio"]}')
    stamp(a, 0, 52)
    a(f's_mul_i32 s{sLB}, s{S_W}, {WAVE_LDS}')
    a(f's_mul_i32 s{sT}, s{sD}, 384')
    a(f'v_lshlrev_b32 v2, 1, v{vL}')
    a(f'v_add_u32 v2, s{sT}, v2')
    PR = 10
    arrs = [P_ARE, P_AIM, P_BRE, P_BIM, P_CRE, P_CIM]
    a(f's_lshl_b32 s{sT}, s{sD}, 1')
    a(f'v_mov_b32 v3, s{sT}')
    a(f'global_load_ushort v28, v3, {sp(P_LDT)}')
    a(f'global_load_ushort v29, v3, {sp(P_DSK)}')
    for ch in range(3):
        for k, p in enumerate(arrs):
            a(f'global_load_ushort v{PR+6*ch+k}, v2, {sp(p)} offset:{128*ch}')
    vWr, vRd = 104, 4
    a(f'v_and_b32 v6, 7, v{vL}')
    a(f'v_lshlrev_b32 v7, 7, v{vL}')
    a(f'v_add_u32 v7, s{sLB}, v7')
    for p in range(8):
        a(f'v_xor_b32 v8, {p}, v6')
        a(f'v_lshl_add_u32 v{vWr+p}, v8, 4, v7')
    a(f'v_lshrrev_b32 v6, 5, v{vL}')
    a(f'v_bfe_u32 v7, v{vL}, 3, 1')
    a('v_lshl_add_u32 v6, v6, 2, v7')
    a(f'v_bfe_u32 v7, v{vL}, 2, 1')
    a('v_lshlrev_b32 v7, 2, v7')
    a(f'v_bfe_u32 v8, v{vL}, 4, 1')
    a('v_lshl_add_u32 v7, v8, 1, v7')
    a(f'v_bfe_u32 v8, v{vL}, 1, 1')
    a('v_add_u32 v7, v7, v8')
    a(f'v_and_b32 v9, 1, v{vL}')
    a('v_lshlrev_b32 v9, 3, v9')
    a(f'v_add_u32 v9, s{sLB}, v9')
    for i in range(2):
        if i: a('v_add_u32 v6, 2, v6')
        a('v_xor_b32 v8, v7, v6')
        a(f'v_lshl_add_u32 v{vRd+i}, v8, 4, v9')
        a(f'v_lshl_add_u32 v{vRd+i}, v6, 7, v{vRd+i}')
    a(f'v_and_b32 v6, 31, v{vL}')
    a(f'v_lshrrev_b32 v7, 5, v{vL}')
    hi = struct.unpack('<f', struct.pack('<I', f2u(LOG2E) & 0xFFFFF000))[0]
    lo = LOG2E - hi
    a('s_waitcnt vmcnt(18)')
    a('v_lshlrev_b32 v28, 16, v28')
    a('v_lshlrev_b32 v29, 16, v29')
    a(f'v_mul_f32 v8, {hx(hi)}, v28')
    a('v_rndne_f32 v9, v8')
    a('v_sub_f32 v8, v8, v9')
    a(f'v_fmac_f32 v8, {hx(lo)}, v28')
    a('v_exp_f32 v8, v8')
    a('v_cvt_i32_f32 v9, v9')
    a('v_ldexp_f32 v8, v8, v9')
    a('v_cvt_pk_bf16_f32 v8, v8, v8')
    a('v_lshlrev_b32 v28, 16, v8')
    a('s_waitcnt vmcnt(0)')
    for i in range(18):
        a(f'v_lshlrev_b32 v{PR+i}, 16, v{PR+i}')
    WR = 32
    AW = 38
    for ch in range(3):
        b = PR + 6 * ch
        a(f'v_mul_f32 v{b}, v28, v{b}')
        a(f'v_mul_f32 v{b+1}, v28, v{b+1}')
        a(f'v_mul_f32 v{b+2}, v28, v{b+2}')
        a(f'v_mul_f32 v{b+3}, v28, v{b+3}')
        a(f'v_mul_f32 v{AW+2*ch}, {hx(LOG2E)}, v{b}')
        a(f'v_mul_f32 v{AW+2*ch+1}, {hx(1/(2*np.pi))}, v{b+1}')
        cmul(a, WR + 2 * ch, b + 4, b + 2, 8)
    a(f'v_max3_f32 v8, abs(v{WR}), abs(v{WR+1}), abs(v{WR+2})')
    a(f'v_max3_f32 v8, v8, abs(v{WR+3}), abs(v{WR+4})')
    a(f'v_max_f32 v8, v8, abs(v{WR+5})')
    for r in (8, 4, 2, 1):
        a(f'v_max_f32_dpp v8, v8, v8 row_ror:{r} row_mask:0xf bank_mask:0xf')
    a(f'v_readlane_b32 s{sT}, v8, 0')
    a(f'v_readlane_b32 s{sT2}, v8, 16')
    a(f's_max_u32 s{sT}, s{sT}, s{sT2}')
    a(f'v_readlane_b32 s{sT2}, v8, 32')
    a(f's_max_u32 s{sT}, s{sT}, s{sT2}')
    a(f'v_readlane_b32 s{sT2}, v8, 48')
    a(f's_max_u32 s{sT}, s{sT}, s{sT2}')
    a(f's_lshr_b32 s{sT}, s{sT}, 23')
    a(f's_min_u32 s{sT}, s{sT}, 252')
    a(f's_add_u32 s{sUns}, s{sT}, 1')
    a(f's_lshl_b32 s{sUns}, s{sUns}, 23')
    a(f's_sub_u32 s{sT}, 253, s{sT}')
    a(f's_lshl_b32 s{sT}, s{sT}, 23')
    for i in range(6):
        a(f'v_mul_f32 v{WR+i}, s{sT}, v{WR+i}')
    stamp(a, 7, 52)
    D = 72
    for i in range(16):
        a(f'v_mov_b32 v{D+i}, 0')
    E1, E8, GG = 44, 46, 48
    X = 112
    T = 8
    PKX = 168
    PKY = 200
    YA = 50
    FR = 88
    YB = 8192
    sCnt = 89
    a(f's_mov_b32 s{sCnt}, 3')
    a.lab('L_kg_chunk')
    def cexp(dst, P):
        if P == 1:
            a(f'v_exp_f32 v{T}, v{AW}')
            a(f'v_fract_f32 v{T+1}, v{AW+1}')
        else:
            a(f'v_mul_f32 v{T}, {hx(float(P))}, v{AW}')
            a(f'v_mul_f32 v{T+1}, {hx(float(P))}, v{AW+1}')
            a(f'v_exp_f32 v{T}, v{T}')
            a(f'v_fract_f32 v{T+1}, v{T+1}')
        a(f'v_cos_f32 v{dst}, v{T+1}')
        a(f'v_sin_f32 v{dst+1}, v{T+1}')
        a(f'v_pk_mul_f32 {vr(dst,2)}, {vr(dst,2)}, {vr(T,2)} op_sel:[0,0] op_sel_hi:[1,0]')
    cexp(E8, 8); cexp(E1, 1); cexp(GG, 256)
    def row_of(h, reg): return 8 * (reg >> 2) + 4 * h + (reg & 3)
    def flush(pk, base, j):
        if opt.get('kg_nowr'): return
        a(f'ds_write_b128 v{vWr+j}, {vr(pk+4*j,4)} offset:{base}')
        a(f'ds_write_b128 v{vWr+4+j}, {vr(pk+16+4*j,4)} offset:{base}')
    one = 54
    a(f'v_mov_b32 v{one}, 1.0')
    a(f'v_mov_b32 v{one+1}, 0')
    prev = None
    for k in range(32):
        if k == 0: cur = one
        elif k == 1: cur = E8
        else:
            cur = YA + 2 * (k & 1)
            cmul(a, cur, prev, E8, T)
        if k & 1:
            a(f'v_cvt_pk_f16_f32 v{PKY+(k>>1)}, v{prev}, v{cur}')
            a(f'v_cvt_pk_f16_f32 v{PKY+16+(k>>1)}, -v{prev+1}, -v{cur+1}')
            if (k & 7) == 7: flush(PKY, YB, k >> 3)
        prev = cur
    val = {0: WR}
    nxt = [X]
    def mk(P, src, mul):
        val[P] = nxt[0]; nxt[0] += 2
        cmul(a, val[P], val[src], mul, T)
    rows = {}
    for k in range(8): rows[row_of(0, k)] = k
    for k, P in enumerate((256, 256, 258, 260, 260, 260, 262, 264)): rows[row_of(1, k)] = P
    for k, P in enumerate((512, 516, 520, 1024, 1032, 1280, 1288)): rows[row_of(0, 8 + k)] = P
    for k, P in enumerate((768, 772, 776, 1536, 1544, 1792, 1800)): rows[row_of(1, 8 + k)] = P
    rows[27] = 1288; rows[31] = 1800
    done = set()
    def pack_ready():
        for r in range(0, 32, 2):
            if r in done or rows[r] not in val or rows[r + 1] not in val: continue
            done.add(r)
            p, q = val[rows[r]], val[rows[r + 1]]
            a(f'v_cvt_pk_f16_f32 v{PKX+(r>>1)}, v{p}, v{q}')
            a(f'v_cvt_pk_f16_f32 v{PKX+16+(r>>1)}, v{p+1}, v{q+1}')
            j = r >> 3
            if all((8 * j + e) in done for e in (0, 2, 4, 6)): flush(PKX, 0, j)
    order = [(k, k - 1, E1) for k in range(1, 9)] + [(256 + k, k, GG) for k in (0, 2, 4, 6, 8)]
    for b in (512, 768): order += [(b + k, b - 256 + k, GG) for k in (0, 4, 8)]
    for b in (1024, 1280, 1536, 1792): order += [(b + k, b - 256 + k, GG) for k in (0, 8)]
    for (P, src, mul) in order:
        mk(P, src, mul); pack_ready()
    assert len(done) == 16
    def rd(ks):
        f = FR + 8 * (ks & 1)
        for i in range(2):
            a(f'ds_read_b64_tr_b16 {vr(f+2*i,2)}, v{vRd+i} offset:{1024*ks}')
        for i in range(2):
            a(f'ds_read_b64_tr_b16 {vr(f+4+2*i,2)}, v{vRd+i} offset:{YB+1024*ks}')
    rd(0); rd(1)
    for i in range(4):
        a(f'v_mov_b32 v{WR+i}, v{WR+2+i}')
    for i in range(4):
        a(f'v_mov_b32 v{AW+i}, v{AW+2+i}')
    for ks in range(8):
        f = FR + 8 * (ks & 1)
        a('s_waitcnt lgkmcnt(4)' if ks < 7 else 's_waitcnt lgkmcnt(0)')
        a(f'v_mfma_f32_32x32x16_f16 {vr(D,16)}, {vr(f,4)}, {vr(f+4,4)}, {vr(D,16)}')
        if ks + 2 < 8: rd(ks + 2)
    a(f's_sub_u32 s{sCnt}, s{sCnt}, 1')
    a(f's_cmp_lg_u32 s{sCnt}, 0')
    a('s_cbranch_scc1 L_kg_chunk')
    stamp(a, 1, 52)
    a(f'v_lshlrev_b32 v10, 4, v6')
    a(f'v_sub_u32 v10, {16*255}, v10')
    a(f'v_add_u32 v10, s{sLB}, v10')
    a(f'v_lshlrev_b32 v11, 9, v7')
    a(f'v_sub_u32 v12, v10, v11')
    a(f'v_subrev_u32 v12, 1024, v12')
    a(f'v_sub_u32 v13, v10, v11')
    a(f'v_sub_u32 v13, v13, v11')
    a(f'v_subrev_u32 v13, 2560, v13')
    a(f'v_and_b32 v14, 1, v{vL}')
    a('v_cmp_eq_u32 vcc, 0, v14')
    a.fence(8)
    for i in range(15):
        a(f'v_mul_f32 v{D+i}, s{sUns}, v{D+i}')
    O = 16
    O = 88
    for j in range(4):
        a(f'v_cvt_pk_bf16_f32 v{O+j}, v{D+7-2*j}, v{D+6-2*j}')
    a(f'ds_write_b128 v12, {vr(O,4)} offset:1024')
    w0, w4, w8 = D + 8, D + 9, D + 10
    for j, (lo_, hi_) in enumerate([(w8, w8), (w4, w4), (w4, w0), (w0, w0)]):
        a(f'v_cvt_pk_bf16_f32 v{O+4+j}, v{lo_}, v{hi_}')
    a(f'ds_write_b128 v12, {vr(O+4,4)}')
    for s, (x0, x8, off) in enumerate([(D + 11, D + 12, 512), (D + 13, D + 14, 0)]):
        q = O + 8 + 4 * s
        a(f'v_cndmask_b32 v14, v{x8}, v{x0}, vcc')
        a(f'v_cvt_pk_bf16_f32 v{q}, v{x8}, v{x8}')
        a(f'v_cvt_pk_bf16_f32 v{q+1}, v{x8}, v14')
        a(f'v_cvt_pk_bf16_f32 v{q+2}, v{x0}, v{x0}')
        a(f'v_mov_b32 v{q+3}, v{q+2}')
        a(f'ds_write_b128 v13, {vr(q,4)} offset:{off}')
    a(f'v_lshrrev_b32 v10, 2, v{vL}')
    a(f'v_mul_u32_u24 v10, {CP}, v10')
    a(f'v_and_b32 v11, 3, v{vL}')
    a(f'v_lshl_add_u32 v10, v11, 4, v10')
    a(f'v_add_u32 v10, 4096, v10')
    a(f'v_subrev_u32 v11, 16, v{vL}')
    a(f'v_min_u32 v11, 29, v11')
    a(f'v_lshlrev_b32 v11, 4, v11')
    a(f'v_add_u32 v11, {UOFF}, v11')
    a(f'v_cmp_gt_u32 vcc, 16, v{vL}')
    a('v_cndmask_b32 v10, v11, v10, vcc')
    a(f'v_add_u32 v10, s{sLB}, v10')
    for i in range(4):
        a(f'v_mov_b32 v{16+i}, 0')
    a(f'ds_write_b128 v10, v[16:19]')
    a(f'v_lshlrev_b32 v10, 4, v{vL}')
    a(f'v_add_u32 v10, s{sLB}, v10')
    Wd = 32
    for it in range(4):
        a(f'ds_read_b128 {vr(Wd+8*it,4)}, v10 offset:{1024*it}')
        a(f'ds_read_b64 {vr(Wd+8*it+4,2)}, v10 offset:{1024*it+16}')
    for it in range(4):
        w = Wd + 8 * it
        q = 64 + 12 * (it & 1)
        a(f's_waitcnt lgkmcnt({min(15, 6 - 2*it + 3*it)})' if False else f's_waitcnt lgkmcnt({(3-it)*2 + (3*it if it else 0) if False else 0})' if it == 0 else '; (already waited)')
        for k in range(4):
            a(f'v_alignbyte_b32 v{q+k}, v{w+k+1}, v{w+k}, 2')
        a(f'ds_write_b128 v10, {vr(q,4)} offset:{CP+1024*it}')
        for k in range(4):
            a(f'v_mov_b32 v{q+4+k}, v{w+k+1}')
        a(f'ds_write_b128 v10, {vr(q+4,4)} offset:{2*CP+1024*it}')
        for k in range(4):
            a(f'v_alignbyte_b32 v{q+8+k}, v{w+k+2}, v{w+k+1}, 2')
        a(f'ds_write_b128 v10, {vr(q+8,4)} offset:{3*CP+1024*it}')
    if opt.get('dump_k'):
        a('s_waitcnt lgkmcnt(0)')
        a(f's_mul_i32 s{sT}, s{sD}, 17408')
        a(f's_add_u32 s{sT}, s{sT}, {WS_DBG}')
        a(f'v_lshlrev_b32 v11, 4, v{vL}')
        for it in range(17):
            a(f'ds_read_b128 v[16:19], v10 offset:{1024*it}')
            a('s_waitcnt lgkmcnt(0)')
            a(f'buffer_store_dwordx4 v[16:19], v11, {srd(SRD_WS)}, s{sT} offen')
            a(f's_add_u32 s{sT}, s{sT}, 1024')
        a('s_waitcnt vmcnt(0)')
    stamp(a, 2, 52)
    a(f's_lshr_b32 s{sT}, s{sD}, 6')
    a(f's_lshl_b32 s{sT}, s{sT}, 7')
    a(f's_add_u32 s{sT}, s{sT}, {WS_FU}')
    a(f'v_lshlrev_b32 v11, 2, v6')
    poll(a, 'L_pu', [(11, f's{sT}')], 12, 89)
    stamp(a, 3, 52)
    a(f's_lshl_b32 s{sT}, s{sD}, 12')
    a(f's_add_u32 s{sT2}, s{sT}, {WS_UT}')
    a(f'v_lshlrev_b32 v11, 4, v{vL}')
    for it in range(4):
        a(f'buffer_load_dwordx4 {vr(32+4*it,4)}, v11, {srd(SRD_WS)}, s{sT2} offen offset:{1024*it} sc1')
    vKA, vUB = 4, 5
    a(f'v_and_b32 v12, 15, v{vL}')
    a(f'v_lshrrev_b32 v13, 4, v{vL}')
    a('v_sub_u32 v14, 3, v12')
    a('v_and_b32 v14, 3, v14')
    a(f'v_mul_u32_u24 v{vKA}, {CP}, v14')
    a('v_add_u32 v15, v12, v14')
    a('v_sub_u32 v15, 2031, v15')
    a('v_lshl_add_u32 v15, v13, 3, v15')
    a(f'v_lshl_add_u32 v{vKA}, v15, 1, v{vKA}')
    a(f'v_subrev_u32 v{vKA}, {512*7}, v{vKA}')
    a(f'v_add_u32 v{vKA}, s{sLB}, v{vKA}')
    a(f'v_lshlrev_b32 v{vUB}, 5, v12')
    a(f'v_lshl_add_u32 v{vUB}, v13, 4, v{vUB}')
    a(f'v_add_u32 v{vUB}, {UOFF+448}, v{vUB}')
    a(f'v_add_u32 v{vUB}, s{sLB}, v{vUB}')
    a('v_lshlrev_b32 v6, 5, v12')
    a('v_lshl_add_u32 v6, v13, 3, v6')
    a(f'v_add_u32 v6, {UOFF+480}, v6')
    a(f'v_add_u32 v6, s{sLB}, v6')
    a('v_lshlrev_b32 v7, 5, v12')
    a('v_lshrrev_b32 v15, 1, v13')
    a('v_lshl_add_u32 v7, v15, 4, v7')
    a('v_and_b32 v15, 1, v13')
    a('v_lshl_add_u32 v7, v15, 9, v7')
    ACC = 64
    for i in range(32):
        a(f'v_mov_b32 v{ACC+i}, 0')
    for it in range(4):
        a(f's_waitcnt vmcnt({3-it})')
        a(f'ds_write_b128 v10, {vr(32+4*it,4)} offset:{UOFF+480+1024*it}')
    if opt.get('cg', 1) and not opt.get('no_gemm'):
        a('s_lshl_b32 s92, s2, 2')
        a(f's_add_u32 s92, s92, {WS_FS-1024}')
        wait_word(a, 'L_cg', 92, 4)
    FA = [96, 160]
    def loads(s):
        L = []
        for g in range(8):
            L.append(f'ds_read_b64 {vr(FA[s]+4*g,2)}, v{vKA} offset:{512*(7-g)}')
            L.append(f'ds_read_b64 {vr(FA[s]+4*g+2,2)}, v{vKA} offset:{512*(7-g)+8}')
            L.append(f'ds_read_b128 {vr(FA[s]+32+4*g,4)}, v{vUB} offset:{512*g}')
        return L
    stamp(a, 4, 52)
    for l in loads(0): a(l)
    a(f's_mov_b32 s{sCnt}, 4')
    a.lab('L_conv')
    for s in range(2):
        a(f'v_subrev_u32 v{vKA}, 64, v{vKA}')
        a(f'v_subrev_u32 v{vUB}, 64, v{vUB}')
        a('s_waitcnt lgkmcnt(0)')
        nxt = loads(1 - s)
        pairs = [(g, i) for tot in range(8) for g in range(tot + 1) for i in [tot - g]]
        pairs = sorted(pairs, key=lambda p: (p[0], p[1]))
        k = 0
        for idx, (g, i) in enumerate(pairs):
            jt = g + i
            a(f'v_mfma_f32_16x16x32_bf16 {vr(ACC+4*jt,4)}, {vr(FA[s]+4*g,4)}, {vr(FA[s]+32+4*i,4)}, {vr(ACC+4*jt,4)}')
            if k < len(nxt) and idx >= 2:
                a(nxt[k]); k += 1
        while k < len(nxt):
            a(nxt[k]); k += 1
    a(f's_sub_u32 s{sCnt}, s{sCnt}, 1')
    a(f's_cmp_lg_u32 s{sCnt}, 0')
    a('s_cbranch_scc1 L_conv')
    a('s_waitcnt lgkmcnt(0)')
    stamp(a, 5, 52)
    UU = 32
    for jt in range(8):
        a(f'ds_read_b64 {vr(UU+2*jt,2)}, v6 offset:{512*jt}')
    a(f's_add_u32 s{sT2}, s{sT}, {WS_AT}')
    a('s_waitcnt lgkmcnt(0)')
    RES = 96
    for jt in range(8):
        c = ACC + 4 * jt
        t = 112 + 8 * (jt & 1)
        a(f'v_cvt_pk_bf16_f32 v{t}, v{c}, v{c+1}')
        a(f'v_cvt_pk_bf16_f32 v{t+1}, v{c+2}, v{c+3}')
        a(f'v_lshlrev_b32 v{c}, 16, v{UU+2*jt}')
        a(f'v_and_b32 v{c+1}, 0xffff0000, v{UU+2*jt}')
        a(f'v_lshlrev_b32 v{c+2}, 16, v{UU+2*jt+1}')
        a(f'v_and_b32 v{c+3}, 0xffff0000, v{UU+2*jt+1}')
        a(f'v_pk_mul_f32 {vr(c,2)}, {vr(c,2)}, {vr(28,2)} op_sel:[0,1] op_sel_hi:[1,1]')
        a(f'v_pk_mul_f32 {vr(c+2,2)}, {vr(c+2,2)}, {vr(28,2)} op_sel:[0,1] op_sel_hi:[1,1]')
        a(f'v_cvt_pk_bf16_f32 v{t+2}, v{c}, v{c+1}')
        a(f'v_cvt_pk_bf16_f32 v{t+3}, v{c+2}, v{c+3}')
        a(f'v_lshlrev_b32 v{c}, 16, v{t}')
        a(f'v_and_b32 v{c+1}, 0xffff0000, v{t}')
        a(f'v_lshlrev_b32 v{c+2}, 16, v{t+1}')
        a(f'v_and_b32 v{c+3}, 0xffff0000, v{t+1}')
        a(f'v_lshlrev_b32 v{t+4}, 16, v{t+2}')
        a(f'v_and_b32 v{t+5}, 0xffff0000, v{t+2}')
        a(f'v_lshlrev_b32 v{t+6}, 16, v{t+3}')
        a(f'v_and_b32 v{t+7}, 0xffff0000, v{t+3}')
        a(f'v_pk_add_f32 {vr(c,2)}, {vr(c,2)}, {vr(t+4,2)}')
        a(f'v_pk_add_f32 {vr(c+2,2)}, {vr(c+2,2)}, {vr(t+6,2)}')
        q = RES + 4 * (jt >> 1) + 2 * (jt & 1)
        a(f'v_cvt_pk_bf16_f32 v{q}, v{c}, v{c+1}')
        a(f'v_cvt_pk_bf16_f32 v{q+1}, v{c+2}, v{c+3}')
        if jt & 1:
            q0 = RES + 4 * (jt >> 1)
            a(f'v_permlane16_swap_b32 v{q0}, v{q0+2}')
            a(f'v_permlane16_swap_b32 v{q0+1}, v{q0+3}')
            a(f'buffer_store_dwordx4 {vr(q0,4)}, v7, {srd(SRD_WS)}, s{sT2} offen offset:{1024*(jt>>1)} sc1')
    a('s_waitcnt vmcnt(0)')
    a(f's_lshl_b32 s{sT}, s{sD}, 2')
    a(f's_add_u32 s{sT}, s{sT}, {WS_FA}')
    a(f'v_mov_b32 v8, s{S_TAG}')
    a('s_mov_b64 exec, 1')
    a(f'buffer_store_dword v8, off, {srd(SRD_WS)}, s{sT} sc1')
    stamp(a, 6, 52)
    stamp_dump(a, 8, 52)
    a('s_endpgm')

def rbcb(a, sidx, srb, scb, st):
    a(f's_and_b32 s{st}, s{sidx}, 7')
    a(f's_lshr_b32 s{srb}, s{st}, 1')
    a(f's_lshl_b32 s{srb}, s{srb}, 3')
    a(f's_lshr_b32 s{scb}, s{sidx}, 5')
    a(f's_add_u32 s{srb}, s{srb}, s{scb}')
    a(f's_and_b32 s{scb}, s{st}, 1')
    a(f's_lshl_b32 s{scb}, s{scb}, 2')
    a(f's_bfe_u32 s{st}, s{sidx}, 0x20003')
    a(f's_add_u32 s{scb}, s{scb}, s{st}')

def wait_word(a, name, saddr, sleep=8):
    a(f's_mov_b32 s89, {SPIN_MAX}')
    a.lab(f'{name}_spin')
    a(f'buffer_load_dword v8, off, {srd(SRD_WS)}, s{saddr} sc1')
    a('s_waitcnt vmcnt(0)')
    a(f'v_cmp_ne_u32 vcc, s{S_TAG}, v8')
    a(f's_cbranch_vccz {name}_done')
    a(f's_sleep {sleep}')
    a('s_sub_u32 s89, s89, 1')
    a('s_cmp_lg_u32 s89, 0')
    a(f's_cbranch_scc1 {name}_spin')
    a.lab(f'{name}_done')

def wait_fu(a, name, srb, st):
    a(f's_lshl_b32 s{st}, s{srb}, 2')
    a(f's_add_u32 s{st}, s{st}, {WS_FU}')
    wait_word(a, name, st)

def side_gate(a, opt):
    sK, sT = 82, 86
    vL = 1
    a(f's_sub_u32 s{sK}, s2, 256')
    rbcb(a, sK, 90, 91, 92)
    if opt.get('dly', 0):
        wait_fu(a, 'L_gw', 90, 92)
    a(f's_mul_i32 s{sT}, s{sK}, {8*1280}')
    a(f'v_lshrrev_b32 v2, 3, v{vL}')
    a(f'v_and_b32 v3, 7, v{vL}')
    a('v_lshlrev_b32 v4, 4, v3')
    a('v_mul_u32_u24 v5, 1280, v2')
    a('v_add_u32 v5, v5, v4')
    a(f'v_add_u32 v5, s{sT}, v5')
    XR, WR = 16, 56
    for it in range(10):
        a(f'global_load_dwordx4 {vr(XR+4*it,4)}, v5, {sp(P_U)} offset:{128*it}')
        a(f'global_load_dwordx4 {vr(WR+4*it,4)}, v4, {sp(P_GW)} offset:{128*it}')
    a('v_mov_b32 v6, 0')
    a('v_mov_b32 v7, 0')
    for it in range(10):
        a(f's_waitcnt vmcnt({18-2*it})')
        for k in range(4):
            x, w = XR + 4 * it + k, WR + 4 * it + k
            a(f'v_lshlrev_b32 v8, 16, v{x}')
            a(f'v_and_b32 v9, 0xffff0000, v{x}')
            a(f'v_lshlrev_b32 v10, 16, v{w}')
            a(f'v_and_b32 v11, 0xffff0000, v{w}')
            a('v_pk_mul_f32 v[8:9], v[8:9], v[10:11]')
            a('v_cvt_pk_bf16_f32 v12, v8, v9')
            a('v_lshlrev_b32 v8, 16, v12')
            a('v_and_b32 v9, 0xffff0000, v12')
            a('v_pk_add_f32 v[6:7], v[6:7], v[8:9]')
    a('v_add_f32 v6, v6, v7')
    a('v_add_f32_dpp v6, v6, v6 quad_perm:[1,0,3,2] row_mask:0xf bank_mask:0xf')
    a('v_add_f32_dpp v6, v6, v6 quad_perm:[2,3,0,1] row_mask:0xf bank_mask:0xf')
    a('v_add_f32_dpp v6, v6, v6 row_half_mirror row_mask:0xf bank_mask:0xf')
    a('v_cvt_pk_bf16_f32 v6, v6, v6')
    a('v_lshlrev_b32 v6, 16, v6')
    a(f'v_mul_f32 v6, {hx(-LOG2E)}, v6')
    a('v_exp_f32 v6, v6')
    a('v_add_f32 v6, 1.0, v6')
    a('v_rcp_f32 v6, v6')
    a('v_cvt_pk_bf16_f32 v6, v6, v6')
    a('v_lshlrev_b32 v8, 16, v6')
    a('v_sub_f32 v9, 1.0, v8')
    a('v_cvt_pk_bf16_f32 v9, v9, v9')
    a('v_lshlrev_b32 v9, 16, v9')
    a(f's_lshl_b32 s{sT}, s{sK}, 6')
    a(f's_add_u32 s{sT}, s{sT}, {WS_G}')
    a('v_lshlrev_b32 v10, 3, v2')
    a('v_cmp_eq_u32 vcc, 0, v3')
    a('s_and_saveexec_b64 s[84:85], vcc')
    a(f'buffer_store_dwordx2 v[8:9], v10, {srd(SRD_WS)}, s{sT} offen sc1')
    a('s_waitcnt vmcnt(0)')
    a(f's_lshl_b32 s{sT}, s{sK}, 2')
    a(f's_add_u32 s{sT}, s{sT}, {WS_FG}')
    a(f'v_mov_b32 v8, s{S_TAG}')
    a('s_mov_b64 exec, 1')
    a(f'buffer_store_dword v8, off, {srd(SRD_WS)}, s{sT} sc1')
    pf = opt.get('pf', 0)
    if pf:
        a('s_mov_b64 exec, -1')
        mk_srd(a, SRD_WSP, P_WSP, 2048 * 2048 * 2)
        if opt.get('pft', 1):
            a('s_lshl_b32 s92, s90, 14')
            a('s_lshl_b32 s93, s91, 5')
            a('s_add_u32 s92, s92, s93')
            a(f's_add_u32 s92, s92, {WS_ST+8}')
            wait_word(a, 'L_gs', 92)
        a('s_lshl_b32 s92, s90, 18')
        a('s_and_b32 s93, s91, 3')
        a('s_lshl_b32 s93, s93, 16')
        a('s_add_u32 s92, s92, s93')
        a(f'v_lshlrev_b32 v2, {7 if pf == 128 else 6}, v{vL}')
        for i in range(65536 // (64 * pf)):
            a(f'buffer_load_dword v{10+i}, v2, {srd(SRD_WSP)}, s92 offen')
            a(f's_add_u32 s92, s92, {64*pf}')
    a('s_endpgm')

def side_retile(a, opt):
    vL = 1
    mk_srd(a, SRD_WOUT, P_WOUT, 768 * 640 * 2)
    if opt.get('dly', 0):
        a('s_and_b32 s90, s2, 31')
        wait_fu(a, 'L_rw', 90, 92)
    a('s_sub_u32 s82, s2, 384')
    a('s_lshl_b32 s82, s82, 1')
    a(f'v_lshrrev_b32 v2, 4, v{vL}')
    a('v_mul_u32_u24 v2, 10240, v2')
    a(f'v_and_b32 v3, 15, v{vL}')
    a('v_lshl_add_u32 v2, v3, 1, v2')
    a('v_add_u32 v3, 3840, v2')
    a('v_add_u32 v4, 7680, v2')
    a(f'v_lshlrev_b32 v5, 4, v{vL}')
    for un in range(2):
        a(f's_add_u32 s83, s82, {un}')
        a('s_mul_i32 s86, s83, 43691')
        a('s_lshr_b32 s86, s86, 20')
        a('s_mul_i32 s87, s86, 24')
        a('s_sub_u32 s87, s83, s87')
        a('s_mul_i32 s87, s87, 40960')
        a('s_mul_i32 s86, s86, 160')
        a(f's_add_u32 s{88+un}, s86, s87')
        for dl in range(5):
            for e in range(8):
                r = (48 if e & 1 else 8) + 20 * un + 4 * dl + (e >> 1)
                a(f'buffer_load_ushort v{r}, v{2 + e // 3}, {srd(SRD_WOUT)}, s{88+un} offen offset:{(e % 3) * 1280 + 32 * dl}')
    a('s_mul_i32 s86, s82, 5120')
    a(f's_add_u32 s86, s86, {WS_WO}')
    for un in range(2):
        a(f's_waitcnt vmcnt({40 if un == 0 else 5})')
        for dl in range(5):
            r = 8 + 20 * un + 4 * dl
            for k in range(4):
                a(f'v_lshl_or_b32 v{r+k}, v{r+k+40}, 16, v{r+k}')
            if dl == 4: a('s_add_u32 s86, s86, 4096')
            a(f'buffer_store_dwordx4 {vr(r,4)}, v5, {srd(SRD_WS)}, s86 offen offset:{1024*(dl%4)} sc1')
        a('s_add_u32 s86, s86, 1024')
    a('s_waitcnt vmcnt(0)')
    a('s_lshl_b32 s86, s82, 2')
    a(f's_add_u32 s86, s86, {WS_FW}')
    a(f'v_mov_b32 v8, s{S_TAG}')
    a(f'v_mov_b32 v9, s{S_TAG}')
    a('s_mov_b64 exec, 1')
    a(f'buffer_store_dwordx2 v[8:9], off, {srd(SRD_WS)}, s86 sc1')
    a('s_endpgm')

def side_keeper(a, opt):
    vL = 1
    a(f'v_lshlrev_b32 v2, 2, v{vL}')
    loads = [(2, WS_FZ + 256 * i) for i in range(4)] + [(2, WS_FA + 256 * i) for i in range(10)] + [(2, WS_FG + 256 * i) for i in range(4)]
    a(f's_mov_b32 s86, {WS_FZ}')
    a(f's_mov_b32 s87, {WS_FA}')
    a(f's_mov_b32 s88, {WS_FG}')
    a(f's_mov_b32 s90, {WS_FW}')
    L = [(2, f's86 offen offset:{256*i} ;') for i in range(4)]
    a(f's_mov_b32 s89, {SPIN_MAX}')
    a.lab('L_keep_spin')
    n = 0
    for base, cnt in (((86, 4), (87, 10), (88, 4), (90, 3)) if not opt.get('no_side') else ((86, 4),)):
        for i in range(cnt):
            a(f'buffer_load_dword v{8+n}, v2, {srd(SRD_WS)}, s{base} offen offset:{256*i} sc1'); n += 1
    a('s_waitcnt vmcnt(0)')
    a(f'v_cmp_ne_u32 vcc, s{S_TAG}, v8')
    for i in range(1, n):
        a(f'v_cmp_ne_u32 s[84:85], s{S_TAG}, v{8+i}')
        a('s_or_b64 vcc, vcc, s[84:85]')
    a('s_cbranch_vccz L_keep_done')
    a('s_sleep 16')
    a('s_sub_u32 s89, s89, 1')
    a('s_cmp_lg_u32 s89, 0')
    a('s_cbranch_scc1 L_keep_spin')
    a.lab('L_keep_done')
    a(f'v_mov_b32 v8, s{S_TAG}')
    a('s_mov_b64 exec, 1')
    a(f'buffer_store_dword v8, off, {srd(SRD_WS)}, 0 sc1')
    a('s_endpgm')

def build(opt):
    PROF['on'] = bool(opt.get('prof'))
    a = Asm()
    a.raw(f'; @launch kernel={KNAME} grid=(512,1,1) block=(256,1,1) lds=81920' if not opt.get('plain') else '; @launch grid=(512,1,1) block=(256,1,1) lds=81920')
    a.raw('.amdgcn_target "amdgcn-amd-amdhsa--gfx950"')
    a.raw('.text')
    a.raw(f'.globl {KNAME}')
    a.raw('.p2align 8')
    a.raw(f'.type {KNAME},@function')
    a.lab(KNAME)
    a('s_cmp_ge_u32 s2, 512')
    a('s_cbranch_scc1 L_end')
    a('s_load_dwordx16 s[16:31], s[0:1], 0')
    a('s_load_dwordx16 s[32:47], s[0:1], 64')
    a('s_load_dwordx4 s[48:51], s[0:1], 128')
    a('v_and_b32 v1, 63, v0')
    a('v_lshrrev_b32 v2, 6, v0')
    a(f'v_readfirstlane_b32 s{S_W}, v2')
    a('s_waitcnt lgkmcnt(0)')
    mk_srd(a, SRD_WS, P_WS, WS_SIZE)
    a(f'buffer_load_dword v15, off, {srd(SRD_WS)}, 0 sc1')
    a('s_cmp_lt_u32 s2, 256')
    a('s_cbranch_scc1 L_gemm')
    if opt.get('no_side') == 1:
        a('s_cmp_eq_u32 s2, 511')
        a('s_cbranch_scc0 L_end')
        a(f's_cmp_eq_u32 s{S_W}, 2')
        a('s_cbranch_scc0 L_end')
    a('s_waitcnt vmcnt(0)')
    a(f'v_readfirstlane_b32 s{S_TAG}, v15')
    a(f's_add_u32 s{S_TAG}, s{S_TAG}, 1')
    a(f's_cmp_eq_u32 s{S_W}, 3')
    a('s_cbranch_scc1 L_gate')
    if opt.get('no_side') == 2:
        a('s_cmp_ge_u32 s2, 384')
        a('s_cbranch_scc0 L_end')
        a(f's_cmp_eq_u32 s{S_W}, 2')
        a('s_cbranch_scc0 L_end')
    a(f's_lshl_b32 s82, s{S_W}, 8')
    a('s_add_u32 s82, s82, s2')
    a('s_sub_u32 s82, s82, 256')
    a('s_cmp_lt_u32 s82, 640')
    a('s_cbranch_scc1 L_chan')
    a('s_cmp_eq_u32 s2, 511')
    a('s_cbranch_scc1 L_keep')
    a('s_cmp_lt_u32 s2, 480')
    a('s_cbranch_scc1 L_retile')
    a.lab('L_end')
    a('s_endpgm')
    a.lab('L_chan')
    side_channel(a, opt)
    a.lab('L_gate')
    side_gate(a, opt)
    a.lab('L_retile')
    side_retile(a, opt)
    a.lab('L_keep')
    side_keeper(a, opt)
    a.lab('L_gemm')
    if opt.get('no_gemm'):
        a('s_endpgm')
    else:
        import gen_gemm
        gen_gemm.gemm_role(a, opt)
    a.raw('.section .rodata,"a"')
    a.raw('.p2align 6')
    a.raw(f'.amdhsa_kernel {KNAME}')
    a.raw('  .amdhsa_next_free_vgpr 256')
    a.raw('  .amdhsa_next_free_sgpr 96')
    a.raw('  .amdhsa_accum_offset 256')
    a.raw('  .amdhsa_group_segment_fixed_size 0')
    a.raw('  .amdhsa_kernarg_size 144')
    a.raw('  .amdhsa_user_sgpr_count 2')
    a.raw('  .amdhsa_user_sgpr_kernarg_segment_ptr 1')
    a.raw('  .amdhsa_system_sgpr_workgroup_id_x 1')
    a.raw('.end_amdhsa_kernel')
    return a.text()

if __name__ == '__main__':
    opt = {}
    for x in sys.argv[2:]:
        k, _, v = x.partition('=')
        opt[k] = int(v) if v else 1
    import gen as _self
    open(sys.argv[1], 'w').write(_self.build(opt))
```

```python
import sys, struct
import numpy as np
sys.path.insert(0, 'gen')
from asmlib import Asm

KNAME = 'gated_mix__ssm_conv_s4__mixer_gmlp__prompt_kernel'

def f2u(x): return struct.unpack('<I', struct.pack('<f', x))[0]
def hx(x): return '0x%08x' % f2u(x)

WS_EPOCH = 0x0
WS_FZ = 0x1000
WS_FU = 0x2000
WS_FP = 0x3000
WS_FA = 0x4000
WS_FG = 0x5000
WS_FS = 0x7000
WS_FW = 0x6000
WS_WO = 0xD00000
WS_G = 0x8000
WS_ST = 0x10000
WS_Z = 0x100000
WS_P = 0x400000
WS_UT = 0x700000
WS_AT = 0xA00000
WS_DBG = 0x1000000
WS_SIZE = 0x4000000

P_U, P_ARE, P_AIM, P_BRE, P_BIM, P_CRE, P_CIM, P_LDT = 16, 18, 20, 22, 24, 26, 28, 30
P_DSK, P_BX, P_WIN, P_WSP, P_BSP, P_WOUT, P_GW, P_OUT = 32, 34, 36, 38, 40, 42, 44, 46
P_DBG, P_WS = 48, 50
SRD_X, SRD_WIN, SRD_WSP, SRD_WOUT, SRD_WS, SRD_OUT = 52, 56, 60, 64, 68, 72
S_TAG, S_W = 80, 81
def srd(n): return f's[{n}:{n+3}]'
def sp(n): return f's[{n}:{n+1}]'
def vr(a, n): return f'v[{a}:{a+n-1}]'

LOG2E = 1.4426950408889634
SPIN_MAX = 20000

def mk_srd(a, dst, ptr, size):
    a(f's_mov_b32 s{dst}, s{ptr}')
    a(f's_and_b32 s{dst+1}, s{ptr+1}, 0xffff')
    a(f's_mov_b32 s{dst+2}, {size}')
    a(f's_mov_b32 s{dst+3}, 0x00020000')

def cmul(a, dst, x, y, tmp):
    a(f'v_pk_mul_f32 {vr(tmp,2)}, {vr(x,2)}, {vr(y,2)} op_sel:[0,0] op_sel_hi:[0,1]')
    a(f'v_pk_fma_f32 {vr(dst,2)}, {vr(x,2)}, {vr(y,2)}, {vr(tmp,2)} op_sel:[1,1,0] op_sel_hi:[1,0,1] neg_lo:[1,0,0]')

PROF = {'on': False}
WS_PROF = 0x2000000
def stamp(a, i, base=18):
    if not PROF['on']: return
    a('s_memrealtime s[14:15]')
    a('s_waitcnt lgkmcnt(0)')
    a(f's_mov_b32 s{base+i}, s14')
def stamp_dump(a, n, base=18):
    if not PROF['on']: return
    if PROF.get('dbg'):
        if base != 18: return
        a('s_mov_b64 exec, 1')
        mk_srd(a, 52, P_DBG, 256)
        a(f's_not_b32 s{base}, s{base}')
        for i in range(n):
            a(f'v_mov_b32 v2, s{base+i}')
            a(f'buffer_atomic_umax v2, off, s[52:55], 0 offset:{4*i} sc1')
        a('s_waitcnt vmcnt(0)')
        return
    a('s_mov_b64 exec, 1')
    a('s_lshl_b32 s14, s2, 2')
    a(f's_add_u32 s14, s14, s{S_W}')
    a('s_lshl_b32 s14, s14, 6')
    a(f's_add_u32 s14, s14, {WS_PROF}')
    for i in range(n):
        a(f'v_mov_b32 v2, s{base+i}')
        a(f'buffer_store_dword v2, off, {srd(SRD_WS)}, s14 offset:{4*i}')
    a('s_waitcnt vmcnt(0)')

def poll(a, name, loads, vtmp, scount, nlanes_mask=None):
    a(f's_mov_b32 s{scount}, {SPIN_MAX}')
    a.lab(f'{name}_spin')
    for i, (va, so) in enumerate(loads):
        a(f'buffer_load_dword v{vtmp+i}, v{va}, {srd(SRD_WS)}, {so} offen sc1')
    a('s_waitcnt vmcnt(0)')
    a(f'v_cmp_ne_u32 vcc, s{S_TAG}, v{vtmp}')
    for i in range(1, len(loads)):
        a(f'v_cmp_ne_u32 s[84:85], s{S_TAG}, v{vtmp+i}')
        a('s_or_b64 vcc, vcc, s[84:85]')
    a(f's_cbranch_vccz {name}_done')
    a('s_sleep 2')
    a(f's_sub_u32 s{scount}, s{scount}, 1')
    a(f's_cmp_lg_u32 s{scount}, 0')
    a(f's_cbranch_scc1 {name}_spin')
    a.lab(f'{name}_done')

WAVE_LDS = 26624
CP = 4160
UOFF = 16640
def side_channel(a, opt):
    sD, sLB, sT, sT2, sUns = 82, 83, 86, 87, 88
    vL = 1
    if opt.get('sprio'): a(f's_setprio {opt["sprio"]}')
    stamp(a, 0, 52)
    a(f's_mul_i32 s{sLB}, s{S_W}, {WAVE_LDS}')
    a(f's_mul_i32 s{sT}, s{sD}, 384')
    a(f'v_lshlrev_b32 v2, 1, v{vL}')
    a(f'v_add_u32 v2, s{sT}, v2')
    PR = 10
    arrs = [P_ARE, P_AIM, P_BRE, P_BIM, P_CRE, P_CIM]
    a(f's_lshl_b32 s{sT}, s{sD}, 1')
    a(f'v_mov_b32 v3, s{sT}')
    a(f'global_load_ushort v28, v3, {sp(P_LDT)}')
    a(f'global_load_ushort v29, v3, {sp(P_DSK)}')
    for ch in range(3):
        for k, p in enumerate(arrs):
            a(f'global_load_ushort v{PR+6*ch+k}, v2, {sp(p)} offset:{128*ch}')
    vWr, vRd = 104, 4
    a(f'v_and_b32 v6, 7, v{vL}')
    a(f'v_lshlrev_b32 v7, 7, v{vL}')
    a(f'v_add_u32 v7, s{sLB}, v7')
    for p in range(8):
        a(f'v_xor_b32 v8, {p}, v6')
        a(f'v_lshl_add_u32 v{vWr+p}, v8, 4, v7')
    a(f'v_lshrrev_b32 v6, 5, v{vL}')
    a(f'v_bfe_u32 v7, v{vL}, 3, 1')
    a('v_lshl_add_u32 v6, v6, 2, v7')
    a(f'v_bfe_u32 v7, v{vL}, 2, 1')
    a('v_lshlrev_b32 v7, 2, v7')
    a(f'v_bfe_u32 v8, v{vL}, 4, 1')
    a('v_lshl_add_u32 v7, v8, 1, v7')
    a(f'v_bfe_u32 v8, v{vL}, 1, 1')
    a('v_add_u32 v7, v7, v8')
    a(f'v_and_b32 v9, 1, v{vL}')
    a('v_lshlrev_b32 v9, 3, v9')
    a(f'v_add_u32 v9, s{sLB}, v9')
    for i in range(2):
        if i: a('v_add_u32 v6, 2, v6')
        a('v_xor_b32 v8, v7, v6')
        a(f'v_lshl_add_u32 v{vRd+i}, v8, 4, v9')
        a(f'v_lshl_add_u32 v{vRd+i}, v6, 7, v{vRd+i}')
    a(f'v_and_b32 v6, 31, v{vL}')
    a(f'v_lshrrev_b32 v7, 5, v{vL}')
    hi = struct.unpack('<f', struct.pack('<I', f2u(LOG2E) & 0xFFFFF000))[0]
    lo = LOG2E - hi
    a('s_waitcnt vmcnt(18)')
    a('v_lshlrev_b32 v28, 16, v28')
    a('v_lshlrev_b32 v29, 16, v29')
    a(f'v_mul_f32 v8, {hx(hi)}, v28')
    a('v_rndne_f32 v9, v8')
    a('v_sub_f32 v8, v8, v9')
    a(f'v_fmac_f32 v8, {hx(lo)}, v28')
    a('v_exp_f32 v8, v8')
    a('v_cvt_i32_f32 v9, v9')
    a('v_ldexp_f32 v8, v8, v9')
    a('v_cvt_pk_bf16_f32 v8, v8, v8')
    a('v_lshlrev_b32 v28, 16, v8')
    a('s_waitcnt vmcnt(0)')
    for i in range(18):
        a(f'v_lshlrev_b32 v{PR+i}, 16, v{PR+i}')
    WR = 32
    AW = 38
    for ch in range(3):
        b = PR + 6 * ch
        a(f'v_mul_f32 v{b}, v28, v{b}')
        a(f'v_mul_f32 v{b+1}, v28, v{b+1}')
        a(f'v_mul_f32 v{b+2}, v28, v{b+2}')
        a(f'v_mul_f32 v{b+3}, v28, v{b+3}')
        a(f'v_mul_f32 v{AW+2*ch}, {hx(LOG2E)}, v{b}')
        a(f'v_mul_f32 v{AW+2*ch+1}, {hx(1/(2*np.pi))}, v{b+1}')
        cmul(a, WR + 2 * ch, b + 4, b + 2, 8)
    a(f'v_max3_f32 v8, abs(v{WR}), abs(v{WR+1}), abs(v{WR+2})')
    a(f'v_max3_f32 v8, v8, abs(v{WR+3}), abs(v{WR+4})')
    a(f'v_max_f32 v8, v8, abs(v{WR+5})')
    for r in (8, 4, 2, 1):
        a(f'v_max_f32_dpp v8, v8, v8 row_ror:{r} row_mask:0xf bank_mask:0xf')
    a(f'v_readlane_b32 s{sT}, v8, 0')
    a(f'v_readlane_b32 s{sT2}, v8, 16')
    a(f's_max_u32 s{sT}, s{sT}, s{sT2}')
    a(f'v_readlane_b32 s{sT2}, v8, 32')
    a(f's_max_u32 s{sT}, s{sT}, s{sT2}')
    a(f'v_readlane_b32 s{sT2}, v8, 48')
    a(f's_max_u32 s{sT}, s{sT}, s{sT2}')
    a(f's_lshr_b32 s{sT}, s{sT}, 23')
    a(f's_min_u32 s{sT}, s{sT}, 252')
    a(f's_add_u32 s{sUns}, s{sT}, 1')
    a(f's_lshl_b32 s{sUns}, s{sUns}, 23')
    a(f's_sub_u32 s{sT}, 253, s{sT}')
    a(f's_lshl_b32 s{sT}, s{sT}, 23')
    for i in range(6):
        a(f'v_mul_f32 v{WR+i}, s{sT}, v{WR+i}')
    stamp(a, 7, 52)
    D = 72
    for i in range(16):
        a(f'v_mov_b32 v{D+i}, 0')
    E1, E8, GG = 44, 46, 48
    X = 112
    T = 8
    PKX = 168
    PKY = 200
    YA = 50
    FR = 88
    YB = 8192
    sCnt = 89
    a(f's_mov_b32 s{sCnt}, 3')
    a.lab('L_kg_chunk')
    def cexp(dst, P):
        if P == 1:
            a(f'v_exp_f32 v{T}, v{AW}')
            a(f'v_fract_f32 v{T+1}, v{AW+1}')
        else:
            a(f'v_mul_f32 v{T}, {hx(float(P))}, v{AW}')
            a(f'v_mul_f32 v{T+1}, {hx(float(P))}, v{AW+1}')
            a(f'v_exp_f32 v{T}, v{T}')
            a(f'v_fract_f32 v{T+1}, v{T+1}')
        a(f'v_cos_f32 v{dst}, v{T+1}')
        a(f'v_sin_f32 v{dst+1}, v{T+1}')
        a(f'v_pk_mul_f32 {vr(dst,2)}, {vr(dst,2)}, {vr(T,2)} op_sel:[0,0] op_sel_hi:[1,0]')
    cexp(E8, 8); cexp(E1, 1); cexp(GG, 256)
    def row_of(h, reg): return 8 * (reg >> 2) + 4 * h + (reg & 3)
    def flush(pk, base, j):
        if opt.get('kg_nowr'): return
        a(f'ds_write_b128 v{vWr+j}, {vr(pk+4*j,4)} offset:{base}')
        a(f'ds_write_b128 v{vWr+4+j}, {vr(pk+16+4*j,4)} offset:{base}')
    one = 54
    a(f'v_mov_b32 v{one}, 1.0')
    a(f'v_mov_b32 v{one+1}, 0')
    prev = None
    for k in range(32):
        if k == 0: cur = one
        elif k == 1: cur = E8
        else:
            cur = YA + 2 * (k & 1)
            cmul(a, cur, prev, E8, T)
        if k & 1:
            a(f'v_cvt_pk_f16_f32 v{PKY+(k>>1)}, v{prev}, v{cur}')
            a(f'v_cvt_pk_f16_f32 v{PKY+16+(k>>1)}, -v{prev+1}, -v{cur+1}')
            if (k & 7) == 7: flush(PKY, YB, k >> 3)
        prev = cur
    val = {0: WR}
    nxt = [X]
    def mk(P, src, mul):
        val[P] = nxt[0]; nxt[0] += 2
        cmul(a, val[P], val[src], mul, T)
    rows = {}
    for k in range(8): rows[row_of(0, k)] = k
    for k, P in enumerate((256, 256, 258, 260, 260, 260, 262, 264)): rows[row_of(1, k)] = P
    for k, P in enumerate((512, 516, 520, 1024, 1032, 1280, 1288)): rows[row_of(0, 8 + k)] = P
    for k, P in enumerate((768, 772, 776, 1536, 1544, 1792, 1800)): rows[row_of(1, 8 + k)] = P
    rows[27] = 1288; rows[31] = 1800
    done = set()
    def pack_ready():
        for r in range(0, 32, 2):
            if r in done or rows[r] not in val or rows[r + 1] not in val: continue
            done.add(r)
            p, q = val[rows[r]], val[rows[r + 1]]
            a(f'v_cvt_pk_f16_f32 v{PKX+(r>>1)}, v{p}, v{q}')
            a(f'v_cvt_pk_f16_f32 v{PKX+16+(r>>1)}, v{p+1}, v{q+1}')
            j = r >> 3
            if all((8 * j + e) in done for e in (0, 2, 4, 6)): flush(PKX, 0, j)
    order = [(k, k - 1, E1) for k in range(1, 9)] + [(256 + k, k, GG) for k in (0, 2, 4, 6, 8)]
    for b in (512, 768): order += [(b + k, b - 256 + k, GG) for k in (0, 4, 8)]
    for b in (1024, 1280, 1536, 1792): order += [(b + k, b - 256 + k, GG) for k in (0, 8)]
    for (P, src, mul) in order:
        mk(P, src, mul); pack_ready()
    assert len(done) == 16
    def rd(ks):
        f = FR + 8 * (ks & 1)
        for i in range(2):
            a(f'ds_read_b64_tr_b16 {vr(f+2*i,2)}, v{vRd+i} offset:{1024*ks}')
        for i in range(2):
            a(f'ds_read_b64_tr_b16 {vr(f+4+2*i,2)}, v{vRd+i} offset:{YB+1024*ks}')
    rd(0); rd(1)
    for i in range(4):
        a(f'v_mov_b32 v{WR+i}, v{WR+2+i}')
    for i in range(4):
        a(f'v_mov_b32 v{AW+i}, v{AW+2+i}')
    for ks in range(8):
        f = FR + 8 * (ks & 1)
        a('s_waitcnt lgkmcnt(4)' if ks < 7 else 's_waitcnt lgkmcnt(0)')
        a(f'v_mfma_f32_32x32x16_f16 {vr(D,16)}, {vr(f,4)}, {vr(f+4,4)}, {vr(D,16)}')
        if ks + 2 < 8: rd(ks + 2)
    a(f's_sub_u32 s{sCnt}, s{sCnt}, 1')
    a(f's_cmp_lg_u32 s{sCnt}, 0')
    a('s_cbranch_scc1 L_kg_chunk')
    stamp(a, 1, 52)
    a(f'v_lshlrev_b32 v10, 4, v6')
    a(f'v_sub_u32 v10, {16*255}, v10')
    a(f'v_add_u32 v10, s{sLB}, v10')
    a(f'v_lshlrev_b32 v11, 9, v7')
    a(f'v_sub_u32 v12, v10, v11')
    a(f'v_subrev_u32 v12, 1024, v12')
    a(f'v_sub_u32 v13, v10, v11')
    a(f'v_sub_u32 v13, v13, v11')
    a(f'v_subrev_u32 v13, 2560, v13')
    a(f'v_and_b32 v14, 1, v{vL}')
    a('v_cmp_eq_u32 vcc, 0, v14')
    a.fence(8)
    for i in range(15):
        a(f'v_mul_f32 v{D+i}, s{sUns}, v{D+i}')
    O = 16
    O = 88
    for j in range(4):
        a(f'v_cvt_pk_bf16_f32 v{O+j}, v{D+7-2*j}, v{D+6-2*j}')
    a(f'ds_write_b128 v12, {vr(O,4)} offset:1024')
    w0, w4, w8 = D + 8, D + 9, D + 10
    for j, (lo_, hi_) in enumerate([(w8, w8), (w4, w4), (w4, w0), (w0, w0)]):
        a(f'v_cvt_pk_bf16_f32 v{O+4+j}, v{lo_}, v{hi_}')
    a(f'ds_write_b128 v12, {vr(O+4,4)}')
    for s, (x0, x8, off) in enumerate([(D + 11, D + 12, 512), (D + 13, D + 14, 0)]):
        q = O + 8 + 4 * s
        a(f'v_cndmask_b32 v14, v{x8}, v{x0}, vcc')
        a(f'v_cvt_pk_bf16_f32 v{q}, v{x8}, v{x8}')
        a(f'v_cvt_pk_bf16_f32 v{q+1}, v{x8}, v14')
        a(f'v_cvt_pk_bf16_f32 v{q+2}, v{x0}, v{x0}')
        a(f'v_mov_b32 v{q+3}, v{q+2}')
        a(f'ds_write_b128 v13, {vr(q,4)} offset:{off}')
    a(f'v_lshrrev_b32 v10, 2, v{vL}')
    a(f'v_mul_u32_u24 v10, {CP}, v10')
    a(f'v_and_b32 v11, 3, v{vL}')
    a(f'v_lshl_add_u32 v10, v11, 4, v10')
    a(f'v_add_u32 v10, 4096, v10')
    a(f'v_subrev_u32 v11, 16, v{vL}')
    a(f'v_min_u32 v11, 29, v11')
    a(f'v_lshlrev_b32 v11, 4, v11')
    a(f'v_add_u32 v11, {UOFF}, v11')
    a(f'v_cmp_gt_u32 vcc, 16, v{vL}')
    a('v_cndmask_b32 v10, v11, v10, vcc')
    a(f'v_add_u32 v10, s{sLB}, v10')
    for i in range(4):
        a(f'v_mov_b32 v{16+i}, 0')
    a(f'ds_write_b128 v10, v[16:19]')
    a(f'v_lshlrev_b32 v10, 4, v{vL}')
    a(f'v_add_u32 v10, s{sLB}, v10')
    Wd = 32
    for it in range(4):
        a(f'ds_read_b128 {vr(Wd+8*it,4)}, v10 offset:{1024*it}')
        a(f'ds_read_b64 {vr(Wd+8*it+4,2)}, v10 offset:{1024*it+16}')
    for it in range(4):
        w = Wd + 8 * it
        q = 64 + 12 * (it & 1)
        a(f's_waitcnt lgkmcnt({min(15, 6 - 2*it + 3*it)})' if False else f's_waitcnt lgkmcnt({(3-it)*2 + (3*it if it else 0) if False else 0})' if it == 0 else '; (already waited)')
        for k in range(4):
            a(f'v_alignbyte_b32 v{q+k}, v{w+k+1}, v{w+k}, 2')
        a(f'ds_write_b128 v10, {vr(q,4)} offset:{CP+1024*it}')
        for k in range(4):
            a(f'v_mov_b32 v{q+4+k}, v{w+k+1}')
        a(f'ds_write_b128 v10, {vr(q+4,4)} offset:{2*CP+1024*it}')
        for k in range(4):
            a(f'v_alignbyte_b32 v{q+8+k}, v{w+k+2}, v{w+k+1}, 2')
        a(f'ds_write_b128 v10, {vr(q+8,4)} offset:{3*CP+1024*it}')
    if opt.get('dump_k'):
        a('s_waitcnt lgkmcnt(0)')
        a(f's_mul_i32 s{sT}, s{sD}, 17408')
        a(f's_add_u32 s{sT}, s{sT}, {WS_DBG}')
        a(f'v_lshlrev_b32 v11, 4, v{vL}')
        for it in range(17):
            a(f'ds_read_b128 v[16:19], v10 offset:{1024*it}')
            a('s_waitcnt lgkmcnt(0)')
            a(f'buffer_store_dwordx4 v[16:19], v11, {srd(SRD_WS)}, s{sT} offen')
            a(f's_add_u32 s{sT}, s{sT}, 1024')
        a('s_waitcnt vmcnt(0)')
    stamp(a, 2, 52)
    a(f's_lshr_b32 s{sT}, s{sD}, 6')
    a(f's_lshl_b32 s{sT}, s{sT}, 7')
    a(f's_add_u32 s{sT}, s{sT}, {WS_FU}')
    a(f'v_lshlrev_b32 v11, 2, v6')
    poll(a, 'L_pu', [(11, f's{sT}')], 12, 89)
    stamp(a, 3, 52)
    a(f's_lshl_b32 s{sT}, s{sD}, 12')
    a(f's_add_u32 s{sT2}, s{sT}, {WS_UT}')
    a(f'v_lshlrev_b32 v11, 4, v{vL}')
    for it in range(4):
        a(f'buffer_load_dwordx4 {vr(32+4*it,4)}, v11, {srd(SRD_WS)}, s{sT2} offen offset:{1024*it} sc1')
    vKA, vUB = 4, 5
    a(f'v_and_b32 v12, 15, v{vL}')
    a(f'v_lshrrev_b32 v13, 4, v{vL}')
    a('v_sub_u32 v14, 3, v12')
    a('v_and_b32 v14, 3, v14')
    a(f'v_mul_u32_u24 v{vKA}, {CP}, v14')
    a('v_add_u32 v15, v12, v14')
    a('v_sub_u32 v15, 2031, v15')
    a('v_lshl_add_u32 v15, v13, 3, v15')
    a(f'v_lshl_add_u32 v{vKA}, v15, 1, v{vKA}')
    a(f'v_subrev_u32 v{vKA}, {512*7}, v{vKA}')
    a(f'v_add_u32 v{vKA}, s{sLB}, v{vKA}')
    a(f'v_lshlrev_b32 v{vUB}, 5, v12')
    a(f'v_lshl_add_u32 v{vUB}, v13, 4, v{vUB}')
    a(f'v_add_u32 v{vUB}, {UOFF+448}, v{vUB}')
    a(f'v_add_u32 v{vUB}, s{sLB}, v{vUB}')
    a('v_lshlrev_b32 v6, 5, v12')
    a('v_lshl_add_u32 v6, v13, 3, v6')
    a(f'v_add_u32 v6, {UOFF+480}, v6')
    a(f'v_add_u32 v6, s{sLB}, v6')
    a('v_lshlrev_b32 v7, 5, v12')
    a('v_lshrrev_b32 v15, 1, v13')
    a('v_lshl_add_u32 v7, v15, 4, v7')
    a('v_and_b32 v15, 1, v13')
    a('v_lshl_add_u32 v7, v15, 9, v7')
    ACC = 64
    for i in range(32):
        a(f'v_mov_b32 v{ACC+i}, 0')
    for it in range(4):
        a(f's_waitcnt vmcnt({3-it})')
        a(f'ds_write_b128 v10, {vr(32+4*it,4)} offset:{UOFF+480+1024*it}')
    if opt.get('cg', 1) and not opt.get('no_gemm'):
        a('s_lshl_b32 s92, s2, 2')
        a(f's_add_u32 s92, s92, {WS_FS-1024}')
        wait_word(a, 'L_cg', 92, 4)
    FA = [96, 160]
    def loads(s):
        L = []
        for g in range(8):
            L.append(f'ds_read_b64 {vr(FA[s]+4*g,2)}, v{vKA} offset:{512*(7-g)}')
            L.append(f'ds_read_b64 {vr(FA[s]+4*g+2,2)}, v{vKA} offset:{512*(7-g)+8}')
            L.append(f'ds_read_b128 {vr(FA[s]+32+4*g,4)}, v{vUB} offset:{512*g}')
        return L
    stamp(a, 4, 52)
    for l in loads(0): a(l)
    a(f's_mov_b32 s{sCnt}, 4')
    a.lab('L_conv')
    for s in range(2):
        a(f'v_subrev_u32 v{vKA}, 64, v{vKA}')
        a(f'v_subrev_u32 v{vUB}, 64, v{vUB}')
        a('s_waitcnt lgkmcnt(0)')
        nxt = loads(1 - s)
        pairs = [(g, i) for tot in range(8) for g in range(tot + 1) for i in [tot - g]]
        pairs = sorted(pairs, key=lambda p: (p[0], p[1]))
        k = 0
        for idx, (g, i) in enumerate(pairs):
            jt = g + i
            a(f'v_mfma_f32_16x16x32_bf16 {vr(ACC+4*jt,4)}, {vr(FA[s]+4*g,4)}, {vr(FA[s]+32+4*i,4)}, {vr(ACC+4*jt,4)}')
            if k < len(nxt) and idx >= 2:
                a(nxt[k]); k += 1
        while k < len(nxt):
            a(nxt[k]); k += 1
    a(f's_sub_u32 s{sCnt}, s{sCnt}, 1')
    a(f's_cmp_lg_u32 s{sCnt}, 0')
    a('s_cbranch_scc1 L_conv')
    a('s_waitcnt lgkmcnt(0)')
    stamp(a, 5, 52)
    UU = 32
    for jt in range(8):
        a(f'ds_read_b64 {vr(UU+2*jt,2)}, v6 offset:{512*jt}')
    a(f's_add_u32 s{sT2}, s{sT}, {WS_AT}')
    a('s_waitcnt lgkmcnt(0)')
    RES = 96
    for jt in range(8):
        c = ACC + 4 * jt
        t = 112 + 8 * (jt & 1)
        a(f'v_cvt_pk_bf16_f32 v{t}, v{c}, v{c+1}')
        a(f'v_cvt_pk_bf16_f32 v{t+1}, v{c+2}, v{c+3}')
        a(f'v_lshlrev_b32 v{c}, 16, v{UU+2*jt}')
        a(f'v_and_b32 v{c+1}, 0xffff0000, v{UU+2*jt}')
        a(f'v_lshlrev_b32 v{c+2}, 16, v{UU+2*jt+1}')
        a(f'v_and_b32 v{c+3}, 0xffff0000, v{UU+2*jt+1}')
        a(f'v_pk_mul_f32 {vr(c,2)}, {vr(c,2)}, {vr(28,2)} op_sel:[0,1] op_sel_hi:[1,1]')
        a(f'v_pk_mul_f32 {vr(c+2,2)}, {vr(c+2,2)}, {vr(28,2)} op_sel:[0,1] op_sel_hi:[1,1]')
        a(f'v_cvt_pk_bf16_f32 v{t+2}, v{c}, v{c+1}')
        a(f'v_cvt_pk_bf16_f32 v{t+3}, v{c+2}, v{c+3}')
        a(f'v_lshlrev_b32 v{c}, 16, v{t}')
        a(f'v_and_b32 v{c+1}, 0xffff0000, v{t}')
        a(f'v_lshlrev_b32 v{c+2}, 16, v{t+1}')
        a(f'v_and_b32 v{c+3}, 0xffff0000, v{t+1}')
        a(f'v_lshlrev_b32 v{t+4}, 16, v{t+2}')
        a(f'v_and_b32 v{t+5}, 0xffff0000, v{t+2}')
        a(f'v_lshlrev_b32 v{t+6}, 16, v{t+3}')
        a(f'v_and_b32 v{t+7}, 0xffff0000, v{t+3}')
        a(f'v_pk_add_f32 {vr(c,2)}, {vr(c,2)}, {vr(t+4,2)}')
        a(f'v_pk_add_f32 {vr(c+2,2)}, {vr(c+2,2)}, {vr(t+6,2)}')
        q = RES + 4 * (jt >> 1) + 2 * (jt & 1)
        a(f'v_cvt_pk_bf16_f32 v{q}, v{c}, v{c+1}')
        a(f'v_cvt_pk_bf16_f32 v{q+1}, v{c+2}, v{c+3}')
        if jt & 1:
            q0 = RES + 4 * (jt >> 1)
            a(f'v_permlane16_swap_b32 v{q0}, v{q0+2}')
            a(f'v_permlane16_swap_b32 v{q0+1}, v{q0+3}')
            a(f'buffer_store_dwordx4 {vr(q0,4)}, v7, {srd(SRD_WS)}, s{sT2} offen offset:{1024*(jt>>1)} sc1')
    a('s_waitcnt vmcnt(0)')
    a(f's_lshl_b32 s{sT}, s{sD}, 2')
    a(f's_add_u32 s{sT}, s{sT}, {WS_FA}')
    a(f'v_mov_b32 v8, s{S_TAG}')
    a('s_mov_b64 exec, 1')
    a(f'buffer_store_dword v8, off, {srd(SRD_WS)}, s{sT} sc1')
    stamp(a, 6, 52)
    stamp_dump(a, 8, 52)
    a('s_endpgm')

def rbcb(a, sidx, srb, scb, st):
    a(f's_and_b32 s{st}, s{sidx}, 7')
    a(f's_lshr_b32 s{srb}, s{st}, 1')
    a(f's_lshl_b32 s{srb}, s{srb}, 3')
    a(f's_lshr_b32 s{scb}, s{sidx}, 5')
    a(f's_add_u32 s{srb}, s{srb}, s{scb}')
    a(f's_and_b32 s{scb}, s{st}, 1')
    a(f's_lshl_b32 s{scb}, s{scb}, 2')
    a(f's_bfe_u32 s{st}, s{sidx}, 0x20003')
    a(f's_add_u32 s{scb}, s{scb}, s{st}')

def wait_word(a, name, saddr, sleep=8):
    a(f's_mov_b32 s89, {SPIN_MAX}')
    a.lab(f'{name}_spin')
    a(f'buffer_load_dword v8, off, {srd(SRD_WS)}, s{saddr} sc1')
    a('s_waitcnt vmcnt(0)')
    a(f'v_cmp_ne_u32 vcc, s{S_TAG}, v8')
    a(f's_cbranch_vccz {name}_done')
    a(f's_sleep {sleep}')
    a('s_sub_u32 s89, s89, 1')
    a('s_cmp_lg_u32 s89, 0')
    a(f's_cbranch_scc1 {name}_spin')
    a.lab(f'{name}_done')

def wait_fu(a, name, srb, st):
    a(f's_lshl_b32 s{st}, s{srb}, 2')
    a(f's_add_u32 s{st}, s{st}, {WS_FU}')
    wait_word(a, name, st)

def side_gate(a, opt):
    sK, sT = 82, 86
    vL = 1
    a(f's_sub_u32 s{sK}, s2, 256')
    rbcb(a, sK, 90, 91, 92)
    if opt.get('dly', 0):
        wait_fu(a, 'L_gw', 90, 92)
    a(f's_mul_i32 s{sT}, s{sK}, {8*1280}')
    a(f'v_lshrrev_b32 v2, 3, v{vL}')
    a(f'v_and_b32 v3, 7, v{vL}')
    a('v_lshlrev_b32 v4, 4, v3')
    a('v_mul_u32_u24 v5, 1280, v2')
    a('v_add_u32 v5, v5, v4')
    a(f'v_add_u32 v5, s{sT}, v5')
    XR, WR = 16, 56
    for it in range(10):
        a(f'global_load_dwordx4 {vr(XR+4*it,4)}, v5, {sp(P_U)} offset:{128*it}')
        a(f'global_load_dwordx4 {vr(WR+4*it,4)}, v4, {sp(P_GW)} offset:{128*it}')
    a('v_mov_b32 v6, 0')
    a('v_mov_b32 v7, 0')
    for it in range(10):
        a(f's_waitcnt vmcnt({18-2*it})')
        for k in range(4):
            x, w = XR + 4 * it + k, WR + 4 * it + k
            a(f'v_lshlrev_b32 v8, 16, v{x}')
            a(f'v_and_b32 v9, 0xffff0000, v{x}')
            a(f'v_lshlrev_b32 v10, 16, v{w}')
            a(f'v_and_b32 v11, 0xffff0000, v{w}')
            a('v_pk_mul_f32 v[8:9], v[8:9], v[10:11]')
            a('v_cvt_pk_bf16_f32 v12, v8, v9')
            a('v_lshlrev_b32 v8, 16, v12')
            a('v_and_b32 v9, 0xffff0000, v12')
            a('v_pk_add_f32 v[6:7], v[6:7], v[8:9]')
    a('v_add_f32 v6, v6, v7')
    a('v_add_f32_dpp v6, v6, v6 quad_perm:[1,0,3,2] row_mask:0xf bank_mask:0xf')
    a('v_add_f32_dpp v6, v6, v6 quad_perm:[2,3,0,1] row_mask:0xf bank_mask:0xf')
    a('v_add_f32_dpp v6, v6, v6 row_half_mirror row_mask:0xf bank_mask:0xf')
    a('v_cvt_pk_bf16_f32 v6, v6, v6')
    a('v_lshlrev_b32 v6, 16, v6')
    a(f'v_mul_f32 v6, {hx(-LOG2E)}, v6')
    a('v_exp_f32 v6, v6')
    a('v_add_f32 v6, 1.0, v6')
    a('v_rcp_f32 v6, v6')
    a('v_cvt_pk_bf16_f32 v6, v6, v6')
    a('v_lshlrev_b32 v8, 16, v6')
    a('v_sub_f32 v9, 1.0, v8')
    a('v_cvt_pk_bf16_f32 v9, v9, v9')
    a('v_lshlrev_b32 v9, 16, v9')
    a(f's_lshl_b32 s{sT}, s{sK}, 6')
    a(f's_add_u32 s{sT}, s{sT}, {WS_G}')
    a('v_lshlrev_b32 v10, 3, v2')
    a('v_cmp_eq_u32 vcc, 0, v3')
    a('s_and_saveexec_b64 s[84:85], vcc')
    a(f'buffer_store_dwordx2 v[8:9], v10, {srd(SRD_WS)}, s{sT} offen sc1')
    a('s_waitcnt vmcnt(0)')
    a(f's_lshl_b32 s{sT}, s{sK}, 2')
    a(f's_add_u32 s{sT}, s{sT}, {WS_FG}')
    a(f'v_mov_b32 v8, s{S_TAG}')
    a('s_mov_b64 exec, 1')
    a(f'buffer_store_dword v8, off, {srd(SRD_WS)}, s{sT} sc1')
    pf = opt.get('pf', 0)
    if pf:
        a('s_mov_b64 exec, -1')
        mk_srd(a, SRD_WSP, P_WSP, 2048 * 2048 * 2)
        if opt.get('pft', 1):
            a('s_lshl_b32 s92, s90, 14')
            a('s_lshl_b32 s93, s91, 5')
            a('s_add_u32 s92, s92, s93')
            a(f's_add_u32 s92, s92, {WS_ST+8}')
            wait_word(a, 'L_gs', 92)
        a('s_lshl_b32 s92, s90, 18')
        a('s_and_b32 s93, s91, 3')
        a('s_lshl_b32 s93, s93, 16')
        a('s_add_u32 s92, s92, s93')
        a(f'v_lshlrev_b32 v2, {7 if pf == 128 else 6}, v{vL}')
        for i in range(65536 // (64 * pf)):
            a(f'buffer_load_dword v{10+i}, v2, {srd(SRD_WSP)}, s92 offen')
            a(f's_add_u32 s92, s92, {64*pf}')
    a('s_endpgm')

def side_retile(a, opt):
    vL = 1
    mk_srd(a, SRD_WOUT, P_WOUT, 768 * 640 * 2)
    if opt.get('dly', 0):
        a('s_and_b32 s90, s2, 31')
        wait_fu(a, 'L_rw', 90, 92)
    a('s_sub_u32 s82, s2, 384')
    a('s_lshl_b32 s82, s82, 1')
    a(f'v_lshrrev_b32 v2, 4, v{vL}')
    a('v_mul_u32_u24 v2, 10240, v2')
    a(f'v_and_b32 v3, 15, v{vL}')
    a('v_lshl_add_u32 v2, v3, 1, v2')
    a('v_add_u32 v3, 3840, v2')
    a('v_add_u32 v4, 7680, v2')
    a(f'v_lshlrev_b32 v5, 4, v{vL}')
    for un in range(2):
        a(f's_add_u32 s83, s82, {un}')
        a('s_mul_i32 s86, s83, 43691')
        a('s_lshr_b32 s86, s86, 20')
        a('s_mul_i32 s87, s86, 24')
        a('s_sub_u32 s87, s83, s87')
        a('s_mul_i32 s87, s87, 40960')
        a('s_mul_i32 s86, s86, 160')
        a(f's_add_u32 s{88+un}, s86, s87')
        for dl in range(5):
            for e in range(8):
                r = (48 if e & 1 else 8) + 20 * un + 4 * dl + (e >> 1)
                a(f'buffer_load_ushort v{r}, v{2 + e // 3}, {srd(SRD_WOUT)}, s{88+un} offen offset:{(e % 3) * 1280 + 32 * dl}')
    a('s_mul_i32 s86, s82, 5120')
    a(f's_add_u32 s86, s86, {WS_WO}')
    for un in range(2):
        a(f's_waitcnt vmcnt({40 if un == 0 else 5})')
        for dl in range(5):
            r = 8 + 20 * un + 4 * dl
            for k in range(4):
                a(f'v_lshl_or_b32 v{r+k}, v{r+k+40}, 16, v{r+k}')
            if dl == 4: a('s_add_u32 s86, s86, 4096')
            a(f'buffer_store_dwordx4 {vr(r,4)}, v5, {srd(SRD_WS)}, s86 offen offset:{1024*(dl%4)} sc1')
        a('s_add_u32 s86, s86, 1024')
    a('s_waitcnt vmcnt(0)')
    a('s_lshl_b32 s86, s82, 2')
    a(f's_add_u32 s86, s86, {WS_FW}')
    a(f'v_mov_b32 v8, s{S_TAG}')
    a(f'v_mov_b32 v9, s{S_TAG}')
    a('s_mov_b64 exec, 1')
    a(f'buffer_store_dwordx2 v[8:9], off, {srd(SRD_WS)}, s86 sc1')
    a('s_endpgm')

def side_keeper(a, opt):
    vL = 1
    a(f'v_lshlrev_b32 v2, 2, v{vL}')
    loads = [(2, WS_FZ + 256 * i) for i in range(4)] + [(2, WS_FA + 256 * i) for i in range(10)] + [(2, WS_FG + 256 * i) for i in range(4)]
    a(f's_mov_b32 s86, {WS_FZ}')
    a(f's_mov_b32 s87, {WS_FA}')
    a(f's_mov_b32 s88, {WS_FG}')
    a(f's_mov_b32 s90, {WS_FW}')
    L = [(2, f's86 offen offset:{256*i} ;') for i in range(4)]
    a(f's_mov_b32 s89, {SPIN_MAX}')
    a.lab('L_keep_spin')
    n = 0
    for base, cnt in (((86, 4), (87, 10), (88, 4), (90, 3)) if not opt.get('no_side') else ((86, 4),)):
        for i in range(cnt):
            a(f'buffer_load_dword v{8+n}, v2, {srd(SRD_WS)}, s{base} offen offset:{256*i} sc1'); n += 1
    a('s_waitcnt vmcnt(0)')
    a(f'v_cmp_ne_u32 vcc, s{S_TAG}, v8')
    for i in range(1, n):
        a(f'v_cmp_ne_u32 s[84:85], s{S_TAG}, v{8+i}')
        a('s_or_b64 vcc, vcc, s[84:85]')
    a('s_cbranch_vccz L_keep_done')
    a('s_sleep 16')
    a('s_sub_u32 s89, s89, 1')
    a('s_cmp_lg_u32 s89, 0')
    a('s_cbranch_scc1 L_keep_spin')
    a.lab('L_keep_done')
    a(f'v_mov_b32 v8, s{S_TAG}')
    a('s_mov_b64 exec, 1')
    a(f'buffer_store_dword v8, off, {srd(SRD_WS)}, 0 sc1')
    a('s_endpgm')

def build(opt):
    PROF['on'] = bool(opt.get('prof'))
    PROF['dbg'] = bool(opt.get('dbg'))
    a = Asm()
    a.raw(f'; @launch kernel={KNAME} grid=(512,1,1) block=(256,1,1) lds=81920' if not opt.get('plain') else '; @launch grid=(512,1,1) block=(256,1,1) lds=81920')
    a.raw('.amdgcn_target "amdgcn-amd-amdhsa--gfx950"')
    a.raw('.text')
    a.raw(f'.globl {KNAME}')
    a.raw('.p2align 8')
    a.raw(f'.type {KNAME},@function')
    a.lab(KNAME)
    a('s_cmp_ge_u32 s2, 512')
    a('s_cbranch_scc1 L_end')
    a('s_load_dwordx16 s[16:31], s[0:1], 0')
    a('s_load_dwordx16 s[32:47], s[0:1], 64')
    a('s_load_dwordx4 s[48:51], s[0:1], 128')
    a('v_and_b32 v1, 63, v0')
    a('v_lshrrev_b32 v2, 6, v0')
    a(f'v_readfirstlane_b32 s{S_W}, v2')
    a('s_waitcnt lgkmcnt(0)')
    mk_srd(a, SRD_WS, P_WS, WS_SIZE)
    a(f'buffer_load_dword v15, off, {srd(SRD_WS)}, 0 sc1')
    a('s_cmp_lt_u32 s2, 256')
    a('s_cbranch_scc1 L_gemm')
    if opt.get('no_side') == 1:
        a('s_cmp_eq_u32 s2, 511')
        a('s_cbranch_scc0 L_end')
        a(f's_cmp_eq_u32 s{S_W}, 2')
        a('s_cbranch_scc0 L_end')
    a('s_waitcnt vmcnt(0)')
    a(f'v_readfirstlane_b32 s{S_TAG}, v15')
    a(f's_add_u32 s{S_TAG}, s{S_TAG}, 1')
    a(f's_cmp_eq_u32 s{S_W}, 3')
    a('s_cbranch_scc1 L_gate')
    if opt.get('no_side') == 2:
        a('s_cmp_ge_u32 s2, 384')
        a('s_cbranch_scc0 L_end')
        a(f's_cmp_eq_u32 s{S_W}, 2')
        a('s_cbranch_scc0 L_end')
    a(f's_lshl_b32 s82, s{S_W}, 8')
    a('s_add_u32 s82, s82, s2')
    a('s_sub_u32 s82, s82, 256')
    a('s_cmp_lt_u32 s82, 640')
    a('s_cbranch_scc1 L_chan')
    a('s_cmp_eq_u32 s2, 511')
    a('s_cbranch_scc1 L_keep')
    a('s_cmp_lt_u32 s2, 480')
    a('s_cbranch_scc1 L_retile')
    a.lab('L_end')
    a('s_endpgm')
    a.lab('L_chan')
    side_channel(a, opt)
    a.lab('L_gate')
    side_gate(a, opt)
    a.lab('L_retile')
    side_retile(a, opt)
    a.lab('L_keep')
    side_keeper(a, opt)
    a.lab('L_gemm')
    if opt.get('no_gemm'):
        a('s_endpgm')
    else:
        import gen_gemm
        gen_gemm.gemm_role(a, opt)
    a.raw('.section .rodata,"a"')
    a.raw('.p2align 6')
    a.raw(f'.amdhsa_kernel {KNAME}')
    a.raw('  .amdhsa_next_free_vgpr 256')
    a.raw('  .amdhsa_next_free_sgpr 96')
    a.raw('  .amdhsa_accum_offset 256')
    a.raw('  .amdhsa_group_segment_fixed_size 0')
    a.raw('  .amdhsa_kernarg_size 144')
    a.raw('  .amdhsa_user_sgpr_count 2')
    a.raw('  .amdhsa_user_sgpr_kernarg_segment_ptr 1')
    a.raw('  .amdhsa_system_sgpr_workgroup_id_x 1')
    a.raw('.end_amdhsa_kernel')
    return a.text()

if __name__ == '__main__':
    opt = {}
    for x in sys.argv[2:]:
        k, _, v = x.partition('=')
        opt[k] = int(v) if v else 1
    import gen as _self
    open(sys.argv[1], 'w').write(_self.build(opt))
```

```python
import numpy as np
from gen import *
import gen as _g
_stamp0 = stamp
PST = {'start': None}
def stamp(a, i, base=18):
    if PST['start'] is not None and i not in (0, 15): return
    if PST.get('clk') and _g.PROF['on']:
        m = {1: 3, 2: 4, 9: 5, 10: 6, 0: 7, 15: 8}
        if i in (3, 4, 5, 6, 7, 8): return
        if i in m:
            a('s_memtime s[14:15]')
            a('s_waitcnt lgkmcnt(0)')
            a(f's_mov_b32 s{base+m[i]}, s14')
    _stamp0(a, i, base)
def sstamp(a, stage):
    if PST['start'] is None: return
    k = stage - PST['start']
    if 0 <= k < 14: _stamp0(a, 1 + k)

SLOT = 20480
BOFF = 8192
S_RB, S_CB, S_WI, S_WJ = 82, 83, 86, 87
S_KC, S_AO, S_BO, S_T, S_T2, S_CNT = 88, 89, 90, 91, 92, 93
S_ABASE, S_BBASE = 94, 95
S_M_A, S_M_B, S_M_C = 3, 4, 5
S_K1 = 6
S_ONE = 8
S_KC0 = 10
S_FZA = 11
S_TMP2 = 12
S_WOB = 76
S_ROT = 78
CTR = 19456
V_L = 1
V_AD = 2
V_BD = 4
V_AR = 7
V_BR = 11
V_UR, V_US = 13, 14
V_T = 16
ACC2, ACC1, WF, XF = 24, 48, 72, 96
t0, t1, t2, t3 = V_T, V_T + 1, V_T + 2, V_T + 3
ST, MM, RR, ZQ, BSP, K0V = 96, 112, 120, 128, 140, 142
LN = 3 * SLOT

class VM:
    def __init__(self): self.ops = []
    def issue(self, tag, n=1): self.ops += [tag] * n
    def n_after(self, tag):
        idx = max(i for i, t in enumerate(self.ops) if t == tag)
        return len(self.ops) - 1 - idx

def gelu2(a, cs, k0v, after):
    T = [V_T, V_T + 4]
    def both(f):
        for c, t in zip(cs, T): a(f(c, t))
    both(lambda c, t: f'v_cvt_pk_bf16_f32 v{t+2}, v{c}, v{c+1}')
    both(lambda c, t: f'v_lshlrev_b32 v{t}, 16, v{t+2}')
    both(lambda c, t: f'v_and_b32 v{t+1}, 0xffff0000, v{t+2}')
    both(lambda c, t: f'v_pk_mul_f32 {vr(t+2,2)}, {vr(t,2)}, {vr(t,2)}')
    both(lambda c, t: f'v_pk_fma_f32 {vr(t+2,2)}, {vr(t+2,2)}, {sp(S_K1)}, {vr(k0v,2)}')
    both(lambda c, t: f'v_pk_mul_f32 {vr(t+2,2)}, {vr(t+2,2)}, {vr(t,2)}')
    both(lambda c, t: f'v_exp_f32 v{t+2}, v{t+2}')
    both(lambda c, t: f'v_exp_f32 v{t+3}, v{t+3}')
    both(lambda c, t: f'v_pk_add_f32 {vr(t+2,2)}, {vr(t+2,2)}, {sp(S_ONE)}')
    both(lambda c, t: f'v_rcp_f32 v{t+2}, v{t+2}')
    both(lambda c, t: f'v_rcp_f32 v{t+3}, v{t+3}')
    both(lambda c, t: f'v_pk_mul_f32 {vr(t+2,2)}, {vr(t+2,2)}, {vr(t,2)}')
    steps = [after(c, t) for c, t in zip(cs, T)]
    for x, y in zip(*steps):
        a(x); a(y)

def gelu_packed(regs, k0v):
    T = [V_T, V_T + 4]
    L = []
    def both(f):
        for c, t in zip(regs, T): L.append(f(c, t))
    both(lambda c, t: f'v_lshlrev_b32 v{t}, 16, v{c}')
    both(lambda c, t: f'v_and_b32 v{t+1}, 0xffff0000, v{c}')
    both(lambda c, t: f'v_pk_mul_f32 {vr(t+2,2)}, {vr(t,2)}, {vr(t,2)}')
    both(lambda c, t: f'v_pk_fma_f32 {vr(t+2,2)}, {vr(t+2,2)}, {sp(S_K1)}, {vr(k0v,2)}')
    both(lambda c, t: f'v_pk_mul_f32 {vr(t+2,2)}, {vr(t+2,2)}, {vr(t,2)}')
    both(lambda c, t: f'v_exp_f32 v{t+2}, v{t+2}')
    both(lambda c, t: f'v_exp_f32 v{t+3}, v{t+3}')
    both(lambda c, t: f'v_pk_add_f32 {vr(t+2,2)}, {vr(t+2,2)}, {sp(S_ONE)}')
    both(lambda c, t: f'v_rcp_f32 v{t+2}, v{t+2}')
    both(lambda c, t: f'v_rcp_f32 v{t+3}, v{t+3}')
    both(lambda c, t: f'v_pk_mul_f32 {vr(t+2,2)}, {vr(t+2,2)}, {vr(t,2)}')
    both(lambda c, t: f'v_cvt_pk_bf16_f32 v{c}, v{t+2}, v{t+3}')
    return L

def flag_store(a, sreg, vtmp):
    a(f'v_mov_b32 v{vtmp}, s{S_TAG}')
    a(f's_mov_b64 {sp(S_TMP2)}, exec')
    a('s_mov_b64 exec, 1')
    a(f'buffer_store_dword v{vtmp}, off, {srd(SRD_WS)}, s{sreg} sc1')
    a(f's_mov_b64 exec, {sp(S_TMP2)}')

def gemm_role(a, opt):
    vm = VM()
    PST['start'] = opt.get('pst')
    PST['clk'] = opt.get('clk')
    stop = opt.get('stop', 99)
    LNS = opt.get('lns', 16)
    LDS_ = opt.get('lds', 15)
    FZS = opt.get('fzs', 1)
    c0 = np.sqrt(2 / np.pi)
    k0 = -2 * c0 * LOG2E; k1 = k0 * 0.044715
    a(f's_setprio {opt.get("prio", 2)}')
    stamp(a, 0)
    a(f's_and_b32 s{S_T}, s2, 7')
    a(f's_lshr_b32 s{S_T2}, s2, 3')
    a(f's_lshr_b32 s{S_RB}, s{S_T}, 1')
    a(f's_lshl_b32 s{S_RB}, s{S_RB}, 3')
    a(f's_lshr_b32 s{S_CNT}, s{S_T2}, 2')
    a(f's_add_u32 s{S_RB}, s{S_RB}, s{S_CNT}')
    a(f's_and_b32 s{S_CB}, s{S_T}, 1')
    a(f's_lshl_b32 s{S_CB}, s{S_CB}, 2')
    a(f's_and_b32 s{S_CNT}, s{S_T2}, 3')
    a(f's_add_u32 s{S_CB}, s{S_CB}, s{S_CNT}')
    a(f's_lshr_b32 s{S_WI}, s{S_W}, 1')
    a(f's_and_b32 s{S_WJ}, s{S_W}, 1')
    mk_srd(a, SRD_X, P_U, 2048 * 640 * 2)
    mk_srd(a, SRD_WIN, P_WIN, 640 * 1536 * 2)
    a(f's_mul_i32 s{S_KC}, s{S_CB}, 3')
    a(f's_add_u32 s{S_KC}, s{S_KC}, s{S_RB}')
    a(f's_mul_i32 s{S_T}, s{S_KC}, 205')
    a(f's_lshr_b32 s{S_T}, s{S_T}, 11')
    a(f's_mul_i32 s{S_T}, s{S_T}, 10')
    a(f's_sub_u32 s{S_KC}, s{S_KC}, s{S_T}')
    a(f's_mov_b32 s{S_KC0}, s{S_KC}')
    a(f's_lshl_b32 s{S_M_A}, s{S_W}, 11')
    a(f's_mul_i32 s{S_M_B}, s{S_W}, 3072')
    a(f's_add_u32 s{S_M_B}, s{S_M_B}, {BOFF}')
    a(f's_mul_i32 s{S_ABASE}, s{S_RB}, {64*1280}')
    a(f's_mul_i32 s{S_BBASE}, s{S_CB}, 192')
    a(f's_add_u32 s{S_BBASE}, s{S_BBASE}, 1536')
    def row_dma_offsets(pitch):
        a(f'v_lshrrev_b32 v{t0}, 3, v{V_L}')
        a(f'v_and_b32 v{t1}, 7, v{V_L}')
        a(f'v_bfe_u32 v{t2}, v{V_L}, 4, 1')
        a(f'v_xor_b32 v{t1}, v{t1}, v{t2}')
        a(f's_lshl_b32 s{S_T}, s{S_W}, 4')
        a(f'v_add_u32 v{t0}, s{S_T}, v{t0}')
        a(f'v_mul_u32_u24 v{t0}, {pitch}, v{t0}')
        a(f's_lshl_b32 s{S_T}, s{S_WJ}, 2')
        a(f'v_xor_b32 v{t1}, s{S_T}, v{t1}')
        a(f'v_lshl_add_u32 v{V_AD}, v{t1}, 4, v{t0}')
        a(f'v_xor_b32 v{t1}, 2, v{t1}')
        a(f'v_lshl_add_u32 v{V_AD+1}, v{t1}, 4, v{t0}')
        a(f'v_add_u32 v{V_AD+1}, {8*pitch-1024}, v{V_AD+1}')
    row_dma_offsets(1280)
    def run_units(units, track=True):
        for (lines, tag) in units:
            for l in lines: a(l)
            if track: vm.issue(tag, 1)
    def dma_p1_A(stage, kc=None):
        slot = (stage & 3) * SLOT
        return [([f's_lshl_b32 s{S_AO}, s{S_KC}, 7', f's_add_u32 s{S_AO}, s{S_AO}, s{S_ABASE}', f's_add_u32 m0, s{S_M_A}, {slot}',
                  f'buffer_load_dwordx4 v{V_AD}, {srd(SRD_X)}, s{S_AO} offen lds'], ('A', stage)),
                ([f'buffer_load_dwordx4 v{V_AD+1}, {srd(SRD_X)}, s{S_AO} offen offset:1024 lds'], ('A', stage))]
    def dma_p1_B(stage):
        slot = (stage & 3) * SLOT
        U = []
        pre = [f's_mul_i32 s{S_BO}, s{S_KC}, {64*3072}', f's_add_u32 s{S_BO}, s{S_BO}, s{S_BBASE}', f's_add_u32 m0, s{S_M_B}, {slot}', f's_add_u32 s{S_KC}, s{S_KC}, 1']
        for j in range(3):
            L = (pre if j == 0 else []) + [f'buffer_load_dwordx4 v{V_BD+j}, {srd(SRD_WIN)}, s{S_BO} offen offset:{1024*j} lds']
            if j == 2:
                L += [f's_cmp_eq_u32 s{S_KC}, 10', f's_cselect_b32 s{S_KC}, 0, s{S_KC}']
                if stage == 9: L += [f's_sub_u32 s{S_BBASE}, s{S_BBASE}, 1536']
            U.append((L, ('B', stage)))
        return U
    def dma_p1(stage): return (dma_p1_A(stage) if stage < 10 else []) + dma_p1_B(stage)
    vm.issue('epoch')
    run_units(dma_p1_A(0))
    a(f's_mul_i32 s{S_T}, s{S_W}, 192')
    for j in range(3):
        a(f'v_add_u32 v{t0}, s{S_T}, v{V_L}')
        if j: a(f'v_add_u32 v{t0}, {64*j}, v{t0}')
        a(f'v_mul_u32_u24 v{t1}, 43691, v{t0}')
        a(f'v_lshrrev_b32 v{t1}, 19, v{t1}')
        a(f'v_mul_u32_u24 v{t2}, 12, v{t1}')
        a(f'v_sub_u32 v{t0}, v{t0}, v{t2}')
        a(f'v_bfe_u32 v{t2}, v{t1}, 3, 1')
        a(f'v_mad_u32_u24 v{t0}, v{t2}, 6, v{t0}')
        a(f'v_subrev_u32 v{t2}, 12, v{t0}')
        a(f'v_min_u32 v{t0}, v{t0}, v{t2}')
        a(f'v_mul_u32_u24 v{t1}, 3072, v{t1}')
        a(f'v_lshl_add_u32 v{V_BD+j}, v{t0}, 4, v{t1}')
        if j: a(f'v_subrev_u32 v{V_BD+j}, {1024*j}, v{V_BD+j}')
    run_units(dma_p1_B(0))
    for s in range(1, 4): run_units(dma_p1(s))
    mk_srd(a, SRD_WSP, P_WSP, 2048 * 2048 * 2)
    mk_srd(a, SRD_OUT, P_OUT, 2048 * 640 * 2)
    PAT7 = ([-1, -1, 9, 9], [-1, 9, 9])
    PAT = {5: ([0, 2, 4], [1, 3]), 3: ([1, 4], [2]), 2: ([1], [2]), 0: ([], [])}
    if opt.get('pat') == 1: PAT = {5: ([9, 9, 9], [9, 9]), 3: ([9, 9], [9]), 2: ([9], [9]), 0: ([], [])}
    if opt.get('pat') == 2: PAT = {5: ([9, 9, 9, 9, 9], []), 3: ([9, 9, 9], []), 2: ([9, 9], []), 0: ([], [])}
    if opt.get('pat', 3) == 3: PAT = {5: ([-1, -1, 9], [-1, 9]), 3: ([-1, 9], [9]), 2: ([9], [9]), 0: ([], [])}
    def with_units(mf_lines, pos_units, track=True):
        for (p, u) in pos_units:
            if p < 0: run_units([u], track)
        for i, l in enumerate(mf_lines):
            a(l)
            for (p, u) in pos_units:
                if p == i: run_units([u], track)
        for (p, u) in pos_units:
            if p >= len(mf_lines): run_units([u], track)
    def split_units(U):
        first, second = PAT[len(U)] if len(U) in PAT else PAT7 if len(U) == 7 else ([-1, 9], [-1, 9])
        return list(zip(first, U[:len(first)])), list(zip(second, U[len(first):]))
    def lane_mq():
        a(f'v_and_b32 v{t0}, 15, v{V_L}')
        a(f'v_lshrrev_b32 v{t1}, 4, v{V_L}')
    lane_mq()
    a(f'v_lshrrev_b32 v{t2}, 2, v{t0}')
    a(f'v_lshlrev_b32 v{t3}, 3, v{t2}')
    a(f'v_and_b32 v{V_AR}, 3, v{t0}')
    a(f'v_add_u32 v{t3}, v{t3}, v{V_AR}')
    a(f's_lshl_b32 s{S_T}, s{S_WI}, 5')
    a(f'v_add_u32 v{t3}, s{S_T}, v{t3}')
    a(f'v_lshlrev_b32 v{t3}, 7, v{t3}')
    a(f'v_lshlrev_b32 v{t2}, 1, v{t2}')
    a(f'v_bfe_u32 v{V_AR}, v{t0}, 1, 1')
    a(f'v_or_b32 v{t2}, v{t2}, v{V_AR}')
    a(f'v_xor_b32 v{t2}, v{t2}, v{t1}')
    a(f'v_lshl_add_u32 v{V_AR}, v{t2}, 4, v{t3}')
    a(f'v_xor_b32 v{V_AR+1}, 64, v{V_AR}')
    a(f'v_add_u32 v{V_AR+2}, {2*SLOT}, v{V_AR}')
    a(f'v_add_u32 v{V_AR+3}, {2*SLOT}, v{V_AR+1}')
    a(f'v_lshrrev_b32 v{t2}, 2, v{t0}')
    a(f'v_lshl_add_u32 v{t2}, v{t1}, 3, v{t2}')
    a(f'v_mul_u32_u24 v{t2}, 192, v{t2}')
    a(f'v_and_b32 v{t3}, 1, v{t1}')
    a(f'v_xor_b32 v{t3}, s{S_WJ}, v{t3}')
    a(f'v_mul_u32_u24 v{t3}, 96, v{t3}')
    a(f'v_add_u32 v{t2}, v{t2}, v{t3}')
    a(f'v_and_b32 v{t3}, 3, v{V_L}')
    a(f'v_lshl_add_u32 v{V_BR}, v{t3}, 3, v{t2}')
    a(f'v_add_u32 v{V_BR}, {BOFF}, v{V_BR}')
    a(f'v_add_u32 v{V_BR+1}, {2*SLOT}, v{V_BR}')
    a(f'v_lshrrev_b32 v{t2}, 2, v{t0}')
    a(f'v_lshl_add_u32 v{t3}, v{t1}, 3, v{t2}')
    a(f'v_lshlrev_b32 v{V_UR}, 7, v{t3}')
    a(f'v_lshrrev_b32 v{t2}, 1, v{t2}')
    a(f'v_lshl_or_b32 v{t2}, v{t1}, 1, v{t2}')
    a(f'v_bfe_u32 v{t3}, v{V_L}, 1, 1')
    a(f's_lshl_b32 s{S_T}, s{S_W}, 1')
    a(f'v_add_u32 v{t3}, s{S_T}, v{t3}')
    a(f'v_xor_b32 v{t3}, v{t3}, v{t2}')
    a(f'v_lshl_add_u32 v{V_UR}, v{t3}, 4, v{V_UR}')
    a(f'v_and_b32 v{t3}, 1, v{V_L}')
    a(f'v_lshl_add_u32 v{V_UR}, v{t3}, 3, v{V_UR}')
    a(f's_lshl_b32 s{S_T}, s{S_W}, 4')
    a(f'v_add_u32 v{V_US}, s{S_T}, v{t0}')
    a(f'v_lshlrev_b32 v{V_US}, 12, v{V_US}')
    a(f'v_lshl_add_u32 v{V_US}, v{t1}, 4, v{V_US}')
    for i in range(24):
        a(f'v_mov_b32 v{ACC2+i}, 0')
    a(f's_mov_b32 s{S_K1}, {hx(k1)}')
    a(f's_mov_b32 s{S_K1+1}, {hx(k1)}')
    a(f's_mov_b32 s{S_ONE}, 1.0')
    a(f's_mov_b32 s{S_ONE+1}, 1.0')
    a(f's_waitcnt vmcnt({vm.n_after("epoch")})')
    a(f'v_readfirstlane_b32 s{S_TAG}, v15')
    a(f's_add_u32 s{S_TAG}, s{S_TAG}, 1')

    def ar(stage, ks): return V_AR + ks + (2 if (stage & 2) else 0)
    def so(stage): return (stage & 1) * SLOT
    def br(stage): return V_BR + (1 if (stage & 2) else 0)
    def reads_p1(stage, ks):
        n = 0
        if stage < 10:
            for tau in range(2):
                a(f'ds_read_b128 {vr(XF+16*stage+8*ks+4*tau,4)}, v{ar(stage,ks)} offset:{so(stage)+512*tau}'); n += 1
        for phi in range(3):
            for half in range(2):
                a(f'ds_read_b64_tr_b16 {vr(WF+12*ks+4*phi+2*half,2)}, v{br(stage)} offset:{so(stage)+6144*ks+768*half+32*phi}'); n += 1
        return n
    def mfma_p1(stage, ks):
        i = stage % 10
        L = []
        for tau in range(2):
            for phi in range(3):
                x = vr(XF + 16 * i + 8 * ks + 4 * tau, 4); w = vr(WF + 12 * ks + 4 * phi, 4)
                if stage < 10:
                    c = vr(ACC2 + 4 * (3 * tau + phi), 4)
                    L.append(f'v_mfma_f32_16x16x32_bf16 {c}, {x}, {w}, {c}')
                else:
                    c = vr(ACC1 + 4 * (2 * phi + tau), 4)
                    L.append(f'v_mfma_f32_16x16x32_bf16 {c}, {w}, {x}, {c}')
        return L
    def dma_p2_A(stage):
        slot = (stage & 3) * SLOT
        return [([f's_lshl_b32 s{S_AO}, s{S_KC}, 7', f's_add_u32 s{S_AO}, s{S_AO}, s{S_ABASE}', f's_add_u32 m0, s{S_M_A}, {slot}', f's_add_u32 s{S_KC}, s{S_KC}, 1',
                  f'buffer_load_dwordx4 v{V_AD}, {srd(SRD_WSP)}, s{S_AO} offen lds'], ('A', stage)),
                ([f'buffer_load_dwordx4 v{V_AD+1}, {srd(SRD_WSP)}, s{S_AO} offen offset:1024 lds', f's_and_b32 s{S_KC}, s{S_KC}, 31'], ('A', stage))]
    S_KZ = S_KC0
    def dma_p2_B(stage):
        slot = (stage & 3) * SLOT
        U = []
        for j in range(3):
            L = [f's_mul_i32 s{S_BO}, s{S_KZ}, 12288', f's_add_u32 s{S_BO}, s{S_BO}, s{S_BBASE}', f's_add_u32 m0, s{S_M_B}, {slot}', f's_add_u32 s{S_KZ}, s{S_KZ}, 1'] if j == 0 else []
            L += [f'buffer_load_dwordx4 v{V_BD}, {srd(SRD_WS)}, s{S_BO} offen offset:{1024*j} sc1 lds']
            if j == 2: L += [f's_and_b32 s{S_KZ}, s{S_KZ}, 31']
            U.append((L, ('B', stage)))
        return U
    def rot2(dst):
        a(f's_lshl_b32 s{dst}, s{S_CB}, 3')
        a(f's_add_u32 s{dst}, s{dst}, s{S_RB}')
        a(f's_and_b32 s{dst}, s{dst}, 31')
    def ut_chunk(extra):
        if extra:
            a(f's_add_u32 s{S_T}, s{S_KC0}, {extra}')
            a(f's_sub_u32 s{S_T2}, s{S_T}, 10')
            a(f's_min_u32 s{S_T}, s{S_T}, s{S_T2}')
        else:
            a(f's_mov_b32 s{S_T}, s{S_KC0}')
    V_A4 = 144
    def wsp_setup():
        a(f'v_lshrrev_b32 v{t0}, 3, v{V_L}')
        a(f'v_lshlrev_b32 v{t0}, 12, v{t0}')
        a(f'v_and_b32 v{t1}, 7, v{V_L}')
        a(f'v_bfe_u32 v{t2}, v{V_L}, 4, 1')
        a(f'v_xor_b32 v{t1}, v{t1}, v{t2}')
        for j in range(4):
            a(f'v_xor_b32 v{t2}, {2*j}, v{t1}')
            a(f'v_lshl_add_u32 v{VA4(j)}, v{t2}, 4, v{t0}')
            if j: a(f'v_add_u32 v{VA4(j)}, {8*j*4096-1024*j}, v{VA4(j)}')
        a(f's_lshl_b32 s{S_ABASE}, s{S_RB}, 18')
        a(f's_mul_i32 s{S_M_A}, s{S_W}, {SLOT}')
        rot2(S_KA)
        a(f's_add_u32 s{S_KA}, s{S_KA}, s{S_W}')
    def VA4(j): return (V_AD, V_AD + 1, V_UR + 0 if False else 15, 0)[j]
    S_KA = S_M_C
    def adma(par):
        U = []
        for gq in range(8):
            L = []
            if gq == 0:
                L += [f's_and_b32 s{S_KA}, s{S_KA}, 31', f's_lshl_b32 s{S_A2}, s{S_KA}, 7', f's_add_u32 s{S_A2}, s{S_A2}, s{S_ABASE}', f's_add_u32 s{S_KA}, s{S_KA}, 4']
            if gq == 4:
                L += [f's_add_u32 s{S_A2}, s{S_A2}, 131072']
            L += [f's_add_u32 m0, s{S_M_A}, {8192*par+4096*(gq>>2)}']
            L += [f'buffer_load_dwordx4 v{VA4(gq&3)}, {srd(SRD_WSP)}, s{S_A2} offen offset:{1024*(gq&3)} lds']
            U.append((L, ('A2', par)))
        return U
    S_A2 = 77
    U2 = 4
    UT = V_T
    pend = []
    a(f's_waitcnt vmcnt({vm.n_after(("B", 0))})')
    a('s_barrier')
    stamp(a, 1)
    reads_p1(0, 0)
    for s in range(20):
        if s == 10:
            stamp(a, 2)
            e1_z2(a, opt, vm, k0)
            stamp(a, 3)
        if s == LDS_:
            e2_loads(a, vm)
        if s == LNS:
            stamp(a, 4)
            e2_layernorm(a, opt, vm)
            stamp(a, 5)
        n1 = reads_p1(s, 1)
        ut = s in (0, U2)
        if ut:
            if s == U2:
                a(f's_cmp_ge_u32 s{S_CB}, 2')
                a('s_cbranch_scc1 L_ut2_skip')
            for h2 in range(2):
                for half in range(2):
                    a(f'ds_read_b64_tr_b16 {vr(UT+4*h2+2*half,2)}, v{V_UR} offset:{(s&3)*SLOT+4096*h2+512*half}')
            if s == U2:
                a.lab('L_ut2_skip')
        a(f's_waitcnt lgkmcnt({n1+4 if s == 0 else n1})')
        with_units(mfma_p1(s, 0), pend); pend = []
        if s < 19:
            n = vm.n_after(('B', s + 1))
            if s == LNS + FZS: n = min(n, vm.n_after('z'))
            a(f's_waitcnt vmcnt({n}) lgkmcnt(0)')
        else:
            a('s_waitcnt lgkmcnt(0)')
        a('s_barrier')
        sstamp(a, s)
        if ut:
            if s == U2:
                a(f's_cmp_ge_u32 s{S_CB}, 2')
                a('s_cbranch_scc1 L_us2_skip')
            ut_chunk(s)
            a(f's_lshl_b32 s{S_T}, s{S_T}, 18')
            a(f's_lshl_b32 s{S_T2}, s{S_RB}, 7')
            a(f's_add_u32 s{S_T}, s{S_T}, s{S_T2}')
            a(f's_add_u32 s{S_T}, s{S_T}, {WS_UT}')
            for h2 in range(2):
                a(f'buffer_store_dwordx4 {vr(UT+4*h2,4)}, v{V_US}, {srd(SRD_WS)}, s{S_T} offen offset:{64*h2} sc1')
            if s == U2:
                a.lab('L_us2_skip')
            else:
                vm.issue('ut0', 2)
        if s in (3, U2 + 3):
            a(f's_cmp_lg_u32 s{S_W}, 0')
            a(f's_cbranch_scc1 L_fu{s}_skip')
            if s == U2 + 3:
                a(f's_cmp_ge_u32 s{S_CB}, 2')
                a(f's_cbranch_scc1 L_fu{s}_skip')
            ut_chunk(s - 3)
            a(f's_lshl_b32 s{S_T}, s{S_T}, 5')
            a(f's_add_u32 s{S_T}, s{S_T}, s{S_RB}')
            a(f's_lshl_b32 s{S_T}, s{S_T}, 2')
            a(f's_add_u32 s{S_T}, s{S_T}, {WS_FU}')
            flag_store(a, S_T, V_T)
            a.lab(f'L_fu{s}_skip')
        if s == LNS + FZS:
            a(f's_cmp_lg_u32 s{S_W}, 0')
            a('s_cbranch_scc1 L_fz_skip')
            flag_store(a, S_FZA, V_T)
            a.lab('L_fz_skip')
            stamp(a, 6)
        if s + 4 < 20:
            U = dma_p1(s + 4)
        else:
            U = []
        if s == 12:
            wsp_setup()
        A0S = opt.get('a0s', LNS)
        if s in (A0S, A0S + 1):
            U = U + adma(0)[4 * (s - A0S): 4 * (s - A0S) + 4]
        now, pend = split_units(U)
        if s + 1 in (10, LNS, 20):
            now = now + [(99, u) for (_, u) in pend]; pend = []
        if s < 19:
            reads_p1(s + 1, 0)
        with_units(mfma_p1(s, 1), now)
    stamp(a, 7)
    run_units(adma(1))
    a(f's_lshl_b32 s{S_T}, s{S_CB}, 7')
    a(f's_add_u32 s{S_T}, s{S_T}, {WS_FZ}')
    V_PA = V_UR
    a(f'v_lshlrev_b32 v{V_PA}, 2, v{V_L}')
    a(f'v_add_u32 v{V_PA}, s{S_T}, v{V_PA}')
    if opt.get('no_side') == 1:
        a(f'v_subrev_u32 v{t0}, 128, v{V_PA}')
    else:
        a(f'v_subrev_u32 v{t0}, 32, v{V_L}')
        a(f'v_min_u32 v{t0}, 23, v{t0}')
        a(f's_mul_i32 s{S_T}, s{S_CB}, 24')
        a(f'v_add_u32 v{t0}, s{S_T}, v{t0}')
        a(f'v_lshlrev_b32 v{t0}, 2, v{t0}')
        a(f'v_add_u32 v{t0}, {WS_FW}, v{t0}')
    a(f'v_cmp_gt_u32 vcc, 32, v{V_L}')
    a(f'v_cndmask_b32 v{V_PA}, v{t0}, v{V_PA}, vcc')
    a(f'v_mov_b32 v{K0V}, {hx(k0)}')
    a(f'v_mov_b32 v{K0V+1}, {hx(k0)}')
    V_ZW = V_US
    lane_mq()
    a(f'v_lshrrev_b32 v{t2}, 2, v{t0}')
    a(f'v_lshlrev_b32 v{t2}, 3, v{t2}')
    a(f'v_and_b32 v{t3}, 3, v{t0}')
    a(f'v_add_u32 v{t2}, v{t2}, v{t3}')
    a(f'v_lshlrev_b32 v{t2}, 3, v{t2}')
    a(f'v_mul_u32_u24 v{t3}, {SLOT}, v{t1}')
    a(f'v_add_u32 v{t2}, v{t2}, v{t3}')
    a(f's_mul_i32 s{S_T}, s{S_WJ}, 1536')
    a(f's_lshl_b32 s{S_T2}, s{S_WI}, 8')
    a(f's_add_u32 s{S_T}, s{S_T}, s{S_T2}')
    a(f's_add_u32 s{S_T}, s{S_T}, 16384')
    a(f'v_add_u32 v{V_ZW}, s{S_T}, v{t2}')
    Z1Q = 128
    def z1_group(i):
        phi, tau = i >> 1, i & 1
        cs = [ACC1 + 4 * i, ACC1 + 4 * i + 2]
        a(f'v_cvt_pk_bf16_f32 v{Z1Q+2*i}, v{cs[0]}, v{cs[0]+1}')
        a(f'v_cvt_pk_bf16_f32 v{Z1Q+2*i+1}, v{cs[1]}, v{cs[1]+1}')
        a(f'ds_write_b64 v{V_ZW}, {vr(Z1Q+2*i,2)} offset:{512*phi+32*tau}')
    NG1 = 6
    a(f'v_mov_b32 v{t2}, {CTR}')
    a(f'v_mov_b32 v{t3}, 8')
    a(f'ds_write_b32 v{t2}, v{t3}')
    for i in range(NG1): z1_group(i)
    G2 = 24
    ZR = 144
    AF = 120
    Z1R = 240
    V_ZD, V_A2R = V_BD, V_AR
    a(f'v_and_b32 v{t0}, 31, v{V_L}')
    a(f'v_lshrrev_b32 v{t1}, 5, v{V_L}')
    a(f's_lshl_b32 s{S_T}, s{S_W}, 3')
    a(f'v_add_u32 v{t3}, s{S_T}, v{t0}')
    a(f'v_and_b32 v{t3}, 31, v{t3}')
    a(f'v_mul_u32_u24 v{t2}, 96, v{t1}')
    a(f'v_add_u32 v{t2}, v{t2}, v{t3}')
    a(f'v_lshlrev_b32 v{V_ZD}, 4, v{t2}')
    a(f'v_lshrrev_b32 v{t2}, 3, v{t0}')
    a(f'v_lshlrev_b32 v{t2}, 1, v{t2}')
    a(f'v_bfe_u32 v{t3}, v{t0}, 1, 1')
    a(f'v_or_b32 v{t2}, v{t2}, v{t3}')
    a(f'v_xor_b32 v{t2}, v{t2}, v{t1}')
    a(f'v_lshlrev_b32 v{t3}, 7, v{t0}')
    a(f'v_lshl_add_u32 v{t2}, v{t2}, 4, v{t3}')
    a(f'v_add_u32 v{V_A2R}, s{S_M_A}, v{t2}')
    for ks in range(1, 4):
        a(f'v_xor_b32 v{t3}, {32*ks}, v{t2}')
        a(f'v_add_u32 v{V_A2R+ks}, s{S_M_A}, v{t3}')
    V_ZR = V_BR
    a(f's_lshl_b32 s{S_T}, s{S_WJ}, 1')
    a(f'v_add_u32 v{t2}, s{S_T}, v{t1}')
    a(f'v_mul_u32_u24 v{t2}, {SLOT}, v{t2}')
    a(f'v_lshl_add_u32 v{t2}, v{t0}, 3, v{t2}')
    a(f's_lshl_b32 s{S_T}, s{S_WI}, 9')
    a(f's_add_u32 s{S_T}, s{S_T}, 16384')
    a(f'v_add_u32 v{V_ZR}, s{S_T}, v{t2}')
    a(f's_lshl_b32 s{S_T}, s{S_RB}, 7')
    a(f'v_lshlrev_b32 v{t2}, 1, v{t0}')
    a(f'v_add_u32 v{t2}, s{S_T}, v{t2}')
    BS2 = 252
    a(f'global_load_ushort v{BS2}, v{t2}, {sp(P_BSP)}')
    a(f'global_load_ushort v{BS2+1}, v{t2}, {sp(P_BSP)} offset:64')
    rot2(S_KZ)
    a(f's_add_u32 s{S_KZ}, s{S_KZ}, s{S_W}')
    a(f's_mul_i32 s{S_BBASE}, s{S_CB}, {32*12288}')
    a(f's_add_u32 s{S_BBASE}, s{S_BBASE}, {WS_Z}')
    a('s_waitcnt lgkmcnt(0)')
    poll1(a, 'L_pz', [V_PA], 16, S_CNT)
    stamp(a, 8)
    vm.ops = []
    def zld(par):
        U = []
        for ks in range(4):
            for ph in range(3):
                L = []
                if ks == 0 and ph == 0:
                    L += [f's_and_b32 s{S_KZ}, s{S_KZ}, 31', f's_mul_i32 s{S_BO}, s{S_KZ}, 12288', f's_add_u32 s{S_BO}, s{S_BO}, s{S_BBASE}', f's_add_u32 s{S_KZ}, s{S_KZ}, 4']
                elif ph == 0:
                    L += [f's_add_u32 s{S_BO}, s{S_BO}, 3072']
                L += [f'buffer_load_dwordx4 {vr(ZR+48*par+12*ks+4*ph,4)}, v{V_ZD}, {srd(SRD_WS)}, s{S_BO} offen offset:{512*ph} sc1']
                U.append((L, ('Z', par, ks)))
        return U
    run_units(zld(0))
    for i in range(NG1, 6): z1_group(i)
    for i in range(6):
        a(f'ds_read_b64 {vr(Z1R+2*i,2)}, v{V_ZR} offset:{1024*(i>>1)+256*(i&1)}')
    a(f's_cmp_lg_u32 s{S_W}, 3')
    a('s_cbranch_scc1 L_fs_skip')
    a(f's_lshl_b32 s{S_T}, s2, 2')
    a(f's_add_u32 s{S_T}, s{S_T}, {WS_FS}')
    flag_store(a, S_T, 18)
    a.lab('L_fs_skip')
    for i in range(96):
        a(f'v_mov_b32 v{G2+i}, 0')
    def ards(par, ks):
        f = AF + 8 * (ks & 1)
        for tp in range(2):
            a(f'ds_read_b128 {vr(f+4*tp,4)}, v{V_A2R+ks} offset:{8192*par+4096*tp}')
    def chunk(par, loads, wo=None, fill=()):
        U = []
        if loads == 'AZ': U = adma(1 - par) + zld(1 - par)
        if loads == 'Z': U = zld(1 - par)
        if wo: U = wo
        per = (len(U) + 3) // 4
        issued = 0
        for ks in range(4):
            n = 3 * (3 - ks) + issued
            a(f's_waitcnt vmcnt({n}) lgkmcnt(0)')
            if ks < 3:
                ards(par, ks + 1)
            mine = U[issued: issued + per]
            f = AF + 8 * (ks & 1)
            k = 0
            for tp in range(2):
                for ph in range(3):
                    c = vr(G2 + 16 * (2 * ph + tp), 16)
                    a(f'v_mfma_f32_32x32x16_bf16 {c}, {vr(ZR+48*par+12*ks+4*ph,4)}, {vr(f+4*tp,4)}, {c}')
                    if k < len(mine):
                        run_units([mine[k]], False); k += 1
                    for l in fill[6 * (6 * ks + 3 * tp + ph): 6 * (6 * ks + 3 * tp + ph) + 6]: a(l)
            while k < len(mine):
                run_units([mine[k]], False); k += 1
            issued += len(mine)
            if ks == 3 and loads:
                a('s_waitcnt vmcnt(12)')
                ards(1 - par, 0)
    V_L16 = V_BD + 1
    a(f'v_lshlrev_b32 v{V_L16}, 4, v{V_L}')
    a(f's_mul_i32 s{S_WOB}, s{S_CB}, {24*5120}')
    a(f's_mul_i32 s{S_T}, s{S_W}, {6*5120}')
    a(f's_add_u32 s{S_WOB}, s{S_WOB}, s{S_T}')
    a(f's_add_u32 s{S_WOB}, s{S_WOB}, {WS_WO}')
    V_RW = V_BD + 2
    a(f'v_add_u32 v{V_RW}, s{S_M_A}, v{V_L16}')
    V_RR = 12
    for d in range(1, 4):
        a(f's_sub_u32 s{S_T}, s{S_W}, {d}')
        a(f's_and_b32 s{S_T}, s{S_T}, 3')
        a(f's_mul_i32 s{S_T}, s{S_T}, {SLOT}')
        a(f's_add_u32 s{S_T}, s{S_T}, {6144*(d-1)}')
        a(f'v_add_u32 v{V_RR+d-1}, s{S_T}, v{V_L16}')
    rot2(S_ROT)
    V_CT, V_ONE, V_IX = 136, 137, 138
    a(f'v_mov_b32 v{V_CT}, {CTR}')
    a(f'v_mov_b32 v{V_ONE}, 1')
    a(f'v_mov_b32 v{V_IX}, s{S_W}')
    a(f'v_add_u32 v{V_IX}, 4, v{V_IX}')
    def grab():
        if not opt.get('dyn'):
            a(f'v_add_u32 v{V_IX}, 4, v{V_IX}')
            return
        a(f's_mov_b64 {sp(S_TMP2)}, exec')
        a('s_mov_b64 exec, 1')
        a(f'ds_add_rtn_u32 v{V_IX}, v{V_CT}, v{V_ONE}')
        a(f's_mov_b64 exec, {sp(S_TMP2)}')
    def take(par):
        a('s_waitcnt lgkmcnt(0)')
        a(f'v_readfirstlane_b32 s{S_T}, v{V_IX}')
        a(f's_cmp_ge_u32 s{S_T}, 32')
        a(f's_cbranch_scc1 L_p2_tail{par}')
        a(f's_add_u32 s{S_KA}, s{S_T}, s{S_ROT}')
        a(f's_mov_b32 s{S_KZ}, s{S_KA}')
        grab()
    stamp(a, 9)
    a('s_waitcnt lgkmcnt(0)')
    ards(0, 0)
    grab()
    GL = []
    for i in range(6): GL += gelu_packed([Z1R + 2 * i, Z1R + 2 * i + 1], K0V)
    assert len(GL) == 144
    a('s_waitcnt vmcnt(12)')
    chunk(0, 'Z', fill=GL)
    a.lab('L_p2_loop')
    take(1)
    chunk(1, 'AZ')
    take(0)
    chunk(0, 'AZ')
    a('s_branch L_p2_loop')
    WOS = [144, 164, 192, 212]
    def wold(kk):
        U = []
        for dl in range(5):
            L = [f's_add_u32 s{S_BO}, s{S_WOB}, {5120*kk+(4096 if dl == 4 else 0)}'] if dl in (0, 4) else []
            L += [f'buffer_load_dwordx4 {vr(WOS[kk&3]+4*dl,4)}, v{V_L16}, {srd(SRD_WS)}, s{S_BO} offen offset:{1024*(dl&3)} sc1']
            U.append((L, ('WO', kk)))
        return U
    for par in (1, 0):
        a.lab(f'L_p2_tail{par}')
        other = ZR + 48 * (1 - par)
        AFR = {0: 120, 1: 128, 2: other + 40, 3: 16}
        for ks in range(1, 4):
            for tp in range(2):
                a(f'ds_read_b128 {vr(AFR[ks]+4*tp,4)}, v{V_A2R+ks} offset:{8192*par+4096*tp}')
        a('s_waitcnt vmcnt(0) lgkmcnt(0)')
        early, late = ((0, 1), (2, 3)) if par == 1 else ((2, 3), (0, 1))
        WOU = wold(early[0]) + wold(early[1])
        k = 0
        def wr(i):
            for d in range(1, 4):
                a(f'ds_write_b128 v{V_RW}, {vr(G2+16*i+4*d,4)} offset:{6144*(d-1)+1024*i}')
        for i in range(6):
            ph, tp = i >> 1, i & 1
            c = vr(G2 + 16 * i, 16)
            for ks in range(4):
                a(f'v_mfma_f32_32x32x16_bf16 {c}, {vr(ZR+48*par+12*ks+4*ph,4)}, {vr(AFR[ks]+4*tp,4)}, {c}')
                if ks in (0, 2) and k < len(WOU):
                    run_units([WOU[k]], False); k += 1
                if ks == 2 and i > 0: wr(i - 1)
        wr(5)
        run_units(wold(late[0]) + wold(late[1]), False)
        if par == 1:
            a('s_branch L_red_done')
    a.lab('L_red_done')
    stamp(a, 10)
    vm.ops = []
    a('s_waitcnt lgkmcnt(0)')
    a('s_barrier')
    for i in range(6):
        for j in range(3):
            a(f'ds_read_b128 {vr(G2+16*i+4+4*j,4)}, v{V_RR+j} offset:{1024*i}')
    a(f'v_lshlrev_b32 v{BS2}, 16, v{BS2}')
    a(f'v_lshlrev_b32 v{BS2+1}, 16, v{BS2+1}')
    a(f's_mul_i32 s{S_ABASE}, s{S_RB}, 98304')
    a(f's_add_u32 s{S_ABASE}, s{S_ABASE}, {WS_P}')
    a(f's_mul_i32 s{S_T}, s{S_CB}, 12288')
    a(f's_add_u32 s{S_T}, s{S_T}, s{S_ABASE}')
    a(f's_lshl_b32 s{S_T2}, s{S_W}, 10')
    a(f's_add_u32 s{S_T}, s{S_T}, s{S_T2}')
    PQ = 120
    for ph in range(3):
        for tp in range(2):
            i = 2 * ph + tp
            a(f's_waitcnt lgkmcnt({min(15, 3*(5-i))})')
            T = [V_T, V_T + 4]
            def both(f):
                for hh in range(2): a(f(G2 + 16 * i + 2 * hh, T[hh], hh))
            both(lambda c, t, hh: f'v_pk_add_f32 {vr(c,2)}, {vr(c,2)}, {vr(c+4,2)}')
            both(lambda c, t, hh: f'v_pk_add_f32 {vr(c+8,2)}, {vr(c+8,2)}, {vr(c+12,2)}')
            both(lambda c, t, hh: f'v_pk_add_f32 {vr(c,2)}, {vr(c,2)}, {vr(c+8,2)}')
            both(lambda c, t, hh: f'v_cvt_pk_bf16_f32 v{t+2}, v{c}, v{c+1}')
            both(lambda c, t, hh: f'v_lshlrev_b32 v{t}, 16, v{t+2}')
            both(lambda c, t, hh: f'v_and_b32 v{t+1}, 0xffff0000, v{t+2}')
            both(lambda c, t, hh: f'v_pk_add_f32 {vr(t,2)}, {vr(t,2)}, {vr(BS2,2)} op_sel:[0,{tp}] op_sel_hi:[1,{tp}]')
            both(lambda c, t, hh: f'v_cvt_pk_bf16_f32 v{t+2}, v{t}, v{t+1}')
            both(lambda c, t, hh: f'v_lshlrev_b32 v{c}, 16, v{Z1R+2*i+hh}')
            both(lambda c, t, hh: f'v_and_b32 v{c+1}, 0xffff0000, v{Z1R+2*i+hh}')
            both(lambda c, t, hh: f'v_lshlrev_b32 v{t}, 16, v{t+2}')
            both(lambda c, t, hh: f'v_and_b32 v{t+1}, 0xffff0000, v{t+2}')
            both(lambda c, t, hh: f'v_pk_mul_f32 {vr(t,2)}, {vr(t,2)}, {vr(c,2)}')
            both(lambda c, t, hh: f'v_cvt_pk_bf16_f32 v{PQ+4*ph+2*tp+hh}, v{t}, v{t+1}')
        q = PQ + 4 * ph
        a(f'v_permlane32_swap_b32 v{q}, v{q+2}')
        a(f'v_permlane32_swap_b32 v{q+1}, v{q+3}')
        a(f'buffer_store_dwordx4 {vr(q,4)}, v{V_L16}, {srd(SRD_WS)}, s{S_T} offen sc1')
        if ph < 2: a(f's_add_u32 s{S_T}, s{S_T}, 4096')
    a('s_barrier')
    a.fence(2)
    lane_mq()
    V_PP = 7
    a(f'v_and_b32 v{V_PP}, 7, v{V_L}')
    a(f'v_lshlrev_b32 v{V_PP}, 2, v{V_PP}')
    a(f's_lshl_b32 s{S_T}, s{S_RB}, 7')
    a(f's_add_u32 s{S_T}, s{S_T}, {WS_FP}')
    a(f's_lshl_b32 s{S_T2}, s{S_W}, 5')
    a(f's_add_u32 s{S_T2}, s{S_T2}, s{S_T}')
    V_PL0, V_PL1 = 8, 9
    a(f's_lshl_b32 s{S_AO}, s{S_RB}, 5')
    a(f's_add_u32 s{S_AO}, s{S_AO}, {WS_FG}')
    a(f'v_add_u32 v{V_PL0}, s{S_AO}, v{V_PP}')
    a(f'v_add_u32 v{V_PP}, s{S_T2}, v{V_PP}')
    a(f's_lshl_b32 s{S_T2}, s{S_CB}, 4')
    a(f's_add_u32 s{S_T}, s{S_T}, s{S_T2}')
    a(f's_lshl_b32 s{S_T2}, s{S_W}, 2')
    a(f's_add_u32 s{S_T}, s{S_T}, s{S_T2}')
    a(f's_mul_i32 s{S_T2}, s{S_CB}, 320')
    a(f's_add_u32 s{S_T2}, s{S_T2}, {WS_FA}')
    a(f'v_lshlrev_b32 v{V_PL1}, 2, v{V_L}')
    a(f'v_add_u32 v{V_PL1}, s{S_T2}, v{V_PL1}')
    a(f'v_lshlrev_b32 v{t3}, 2, v{t0}')
    a(f'v_add_u32 v{t3}, s{S_T2}, v{t3}')
    a(f'v_add_u32 v{t3}, 256, v{t3}')
    a(f'v_bfe_u32 v{t2}, v{V_L}, 4, 1')
    a(f'v_cmp_eq_u32 vcc, 1, v{t2}')
    a(f'v_cndmask_b32 v{V_PL0}, v{V_PL0}, v{t3}, vcc')
    V_AW, V_O1, V_O2, V_ATR, V_AG, V_PF = 248, 10, 11, 12, 250, 2
    ATR, GT = [136, 140, 184], 188
    a(f's_lshl_b32 s{S_AO}, s{S_W}, 7')
    a(f'v_add_u32 v{t2}, s{S_AO}, v{V_L}')
    a(f's_lshl_b32 s{S_AO}, s{S_WJ}, 6')
    a(f's_add_u32 s{S_AO}, s{S_AO}, 512')
    a(f'v_add_u32 v{t3}, s{S_AO}, v{V_L}')
    ATL = 61440
    a(f'v_lshlrev_b32 v{V_AW}, 4, v{t2}')
    a(f'v_lshlrev_b32 v{V_AW+1}, 4, v{t3}')
    a(f'v_add_u32 v{V_AW}, {ATL}, v{V_AW}')
    a(f'v_add_u32 v{V_AW+1}, {ATL}, v{V_AW+1}')
    for k, tt in enumerate((t2, t3)):
        a(f'v_lshrrev_b32 v{V_AG+k}, 3, v{tt}')
        a(f'v_and_b32 v{tt}, 7, v{tt}')
        a(f'v_lshlrev_b32 v{V_AG+k}, 12, v{V_AG+k}')
        a(f'v_lshl_add_u32 v{V_AG+k}, v{tt}, 4, v{V_AG+k}')
    a(f's_lshl_b32 s{S_AO}, s{S_RB}, 6')
    a(f's_lshl_b32 s{S_BO}, s{S_W}, 4')
    a(f's_add_u32 s{S_AO}, s{S_AO}, s{S_BO}')
    a(f'v_add_u32 v{t2}, s{S_AO}, v{t0}')
    a(f'v_lshlrev_b32 v{V_AG+2}, 3, v{t2}')
    a(f'v_add_u32 v{V_AG+2}, {WS_G}, v{V_AG+2}')
    a(f'v_mul_u32_u24 v{t2}, 1280, v{t2}')
    a(f's_mul_i32 s{S_AO}, s{S_CB}, 160')
    a(f'v_add_u32 v{t2}, s{S_AO}, v{t2}')
    a(f'v_and_b32 v{t3}, 1, v{t1}')
    a(f'v_lshl_add_u32 v{V_O1}, v{t3}, 5, v{t2}')
    a(f'v_lshrrev_b32 v{t3}, 1, v{t1}')
    a(f'v_lshl_add_u32 v{V_O1}, v{t3}, 4, v{V_O1}')
    a(f'v_lshl_add_u32 v{V_O2}, v{t1}, 3, v{t2}')
    a(f'v_add_u32 v{V_O2}, 128, v{V_O2}')
    a(f'v_lshl_add_u32 v{t2}, v{t1}, 6, v{t0}')
    a(f'v_lshlrev_b32 v{t2}, 4, v{t2}')
    VPF = [2, 3, 4, 6]
    for tt in range(4):
        a(f's_add_u32 s{S_AO}, s{S_W}, {tt}')
        a(f's_and_b32 s{S_AO}, s{S_AO}, 3')
        a(f's_lshl_b32 s{S_AO}, s{S_AO}, 8')
        a(f'v_add_u32 v{VPF[tt]}, s{S_AO}, v{t2}')
    a(f's_mul_i32 s{S_AO}, s{S_W}, 24576')
    a(f's_add_u32 s{S_ABASE}, s{S_ABASE}, s{S_AO}')
    a(f'v_lshrrev_b32 v{t2}, 2, v{t0}')
    a(f'v_lshl_add_u32 v{t2}, v{t1}, 2, v{t2}')
    a(f'v_lshlrev_b32 v{t2}, 7, v{t2}')
    a(f'v_and_b32 v{t3}, 3, v{V_L}')
    a(f'v_lshl_add_u32 v{t2}, v{t3}, 3, v{t2}')
    a(f's_lshl_b32 s{S_AO}, s{S_W}, 5')
    a(f's_add_u32 s{S_AO}, s{S_AO}, {ATL}')
    a(f'v_add_u32 v{V_ATR}, s{S_AO}, v{t2}')
    O3 = 24
    a('s_waitcnt vmcnt(0)')
    flag_store(a, S_T, V_T)
    stamp(a, 11)
    for i in range(80):
        a(f'v_mov_b32 v{O3+i}, 0')
    if not opt.get('no_side'):
        a(f'buffer_load_dword v20, v{V_PL0}, {srd(SRD_WS)}, 0 offen sc1')
        a(f'buffer_load_dword v21, v{V_PL1}, {srd(SRD_WS)}, 0 offen sc1')
    a(f's_mov_b32 s{S_CNT}, {SPIN_MAX}')
    a(f'buffer_load_dword v16, v{V_PP}, {srd(SRD_WS)}, 0 offen sc1')
    a.lab('L_pp_spin')
    a(f'buffer_load_dword v17, v{V_PP}, {srd(SRD_WS)}, 0 offen sc1')
    a('s_waitcnt vmcnt(1)')
    a(f'v_cmp_ne_u32 vcc, s{S_TAG}, v16')
    a('s_cbranch_vccz L_pp_done')
    a(f'buffer_load_dword v16, v{V_PP}, {srd(SRD_WS)}, 0 offen sc1')
    a('s_waitcnt vmcnt(1)')
    a(f'v_cmp_ne_u32 vcc, s{S_TAG}, v17')
    a('s_cbranch_vccz L_pp_done')
    a(f's_sub_u32 s{S_CNT}, s{S_CNT}, 1')
    a(f's_cmp_lg_u32 s{S_CNT}, 0')
    a('s_cbranch_scc1 L_pp_spin')
    a.lab('L_pp_done')
    stamp(a, 12)
    vm.ops = []
    NPS = 3
    PFS = [104, 120, 232]
    V_AG2 = [V_AG, V_AG + 1, V_AG + 2]
    def pld(kk):
        U = []
        for tt in range(4):
            L = [f's_add_u32 s{S_AO}, s{S_ABASE}, {4096*kk}'] if tt == 0 else []
            L += [f'buffer_load_dwordx4 {vr(PFS[kk%NPS]+4*tt,4)}, v{VPF[tt]}, {srd(SRD_WS)}, s{S_AO} offen sc1']
            U.append((L, ('P', kk)))
        return U
    for kk in range(3): run_units(pld(kk))
    if not opt.get('no_side'):
        a(f'v_cmp_ne_u32 vcc, s{S_TAG}, v20')
        a(f'v_cmp_ne_u32 s[84:85], s{S_TAG}, v21')
        a('s_or_b64 vcc, vcc, s[84:85]')
        a('s_cbranch_vccnz L_pa_late')
    def at_loads():
        a(f's_mul_i32 s{S_T}, s{S_CB}, {80*4096}')
        a(f's_lshl_b32 s{S_T2}, s{S_RB}, 7')
        a(f's_add_u32 s{S_T}, s{S_T}, s{S_T2}')
        a(f's_add_u32 s{S_T}, s{S_T}, {WS_AT}')
        a(f's_add_u32 s{S_T2}, s{S_T}, {8*4096}')
        a(f'buffer_load_dwordx4 {vr(ATR[0],4)}, v{V_AG2[0]}, {srd(SRD_WS)}, s{S_T} offen sc1')
        a(f'buffer_load_dwordx4 {vr(ATR[1],4)}, v{V_AG2[0]}, {srd(SRD_WS)}, s{S_T2} offen sc1')
        a(f'buffer_load_dwordx4 {vr(ATR[2],4)}, v{V_AG2[1]}, {srd(SRD_WS)}, s{S_T} offen sc1')
        a(f'buffer_load_dwordx2 {vr(GT,2)}, v{V_AG2[2]}, {srd(SRD_WS)}, 0 offen sc1')
    at_loads()
    vm.issue('at', 4)
    a(f's_mov_b32 s{S_KZ}, 0')
    if not opt.get('no_side'):
        a('s_branch L_pa_go')
        a.lab('L_pa_late')
        for k in range(4):
            a(f'buffer_load_dword v22, off, {srd(SRD_WS)}, 0')
        a(f's_mov_b32 s{S_KZ}, 1')
        a.lab('L_pa_go')
    stamp(a, 13)
    V_W3, V_R3 = 13, 14
    VR3 = [14, 15, 0]
    a(f's_mul_i32 s{S_T}, s{S_W}, 15360')
    a(f'v_add_u32 v{V_W3}, s{S_T}, v{V_L16}')
    for d in range(1, 4):
        a(f's_sub_u32 s{S_T}, s{S_W}, {d}')
        a(f's_and_b32 s{S_T}, s{S_T}, 3')
        a(f's_mul_i32 s{S_T}, s{S_T}, 15360')
        a(f's_add_u32 s{S_T}, s{S_T}, {5120*(d-1)}')
        a(f'v_add_u32 v{VR3[d-1]}, s{S_T}, v{V_L16}')
    def wr3(tt):
        for dl in range(5):
            a(f'ds_write_b128 v{V_W3}, {vr(O3+4*(5*tt+dl),4)} offset:{5120*(tt-1)+1024*dl}')
    for kk in range(6):
        need = vm.n_after(('P', kk))
        if kk >= 4: need = min(need, vm.n_after(('WO', kk)))
        a(f's_waitcnt vmcnt({need})')
        for tt in ((0, 1, 2, 3) if kk < 5 else (1, 2, 3, 0)):
            for dl in range(5):
                c = vr(O3 + 4 * (5 * tt + dl), 4)
                a(f'v_mfma_f32_16x16x32_bf16 {c}, {vr(WOS[kk&3]+4*dl,4)}, {vr(PFS[kk%NPS]+4*tt,4)}, {c}')
            if kk == 5 and tt != 1: wr3((tt - 1) & 3)
        if kk + 3 < 6: run_units(pld(kk + 3))
        if kk + 4 < 6: run_units(wold(kk + 4))
    stamp(a, 14)
    if not opt.get('no_side'):
        a(f's_cmp_eq_u32 s{S_KZ}, 0')
        a('s_cbranch_scc1 L_pa_ok')
        poll(a, 'L_pa', [(V_PL0, '0'), (V_PL1, '0')], 20, S_CNT)
        at_loads()
        a.lab('L_pa_ok')
    a('s_waitcnt vmcnt(0)')
    a(f'ds_write_b128 v{V_AW}, {vr(ATR[0],4)}')
    a(f'ds_write_b128 v{V_AW}, {vr(ATR[1],4)} offset:1024')
    a(f'ds_write_b128 v{V_AW+1}, {vr(ATR[2],4)}')
    a('s_waitcnt lgkmcnt(0)')
    a('s_barrier')
    AV = 104
    for dl in range(5):
        for j in range(3):
            a(f'ds_read_b128 {vr(O3+4*(5*(j+1)+dl),4)}, v{VR3[j]} offset:{1024*dl}')
        a(f'ds_read_b64_tr_b16 {vr(AV+2*dl,2)}, v{V_ATR} offset:{2048*dl}')
    RQ = 116
    for dl in range(5):
        a(f's_waitcnt lgkmcnt({min(15, 4*(4-dl))})')
        T = [V_T, V_T + 4]
        def both(f):
            for hh in range(2): a(f(O3 + 4 * dl + 2 * hh, T[hh], AV + 2 * dl + hh, hh))
        both(lambda c, t, av, hh: f'v_pk_add_f32 {vr(c,2)}, {vr(c,2)}, {vr(c+20,2)}')
        both(lambda c, t, av, hh: f'v_pk_add_f32 {vr(c+40,2)}, {vr(c+40,2)}, {vr(c+60,2)}')
        both(lambda c, t, av, hh: f'v_pk_add_f32 {vr(c,2)}, {vr(c,2)}, {vr(c+40,2)}')
        both(lambda c, t, av, hh: f'v_cvt_pk_bf16_f32 v{t+2}, v{c}, v{c+1}')
        both(lambda c, t, av, hh: f'v_lshlrev_b32 v{t}, 16, v{av}')
        both(lambda c, t, av, hh: f'v_and_b32 v{t+1}, 0xffff0000, v{av}')
        both(lambda c, t, av, hh: f'v_lshlrev_b32 v{c}, 16, v{t+2}')
        both(lambda c, t, av, hh: f'v_and_b32 v{c+1}, 0xffff0000, v{t+2}')
        both(lambda c, t, av, hh: f'v_pk_mul_f32 {vr(t,2)}, {vr(t,2)}, {vr(GT,2)} op_sel:[0,0] op_sel_hi:[1,0]')
        both(lambda c, t, av, hh: f'v_pk_mul_f32 {vr(c,2)}, {vr(c,2)}, {vr(GT,2)} op_sel:[0,1] op_sel_hi:[1,1]')
        both(lambda c, t, av, hh: f'v_cvt_pk_bf16_f32 v{t+2}, v{t}, v{t+1}')
        both(lambda c, t, av, hh: f'v_cvt_pk_bf16_f32 v{t+3}, v{c}, v{c+1}')
        both(lambda c, t, av, hh: f'v_lshlrev_b32 v{t}, 16, v{t+2}')
        both(lambda c, t, av, hh: f'v_and_b32 v{t+1}, 0xffff0000, v{t+2}')
        both(lambda c, t, av, hh: f'v_lshlrev_b32 v{c}, 16, v{t+3}')
        both(lambda c, t, av, hh: f'v_and_b32 v{c+1}, 0xffff0000, v{t+3}')
        both(lambda c, t, av, hh: f'v_pk_add_f32 {vr(t,2)}, {vr(t,2)}, {vr(c,2)}')
        both(lambda c, t, av, hh: f'v_cvt_pk_bf16_f32 v{RQ+2*dl+hh}, v{t}, v{t+1}')
        if dl in (1, 3):
            q = RQ + 2 * (dl - 1)
            a(f'v_permlane16_swap_b32 v{q}, v{q+2}')
            a(f'v_permlane16_swap_b32 v{q+1}, v{q+3}')
            a(f'buffer_store_dwordx4 {vr(q,4)}, v{V_O1}, {srd(SRD_OUT)}, 0 offen offset:{32*(dl-1)}')
        if dl == 4:
            a(f'buffer_store_dwordx2 {vr(RQ+8,2)}, v{V_O2}, {srd(SRD_OUT)}, 0 offen')
    if _g.PROF['on']:
        a('s_waitcnt vmcnt(0)')
    stamp(a, 15)
    stamp_dump(a, 16)
    a('s_endpgm')

def poll1(a, name, vaddrs, vtmp, scount):
    a(f's_cmp_lg_u32 s{S_W}, 0')
    a(f's_cbranch_scc1 {name}_out')
    va = vaddrs[0]
    a(f's_mov_b32 s{scount}, {SPIN_MAX}')
    a(f'buffer_load_dword v{vtmp}, v{va}, {srd(SRD_WS)}, 0 offen sc1')
    a.lab(f'{name}_spin')
    a(f'buffer_load_dword v{vtmp+1}, v{va}, {srd(SRD_WS)}, 0 offen sc1')
    a('s_waitcnt vmcnt(1)')
    a(f'v_cmp_ne_u32 vcc, s{S_TAG}, v{vtmp}')
    a(f's_cbranch_vccz {name}_done')
    a(f'buffer_load_dword v{vtmp}, v{va}, {srd(SRD_WS)}, 0 offen sc1')
    a('s_waitcnt vmcnt(1)')
    a(f'v_cmp_ne_u32 vcc, s{S_TAG}, v{vtmp+1}')
    a(f's_cbranch_vccz {name}_done')
    a(f's_sub_u32 s{scount}, s{scount}, 1')
    a(f's_cmp_lg_u32 s{scount}, 0')
    a(f's_cbranch_scc1 {name}_spin')
    a.lab(f'{name}_done')
    a.lab(f'{name}_out')
    a('s_barrier')

def e1_z2(a, opt, vm, k0):
    SS, QQ = ACC1, ACC1 + 8
    K0 = ACC1 + 16
    pf = opt.get('gpf', 0)
    if pf:
        a(f's_lshl_b32 s{S_T}, s{S_RB}, 18')
        a(f's_and_b32 s{S_T2}, s{S_CB}, 3')
        a(f's_lshl_b32 s{S_T2}, s{S_T2}, 16')
        a(f's_add_u32 s{S_T}, s{S_T}, s{S_T2}')
        a(f's_lshl_b32 s{S_T2}, s{S_W}, 14')
        a(f's_add_u32 s{S_T}, s{S_T}, s{S_T2}')
        a(f'v_lshlrev_b32 v{t0}, {7 if pf == 128 else 6}, v{V_L}')
        for i in range(16384 // (64 * pf)):
            a(f'buffer_load_dword v{ACC1+20+i}, v{t0}, {srd(SRD_WSP)}, s{S_T} offen')
            a(f's_add_u32 s{S_T}, s{S_T}, {64*pf}')
            vm.issue('pf', 1)
    a(f'v_mov_b32 v{K0}, {hx(k0)}')
    a(f'v_mov_b32 v{K0+1}, {hx(k0)}')
    first = {}
    for phi in range(3):
        for tau in range(2):
            cs = [ACC2 + 4 * (3 * tau + phi) + 2 * hh for hh in range(2)]
            def after(c, t):
                r = 4 * tau + (c - cs[0])
                L = [f'v_cvt_pk_bf16_f32 v{c}, v{t+2}, v{t+3}']
                if phi == 0:
                    L += [f'v_lshlrev_b32 v{SS+r}, 16, v{c}', f'v_and_b32 v{SS+r+1}, 0xffff0000, v{c}',
                          f'v_pk_mul_f32 {vr(QQ+r,2)}, {vr(SS+r,2)}, {vr(SS+r,2)}']
                else:
                    L += [f'v_lshlrev_b32 v{t}, 16, v{c}', f'v_and_b32 v{t+1}, 0xffff0000, v{c}',
                          f'v_pk_add_f32 {vr(SS+r,2)}, {vr(SS+r,2)}, {vr(t,2)}', f'v_pk_fma_f32 {vr(QQ+r,2)}, {vr(t,2)}, {vr(t,2)}, {vr(QQ+r,2)}']
                return L
            gelu2(a, cs, K0, after)
    for j in range(8):
        a(f'v_add_f32_dpp v{SS+j}, v{SS+j}, v{SS+j} row_ror:8 row_mask:0xf bank_mask:0x3')
    for j in range(8):
        a(f'v_add_f32_dpp v{SS+j}, v{QQ+j}, v{QQ+j} row_ror:8 row_mask:0xf bank_mask:0xc')
    for j in range(4):
        a(f'v_add_f32_dpp v{SS+j}, v{SS+j}, v{SS+j} row_half_mirror row_mask:0xf bank_mask:0x5')
    for j in range(4):
        a(f'v_add_f32_dpp v{SS+j}, v{SS+j+4}, v{SS+j+4} row_half_mirror row_mask:0xf bank_mask:0xa')
    a(f'v_and_b32 v{t0}, 15, v{V_L}')
    a(f'v_lshrrev_b32 v{t1}, 4, v{V_L}')
    a(f'v_and_b32 v{t2}, 3, v{V_L}')
    for qp in ('[3,2,1,0]', '[1,0,3,2]'):
        for j in range(4):
            a(f'v_add_f32_dpp v{SS+j}, v{SS+j}, v{SS+j} quad_perm:{qp} row_mask:0xf bank_mask:0xf')
    GQ = V_T + 4
    a(f'v_cmp_eq_u32 vcc, 1, v{t2}')
    a(f'v_cmp_eq_u32 s[84:85], 2, v{t2}')
    a(f'v_cmp_eq_u32 {sp(S_TMP2)}, 3, v{t2}')
    a(f'v_lshl_add_u32 v{t2}, v{t0}, 2, v{t1}')
    a(f'v_cndmask_b32 v{GQ}, v{SS}, v{SS+1}, vcc')
    a(f'v_cndmask_b32 v{GQ}, v{GQ}, v{SS+2}, s[84:85]')
    a(f'v_cndmask_b32 v{GQ}, v{GQ}, v{SS+3}, {sp(S_TMP2)}')
    a(f'v_mov_b32 v{GQ+2}, s{S_TAG}')
    a(f'v_mov_b32 v{GQ+3}, s{S_TAG}')
    a(f'v_mov_b32_dpp v{GQ+1}, v{GQ} row_ror:8 row_mask:0xf bank_mask:0xf')
    a(f's_lshl_b32 s{S_T}, s{S_WI}, 5')
    a(f'v_add_u32 v{t2}, s{S_T}, v{t2}')
    a(f'v_lshlrev_b32 v{t2}, 8, v{t2}')
    a(f's_lshl_b32 s{S_T}, s{S_RB}, 14')
    a(f's_lshl_b32 s{S_T2}, s{S_CB}, 5')
    a(f's_add_u32 s{S_T}, s{S_T}, s{S_T2}')
    a(f's_lshl_b32 s{S_T2}, s{S_WJ}, 4')
    a(f's_add_u32 s{S_T}, s{S_T}, s{S_T2}')
    a(f's_add_u32 s{S_T}, s{S_T}, {WS_ST}')
    a(f'v_cmp_gt_u32 vcc, 8, v{t0}')
    a(f's_and_saveexec_b64 {sp(S_TMP2)}, vcc')
    a(f'buffer_store_dwordx4 {vr(GQ,4)}, v{t2}, {srd(SRD_WS)}, s{S_T} offen sc1')
    a(f's_mov_b64 exec, {sp(S_TMP2)}')
    vm.issue('st', 1)
    if pf:
        a(f's_waitcnt vmcnt({vm.n_after("pf")})')
    for i in range(24):
        a(f'v_mov_b32 v{ACC1+i}, 0')

V_SA = 13
def e2_loads(a, vm):
    a(f'v_lshlrev_b32 v{V_SA}, 4, v{V_L}')
    a(f's_lshl_b32 s{S_T}, s{S_RB}, 14')
    a(f's_lshl_b32 s{S_T2}, s{S_WI}, 13')
    a(f's_add_u32 s{S_T}, s{S_T}, s{S_T2}')
    a(f's_add_u32 s{S_T}, s{S_T}, {WS_ST}')
    a(f'v_add_u32 v{V_SA}, s{S_T}, v{V_SA}')
    st_loads(a)
    vm.issue('stl', 8)

def st_loads(a):
    a(f's_movk_i32 s{S_T2}, 4096')
    for k in range(8):
        a(f'buffer_load_dwordx4 {vr(ST+4*k,4)}, v{V_SA}, {srd(SRD_WS)}, {"0" if k < 4 else "s%d" % S_T2} offen offset:{1024*(k&3)} sc1')

def e2_layernorm(a, opt, vm):
    a('; ---- LayerNorm hand-off')
    a(f's_mov_b32 s{S_CNT}, {SPIN_MAX}')
    a(f's_waitcnt vmcnt({vm.n_after("stl")})')
    a.lab('L_ln_check')
    a(f'v_and_b32 v{t0}, v{ST+2}, v{ST+3}')
    a(f'v_or_b32 v{t1}, v{ST+2}, v{ST+3}')
    for k in range(1, 8):
        a(f'v_and_b32 v{t0}, v{t0}, v{ST+4*k+2}')
        a(f'v_or3_b32 v{t1}, v{t1}, v{ST+4*k+2}, v{ST+4*k+3}')
        a(f'v_and_b32 v{t0}, v{t0}, v{ST+4*k+3}')
    a(f'v_cmp_ne_u32 vcc, s{S_TAG}, v{t0}')
    a(f'v_cmp_ne_u32 s[84:85], s{S_TAG}, v{t1}')
    a('s_or_b64 vcc, vcc, s[84:85]')
    a('s_cbranch_vccz L_ln_done')
    st_loads(a)
    a('s_waitcnt vmcnt(0)')
    a(f's_sub_u32 s{S_CNT}, s{S_CNT}, 1')
    a(f's_cmp_lg_u32 s{S_CNT}, 0')
    a('s_cbranch_scc1 L_ln_check')
    a.lab('L_ln_done')
    S_ = lambda k: ST + 4 * k
    Q_ = lambda k: ST + 4 * k + 1
    for k in range(8):
        a(f'v_add_f32_dpp v{S_(k)}, v{S_(k)}, v{S_(k)} row_ror:8 row_mask:0xf bank_mask:0x3')
    for k in range(8):
        a(f'v_add_f32_dpp v{S_(k)}, v{Q_(k)}, v{Q_(k)} row_ror:8 row_mask:0xf bank_mask:0xc')
    for k in range(4):
        a(f'v_add_f32_dpp v{S_(k)}, v{S_(k)}, v{S_(k)} row_half_mirror row_mask:0xf bank_mask:0x5')
    for k in range(4):
        a(f'v_add_f32_dpp v{S_(k)}, v{S_(k+4)}, v{S_(k+4)} row_half_mirror row_mask:0xf bank_mask:0xa')
    a(f'v_and_b32 v{t0}, 15, v{V_L}')
    a(f'v_lshrrev_b32 v{t1}, 4, v{V_L}')
    a(f'v_and_b32 v{t2}, 3, v{V_L}')
    for qp in ('[3,2,1,0]', '[1,0,3,2]'):
        for k in range(4):
            a(f'v_add_f32_dpp v{S_(k)}, v{S_(k)}, v{S_(k)} quad_perm:{qp} row_mask:0xf bank_mask:0xf')
    a(f'v_cmp_eq_u32 vcc, 1, v{t2}')
    a(f'v_cmp_eq_u32 s[84:85], 2, v{t2}')
    a(f'v_cmp_eq_u32 {sp(S_TMP2)}, 3, v{t2}')
    a(f'v_mul_u32_u24 v{t1}, 96, v{t1}')
    a(f'v_cndmask_b32 v{ST}, v{ST}, v{S_(1)}, vcc')
    a(f'v_cndmask_b32 v{ST}, v{ST}, v{S_(2)}, s[84:85]')
    a(f'v_cndmask_b32 v{ST}, v{ST}, v{S_(3)}, {sp(S_TMP2)}')
    a(f'v_mov_b32_dpp v{ST+1}, v{ST} row_ror:8 row_mask:0xf bank_mask:0xf')
    a(f'v_mul_f32 v{ST}, {hx(1/768)}, v{ST}')
    a(f'v_mul_f32 v{ST+1}, {hx(1/768)}, v{ST+1}')
    a(f'v_fma_f32 v{ST+1}, -v{ST}, v{ST}, v{ST+1}')
    a(f'v_max_f32 v{ST+1}, 0, v{ST+1}')
    a(f'v_cvt_pk_bf16_f32 v{ST+2}, v{ST}, v{ST+1}')
    a(f'v_lshlrev_b32 v{ST}, 16, v{ST+2}')
    a(f'v_and_b32 v{ST+1}, 0xffff0000, v{ST+2}')
    a(f'v_add_f32 v{ST+1}, {hx(1e-5)}, v{ST+1}')
    a(f'v_add_u32 v{t0}, v{t0}, v{t1}')
    a(f'v_cvt_pk_bf16_f32 v{ST+1}, v{ST+1}, v{ST+1}')
    a(f'v_and_b32 v{ST+1}, 0xffff0000, v{ST+1}')
    a(f'v_sqrt_f32 v{ST+1}, v{ST+1}')
    for j in range(8):
        a(f'v_mov_b32_dpp v{MM+j}, v{ST} row_newbcast:{j} row_mask:0xf bank_mask:0xf')
    a(f'v_cvt_pk_bf16_f32 v{ST+1}, v{ST+1}, v{ST+1}')
    a(f'v_and_b32 v{ST+1}, 0xffff0000, v{ST+1}')
    a(f'v_rcp_f32 v{ST+1}, v{ST+1}')
    a(f's_mul_i32 s{S_T}, s{S_WI}, 384')
    a(f's_mul_i32 s{S_T2}, s{S_WJ}, 48')
    a(f's_add_u32 s{S_T}, s{S_T}, s{S_T2}')
    a(f'v_add_u32 v{t0}, s{S_T}, v{t0}')
    a(f'v_lshlrev_b32 v{V_US}, 4, v{t0}')
    for j in range(8):
        a(f'v_mov_b32_dpp v{RR+j}, v{ST+1} row_newbcast:{j} row_mask:0xf bank_mask:0xf')
    a(f's_lshl_b32 s{S_T}, s{S_CB}, 5')
    a(f's_add_u32 s{S_T}, s{S_T}, s{S_RB}')
    a(f's_lshl_b32 s{S_FZA}, s{S_T}, 2')
    a(f's_add_u32 s{S_FZA}, s{S_FZA}, {WS_FZ}')
    a(f's_mul_i32 s{S_T}, s{S_T}, 12288')
    a(f's_add_u32 s{S_T}, s{S_T}, {WS_Z}')
    for phi in range(3):
        for tau in range(2):
            T = [V_T, V_T + 4]
            def both(f):
                for hh in range(2): a(f(ACC2 + 4 * (3 * tau + phi) + 2 * hh, T[hh], 4 * tau + 2 * hh, hh))
            both(lambda c, t, r, hh: f'v_lshlrev_b32 v{t}, 16, v{c}')
            both(lambda c, t, r, hh: f'v_and_b32 v{t+1}, 0xffff0000, v{c}')
            both(lambda c, t, r, hh: f'v_pk_add_f32 {vr(t,2)}, {vr(t,2)}, {vr(MM+r,2)} neg_lo:[0,1] neg_hi:[0,1]')
            both(lambda c, t, r, hh: f'v_cvt_pk_bf16_f32 v{t+2}, v{t}, v{t+1}')
            both(lambda c, t, r, hh: f'v_lshlrev_b32 v{t}, 16, v{t+2}')
            both(lambda c, t, r, hh: f'v_and_b32 v{t+1}, 0xffff0000, v{t+2}')
            both(lambda c, t, r, hh: f'v_pk_mul_f32 {vr(t,2)}, {vr(t,2)}, {vr(RR+r,2)}')
            both(lambda c, t, r, hh: f'v_cvt_pk_bf16_f32 v{ZQ+4*phi+2*tau+hh}, v{t}, v{t+1}')
        a(f'buffer_store_dwordx4 {vr(ZQ+4*phi,4)}, v{V_US}, {srd(SRD_WS)}, s{S_T} offen offset:{256*phi} sc1')
    vm.issue('z', 3)
```

```python
import sys, struct
import numpy as np
sys.path.insert(0, 'gen')
from asmlib import Asm

KNAME = 'gated_mix__ssm_conv_s4__mixer_gmlp__prompt_kernel'

def f2u(x): return struct.unpack('<I', struct.pack('<f', x))[0]
def hx(x): return '0x%08x' % f2u(x)

WS_EPOCH = 0x0
WS_FZ = 0x1000
WS_FU = 0x2000
WS_FP = 0x3000
WS_FA = 0x4000
WS_FG = 0x5000
WS_FS = 0x7000
WS_FW = 0x6000
WS_WO = 0xD00000
WS_G = 0x8000
WS_ST = 0x10000
WS_Z = 0x100000
WS_P = 0x400000
WS_UT = 0x700000
WS_AT = 0xA00000
WS_DBG = 0x1000000
WS_SIZE = 0x4000000

P_U, P_ARE, P_AIM, P_BRE, P_BIM, P_CRE, P_CIM, P_LDT = 16, 18, 20, 22, 24, 26, 28, 30
P_DSK, P_BX, P_WIN, P_WSP, P_BSP, P_WOUT, P_GW, P_OUT = 32, 34, 36, 38, 40, 42, 44, 46
P_DBG, P_WS = 48, 50
SRD_X, SRD_WIN, SRD_WSP, SRD_WOUT, SRD_WS, SRD_OUT = 52, 56, 60, 64, 68, 72
S_TAG, S_W = 80, 81
def srd(n): return f's[{n}:{n+3}]'
def sp(n): return f's[{n}:{n+1}]'
def vr(a, n): return f'v[{a}:{a+n-1}]'

LOG2E = 1.4426950408889634
SPIN_MAX = 20000

def mk_srd(a, dst, ptr, size):
    a(f's_mov_b32 s{dst}, s{ptr}')
    a(f's_and_b32 s{dst+1}, s{ptr+1}, 0xffff')
    a(f's_mov_b32 s{dst+2}, {size}')
    a(f's_mov_b32 s{dst+3}, 0x00020000')

def cmul(a, dst, x, y, tmp):
    a(f'v_pk_mul_f32 {vr(tmp,2)}, {vr(x,2)}, {vr(y,2)} op_sel:[0,0] op_sel_hi:[0,1]')
    a(f'v_pk_fma_f32 {vr(dst,2)}, {vr(x,2)}, {vr(y,2)}, {vr(tmp,2)} op_sel:[1,1,0] op_sel_hi:[1,0,1] neg_lo:[1,0,0]')

PROF = {'on': False}
WS_PROF = 0x2000000
def stamp(a, i, base=18):
    if not PROF['on']: return
    a('s_memrealtime s[14:15]')
    a('s_waitcnt lgkmcnt(0)')
    a(f's_mov_b32 s{base+i}, s14')
def stamp_dump(a, n, base=18):
    if not PROF['on']: return
    if PROF.get('dbg'):
        if base != 18: return
        a('s_mov_b64 exec, 1')
        mk_srd(a, 52, P_DBG, 256)
        a(f's_not_b32 s{base}, s{base}')
        for i in range(n):
            a(f'v_mov_b32 v2, s{base+i}')
            a(f'buffer_atomic_umax v2, off, s[52:55], 0 offset:{4*i} sc1')
        a('s_waitcnt vmcnt(0)')
        return
    a('s_mov_b64 exec, 1')
    a('s_lshl_b32 s14, s2, 2')
    a(f's_add_u32 s14, s14, s{S_W}')
    a('s_lshl_b32 s14, s14, 6')
    a(f's_add_u32 s14, s14, {WS_PROF}')
    for i in range(n):
        a(f'v_mov_b32 v2, s{base+i}')
        a(f'buffer_store_dword v2, off, {srd(SRD_WS)}, s14 offset:{4*i}')
    a('s_waitcnt vmcnt(0)')

def poll(a, name, loads, vtmp, scount, nlanes_mask=None):
    a(f's_mov_b32 s{scount}, {SPIN_MAX}')
    a.lab(f'{name}_spin')
    for i, (va, so) in enumerate(loads):
        a(f'buffer_load_dword v{vtmp+i}, v{va}, {srd(SRD_WS)}, {so} offen sc1')
    a('s_waitcnt vmcnt(0)')
    a(f'v_cmp_ne_u32 vcc, s{S_TAG}, v{vtmp}')
    for i in range(1, len(loads)):
        a(f'v_cmp_ne_u32 s[84:85], s{S_TAG}, v{vtmp+i}')
        a('s_or_b64 vcc, vcc, s[84:85]')
    a(f's_cbranch_vccz {name}_done')
    a('s_sleep 2')
    a(f's_sub_u32 s{scount}, s{scount}, 1')
    a(f's_cmp_lg_u32 s{scount}, 0')
    a(f's_cbranch_scc1 {name}_spin')
    a.lab(f'{name}_done')

WAVE_LDS = 26624
CP = 4160
UOFF = 16640
def side_channel(a, opt):
    sD, sLB, sT, sT2, sUns = 82, 83, 86, 87, 88
    vL = 1
    if opt.get('sprio'): a(f's_setprio {opt["sprio"]}')
    stamp(a, 0, 52)
    a(f's_mul_i32 s{sLB}, s{S_W}, {WAVE_LDS}')
    a(f's_mul_i32 s{sT}, s{sD}, 384')
    a(f'v_lshlrev_b32 v2, 1, v{vL}')
    a(f'v_add_u32 v2, s{sT}, v2')
    PR = 10
    arrs = [P_ARE, P_AIM, P_BRE, P_BIM, P_CRE, P_CIM]
    a(f's_lshl_b32 s{sT}, s{sD}, 1')
    a(f'v_mov_b32 v3, s{sT}')
    a(f'global_load_ushort v28, v3, {sp(P_LDT)}')
    a(f'global_load_ushort v29, v3, {sp(P_DSK)}')
    for ch in range(3):
        for k, p in enumerate(arrs):
            a(f'global_load_ushort v{PR+6*ch+k}, v2, {sp(p)} offset:{128*ch}')
    vWr, vRd = 104, 4
    a(f'v_and_b32 v6, 7, v{vL}')
    a(f'v_lshlrev_b32 v7, 7, v{vL}')
    a(f'v_add_u32 v7, s{sLB}, v7')
    for p in range(8):
        a(f'v_xor_b32 v8, {p}, v6')
        a(f'v_lshl_add_u32 v{vWr+p}, v8, 4, v7')
    a(f'v_lshrrev_b32 v6, 5, v{vL}')
    a(f'v_bfe_u32 v7, v{vL}, 3, 1')
    a('v_lshl_add_u32 v6, v6, 2, v7')
    a(f'v_bfe_u32 v7, v{vL}, 2, 1')
    a('v_lshlrev_b32 v7, 2, v7')
    a(f'v_bfe_u32 v8, v{vL}, 4, 1')
    a('v_lshl_add_u32 v7, v8, 1, v7')
    a(f'v_bfe_u32 v8, v{vL}, 1, 1')
    a('v_add_u32 v7, v7, v8')
    a(f'v_and_b32 v9, 1, v{vL}')
    a('v_lshlrev_b32 v9, 3, v9')
    a(f'v_add_u32 v9, s{sLB}, v9')
    for i in range(2):
        if i: a('v_add_u32 v6, 2, v6')
        a('v_xor_b32 v8, v7, v6')
        a(f'v_lshl_add_u32 v{vRd+i}, v8, 4, v9')
        a(f'v_lshl_add_u32 v{vRd+i}, v6, 7, v{vRd+i}')
    a(f'v_and_b32 v6, 31, v{vL}')
    a(f'v_lshrrev_b32 v7, 5, v{vL}')
    hi = struct.unpack('<f', struct.pack('<I', f2u(LOG2E) & 0xFFFFF000))[0]
    lo = LOG2E - hi
    a('s_waitcnt vmcnt(18)')
    a('v_lshlrev_b32 v28, 16, v28')
    a('v_lshlrev_b32 v29, 16, v29')
    a(f'v_mul_f32 v8, {hx(hi)}, v28')
    a('v_rndne_f32 v9, v8')
    a('v_sub_f32 v8, v8, v9')
    a(f'v_fmac_f32 v8, {hx(lo)}, v28')
    a('v_exp_f32 v8, v8')
    a('v_cvt_i32_f32 v9, v9')
    a('v_ldexp_f32 v8, v8, v9')
    a('v_cvt_pk_bf16_f32 v8, v8, v8')
    a('v_lshlrev_b32 v28, 16, v8')
    a('s_waitcnt vmcnt(0)')
    for i in range(18):
        a(f'v_lshlrev_b32 v{PR+i}, 16, v{PR+i}')
    WR = 32
    AW = 38
    for ch in range(3):
        b = PR + 6 * ch
        a(f'v_mul_f32 v{b}, v28, v{b}')
        a(f'v_mul_f32 v{b+1}, v28, v{b+1}')
        a(f'v_mul_f32 v{b+2}, v28, v{b+2}')
        a(f'v_mul_f32 v{b+3}, v28, v{b+3}')
        a(f'v_mul_f32 v{AW+2*ch}, {hx(LOG2E)}, v{b}')
        a(f'v_mul_f32 v{AW+2*ch+1}, {hx(1/(2*np.pi))}, v{b+1}')
        cmul(a, WR + 2 * ch, b + 4, b + 2, 8)
    a(f'v_max3_f32 v8, abs(v{WR}), abs(v{WR+1}), abs(v{WR+2})')
    a(f'v_max3_f32 v8, v8, abs(v{WR+3}), abs(v{WR+4})')
    a(f'v_max_f32 v8, v8, abs(v{WR+5})')
    for r in (8, 4, 2, 1):
        a(f'v_max_f32_dpp v8, v8, v8 row_ror:{r} row_mask:0xf bank_mask:0xf')
    a(f'v_readlane_b32 s{sT}, v8, 0')
    a(f'v_readlane_b32 s{sT2}, v8, 16')
    a(f's_max_u32 s{sT}, s{sT}, s{sT2}')
    a(f'v_readlane_b32 s{sT2}, v8, 32')
    a(f's_max_u32 s{sT}, s{sT}, s{sT2}')
    a(f'v_readlane_b32 s{sT2}, v8, 48')
    a(f's_max_u32 s{sT}, s{sT}, s{sT2}')
    a(f's_lshr_b32 s{sT}, s{sT}, 23')
    a(f's_min_u32 s{sT}, s{sT}, 252')
    a(f's_add_u32 s{sUns}, s{sT}, 1')
    a(f's_lshl_b32 s{sUns}, s{sUns}, 23')
    a(f's_sub_u32 s{sT}, 253, s{sT}')
    a(f's_lshl_b32 s{sT}, s{sT}, 23')
    for i in range(6):
        a(f'v_mul_f32 v{WR+i}, s{sT}, v{WR+i}')
    stamp(a, 7, 52)
    D = 72
    for i in range(16):
        a(f'v_mov_b32 v{D+i}, 0')
    E1, E8, GG = 44, 46, 48
    X = 112
    T = 8
    PKX = 168
    PKY = 200
    YA = 50
    FR = 88
    YB = 8192
    sCnt = 89
    a(f's_mov_b32 s{sCnt}, 3')
    a.lab('L_kg_chunk')
    def cexp(dst, P):
        if P == 1:
            a(f'v_exp_f32 v{T}, v{AW}')
            a(f'v_fract_f32 v{T+1}, v{AW+1}')
        else:
            a(f'v_mul_f32 v{T}, {hx(float(P))}, v{AW}')
            a(f'v_mul_f32 v{T+1}, {hx(float(P))}, v{AW+1}')
            a(f'v_exp_f32 v{T}, v{T}')
            a(f'v_fract_f32 v{T+1}, v{T+1}')
        a(f'v_cos_f32 v{dst}, v{T+1}')
        a(f'v_sin_f32 v{dst+1}, v{T+1}')
        a(f'v_pk_mul_f32 {vr(dst,2)}, {vr(dst,2)}, {vr(T,2)} op_sel:[0,0] op_sel_hi:[1,0]')
    cexp(E8, 8); cexp(E1, 1); cexp(GG, 256)
    def row_of(h, reg): return 8 * (reg >> 2) + 4 * h + (reg & 3)
    def flush(pk, base, j):
        if opt.get('kg_nowr'): return
        a(f'ds_write_b128 v{vWr+j}, {vr(pk+4*j,4)} offset:{base}')
        a(f'ds_write_b128 v{vWr+4+j}, {vr(pk+16+4*j,4)} offset:{base}')
    one = 54
    a(f'v_mov_b32 v{one}, 1.0')
    a(f'v_mov_b32 v{one+1}, 0')
    prev = None
    for k in range(32):
        if k == 0: cur = one
        elif k == 1: cur = E8
        else:
            cur = YA + 2 * (k & 1)
            cmul(a, cur, prev, E8, T)
        if k & 1:
            a(f'v_cvt_pk_f16_f32 v{PKY+(k>>1)}, v{prev}, v{cur}')
            a(f'v_cvt_pk_f16_f32 v{PKY+16+(k>>1)}, -v{prev+1}, -v{cur+1}')
            if (k & 7) == 7: flush(PKY, YB, k >> 3)
        prev = cur
    val = {0: WR}
    nxt = [X]
    def mk(P, src, mul):
        val[P] = nxt[0]; nxt[0] += 2
        cmul(a, val[P], val[src], mul, T)
    rows = {}
    for k in range(8): rows[row_of(0, k)] = k
    for k, P in enumerate((256, 256, 258, 260, 260, 260, 262, 264)): rows[row_of(1, k)] = P
    for k, P in enumerate((512, 516, 520, 1024, 1032, 1280, 1288)): rows[row_of(0, 8 + k)] = P
    for k, P in enumerate((768, 772, 776, 1536, 1544, 1792, 1800)): rows[row_of(1, 8 + k)] = P
    rows[27] = 1288; rows[31] = 1800
    done = set()
    def pack_ready():
        for r in range(0, 32, 2):
            if r in done or rows[r] not in val or rows[r + 1] not in val: continue
            done.add(r)
            p, q = val[rows[r]], val[rows[r + 1]]
            a(f'v_cvt_pk_f16_f32 v{PKX+(r>>1)}, v{p}, v{q}')
            a(f'v_cvt_pk_f16_f32 v{PKX+16+(r>>1)}, v{p+1}, v{q+1}')
            j = r >> 3
            if all((8 * j + e) in done for e in (0, 2, 4, 6)): flush(PKX, 0, j)
    order = [(k, k - 1, E1) for k in range(1, 9)] + [(256 + k, k, GG) for k in (0, 2, 4, 6, 8)]
    for b in (512, 768): order += [(b + k, b - 256 + k, GG) for k in (0, 4, 8)]
    for b in (1024, 1280, 1536, 1792): order += [(b + k, b - 256 + k, GG) for k in (0, 8)]
    for (P, src, mul) in order:
        mk(P, src, mul); pack_ready()
    assert len(done) == 16
    def rd(ks):
        f = FR + 8 * (ks & 1)
        for i in range(2):
            a(f'ds_read_b64_tr_b16 {vr(f+2*i,2)}, v{vRd+i} offset:{1024*ks}')
        for i in range(2):
            a(f'ds_read_b64_tr_b16 {vr(f+4+2*i,2)}, v{vRd+i} offset:{YB+1024*ks}')
    rd(0); rd(1)
    for i in range(4):
        a(f'v_mov_b32 v{WR+i}, v{WR+2+i}')
    for i in range(4):
        a(f'v_mov_b32 v{AW+i}, v{AW+2+i}')
    for ks in range(8):
        f = FR + 8 * (ks & 1)
        a('s_waitcnt lgkmcnt(4)' if ks < 7 else 's_waitcnt lgkmcnt(0)')
        a(f'v_mfma_f32_32x32x16_f16 {vr(D,16)}, {vr(f,4)}, {vr(f+4,4)}, {vr(D,16)}')
        if ks + 2 < 8: rd(ks + 2)
    a(f's_sub_u32 s{sCnt}, s{sCnt}, 1')
    a(f's_cmp_lg_u32 s{sCnt}, 0')
    a('s_cbranch_scc1 L_kg_chunk')
    stamp(a, 1, 52)
    a(f'v_lshlrev_b32 v10, 4, v6')
    a(f'v_sub_u32 v10, {16*255}, v10')
    a(f'v_add_u32 v10, s{sLB}, v10')
    a(f'v_lshlrev_b32 v11, 9, v7')
    a(f'v_sub_u32 v12, v10, v11')
    a(f'v_subrev_u32 v12, 1024, v12')
    a(f'v_sub_u32 v13, v10, v11')
    a(f'v_sub_u32 v13, v13, v11')
    a(f'v_subrev_u32 v13, 2560, v13')
    a(f'v_and_b32 v14, 1, v{vL}')
    a('v_cmp_eq_u32 vcc, 0, v14')
    a.fence(8)
    for i in range(15):
        a(f'v_mul_f32 v{D+i}, s{sUns}, v{D+i}')
    O = 16
    O = 88
    for j in range(4):
        a(f'v_cvt_pk_bf16_f32 v{O+j}, v{D+7-2*j}, v{D+6-2*j}')
    a(f'ds_write_b128 v12, {vr(O,4)} offset:1024')
    w0, w4, w8 = D + 8, D + 9, D + 10
    for j, (lo_, hi_) in enumerate([(w8, w8), (w4, w4), (w4, w0), (w0, w0)]):
        a(f'v_cvt_pk_bf16_f32 v{O+4+j}, v{lo_}, v{hi_}')
    a(f'ds_write_b128 v12, {vr(O+4,4)}')
    for s, (x0, x8, off) in enumerate([(D + 11, D + 12, 512), (D + 13, D + 14, 0)]):
        q = O + 8 + 4 * s
        a(f'v_cndmask_b32 v14, v{x8}, v{x0}, vcc')
        a(f'v_cvt_pk_bf16_f32 v{q}, v{x8}, v{x8}')
        a(f'v_cvt_pk_bf16_f32 v{q+1}, v{x8}, v14')
        a(f'v_cvt_pk_bf16_f32 v{q+2}, v{x0}, v{x0}')
        a(f'v_mov_b32 v{q+3}, v{q+2}')
        a(f'ds_write_b128 v13, {vr(q,4)} offset:{off}')
    a(f'v_lshrrev_b32 v10, 2, v{vL}')
    a(f'v_mul_u32_u24 v10, {CP}, v10')
    a(f'v_and_b32 v11, 3, v{vL}')
    a(f'v_lshl_add_u32 v10, v11, 4, v10')
    a(f'v_add_u32 v10, 4096, v10')
    a(f'v_subrev_u32 v11, 16, v{vL}')
    a(f'v_min_u32 v11, 29, v11')
    a(f'v_lshlrev_b32 v11, 4, v11')
    a(f'v_add_u32 v11, {UOFF}, v11')
    a(f'v_cmp_gt_u32 vcc, 16, v{vL}')
    a('v_cndmask_b32 v10, v11, v10, vcc')
    a(f'v_add_u32 v10, s{sLB}, v10')
    for i in range(4):
        a(f'v_mov_b32 v{16+i}, 0')
    a(f'ds_write_b128 v10, v[16:19]')
    a(f'v_lshlrev_b32 v10, 4, v{vL}')
    a(f'v_add_u32 v10, s{sLB}, v10')
    Wd = 32
    for it in range(4):
        a(f'ds_read_b128 {vr(Wd+8*it,4)}, v10 offset:{1024*it}')
        a(f'ds_read_b64 {vr(Wd+8*it+4,2)}, v10 offset:{1024*it+16}')
    for it in range(4):
        w = Wd + 8 * it
        q = 64 + 12 * (it & 1)
        a(f's_waitcnt lgkmcnt({min(15, 6 - 2*it + 3*it)})' if False else f's_waitcnt lgkmcnt({(3-it)*2 + (3*it if it else 0) if False else 0})' if it == 0 else '; (already waited)')
        for k in range(4):
            a(f'v_alignbyte_b32 v{q+k}, v{w+k+1}, v{w+k}, 2')
        a(f'ds_write_b128 v10, {vr(q,4)} offset:{CP+1024*it}')
        for k in range(4):
            a(f'v_mov_b32 v{q+4+k}, v{w+k+1}')
        a(f'ds_write_b128 v10, {vr(q+4,4)} offset:{2*CP+1024*it}')
        for k in range(4):
            a(f'v_alignbyte_b32 v{q+8+k}, v{w+k+2}, v{w+k+1}, 2')
        a(f'ds_write_b128 v10, {vr(q+8,4)} offset:{3*CP+1024*it}')
    if opt.get('dump_k'):
        a('s_waitcnt lgkmcnt(0)')
        a(f's_mul_i32 s{sT}, s{sD}, 17408')
        a(f's_add_u32 s{sT}, s{sT}, {WS_DBG}')
        a(f'v_lshlrev_b32 v11, 4, v{vL}')
        for it in range(17):
            a(f'ds_read_b128 v[16:19], v10 offset:{1024*it}')
            a('s_waitcnt lgkmcnt(0)')
            a(f'buffer_store_dwordx4 v[16:19], v11, {srd(SRD_WS)}, s{sT} offen')
            a(f's_add_u32 s{sT}, s{sT}, 1024')
        a('s_waitcnt vmcnt(0)')
    stamp(a, 2, 52)
    a(f's_lshr_b32 s{sT}, s{sD}, 6')
    a(f's_lshl_b32 s{sT}, s{sT}, 7')
    a(f's_add_u32 s{sT}, s{sT}, {WS_FU}')
    a(f'v_lshlrev_b32 v11, 2, v6')
    poll(a, 'L_pu', [(11, f's{sT}')], 12, 89)
    stamp(a, 3, 52)
    a(f's_lshl_b32 s{sT}, s{sD}, 12')
    a(f's_add_u32 s{sT2}, s{sT}, {WS_UT}')
    a(f'v_lshlrev_b32 v11, 4, v{vL}')
    for it in range(4):
        a(f'buffer_load_dwordx4 {vr(32+4*it,4)}, v11, {srd(SRD_WS)}, s{sT2} offen offset:{1024*it} sc1')
    vKA, vUB = 4, 5
    a(f'v_and_b32 v12, 15, v{vL}')
    a(f'v_lshrrev_b32 v13, 4, v{vL}')
    a('v_sub_u32 v14, 3, v12')
    a('v_and_b32 v14, 3, v14')
    a(f'v_mul_u32_u24 v{vKA}, {CP}, v14')
    a('v_add_u32 v15, v12, v14')
    a('v_sub_u32 v15, 2031, v15')
    a('v_lshl_add_u32 v15, v13, 3, v15')
    a(f'v_lshl_add_u32 v{vKA}, v15, 1, v{vKA}')
    a(f'v_subrev_u32 v{vKA}, {512*7}, v{vKA}')
    a(f'v_add_u32 v{vKA}, s{sLB}, v{vKA}')
    a(f'v_lshlrev_b32 v{vUB}, 5, v12')
    a(f'v_lshl_add_u32 v{vUB}, v13, 4, v{vUB}')
    a(f'v_add_u32 v{vUB}, {UOFF+448}, v{vUB}')
    a(f'v_add_u32 v{vUB}, s{sLB}, v{vUB}')
    a('v_lshlrev_b32 v6, 5, v12')
    a('v_lshl_add_u32 v6, v13, 3, v6')
    a(f'v_add_u32 v6, {UOFF+480}, v6')
    a(f'v_add_u32 v6, s{sLB}, v6')
    a('v_lshlrev_b32 v7, 5, v12')
    a('v_lshrrev_b32 v15, 1, v13')
    a('v_lshl_add_u32 v7, v15, 4, v7')
    a('v_and_b32 v15, 1, v13')
    a('v_lshl_add_u32 v7, v15, 9, v7')
    ACC = 64
    for i in range(32):
        a(f'v_mov_b32 v{ACC+i}, 0')
    for it in range(4):
        a(f's_waitcnt vmcnt({3-it})')
        a(f'ds_write_b128 v10, {vr(32+4*it,4)} offset:{UOFF+480+1024*it}')
    if opt.get('cg', 2) and not opt.get('no_gemm'):
        if opt.get('cg', 2) == 1:
            a('s_lshl_b32 s92, s2, 2')
            a(f's_add_u32 s92, s92, {WS_FS-1024}')
        else:
            a('s_sub_u32 s90, s2, 256')
            rbcb(a, 90, 91, 92, 93)
            a('s_lshl_b32 s92, s92, 5')
            a('s_add_u32 s92, s92, s91')
            a('s_lshl_b32 s92, s92, 2')
            a(f's_add_u32 s92, s92, {WS_FZ}')
        wait_word(a, 'L_cg', 92, 4)
    FA = [96, 160]
    def loads(s):
        L = []
        for g in range(8):
            L.append(f'ds_read_b64 {vr(FA[s]+4*g,2)}, v{vKA} offset:{512*(7-g)}')
            L.append(f'ds_read_b64 {vr(FA[s]+4*g+2,2)}, v{vKA} offset:{512*(7-g)+8}')
            L.append(f'ds_read_b128 {vr(FA[s]+32+4*g,4)}, v{vUB} offset:{512*g}')
        return L
    stamp(a, 4, 52)
    for l in loads(0): a(l)
    a(f's_mov_b32 s{sCnt}, 4')
    a.lab('L_conv')
    for s in range(2):
        a(f'v_subrev_u32 v{vKA}, 64, v{vKA}')
        a(f'v_subrev_u32 v{vUB}, 64, v{vUB}')
        a('s_waitcnt lgkmcnt(0)')
        nxt = loads(1 - s)
        pairs = [(g, i) for tot in range(8) for g in range(tot + 1) for i in [tot - g]]
        pairs = sorted(pairs, key=lambda p: (p[0], p[1]))
        k = 0
        for idx, (g, i) in enumerate(pairs):
            jt = g + i
            a(f'v_mfma_f32_16x16x32_bf16 {vr(ACC+4*jt,4)}, {vr(FA[s]+4*g,4)}, {vr(FA[s]+32+4*i,4)}, {vr(ACC+4*jt,4)}')
            if k < len(nxt) and idx >= 2:
                a(nxt[k]); k += 1
        while k < len(nxt):
            a(nxt[k]); k += 1
    a(f's_sub_u32 s{sCnt}, s{sCnt}, 1')
    a(f's_cmp_lg_u32 s{sCnt}, 0')
    a('s_cbranch_scc1 L_conv')
    a('s_waitcnt lgkmcnt(0)')
    stamp(a, 5, 52)
    UU = 32
    for jt in range(8):
        a(f'ds_read_b64 {vr(UU+2*jt,2)}, v6 offset:{512*jt}')
    a(f's_add_u32 s{sT2}, s{sT}, {WS_AT}')
    a('s_waitcnt lgkmcnt(0)')
    RES = 96
    for jt in range(8):
        c = ACC + 4 * jt
        t = 112 + 8 * (jt & 1)
        a(f'v_cvt_pk_bf16_f32 v{t}, v{c}, v{c+1}')
        a(f'v_cvt_pk_bf16_f32 v{t+1}, v{c+2}, v{c+3}')
        a(f'v_lshlrev_b32 v{c}, 16, v{UU+2*jt}')
        a(f'v_and_b32 v{c+1}, 0xffff0000, v{UU+2*jt}')
        a(f'v_lshlrev_b32 v{c+2}, 16, v{UU+2*jt+1}')
        a(f'v_and_b32 v{c+3}, 0xffff0000, v{UU+2*jt+1}')
        a(f'v_pk_mul_f32 {vr(c,2)}, {vr(c,2)}, {vr(28,2)} op_sel:[0,1] op_sel_hi:[1,1]')
        a(f'v_pk_mul_f32 {vr(c+2,2)}, {vr(c+2,2)}, {vr(28,2)} op_sel:[0,1] op_sel_hi:[1,1]')
        a(f'v_cvt_pk_bf16_f32 v{t+2}, v{c}, v{c+1}')
        a(f'v_cvt_pk_bf16_f32 v{t+3}, v{c+2}, v{c+3}')
        a(f'v_lshlrev_b32 v{c}, 16, v{t}')
        a(f'v_and_b32 v{c+1}, 0xffff0000, v{t}')
        a(f'v_lshlrev_b32 v{c+2}, 16, v{t+1}')
        a(f'v_and_b32 v{c+3}, 0xffff0000, v{t+1}')
        a(f'v_lshlrev_b32 v{t+4}, 16, v{t+2}')
        a(f'v_and_b32 v{t+5}, 0xffff0000, v{t+2}')
        a(f'v_lshlrev_b32 v{t+6}, 16, v{t+3}')
        a(f'v_and_b32 v{t+7}, 0xffff0000, v{t+3}')
        a(f'v_pk_add_f32 {vr(c,2)}, {vr(c,2)}, {vr(t+4,2)}')
        a(f'v_pk_add_f32 {vr(c+2,2)}, {vr(c+2,2)}, {vr(t+6,2)}')
        q = RES + 4 * (jt >> 1) + 2 * (jt & 1)
        a(f'v_cvt_pk_bf16_f32 v{q}, v{c}, v{c+1}')
        a(f'v_cvt_pk_bf16_f32 v{q+1}, v{c+2}, v{c+3}')
        if jt & 1:
            q0 = RES + 4 * (jt >> 1)
            a(f'v_permlane16_swap_b32 v{q0}, v{q0+2}')
            a(f'v_permlane16_swap_b32 v{q0+1}, v{q0+3}')
            a(f'buffer_store_dwordx4 {vr(q0,4)}, v7, {srd(SRD_WS)}, s{sT2} offen offset:{1024*(jt>>1)} sc1')
    a('s_waitcnt vmcnt(0)')
    a(f's_lshl_b32 s{sT}, s{sD}, 2')
    a(f's_add_u32 s{sT}, s{sT}, {WS_FA}')
    a(f'v_mov_b32 v8, s{S_TAG}')
    a('s_mov_b64 exec, 1')
    a(f'buffer_store_dword v8, off, {srd(SRD_WS)}, s{sT} sc1')
    stamp(a, 6, 52)
    stamp_dump(a, 8, 52)
    a('s_endpgm')

def rbcb(a, sidx, srb, scb, st):
    a(f's_and_b32 s{st}, s{sidx}, 7')
    a(f's_lshr_b32 s{srb}, s{st}, 1')
    a(f's_lshl_b32 s{srb}, s{srb}, 3')
    a(f's_lshr_b32 s{scb}, s{sidx}, 5')
    a(f's_add_u32 s{srb}, s{srb}, s{scb}')
    a(f's_and_b32 s{scb}, s{st}, 1')
    a(f's_lshl_b32 s{scb}, s{scb}, 2')
    a(f's_bfe_u32 s{st}, s{sidx}, 0x20003')
    a(f's_add_u32 s{scb}, s{scb}, s{st}')

def wait_word(a, name, saddr, sleep=8):
    a(f's_mov_b32 s89, {SPIN_MAX}')
    a.lab(f'{name}_spin')
    a(f'buffer_load_dword v8, off, {srd(SRD_WS)}, s{saddr} sc1')
    a('s_waitcnt vmcnt(0)')
    a(f'v_cmp_ne_u32 vcc, s{S_TAG}, v8')
    a(f's_cbranch_vccz {name}_done')
    a(f's_sleep {sleep}')
    a('s_sub_u32 s89, s89, 1')
    a('s_cmp_lg_u32 s89, 0')
    a(f's_cbranch_scc1 {name}_spin')
    a.lab(f'{name}_done')

def wait_fu(a, name, srb, st):
    a(f's_lshl_b32 s{st}, s{srb}, 2')
    a(f's_add_u32 s{st}, s{st}, {WS_FU}')
    wait_word(a, name, st)

def side_gate(a, opt):
    sK, sT = 82, 86
    vL = 1
    a(f's_sub_u32 s{sK}, s2, 256')
    rbcb(a, sK, 90, 91, 92)
    if opt.get('dly', 0):
        wait_fu(a, 'L_gw', 90, 92)
    a(f's_mul_i32 s{sT}, s{sK}, {8*1280}')
    a(f'v_lshrrev_b32 v2, 3, v{vL}')
    a(f'v_and_b32 v3, 7, v{vL}')
    a('v_lshlrev_b32 v4, 4, v3')
    a('v_mul_u32_u24 v5, 1280, v2')
    a('v_add_u32 v5, v5, v4')
    a(f'v_add_u32 v5, s{sT}, v5')
    XR, WR = 16, 56
    for it in range(10):
        a(f'global_load_dwordx4 {vr(XR+4*it,4)}, v5, {sp(P_U)} offset:{128*it}')
        a(f'global_load_dwordx4 {vr(WR+4*it,4)}, v4, {sp(P_GW)} offset:{128*it}')
    a('v_mov_b32 v6, 0')
    a('v_mov_b32 v7, 0')
    for it in range(10):
        a(f's_waitcnt vmcnt({18-2*it})')
        for k in range(4):
            x, w = XR + 4 * it + k, WR + 4 * it + k
            a(f'v_lshlrev_b32 v8, 16, v{x}')
            a(f'v_and_b32 v9, 0xffff0000, v{x}')
            a(f'v_lshlrev_b32 v10, 16, v{w}')
            a(f'v_and_b32 v11, 0xffff0000, v{w}')
            a('v_pk_mul_f32 v[8:9], v[8:9], v[10:11]')
            a('v_cvt_pk_bf16_f32 v12, v8, v9')
            a('v_lshlrev_b32 v8, 16, v12')
            a('v_and_b32 v9, 0xffff0000, v12')
            a('v_pk_add_f32 v[6:7], v[6:7], v[8:9]')
    a('v_add_f32 v6, v6, v7')
    a('v_add_f32_dpp v6, v6, v6 quad_perm:[1,0,3,2] row_mask:0xf bank_mask:0xf')
    a('v_add_f32_dpp v6, v6, v6 quad_perm:[2,3,0,1] row_mask:0xf bank_mask:0xf')
    a('v_add_f32_dpp v6, v6, v6 row_half_mirror row_mask:0xf bank_mask:0xf')
    a('v_cvt_pk_bf16_f32 v6, v6, v6')
    a('v_lshlrev_b32 v6, 16, v6')
    a(f'v_mul_f32 v6, {hx(-LOG2E)}, v6')
    a('v_exp_f32 v6, v6')
    a('v_add_f32 v6, 1.0, v6')
    a('v_rcp_f32 v6, v6')
    a('v_cvt_pk_bf16_f32 v6, v6, v6')
    a('v_lshlrev_b32 v8, 16, v6')
    a('v_sub_f32 v9, 1.0, v8')
    a('v_cvt_pk_bf16_f32 v9, v9, v9')
    a('v_lshlrev_b32 v9, 16, v9')
    a(f's_lshl_b32 s{sT}, s{sK}, 6')
    a(f's_add_u32 s{sT}, s{sT}, {WS_G}')
    a('v_lshlrev_b32 v10, 3, v2')
    a('v_cmp_eq_u32 vcc, 0, v3')
    a('s_and_saveexec_b64 s[84:85], vcc')
    a(f'buffer_store_dwordx2 v[8:9], v10, {srd(SRD_WS)}, s{sT} offen sc1')
    a('s_waitcnt vmcnt(0)')
    a(f's_lshl_b32 s{sT}, s{sK}, 2')
    a(f's_add_u32 s{sT}, s{sT}, {WS_FG}')
    a(f'v_mov_b32 v8, s{S_TAG}')
    a('s_mov_b64 exec, 1')
    a(f'buffer_store_dword v8, off, {srd(SRD_WS)}, s{sT} sc1')
    pf = opt.get('pf', 0)
    if pf:
        a('s_mov_b64 exec, -1')
        mk_srd(a, SRD_WSP, P_WSP, 2048 * 2048 * 2)
        if opt.get('pft', 1):
            a('s_lshl_b32 s92, s90, 14')
            a('s_lshl_b32 s93, s91, 5')
            a('s_add_u32 s92, s92, s93')
            a(f's_add_u32 s92, s92, {WS_ST+8}')
            wait_word(a, 'L_gs', 92)
        a('s_lshl_b32 s92, s90, 18')
        a('s_and_b32 s93, s91, 3')
        a('s_lshl_b32 s93, s93, 16')
        a('s_add_u32 s92, s92, s93')
        a(f'v_lshlrev_b32 v2, {7 if pf == 128 else 6}, v{vL}')
        for i in range(65536 // (64 * pf)):
            a(f'buffer_load_dword v{10+i}, v2, {srd(SRD_WSP)}, s92 offen')
            a(f's_add_u32 s92, s92, {64*pf}')
    a('s_endpgm')

def side_retile(a, opt):
    vL = 1
    mk_srd(a, SRD_WOUT, P_WOUT, 768 * 640 * 2)
    if opt.get('dly', 0):
        a('s_and_b32 s90, s2, 31')
        wait_fu(a, 'L_rw', 90, 92)
    a('s_sub_u32 s82, s2, 384')
    a('s_lshl_b32 s82, s82, 1')
    LB = 2 * WAVE_LDS
    for j in range(5):
        a(f'v_add_u32 v2, {64*j}, v{vL}')
        a('v_mul_u32_u24 v3, 52429, v2')
        a('v_lshrrev_b32 v3, 19, v3')
        a('v_mul_u32_u24 v4, 10, v3')
        a('v_sub_u32 v2, v2, v4')
        a('v_mul_u32_u24 v3, 1280, v3')
        a(f'v_lshl_add_u32 v{10+j}, v2, 4, v3')
    for un in range(2):
        a(f's_add_u32 s83, s82, {un}')
        a('s_mul_i32 s86, s83, 43691')
        a('s_lshr_b32 s86, s86, 20')
        a('s_mul_i32 s87, s86, 24')
        a('s_sub_u32 s87, s83, s87')
        a('s_mul_i32 s87, s87, 40960')
        a('s_mul_i32 s86, s86, 160')
        a('s_add_u32 s88, s86, s87')
        for j in range(5):
            a(f's_mov_b32 m0, {LB+5120*un+1024*j}')
            a(f'buffer_load_dwordx4 v{10+j}, {srd(SRD_WOUT)}, s88 offen lds')
    a(f'v_lshrrev_b32 v2, 4, v{vL}')
    a(f'v_bfe_u32 v3, v{vL}, 2, 2')
    a('v_lshl_add_u32 v2, v2, 3, v3')
    a('v_mul_u32_u24 v2, 160, v2')
    a(f'v_and_b32 v3, 3, v{vL}')
    a('v_lshl_add_u32 v2, v3, 3, v2')
    a(f'v_add_u32 v2, {LB}, v2')
    a(f'v_lshlrev_b32 v5, 4, v{vL}')
    a('s_mul_i32 s86, s82, 5120')
    a(f's_add_u32 s86, s86, {WS_WO}')
    a('s_waitcnt vmcnt(0)')
    for un in range(2):
        for dl in range(5):
            for half in range(2):
                a(f'ds_read_b64_tr_b16 {vr(16+20*un+4*dl+2*half,2)}, v2 offset:{5120*un+640*half+32*dl}')
    a('s_waitcnt lgkmcnt(0)')
    for un in range(2):
        for dl in range(5):
            if dl == 4: a('s_add_u32 s86, s86, 4096')
            a(f'buffer_store_dwordx4 {vr(16+20*un+4*dl,4)}, v5, {srd(SRD_WS)}, s86 offen offset:{1024*(dl%4)} sc1')
        a('s_add_u32 s86, s86, 1024')
    a('s_waitcnt vmcnt(0)')
    a('s_lshl_b32 s86, s82, 2')
    a(f's_add_u32 s86, s86, {WS_FW}')
    a(f'v_mov_b32 v8, s{S_TAG}')
    a(f'v_mov_b32 v9, s{S_TAG}')
    a('s_mov_b64 exec, 1')
    a(f'buffer_store_dwordx2 v[8:9], off, {srd(SRD_WS)}, s86 sc1')
    a('s_endpgm')

def side_keeper(a, opt):
    vL = 1
    a(f'v_lshlrev_b32 v2, 2, v{vL}')
    loads = [(2, WS_FZ + 256 * i) for i in range(4)] + [(2, WS_FA + 256 * i) for i in range(10)] + [(2, WS_FG + 256 * i) for i in range(4)]
    a(f's_mov_b32 s86, {WS_FZ}')
    a(f's_mov_b32 s87, {WS_FA}')
    a(f's_mov_b32 s88, {WS_FG}')
    a(f's_mov_b32 s90, {WS_FW}')
    L = [(2, f's86 offen offset:{256*i} ;') for i in range(4)]
    a(f's_mov_b32 s89, {SPIN_MAX}')
    a.lab('L_keep_spin')
    n = 0
    for base, cnt in (((86, 4), (87, 10), (88, 4), (90, 3)) if not opt.get('no_side') else ((86, 4),)):
        for i in range(cnt):
            a(f'buffer_load_dword v{8+n}, v2, {srd(SRD_WS)}, s{base} offen offset:{256*i} sc1'); n += 1
    a('s_waitcnt vmcnt(0)')
    a(f'v_cmp_ne_u32 vcc, s{S_TAG}, v8')
    for i in range(1, n):
        a(f'v_cmp_ne_u32 s[84:85], s{S_TAG}, v{8+i}')
        a('s_or_b64 vcc, vcc, s[84:85]')
    a('s_cbranch_vccz L_keep_done')
    a('s_sleep 16')
    a('s_sub_u32 s89, s89, 1')
    a('s_cmp_lg_u32 s89, 0')
    a('s_cbranch_scc1 L_keep_spin')
    a.lab('L_keep_done')
    a(f'v_mov_b32 v8, s{S_TAG}')
    a('s_mov_b64 exec, 1')
    a(f'buffer_store_dword v8, off, {srd(SRD_WS)}, 0 sc1')
    a('s_endpgm')

def build(opt):
    PROF['on'] = bool(opt.get('prof'))
    PROF['dbg'] = bool(opt.get('dbg'))
    a = Asm()
    a.raw(f'; @launch kernel={KNAME} grid=(512,1,1) block=(256,1,1) lds=81920' if not opt.get('plain') else '; @launch grid=(512,1,1) block=(256,1,1) lds=81920')
    a.raw('.amdgcn_target "amdgcn-amd-amdhsa--gfx950"')
    a.raw('.text')
    a.raw(f'.globl {KNAME}')
    a.raw('.p2align 8')
    a.raw(f'.type {KNAME},@function')
    a.lab(KNAME)
    a('s_cmp_ge_u32 s2, 512')
    a('s_cbranch_scc1 L_end')
    a('s_load_dwordx16 s[16:31], s[0:1], 0')
    a('s_load_dwordx16 s[32:47], s[0:1], 64')
    a('s_load_dwordx4 s[48:51], s[0:1], 128')
    a('v_and_b32 v1, 63, v0')
    a('v_lshrrev_b32 v2, 6, v0')
    a(f'v_readfirstlane_b32 s{S_W}, v2')
    a('s_waitcnt lgkmcnt(0)')
    mk_srd(a, SRD_WS, P_WS, WS_SIZE)
    a(f'buffer_load_dword v15, off, {srd(SRD_WS)}, 0 sc1')
    a('s_cmp_lt_u32 s2, 256')
    a('s_cbranch_scc1 L_gemm')
    if opt.get('no_side') == 1:
        a('s_cmp_eq_u32 s2, 511')
        a('s_cbranch_scc0 L_end')
        a(f's_cmp_eq_u32 s{S_W}, 2')
        a('s_cbranch_scc0 L_end')
    a('s_waitcnt vmcnt(0)')
    a(f'v_readfirstlane_b32 s{S_TAG}, v15')
    a(f's_add_u32 s{S_TAG}, s{S_TAG}, 1')
    a(f's_cmp_eq_u32 s{S_W}, 3')
    a('s_cbranch_scc1 L_gate')
    if opt.get('no_side') == 2:
        a('s_cmp_ge_u32 s2, 384')
        a('s_cbranch_scc0 L_end')
        a(f's_cmp_eq_u32 s{S_W}, 2')
        a('s_cbranch_scc0 L_end')
    a(f's_lshl_b32 s82, s{S_W}, 8')
    a('s_add_u32 s82, s82, s2')
    a('s_sub_u32 s82, s82, 256')
    a('s_cmp_lt_u32 s82, 640')
    a('s_cbranch_scc1 L_chan')
    a('s_cmp_eq_u32 s2, 511')
    a('s_cbranch_scc1 L_keep')
    a('s_cmp_lt_u32 s2, 480')
    a('s_cbranch_scc1 L_retile')
    a.lab('L_end')
    a('s_endpgm')
    a.lab('L_chan')
    side_channel(a, opt)
    a.lab('L_gate')
    side_gate(a, opt)
    a.lab('L_retile')
    side_retile(a, opt)
    a.lab('L_keep')
    side_keeper(a, opt)
    a.lab('L_gemm')
    if opt.get('no_gemm'):
        a('s_endpgm')
    else:
        import gen_gemm
        gen_gemm.gemm_role(a, opt)
    a.raw('.section .rodata,"a"')
    a.raw('.p2align 6')
    a.raw(f'.amdhsa_kernel {KNAME}')
    a.raw('  .amdhsa_next_free_vgpr 256')
    a.raw('  .amdhsa_next_free_sgpr 96')
    a.raw('  .amdhsa_accum_offset 256')
    a.raw('  .amdhsa_group_segment_fixed_size 0')
    a.raw('  .amdhsa_kernarg_size 144')
    a.raw('  .amdhsa_user_sgpr_count 2')
    a.raw('  .amdhsa_user_sgpr_kernarg_segment_ptr 1')
    a.raw('  .amdhsa_system_sgpr_workgroup_id_x 1')
    a.raw('.end_amdhsa_kernel')
    return a.text()

if __name__ == '__main__':
    opt = {}
    for x in sys.argv[2:]:
        k, _, v = x.partition('=')
        opt[k] = int(v) if v else 1
    import gen as _self
    open(sys.argv[1], 'w').write(_self.build(opt))
```

```python
import re

TRANS_WS = 2
PRE_TRANS_WS = 0
TRANS = ('v_exp_f32', 'v_log_f32', 'v_rcp_f32', 'v_rsq_f32', 'v_sqrt_f32', 'v_sin_f32', 'v_cos_f32', 'v_rcp_iflag_f32')

def parse_regs(tok):
    tok = tok.strip()
    neg = tok.startswith('-')
    if neg: tok = tok[1:]
    m = re.fullmatch(r'abs\((.*)\)', tok)
    if m: tok = m.group(1)
    m = re.fullmatch(r'\|(.*)\|', tok)
    if m: tok = m.group(1)
    m = re.fullmatch(r'([vsa])(\d+)', tok)
    if m: return m.group(1), {int(m.group(2))}
    m = re.fullmatch(r'([vsa])\[(\d+):(\d+)\]', tok)
    if m: return m.group(1), set(range(int(m.group(2)), int(m.group(3)) + 1))
    if tok == 'vcc': return 's', {106, 107}
    if tok == 'vcc_lo': return 's', {106}
    if tok == 'vcc_hi': return 's', {107}
    if tok == 'exec': return 's', {126, 127}
    if tok == 'm0': return 's', {124}
    return None

class Ins:
    __slots__ = ('text', 'op', 'vw', 'vr', 'sw', 'sr', 'cls', 'passes', 'srcc', 'srcab', 'dpp', 'stdata', 'states')

def analyze(text):
    t = text.split(';')[0].strip()
    parts = t.split(None, 1)
    op = parts[0]
    rest = parts[1] if len(parts) > 1 else ''
    ops = []
    cur = ''; depth = 0
    for ch in rest:
        if ch in '[(': depth += 1
        if ch in '])': depth -= 1
        if ch == ',' and depth == 0:
            ops.append(cur.strip()); cur = ''
        else:
            cur += ch
    if cur.strip(): ops.append(cur.strip())
    mods = ''
    if ops:
        sp = ops[-1].split(None, 1)
        ops[-1] = sp[0]
        mods = sp[1] if len(sp) > 1 else ''
    I = Ins()
    I.text = text; I.op = op
    I.vw = set(); I.vr = set(); I.sw = set(); I.sr = set()
    I.cls = 'other'; I.passes = 0; I.srcc = set(); I.srcab = set(); I.dpp = False; I.stdata = set(); I.states = 1
    regs = [parse_regs(o) for o in ops]
    def addr(i):
        r = regs[i]
        if r is None: return
        (I.vr if r[0] in 'va' else I.sr).update({(x + (1000 if r[0] == 'a' else 0)) for x in r[1]})
    def addw(i):
        r = regs[i]
        if r is None: return
        (I.vw if r[0] in 'va' else I.sw).update({(x + (1000 if r[0] == 'a' else 0)) for x in r[1]})
    n = len(ops)
    if op == 's_nop':
        I.cls = 'nop'; I.states = int(ops[0], 0) + 1
    elif op.startswith('v_mfma'):
        I.cls = 'mfma'
        I.passes = 8 if '32x32' in op else 4
        addw(0)
        for i in (1, 2, 3): addr(i)
        I.srcc = set(regs[3][1]) if regs[3] else set()
        I.srcab = set(regs[1][1]) | set(regs[2][1])
    elif op.startswith('v_cmp'):
        I.cls = 'valu'; addw(0)
        for i in range(1, n): addr(i)
        if op.startswith('v_cmpx'): I.sw.update({126, 127})
    elif op in ('v_readfirstlane_b32', 'v_readlane_b32'):
        I.cls = 'valu'; addw(0)
        for i in range(1, n): addr(i)
    elif op.startswith('v_permlane'):
        I.cls = 'valu'; addw(0); addw(1); addr(0); addr(1)
    elif op.startswith('v_'):
        I.cls = 'trans' if op.replace('_e32', '').replace('_e64', '') in TRANS else 'valu'
        addw(0)
        st = 1
        if op.startswith(('v_add_co', 'v_sub_co', 'v_addc_co', 'v_subb_co', 'v_subrev_co', 'v_div_scale', 'v_mad_u64')):
            addw(1); st = 2
        for i in range(st, n): addr(i)
        if op.startswith(('v_fmac', 'v_mac', 'v_pk_fmac', 'v_dot2c')) or 'd16' in op or '_sdwa' in op and 'PRESERVE' in mods: addr(0)
        if op.startswith('v_cndmask') and n == 3: I.sr.update({106, 107})
        if '_dpp' in op:
            I.dpp = True
            addr(0)
    elif op.startswith('ds_'):
        I.cls = 'ds'
        if op.startswith(('ds_read', 'ds_bpermute', 'ds_permute', 'ds_swizzle')):
            addw(0)
            for i in range(1, n): addr(i)
        else:
            for i in range(n): addr(i)
    elif op.startswith(('buffer_', 'global_', 'flat_')):
        I.cls = 'vmem'
        lds = ' lds' in (' ' + mods) or '_lds_' in op
        if 'load' in op and not lds:
            addw(0)
            for i in range(1, n): addr(i)
            if 'd16' in op: addr(0)
        else:
            for i in range(n): addr(i)
            if lds: I.sr.add(124)
            if 'store' in op and ('x4' in op or 'x3' in op):
                di = 0 if op.startswith('buffer_') else 1
                I.stdata = set(regs[di][1])
        if 'atomic' in op and 'sc0' in mods: addw(0)
    elif op.startswith('s_'):
        I.cls = 'salu'
        if op.startswith(('s_cmp', 's_cbranch', 's_branch', 's_waitcnt', 's_barrier', 's_endpgm', 's_sleep', 's_setprio', 's_bitcmp', 's_setpc')):
            for i in range(n): addr(i)
        else:
            addw(0)
            for i in range(1, n): addr(i)
            if 'saveexec' in op: I.sw.update({126, 127})
    return I

def need(prev, cur):
    w = 0
    pv = prev.cls in ('valu', 'trans')
    cv = cur.cls in ('valu', 'trans')
    if pv:
        if cur.cls == 'mfma' and prev.vw & cur.vr: w = max(w, 2)
        if cv and cur.dpp and prev.vw & cur.vr: w = max(w, 2)
        if cur.op.startswith('v_permlane') and prev.vw & cur.vr: w = max(w, 2)
        if cur.op in ('v_readfirstlane_b32', 'v_readlane_b32') and prev.vw & cur.vr: w = max(w, 1)
        if prev.cls == 'trans' and prev.vw & cur.vr: w = max(w, TRANS_WS)
        if cur.cls == 'trans' and prev.vw & cur.vr: w = max(w, PRE_TRANS_WS)
        if prev.sw:
            if cv and prev.sw & cur.sr: w = max(w, 4 if cur.op in ('v_readlane_b32', 'v_writelane_b32') else 2)
            if cur.cls == 'vmem' and prev.sw & cur.sr: w = max(w, 5)
            if cur.cls == 'salu' and prev.sw & cur.sr: w = max(w, 4)
            if prev.sw & {126, 127}:
                if cur.cls == 'mfma': w = max(w, 4)
                if cur.dpp: w = max(w, 5)
                if cur.op.startswith(('v_permlane', 'v_readlane', 'v_readfirstlane')): w = max(w, 4)
        if ('_sdwa' in prev.op or 'op_sel' in prev.text and not prev.op.startswith('v_pk_')) and cv and prev.vw & cur.vr: w = max(w, 1)
    if prev.cls == 'mfma':
        P = prev.passes
        if cur.cls == 'mfma':
            if prev.vw & cur.srcab: w = max(w, 8 if P == 4 else 12)
            ov = prev.vw & cur.srcc
            if ov and not (prev.vw == cur.srcc and prev.passes == cur.passes): w = max(w, 6 if P == 4 else 10)
            if prev.vw & cur.vw and not (prev.vw == cur.srcc): w = max(w, 6 if P == 4 else 10)
        elif cur.cls in ('valu', 'trans', 'vmem', 'ds'):
            if prev.vw & (cur.vr | cur.vw): w = max(w, 8 if P == 4 else 12)
            if cv and prev.srcc & cur.vw: w = max(w, 3 if P == 4 else 7)
    if prev.cls == 'salu' and 124 in prev.sw and 124 in cur.sr and cur.cls in ('vmem', 'ds'): w = max(w, 1)
    if prev.stdata and prev.stdata & cur.vw: w = max(w, 2)
    return w

class Asm:
    def __init__(self):
        self.L = []
        self.hist = []
        self.nnops = 0
    def raw(self, s):
        self.L.append(s)
    def __call__(self, txt):
        for line in txt.strip().split('\n'):
            line = line.strip()
            if not line: continue
            if line.startswith(';'):
                self.L.append('    ' + line); continue
            if line.endswith(':'):
                self.L.append(line); continue
            self.emit(line)
    def emit(self, line):
        I = analyze(line)
        req = 0
        dist = 0
        dist_nt = 0
        for p in reversed(self.hist):
            r = need(p, I)
            d = dist_nt if p.cls == 'trans' else dist
            if r - d > req: req = r - d
            dist += p.states
            if p.cls != 'trans': dist_nt += p.states
            if dist > 24: break
        if req > 0:
            self.nnops += 1
            N = analyze(f's_nop {req-1}')
            self.L.append(f'    s_nop {req-1}')
            self.hist.append(N)
        self.L.append('    ' + line)
        self.hist.append(I)
        if len(self.hist) > 40: self.hist = self.hist[-40:]
    def lab(self, name):
        self.L.append(name + ':')
    def fence(self, n=12):
        while n > 0:
            k = min(n, 16)
            self.emit(f's_nop {k-1}')
            n -= k
    def text(self):
        return '\n'.join(self.L) + '\n'
```

```python
import numpy as np
from gen import *
import gen as _g
_stamp0 = stamp
PST = {'start': None}
def stamp(a, i, base=18):
    if PST['start'] is not None and i not in (0, 15): return
    if PST.get('clk') and _g.PROF['on']:
        m = {1: 3, 2: 4, 9: 5, 10: 6, 0: 7, 15: 8}
        if i in (3, 4, 5, 6, 7, 8): return
        if i in m:
            a('s_memtime s[14:15]')
            a('s_waitcnt lgkmcnt(0)')
            a(f's_mov_b32 s{base+m[i]}, s14')
    _stamp0(a, i, base)
def sstamp(a, stage):
    if PST['start'] is None: return
    k = stage - PST['start']
    if 0 <= k < 14: _stamp0(a, 1 + k)

SLOT = 20480
BOFF = 8192
S_RB, S_CB, S_WI, S_WJ = 82, 83, 86, 87
S_KC, S_AO, S_BO, S_T, S_T2, S_CNT = 88, 89, 90, 91, 92, 93
S_ABASE, S_BBASE = 94, 95
S_M_A, S_M_B, S_M_C = 3, 4, 5
S_K1 = 6
S_ONE = 8
S_KC0 = 10
S_FZA = 11
S_TMP2 = 12
S_WOB = 76
S_ROT = 78
CTR = 19456
V_L = 1
V_AD = 2
V_BD = 4
V_AR = 7
V_BR = 11
V_UR, V_US = 13, 14
V_T = 16
ACC2, ACC1, WF, XF = 24, 48, 72, 96
t0, t1, t2, t3 = V_T, V_T + 1, V_T + 2, V_T + 3
ST, MM, RR, ZQ, BSP, K0V = 96, 112, 120, 128, 140, 142
LN = 3 * SLOT

class VM:
    def __init__(self): self.ops = []
    def issue(self, tag, n=1): self.ops += [tag] * n
    def n_after(self, tag):
        idx = max(i for i, t in enumerate(self.ops) if t == tag)
        return len(self.ops) - 1 - idx

def gelu2(a, cs, k0v, after):
    T = [V_T, V_T + 4]
    def both(f):
        for c, t in zip(cs, T): a(f(c, t))
    both(lambda c, t: f'v_cvt_pk_bf16_f32 v{t+2}, v{c}, v{c+1}')
    both(lambda c, t: f'v_lshlrev_b32 v{t}, 16, v{t+2}')
    both(lambda c, t: f'v_and_b32 v{t+1}, 0xffff0000, v{t+2}')
    both(lambda c, t: f'v_pk_mul_f32 {vr(t+2,2)}, {vr(t,2)}, {vr(t,2)}')
    both(lambda c, t: f'v_pk_fma_f32 {vr(t+2,2)}, {vr(t+2,2)}, {sp(S_K1)}, {vr(k0v,2)}')
    both(lambda c, t: f'v_pk_mul_f32 {vr(t+2,2)}, {vr(t+2,2)}, {vr(t,2)}')
    both(lambda c, t: f'v_exp_f32 v{t+2}, v{t+2}')
    both(lambda c, t: f'v_exp_f32 v{t+3}, v{t+3}')
    both(lambda c, t: f'v_pk_add_f32 {vr(t+2,2)}, {vr(t+2,2)}, {sp(S_ONE)}')
    both(lambda c, t: f'v_rcp_f32 v{t+2}, v{t+2}')
    both(lambda c, t: f'v_rcp_f32 v{t+3}, v{t+3}')
    both(lambda c, t: f'v_pk_mul_f32 {vr(t+2,2)}, {vr(t+2,2)}, {vr(t,2)}')
    steps = [after(c, t) for c, t in zip(cs, T)]
    for x, y in zip(*steps):
        a(x); a(y)

def gelu_packed(regs, k0v):
    T = [V_T, V_T + 4]
    L = []
    def both(f):
        for c, t in zip(regs, T): L.append(f(c, t))
    both(lambda c, t: f'v_lshlrev_b32 v{t}, 16, v{c}')
    both(lambda c, t: f'v_and_b32 v{t+1}, 0xffff0000, v{c}')
    both(lambda c, t: f'v_pk_mul_f32 {vr(t+2,2)}, {vr(t,2)}, {vr(t,2)}')
    both(lambda c, t: f'v_pk_fma_f32 {vr(t+2,2)}, {vr(t+2,2)}, {sp(S_K1)}, {vr(k0v,2)}')
    both(lambda c, t: f'v_pk_mul_f32 {vr(t+2,2)}, {vr(t+2,2)}, {vr(t,2)}')
    both(lambda c, t: f'v_exp_f32 v{t+2}, v{t+2}')
    both(lambda c, t: f'v_exp_f32 v{t+3}, v{t+3}')
    both(lambda c, t: f'v_pk_add_f32 {vr(t+2,2)}, {vr(t+2,2)}, {sp(S_ONE)}')
    both(lambda c, t: f'v_rcp_f32 v{t+2}, v{t+2}')
    both(lambda c, t: f'v_rcp_f32 v{t+3}, v{t+3}')
    both(lambda c, t: f'v_pk_mul_f32 {vr(t+2,2)}, {vr(t+2,2)}, {vr(t,2)}')
    both(lambda c, t: f'v_cvt_pk_bf16_f32 v{c}, v{t+2}, v{t+3}')
    return L

def flag_store(a, sreg, vtmp):
    a(f'v_mov_b32 v{vtmp}, s{S_TAG}')
    a(f's_mov_b64 {sp(S_TMP2)}, exec')
    a('s_mov_b64 exec, 1')
    a(f'buffer_store_dword v{vtmp}, off, {srd(SRD_WS)}, s{sreg} sc1')
    a(f's_mov_b64 exec, {sp(S_TMP2)}')

def gemm_role(a, opt):
    vm = VM()
    PST['start'] = opt.get('pst')
    PST['clk'] = opt.get('clk')
    stop = opt.get('stop', 99)
    OC = {0: '', 1: 'sc1', 2: 'nt', 3: 'sc0 sc1'}[opt.get('oc', 0)]
    LNS = opt.get('lns', 16)
    LDS_ = opt.get('lds', 15)
    FZS = opt.get('fzs', 1)
    c0 = np.sqrt(2 / np.pi)
    k0 = -2 * c0 * LOG2E; k1 = k0 * 0.044715
    a(f's_setprio {opt.get("prio", 2)}')
    stamp(a, 0)
    a(f's_and_b32 s{S_T}, s2, 7')
    a(f's_lshr_b32 s{S_T2}, s2, 3')
    a(f's_lshr_b32 s{S_RB}, s{S_T}, 1')
    a(f's_lshl_b32 s{S_RB}, s{S_RB}, 3')
    a(f's_lshr_b32 s{S_CNT}, s{S_T2}, 2')
    a(f's_add_u32 s{S_RB}, s{S_RB}, s{S_CNT}')
    a(f's_and_b32 s{S_CB}, s{S_T}, 1')
    a(f's_lshl_b32 s{S_CB}, s{S_CB}, 2')
    a(f's_and_b32 s{S_CNT}, s{S_T2}, 3')
    a(f's_add_u32 s{S_CB}, s{S_CB}, s{S_CNT}')
    a(f's_lshr_b32 s{S_WI}, s{S_W}, 1')
    a(f's_and_b32 s{S_WJ}, s{S_W}, 1')
    mk_srd(a, SRD_X, P_U, 2048 * 640 * 2)
    mk_srd(a, SRD_WIN, P_WIN, 640 * 1536 * 2)
    a(f's_mul_i32 s{S_KC}, s{S_CB}, 3')
    a(f's_add_u32 s{S_KC}, s{S_KC}, s{S_RB}')
    a(f's_mul_i32 s{S_T}, s{S_KC}, 205')
    a(f's_lshr_b32 s{S_T}, s{S_T}, 11')
    a(f's_mul_i32 s{S_T}, s{S_T}, 10')
    a(f's_sub_u32 s{S_KC}, s{S_KC}, s{S_T}')
    a(f's_mov_b32 s{S_KC0}, s{S_KC}')
    a(f's_lshl_b32 s{S_M_A}, s{S_W}, 11')
    a(f's_mul_i32 s{S_M_B}, s{S_W}, 3072')
    a(f's_add_u32 s{S_M_B}, s{S_M_B}, {BOFF}')
    a(f's_mul_i32 s{S_ABASE}, s{S_RB}, {64*1280}')
    a(f's_mul_i32 s{S_BBASE}, s{S_CB}, 192')
    a(f's_add_u32 s{S_BBASE}, s{S_BBASE}, 1536')
    def row_dma_offsets(pitch):
        a(f'v_lshrrev_b32 v{t0}, 3, v{V_L}')
        a(f'v_and_b32 v{t1}, 7, v{V_L}')
        a(f'v_bfe_u32 v{t2}, v{V_L}, 4, 1')
        a(f'v_xor_b32 v{t1}, v{t1}, v{t2}')
        a(f's_lshl_b32 s{S_T}, s{S_W}, 4')
        a(f'v_add_u32 v{t0}, s{S_T}, v{t0}')
        a(f'v_mul_u32_u24 v{t0}, {pitch}, v{t0}')
        a(f's_lshl_b32 s{S_T}, s{S_WJ}, 2')
        a(f'v_xor_b32 v{t1}, s{S_T}, v{t1}')
        a(f'v_lshl_add_u32 v{V_AD}, v{t1}, 4, v{t0}')
        a(f'v_xor_b32 v{t1}, 2, v{t1}')
        a(f'v_lshl_add_u32 v{V_AD+1}, v{t1}, 4, v{t0}')
        a(f'v_add_u32 v{V_AD+1}, {8*pitch-1024}, v{V_AD+1}')
    row_dma_offsets(1280)
    def run_units(units, track=True):
        for (lines, tag) in units:
            for l in lines: a(l)
            if track: vm.issue(tag, 1)
    def dma_p1_A(stage, kc=None):
        slot = (stage & 3) * SLOT
        return [([f's_lshl_b32 s{S_AO}, s{S_KC}, 7', f's_add_u32 s{S_AO}, s{S_AO}, s{S_ABASE}', f's_add_u32 m0, s{S_M_A}, {slot}',
                  f'buffer_load_dwordx4 v{V_AD}, {srd(SRD_X)}, s{S_AO} offen lds'], ('A', stage)),
                ([f'buffer_load_dwordx4 v{V_AD+1}, {srd(SRD_X)}, s{S_AO} offen offset:1024 lds'], ('A', stage))]
    def dma_p1_B(stage):
        slot = (stage & 3) * SLOT
        U = []
        pre = [f's_mul_i32 s{S_BO}, s{S_KC}, {64*3072}', f's_add_u32 s{S_BO}, s{S_BO}, s{S_BBASE}', f's_add_u32 m0, s{S_M_B}, {slot}', f's_add_u32 s{S_KC}, s{S_KC}, 1']
        for j in range(3):
            L = (pre if j == 0 else []) + [f'buffer_load_dwordx4 v{V_BD+j}, {srd(SRD_WIN)}, s{S_BO} offen offset:{1024*j} lds']
            if j == 2:
                L += [f's_cmp_eq_u32 s{S_KC}, 10', f's_cselect_b32 s{S_KC}, 0, s{S_KC}']
                if stage == 9: L += [f's_sub_u32 s{S_BBASE}, s{S_BBASE}, 1536']
            U.append((L, ('B', stage)))
        return U
    def dma_p1(stage): return (dma_p1_A(stage) if stage < 10 else []) + dma_p1_B(stage)
    vm.issue('epoch')
    run_units(dma_p1_A(0))
    a(f's_mul_i32 s{S_T}, s{S_W}, 192')
    for j in range(3):
        a(f'v_add_u32 v{t0}, s{S_T}, v{V_L}')
        if j: a(f'v_add_u32 v{t0}, {64*j}, v{t0}')
        a(f'v_mul_u32_u24 v{t1}, 43691, v{t0}')
        a(f'v_lshrrev_b32 v{t1}, 19, v{t1}')
        a(f'v_mul_u32_u24 v{t2}, 12, v{t1}')
        a(f'v_sub_u32 v{t0}, v{t0}, v{t2}')
        a(f'v_bfe_u32 v{t2}, v{t1}, 3, 1')
        a(f'v_mad_u32_u24 v{t0}, v{t2}, 6, v{t0}')
        a(f'v_subrev_u32 v{t2}, 12, v{t0}')
        a(f'v_min_u32 v{t0}, v{t0}, v{t2}')
        a(f'v_mul_u32_u24 v{t1}, 3072, v{t1}')
        a(f'v_lshl_add_u32 v{V_BD+j}, v{t0}, 4, v{t1}')
        if j: a(f'v_subrev_u32 v{V_BD+j}, {1024*j}, v{V_BD+j}')
    run_units(dma_p1_B(0))
    for s in range(1, 4): run_units(dma_p1(s))
    mk_srd(a, SRD_WSP, P_WSP, 2048 * 2048 * 2)
    mk_srd(a, SRD_OUT, P_OUT, 2048 * 640 * 2)
    PAT7 = ([-1, -1, 9, 9], [-1, 9, 9])
    PAT = {5: ([0, 2, 4], [1, 3]), 3: ([1, 4], [2]), 2: ([1], [2]), 0: ([], [])}
    if opt.get('pat') == 1: PAT = {5: ([9, 9, 9], [9, 9]), 3: ([9, 9], [9]), 2: ([9], [9]), 0: ([], [])}
    if opt.get('pat') == 2: PAT = {5: ([9, 9, 9, 9, 9], []), 3: ([9, 9, 9], []), 2: ([9, 9], []), 0: ([], [])}
    if opt.get('pat', 3) == 3: PAT = {5: ([-1, -1, 9], [-1, 9]), 3: ([-1, 9], [9]), 2: ([9], [9]), 0: ([], [])}
    def with_units(mf_lines, pos_units, track=True):
        for (p, u) in pos_units:
            if p < 0: run_units([u], track)
        for i, l in enumerate(mf_lines):
            a(l)
            for (p, u) in pos_units:
                if p == i: run_units([u], track)
        for (p, u) in pos_units:
            if p >= len(mf_lines): run_units([u], track)
    def split_units(U):
        first, second = PAT[len(U)] if len(U) in PAT else PAT7 if len(U) == 7 else ([-1, 9], [-1, 9])
        return list(zip(first, U[:len(first)])), list(zip(second, U[len(first):]))
    def lane_mq():
        a(f'v_and_b32 v{t0}, 15, v{V_L}')
        a(f'v_lshrrev_b32 v{t1}, 4, v{V_L}')
    lane_mq()
    a(f'v_lshrrev_b32 v{t2}, 2, v{t0}')
    a(f'v_lshlrev_b32 v{t3}, 3, v{t2}')
    a(f'v_and_b32 v{V_AR}, 3, v{t0}')
    a(f'v_add_u32 v{t3}, v{t3}, v{V_AR}')
    a(f's_lshl_b32 s{S_T}, s{S_WI}, 5')
    a(f'v_add_u32 v{t3}, s{S_T}, v{t3}')
    a(f'v_lshlrev_b32 v{t3}, 7, v{t3}')
    a(f'v_lshlrev_b32 v{t2}, 1, v{t2}')
    a(f'v_bfe_u32 v{V_AR}, v{t0}, 1, 1')
    a(f'v_or_b32 v{t2}, v{t2}, v{V_AR}')
    a(f'v_xor_b32 v{t2}, v{t2}, v{t1}')
    a(f'v_lshl_add_u32 v{V_AR}, v{t2}, 4, v{t3}')
    a(f'v_xor_b32 v{V_AR+1}, 64, v{V_AR}')
    a(f'v_add_u32 v{V_AR+2}, {2*SLOT}, v{V_AR}')
    a(f'v_add_u32 v{V_AR+3}, {2*SLOT}, v{V_AR+1}')
    a(f'v_lshrrev_b32 v{t2}, 2, v{t0}')
    a(f'v_lshl_add_u32 v{t2}, v{t1}, 3, v{t2}')
    a(f'v_mul_u32_u24 v{t2}, 192, v{t2}')
    a(f'v_and_b32 v{t3}, 1, v{t1}')
    a(f'v_xor_b32 v{t3}, s{S_WJ}, v{t3}')
    a(f'v_mul_u32_u24 v{t3}, 96, v{t3}')
    a(f'v_add_u32 v{t2}, v{t2}, v{t3}')
    a(f'v_and_b32 v{t3}, 3, v{V_L}')
    a(f'v_lshl_add_u32 v{V_BR}, v{t3}, 3, v{t2}')
    a(f'v_add_u32 v{V_BR}, {BOFF}, v{V_BR}')
    a(f'v_add_u32 v{V_BR+1}, {2*SLOT}, v{V_BR}')
    a(f'v_lshrrev_b32 v{t2}, 2, v{t0}')
    a(f'v_lshl_add_u32 v{t3}, v{t1}, 3, v{t2}')
    a(f'v_lshlrev_b32 v{V_UR}, 7, v{t3}')
    a(f'v_lshrrev_b32 v{t2}, 1, v{t2}')
    a(f'v_lshl_or_b32 v{t2}, v{t1}, 1, v{t2}')
    a(f'v_bfe_u32 v{t3}, v{V_L}, 1, 1')
    a(f's_lshl_b32 s{S_T}, s{S_W}, 1')
    a(f'v_add_u32 v{t3}, s{S_T}, v{t3}')
    a(f'v_xor_b32 v{t3}, v{t3}, v{t2}')
    a(f'v_lshl_add_u32 v{V_UR}, v{t3}, 4, v{V_UR}')
    a(f'v_and_b32 v{t3}, 1, v{V_L}')
    a(f'v_lshl_add_u32 v{V_UR}, v{t3}, 3, v{V_UR}')
    a(f's_lshl_b32 s{S_T}, s{S_W}, 4')
    a(f'v_add_u32 v{V_US}, s{S_T}, v{t0}')
    a(f'v_lshlrev_b32 v{V_US}, 12, v{V_US}')
    a(f'v_lshl_add_u32 v{V_US}, v{t1}, 4, v{V_US}')
    a(f's_mov_b32 s{S_K1}, {hx(k1)}')
    a(f's_mov_b32 s{S_K1+1}, {hx(k1)}')
    a(f's_mov_b32 s{S_ONE}, 1.0')
    a(f's_mov_b32 s{S_ONE+1}, 1.0')
    a(f's_waitcnt vmcnt({vm.n_after("epoch")})')
    a(f'v_readfirstlane_b32 s{S_TAG}, v127')
    a(f's_add_u32 s{S_TAG}, s{S_TAG}, 1')

    def ar(stage, ks): return V_AR + ks + (2 if (stage & 2) else 0)
    def so(stage): return (stage & 1) * SLOT
    def br(stage): return V_BR + (1 if (stage & 2) else 0)
    def reads_p1(stage, ks):
        n = 0
        if stage < 10:
            for tau in range(2):
                a(f'ds_read_b128 {vr(XF+16*stage+8*ks+4*tau,4)}, v{ar(stage,ks)} offset:{so(stage)+512*tau}'); n += 1
        for phi in range(3):
            for half in range(2):
                a(f'ds_read_b64_tr_b16 {vr(WF+12*ks+4*phi+2*half,2)}, v{br(stage)} offset:{so(stage)+6144*ks+768*half+32*phi}'); n += 1
        return n
    def mfma_p1(stage, ks):
        i = stage % 10
        L = []
        for tau in range(2):
            for phi in range(3):
                x = vr(XF + 16 * i + 8 * ks + 4 * tau, 4); w = vr(WF + 12 * ks + 4 * phi, 4)
                if stage < 10:
                    c = vr(ACC2 + 4 * (3 * tau + phi), 4)
                    L.append(f'v_mfma_f32_16x16x32_bf16 {c}, {x}, {w}, {c if (i or ks) else 0}')
                else:
                    c = vr(ACC1 + 4 * (2 * phi + tau), 4)
                    L.append(f'v_mfma_f32_16x16x32_bf16 {c}, {w}, {x}, {c if (i or ks) else 0}')
        return L
    def dma_p2_A(stage):
        slot = (stage & 3) * SLOT
        return [([f's_lshl_b32 s{S_AO}, s{S_KC}, 7', f's_add_u32 s{S_AO}, s{S_AO}, s{S_ABASE}', f's_add_u32 m0, s{S_M_A}, {slot}', f's_add_u32 s{S_KC}, s{S_KC}, 1',
                  f'buffer_load_dwordx4 v{V_AD}, {srd(SRD_WSP)}, s{S_AO} offen lds'], ('A', stage)),
                ([f'buffer_load_dwordx4 v{V_AD+1}, {srd(SRD_WSP)}, s{S_AO} offen offset:1024 lds', f's_and_b32 s{S_KC}, s{S_KC}, 31'], ('A', stage))]
    S_KZ = S_KC0
    def dma_p2_B(stage):
        slot = (stage & 3) * SLOT
        U = []
        for j in range(3):
            L = [f's_mul_i32 s{S_BO}, s{S_KZ}, 12288', f's_add_u32 s{S_BO}, s{S_BO}, s{S_BBASE}', f's_add_u32 m0, s{S_M_B}, {slot}', f's_add_u32 s{S_KZ}, s{S_KZ}, 1'] if j == 0 else []
            L += [f'buffer_load_dwordx4 v{V_BD}, {srd(SRD_WS)}, s{S_BO} offen offset:{1024*j} sc1 lds']
            if j == 2: L += [f's_and_b32 s{S_KZ}, s{S_KZ}, 31']
            U.append((L, ('B', stage)))
        return U
    def rot2(dst):
        a(f's_lshl_b32 s{dst}, s{S_CB}, 3')
        a(f's_add_u32 s{dst}, s{dst}, s{S_RB}')
        a(f's_and_b32 s{dst}, s{dst}, 31')
    def ut_chunk(extra):
        if extra:
            a(f's_add_u32 s{S_T}, s{S_KC0}, {extra}')
            a(f's_sub_u32 s{S_T2}, s{S_T}, 10')
            a(f's_min_u32 s{S_T}, s{S_T}, s{S_T2}')
        else:
            a(f's_mov_b32 s{S_T}, s{S_KC0}')
    V_A4 = 144
    def wsp_setup():
        a(f'v_lshrrev_b32 v{t0}, 3, v{V_L}')
        a(f'v_lshlrev_b32 v{t0}, 12, v{t0}')
        a(f'v_and_b32 v{t1}, 7, v{V_L}')
        a(f'v_bfe_u32 v{t2}, v{V_L}, 4, 1')
        a(f'v_xor_b32 v{t1}, v{t1}, v{t2}')
        for j in range(4):
            a(f'v_xor_b32 v{t2}, {2*j}, v{t1}')
            a(f'v_lshl_add_u32 v{VA4(j)}, v{t2}, 4, v{t0}')
            if j: a(f'v_add_u32 v{VA4(j)}, {8*j*4096-1024*j}, v{VA4(j)}')
        a(f's_lshl_b32 s{S_ABASE}, s{S_RB}, 18')
        a(f's_mul_i32 s{S_M_A}, s{S_W}, {SLOT}')
        rot2(S_KA)
        a(f's_add_u32 s{S_KA}, s{S_KA}, s{S_W}')
    def VA4(j): return (V_AD, V_AD + 1, V_UR + 0 if False else 15, 0)[j]
    S_KA = S_M_C
    def adma(par):
        U = []
        for gq in range(8):
            L = []
            if gq == 0:
                L += [f's_and_b32 s{S_KA}, s{S_KA}, 31', f's_lshl_b32 s{S_A2}, s{S_KA}, 7', f's_add_u32 s{S_A2}, s{S_A2}, s{S_ABASE}', f's_add_u32 s{S_KA}, s{S_KA}, 4']
            if gq == 4:
                L += [f's_add_u32 s{S_A2}, s{S_A2}, 131072']
            L += [f's_add_u32 m0, s{S_M_A}, {8192*par+4096*(gq>>2)}']
            L += [f'buffer_load_dwordx4 v{VA4(gq&3)}, {srd(SRD_WSP)}, s{S_A2} offen offset:{1024*(gq&3)} lds']
            U.append((L, ('A2', par)))
        return U
    S_A2 = 77
    U2 = 4
    UT = V_T
    pend = []
    a(f's_waitcnt vmcnt({vm.n_after(("B", 0))})')
    a('s_barrier')
    stamp(a, 1)
    reads_p1(0, 0)
    for s in range(20):
        if s == 10:
            stamp(a, 2)
            e1_z2(a, opt, vm, k0)
            stamp(a, 3)
        if s == LDS_:
            e2_loads(a, vm)
        if s == LNS:
            stamp(a, 4)
            e2_layernorm(a, opt, vm)
            if opt.get('kd') == 2:
                a(f's_cmp_lg_u32 s{S_W}, 3')
                a('s_cbranch_scc1 L_fs2_skip')
                a(f's_lshl_b32 s{S_T}, s2, 2')
                a(f's_add_u32 s{S_T}, s{S_T}, {WS_FS+1024}')
                flag_store(a, S_T, 18)
                a.lab('L_fs2_skip')
            stamp(a, 5)
        n1 = reads_p1(s, 1)
        ut = s in (0, U2)
        if ut:
            if s == U2:
                a(f's_cmp_ge_u32 s{S_CB}, 2')
                a('s_cbranch_scc1 L_ut2_skip')
            for h2 in range(2):
                for half in range(2):
                    a(f'ds_read_b64_tr_b16 {vr(UT+4*h2+2*half,2)}, v{V_UR} offset:{(s&3)*SLOT+4096*h2+512*half}')
            if s == U2:
                a.lab('L_ut2_skip')
        a(f's_waitcnt lgkmcnt({n1+4 if s == 0 else n1})')
        with_units(mfma_p1(s, 0), pend); pend = []
        if s < 19:
            n = vm.n_after(('B', s + 1))
            if s == LNS + FZS: n = min(n, vm.n_after('z'))
            a(f's_waitcnt vmcnt({n}) lgkmcnt(0)')
        else:
            a('s_waitcnt lgkmcnt(0)')
        a('s_barrier')
        sstamp(a, s)
        if ut:
            if s == U2:
                a(f's_cmp_ge_u32 s{S_CB}, 2')
                a('s_cbranch_scc1 L_us2_skip')
            ut_chunk(s)
            a(f's_lshl_b32 s{S_T}, s{S_T}, 18')
            a(f's_lshl_b32 s{S_T2}, s{S_RB}, 7')
            a(f's_add_u32 s{S_T}, s{S_T}, s{S_T2}')
            a(f's_add_u32 s{S_T}, s{S_T}, {WS_UT}')
            for h2 in range(2):
                a(f'buffer_store_dwordx4 {vr(UT+4*h2,4)}, v{V_US}, {srd(SRD_WS)}, s{S_T} offen offset:{64*h2} sc1')
            if s == U2:
                a.lab('L_us2_skip')
            else:
                vm.issue('ut0', 2)
        if s in (3, U2 + 3):
            a(f's_cmp_lg_u32 s{S_W}, 0')
            a(f's_cbranch_scc1 L_fu{s}_skip')
            if s == U2 + 3:
                a(f's_cmp_ge_u32 s{S_CB}, 2')
                a(f's_cbranch_scc1 L_fu{s}_skip')
            ut_chunk(s - 3)
            a(f's_lshl_b32 s{S_T}, s{S_T}, 5')
            a(f's_add_u32 s{S_T}, s{S_T}, s{S_RB}')
            a(f's_lshl_b32 s{S_T}, s{S_T}, 2')
            a(f's_add_u32 s{S_T}, s{S_T}, {WS_FU}')
            flag_store(a, S_T, V_T)
            a.lab(f'L_fu{s}_skip')
        if s == LNS + FZS:
            a(f's_cmp_lg_u32 s{S_W}, 0')
            a('s_cbranch_scc1 L_fz_skip')
            flag_store(a, S_FZA, V_T)
            a.lab('L_fz_skip')
            stamp(a, 6)
        if s + 4 < 20:
            U = dma_p1(s + 4)
        else:
            U = []
        if s == 12:
            wsp_setup()
        A0S = opt.get('a0s', LNS)
        if s in (A0S, A0S + 1):
            U = U + adma(0)[4 * (s - A0S): 4 * (s - A0S) + 4]
        now, pend = split_units(U)
        if s + 1 in (10, LNS, 20):
            now = now + [(99, u) for (_, u) in pend]; pend = []
        if s < 19:
            reads_p1(s + 1, 0)
        with_units(mfma_p1(s, 1), now)
    stamp(a, 7)
    run_units(adma(1))
    V_PA = 141
    rot2(S_ROT)
    a(f's_add_u32 s{S_T}, s{S_ROT}, s{S_W}')
    a(f'v_lshl_add_u32 v{V_PA}, v{V_L}, 2, s{S_T}')
    a(f'v_and_b32 v{V_PA}, 31, v{V_PA}')
    a(f'v_lshlrev_b32 v{V_PA}, 2, v{V_PA}')
    a(f's_lshl_b32 s{S_T}, s{S_CB}, 7')
    a(f's_add_u32 s{S_T}, s{S_T}, {WS_FZ}')
    a(f'v_add_u32 v{V_PA}, s{S_T}, v{V_PA}')
    if opt.get('no_side') != 1:
        a(f'v_subrev_u32 v{t0}, 8, v{V_L}')
        a(f'v_min_u32 v{t0}, 5, v{t0}')
        a(f's_mul_i32 s{S_T}, s{S_CB}, 24')
        a(f's_mul_i32 s{S_T2}, s{S_W}, 6')
        a(f's_add_u32 s{S_T}, s{S_T}, s{S_T2}')
        a(f'v_add_u32 v{t0}, s{S_T}, v{t0}')
        a(f'v_lshlrev_b32 v{t0}, 2, v{t0}')
        a(f'v_add_u32 v{t0}, {WS_FW}, v{t0}')
        a(f'v_cmp_gt_u32 vcc, 8, v{V_L}')
        a(f'v_cndmask_b32 v{V_PA}, v{t0}, v{V_PA}, vcc')
    V_FL = 140
    S_RDY = 84
    def flags_load():
        a(f'buffer_load_dword v{V_FL}, v{V_PA}, {srd(SRD_WS)}, 0 offen sc1')
    nspin = [0]
    def need_bit(idx, mask=False, fresh=False):
        n = nspin[0]; nspin[0] += 1
        def test():
            if mask:
                a(f's_andn2_b32 s{S_T2}, {idx}, s{S_RDY}')
                a(f's_cbranch_scc0 L_nb{n}_ok')
            else:
                a(f's_bitcmp1_b32 s{S_RDY}, {idx}')
                a(f's_cbranch_scc1 L_nb{n}_ok')
        if fresh:
            a(f'v_cmp_eq_u32 s[{S_RDY}:{S_RDY+1}], s{S_TAG}, v{V_FL}')
        test()
        a(f's_mov_b32 s{S_CNT}, {SPIN_MAX}')
        a.lab(f'L_nb{n}_spin')
        flags_load()
        a('s_waitcnt vmcnt(0)')
        a(f'v_cmp_eq_u32 s[{S_RDY}:{S_RDY+1}], s{S_TAG}, v{V_FL}')
        test()
        a(f's_sub_u32 s{S_CNT}, s{S_CNT}, 1')
        a(f's_cmp_lg_u32 s{S_CNT}, 0')
        a(f's_cbranch_scc1 L_nb{n}_spin')
        a.lab(f'L_nb{n}_ok')
    a(f's_mov_b64 s[{S_RDY}:{S_RDY+1}], 0')
    a(f'v_mov_b32 v{K0V}, {hx(k0)}')
    a(f'v_mov_b32 v{K0V+1}, {hx(k0)}')
    V_ZW = V_US
    lane_mq()
    a(f'v_lshrrev_b32 v{t2}, 2, v{t0}')
    a(f'v_lshlrev_b32 v{t2}, 3, v{t2}')
    a(f'v_and_b32 v{t3}, 3, v{t0}')
    a(f'v_add_u32 v{t2}, v{t2}, v{t3}')
    a(f'v_lshlrev_b32 v{t2}, 3, v{t2}')
    a(f'v_mul_u32_u24 v{t3}, {SLOT}, v{t1}')
    a(f'v_add_u32 v{t2}, v{t2}, v{t3}')
    a(f's_mul_i32 s{S_T}, s{S_WJ}, 1536')
    a(f's_lshl_b32 s{S_T2}, s{S_WI}, 8')
    a(f's_add_u32 s{S_T}, s{S_T}, s{S_T2}')
    a(f's_add_u32 s{S_T}, s{S_T}, 16384')
    a(f'v_add_u32 v{V_ZW}, s{S_T}, v{t2}')
    Z1Q = 128
    def z1_group(i):
        phi, tau = i >> 1, i & 1
        cs = [ACC1 + 4 * i, ACC1 + 4 * i + 2]
        a(f'v_cvt_pk_bf16_f32 v{Z1Q+2*i}, v{cs[0]}, v{cs[0]+1}')
        a(f'v_cvt_pk_bf16_f32 v{Z1Q+2*i+1}, v{cs[1]}, v{cs[1]+1}')
        a(f'ds_write_b64 v{V_ZW}, {vr(Z1Q+2*i,2)} offset:{512*phi+32*tau}')
    NG1 = 6
    a(f'v_mov_b32 v{t2}, {CTR}')
    a(f'v_mov_b32 v{t3}, 8')
    a(f'ds_write_b32 v{t2}, v{t3}')
    for i in range(NG1): z1_group(i)
    G2 = 24
    ZR = 144
    AF = 120
    Z1R = 240
    V_ZD, V_A2R = V_BD, V_AR
    a(f'v_and_b32 v{t0}, 31, v{V_L}')
    a(f'v_lshrrev_b32 v{t1}, 5, v{V_L}')
    a(f's_lshl_b32 s{S_T}, s{S_W}, 3')
    a(f'v_add_u32 v{t3}, s{S_T}, v{t0}')
    a(f'v_and_b32 v{t3}, 31, v{t3}')
    a(f'v_mul_u32_u24 v{t2}, 96, v{t1}')
    a(f'v_add_u32 v{t2}, v{t2}, v{t3}')
    a(f'v_lshlrev_b32 v{V_ZD}, 4, v{t2}')
    a(f'v_lshrrev_b32 v{t2}, 3, v{t0}')
    a(f'v_lshlrev_b32 v{t2}, 1, v{t2}')
    a(f'v_bfe_u32 v{t3}, v{t0}, 1, 1')
    a(f'v_or_b32 v{t2}, v{t2}, v{t3}')
    a(f'v_xor_b32 v{t2}, v{t2}, v{t1}')
    a(f'v_lshlrev_b32 v{t3}, 7, v{t0}')
    a(f'v_lshl_add_u32 v{t2}, v{t2}, 4, v{t3}')
    a(f'v_add_u32 v{V_A2R}, s{S_M_A}, v{t2}')
    for ks in range(1, 4):
        a(f'v_xor_b32 v{t3}, {32*ks}, v{t2}')
        a(f'v_add_u32 v{V_A2R+ks}, s{S_M_A}, v{t3}')
    V_ZR = V_BR
    a(f's_lshl_b32 s{S_T}, s{S_WJ}, 1')
    a(f'v_add_u32 v{t2}, s{S_T}, v{t1}')
    a(f'v_mul_u32_u24 v{t2}, {SLOT}, v{t2}')
    a(f'v_lshl_add_u32 v{t2}, v{t0}, 3, v{t2}')
    a(f's_lshl_b32 s{S_T}, s{S_WI}, 9')
    a(f's_add_u32 s{S_T}, s{S_T}, 16384')
    a(f'v_add_u32 v{V_ZR}, s{S_T}, v{t2}')
    a(f's_lshl_b32 s{S_T}, s{S_RB}, 7')
    a(f'v_lshlrev_b32 v{t2}, 1, v{t0}')
    a(f'v_add_u32 v{t2}, s{S_T}, v{t2}')
    BS2 = 252
    a(f'global_load_ushort v{BS2}, v{t2}, {sp(P_BSP)}')
    a(f'global_load_ushort v{BS2+2}, v{t2}, {sp(P_BSP)} offset:64')
    rot2(S_KZ)
    a(f's_add_u32 s{S_KZ}, s{S_KZ}, s{S_W}')
    a(f's_mul_i32 s{S_BBASE}, s{S_CB}, {32*12288}')
    a(f's_add_u32 s{S_BBASE}, s{S_BBASE}, {WS_Z}')
    a('s_waitcnt lgkmcnt(0)')
    a('s_barrier')
    need_bit(0)
    stamp(a, 8)
    vm.ops = []
    def zld(par):
        U = []
        for ks in range(4):
            for ph in range(3):
                L = []
                if ks == 0 and ph == 0:
                    L += [f's_and_b32 s{S_KZ}, s{S_KZ}, 31', f's_mul_i32 s{S_BO}, s{S_KZ}, 12288', f's_add_u32 s{S_BO}, s{S_BO}, s{S_BBASE}', f's_add_u32 s{S_KZ}, s{S_KZ}, 4']
                elif ph == 0:
                    L += [f's_add_u32 s{S_BO}, s{S_BO}, 3072']
                L += [f'buffer_load_dwordx4 {vr(ZR+48*par+12*ks+4*ph,4)}, v{V_ZD}, {srd(SRD_WS)}, s{S_BO} offen offset:{512*ph} sc1']
                U.append((L, ('Z', par, ks)))
        return U
    run_units(zld(0))
    for i in range(NG1, 6): z1_group(i)
    for i in range(6):
        a(f'ds_read_b64 {vr(Z1R+2*i,2)}, v{V_ZR} offset:{1024*(i>>1)+256*(i&1)}')
    if opt.get('cg', 0) == 1 or opt.get('kd') == 1:
        a(f's_cmp_lg_u32 s{S_W}, 3')
        a('s_cbranch_scc1 L_fs_skip')
        a(f's_lshl_b32 s{S_T}, s2, 2')
        a(f's_add_u32 s{S_T}, s{S_T}, {WS_FS}')
        flag_store(a, S_T, 18)
        a.lab('L_fs_skip')
    def ards(par, ks):
        f = AF + 8 * (ks & 1)
        for tp in range(2):
            a(f'ds_read_b128 {vr(f+4*tp,4)}, v{V_A2R+ks} offset:{8192*par+4096*tp}')
    def chunk(par, loads, wo=None, fill=()):
        U = []
        if loads == 'AZ': U = adma(1 - par) + zld(1 - par)
        if loads == 'Z': U = zld(1 - par)
        if wo: U = wo
        per = (len(U) + 3) // 4
        issued = 0
        for ks in range(4):
            n = 3 * (3 - ks) + issued
            a(f's_waitcnt vmcnt({n}) lgkmcnt(0)')
            if ks < 3:
                ards(par, ks + 1)
            mine = U[issued: issued + per]
            f = AF + 8 * (ks & 1)
            k = 0
            for tp in range(2):
                for ph in range(3):
                    c = vr(G2 + 16 * (2 * ph + tp), 16)
                    a(f'v_mfma_f32_32x32x16_bf16 {c}, {vr(ZR+48*par+12*ks+4*ph,4)}, {vr(f+4*tp,4)}, {0 if (loads == "Z" and ks == 0) else c}')
                    if k < len(mine):
                        run_units([mine[k]], False); k += 1
                    for l in fill[6 * (6 * ks + 3 * tp + ph): 6 * (6 * ks + 3 * tp + ph) + 6]: a(l)
            while k < len(mine):
                run_units([mine[k]], False); k += 1
            issued += len(mine)
            if ks == 3 and loads:
                a('s_waitcnt vmcnt(12)')
                ards(1 - par, 0)
    V_L16 = V_BD + 1
    a(f'v_lshlrev_b32 v{V_L16}, 4, v{V_L}')
    a(f's_mul_i32 s{S_WOB}, s{S_CB}, {24*5120}')
    a(f's_mul_i32 s{S_T}, s{S_W}, {6*5120}')
    a(f's_add_u32 s{S_WOB}, s{S_WOB}, s{S_T}')
    a(f's_add_u32 s{S_WOB}, s{S_WOB}, {WS_WO}')
    V_RW = V_BD + 2
    a(f'v_add_u32 v{V_RW}, s{S_M_A}, v{V_L16}')
    V_RR = 12
    for d in range(1, 4):
        a(f's_sub_u32 s{S_T}, s{S_W}, {d}')
        a(f's_and_b32 s{S_T}, s{S_T}, 3')
        a(f's_mul_i32 s{S_T}, s{S_T}, {SLOT}')
        a(f's_add_u32 s{S_T}, s{S_T}, {6144*(d-1)}')
        a(f'v_add_u32 v{V_RR+d-1}, s{S_T}, v{V_L16}')
    V_CT, V_ONE, V_IX = 136, 137, 138
    a(f'v_mov_b32 v{V_CT}, {CTR}')
    a(f'v_mov_b32 v{V_ONE}, 1')
    a(f'v_mov_b32 v{V_IX}, s{S_W}')
    a(f'v_add_u32 v{V_IX}, 4, v{V_IX}')
    def grab():
        if not opt.get('dyn'):
            a(f'v_add_u32 v{V_IX}, 4, v{V_IX}')
            return
        a(f's_mov_b64 {sp(S_TMP2)}, exec')
        a('s_mov_b64 exec, 1')
        a(f'ds_add_rtn_u32 v{V_IX}, v{V_CT}, v{V_ONE}')
        a(f's_mov_b64 exec, {sp(S_TMP2)}')
    def take(par):
        a('s_waitcnt lgkmcnt(0)')
        a(f'v_readfirstlane_b32 s{S_T}, v{V_IX}')
        a(f's_cmp_ge_u32 s{S_T}, 32')
        a(f's_cbranch_scc1 L_p2_tail{par}')
        a(f's_add_u32 s{S_KA}, s{S_T}, s{S_ROT}')
        a(f's_mov_b32 s{S_KZ}, s{S_KA}')
        a(f's_lshr_b32 s{S_T}, s{S_T}, 2')
        need_bit(f's{S_T}', fresh=True)
        flags_load()
        grab()
    stamp(a, 9)
    a('s_waitcnt lgkmcnt(0)')
    ards(0, 0)
    grab()
    GL = []
    for i in range(6): GL += gelu_packed([Z1R + 2 * i, Z1R + 2 * i + 1], K0V)
    assert len(GL) == 144
    need_bit(1)
    flags_load()
    if opt.get('nofill'):
        for l in GL: a(l)
        GL = ()
    chunk(0, 'Z', fill=GL)
    a.lab('L_p2_loop')
    take(1)
    chunk(1, 'AZ')
    take(0)
    chunk(0, 'AZ')
    a('s_branch L_p2_loop')
    WOS = [144, 164, 192, 212]
    def wold(kk):
        U = []
        for dl in range(5):
            L = [f's_add_u32 s{S_BO}, s{S_WOB}, {5120*kk+(4096 if dl == 4 else 0)}'] if dl in (0, 4) else []
            L += [f'buffer_load_dwordx4 {vr(WOS[kk&3]+4*dl,4)}, v{V_L16}, {srd(SRD_WS)}, s{S_BO} offen offset:{1024*(dl&3)} sc1']
            U.append((L, ('WO', kk)))
        return U
    for par in (1, 0):
        a.lab(f'L_p2_tail{par}')
        other = ZR + 48 * (1 - par)
        AFR = {0: 120, 1: 128, 2: other + 40, 3: 16}
        for ks in range(1, 4):
            for tp in range(2):
                a(f'ds_read_b128 {vr(AFR[ks]+4*tp,4)}, v{V_A2R+ks} offset:{8192*par+4096*tp}')
        a('s_waitcnt vmcnt(0) lgkmcnt(0)')
        if opt.get('no_side') != 1:
            need_bit(0x3f00, mask=True, fresh=True)
        early, late = ((0, 1), (2, 3)) if par == 1 else ((2, 3), (0, 1))
        WOU = wold(early[0]) + wold(early[1])
        k = 0
        def wr(i):
            for d in range(1, 4):
                a(f'ds_write_b128 v{V_RW}, {vr(G2+16*i+4*d,4)} offset:{6144*(d-1)+1024*i}')
        for i in range(6):
            ph, tp = i >> 1, i & 1
            c = vr(G2 + 16 * i, 16)
            for ks in range(4):
                a(f'v_mfma_f32_32x32x16_bf16 {c}, {vr(ZR+48*par+12*ks+4*ph,4)}, {vr(AFR[ks]+4*tp,4)}, {c}')
                if ks in (0, 2) and k < len(WOU):
                    run_units([WOU[k]], False); k += 1
                if ks == 2 and i > 0: wr(i - 1)
        wr(5)
        run_units(wold(late[0]) + wold(late[1]), False)
        if par == 1:
            a('s_branch L_red_done')
    a.lab('L_red_done')
    stamp(a, 10)
    vm.ops = []
    a('s_waitcnt lgkmcnt(0)')
    a('s_barrier')
    for i in range(6):
        for j in range(3):
            a(f'ds_read_b128 {vr(G2+16*i+4+4*j,4)}, v{V_RR+j} offset:{1024*i}')
    a(f'v_lshlrev_b32 v{BS2+1}, 16, v{BS2}')
    a(f'v_lshlrev_b32 v{BS2+3}, 16, v{BS2+2}')
    a(f'v_lshlrev_b32 v{BS2}, 16, v{BS2}')
    a(f'v_lshlrev_b32 v{BS2+2}, 16, v{BS2+2}')
    a(f's_mul_i32 s{S_ABASE}, s{S_RB}, 98304')
    a(f's_add_u32 s{S_ABASE}, s{S_ABASE}, {WS_P}')
    a(f's_mul_i32 s{S_T}, s{S_CB}, 12288')
    a(f's_add_u32 s{S_T}, s{S_T}, s{S_ABASE}')
    a(f's_lshl_b32 s{S_T2}, s{S_W}, 10')
    a(f's_add_u32 s{S_T}, s{S_T}, s{S_T2}')
    PQ = 120
    for ph in range(3):
        for tp in range(2):
            i = 2 * ph + tp
            a(f's_waitcnt lgkmcnt({min(15, 3*(5-i))})')
            T = [V_T, V_T + 4]
            def both(f):
                for hh in range(2): a(f(G2 + 16 * i + 2 * hh, T[hh], hh))
            both(lambda c, t, hh: f'v_pk_add_f32 {vr(c,2)}, {vr(c,2)}, {vr(c+4,2)}')
            both(lambda c, t, hh: f'v_pk_add_f32 {vr(c+8,2)}, {vr(c+8,2)}, {vr(c+12,2)}')
            both(lambda c, t, hh: f'v_pk_add_f32 {vr(c,2)}, {vr(c,2)}, {vr(c+8,2)}')
            both(lambda c, t, hh: f'v_cvt_pk_bf16_f32 v{t+2}, v{c}, v{c+1}')
            both(lambda c, t, hh: f'v_lshlrev_b32 v{t}, 16, v{t+2}')
            both(lambda c, t, hh: f'v_and_b32 v{t+1}, 0xffff0000, v{t+2}')
            both(lambda c, t, hh: f'v_pk_add_f32 {vr(t,2)}, {vr(t,2)}, {vr(BS2+2*tp,2)}')
            both(lambda c, t, hh: f'v_cvt_pk_bf16_f32 v{t+2}, v{t}, v{t+1}')
            both(lambda c, t, hh: f'v_lshlrev_b32 v{c}, 16, v{Z1R+2*i+hh}')
            both(lambda c, t, hh: f'v_and_b32 v{c+1}, 0xffff0000, v{Z1R+2*i+hh}')
            both(lambda c, t, hh: f'v_lshlrev_b32 v{t}, 16, v{t+2}')
            both(lambda c, t, hh: f'v_and_b32 v{t+1}, 0xffff0000, v{t+2}')
            both(lambda c, t, hh: f'v_pk_mul_f32 {vr(t,2)}, {vr(t,2)}, {vr(c,2)}')
            both(lambda c, t, hh: f'v_cvt_pk_bf16_f32 v{PQ+4*ph+2*tp+hh}, v{t}, v{t+1}')
        q = PQ + 4 * ph
        a(f'v_permlane32_swap_b32 v{q}, v{q+2}')
        a(f'v_permlane32_swap_b32 v{q+1}, v{q+3}')
        a(f'buffer_store_dwordx4 {vr(q,4)}, v{V_L16}, {srd(SRD_WS)}, s{S_T} offen sc1')
        if ph < 2: a(f's_add_u32 s{S_T}, s{S_T}, 4096')
    a('s_barrier')
    a(f's_mul_i32 s{S_M_B}, s{S_W}, 15360')
    for j in range(10):
        if j % 4 == 0:
            a(f's_add_u32 m0, s{S_M_B}, {1024*j}')
            a(f's_add_u32 s{S_BO}, s{S_WOB}, {4*5120+1024*j}')
        a(f'buffer_load_dwordx4 v{V_L16}, {srd(SRD_WS)}, s{S_BO} offen offset:{1024*(j%4)} sc1 lds')
    a.fence(2)
    lane_mq()
    V_PP = 7
    a(f'v_and_b32 v{V_PP}, 7, v{V_L}')
    a(f'v_lshlrev_b32 v{V_PP}, 2, v{V_PP}')
    a(f's_lshl_b32 s{S_T}, s{S_RB}, 7')
    a(f's_add_u32 s{S_T}, s{S_T}, {WS_FP}')
    a(f's_lshl_b32 s{S_T2}, s{S_W}, 5')
    a(f's_add_u32 s{S_T2}, s{S_T2}, s{S_T}')
    V_PL0, V_PL1 = 8, 9
    a(f's_lshl_b32 s{S_AO}, s{S_RB}, 5')
    a(f's_add_u32 s{S_AO}, s{S_AO}, {WS_FG}')
    a(f'v_add_u32 v{V_PL0}, s{S_AO}, v{V_PP}')
    a(f'v_add_u32 v{V_PP}, s{S_T2}, v{V_PP}')
    a(f's_lshl_b32 s{S_T2}, s{S_CB}, 4')
    a(f's_add_u32 s{S_T}, s{S_T}, s{S_T2}')
    a(f's_lshl_b32 s{S_T2}, s{S_W}, 2')
    a(f's_add_u32 s{S_T}, s{S_T}, s{S_T2}')
    a(f's_mul_i32 s{S_T2}, s{S_CB}, 320')
    a(f's_add_u32 s{S_T2}, s{S_T2}, {WS_FA}')
    a(f'v_lshlrev_b32 v{V_PL1}, 2, v{V_L}')
    a(f'v_add_u32 v{V_PL1}, s{S_T2}, v{V_PL1}')
    a(f'v_lshlrev_b32 v{t3}, 2, v{t0}')
    a(f'v_add_u32 v{t3}, s{S_T2}, v{t3}')
    a(f'v_add_u32 v{t3}, 256, v{t3}')
    a(f'v_bfe_u32 v{t2}, v{V_L}, 4, 1')
    a(f'v_cmp_eq_u32 vcc, 1, v{t2}')
    a(f'v_cndmask_b32 v{V_PL0}, v{V_PL0}, v{t3}, vcc')
    V_AW, V_O1, V_O2, V_ATR, V_AG, V_PF = 248, 10, 11, 12, 250, 2
    ATR, GT = [136, 140, 184], 188
    a(f's_lshl_b32 s{S_AO}, s{S_W}, 7')
    a(f'v_add_u32 v{t2}, s{S_AO}, v{V_L}')
    a(f's_lshl_b32 s{S_AO}, s{S_WJ}, 6')
    a(f's_add_u32 s{S_AO}, s{S_AO}, 512')
    a(f'v_add_u32 v{t3}, s{S_AO}, v{V_L}')
    ATL = 61440
    a(f'v_lshlrev_b32 v{V_AW}, 4, v{t2}')
    a(f'v_lshlrev_b32 v{V_AW+1}, 4, v{t3}')
    a(f'v_add_u32 v{V_AW}, {ATL}, v{V_AW}')
    a(f'v_add_u32 v{V_AW+1}, {ATL}, v{V_AW+1}')
    for k, tt in enumerate((t2, t3)):
        a(f'v_lshrrev_b32 v{V_AG+k}, 3, v{tt}')
        a(f'v_and_b32 v{tt}, 7, v{tt}')
        a(f'v_lshlrev_b32 v{V_AG+k}, 12, v{V_AG+k}')
        a(f'v_lshl_add_u32 v{V_AG+k}, v{tt}, 4, v{V_AG+k}')
    a(f's_lshl_b32 s{S_AO}, s{S_RB}, 6')
    a(f's_lshl_b32 s{S_BO}, s{S_W}, 4')
    a(f's_add_u32 s{S_AO}, s{S_AO}, s{S_BO}')
    a(f'v_add_u32 v{t2}, s{S_AO}, v{t0}')
    a(f'v_lshlrev_b32 v{V_AG+2}, 3, v{t2}')
    a(f'v_add_u32 v{V_AG+2}, {WS_G}, v{V_AG+2}')
    a(f'v_mul_u32_u24 v{t2}, 1280, v{t2}')
    a(f's_mul_i32 s{S_AO}, s{S_CB}, 160')
    a(f'v_add_u32 v{t2}, s{S_AO}, v{t2}')
    a(f'v_and_b32 v{t3}, 1, v{t1}')
    a(f'v_lshl_add_u32 v{V_O1}, v{t3}, 5, v{t2}')
    a(f'v_lshrrev_b32 v{t3}, 1, v{t1}')
    a(f'v_lshl_add_u32 v{V_O1}, v{t3}, 4, v{V_O1}')
    a(f'v_lshl_add_u32 v{V_O2}, v{t1}, 3, v{t2}')
    a(f'v_add_u32 v{V_O2}, 128, v{V_O2}')
    a(f'v_lshl_add_u32 v{t2}, v{t1}, 6, v{t0}')
    a(f'v_lshlrev_b32 v{t2}, 4, v{t2}')
    VPF = [2, 3, 4, 6]
    for tt in range(4):
        a(f's_add_u32 s{S_AO}, s{S_W}, {tt}')
        a(f's_and_b32 s{S_AO}, s{S_AO}, 3')
        a(f's_lshl_b32 s{S_AO}, s{S_AO}, 8')
        a(f'v_add_u32 v{VPF[tt]}, s{S_AO}, v{t2}')
    a(f's_mul_i32 s{S_AO}, s{S_W}, 24576')
    a(f's_add_u32 s{S_ABASE}, s{S_ABASE}, s{S_AO}')
    a(f'v_lshrrev_b32 v{t2}, 2, v{t0}')
    a(f'v_lshl_add_u32 v{t2}, v{t1}, 2, v{t2}')
    a(f'v_lshlrev_b32 v{t2}, 7, v{t2}')
    a(f'v_and_b32 v{t3}, 3, v{V_L}')
    a(f'v_lshl_add_u32 v{t2}, v{t3}, 3, v{t2}')
    a(f's_lshl_b32 s{S_AO}, s{S_W}, 5')
    a(f's_add_u32 s{S_AO}, s{S_AO}, {ATL}')
    a(f'v_add_u32 v{V_ATR}, s{S_AO}, v{t2}')
    O3 = 24
    a('s_waitcnt vmcnt(10)')
    flag_store(a, S_T, V_T)
    stamp(a, 11)
    if not opt.get('no_side'):
        a(f'buffer_load_dword v20, v{V_PL0}, {srd(SRD_WS)}, 0 offen sc1')
        a(f'buffer_load_dword v21, v{V_PL1}, {srd(SRD_WS)}, 0 offen sc1')
    a(f's_mov_b32 s{S_CNT}, {SPIN_MAX}')
    a(f'buffer_load_dword v16, v{V_PP}, {srd(SRD_WS)}, 0 offen sc1')
    a.lab('L_pp_spin')
    a(f'buffer_load_dword v17, v{V_PP}, {srd(SRD_WS)}, 0 offen sc1')
    a('s_waitcnt vmcnt(1)')
    a(f'v_cmp_ne_u32 vcc, s{S_TAG}, v16')
    a('s_cbranch_vccz L_pp_done')
    a(f'buffer_load_dword v16, v{V_PP}, {srd(SRD_WS)}, 0 offen sc1')
    a('s_waitcnt vmcnt(1)')
    a(f'v_cmp_ne_u32 vcc, s{S_TAG}, v17')
    a('s_cbranch_vccz L_pp_done')
    a(f's_sub_u32 s{S_CNT}, s{S_CNT}, 1')
    a(f's_cmp_lg_u32 s{S_CNT}, 0')
    a('s_cbranch_scc1 L_pp_spin')
    a.lab('L_pp_done')
    stamp(a, 12)
    vm.ops = []
    NPS = 3
    PFS = [104, 120, 232]
    V_AG2 = [V_AG, V_AG + 1, V_AG + 2]
    def pld(kk):
        U = []
        for tt in range(4):
            L = [f's_add_u32 s{S_AO}, s{S_ABASE}, {4096*kk}'] if tt == 0 else []
            L += [f'buffer_load_dwordx4 {vr(PFS[kk%NPS]+4*tt,4)}, v{VPF[tt]}, {srd(SRD_WS)}, s{S_AO} offen sc1']
            U.append((L, ('P', kk)))
        return U
    for kk in range(3): run_units(pld(kk))
    if not opt.get('no_side'):
        a(f'v_cmp_ne_u32 vcc, s{S_TAG}, v20')
        a(f'v_cmp_ne_u32 s[84:85], s{S_TAG}, v21')
        a('s_or_b64 vcc, vcc, s[84:85]')
        a('s_cbranch_vccnz L_pa_late')
    def at_loads():
        a(f's_mul_i32 s{S_T}, s{S_CB}, {80*4096}')
        a(f's_lshl_b32 s{S_T2}, s{S_RB}, 7')
        a(f's_add_u32 s{S_T}, s{S_T}, s{S_T2}')
        a(f's_add_u32 s{S_T}, s{S_T}, {WS_AT}')
        a(f's_add_u32 s{S_T2}, s{S_T}, {8*4096}')
        a(f'buffer_load_dwordx4 {vr(ATR[0],4)}, v{V_AG2[0]}, {srd(SRD_WS)}, s{S_T} offen sc1')
        a(f'buffer_load_dwordx4 {vr(ATR[1],4)}, v{V_AG2[0]}, {srd(SRD_WS)}, s{S_T2} offen sc1')
        a(f'buffer_load_dwordx4 {vr(ATR[2],4)}, v{V_AG2[1]}, {srd(SRD_WS)}, s{S_T} offen sc1')
        a(f'buffer_load_dwordx2 {vr(GT,2)}, v{V_AG2[2]}, {srd(SRD_WS)}, 0 offen sc1')
    at_loads()
    vm.issue('at', 4)
    a(f's_mov_b32 s{S_KZ}, 0')
    if not opt.get('no_side'):
        a('s_branch L_pa_go')
        a.lab('L_pa_late')
        for k in range(4):
            a(f'buffer_load_dword v22, off, {srd(SRD_WS)}, 0')
        a(f's_mov_b32 s{S_KZ}, 1')
        a.lab('L_pa_go')
    stamp(a, 13)
    V_W3, V_R3 = 13, 14
    VR3 = [14, 15, 0]
    a(f's_mul_i32 s{S_T}, s{S_W}, 15360')
    a(f'v_add_u32 v{V_W3}, s{S_T}, v{V_L16}')
    for d in range(1, 4):
        a(f's_sub_u32 s{S_T}, s{S_W}, {d}')
        a(f's_and_b32 s{S_T}, s{S_T}, 3')
        a(f's_mul_i32 s{S_T}, s{S_T}, 15360')
        a(f's_add_u32 s{S_T}, s{S_T}, {5120*(d-1)}')
        a(f'v_add_u32 v{VR3[d-1]}, s{S_T}, v{V_L16}')
    def wr3(tt):
        for dl in range(5):
            a(f'ds_write_b128 v{V_W3}, {vr(O3+4*(5*tt+dl),4)} offset:{5120*(tt-1)+1024*dl}')
    for kk in range(6):
        need = vm.n_after(('P', kk))
        a(f's_waitcnt vmcnt({need})' + (' lgkmcnt(5)' if kk == 4 else ' lgkmcnt(0)' if kk == 5 else ''))
        for tt in ((0, 1, 2, 3) if kk < 5 else (1, 2, 3, 0)):
            for dl in range(5):
                c = vr(O3 + 4 * (5 * tt + dl), 4)
                a(f'v_mfma_f32_16x16x32_bf16 {c}, {vr(WOS[kk&3]+4*dl,4)}, {vr(PFS[kk%NPS]+4*tt,4)}, {c if kk else 0}')
            if kk == 5 and tt != 1: wr3((tt - 1) & 3)
        if kk + 3 < 6: run_units(pld(kk + 3))
        if kk + 4 < 6:
            for dl in range(5):
                a(f'ds_read_b128 {vr(WOS[kk&3]+4*dl,4)}, v{V_W3} offset:{5120*kk+1024*dl}')
    stamp(a, 14)
    if not opt.get('no_side'):
        a(f's_cmp_eq_u32 s{S_KZ}, 0')
        a('s_cbranch_scc1 L_pa_ok')
        poll(a, 'L_pa', [(V_PL0, '0'), (V_PL1, '0')], 20, S_CNT)
        at_loads()
        a.lab('L_pa_ok')
    a('s_waitcnt vmcnt(0)')
    a(f'v_mov_b32 v{GT+2}, v{GT+1}')
    a(f'v_mov_b32 v{GT+3}, v{GT+1}')
    a(f'v_mov_b32 v{GT+1}, v{GT}')
    a(f'ds_write_b128 v{V_AW}, {vr(ATR[0],4)}')
    a(f'ds_write_b128 v{V_AW}, {vr(ATR[1],4)} offset:1024')
    a(f'ds_write_b128 v{V_AW+1}, {vr(ATR[2],4)}')
    a('s_waitcnt lgkmcnt(0)')
    a('s_barrier')
    AV = 104
    for dl in range(5):
        for j in range(3):
            a(f'ds_read_b128 {vr(O3+4*(5*(j+1)+dl),4)}, v{VR3[j]} offset:{1024*dl}')
        a(f'ds_read_b64_tr_b16 {vr(AV+2*dl,2)}, v{V_ATR} offset:{2048*dl}')
    RQ = 116
    for dl in range(5):
        a(f's_waitcnt lgkmcnt({min(15, 4*(4-dl))})')
        T = [V_T, V_T + 4]
        def both(f):
            for hh in range(2): a(f(O3 + 4 * dl + 2 * hh, T[hh], AV + 2 * dl + hh, hh))
        both(lambda c, t, av, hh: f'v_pk_add_f32 {vr(c,2)}, {vr(c,2)}, {vr(c+20,2)}')
        both(lambda c, t, av, hh: f'v_pk_add_f32 {vr(c+40,2)}, {vr(c+40,2)}, {vr(c+60,2)}')
        both(lambda c, t, av, hh: f'v_pk_add_f32 {vr(c,2)}, {vr(c,2)}, {vr(c+40,2)}')
        both(lambda c, t, av, hh: f'v_cvt_pk_bf16_f32 v{t+2}, v{c}, v{c+1}')
        both(lambda c, t, av, hh: f'v_lshlrev_b32 v{t}, 16, v{av}')
        both(lambda c, t, av, hh: f'v_and_b32 v{t+1}, 0xffff0000, v{av}')
        both(lambda c, t, av, hh: f'v_lshlrev_b32 v{c}, 16, v{t+2}')
        both(lambda c, t, av, hh: f'v_and_b32 v{c+1}, 0xffff0000, v{t+2}')
        both(lambda c, t, av, hh: f'v_pk_mul_f32 {vr(t,2)}, {vr(t,2)}, {vr(GT,2)}')
        both(lambda c, t, av, hh: f'v_pk_mul_f32 {vr(c,2)}, {vr(c,2)}, {vr(GT+2,2)}')
        both(lambda c, t, av, hh: f'v_cvt_pk_bf16_f32 v{t+2}, v{t}, v{t+1}')
        both(lambda c, t, av, hh: f'v_cvt_pk_bf16_f32 v{t+3}, v{c}, v{c+1}')
        both(lambda c, t, av, hh: f'v_lshlrev_b32 v{t}, 16, v{t+2}')
        both(lambda c, t, av, hh: f'v_and_b32 v{t+1}, 0xffff0000, v{t+2}')
        both(lambda c, t, av, hh: f'v_lshlrev_b32 v{c}, 16, v{t+3}')
        both(lambda c, t, av, hh: f'v_and_b32 v{c+1}, 0xffff0000, v{t+3}')
        both(lambda c, t, av, hh: f'v_pk_add_f32 {vr(t,2)}, {vr(t,2)}, {vr(c,2)}')
        both(lambda c, t, av, hh: f'v_cvt_pk_bf16_f32 v{RQ+2*dl+hh}, v{t}, v{t+1}')
        if dl in (1, 3):
            q = RQ + 2 * (dl - 1)
            a(f'v_permlane16_swap_b32 v{q}, v{q+2}')
            a(f'v_permlane16_swap_b32 v{q+1}, v{q+3}')
            a(f'buffer_store_dwordx4 {vr(q,4)}, v{V_O1}, {srd(SRD_OUT)}, 0 offen offset:{32*(dl-1)} {OC}')
        if dl == 4:
            a(f'buffer_store_dwordx2 {vr(RQ+8,2)}, v{V_O2}, {srd(SRD_OUT)}, 0 offen {OC}')
    if _g.PROF['on']:
        a('s_waitcnt vmcnt(0)')
    stamp(a, 15)
    stamp_dump(a, 16)
    a('s_endpgm')

def poll1(a, name, vaddrs, vtmp, scount):
    a(f's_cmp_lg_u32 s{S_W}, 0')
    a(f's_cbranch_scc1 {name}_out')
    va = vaddrs[0]
    a(f's_mov_b32 s{scount}, {SPIN_MAX}')
    a(f'buffer_load_dword v{vtmp}, v{va}, {srd(SRD_WS)}, 0 offen sc1')
    a.lab(f'{name}_spin')
    a(f'buffer_load_dword v{vtmp+1}, v{va}, {srd(SRD_WS)}, 0 offen sc1')
    a('s_waitcnt vmcnt(1)')
    a(f'v_cmp_ne_u32 vcc, s{S_TAG}, v{vtmp}')
    a(f's_cbranch_vccz {name}_done')
    a(f'buffer_load_dword v{vtmp}, v{va}, {srd(SRD_WS)}, 0 offen sc1')
    a('s_waitcnt vmcnt(1)')
    a(f'v_cmp_ne_u32 vcc, s{S_TAG}, v{vtmp+1}')
    a(f's_cbranch_vccz {name}_done')
    a(f's_sub_u32 s{scount}, s{scount}, 1')
    a(f's_cmp_lg_u32 s{scount}, 0')
    a(f's_cbranch_scc1 {name}_spin')
    a.lab(f'{name}_done')
    a.lab(f'{name}_out')
    a('s_barrier')

def e1_z2(a, opt, vm, k0):
    SS, QQ = ACC1, ACC1 + 8
    K0 = ACC1 + 16
    pf = opt.get('gpf', 0)
    if pf:
        a(f's_lshl_b32 s{S_T}, s{S_RB}, 18')
        a(f's_and_b32 s{S_T2}, s{S_CB}, 3')
        a(f's_lshl_b32 s{S_T2}, s{S_T2}, 16')
        a(f's_add_u32 s{S_T}, s{S_T}, s{S_T2}')
        a(f's_lshl_b32 s{S_T2}, s{S_W}, 14')
        a(f's_add_u32 s{S_T}, s{S_T}, s{S_T2}')
        a(f'v_lshlrev_b32 v{t0}, {7 if pf == 128 else 6}, v{V_L}')
        for i in range(16384 // (64 * pf)):
            a(f'buffer_load_dword v{ACC1+20+i}, v{t0}, {srd(SRD_WSP)}, s{S_T} offen')
            a(f's_add_u32 s{S_T}, s{S_T}, {64*pf}')
            vm.issue('pf', 1)
    a(f'v_mov_b32 v{K0}, {hx(k0)}')
    a(f'v_mov_b32 v{K0+1}, {hx(k0)}')
    first = {}
    for phi in range(3):
        for tau in range(2):
            cs = [ACC2 + 4 * (3 * tau + phi) + 2 * hh for hh in range(2)]
            def after(c, t):
                r = 4 * tau + (c - cs[0])
                L = [f'v_cvt_pk_bf16_f32 v{c}, v{t+2}, v{t+3}']
                if phi == 0:
                    L += [f'v_lshlrev_b32 v{SS+r}, 16, v{c}', f'v_and_b32 v{SS+r+1}, 0xffff0000, v{c}',
                          f'v_pk_mul_f32 {vr(QQ+r,2)}, {vr(SS+r,2)}, {vr(SS+r,2)}']
                else:
                    L += [f'v_lshlrev_b32 v{t}, 16, v{c}', f'v_and_b32 v{t+1}, 0xffff0000, v{c}',
                          f'v_pk_add_f32 {vr(SS+r,2)}, {vr(SS+r,2)}, {vr(t,2)}', f'v_pk_fma_f32 {vr(QQ+r,2)}, {vr(t,2)}, {vr(t,2)}, {vr(QQ+r,2)}']
                return L
            gelu2(a, cs, K0, after)
    for j in range(8):
        a(f'v_add_f32_dpp v{SS+j}, v{SS+j}, v{SS+j} row_ror:8 row_mask:0xf bank_mask:0x3')
    for j in range(8):
        a(f'v_add_f32_dpp v{SS+j}, v{QQ+j}, v{QQ+j} row_ror:8 row_mask:0xf bank_mask:0xc')
    for j in range(4):
        a(f'v_add_f32_dpp v{SS+j}, v{SS+j}, v{SS+j} row_half_mirror row_mask:0xf bank_mask:0x5')
    for j in range(4):
        a(f'v_add_f32_dpp v{SS+j}, v{SS+j+4}, v{SS+j+4} row_half_mirror row_mask:0xf bank_mask:0xa')
    a(f'v_and_b32 v{t0}, 15, v{V_L}')
    a(f'v_lshrrev_b32 v{t1}, 4, v{V_L}')
    a(f'v_and_b32 v{t2}, 3, v{V_L}')
    for qp in ('[3,2,1,0]', '[1,0,3,2]'):
        for j in range(4):
            a(f'v_add_f32_dpp v{SS+j}, v{SS+j}, v{SS+j} quad_perm:{qp} row_mask:0xf bank_mask:0xf')
    GQ = V_T + 4
    a(f'v_cmp_eq_u32 vcc, 1, v{t2}')
    a(f'v_cmp_eq_u32 s[84:85], 2, v{t2}')
    a(f'v_cmp_eq_u32 {sp(S_TMP2)}, 3, v{t2}')
    a(f'v_lshl_add_u32 v{t2}, v{t0}, 2, v{t1}')
    a(f'v_cndmask_b32 v{GQ}, v{SS}, v{SS+1}, vcc')
    a(f'v_cndmask_b32 v{GQ}, v{GQ}, v{SS+2}, s[84:85]')
    a(f'v_cndmask_b32 v{GQ}, v{GQ}, v{SS+3}, {sp(S_TMP2)}')
    a(f'v_mov_b32 v{GQ+2}, s{S_TAG}')
    a(f'v_mov_b32 v{GQ+3}, s{S_TAG}')
    a(f'v_mov_b32_dpp v{GQ+1}, v{GQ} row_ror:8 row_mask:0xf bank_mask:0xf')
    a(f's_lshl_b32 s{S_T}, s{S_WI}, 5')
    a(f'v_add_u32 v{t2}, s{S_T}, v{t2}')
    a(f'v_lshlrev_b32 v{t2}, 8, v{t2}')
    a(f's_lshl_b32 s{S_T}, s{S_RB}, 14')
    a(f's_lshl_b32 s{S_T2}, s{S_CB}, 5')
    a(f's_add_u32 s{S_T}, s{S_T}, s{S_T2}')
    a(f's_lshl_b32 s{S_T2}, s{S_WJ}, 4')
    a(f's_add_u32 s{S_T}, s{S_T}, s{S_T2}')
    a(f's_add_u32 s{S_T}, s{S_T}, {WS_ST}')
    a(f'v_cmp_gt_u32 vcc, 8, v{t0}')
    a(f's_and_saveexec_b64 {sp(S_TMP2)}, vcc')
    a(f'buffer_store_dwordx4 {vr(GQ,4)}, v{t2}, {srd(SRD_WS)}, s{S_T} offen sc1')
    a(f's_mov_b64 exec, {sp(S_TMP2)}')
    vm.issue('st', 1)
    if pf:
        a(f's_waitcnt vmcnt({vm.n_after("pf")})')

V_SA = 13
def e2_loads(a, vm):
    a(f'v_lshlrev_b32 v{V_SA}, 4, v{V_L}')
    a(f's_lshl_b32 s{S_T}, s{S_RB}, 14')
    a(f's_lshl_b32 s{S_T2}, s{S_WI}, 13')
    a(f's_add_u32 s{S_T}, s{S_T}, s{S_T2}')
    a(f's_add_u32 s{S_T}, s{S_T}, {WS_ST}')
    a(f'v_add_u32 v{V_SA}, s{S_T}, v{V_SA}')
    st_loads(a)
    vm.issue('stl', 8)

def st_loads(a):
    a(f's_movk_i32 s{S_T2}, 4096')
    for k in range(8):
        a(f'buffer_load_dwordx4 {vr(ST+4*k,4)}, v{V_SA}, {srd(SRD_WS)}, {"0" if k < 4 else "s%d" % S_T2} offen offset:{1024*(k&3)} sc1')

def e2_layernorm(a, opt, vm):
    a('; ---- LayerNorm hand-off')
    a(f's_mov_b32 s{S_CNT}, {SPIN_MAX}')
    a(f's_waitcnt vmcnt({vm.n_after("stl")})')
    a.lab('L_ln_check')
    a(f'v_and_b32 v{t0}, v{ST+2}, v{ST+3}')
    a(f'v_or_b32 v{t1}, v{ST+2}, v{ST+3}')
    for k in range(1, 8):
        a(f'v_and_b32 v{t0}, v{t0}, v{ST+4*k+2}')
        a(f'v_or3_b32 v{t1}, v{t1}, v{ST+4*k+2}, v{ST+4*k+3}')
        a(f'v_and_b32 v{t0}, v{t0}, v{ST+4*k+3}')
    a(f'v_cmp_ne_u32 vcc, s{S_TAG}, v{t0}')
    a(f'v_cmp_ne_u32 s[84:85], s{S_TAG}, v{t1}')
    a('s_or_b64 vcc, vcc, s[84:85]')
    a('s_cbranch_vccz L_ln_done')
    st_loads(a)
    a('s_waitcnt vmcnt(0)')
    a(f's_sub_u32 s{S_CNT}, s{S_CNT}, 1')
    a(f's_cmp_lg_u32 s{S_CNT}, 0')
    a('s_cbranch_scc1 L_ln_check')
    a.lab('L_ln_done')
    S_ = lambda k: ST + 4 * k
    Q_ = lambda k: ST + 4 * k + 1
    for k in range(8):
        a(f'v_add_f32_dpp v{S_(k)}, v{S_(k)}, v{S_(k)} row_ror:8 row_mask:0xf bank_mask:0x3')
    for k in range(8):
        a(f'v_add_f32_dpp v{S_(k)}, v{Q_(k)}, v{Q_(k)} row_ror:8 row_mask:0xf bank_mask:0xc')
    for k in range(4):
        a(f'v_add_f32_dpp v{S_(k)}, v{S_(k)}, v{S_(k)} row_half_mirror row_mask:0xf bank_mask:0x5')
    for k in range(4):
        a(f'v_add_f32_dpp v{S_(k)}, v{S_(k+4)}, v{S_(k+4)} row_half_mirror row_mask:0xf bank_mask:0xa')
    a(f'v_and_b32 v{t0}, 15, v{V_L}')
    a(f'v_lshrrev_b32 v{t1}, 4, v{V_L}')
    a(f'v_and_b32 v{t2}, 3, v{V_L}')
    for qp in ('[3,2,1,0]', '[1,0,3,2]'):
        for k in range(4):
            a(f'v_add_f32_dpp v{S_(k)}, v{S_(k)}, v{S_(k)} quad_perm:{qp} row_mask:0xf bank_mask:0xf')
    a(f'v_cmp_eq_u32 vcc, 1, v{t2}')
    a(f'v_cmp_eq_u32 s[84:85], 2, v{t2}')
    a(f'v_cmp_eq_u32 {sp(S_TMP2)}, 3, v{t2}')
    a(f'v_mul_u32_u24 v{t1}, 96, v{t1}')
    a(f'v_cndmask_b32 v{ST}, v{ST}, v{S_(1)}, vcc')
    a(f'v_cndmask_b32 v{ST}, v{ST}, v{S_(2)}, s[84:85]')
    a(f'v_cndmask_b32 v{ST}, v{ST}, v{S_(3)}, {sp(S_TMP2)}')
    a(f'v_mov_b32_dpp v{ST+1}, v{ST} row_ror:8 row_mask:0xf bank_mask:0xf')
    a(f'v_mul_f32 v{ST}, {hx(1/768)}, v{ST}')
    a(f'v_mul_f32 v{ST+1}, {hx(1/768)}, v{ST+1}')
    a(f'v_fma_f32 v{ST+1}, -v{ST}, v{ST}, v{ST+1}')
    a(f'v_max_f32 v{ST+1}, 0, v{ST+1}')
    a(f'v_cvt_pk_bf16_f32 v{ST+2}, v{ST}, v{ST+1}')
    a(f'v_lshlrev_b32 v{ST}, 16, v{ST+2}')
    a(f'v_and_b32 v{ST+1}, 0xffff0000, v{ST+2}')
    a(f'v_add_f32 v{ST+1}, {hx(1e-5)}, v{ST+1}')
    a(f'v_add_u32 v{t0}, v{t0}, v{t1}')
    a(f'v_cvt_pk_bf16_f32 v{ST+1}, v{ST+1}, v{ST+1}')
    a(f'v_and_b32 v{ST+1}, 0xffff0000, v{ST+1}')
    a(f'v_sqrt_f32 v{ST+1}, v{ST+1}')
    for j in range(8):
        a(f'v_mov_b32_dpp v{MM+j}, v{ST} row_newbcast:{j} row_mask:0xf bank_mask:0xf')
    a(f'v_cvt_pk_bf16_f32 v{ST+1}, v{ST+1}, v{ST+1}')
    a(f'v_and_b32 v{ST+1}, 0xffff0000, v{ST+1}')
    a(f'v_rcp_f32 v{ST+1}, v{ST+1}')
    a(f's_mul_i32 s{S_T}, s{S_WI}, 384')
    a(f's_mul_i32 s{S_T2}, s{S_WJ}, 48')
    a(f's_add_u32 s{S_T}, s{S_T}, s{S_T2}')
    a(f'v_add_u32 v{t0}, s{S_T}, v{t0}')
    a(f'v_lshlrev_b32 v{V_US}, 4, v{t0}')
    for j in range(8):
        a(f'v_mov_b32_dpp v{RR+j}, v{ST+1} row_newbcast:{j} row_mask:0xf bank_mask:0xf')
    a(f's_lshl_b32 s{S_T}, s{S_CB}, 5')
    a(f's_add_u32 s{S_T}, s{S_T}, s{S_RB}')
    a(f's_lshl_b32 s{S_FZA}, s{S_T}, 2')
    a(f's_add_u32 s{S_FZA}, s{S_FZA}, {WS_FZ}')
    a(f's_mul_i32 s{S_T}, s{S_T}, 12288')
    a(f's_add_u32 s{S_T}, s{S_T}, {WS_Z}')
    for phi in range(3):
        for tau in range(2):
            T = [V_T, V_T + 4]
            def both(f):
                for hh in range(2): a(f(ACC2 + 4 * (3 * tau + phi) + 2 * hh, T[hh], 4 * tau + 2 * hh, hh))
            both(lambda c, t, r, hh: f'v_lshlrev_b32 v{t}, 16, v{c}')
            both(lambda c, t, r, hh: f'v_and_b32 v{t+1}, 0xffff0000, v{c}')
            both(lambda c, t, r, hh: f'v_pk_add_f32 {vr(t,2)}, {vr(t,2)}, {vr(MM+r,2)} neg_lo:[0,1] neg_hi:[0,1]')
            both(lambda c, t, r, hh: f'v_cvt_pk_bf16_f32 v{t+2}, v{t}, v{t+1}')
            both(lambda c, t, r, hh: f'v_lshlrev_b32 v{t}, 16, v{t+2}')
            both(lambda c, t, r, hh: f'v_and_b32 v{t+1}, 0xffff0000, v{t+2}')
            both(lambda c, t, r, hh: f'v_pk_mul_f32 {vr(t,2)}, {vr(t,2)}, {vr(RR+r,2)}')
            both(lambda c, t, r, hh: f'v_cvt_pk_bf16_f32 v{ZQ+4*phi+2*tau+hh}, v{t}, v{t+1}')
        a(f'buffer_store_dwordx4 {vr(ZQ+4*phi,4)}, v{V_US}, {srd(SRD_WS)}, s{S_T} offen offset:{256*phi} sc1')
    vm.issue('z', 3)
```

```python
import sys, struct
import numpy as np
sys.path.insert(0, 'gen')
from asmlib import Asm

KNAME = 'gated_mix__ssm_conv_s4__mixer_gmlp__prompt_kernel'

def f2u(x): return struct.unpack('<I', struct.pack('<f', x))[0]
def hx(x): return '0x%08x' % f2u(x)

WS_EPOCH = 0x0
WS_FZ = 0x1000
WS_FU = 0x2000
WS_FP = 0x3000
WS_FA = 0x4000
WS_FG = 0x5000
WS_FS = 0x7000
WS_FW = 0x6000
WS_WO = 0xD00000
WS_G = 0x8000
WS_ST = 0x10000
WS_Z = 0x100000
WS_P = 0x400000
WS_UT = 0x700000
WS_AT = 0xA00000
WS_DBG = 0x1000000
WS_SIZE = 0x4000000

P_U, P_ARE, P_AIM, P_BRE, P_BIM, P_CRE, P_CIM, P_LDT = 16, 18, 20, 22, 24, 26, 28, 30
P_DSK, P_BX, P_WIN, P_WSP, P_BSP, P_WOUT, P_GW, P_OUT = 32, 34, 36, 38, 40, 42, 44, 46
P_DBG, P_WS = 48, 50
SRD_X, SRD_WIN, SRD_WSP, SRD_WOUT, SRD_WS, SRD_OUT = 52, 56, 60, 64, 68, 72
S_TAG, S_W = 80, 81
def srd(n): return f's[{n}:{n+3}]'
def sp(n): return f's[{n}:{n+1}]'
def vr(a, n): return f'v[{a}:{a+n-1}]'

LOG2E = 1.4426950408889634
SPIN_MAX = 20000

def mk_srd(a, dst, ptr, size):
    a(f's_mov_b32 s{dst}, s{ptr}')
    a(f's_and_b32 s{dst+1}, s{ptr+1}, 0xffff')
    a(f's_mov_b32 s{dst+2}, {size}')
    a(f's_mov_b32 s{dst+3}, 0x00020000')

def cmul(a, dst, x, y, tmp):
    a(f'v_pk_mul_f32 {vr(tmp,2)}, {vr(x,2)}, {vr(y,2)} op_sel:[0,0] op_sel_hi:[0,1]')
    a(f'v_pk_fma_f32 {vr(dst,2)}, {vr(x,2)}, {vr(y,2)}, {vr(tmp,2)} op_sel:[1,1,0] op_sel_hi:[1,0,1] neg_lo:[1,0,0]')

PROF = {'on': False}
PSL = [2]
WS_PROF = 0x2000000
def stamp(a, i, base=18):
    if not PROF['on']: return
    a('s_memrealtime s[14:15]')
    a('s_waitcnt lgkmcnt(0)')
    a(f's_mov_b32 s{base+i}, s14')
def stamp_dump(a, n, base=18):
    if not PROF['on']: return
    if PROF.get('dbg'):
        if base != 18: return
        a('s_mov_b64 exec, 1')
        mk_srd(a, 52, P_DBG, 256)
        a(f's_not_b32 s{base}, s{base}')
        for i in range(n):
            a(f'v_mov_b32 v2, s{base+i}')
            a(f'buffer_atomic_umax v2, off, s[52:55], 0 offset:{4*i} sc1')
        a('s_waitcnt vmcnt(0)')
        return
    a('s_mov_b64 exec, 1')
    a('s_lshl_b32 s14, s2, 2')
    a(f's_add_u32 s14, s14, s{S_W}')
    a('s_lshl_b32 s14, s14, 6')
    a(f's_add_u32 s14, s14, {WS_PROF}')
    for i in range(n):
        a(f'v_mov_b32 v2, s{base+i}')
        a(f'buffer_store_dword v2, off, {srd(SRD_WS)}, s14 offset:{4*i}')
    a('s_waitcnt vmcnt(0)')

def poll(a, name, loads, vtmp, scount, nlanes_mask=None):
    a(f's_mov_b32 s{scount}, {SPIN_MAX}')
    a.lab(f'{name}_spin')
    for i, (va, so) in enumerate(loads):
        a(f'buffer_load_dword v{vtmp+i}, v{va}, {srd(SRD_WS)}, {so} offen sc1')
    a('s_waitcnt vmcnt(0)')
    a(f'v_cmp_ne_u32 vcc, s{S_TAG}, v{vtmp}')
    for i in range(1, len(loads)):
        a(f'v_cmp_ne_u32 s[84:85], s{S_TAG}, v{vtmp+i}')
        a('s_or_b64 vcc, vcc, s[84:85]')
    a(f's_cbranch_vccz {name}_done')
    a(f's_sleep {PSL[0]}')
    a(f's_sub_u32 s{scount}, s{scount}, 1')
    a(f's_cmp_lg_u32 s{scount}, 0')
    a(f's_cbranch_scc1 {name}_spin')
    a.lab(f'{name}_done')

WAVE_LDS = 26624
CP = 4160
UOFF = 16640
def get_tag(a, n):
    a(f's_waitcnt vmcnt({n})')
    a(f'v_readfirstlane_b32 s{S_TAG}, v127')
    a(f's_add_u32 s{S_TAG}, s{S_TAG}, 1')

def side_channel(a, opt):
    sD, sLB, sT, sT2, sUns = 82, 83, 86, 87, 88
    vL = 1
    if opt.get('sprio'): a(f's_setprio {opt["sprio"]}')
    stamp(a, 0, 52)
    a(f's_mul_i32 s{sLB}, s{S_W}, {WAVE_LDS}')
    a(f's_mul_i32 s{sT}, s{sD}, 384')
    a(f'v_lshlrev_b32 v2, 1, v{vL}')
    a(f'v_add_u32 v2, s{sT}, v2')
    PR = 10
    arrs = [P_ARE, P_AIM, P_BRE, P_BIM, P_CRE, P_CIM]
    a(f's_lshl_b32 s{sT}, s{sD}, 1')
    a(f'v_mov_b32 v3, s{sT}')
    a(f'global_load_ushort v28, v3, {sp(P_LDT)}')
    a(f'global_load_ushort v29, v3, {sp(P_DSK)}')
    for ch in range(3):
        for k, p in enumerate(arrs):
            a(f'global_load_ushort v{PR+6*ch+k}, v2, {sp(p)} offset:{128*ch}')
    vWr, vRd = 104, 4
    a(f'v_and_b32 v6, 7, v{vL}')
    a(f'v_lshlrev_b32 v7, 7, v{vL}')
    a(f'v_add_u32 v7, s{sLB}, v7')
    for p in range(8):
        a(f'v_xor_b32 v8, {p}, v6')
        a(f'v_lshl_add_u32 v{vWr+p}, v8, 4, v7')
    a(f'v_lshrrev_b32 v6, 5, v{vL}')
    a(f'v_bfe_u32 v7, v{vL}, 3, 1')
    a('v_lshl_add_u32 v6, v6, 2, v7')
    a(f'v_bfe_u32 v7, v{vL}, 2, 1')
    a('v_lshlrev_b32 v7, 2, v7')
    a(f'v_bfe_u32 v8, v{vL}, 4, 1')
    a('v_lshl_add_u32 v7, v8, 1, v7')
    a(f'v_bfe_u32 v8, v{vL}, 1, 1')
    a('v_add_u32 v7, v7, v8')
    a(f'v_and_b32 v9, 1, v{vL}')
    a('v_lshlrev_b32 v9, 3, v9')
    a(f'v_add_u32 v9, s{sLB}, v9')
    for i in range(2):
        if i: a('v_add_u32 v6, 2, v6')
        a('v_xor_b32 v8, v7, v6')
        a(f'v_lshl_add_u32 v{vRd+i}, v8, 4, v9')
        a(f'v_lshl_add_u32 v{vRd+i}, v6, 7, v{vRd+i}')
    a(f'v_and_b32 v6, 31, v{vL}')
    a(f'v_lshrrev_b32 v7, 5, v{vL}')
    hi = struct.unpack('<f', struct.pack('<I', f2u(LOG2E) & 0xFFFFF000))[0]
    lo = LOG2E - hi
    get_tag(a, 18)
    a('v_lshlrev_b32 v28, 16, v28')
    a('v_lshlrev_b32 v29, 16, v29')
    a(f'v_mul_f32 v8, {hx(hi)}, v28')
    a('v_rndne_f32 v9, v8')
    a('v_sub_f32 v8, v8, v9')
    a(f'v_fmac_f32 v8, {hx(lo)}, v28')
    a('v_exp_f32 v8, v8')
    a('v_cvt_i32_f32 v9, v9')
    a('v_ldexp_f32 v8, v8, v9')
    a('v_cvt_pk_bf16_f32 v8, v8, v8')
    a('v_lshlrev_b32 v28, 16, v8')
    a('s_waitcnt vmcnt(0)')
    for i in range(18):
        a(f'v_lshlrev_b32 v{PR+i}, 16, v{PR+i}')
    WR = 32
    AW = 38
    for ch in range(3):
        b = PR + 6 * ch
        a(f'v_mul_f32 v{b}, v28, v{b}')
        a(f'v_mul_f32 v{b+1}, v28, v{b+1}')
        a(f'v_mul_f32 v{b+2}, v28, v{b+2}')
        a(f'v_mul_f32 v{b+3}, v28, v{b+3}')
        a(f'v_mul_f32 v{AW+2*ch}, {hx(LOG2E)}, v{b}')
        a(f'v_mul_f32 v{AW+2*ch+1}, {hx(1/(2*np.pi))}, v{b+1}')
        cmul(a, WR + 2 * ch, b + 4, b + 2, 8)
    a(f'v_max3_f32 v8, abs(v{WR}), abs(v{WR+1}), abs(v{WR+2})')
    a(f'v_max3_f32 v8, v8, abs(v{WR+3}), abs(v{WR+4})')
    a(f'v_max_f32 v8, v8, abs(v{WR+5})')
    for r in (8, 4, 2, 1):
        a(f'v_max_f32_dpp v8, v8, v8 row_ror:{r} row_mask:0xf bank_mask:0xf')
    a(f'v_readlane_b32 s{sT}, v8, 0')
    a(f'v_readlane_b32 s{sT2}, v8, 16')
    a(f's_max_u32 s{sT}, s{sT}, s{sT2}')
    a(f'v_readlane_b32 s{sT2}, v8, 32')
    a(f's_max_u32 s{sT}, s{sT}, s{sT2}')
    a(f'v_readlane_b32 s{sT2}, v8, 48')
    a(f's_max_u32 s{sT}, s{sT}, s{sT2}')
    a(f's_lshr_b32 s{sT}, s{sT}, 23')
    a(f's_min_u32 s{sT}, s{sT}, 252')
    a(f's_add_u32 s{sUns}, s{sT}, 1')
    a(f's_lshl_b32 s{sUns}, s{sUns}, 23')
    a(f's_sub_u32 s{sT}, 253, s{sT}')
    a(f's_lshl_b32 s{sT}, s{sT}, 23')
    for i in range(6):
        a(f'v_mul_f32 v{WR+i}, s{sT}, v{WR+i}')
    kd = opt.get('kd', 0)
    if kd and not opt.get('no_gemm'):
        if kd == 1:
            a('s_lshl_b32 s92, s2, 2')
            a(f's_add_u32 s92, s92, {WS_FS-1024}')
        else:
            a('s_lshl_b32 s92, s2, 2')
            a(f's_add_u32 s92, s92, {WS_FS-1024+1024}')
        wait_word(a, 'L_kd', 92, 8)
    stamp(a, 7, 52)
    D = 72
    for i in range(16):
        a(f'v_mov_b32 v{D+i}, 0')
    E1, E8, GG = 44, 46, 48
    X = 112
    T = 8
    PKX = 168
    PKY = 200
    YA = 50
    FR = 88
    YB = 8192
    sCnt = 89
    UR = 232
    a(f's_lshr_b32 s90, s{sD}, 6')
    a('s_lshl_b32 s90, s90, 7')
    a(f's_add_u32 s90, s90, {WS_FU}')
    a('v_lshlrev_b32 v248, 2, v6')
    a(f'v_lshlrev_b32 v249, 4, v{vL}')
    a(f's_lshl_b32 s92, s{sD}, 12')
    a(f's_add_u32 s92, s92, {WS_UT}')
    a('s_mov_b32 s91, 1')
    def u_loads():
        for it in range(4):
            a(f'buffer_load_dwordx4 {vr(UR+4*it,4)}, v249, {srd(SRD_WS)}, s92 offen offset:{1024*it} sc1')
    a(f's_mov_b32 s{sCnt}, 3')
    a.lab('L_kg_chunk')
    if opt.get('eu'):
        a(f's_cmp_gt_u32 s{sCnt}, {opt["eu"]}')
        a('s_cbranch_scc1 L_u_nl')
        a(f'buffer_load_dword v250, v248, {srd(SRD_WS)}, s90 offen sc1')
        a.lab('L_u_nl')
    def cexp(dst, P):
        if P == 1:
            a(f'v_exp_f32 v{T}, v{AW}')
            a(f'v_fract_f32 v{T+1}, v{AW+1}')
        else:
            a(f'v_mul_f32 v{T}, {hx(float(P))}, v{AW}')
            a(f'v_mul_f32 v{T+1}, {hx(float(P))}, v{AW+1}')
            a(f'v_exp_f32 v{T}, v{T}')
            a(f'v_fract_f32 v{T+1}, v{T+1}')
        a(f'v_cos_f32 v{dst}, v{T+1}')
        a(f'v_sin_f32 v{dst+1}, v{T+1}')
        a(f'v_pk_mul_f32 {vr(dst,2)}, {vr(dst,2)}, {vr(T,2)} op_sel:[0,0] op_sel_hi:[1,0]')
    cexp(E8, 8); cexp(E1, 1); cexp(GG, 256)
    def row_of(h, reg): return 8 * (reg >> 2) + 4 * h + (reg & 3)
    def flush(pk, base, j):
        if opt.get('kg_nowr'): return
        a(f'ds_write_b128 v{vWr+j}, {vr(pk+4*j,4)} offset:{base}')
        a(f'ds_write_b128 v{vWr+4+j}, {vr(pk+16+4*j,4)} offset:{base}')
    one = 54
    a(f'v_mov_b32 v{one}, 1.0')
    a(f'v_mov_b32 v{one+1}, 0')
    prev = None
    for k in range(32):
        if k == 0: cur = one
        elif k == 1: cur = E8
        else:
            cur = YA + 2 * (k & 1)
            cmul(a, cur, prev, E8, T)
        if k & 1:
            a(f'v_cvt_pk_f16_f32 v{PKY+(k>>1)}, v{prev}, v{cur}')
            a(f'v_cvt_pk_f16_f32 v{PKY+16+(k>>1)}, -v{prev+1}, -v{cur+1}')
            if (k & 7) == 7: flush(PKY, YB, k >> 3)
        prev = cur
    if opt.get('eu'):
        a(f's_cmp_gt_u32 s{sCnt}, {opt["eu"]}')
        a('s_cbranch_scc1 L_u_skip')
        a('s_cmp_eq_u32 s91, 0')
        a('s_cbranch_scc1 L_u_skip')
        a('s_waitcnt vmcnt(0)')
        a(f'v_cmp_ne_u32 vcc, s{S_TAG}, v250')
        a('s_cbranch_vccnz L_u_skip')
        u_loads()
        a('s_mov_b32 s91, 0')
        a.lab('L_u_skip')
    val = {0: WR}
    nxt = [X]
    def mk(P, src, mul):
        val[P] = nxt[0]; nxt[0] += 2
        cmul(a, val[P], val[src], mul, T)
    rows = {}
    for k in range(8): rows[row_of(0, k)] = k
    for k, P in enumerate((256, 256, 258, 260, 260, 260, 262, 264)): rows[row_of(1, k)] = P
    for k, P in enumerate((512, 516, 520, 1024, 1032, 1280, 1288)): rows[row_of(0, 8 + k)] = P
    for k, P in enumerate((768, 772, 776, 1536, 1544, 1792, 1800)): rows[row_of(1, 8 + k)] = P
    rows[27] = 1288; rows[31] = 1800
    done = set()
    def pack_ready():
        for r in range(0, 32, 2):
            if r in done or rows[r] not in val or rows[r + 1] not in val: continue
            done.add(r)
            p, q = val[rows[r]], val[rows[r + 1]]
            a(f'v_cvt_pk_f16_f32 v{PKX+(r>>1)}, v{p}, v{q}')
            a(f'v_cvt_pk_f16_f32 v{PKX+16+(r>>1)}, v{p+1}, v{q+1}')
            j = r >> 3
            if all((8 * j + e) in done for e in (0, 2, 4, 6)): flush(PKX, 0, j)
    order = [(k, k - 1, E1) for k in range(1, 9)] + [(256 + k, k, GG) for k in (0, 2, 4, 6, 8)]
    for b in (512, 768): order += [(b + k, b - 256 + k, GG) for k in (0, 4, 8)]
    for b in (1024, 1280, 1536, 1792): order += [(b + k, b - 256 + k, GG) for k in (0, 8)]
    for (P, src, mul) in order:
        mk(P, src, mul); pack_ready()
    assert len(done) == 16
    def rd(ks):
        f = FR + 8 * (ks & 1)
        for i in range(2):
            a(f'ds_read_b64_tr_b16 {vr(f+2*i,2)}, v{vRd+i} offset:{1024*ks}')
        for i in range(2):
            a(f'ds_read_b64_tr_b16 {vr(f+4+2*i,2)}, v{vRd+i} offset:{YB+1024*ks}')
    rd(0); rd(1)
    for i in range(4):
        a(f'v_mov_b32 v{WR+i}, v{WR+2+i}')
    for i in range(4):
        a(f'v_mov_b32 v{AW+i}, v{AW+2+i}')
    for ks in range(8):
        f = FR + 8 * (ks & 1)
        a('s_waitcnt lgkmcnt(4)' if ks < 7 else 's_waitcnt lgkmcnt(0)')
        a(f'v_mfma_f32_32x32x16_f16 {vr(D,16)}, {vr(f,4)}, {vr(f+4,4)}, {vr(D,16)}')
        if ks + 2 < 8: rd(ks + 2)
    a(f's_sub_u32 s{sCnt}, s{sCnt}, 1')
    a(f's_cmp_lg_u32 s{sCnt}, 0')
    a('s_cbranch_scc1 L_kg_chunk')
    stamp(a, 1, 52)
    a(f'v_lshlrev_b32 v10, 4, v6')
    a(f'v_sub_u32 v10, {16*255}, v10')
    a(f'v_add_u32 v10, s{sLB}, v10')
    a(f'v_lshlrev_b32 v11, 9, v7')
    a(f'v_sub_u32 v12, v10, v11')
    a(f'v_subrev_u32 v12, 1024, v12')
    a(f'v_sub_u32 v13, v10, v11')
    a(f'v_sub_u32 v13, v13, v11')
    a(f'v_subrev_u32 v13, 2560, v13')
    a(f'v_and_b32 v14, 1, v{vL}')
    a('v_cmp_eq_u32 vcc, 0, v14')
    a.fence(8)
    for i in range(15):
        a(f'v_mul_f32 v{D+i}, s{sUns}, v{D+i}')
    O = 16
    O = 88
    for j in range(4):
        a(f'v_cvt_pk_bf16_f32 v{O+j}, v{D+7-2*j}, v{D+6-2*j}')
    a(f'ds_write_b128 v12, {vr(O,4)} offset:1024')
    w0, w4, w8 = D + 8, D + 9, D + 10
    for j, (lo_, hi_) in enumerate([(w8, w8), (w4, w4), (w4, w0), (w0, w0)]):
        a(f'v_cvt_pk_bf16_f32 v{O+4+j}, v{lo_}, v{hi_}')
    a(f'ds_write_b128 v12, {vr(O+4,4)}')
    for s, (x0, x8, off) in enumerate([(D + 11, D + 12, 512), (D + 13, D + 14, 0)]):
        q = O + 8 + 4 * s
        a(f'v_cndmask_b32 v14, v{x8}, v{x0}, vcc')
        a(f'v_cvt_pk_bf16_f32 v{q}, v{x8}, v{x8}')
        a(f'v_cvt_pk_bf16_f32 v{q+1}, v{x8}, v14')
        a(f'v_cvt_pk_bf16_f32 v{q+2}, v{x0}, v{x0}')
        a(f'v_mov_b32 v{q+3}, v{q+2}')
        a(f'ds_write_b128 v13, {vr(q,4)} offset:{off}')
    a(f'v_lshrrev_b32 v10, 2, v{vL}')
    a(f'v_mul_u32_u24 v10, {CP}, v10')
    a(f'v_and_b32 v11, 3, v{vL}')
    a(f'v_lshl_add_u32 v10, v11, 4, v10')
    a(f'v_add_u32 v10, 4096, v10')
    a(f'v_subrev_u32 v11, 16, v{vL}')
    a(f'v_min_u32 v11, 29, v11')
    a(f'v_lshlrev_b32 v11, 4, v11')
    a(f'v_add_u32 v11, {UOFF}, v11')
    a(f'v_cmp_gt_u32 vcc, 16, v{vL}')
    a('v_cndmask_b32 v10, v11, v10, vcc')
    a(f'v_add_u32 v10, s{sLB}, v10')
    for i in range(4):
        a(f'v_mov_b32 v{16+i}, 0')
    a(f'ds_write_b128 v10, v[16:19]')
    a(f'v_lshlrev_b32 v10, 4, v{vL}')
    a(f'v_add_u32 v10, s{sLB}, v10')
    Wd = 32
    for it in range(4):
        a(f'ds_read_b128 {vr(Wd+8*it,4)}, v10 offset:{1024*it}')
        a(f'ds_read_b64 {vr(Wd+8*it+4,2)}, v10 offset:{1024*it+16}')
    for it in range(4):
        w = Wd + 8 * it
        q = 64 + 12 * (it & 1)
        a(f's_waitcnt lgkmcnt({min(15, 6 - 2*it + 3*it)})' if False else f's_waitcnt lgkmcnt({(3-it)*2 + (3*it if it else 0) if False else 0})' if it == 0 else '; (already waited)')
        for k in range(4):
            a(f'v_alignbyte_b32 v{q+k}, v{w+k+1}, v{w+k}, 2')
        a(f'ds_write_b128 v10, {vr(q,4)} offset:{CP+1024*it}')
        for k in range(4):
            a(f'v_mov_b32 v{q+4+k}, v{w+k+1}')
        a(f'ds_write_b128 v10, {vr(q+4,4)} offset:{2*CP+1024*it}')
        for k in range(4):
            a(f'v_alignbyte_b32 v{q+8+k}, v{w+k+2}, v{w+k+1}, 2')
        a(f'ds_write_b128 v10, {vr(q+8,4)} offset:{3*CP+1024*it}')
    if opt.get('dump_k'):
        a('s_waitcnt lgkmcnt(0)')
        a(f's_mul_i32 s{sT}, s{sD}, 17408')
        a(f's_add_u32 s{sT}, s{sT}, {WS_DBG}')
        a(f'v_lshlrev_b32 v11, 4, v{vL}')
        for it in range(17):
            a(f'ds_read_b128 v[16:19], v10 offset:{1024*it}')
            a('s_waitcnt lgkmcnt(0)')
            a(f'buffer_store_dwordx4 v[16:19], v11, {srd(SRD_WS)}, s{sT} offen')
            a(f's_add_u32 s{sT}, s{sT}, 1024')
        a('s_waitcnt vmcnt(0)')
    stamp(a, 2, 52)
    a('s_cmp_eq_u32 s91, 0')
    a('s_cbranch_scc1 L_u_have')
    poll(a, 'L_pu', [(248, 's90')], 12, 89)
    u_loads()
    a.lab('L_u_have')
    stamp(a, 3, 52)
    a(f's_lshl_b32 s{sT}, s{sD}, 12')
    vKA, vUB = 4, 5
    a(f'v_and_b32 v12, 15, v{vL}')
    a(f'v_lshrrev_b32 v13, 4, v{vL}')
    a('v_sub_u32 v14, 3, v12')
    a('v_and_b32 v14, 3, v14')
    a(f'v_mul_u32_u24 v{vKA}, {CP}, v14')
    a('v_add_u32 v15, v12, v14')
    a('v_sub_u32 v15, 2031, v15')
    a('v_lshl_add_u32 v15, v13, 3, v15')
    a(f'v_lshl_add_u32 v{vKA}, v15, 1, v{vKA}')
    a(f'v_subrev_u32 v{vKA}, {512*7}, v{vKA}')
    a(f'v_add_u32 v{vKA}, s{sLB}, v{vKA}')
    a(f'v_lshlrev_b32 v{vUB}, 5, v12')
    a(f'v_lshl_add_u32 v{vUB}, v13, 4, v{vUB}')
    a(f'v_add_u32 v{vUB}, {UOFF+448}, v{vUB}')
    a(f'v_add_u32 v{vUB}, s{sLB}, v{vUB}')
    a('v_lshlrev_b32 v6, 5, v12')
    a('v_lshl_add_u32 v6, v13, 3, v6')
    a(f'v_add_u32 v6, {UOFF+480}, v6')
    a(f'v_add_u32 v6, s{sLB}, v6')
    a('v_lshlrev_b32 v7, 5, v12')
    a('v_lshrrev_b32 v15, 1, v13')
    a('v_lshl_add_u32 v7, v15, 4, v7')
    a('v_and_b32 v15, 1, v13')
    a('v_lshl_add_u32 v7, v15, 9, v7')
    ACC = 64
    for i in range(32):
        a(f'v_mov_b32 v{ACC+i}, 0')
    for it in range(4):
        a(f's_waitcnt vmcnt({3-it})')
        a(f'ds_write_b128 v10, {vr(UR+4*it,4)} offset:{UOFF+480+1024*it}')
    if opt.get('cg', 0) and not opt.get('no_gemm'):
        if opt.get('cg', 0) == 1:
            a('s_lshl_b32 s92, s2, 2')
            a(f's_add_u32 s92, s92, {WS_FS-1024}')
        else:
            a('s_sub_u32 s90, s2, 256')
            rbcb(a, 90, 91, 92, 93)
            a('s_lshl_b32 s92, s92, 5')
            a('s_add_u32 s92, s92, s91')
            a('s_lshl_b32 s92, s92, 2')
            a(f's_add_u32 s92, s92, {WS_FZ}')
        wait_word(a, 'L_cg', 92, 4)
    FA = [96, 160]
    def loads(s):
        L = []
        for g in range(8):
            L.append(f'ds_read_b64 {vr(FA[s]+4*g,2)}, v{vKA} offset:{512*(7-g)}')
            L.append(f'ds_read_b64 {vr(FA[s]+4*g+2,2)}, v{vKA} offset:{512*(7-g)+8}')
            L.append(f'ds_read_b128 {vr(FA[s]+32+4*g,4)}, v{vUB} offset:{512*g}')
        return L
    stamp(a, 4, 52)
    for l in loads(0): a(l)
    a(f's_mov_b32 s{sCnt}, 4')
    a.lab('L_conv')
    for s in range(2):
        a(f'v_subrev_u32 v{vKA}, 64, v{vKA}')
        a(f'v_subrev_u32 v{vUB}, 64, v{vUB}')
        a('s_waitcnt lgkmcnt(0)')
        nxt = loads(1 - s)
        pairs = [(g, i) for tot in range(8) for g in range(tot + 1) for i in [tot - g]]
        pairs = sorted(pairs, key=lambda p: (p[0], p[1]))
        k = 0
        for idx, (g, i) in enumerate(pairs):
            jt = g + i
            a(f'v_mfma_f32_16x16x32_bf16 {vr(ACC+4*jt,4)}, {vr(FA[s]+4*g,4)}, {vr(FA[s]+32+4*i,4)}, {vr(ACC+4*jt,4)}')
            if k < len(nxt) and idx >= 2:
                a(nxt[k]); k += 1
        while k < len(nxt):
            a(nxt[k]); k += 1
    a(f's_sub_u32 s{sCnt}, s{sCnt}, 1')
    a(f's_cmp_lg_u32 s{sCnt}, 0')
    a('s_cbranch_scc1 L_conv')
    a('s_waitcnt lgkmcnt(0)')
    stamp(a, 5, 52)
    a('v_mov_b32 v28, v29')
    UU = 32
    for jt in range(8):
        a(f'ds_read_b64 {vr(UU+2*jt,2)}, v6 offset:{512*jt}')
    a(f's_add_u32 s{sT2}, s{sT}, {WS_AT}')
    a('s_waitcnt lgkmcnt(0)')
    RES = 96
    for jt in range(8):
        c = ACC + 4 * jt
        t = 112 + 8 * (jt & 1)
        a(f'v_cvt_pk_bf16_f32 v{t}, v{c}, v{c+1}')
        a(f'v_cvt_pk_bf16_f32 v{t+1}, v{c+2}, v{c+3}')
        a(f'v_lshlrev_b32 v{c}, 16, v{UU+2*jt}')
        a(f'v_and_b32 v{c+1}, 0xffff0000, v{UU+2*jt}')
        a(f'v_lshlrev_b32 v{c+2}, 16, v{UU+2*jt+1}')
        a(f'v_and_b32 v{c+3}, 0xffff0000, v{UU+2*jt+1}')
        a(f'v_pk_mul_f32 {vr(c,2)}, {vr(c,2)}, {vr(28,2)}')
        a(f'v_pk_mul_f32 {vr(c+2,2)}, {vr(c+2,2)}, {vr(28,2)}')
        a(f'v_cvt_pk_bf16_f32 v{t+2}, v{c}, v{c+1}')
        a(f'v_cvt_pk_bf16_f32 v{t+3}, v{c+2}, v{c+3}')
        a(f'v_lshlrev_b32 v{c}, 16, v{t}')
        a(f'v_and_b32 v{c+1}, 0xffff0000, v{t}')
        a(f'v_lshlrev_b32 v{c+2}, 16, v{t+1}')
        a(f'v_and_b32 v{c+3}, 0xffff0000, v{t+1}')
        a(f'v_lshlrev_b32 v{t+4}, 16, v{t+2}')
        a(f'v_and_b32 v{t+5}, 0xffff0000, v{t+2}')
        a(f'v_lshlrev_b32 v{t+6}, 16, v{t+3}')
        a(f'v_and_b32 v{t+7}, 0xffff0000, v{t+3}')
        a(f'v_pk_add_f32 {vr(c,2)}, {vr(c,2)}, {vr(t+4,2)}')
        a(f'v_pk_add_f32 {vr(c+2,2)}, {vr(c+2,2)}, {vr(t+6,2)}')
        q = RES + 4 * (jt >> 1) + 2 * (jt & 1)
        a(f'v_cvt_pk_bf16_f32 v{q}, v{c}, v{c+1}')
        a(f'v_cvt_pk_bf16_f32 v{q+1}, v{c+2}, v{c+3}')
        if jt & 1:
            q0 = RES + 4 * (jt >> 1)
            a(f'v_permlane16_swap_b32 v{q0}, v{q0+2}')
            a(f'v_permlane16_swap_b32 v{q0+1}, v{q0+3}')
            a(f'buffer_store_dwordx4 {vr(q0,4)}, v7, {srd(SRD_WS)}, s{sT2} offen offset:{1024*(jt>>1)} sc1')
    a('s_waitcnt vmcnt(0)')
    a(f's_lshl_b32 s{sT}, s{sD}, 2')
    a(f's_add_u32 s{sT}, s{sT}, {WS_FA}')
    a(f'v_mov_b32 v8, s{S_TAG}')
    a('s_mov_b64 exec, 1')
    a(f'buffer_store_dword v8, off, {srd(SRD_WS)}, s{sT} sc1')
    stamp(a, 6, 52)
    stamp_dump(a, 8, 52)
    a('s_endpgm')

def rbcb(a, sidx, srb, scb, st):
    a(f's_and_b32 s{st}, s{sidx}, 7')
    a(f's_lshr_b32 s{srb}, s{st}, 1')
    a(f's_lshl_b32 s{srb}, s{srb}, 3')
    a(f's_lshr_b32 s{scb}, s{sidx}, 5')
    a(f's_add_u32 s{srb}, s{srb}, s{scb}')
    a(f's_and_b32 s{scb}, s{st}, 1')
    a(f's_lshl_b32 s{scb}, s{scb}, 2')
    a(f's_bfe_u32 s{st}, s{sidx}, 0x20003')
    a(f's_add_u32 s{scb}, s{scb}, s{st}')

def wait_word(a, name, saddr, sleep=8):
    a(f's_mov_b32 s89, {SPIN_MAX}')
    a.lab(f'{name}_spin')
    a(f'buffer_load_dword v8, off, {srd(SRD_WS)}, s{saddr} sc1')
    a('s_waitcnt vmcnt(0)')
    a(f'v_cmp_ne_u32 vcc, s{S_TAG}, v8')
    a(f's_cbranch_vccz {name}_done')
    a(f's_sleep {sleep}')
    a('s_sub_u32 s89, s89, 1')
    a('s_cmp_lg_u32 s89, 0')
    a(f's_cbranch_scc1 {name}_spin')
    a.lab(f'{name}_done')

def wait_fu(a, name, srb, st):
    a(f's_lshl_b32 s{st}, s{srb}, 2')
    a(f's_add_u32 s{st}, s{st}, {WS_FU}')
    wait_word(a, name, st)

def side_gate(a, opt):
    sK, sT = 82, 86
    vL = 1
    a(f's_sub_u32 s{sK}, s2, 256')
    rbcb(a, sK, 90, 91, 92)
    if opt.get('dly', 0):
        wait_fu(a, 'L_gw', 90, 92)
    a(f's_mul_i32 s{sT}, s{sK}, {8*1280}')
    a(f'v_lshrrev_b32 v2, 3, v{vL}')
    a(f'v_and_b32 v3, 7, v{vL}')
    a('v_lshlrev_b32 v4, 4, v3')
    a('v_mul_u32_u24 v5, 1280, v2')
    a('v_add_u32 v5, v5, v4')
    a(f'v_add_u32 v5, s{sT}, v5')
    XR, WR = 16, 56
    for it in range(10):
        a(f'global_load_dwordx4 {vr(XR+4*it,4)}, v5, {sp(P_U)} offset:{128*it}')
        a(f'global_load_dwordx4 {vr(WR+4*it,4)}, v4, {sp(P_GW)} offset:{128*it}')
    get_tag(a, 20)
    a('v_mov_b32 v6, 0')
    a('v_mov_b32 v7, 0')
    for it in range(10):
        a(f's_waitcnt vmcnt({18-2*it})')
        for k in range(4):
            x, w = XR + 4 * it + k, WR + 4 * it + k
            a(f'v_lshlrev_b32 v8, 16, v{x}')
            a(f'v_and_b32 v9, 0xffff0000, v{x}')
            a(f'v_lshlrev_b32 v10, 16, v{w}')
            a(f'v_and_b32 v11, 0xffff0000, v{w}')
            a('v_pk_mul_f32 v[8:9], v[8:9], v[10:11]')
            a('v_cvt_pk_bf16_f32 v12, v8, v9')
            a('v_lshlrev_b32 v8, 16, v12')
            a('v_and_b32 v9, 0xffff0000, v12')
            a('v_pk_add_f32 v[6:7], v[6:7], v[8:9]')
    a('v_add_f32 v6, v6, v7')
    a('v_add_f32_dpp v6, v6, v6 quad_perm:[1,0,3,2] row_mask:0xf bank_mask:0xf')
    a('v_add_f32_dpp v6, v6, v6 quad_perm:[2,3,0,1] row_mask:0xf bank_mask:0xf')
    a('v_add_f32_dpp v6, v6, v6 row_half_mirror row_mask:0xf bank_mask:0xf')
    a('v_cvt_pk_bf16_f32 v6, v6, v6')
    a('v_lshlrev_b32 v6, 16, v6')
    a(f'v_mul_f32 v6, {hx(-LOG2E)}, v6')
    a('v_exp_f32 v6, v6')
    a('v_add_f32 v6, 1.0, v6')
    a('v_rcp_f32 v6, v6')
    a('v_cvt_pk_bf16_f32 v6, v6, v6')
    a('v_lshlrev_b32 v8, 16, v6')
    a('v_sub_f32 v9, 1.0, v8')
    a('v_cvt_pk_bf16_f32 v9, v9, v9')
    a('v_lshlrev_b32 v9, 16, v9')
    a(f's_lshl_b32 s{sT}, s{sK}, 6')
    a(f's_add_u32 s{sT}, s{sT}, {WS_G}')
    a('v_lshlrev_b32 v10, 3, v2')
    a('v_cmp_eq_u32 vcc, 0, v3')
    a('s_and_saveexec_b64 s[84:85], vcc')
    a(f'buffer_store_dwordx2 v[8:9], v10, {srd(SRD_WS)}, s{sT} offen sc1')
    a('s_waitcnt vmcnt(0)')
    a(f's_lshl_b32 s{sT}, s{sK}, 2')
    a(f's_add_u32 s{sT}, s{sT}, {WS_FG}')
    a(f'v_mov_b32 v8, s{S_TAG}')
    a('s_mov_b64 exec, 1')
    a(f'buffer_store_dword v8, off, {srd(SRD_WS)}, s{sT} sc1')
    pf = opt.get('pf', 0)
    if pf:
        a('s_mov_b64 exec, -1')
        mk_srd(a, SRD_WSP, P_WSP, 2048 * 2048 * 2)
        if opt.get('pft', 1):
            a('s_lshl_b32 s92, s90, 14')
            a('s_lshl_b32 s93, s91, 5')
            a('s_add_u32 s92, s92, s93')
            a(f's_add_u32 s92, s92, {WS_ST+8}')
            wait_word(a, 'L_gs', 92)
        a('s_lshl_b32 s92, s90, 18')
        a('s_and_b32 s93, s91, 3')
        a('s_lshl_b32 s93, s93, 16')
        a('s_add_u32 s92, s92, s93')
        a(f'v_lshlrev_b32 v2, {7 if pf == 128 else 6}, v{vL}')
        for i in range(65536 // (64 * pf)):
            a(f'buffer_load_dword v{10+i}, v2, {srd(SRD_WSP)}, s92 offen')
            a(f's_add_u32 s92, s92, {64*pf}')
    a('s_endpgm')

def side_retile(a, opt):
    vL = 1
    mk_srd(a, SRD_WOUT, P_WOUT, 768 * 640 * 2)
    if opt.get('dly', 0):
        a('s_and_b32 s90, s2, 31')
        wait_fu(a, 'L_rw', 90, 92)
    a('s_sub_u32 s82, s2, 384')
    a('s_lshl_b32 s82, s82, 1')
    LB = 2 * WAVE_LDS
    for j in range(5):
        a(f'v_add_u32 v2, {64*j}, v{vL}')
        a('v_mul_u32_u24 v3, 52429, v2')
        a('v_lshrrev_b32 v3, 19, v3')
        a('v_mul_u32_u24 v4, 10, v3')
        a('v_sub_u32 v2, v2, v4')
        a('v_mul_u32_u24 v3, 1280, v3')
        a(f'v_lshl_add_u32 v{10+j}, v2, 4, v3')
    for un in range(2):
        a(f's_add_u32 s83, s82, {un}')
        a('s_mul_i32 s86, s83, 43691')
        a('s_lshr_b32 s86, s86, 20')
        a('s_mul_i32 s87, s86, 24')
        a('s_sub_u32 s87, s83, s87')
        a('s_mul_i32 s87, s87, 40960')
        a('s_mul_i32 s86, s86, 160')
        a('s_add_u32 s88, s86, s87')
        for j in range(5):
            a(f's_mov_b32 m0, {LB+5120*un+1024*j}')
            a(f'buffer_load_dwordx4 v{10+j}, {srd(SRD_WOUT)}, s88 offen lds')
    a(f'v_lshrrev_b32 v2, 4, v{vL}')
    a(f'v_bfe_u32 v3, v{vL}, 2, 2')
    a('v_lshl_add_u32 v2, v2, 3, v3')
    a('v_mul_u32_u24 v2, 160, v2')
    a(f'v_and_b32 v3, 3, v{vL}')
    a('v_lshl_add_u32 v2, v3, 3, v2')
    a(f'v_add_u32 v2, {LB}, v2')
    a(f'v_lshlrev_b32 v5, 4, v{vL}')
    a('s_mul_i32 s86, s82, 5120')
    a(f's_add_u32 s86, s86, {WS_WO}')
    get_tag(a, 0)
    for un in range(2):
        for dl in range(5):
            for half in range(2):
                a(f'ds_read_b64_tr_b16 {vr(16+20*un+4*dl+2*half,2)}, v2 offset:{5120*un+640*half+32*dl}')
    a('s_waitcnt lgkmcnt(0)')
    for un in range(2):
        for dl in range(5):
            if dl == 4: a('s_add_u32 s86, s86, 4096')
            a(f'buffer_store_dwordx4 {vr(16+20*un+4*dl,4)}, v5, {srd(SRD_WS)}, s86 offen offset:{1024*(dl%4)} sc1')
        a('s_add_u32 s86, s86, 1024')
    a('s_waitcnt vmcnt(0)')
    a('s_lshl_b32 s86, s82, 2')
    a(f's_add_u32 s86, s86, {WS_FW}')
    a(f'v_mov_b32 v8, s{S_TAG}')
    a(f'v_mov_b32 v9, s{S_TAG}')
    a('s_mov_b64 exec, 1')
    a(f'buffer_store_dwordx2 v[8:9], off, {srd(SRD_WS)}, s86 sc1')
    a('s_endpgm')

def side_keeper(a, opt):
    vL = 1
    get_tag(a, 0)
    a(f'v_lshlrev_b32 v2, 2, v{vL}')
    loads = [(2, WS_FZ + 256 * i) for i in range(4)] + [(2, WS_FA + 256 * i) for i in range(10)] + [(2, WS_FG + 256 * i) for i in range(4)]
    a(f's_mov_b32 s86, {WS_FZ}')
    a(f's_mov_b32 s87, {WS_FA}')
    a(f's_mov_b32 s88, {WS_FG}')
    a(f's_mov_b32 s90, {WS_FW}')
    L = [(2, f's86 offen offset:{256*i} ;') for i in range(4)]
    a(f's_mov_b32 s89, {SPIN_MAX}')
    a.lab('L_keep_spin')
    n = 0
    for base, cnt in (((86, 4), (87, 10), (88, 4), (90, 3)) if not opt.get('no_side') else ((86, 4),)):
        for i in range(cnt):
            a(f'buffer_load_dword v{8+n}, v2, {srd(SRD_WS)}, s{base} offen offset:{256*i} sc1'); n += 1
    a('s_waitcnt vmcnt(0)')
    a(f'v_cmp_ne_u32 vcc, s{S_TAG}, v8')
    for i in range(1, n):
        a(f'v_cmp_ne_u32 s[84:85], s{S_TAG}, v{8+i}')
        a('s_or_b64 vcc, vcc, s[84:85]')
    a('s_cbranch_vccz L_keep_done')
    a(f's_sleep {opt.get("ksl", 16)}')
    a('s_sub_u32 s89, s89, 1')
    a('s_cmp_lg_u32 s89, 0')
    a('s_cbranch_scc1 L_keep_spin')
    a.lab('L_keep_done')
    a(f'v_mov_b32 v8, s{S_TAG}')
    a('s_mov_b64 exec, 1')
    a(f'buffer_store_dword v8, off, {srd(SRD_WS)}, 0 sc1')
    a('s_endpgm')

def build(opt):
    PROF['on'] = bool(opt.get('prof'))
    PROF['dbg'] = bool(opt.get('dbg'))
    PSL[0] = opt.get('ssl', 2)
    import asmlib
    asmlib.TRANS_WS = opt.get('tws', 2)
    asmlib.PRE_TRANS_WS = opt.get('ptw', 0)
    a = Asm()
    a.raw(f'; @launch kernel={KNAME} grid=(512,1,1) block=(256,1,1) lds=81920' if not opt.get('plain') else '; @launch grid=(512,1,1) block=(256,1,1) lds=81920')
    a.raw('.amdgcn_target "amdgcn-amd-amdhsa--gfx950"')
    a.raw('.text')
    a.raw(f'.globl {KNAME}')
    a.raw('.p2align 8')
    a.raw(f'.type {KNAME},@function')
    a.lab(KNAME)
    a('s_cmp_ge_u32 s2, 512')
    a('s_cbranch_scc1 L_end')
    a('s_load_dwordx16 s[16:31], s[0:1], 0')
    a('s_load_dwordx16 s[32:47], s[0:1], 64')
    a('s_load_dwordx4 s[48:51], s[0:1], 128')
    a('v_and_b32 v1, 63, v0')
    a('v_lshrrev_b32 v2, 6, v0')
    a(f'v_readfirstlane_b32 s{S_W}, v2')
    a('s_waitcnt lgkmcnt(0)')
    mk_srd(a, SRD_WS, P_WS, WS_SIZE)
    a(f'buffer_load_dword v127, off, {srd(SRD_WS)}, 0 sc1')
    a('s_cmp_lt_u32 s2, 256')
    a('s_cbranch_scc1 L_gemm')
    if opt.get('no_side') == 1:
        a('s_cmp_eq_u32 s2, 511')
        a('s_cbranch_scc0 L_end')
        a(f's_cmp_eq_u32 s{S_W}, 2')
        a('s_cbranch_scc0 L_end')
    a(f's_cmp_eq_u32 s{S_W}, 3')
    a('s_cbranch_scc1 L_gate')
    if opt.get('no_side') == 2:
        a('s_cmp_ge_u32 s2, 384')
        a('s_cbranch_scc0 L_end')
        a(f's_cmp_eq_u32 s{S_W}, 2')
        a('s_cbranch_scc0 L_end')
    a(f's_lshl_b32 s82, s{S_W}, 8')
    a('s_add_u32 s82, s82, s2')
    a('s_sub_u32 s82, s82, 256')
    a('s_cmp_lt_u32 s82, 640')
    a('s_cbranch_scc1 L_chan')
    a('s_cmp_eq_u32 s2, 511')
    a('s_cbranch_scc1 L_keep')
    a('s_cmp_lt_u32 s2, 480')
    a('s_cbranch_scc1 L_retile')
    a.lab('L_end')
    a('s_endpgm')
    a.lab('L_chan')
    side_channel(a, opt)
    a.lab('L_gate')
    side_gate(a, opt)
    a.lab('L_retile')
    side_retile(a, opt)
    a.lab('L_keep')
    side_keeper(a, opt)
    a.lab('L_gemm')
    if opt.get('no_gemm'):
        a('s_endpgm')
    else:
        import gen_gemm
        gen_gemm.gemm_role(a, opt)
    a.raw('.section .rodata,"a"')
    a.raw('.p2align 6')
    a.raw(f'.amdhsa_kernel {KNAME}')
    a.raw('  .amdhsa_next_free_vgpr 256')
    a.raw('  .amdhsa_next_free_sgpr 96')
    a.raw('  .amdhsa_accum_offset 256')
    a.raw('  .amdhsa_group_segment_fixed_size 0')
    a.raw('  .amdhsa_kernarg_size 144')
    a.raw('  .amdhsa_user_sgpr_count 2')
    a.raw('  .amdhsa_user_sgpr_kernarg_segment_ptr 1')
    a.raw('  .amdhsa_system_sgpr_workgroup_id_x 1')
    a.raw('.end_amdhsa_kernel')
    return a.text()

if __name__ == '__main__':
    opt = {}
    for x in sys.argv[2:]:
        k, _, v = x.partition('=')
        opt[k] = int(v) if v else 1
    import gen as _self
    open(sys.argv[1], 'w').write(_self.build(opt))
```

```python
import numpy as np
from gen import *
import gen as _g
_stamp0 = stamp
PST = {'start': None}
def stamp(a, i, base=18):
    if PST['start'] is not None and i not in (0, 15): return
    if PST.get('clk') and _g.PROF['on']:
        m = {1: 3, 2: 4, 9: 5, 10: 6, 0: 7, 15: 8}
        if i in (3, 4, 5, 6, 7, 8): return
        if i in m:
            a('s_memtime s[14:15]')
            a('s_waitcnt lgkmcnt(0)')
            a(f's_mov_b32 s{base+m[i]}, s14')
    _stamp0(a, i, base)
def sstamp(a, stage):
    if PST['start'] is None: return
    k = stage - PST['start']
    if 0 <= k < 14: _stamp0(a, 1 + k)

SLOT = 20480
BOFF = 8192
S_RB, S_CB, S_WI, S_WJ = 82, 83, 86, 87
S_KC, S_AO, S_BO, S_T, S_T2, S_CNT = 88, 89, 90, 91, 92, 93
S_ABASE, S_BBASE = 94, 95
S_M_A, S_M_B, S_M_C = 3, 4, 5
S_K1 = 6
S_ONE = 8
S_KC0 = 10
S_FZA = 11
S_TMP2 = 12
S_WOB = 76
S_ROT = 78
CTR = 19456
V_L = 1
V_AD = 2
V_BD = 4
V_AR = 7
V_BR = 11
V_UR, V_US = 13, 14
V_T = 16
ACC2, ACC1, WF, XF = 24, 48, 72, 96
t0, t1, t2, t3 = V_T, V_T + 1, V_T + 2, V_T + 3
ST, MM, RR, ZQ, BSP, K0V = 96, 112, 120, 128, 140, 142
LN = 3 * SLOT

class VM:
    def __init__(self): self.ops = []
    def issue(self, tag, n=1): self.ops += [tag] * n
    def n_after(self, tag):
        idx = max(i for i, t in enumerate(self.ops) if t == tag)
        return len(self.ops) - 1 - idx

def gelu2(a, cs, k0v, after):
    T = [V_T, V_T + 4]
    def both(f):
        for c, t in zip(cs, T): a(f(c, t))
    both(lambda c, t: f'v_cvt_pk_bf16_f32 v{t+2}, v{c}, v{c+1}')
    both(lambda c, t: f'v_lshlrev_b32 v{t}, 16, v{t+2}')
    both(lambda c, t: f'v_and_b32 v{t+1}, 0xffff0000, v{t+2}')
    both(lambda c, t: f'v_pk_mul_f32 {vr(t+2,2)}, {vr(t,2)}, {vr(t,2)}')
    both(lambda c, t: f'v_pk_fma_f32 {vr(t+2,2)}, {vr(t+2,2)}, {sp(S_K1)}, {vr(k0v,2)}')
    both(lambda c, t: f'v_pk_mul_f32 {vr(t+2,2)}, {vr(t+2,2)}, {vr(t,2)}')
    both(lambda c, t: f'v_exp_f32 v{t+2}, v{t+2}')
    both(lambda c, t: f'v_exp_f32 v{t+3}, v{t+3}')
    both(lambda c, t: f'v_pk_add_f32 {vr(t+2,2)}, {vr(t+2,2)}, {sp(S_ONE)}')
    both(lambda c, t: f'v_rcp_f32 v{t+2}, v{t+2}')
    both(lambda c, t: f'v_rcp_f32 v{t+3}, v{t+3}')
    both(lambda c, t: f'v_pk_mul_f32 {vr(t+2,2)}, {vr(t+2,2)}, {vr(t,2)}')
    steps = [after(c, t) for c, t in zip(cs, T)]
    for x, y in zip(*steps):
        a(x); a(y)

def gelu_packed(regs, k0v):
    T = [V_T, V_T + 4]
    L = []
    def both(f):
        for c, t in zip(regs, T): L.append(f(c, t))
    both(lambda c, t: f'v_lshlrev_b32 v{t}, 16, v{c}')
    both(lambda c, t: f'v_and_b32 v{t+1}, 0xffff0000, v{c}')
    both(lambda c, t: f'v_pk_mul_f32 {vr(t+2,2)}, {vr(t,2)}, {vr(t,2)}')
    both(lambda c, t: f'v_pk_fma_f32 {vr(t+2,2)}, {vr(t+2,2)}, {sp(S_K1)}, {vr(k0v,2)}')
    both(lambda c, t: f'v_pk_mul_f32 {vr(t+2,2)}, {vr(t+2,2)}, {vr(t,2)}')
    both(lambda c, t: f'v_exp_f32 v{t+2}, v{t+2}')
    both(lambda c, t: f'v_exp_f32 v{t+3}, v{t+3}')
    both(lambda c, t: f'v_pk_add_f32 {vr(t+2,2)}, {vr(t+2,2)}, {sp(S_ONE)}')
    both(lambda c, t: f'v_rcp_f32 v{t+2}, v{t+2}')
    both(lambda c, t: f'v_rcp_f32 v{t+3}, v{t+3}')
    both(lambda c, t: f'v_pk_mul_f32 {vr(t+2,2)}, {vr(t+2,2)}, {vr(t,2)}')
    both(lambda c, t: f'v_cvt_pk_bf16_f32 v{c}, v{t+2}, v{t+3}')
    return L

def flag_store(a, sreg, vtmp):
    a(f'v_mov_b32 v{vtmp}, s{S_TAG}')
    a(f's_mov_b64 {sp(S_TMP2)}, exec')
    a('s_mov_b64 exec, 1')
    a(f'buffer_store_dword v{vtmp}, off, {srd(SRD_WS)}, s{sreg} sc1')
    a(f's_mov_b64 exec, {sp(S_TMP2)}')

def gemm_role(a, opt):
    vm = VM()
    PST['start'] = opt.get('pst')
    PST['clk'] = opt.get('clk')
    stop = opt.get('stop', 99)
    OC = {0: '', 1: 'sc1', 2: 'nt', 3: 'sc0 sc1'}[opt.get('oc', 0)]
    LNS = opt.get('lns', 16)
    LDS_ = opt.get('lds', 15)
    FZS = opt.get('fzs', 1)
    c0 = np.sqrt(2 / np.pi)
    k0 = -2 * c0 * LOG2E; k1 = k0 * 0.044715
    a(f's_setprio {opt.get("prio", 2)}')
    stamp(a, 0)
    if opt.get('tk', 0):
        CT = 20480 - 64
        a(f's_cmp_lg_u32 s{S_W}, 0')
        a('s_cbranch_scc1 L_tk_wait')
        mk_srd(a, SRD_X, P_DBG, 256)
        a(f's_getreg_b32 s{S_T}, hwreg(HW_REG_XCC_ID, 0, 3)')
        a(f's_mov_b64 {sp(S_TMP2)}, exec')
        a('s_mov_b64 exec, 1')
        a(f's_mov_b32 s{S_KC}, 8')
        a.lab('L_tk_try')
        a('v_mov_b32 v2, 1')
        a(f's_lshl_b32 s{S_CNT}, s{S_T}, 5')
        a(f'buffer_atomic_add v2, off, {srd(SRD_X)}, s{S_CNT} sc0 sc1')
        a('s_waitcnt vmcnt(0)')
        a(f'v_readfirstlane_b32 s{S_T2}, v2')
        a(f's_cmp_lt_u32 s{S_T2}, 32')
        a('s_cbranch_scc1 L_tk_got')
        a(f's_add_u32 s{S_T}, s{S_T}, 1')
        a(f's_and_b32 s{S_T}, s{S_T}, 7')
        a(f's_sub_u32 s{S_KC}, s{S_KC}, 1')
        a(f's_cmp_lg_u32 s{S_KC}, 0')
        a('s_cbranch_scc1 L_tk_try')
        a.lab('L_tk_got')
        a(f's_lshl_b32 s{S_T2}, s{S_T2}, 3')
        a(f's_or_b32 s{S_T2}, s{S_T2}, s{S_T}')
        a(f'v_mov_b32 v2, s{S_T2}')
        a(f'v_mov_b32 v3, {CT}')
        a('ds_write_b32 v3, v2')
        a('s_waitcnt lgkmcnt(0)')
        a(f's_mov_b64 exec, {sp(S_TMP2)}')
        a.lab('L_tk_wait')
        a('s_barrier')
        a(f'v_mov_b32 v3, {CT}')
        a('ds_read_b32 v2, v3')
        a('s_waitcnt lgkmcnt(0)')
        a(f'v_readfirstlane_b32 s{S_CNT}, v2')
        a('s_barrier')
        a(f's_and_b32 s{S_T}, s{S_CNT}, 7')
        a(f's_lshr_b32 s{S_T2}, s{S_CNT}, 3')
        a(f's_and_b32 s{S_T2}, s{S_T2}, 31')
    else:
        a(f's_and_b32 s{S_T}, s2, 7')
        a(f's_lshr_b32 s{S_T2}, s2, 3')
    a(f's_lshr_b32 s{S_RB}, s{S_T}, 1')
    a(f's_lshl_b32 s{S_RB}, s{S_RB}, 3')
    a(f's_lshr_b32 s{S_CNT}, s{S_T2}, 2')
    a(f's_add_u32 s{S_RB}, s{S_RB}, s{S_CNT}')
    a(f's_and_b32 s{S_CB}, s{S_T}, 1')
    a(f's_lshl_b32 s{S_CB}, s{S_CB}, 2')
    a(f's_and_b32 s{S_CNT}, s{S_T2}, 3')
    a(f's_add_u32 s{S_CB}, s{S_CB}, s{S_CNT}')
    a(f's_lshr_b32 s{S_WI}, s{S_W}, 1')
    a(f's_and_b32 s{S_WJ}, s{S_W}, 1')
    mk_srd(a, SRD_X, P_U, 2048 * 640 * 2)
    mk_srd(a, SRD_WIN, P_WIN, 640 * 1536 * 2)
    a(f's_mul_i32 s{S_KC}, s{S_CB}, 3')
    a(f's_add_u32 s{S_KC}, s{S_KC}, s{S_RB}')
    a(f's_mul_i32 s{S_T}, s{S_KC}, 205')
    a(f's_lshr_b32 s{S_T}, s{S_T}, 11')
    a(f's_mul_i32 s{S_T}, s{S_T}, 10')
    a(f's_sub_u32 s{S_KC}, s{S_KC}, s{S_T}')
    if opt.get('rot1', 3) == 3: a(f's_mov_b32 s{S_KC}, s{S_CB}')
    a(f's_mov_b32 s{S_KC0}, s{S_KC}')
    if opt.get('rot1') == 1: a(f's_mov_b32 s{S_KC}, 0')
    if opt.get('rot1') == 2:
        a(f's_lshr_b32 s{S_KC}, s{S_RB}, 3')
    a(f's_lshl_b32 s{S_M_A}, s{S_W}, 11')
    a(f's_mul_i32 s{S_M_B}, s{S_W}, 3072')
    a(f's_add_u32 s{S_M_B}, s{S_M_B}, {BOFF}')
    a(f's_mul_i32 s{S_ABASE}, s{S_RB}, {64*1280}')
    a(f's_mul_i32 s{S_BBASE}, s{S_CB}, 192')
    a(f's_add_u32 s{S_BBASE}, s{S_BBASE}, 1536')
    def row_dma_offsets(pitch):
        a(f'v_lshrrev_b32 v{t0}, 3, v{V_L}')
        a(f'v_and_b32 v{t1}, 7, v{V_L}')
        a(f'v_bfe_u32 v{t2}, v{V_L}, 4, 1')
        a(f'v_xor_b32 v{t1}, v{t1}, v{t2}')
        a(f's_lshl_b32 s{S_T}, s{S_W}, 4')
        a(f'v_add_u32 v{t0}, s{S_T}, v{t0}')
        a(f'v_mul_u32_u24 v{t0}, {pitch}, v{t0}')
        a(f's_lshl_b32 s{S_T}, s{S_WJ}, 2')
        a(f'v_xor_b32 v{t1}, s{S_T}, v{t1}')
        a(f'v_lshl_add_u32 v{V_AD}, v{t1}, 4, v{t0}')
        a(f'v_xor_b32 v{t1}, 2, v{t1}')
        a(f'v_lshl_add_u32 v{V_AD+1}, v{t1}, 4, v{t0}')
        a(f'v_add_u32 v{V_AD+1}, {8*pitch-1024}, v{V_AD+1}')
    row_dma_offsets(1280)
    def run_units(units, track=True):
        for (lines, tag) in units:
            for l in lines: a(l)
            if track: vm.issue(tag, 1)
    def dma_p1_A(stage, kc=None):
        slot = (stage & 3) * SLOT
        return [([f's_lshl_b32 s{S_AO}, s{S_KC}, 7', f's_add_u32 s{S_AO}, s{S_AO}, s{S_ABASE}', f's_add_u32 m0, s{S_M_A}, {slot}',
                  f'buffer_load_dwordx4 v{V_AD}, {srd(SRD_X)}, s{S_AO} offen lds'], ('A', stage)),
                ([f'buffer_load_dwordx4 v{V_AD+1}, {srd(SRD_X)}, s{S_AO} offen offset:1024 lds'], ('A', stage))]
    def dma_p1_B(stage):
        slot = (stage & 3) * SLOT
        U = []
        pre = [f's_mul_i32 s{S_BO}, s{S_KC}, {64*3072}', f's_add_u32 s{S_BO}, s{S_BO}, s{S_BBASE}', f's_add_u32 m0, s{S_M_B}, {slot}', f's_add_u32 s{S_KC}, s{S_KC}, 1']
        for j in range(3):
            L = (pre if j == 0 else []) + [f'buffer_load_dwordx4 v{V_BD+j}, {srd(SRD_WIN)}, s{S_BO} offen offset:{1024*j} lds']
            if j == 2:
                L += [f's_cmp_eq_u32 s{S_KC}, 10', f's_cselect_b32 s{S_KC}, 0, s{S_KC}']
                if stage == 9: L += [f's_sub_u32 s{S_BBASE}, s{S_BBASE}, 1536']
            U.append((L, ('B', stage)))
        return U
    def dma_p1(stage): return (dma_p1_A(stage) if stage < 10 else []) + dma_p1_B(stage)
    vm.issue('epoch')
    run_units(dma_p1_A(0))
    a(f's_mul_i32 s{S_T}, s{S_W}, 192')
    for j in range(3):
        a(f'v_add_u32 v{t0}, s{S_T}, v{V_L}')
        if j: a(f'v_add_u32 v{t0}, {64*j}, v{t0}')
        a(f'v_mul_u32_u24 v{t1}, 43691, v{t0}')
        a(f'v_lshrrev_b32 v{t1}, 19, v{t1}')
        a(f'v_mul_u32_u24 v{t2}, 12, v{t1}')
        a(f'v_sub_u32 v{t0}, v{t0}, v{t2}')
        a(f'v_bfe_u32 v{t2}, v{t1}, 3, 1')
        a(f'v_mad_u32_u24 v{t0}, v{t2}, 6, v{t0}')
        a(f'v_subrev_u32 v{t2}, 12, v{t0}')
        a(f'v_min_u32 v{t0}, v{t0}, v{t2}')
        a(f'v_mul_u32_u24 v{t1}, 3072, v{t1}')
        a(f'v_lshl_add_u32 v{V_BD+j}, v{t0}, 4, v{t1}')
        if j: a(f'v_subrev_u32 v{V_BD+j}, {1024*j}, v{V_BD+j}')
    run_units(dma_p1_B(0))
    for s in range(1, 4): run_units(dma_p1(s))
    mk_srd(a, SRD_WSP, P_WSP, 2048 * 2048 * 2)
    mk_srd(a, SRD_OUT, P_OUT, 2048 * 640 * 2)
    PAT7 = ([-1, -1, 9, 9], [-1, 9, 9])
    PAT = {5: ([0, 2, 4], [1, 3]), 3: ([1, 4], [2]), 2: ([1], [2]), 0: ([], [])}
    if opt.get('pat') == 1: PAT = {5: ([9, 9, 9], [9, 9]), 3: ([9, 9], [9]), 2: ([9], [9]), 0: ([], [])}
    if opt.get('pat') == 2: PAT = {5: ([9, 9, 9, 9, 9], []), 3: ([9, 9, 9], []), 2: ([9, 9], []), 0: ([], [])}
    if opt.get('pat', 3) == 3: PAT = {5: ([-1, -1, 9], [-1, 9]), 3: ([-1, 9], [9]), 2: ([9], [9]), 0: ([], [])}
    def with_units(mf_lines, pos_units, track=True):
        for (p, u) in pos_units:
            if p < 0: run_units([u], track)
        for i, l in enumerate(mf_lines):
            a(l)
            for (p, u) in pos_units:
                if p == i: run_units([u], track)
        for (p, u) in pos_units:
            if p >= len(mf_lines): run_units([u], track)
    def split_units(U):
        first, second = PAT[len(U)] if len(U) in PAT else PAT7 if len(U) == 7 else ([-1, 9], [-1, 9])
        return list(zip(first, U[:len(first)])), list(zip(second, U[len(first):]))
    def lane_mq():
        a(f'v_and_b32 v{t0}, 15, v{V_L}')
        a(f'v_lshrrev_b32 v{t1}, 4, v{V_L}')
    lane_mq()
    a(f'v_lshrrev_b32 v{t2}, 2, v{t0}')
    a(f'v_lshlrev_b32 v{t3}, 3, v{t2}')
    a(f'v_and_b32 v{V_AR}, 3, v{t0}')
    a(f'v_add_u32 v{t3}, v{t3}, v{V_AR}')
    a(f's_lshl_b32 s{S_T}, s{S_WI}, 5')
    a(f'v_add_u32 v{t3}, s{S_T}, v{t3}')
    a(f'v_lshlrev_b32 v{t3}, 7, v{t3}')
    a(f'v_lshlrev_b32 v{t2}, 1, v{t2}')
    a(f'v_bfe_u32 v{V_AR}, v{t0}, 1, 1')
    a(f'v_or_b32 v{t2}, v{t2}, v{V_AR}')
    a(f'v_xor_b32 v{t2}, v{t2}, v{t1}')
    a(f'v_lshl_add_u32 v{V_AR}, v{t2}, 4, v{t3}')
    a(f'v_xor_b32 v{V_AR+1}, 64, v{V_AR}')
    a(f'v_add_u32 v{V_AR+2}, {2*SLOT}, v{V_AR}')
    a(f'v_add_u32 v{V_AR+3}, {2*SLOT}, v{V_AR+1}')
    a(f'v_lshrrev_b32 v{t2}, 2, v{t0}')
    a(f'v_lshl_add_u32 v{t2}, v{t1}, 3, v{t2}')
    a(f'v_mul_u32_u24 v{t2}, 192, v{t2}')
    a(f'v_and_b32 v{t3}, 1, v{t1}')
    a(f'v_xor_b32 v{t3}, s{S_WJ}, v{t3}')
    a(f'v_mul_u32_u24 v{t3}, 96, v{t3}')
    a(f'v_add_u32 v{t2}, v{t2}, v{t3}')
    a(f'v_and_b32 v{t3}, 3, v{V_L}')
    a(f'v_lshl_add_u32 v{V_BR}, v{t3}, 3, v{t2}')
    a(f'v_add_u32 v{V_BR}, {BOFF}, v{V_BR}')
    a(f'v_add_u32 v{V_BR+1}, {2*SLOT}, v{V_BR}')
    a(f'v_lshrrev_b32 v{t2}, 2, v{t0}')
    a(f'v_lshl_add_u32 v{t3}, v{t1}, 3, v{t2}')
    a(f'v_lshlrev_b32 v{V_UR}, 7, v{t3}')
    a(f'v_lshrrev_b32 v{t2}, 1, v{t2}')
    a(f'v_lshl_or_b32 v{t2}, v{t1}, 1, v{t2}')
    a(f'v_bfe_u32 v{t3}, v{V_L}, 1, 1')
    a(f's_lshl_b32 s{S_T}, s{S_W}, 1')
    a(f'v_add_u32 v{t3}, s{S_T}, v{t3}')
    a(f'v_xor_b32 v{t3}, v{t3}, v{t2}')
    a(f'v_lshl_add_u32 v{V_UR}, v{t3}, 4, v{V_UR}')
    a(f'v_and_b32 v{t3}, 1, v{V_L}')
    a(f'v_lshl_add_u32 v{V_UR}, v{t3}, 3, v{V_UR}')
    a(f's_lshl_b32 s{S_T}, s{S_W}, 4')
    a(f'v_add_u32 v{V_US}, s{S_T}, v{t0}')
    a(f'v_lshlrev_b32 v{V_US}, 12, v{V_US}')
    a(f'v_lshl_add_u32 v{V_US}, v{t1}, 4, v{V_US}')
    a(f's_mov_b32 s{S_K1}, {hx(k1)}')
    a(f's_mov_b32 s{S_K1+1}, {hx(k1)}')
    a(f's_mov_b32 s{S_ONE}, 1.0')
    a(f's_mov_b32 s{S_ONE+1}, 1.0')
    a(f's_waitcnt vmcnt({vm.n_after("epoch")})')
    a(f'v_readfirstlane_b32 s{S_TAG}, v127')
    a(f's_add_u32 s{S_TAG}, s{S_TAG}, 1')

    def ar(stage, ks): return V_AR + ks + (2 if (stage & 2) else 0)
    def so(stage): return (stage & 1) * SLOT
    def br(stage): return V_BR + (1 if (stage & 2) else 0)
    def reads_p1(stage, ks):
        n = 0
        if stage < 10:
            for tau in range(2):
                a(f'ds_read_b128 {vr(XF+16*stage+8*ks+4*tau,4)}, v{ar(stage,ks)} offset:{so(stage)+512*tau}'); n += 1
        for phi in range(3):
            for half in range(2):
                a(f'ds_read_b64_tr_b16 {vr(WF+12*ks+4*phi+2*half,2)}, v{br(stage)} offset:{so(stage)+6144*ks+768*half+32*phi}'); n += 1
        return n
    def mfma_p1(stage, ks):
        i = stage % 10
        L = []
        for tau in range(2):
            for phi in range(3):
                x = vr(XF + 16 * i + 8 * ks + 4 * tau, 4); w = vr(WF + 12 * ks + 4 * phi, 4)
                if stage < 10:
                    c = vr(ACC2 + 4 * (3 * tau + phi), 4)
                    L.append(f'v_mfma_f32_16x16x32_bf16 {c}, {x}, {w}, {c if (i or ks) else 0}')
                else:
                    c = vr(ACC1 + 4 * (2 * phi + tau), 4)
                    L.append(f'v_mfma_f32_16x16x32_bf16 {c}, {w}, {x}, {c if (i or ks) else 0}')
        return L
    def dma_p2_A(stage):
        slot = (stage & 3) * SLOT
        return [([f's_lshl_b32 s{S_AO}, s{S_KC}, 7', f's_add_u32 s{S_AO}, s{S_AO}, s{S_ABASE}', f's_add_u32 m0, s{S_M_A}, {slot}', f's_add_u32 s{S_KC}, s{S_KC}, 1',
                  f'buffer_load_dwordx4 v{V_AD}, {srd(SRD_WSP)}, s{S_AO} offen lds'], ('A', stage)),
                ([f'buffer_load_dwordx4 v{V_AD+1}, {srd(SRD_WSP)}, s{S_AO} offen offset:1024 lds', f's_and_b32 s{S_KC}, s{S_KC}, 31'], ('A', stage))]
    S_KZ = S_KC0
    def dma_p2_B(stage):
        slot = (stage & 3) * SLOT
        U = []
        for j in range(3):
            L = [f's_mul_i32 s{S_BO}, s{S_KZ}, 12288', f's_add_u32 s{S_BO}, s{S_BO}, s{S_BBASE}', f's_add_u32 m0, s{S_M_B}, {slot}', f's_add_u32 s{S_KZ}, s{S_KZ}, 1'] if j == 0 else []
            L += [f'buffer_load_dwordx4 v{V_BD}, {srd(SRD_WS)}, s{S_BO} offen offset:{1024*j} sc1 lds']
            if j == 2: L += [f's_and_b32 s{S_KZ}, s{S_KZ}, 31']
            U.append((L, ('B', stage)))
        return U
    def rot2(dst):
        m = opt.get('rot2', 5)
        if m == 1:
            a(f's_lshl_b32 s{dst}, s{S_CB}, 3')
            a(f's_add_u32 s{dst}, s{dst}, s{S_RB}')
        elif m == 2:
            a(f's_lshl_b32 s{dst}, s{S_CB}, 1')
            a(f's_add_u32 s{dst}, s{dst}, s{S_RB}')
            a(f's_lshl_b32 s{dst}, s{dst}, 2')
        elif m == 3:
            a(f's_lshl_b32 s{dst}, s{S_CB}, 1')
            a(f's_add_u32 s{dst}, s{dst}, s{S_RB}')
            a(f's_lshl_b32 s{dst}, s{dst}, 2')
            a(f's_lshr_b32 s{S_T2}, s{S_RB}, 3')
            a(f's_add_u32 s{dst}, s{dst}, s{S_T2}')
        elif m == 4:
            a(f's_mov_b32 s{dst}, s{S_RB}')
        elif m == 5:
            a(f's_and_b32 s{dst}, s{S_RB}, 24')
        a(f's_and_b32 s{dst}, s{dst}, 31')
    def ut_chunk(extra):
        if extra:
            a(f's_add_u32 s{S_T}, s{S_KC0}, {extra}')
            a(f's_sub_u32 s{S_T2}, s{S_T}, 10')
            a(f's_min_u32 s{S_T}, s{S_T}, s{S_T2}')
        else:
            a(f's_mov_b32 s{S_T}, s{S_KC0}')
    V_A4 = 144
    def wsp_setup():
        a(f'v_lshrrev_b32 v{t0}, 3, v{V_L}')
        a(f'v_lshlrev_b32 v{t0}, 12, v{t0}')
        a(f'v_and_b32 v{t1}, 7, v{V_L}')
        a(f'v_bfe_u32 v{t2}, v{V_L}, 4, 1')
        a(f'v_xor_b32 v{t1}, v{t1}, v{t2}')
        for j in range(4):
            a(f'v_xor_b32 v{t2}, {2*j}, v{t1}')
            a(f'v_lshl_add_u32 v{VA4(j)}, v{t2}, 4, v{t0}')
            if j: a(f'v_add_u32 v{VA4(j)}, {8*j*4096-1024*j}, v{VA4(j)}')
        a(f's_lshl_b32 s{S_ABASE}, s{S_RB}, 18')
        a(f's_mul_i32 s{S_M_A}, s{S_W}, {SLOT}')
        rot2(S_KA)
        a(f's_add_u32 s{S_KA}, s{S_KA}, s{S_W}')
    def VA4(j): return (V_AD, V_AD + 1, V_UR + 0 if False else 15, 0)[j]
    S_KA = S_M_C
    def adma(par):
        U = []
        for gq in range(8):
            L = []
            if gq == 0:
                L += [f's_and_b32 s{S_KA}, s{S_KA}, 31', f's_lshl_b32 s{S_A2}, s{S_KA}, 7', f's_add_u32 s{S_A2}, s{S_A2}, s{S_ABASE}', f's_add_u32 s{S_KA}, s{S_KA}, 4']
            if gq == 4:
                L += [f's_add_u32 s{S_A2}, s{S_A2}, 131072']
            L += [f's_add_u32 m0, s{S_M_A}, {8192*par+4096*(gq>>2)}']
            L += [f'buffer_load_dwordx4 v{VA4(gq&3)}, {srd(SRD_WSP)}, s{S_A2} offen offset:{1024*(gq&3)} lds']
            U.append((L, ('A2', par)))
        return U
    S_A2 = 77
    U2 = 8 if opt.get('rot1', 3) == 3 else 4
    UT = V_T
    pend = []
    a(f's_waitcnt vmcnt({vm.n_after(("B", 0))})')
    a('s_barrier')
    stamp(a, 1)
    reads_p1(0, 0)
    for s in range(20):
        if s == 10:
            stamp(a, 2)
            e1_z2(a, opt, vm, k0)
            stamp(a, 3)
        if s == LDS_:
            e2_loads(a, vm)
        if s == LNS:
            stamp(a, 4)
            e2_layernorm(a, opt, vm)
            if opt.get('kd') == 2:
                a(f's_cmp_lg_u32 s{S_W}, 3')
                a('s_cbranch_scc1 L_fs2_skip')
                a(f's_lshl_b32 s{S_T}, s2, 2')
                a(f's_add_u32 s{S_T}, s{S_T}, {WS_FS+1024}')
                flag_store(a, S_T, 18)
                a.lab('L_fs2_skip')
            stamp(a, 5)
        n1 = reads_p1(s, 1)
        ut = s in (0, U2)
        if ut:
            if s == U2:
                a(f's_cmp_ge_u32 s{S_CB}, 2')
                a('s_cbranch_scc1 L_ut2_skip')
            for h2 in range(2):
                for half in range(2):
                    a(f'ds_read_b64_tr_b16 {vr(UT+4*h2+2*half,2)}, v{V_UR} offset:{(s&3)*SLOT+4096*h2+512*half}')
            if s == U2:
                a.lab('L_ut2_skip')
        a(f's_waitcnt lgkmcnt({n1+4 if s == 0 else n1})')
        with_units(mfma_p1(s, 0), pend); pend = []
        if s < 19:
            n = vm.n_after(('B', s + 1))
            if s == LNS + FZS: n = min(n, vm.n_after('z'))
            a(f's_waitcnt vmcnt({n}) lgkmcnt(0)')
        else:
            a('s_waitcnt lgkmcnt(0)')
        a('s_barrier')
        sstamp(a, s)
        if ut:
            if s == U2:
                a(f's_cmp_ge_u32 s{S_CB}, 2')
                a('s_cbranch_scc1 L_us2_skip')
            ut_chunk(s)
            a(f's_lshl_b32 s{S_T}, s{S_T}, 18')
            a(f's_lshl_b32 s{S_T2}, s{S_RB}, 7')
            a(f's_add_u32 s{S_T}, s{S_T}, s{S_T2}')
            a(f's_add_u32 s{S_T}, s{S_T}, {WS_UT}')
            for h2 in range(2):
                a(f'buffer_store_dwordx4 {vr(UT+4*h2,4)}, v{V_US}, {srd(SRD_WS)}, s{S_T} offen offset:{64*h2} sc1')
            if s == U2:
                a.lab('L_us2_skip')
            else:
                vm.issue('ut0', 2)
        if s in (3, U2 + 3):
            a(f's_cmp_lg_u32 s{S_W}, 0')
            a(f's_cbranch_scc1 L_fu{s}_skip')
            if s == U2 + 3:
                a(f's_cmp_ge_u32 s{S_CB}, 2')
                a(f's_cbranch_scc1 L_fu{s}_skip')
            ut_chunk(s - 3)
            a(f's_lshl_b32 s{S_T}, s{S_T}, 5')
            a(f's_add_u32 s{S_T}, s{S_T}, s{S_RB}')
            a(f's_lshl_b32 s{S_T}, s{S_T}, 2')
            a(f's_add_u32 s{S_T}, s{S_T}, {WS_FU}')
            flag_store(a, S_T, V_T)
            a.lab(f'L_fu{s}_skip')
        if s == LNS + FZS:
            a(f's_cmp_lg_u32 s{S_W}, 0')
            a('s_cbranch_scc1 L_fz_skip')
            flag_store(a, S_FZA, V_T)
            a.lab('L_fz_skip')
            stamp(a, 6)
        if s + 4 < 20:
            U = dma_p1(s + 4)
        else:
            U = []
        if s == 12:
            wsp_setup()
        A0S = opt.get('a0s', LNS)
        if s in (A0S, A0S + 1):
            U = U + adma(0)[4 * (s - A0S): 4 * (s - A0S) + 4]
        now, pend = split_units(U)
        if s + 1 in (10, LNS, 20):
            now = now + [(99, u) for (_, u) in pend]; pend = []
        if s < 19:
            reads_p1(s + 1, 0)
        with_units(mfma_p1(s, 1), now)
    stamp(a, 7)
    run_units(adma(1))
    V_PA = 141
    rot2(S_ROT)
    a(f's_add_u32 s{S_T}, s{S_ROT}, s{S_W}')
    a(f'v_lshl_add_u32 v{V_PA}, v{V_L}, 2, s{S_T}')
    a(f'v_and_b32 v{V_PA}, 31, v{V_PA}')
    a(f'v_lshlrev_b32 v{V_PA}, 2, v{V_PA}')
    a(f's_lshl_b32 s{S_T}, s{S_CB}, 7')
    a(f's_add_u32 s{S_T}, s{S_T}, {WS_FZ}')
    a(f'v_add_u32 v{V_PA}, s{S_T}, v{V_PA}')
    if opt.get('no_side') != 1:
        a(f'v_subrev_u32 v{t0}, 8, v{V_L}')
        a(f'v_min_u32 v{t0}, 5, v{t0}')
        a(f's_mul_i32 s{S_T}, s{S_CB}, 24')
        a(f's_mul_i32 s{S_T2}, s{S_W}, 6')
        a(f's_add_u32 s{S_T}, s{S_T}, s{S_T2}')
        a(f'v_add_u32 v{t0}, s{S_T}, v{t0}')
        a(f'v_lshlrev_b32 v{t0}, 2, v{t0}')
        a(f'v_add_u32 v{t0}, {WS_FW}, v{t0}')
        a(f'v_cmp_gt_u32 vcc, 8, v{V_L}')
        a(f'v_cndmask_b32 v{V_PA}, v{t0}, v{V_PA}, vcc')
    V_FL = 140
    S_RDY = 84
    def flags_load():
        a(f'buffer_load_dword v{V_FL}, v{V_PA}, {srd(SRD_WS)}, 0 offen sc1')
    nspin = [0]
    def need_bit(idx, mask=False, fresh=False):
        n = nspin[0]; nspin[0] += 1
        def test():
            if mask:
                a(f's_andn2_b32 s{S_T2}, {idx}, s{S_RDY}')
                a(f's_cbranch_scc0 L_nb{n}_ok')
            else:
                a(f's_bitcmp1_b32 s{S_RDY}, {idx}')
                a(f's_cbranch_scc1 L_nb{n}_ok')
        if fresh:
            a(f'v_cmp_eq_u32 s[{S_RDY}:{S_RDY+1}], s{S_TAG}, v{V_FL}')
        test()
        a(f's_mov_b32 s{S_CNT}, {SPIN_MAX}')
        a.lab(f'L_nb{n}_spin')
        flags_load()
        a('s_waitcnt vmcnt(0)')
        a(f'v_cmp_eq_u32 s[{S_RDY}:{S_RDY+1}], s{S_TAG}, v{V_FL}')
        test()
        a(f's_sub_u32 s{S_CNT}, s{S_CNT}, 1')
        a(f's_cmp_lg_u32 s{S_CNT}, 0')
        a(f's_cbranch_scc1 L_nb{n}_spin')
        a.lab(f'L_nb{n}_ok')
    a(f's_mov_b64 s[{S_RDY}:{S_RDY+1}], 0')
    a(f'v_mov_b32 v{K0V}, {hx(k0)}')
    a(f'v_mov_b32 v{K0V+1}, {hx(k0)}')
    V_ZW = V_US
    lane_mq()
    a(f'v_lshrrev_b32 v{t2}, 2, v{t0}')
    a(f'v_lshlrev_b32 v{t2}, 3, v{t2}')
    a(f'v_and_b32 v{t3}, 3, v{t0}')
    a(f'v_add_u32 v{t2}, v{t2}, v{t3}')
    a(f'v_lshlrev_b32 v{t2}, 3, v{t2}')
    a(f'v_mul_u32_u24 v{t3}, {SLOT}, v{t1}')
    a(f'v_add_u32 v{t2}, v{t2}, v{t3}')
    a(f's_mul_i32 s{S_T}, s{S_WJ}, 1536')
    a(f's_lshl_b32 s{S_T2}, s{S_WI}, 8')
    a(f's_add_u32 s{S_T}, s{S_T}, s{S_T2}')
    a(f's_add_u32 s{S_T}, s{S_T}, 16384')
    a(f'v_add_u32 v{V_ZW}, s{S_T}, v{t2}')
    Z1Q = 128
    def z1_group(i):
        phi, tau = i >> 1, i & 1
        cs = [ACC1 + 4 * i, ACC1 + 4 * i + 2]
        a(f'v_cvt_pk_bf16_f32 v{Z1Q+2*i}, v{cs[0]}, v{cs[0]+1}')
        a(f'v_cvt_pk_bf16_f32 v{Z1Q+2*i+1}, v{cs[1]}, v{cs[1]+1}')
        a(f'ds_write_b64 v{V_ZW}, {vr(Z1Q+2*i,2)} offset:{512*phi+32*tau}')
    NG1 = 6
    a(f'v_mov_b32 v{t2}, {CTR}')
    a(f'v_mov_b32 v{t3}, 8')
    a(f'ds_write_b32 v{t2}, v{t3}')
    for i in range(NG1): z1_group(i)
    G2 = 24
    ZR = 144
    AF = 120
    Z1R = 240
    V_ZD, V_A2R = V_BD, V_AR
    a(f'v_and_b32 v{t0}, 31, v{V_L}')
    a(f'v_lshrrev_b32 v{t1}, 5, v{V_L}')
    a(f's_lshl_b32 s{S_T}, s{S_W}, 3')
    a(f'v_add_u32 v{t3}, s{S_T}, v{t0}')
    a(f'v_and_b32 v{t3}, 31, v{t3}')
    a(f'v_mul_u32_u24 v{t2}, 96, v{t1}')
    a(f'v_add_u32 v{t2}, v{t2}, v{t3}')
    a(f'v_lshlrev_b32 v{V_ZD}, 4, v{t2}')
    a(f'v_lshrrev_b32 v{t2}, 3, v{t0}')
    a(f'v_lshlrev_b32 v{t2}, 1, v{t2}')
    a(f'v_bfe_u32 v{t3}, v{t0}, 1, 1')
    a(f'v_or_b32 v{t2}, v{t2}, v{t3}')
    a(f'v_xor_b32 v{t2}, v{t2}, v{t1}')
    a(f'v_lshlrev_b32 v{t3}, 7, v{t0}')
    a(f'v_lshl_add_u32 v{t2}, v{t2}, 4, v{t3}')
    a(f'v_add_u32 v{V_A2R}, s{S_M_A}, v{t2}')
    for ks in range(1, 4):
        a(f'v_xor_b32 v{t3}, {32*ks}, v{t2}')
        a(f'v_add_u32 v{V_A2R+ks}, s{S_M_A}, v{t3}')
    V_ZR = V_BR
    a(f's_lshl_b32 s{S_T}, s{S_WJ}, 1')
    a(f'v_add_u32 v{t2}, s{S_T}, v{t1}')
    a(f'v_mul_u32_u24 v{t2}, {SLOT}, v{t2}')
    a(f'v_lshl_add_u32 v{t2}, v{t0}, 3, v{t2}')
    a(f's_lshl_b32 s{S_T}, s{S_WI}, 9')
    a(f's_add_u32 s{S_T}, s{S_T}, 16384')
    a(f'v_add_u32 v{V_ZR}, s{S_T}, v{t2}')
    a(f's_lshl_b32 s{S_T}, s{S_RB}, 7')
    a(f'v_lshlrev_b32 v{t2}, 1, v{t0}')
    a(f'v_add_u32 v{t2}, s{S_T}, v{t2}')
    BS2 = 252
    a(f'global_load_ushort v{BS2}, v{t2}, {sp(P_BSP)}')
    a(f'global_load_ushort v{BS2+2}, v{t2}, {sp(P_BSP)} offset:64')
    rot2(S_KZ)
    a(f's_add_u32 s{S_KZ}, s{S_KZ}, s{S_W}')
    a(f's_mul_i32 s{S_BBASE}, s{S_CB}, {32*12288}')
    a(f's_add_u32 s{S_BBASE}, s{S_BBASE}, {WS_Z}')
    a('s_waitcnt lgkmcnt(0)')
    a('s_barrier')
    need_bit(0)
    stamp(a, 8)
    vm.ops = []
    def zld(par):
        U = []
        for ks in range(4):
            for ph in range(3):
                L = []
                if ks == 0 and ph == 0:
                    L += [f's_and_b32 s{S_KZ}, s{S_KZ}, 31', f's_mul_i32 s{S_BO}, s{S_KZ}, 12288', f's_add_u32 s{S_BO}, s{S_BO}, s{S_BBASE}', f's_add_u32 s{S_KZ}, s{S_KZ}, 4']
                elif ph == 0:
                    L += [f's_add_u32 s{S_BO}, s{S_BO}, 3072']
                L += [f'buffer_load_dwordx4 {vr(ZR+48*par+12*ks+4*ph,4)}, v{V_ZD}, {srd(SRD_WS)}, s{S_BO} offen offset:{512*ph} sc1']
                U.append((L, ('Z', par, ks)))
        return U
    run_units(zld(0))
    for i in range(NG1, 6): z1_group(i)
    for i in range(6):
        a(f'ds_read_b64 {vr(Z1R+2*i,2)}, v{V_ZR} offset:{1024*(i>>1)+256*(i&1)}')
    if opt.get('cg', 0) == 1 or opt.get('kd') == 1:
        a(f's_cmp_lg_u32 s{S_W}, 3')
        a('s_cbranch_scc1 L_fs_skip')
        a(f's_lshl_b32 s{S_T}, s2, 2')
        a(f's_add_u32 s{S_T}, s{S_T}, {WS_FS}')
        flag_store(a, S_T, 18)
        a.lab('L_fs_skip')
    def ards(par, ks):
        f = AF + 8 * (ks & 1)
        for tp in range(2):
            a(f'ds_read_b128 {vr(f+4*tp,4)}, v{V_A2R+ks} offset:{8192*par+4096*tp}')
    def chunk(par, loads, wo=None, fill=()):
        U = []
        if loads == 'AZ': U = adma(1 - par) + zld(1 - par)
        if loads == 'Z': U = zld(1 - par)
        if wo: U = wo
        per = (len(U) + 3) // 4
        issued = 0
        for ks in range(4):
            n = 3 * (3 - ks) + issued
            a(f's_waitcnt vmcnt({n}) lgkmcnt(0)')
            if ks < 3:
                ards(par, ks + 1)
            mine = U[issued: issued + per]
            f = AF + 8 * (ks & 1)
            k = 0
            for tp in range(2):
                for ph in range(3):
                    c = vr(G2 + 16 * (2 * ph + tp), 16)
                    a(f'v_mfma_f32_32x32x16_bf16 {c}, {vr(ZR+48*par+12*ks+4*ph,4)}, {vr(f+4*tp,4)}, {0 if (loads == "Z" and ks == 0) else c}')
                    if k < len(mine):
                        run_units([mine[k]], False); k += 1
                    for l in fill[6 * (6 * ks + 3 * tp + ph): 6 * (6 * ks + 3 * tp + ph) + 6]: a(l)
            while k < len(mine):
                run_units([mine[k]], False); k += 1
            issued += len(mine)
            if ks == 3 and loads:
                a('s_waitcnt vmcnt(12)')
                ards(1 - par, 0)
    V_L16 = V_BD + 1
    a(f'v_lshlrev_b32 v{V_L16}, 4, v{V_L}')
    a(f's_mul_i32 s{S_WOB}, s{S_CB}, {24*5120}')
    a(f's_mul_i32 s{S_T}, s{S_W}, {6*5120}')
    a(f's_add_u32 s{S_WOB}, s{S_WOB}, s{S_T}')
    a(f's_add_u32 s{S_WOB}, s{S_WOB}, {WS_WO}')
    V_RW = V_BD + 2
    a(f'v_add_u32 v{V_RW}, s{S_M_A}, v{V_L16}')
    V_RR = 12
    for d in range(1, 4):
        a(f's_sub_u32 s{S_T}, s{S_W}, {d}')
        a(f's_and_b32 s{S_T}, s{S_T}, 3')
        a(f's_mul_i32 s{S_T}, s{S_T}, {SLOT}')
        a(f's_add_u32 s{S_T}, s{S_T}, {6144*(d-1)}')
        a(f'v_add_u32 v{V_RR+d-1}, s{S_T}, v{V_L16}')
    V_CT, V_ONE, V_IX = 136, 137, 138
    a(f'v_mov_b32 v{V_CT}, {CTR}')
    a(f'v_mov_b32 v{V_ONE}, 1')
    a(f'v_mov_b32 v{V_IX}, s{S_W}')
    a(f'v_add_u32 v{V_IX}, 4, v{V_IX}')
    def grab():
        if not opt.get('dyn'):
            a(f'v_add_u32 v{V_IX}, 4, v{V_IX}')
            return
        a(f's_mov_b64 {sp(S_TMP2)}, exec')
        a('s_mov_b64 exec, 1')
        a(f'ds_add_rtn_u32 v{V_IX}, v{V_CT}, v{V_ONE}')
        a(f's_mov_b64 exec, {sp(S_TMP2)}')
    def take(par):
        a('s_waitcnt lgkmcnt(0)')
        a(f'v_readfirstlane_b32 s{S_T}, v{V_IX}')
        a(f's_cmp_ge_u32 s{S_T}, 32')
        a(f's_cbranch_scc1 L_p2_tail{par}')
        a(f's_add_u32 s{S_KA}, s{S_T}, s{S_ROT}')
        a(f's_mov_b32 s{S_KZ}, s{S_KA}')
        a(f's_lshr_b32 s{S_T}, s{S_T}, 2')
        need_bit(f's{S_T}', fresh=True)
        flags_load()
        grab()
    stamp(a, 9)
    a('s_waitcnt lgkmcnt(0)')
    ards(0, 0)
    grab()
    GL = []
    for i in range(6): GL += gelu_packed([Z1R + 2 * i, Z1R + 2 * i + 1], K0V)
    assert len(GL) == 144
    need_bit(1)
    flags_load()
    if opt.get('nofill'):
        for l in GL: a(l)
        GL = ()
    chunk(0, 'Z', fill=GL)
    a.lab('L_p2_loop')
    take(1)
    chunk(1, 'AZ')
    take(0)
    chunk(0, 'AZ')
    a('s_branch L_p2_loop')
    WOS = [144, 164, 192, 212]
    def wold(kk):
        U = []
        for dl in range(5):
            L = [f's_add_u32 s{S_BO}, s{S_WOB}, {5120*kk+(4096 if dl == 4 else 0)}'] if dl in (0, 4) else []
            L += [f'buffer_load_dwordx4 {vr(WOS[kk&3]+4*dl,4)}, v{V_L16}, {srd(SRD_WS)}, s{S_BO} offen offset:{1024*(dl&3)} sc1']
            U.append((L, ('WO', kk)))
        return U
    for par in (1, 0):
        a.lab(f'L_p2_tail{par}')
        other = ZR + 48 * (1 - par)
        AFR = {0: 120, 1: 128, 2: other + 40, 3: 16}
        for ks in range(1, 4):
            for tp in range(2):
                a(f'ds_read_b128 {vr(AFR[ks]+4*tp,4)}, v{V_A2R+ks} offset:{8192*par+4096*tp}')
        a('s_waitcnt vmcnt(0) lgkmcnt(0)')
        if opt.get('no_side') != 1:
            need_bit(0x3f00, mask=True, fresh=True)
        early, late = ((0, 1), (2, 3)) if par == 1 else ((2, 3), (0, 1))
        WOU = wold(early[0]) + wold(early[1])
        k = 0
        def wr(i):
            for d in range(1, 4):
                a(f'ds_write_b128 v{V_RW}, {vr(G2+16*i+4*d,4)} offset:{6144*(d-1)+1024*i}')
        for i in range(6):
            ph, tp = i >> 1, i & 1
            c = vr(G2 + 16 * i, 16)
            for ks in range(4):
                a(f'v_mfma_f32_32x32x16_bf16 {c}, {vr(ZR+48*par+12*ks+4*ph,4)}, {vr(AFR[ks]+4*tp,4)}, {c}')
                if ks in (0, 2) and k < len(WOU):
                    run_units([WOU[k]], False); k += 1
                if ks == 2 and i > 0: wr(i - 1)
        wr(5)
        run_units(wold(late[0]) + wold(late[1]), False)
        if par == 1:
            a('s_branch L_red_done')
    a.lab('L_red_done')
    stamp(a, 10)
    vm.ops = []
    a('s_waitcnt lgkmcnt(0)')
    a('s_barrier')
    for i in range(6):
        for j in range(3):
            a(f'ds_read_b128 {vr(G2+16*i+4+4*j,4)}, v{V_RR+j} offset:{1024*i}')
    a(f'v_lshlrev_b32 v{BS2+1}, 16, v{BS2}')
    a(f'v_lshlrev_b32 v{BS2+3}, 16, v{BS2+2}')
    a(f'v_lshlrev_b32 v{BS2}, 16, v{BS2}')
    a(f'v_lshlrev_b32 v{BS2+2}, 16, v{BS2+2}')
    a(f's_mul_i32 s{S_ABASE}, s{S_RB}, 98304')
    a(f's_add_u32 s{S_ABASE}, s{S_ABASE}, {WS_P}')
    a(f's_mul_i32 s{S_T}, s{S_CB}, 12288')
    a(f's_add_u32 s{S_T}, s{S_T}, s{S_ABASE}')
    a(f's_lshl_b32 s{S_T2}, s{S_W}, 10')
    a(f's_add_u32 s{S_T}, s{S_T}, s{S_T2}')
    PQ = 120
    for ph in range(3):
        for tp in range(2):
            i = 2 * ph + tp
            a(f's_waitcnt lgkmcnt({min(15, 3*(5-i))})')
            T = [V_T, V_T + 4]
            def both(f):
                for hh in range(2): a(f(G2 + 16 * i + 2 * hh, T[hh], hh))
            both(lambda c, t, hh: f'v_pk_add_f32 {vr(c,2)}, {vr(c,2)}, {vr(c+4,2)}')
            both(lambda c, t, hh: f'v_pk_add_f32 {vr(c+8,2)}, {vr(c+8,2)}, {vr(c+12,2)}')
            both(lambda c, t, hh: f'v_pk_add_f32 {vr(c,2)}, {vr(c,2)}, {vr(c+8,2)}')
            both(lambda c, t, hh: f'v_cvt_pk_bf16_f32 v{t+2}, v{c}, v{c+1}')
            both(lambda c, t, hh: f'v_lshlrev_b32 v{t}, 16, v{t+2}')
            both(lambda c, t, hh: f'v_and_b32 v{t+1}, 0xffff0000, v{t+2}')
            both(lambda c, t, hh: f'v_pk_add_f32 {vr(t,2)}, {vr(t,2)}, {vr(BS2+2*tp,2)}')
            both(lambda c, t, hh: f'v_cvt_pk_bf16_f32 v{t+2}, v{t}, v{t+1}')
            both(lambda c, t, hh: f'v_lshlrev_b32 v{c}, 16, v{Z1R+2*i+hh}')
            both(lambda c, t, hh: f'v_and_b32 v{c+1}, 0xffff0000, v{Z1R+2*i+hh}')
            both(lambda c, t, hh: f'v_lshlrev_b32 v{t}, 16, v{t+2}')
            both(lambda c, t, hh: f'v_and_b32 v{t+1}, 0xffff0000, v{t+2}')
            both(lambda c, t, hh: f'v_pk_mul_f32 {vr(t,2)}, {vr(t,2)}, {vr(c,2)}')
            both(lambda c, t, hh: f'v_cvt_pk_bf16_f32 v{PQ+4*ph+2*tp+hh}, v{t}, v{t+1}')
        q = PQ + 4 * ph
        a(f'v_permlane32_swap_b32 v{q}, v{q+2}')
        a(f'v_permlane32_swap_b32 v{q+1}, v{q+3}')
        a(f'buffer_store_dwordx4 {vr(q,4)}, v{V_L16}, {srd(SRD_WS)}, s{S_T} offen sc1')
        if ph < 2: a(f's_add_u32 s{S_T}, s{S_T}, 4096')
    a('s_barrier')
    a(f's_mul_i32 s{S_M_B}, s{S_W}, 15360')
    for j in range(10):
        if j % 4 == 0:
            a(f's_add_u32 m0, s{S_M_B}, {1024*j}')
            a(f's_add_u32 s{S_BO}, s{S_WOB}, {4*5120+1024*j}')
        a(f'buffer_load_dwordx4 v{V_L16}, {srd(SRD_WS)}, s{S_BO} offen offset:{1024*(j%4)} sc1 lds')
    a.fence(2)
    lane_mq()
    V_PP = 7
    a(f'v_and_b32 v{V_PP}, 7, v{V_L}')
    a(f'v_lshlrev_b32 v{V_PP}, 2, v{V_PP}')
    a(f's_lshl_b32 s{S_T}, s{S_RB}, 7')
    a(f's_add_u32 s{S_T}, s{S_T}, {WS_FP}')
    a(f's_lshl_b32 s{S_T2}, s{S_W}, 5')
    a(f's_add_u32 s{S_T2}, s{S_T2}, s{S_T}')
    V_PL0, V_PL1 = 8, 9
    a(f's_lshl_b32 s{S_AO}, s{S_RB}, 5')
    a(f's_add_u32 s{S_AO}, s{S_AO}, {WS_FG}')
    a(f'v_add_u32 v{V_PL0}, s{S_AO}, v{V_PP}')
    a(f'v_add_u32 v{V_PP}, s{S_T2}, v{V_PP}')
    a(f's_lshl_b32 s{S_T2}, s{S_CB}, 4')
    a(f's_add_u32 s{S_T}, s{S_T}, s{S_T2}')
    a(f's_lshl_b32 s{S_T2}, s{S_W}, 2')
    a(f's_add_u32 s{S_T}, s{S_T}, s{S_T2}')
    a(f's_mul_i32 s{S_T2}, s{S_CB}, 320')
    a(f's_add_u32 s{S_T2}, s{S_T2}, {WS_FA}')
    a(f'v_lshlrev_b32 v{V_PL1}, 2, v{V_L}')
    a(f'v_add_u32 v{V_PL1}, s{S_T2}, v{V_PL1}')
    a(f'v_lshlrev_b32 v{t3}, 2, v{t0}')
    a(f'v_add_u32 v{t3}, s{S_T2}, v{t3}')
    a(f'v_add_u32 v{t3}, 256, v{t3}')
    a(f'v_bfe_u32 v{t2}, v{V_L}, 4, 1')
    a(f'v_cmp_eq_u32 vcc, 1, v{t2}')
    a(f'v_cndmask_b32 v{V_PL0}, v{V_PL0}, v{t3}, vcc')
    V_AW, V_O1, V_O2, V_ATR, V_AG, V_PF = 248, 10, 11, 12, 250, 2
    ATR, GT = [136, 140, 184], 188
    a(f's_lshl_b32 s{S_AO}, s{S_W}, 7')
    a(f'v_add_u32 v{t2}, s{S_AO}, v{V_L}')
    a(f's_lshl_b32 s{S_AO}, s{S_WJ}, 6')
    a(f's_add_u32 s{S_AO}, s{S_AO}, 512')
    a(f'v_add_u32 v{t3}, s{S_AO}, v{V_L}')
    ATL = 61440
    a(f'v_lshlrev_b32 v{V_AW}, 4, v{t2}')
    a(f'v_lshlrev_b32 v{V_AW+1}, 4, v{t3}')
    a(f'v_add_u32 v{V_AW}, {ATL}, v{V_AW}')
    a(f'v_add_u32 v{V_AW+1}, {ATL}, v{V_AW+1}')
    for k, tt in enumerate((t2, t3)):
        a(f'v_lshrrev_b32 v{V_AG+k}, 3, v{tt}')
        a(f'v_and_b32 v{tt}, 7, v{tt}')
        a(f'v_lshlrev_b32 v{V_AG+k}, 12, v{V_AG+k}')
        a(f'v_lshl_add_u32 v{V_AG+k}, v{tt}, 4, v{V_AG+k}')
    a(f's_lshl_b32 s{S_AO}, s{S_RB}, 6')
    a(f's_lshl_b32 s{S_BO}, s{S_W}, 4')
    a(f's_add_u32 s{S_AO}, s{S_AO}, s{S_BO}')
    a(f'v_add_u32 v{t2}, s{S_AO}, v{t0}')
    a(f'v_lshlrev_b32 v{V_AG+2}, 3, v{t2}')
    a(f'v_add_u32 v{V_AG+2}, {WS_G}, v{V_AG+2}')
    a(f'v_mul_u32_u24 v{t2}, 1280, v{t2}')
    a(f's_mul_i32 s{S_AO}, s{S_CB}, 160')
    a(f'v_add_u32 v{t2}, s{S_AO}, v{t2}')
    a(f'v_and_b32 v{t3}, 1, v{t1}')
    a(f'v_lshl_add_u32 v{V_O1}, v{t3}, 5, v{t2}')
    a(f'v_lshrrev_b32 v{t3}, 1, v{t1}')
    a(f'v_lshl_add_u32 v{V_O1}, v{t3}, 4, v{V_O1}')
    a(f'v_lshl_add_u32 v{V_O2}, v{t1}, 3, v{t2}')
    a(f'v_add_u32 v{V_O2}, 128, v{V_O2}')
    a(f'v_lshl_add_u32 v{t2}, v{t1}, 6, v{t0}')
    a(f'v_lshlrev_b32 v{t2}, 4, v{t2}')
    VPF = [2, 3, 4, 6]
    for tt in range(4):
        a(f's_add_u32 s{S_AO}, s{S_W}, {tt}')
        a(f's_and_b32 s{S_AO}, s{S_AO}, 3')
        a(f's_lshl_b32 s{S_AO}, s{S_AO}, 8')
        a(f'v_add_u32 v{VPF[tt]}, s{S_AO}, v{t2}')
    a(f's_mul_i32 s{S_AO}, s{S_W}, 24576')
    a(f's_add_u32 s{S_ABASE}, s{S_ABASE}, s{S_AO}')
    a(f'v_lshrrev_b32 v{t2}, 2, v{t0}')
    a(f'v_lshl_add_u32 v{t2}, v{t1}, 2, v{t2}')
    a(f'v_lshlrev_b32 v{t2}, 7, v{t2}')
    a(f'v_and_b32 v{t3}, 3, v{V_L}')
    a(f'v_lshl_add_u32 v{t2}, v{t3}, 3, v{t2}')
    a(f's_lshl_b32 s{S_AO}, s{S_W}, 5')
    a(f's_add_u32 s{S_AO}, s{S_AO}, {ATL}')
    a(f'v_add_u32 v{V_ATR}, s{S_AO}, v{t2}')
    O3 = 24
    a('s_waitcnt vmcnt(10)')
    flag_store(a, S_T, V_T)
    stamp(a, 11)
    if not opt.get('no_side'):
        a(f'buffer_load_dword v20, v{V_PL0}, {srd(SRD_WS)}, 0 offen sc1')
        a(f'buffer_load_dword v21, v{V_PL1}, {srd(SRD_WS)}, 0 offen sc1')
    a(f's_mov_b32 s{S_CNT}, {SPIN_MAX}')
    a(f'buffer_load_dword v16, v{V_PP}, {srd(SRD_WS)}, 0 offen sc1')
    a.lab('L_pp_spin')
    a(f'buffer_load_dword v17, v{V_PP}, {srd(SRD_WS)}, 0 offen sc1')
    a('s_waitcnt vmcnt(1)')
    a(f'v_cmp_ne_u32 vcc, s{S_TAG}, v16')
    a('s_cbranch_vccz L_pp_done')
    a(f'buffer_load_dword v16, v{V_PP}, {srd(SRD_WS)}, 0 offen sc1')
    a('s_waitcnt vmcnt(1)')
    a(f'v_cmp_ne_u32 vcc, s{S_TAG}, v17')
    a('s_cbranch_vccz L_pp_done')
    a(f's_sub_u32 s{S_CNT}, s{S_CNT}, 1')
    a(f's_cmp_lg_u32 s{S_CNT}, 0')
    a('s_cbranch_scc1 L_pp_spin')
    a.lab('L_pp_done')
    stamp(a, 12)
    vm.ops = []
    NPS = 3
    PFS = [104, 120, 232]
    V_AG2 = [V_AG, V_AG + 1, V_AG + 2]
    def pld(kk):
        U = []
        for tt in range(4):
            L = [f's_add_u32 s{S_AO}, s{S_ABASE}, {4096*kk}'] if tt == 0 else []
            L += [f'buffer_load_dwordx4 {vr(PFS[kk%NPS]+4*tt,4)}, v{VPF[tt]}, {srd(SRD_WS)}, s{S_AO} offen sc1']
            U.append((L, ('P', kk)))
        return U
    for kk in range(3): run_units(pld(kk))
    if not opt.get('no_side'):
        a(f'v_cmp_ne_u32 vcc, s{S_TAG}, v20')
        a(f'v_cmp_ne_u32 s[84:85], s{S_TAG}, v21')
        a('s_or_b64 vcc, vcc, s[84:85]')
        a('s_cbranch_vccnz L_pa_late')
    def at_loads():
        a(f's_mul_i32 s{S_T}, s{S_CB}, {80*4096}')
        a(f's_lshl_b32 s{S_T2}, s{S_RB}, 7')
        a(f's_add_u32 s{S_T}, s{S_T}, s{S_T2}')
        a(f's_add_u32 s{S_T}, s{S_T}, {WS_AT}')
        a(f's_add_u32 s{S_T2}, s{S_T}, {8*4096}')
        a(f'buffer_load_dwordx4 {vr(ATR[0],4)}, v{V_AG2[0]}, {srd(SRD_WS)}, s{S_T} offen sc1')
        a(f'buffer_load_dwordx4 {vr(ATR[1],4)}, v{V_AG2[0]}, {srd(SRD_WS)}, s{S_T2} offen sc1')
        a(f'buffer_load_dwordx4 {vr(ATR[2],4)}, v{V_AG2[1]}, {srd(SRD_WS)}, s{S_T} offen sc1')
        a(f'buffer_load_dwordx2 {vr(GT,2)}, v{V_AG2[2]}, {srd(SRD_WS)}, 0 offen sc1')
    at_loads()
    vm.issue('at', 4)
    a(f's_mov_b32 s{S_KZ}, 0')
    if not opt.get('no_side'):
        a('s_branch L_pa_go')
        a.lab('L_pa_late')
        for k in range(4):
            a(f'buffer_load_dword v22, off, {srd(SRD_WS)}, 0')
        a(f's_mov_b32 s{S_KZ}, 1')
        a.lab('L_pa_go')
    stamp(a, 13)
    V_W3, V_R3 = 13, 14
    VR3 = [14, 15, 0]
    a(f's_mul_i32 s{S_T}, s{S_W}, 15360')
    a(f'v_add_u32 v{V_W3}, s{S_T}, v{V_L16}')
    for d in range(1, 4):
        a(f's_sub_u32 s{S_T}, s{S_W}, {d}')
        a(f's_and_b32 s{S_T}, s{S_T}, 3')
        a(f's_mul_i32 s{S_T}, s{S_T}, 15360')
        a(f's_add_u32 s{S_T}, s{S_T}, {5120*(d-1)}')
        a(f'v_add_u32 v{VR3[d-1]}, s{S_T}, v{V_L16}')
    def wr3(tt):
        for dl in range(5):
            a(f'ds_write_b128 v{V_W3}, {vr(O3+4*(5*tt+dl),4)} offset:{5120*(tt-1)+1024*dl}')
    for kk in range(6):
        need = vm.n_after(('P', kk))
        a(f's_waitcnt vmcnt({need})' + (' lgkmcnt(5)' if kk == 4 else ' lgkmcnt(0)' if kk == 5 else ''))
        for tt in ((0, 1, 2, 3) if kk < 5 else (1, 2, 3, 0)):
            for dl in range(5):
                c = vr(O3 + 4 * (5 * tt + dl), 4)
                a(f'v_mfma_f32_16x16x32_bf16 {c}, {vr(WOS[kk&3]+4*dl,4)}, {vr(PFS[kk%NPS]+4*tt,4)}, {c if kk else 0}')
            if kk == 5 and tt != 1: wr3((tt - 1) & 3)
        if kk + 3 < 6: run_units(pld(kk + 3))
        if kk + 4 < 6:
            for dl in range(5):
                a(f'ds_read_b128 {vr(WOS[kk&3]+4*dl,4)}, v{V_W3} offset:{5120*kk+1024*dl}')
    stamp(a, 14)
    if not opt.get('no_side'):
        a(f's_cmp_eq_u32 s{S_KZ}, 0')
        a('s_cbranch_scc1 L_pa_ok')
        poll(a, 'L_pa', [(V_PL0, '0'), (V_PL1, '0')], 20, S_CNT)
        at_loads()
        a.lab('L_pa_ok')
    a('s_waitcnt vmcnt(0)')
    a(f'v_mov_b32 v{GT+2}, v{GT+1}')
    a(f'v_mov_b32 v{GT+3}, v{GT+1}')
    a(f'v_mov_b32 v{GT+1}, v{GT}')
    a(f'ds_write_b128 v{V_AW}, {vr(ATR[0],4)}')
    a(f'ds_write_b128 v{V_AW}, {vr(ATR[1],4)} offset:1024')
    a(f'ds_write_b128 v{V_AW+1}, {vr(ATR[2],4)}')
    a('s_waitcnt lgkmcnt(0)')
    a('s_barrier')
    AV = 104
    for dl in range(5):
        for j in range(3):
            a(f'ds_read_b128 {vr(O3+4*(5*(j+1)+dl),4)}, v{VR3[j]} offset:{1024*dl}')
        a(f'ds_read_b64_tr_b16 {vr(AV+2*dl,2)}, v{V_ATR} offset:{2048*dl}')
    RQ = 116
    for dl in range(5):
        a(f's_waitcnt lgkmcnt({min(15, 4*(4-dl))})')
        T = [V_T, V_T + 4]
        def both(f):
            for hh in range(2): a(f(O3 + 4 * dl + 2 * hh, T[hh], AV + 2 * dl + hh, hh))
        both(lambda c, t, av, hh: f'v_pk_add_f32 {vr(c,2)}, {vr(c,2)}, {vr(c+20,2)}')
        both(lambda c, t, av, hh: f'v_pk_add_f32 {vr(c+40,2)}, {vr(c+40,2)}, {vr(c+60,2)}')
        both(lambda c, t, av, hh: f'v_pk_add_f32 {vr(c,2)}, {vr(c,2)}, {vr(c+40,2)}')
        both(lambda c, t, av, hh: f'v_cvt_pk_bf16_f32 v{t+2}, v{c}, v{c+1}')
        both(lambda c, t, av, hh: f'v_lshlrev_b32 v{t}, 16, v{av}')
        both(lambda c, t, av, hh: f'v_and_b32 v{t+1}, 0xffff0000, v{av}')
        both(lambda c, t, av, hh: f'v_lshlrev_b32 v{c}, 16, v{t+2}')
        both(lambda c, t, av, hh: f'v_and_b32 v{c+1}, 0xffff0000, v{t+2}')
        both(lambda c, t, av, hh: f'v_pk_mul_f32 {vr(t,2)}, {vr(t,2)}, {vr(GT,2)}')
        both(lambda c, t, av, hh: f'v_pk_mul_f32 {vr(c,2)}, {vr(c,2)}, {vr(GT+2,2)}')
        both(lambda c, t, av, hh: f'v_cvt_pk_bf16_f32 v{t+2}, v{t}, v{t+1}')
        both(lambda c, t, av, hh: f'v_cvt_pk_bf16_f32 v{t+3}, v{c}, v{c+1}')
        both(lambda c, t, av, hh: f'v_lshlrev_b32 v{t}, 16, v{t+2}')
        both(lambda c, t, av, hh: f'v_and_b32 v{t+1}, 0xffff0000, v{t+2}')
        both(lambda c, t, av, hh: f'v_lshlrev_b32 v{c}, 16, v{t+3}')
        both(lambda c, t, av, hh: f'v_and_b32 v{c+1}, 0xffff0000, v{t+3}')
        both(lambda c, t, av, hh: f'v_pk_add_f32 {vr(t,2)}, {vr(t,2)}, {vr(c,2)}')
        both(lambda c, t, av, hh: f'v_cvt_pk_bf16_f32 v{RQ+2*dl+hh}, v{t}, v{t+1}')
        if dl in (1, 3):
            q = RQ + 2 * (dl - 1)
            a(f'v_permlane16_swap_b32 v{q}, v{q+2}')
            a(f'v_permlane16_swap_b32 v{q+1}, v{q+3}')
            a(f'buffer_store_dwordx4 {vr(q,4)}, v{V_O1}, {srd(SRD_OUT)}, 0 offen offset:{32*(dl-1)} {OC}')
        if dl == 4:
            a(f'buffer_store_dwordx2 {vr(RQ+8,2)}, v{V_O2}, {srd(SRD_OUT)}, 0 offen {OC}')
    if _g.PROF['on']:
        a('s_waitcnt vmcnt(0)')
    stamp(a, 15)
    stamp_dump(a, 16)
    a('s_endpgm')

def poll1(a, name, vaddrs, vtmp, scount):
    a(f's_cmp_lg_u32 s{S_W}, 0')
    a(f's_cbranch_scc1 {name}_out')
    va = vaddrs[0]
    a(f's_mov_b32 s{scount}, {SPIN_MAX}')
    a(f'buffer_load_dword v{vtmp}, v{va}, {srd(SRD_WS)}, 0 offen sc1')
    a.lab(f'{name}_spin')
    a(f'buffer_load_dword v{vtmp+1}, v{va}, {srd(SRD_WS)}, 0 offen sc1')
    a('s_waitcnt vmcnt(1)')
    a(f'v_cmp_ne_u32 vcc, s{S_TAG}, v{vtmp}')
    a(f's_cbranch_vccz {name}_done')
    a(f'buffer_load_dword v{vtmp}, v{va}, {srd(SRD_WS)}, 0 offen sc1')
    a('s_waitcnt vmcnt(1)')
    a(f'v_cmp_ne_u32 vcc, s{S_TAG}, v{vtmp+1}')
    a(f's_cbranch_vccz {name}_done')
    a(f's_sub_u32 s{scount}, s{scount}, 1')
    a(f's_cmp_lg_u32 s{scount}, 0')
    a(f's_cbranch_scc1 {name}_spin')
    a.lab(f'{name}_done')
    a.lab(f'{name}_out')
    a('s_barrier')

def e1_z2(a, opt, vm, k0):
    SS, QQ = ACC1, ACC1 + 8
    K0 = ACC1 + 16
    pf = opt.get('gpf', 0)
    if pf:
        a(f's_lshl_b32 s{S_T}, s{S_RB}, 18')
        a(f's_and_b32 s{S_T2}, s{S_CB}, 3')
        a(f's_lshl_b32 s{S_T2}, s{S_T2}, 16')
        a(f's_add_u32 s{S_T}, s{S_T}, s{S_T2}')
        a(f's_lshl_b32 s{S_T2}, s{S_W}, 14')
        a(f's_add_u32 s{S_T}, s{S_T}, s{S_T2}')
        a(f'v_lshlrev_b32 v{t0}, {7 if pf == 128 else 6}, v{V_L}')
        for i in range(16384 // (64 * pf)):
            a(f'buffer_load_dword v{ACC1+20+i}, v{t0}, {srd(SRD_WSP)}, s{S_T} offen')
            a(f's_add_u32 s{S_T}, s{S_T}, {64*pf}')
            vm.issue('pf', 1)
    a(f'v_mov_b32 v{K0}, {hx(k0)}')
    a(f'v_mov_b32 v{K0+1}, {hx(k0)}')
    first = {}
    for phi in range(3):
        for tau in range(2):
            cs = [ACC2 + 4 * (3 * tau + phi) + 2 * hh for hh in range(2)]
            def after(c, t):
                r = 4 * tau + (c - cs[0])
                L = [f'v_cvt_pk_bf16_f32 v{c}, v{t+2}, v{t+3}']
                if phi == 0:
                    L += [f'v_lshlrev_b32 v{SS+r}, 16, v{c}', f'v_and_b32 v{SS+r+1}, 0xffff0000, v{c}',
                          f'v_pk_mul_f32 {vr(QQ+r,2)}, {vr(SS+r,2)}, {vr(SS+r,2)}']
                else:
                    L += [f'v_lshlrev_b32 v{t}, 16, v{c}', f'v_and_b32 v{t+1}, 0xffff0000, v{c}',
                          f'v_pk_add_f32 {vr(SS+r,2)}, {vr(SS+r,2)}, {vr(t,2)}', f'v_pk_fma_f32 {vr(QQ+r,2)}, {vr(t,2)}, {vr(t,2)}, {vr(QQ+r,2)}']
                return L
            gelu2(a, cs, K0, after)
    for j in range(8):
        a(f'v_add_f32_dpp v{SS+j}, v{SS+j}, v{SS+j} row_ror:8 row_mask:0xf bank_mask:0x3')
    for j in range(8):
        a(f'v_add_f32_dpp v{SS+j}, v{QQ+j}, v{QQ+j} row_ror:8 row_mask:0xf bank_mask:0xc')
    for j in range(4):
        a(f'v_add_f32_dpp v{SS+j}, v{SS+j}, v{SS+j} row_half_mirror row_mask:0xf bank_mask:0x5')
    for j in range(4):
        a(f'v_add_f32_dpp v{SS+j}, v{SS+j+4}, v{SS+j+4} row_half_mirror row_mask:0xf bank_mask:0xa')
    a(f'v_and_b32 v{t0}, 15, v{V_L}')
    a(f'v_lshrrev_b32 v{t1}, 4, v{V_L}')
    a(f'v_and_b32 v{t2}, 3, v{V_L}')
    for qp in ('[3,2,1,0]', '[1,0,3,2]'):
        for j in range(4):
            a(f'v_add_f32_dpp v{SS+j}, v{SS+j}, v{SS+j} quad_perm:{qp} row_mask:0xf bank_mask:0xf')
    GQ = V_T + 4
    a(f'v_cmp_eq_u32 vcc, 1, v{t2}')
    a(f'v_cmp_eq_u32 s[84:85], 2, v{t2}')
    a(f'v_cmp_eq_u32 {sp(S_TMP2)}, 3, v{t2}')
    a(f'v_lshl_add_u32 v{t2}, v{t0}, 2, v{t1}')
    a(f'v_cndmask_b32 v{GQ}, v{SS}, v{SS+1}, vcc')
    a(f'v_cndmask_b32 v{GQ}, v{GQ}, v{SS+2}, s[84:85]')
    a(f'v_cndmask_b32 v{GQ}, v{GQ}, v{SS+3}, {sp(S_TMP2)}')
    a(f'v_mov_b32 v{GQ+2}, s{S_TAG}')
    a(f'v_mov_b32 v{GQ+3}, s{S_TAG}')
    a(f'v_mov_b32_dpp v{GQ+1}, v{GQ} row_ror:8 row_mask:0xf bank_mask:0xf')
    a(f's_lshl_b32 s{S_T}, s{S_WI}, 5')
    a(f'v_add_u32 v{t2}, s{S_T}, v{t2}')
    a(f'v_lshlrev_b32 v{t2}, 8, v{t2}')
    a(f's_lshl_b32 s{S_T}, s{S_RB}, 14')
    a(f's_lshl_b32 s{S_T2}, s{S_CB}, 5')
    a(f's_add_u32 s{S_T}, s{S_T}, s{S_T2}')
    a(f's_lshl_b32 s{S_T2}, s{S_WJ}, 4')
    a(f's_add_u32 s{S_T}, s{S_T}, s{S_T2}')
    a(f's_add_u32 s{S_T}, s{S_T}, {WS_ST}')
    a(f'v_cmp_gt_u32 vcc, 8, v{t0}')
    a(f's_and_saveexec_b64 {sp(S_TMP2)}, vcc')
    a(f'buffer_store_dwordx4 {vr(GQ,4)}, v{t2}, {srd(SRD_WS)}, s{S_T} offen sc1')
    a(f's_mov_b64 exec, {sp(S_TMP2)}')
    vm.issue('st', 1)
    if pf:
        a(f's_waitcnt vmcnt({vm.n_after("pf")})')

V_SA = 13
def e2_loads(a, vm):
    a(f'v_lshlrev_b32 v{V_SA}, 4, v{V_L}')
    a(f's_lshl_b32 s{S_T}, s{S_RB}, 14')
    a(f's_lshl_b32 s{S_T2}, s{S_WI}, 13')
    a(f's_add_u32 s{S_T}, s{S_T}, s{S_T2}')
    a(f's_add_u32 s{S_T}, s{S_T}, {WS_ST}')
    a(f'v_add_u32 v{V_SA}, s{S_T}, v{V_SA}')
    st_loads(a)
    vm.issue('stl', 8)

def st_loads(a):
    a(f's_movk_i32 s{S_T2}, 4096')
    for k in range(8):
        a(f'buffer_load_dwordx4 {vr(ST+4*k,4)}, v{V_SA}, {srd(SRD_WS)}, {"0" if k < 4 else "s%d" % S_T2} offen offset:{1024*(k&3)} sc1')

def e2_layernorm(a, opt, vm):
    a('; ---- LayerNorm hand-off')
    a(f's_mov_b32 s{S_CNT}, {SPIN_MAX}')
    a(f's_waitcnt vmcnt({vm.n_after("stl")})')
    a.lab('L_ln_check')
    a(f'v_and_b32 v{t0}, v{ST+2}, v{ST+3}')
    a(f'v_or_b32 v{t1}, v{ST+2}, v{ST+3}')
    for k in range(1, 8):
        a(f'v_and_b32 v{t0}, v{t0}, v{ST+4*k+2}')
        a(f'v_or3_b32 v{t1}, v{t1}, v{ST+4*k+2}, v{ST+4*k+3}')
        a(f'v_and_b32 v{t0}, v{t0}, v{ST+4*k+3}')
    a(f'v_cmp_ne_u32 vcc, s{S_TAG}, v{t0}')
    a(f'v_cmp_ne_u32 s[84:85], s{S_TAG}, v{t1}')
    a('s_or_b64 vcc, vcc, s[84:85]')
    a('s_cbranch_vccz L_ln_done')
    st_loads(a)
    a('s_waitcnt vmcnt(0)')
    a(f's_sub_u32 s{S_CNT}, s{S_CNT}, 1')
    a(f's_cmp_lg_u32 s{S_CNT}, 0')
    a('s_cbranch_scc1 L_ln_check')
    a.lab('L_ln_done')
    S_ = lambda k: ST + 4 * k
    Q_ = lambda k: ST + 4 * k + 1
    for k in range(8):
        a(f'v_add_f32_dpp v{S_(k)}, v{S_(k)}, v{S_(k)} row_ror:8 row_mask:0xf bank_mask:0x3')
    for k in range(8):
        a(f'v_add_f32_dpp v{S_(k)}, v{Q_(k)}, v{Q_(k)} row_ror:8 row_mask:0xf bank_mask:0xc')
    for k in range(4):
        a(f'v_add_f32_dpp v{S_(k)}, v{S_(k)}, v{S_(k)} row_half_mirror row_mask:0xf bank_mask:0x5')
    for k in range(4):
        a(f'v_add_f32_dpp v{S_(k)}, v{S_(k+4)}, v{S_(k+4)} row_half_mirror row_mask:0xf bank_mask:0xa')
    a(f'v_and_b32 v{t0}, 15, v{V_L}')
    a(f'v_lshrrev_b32 v{t1}, 4, v{V_L}')
    a(f'v_and_b32 v{t2}, 3, v{V_L}')
    for qp in ('[3,2,1,0]', '[1,0,3,2]'):
        for k in range(4):
            a(f'v_add_f32_dpp v{S_(k)}, v{S_(k)}, v{S_(k)} quad_perm:{qp} row_mask:0xf bank_mask:0xf')
    a(f'v_cmp_eq_u32 vcc, 1, v{t2}')
    a(f'v_cmp_eq_u32 s[84:85], 2, v{t2}')
    a(f'v_cmp_eq_u32 {sp(S_TMP2)}, 3, v{t2}')
    a(f'v_mul_u32_u24 v{t1}, 96, v{t1}')
    a(f'v_cndmask_b32 v{ST}, v{ST}, v{S_(1)}, vcc')
    a(f'v_cndmask_b32 v{ST}, v{ST}, v{S_(2)}, s[84:85]')
    a(f'v_cndmask_b32 v{ST}, v{ST}, v{S_(3)}, {sp(S_TMP2)}')
    a(f'v_mov_b32_dpp v{ST+1}, v{ST} row_ror:8 row_mask:0xf bank_mask:0xf')
    a(f'v_mul_f32 v{ST}, {hx(1/768)}, v{ST}')
    a(f'v_mul_f32 v{ST+1}, {hx(1/768)}, v{ST+1}')
    a(f'v_fma_f32 v{ST+1}, -v{ST}, v{ST}, v{ST+1}')
    a(f'v_max_f32 v{ST+1}, 0, v{ST+1}')
    a(f'v_cvt_pk_bf16_f32 v{ST+2}, v{ST}, v{ST+1}')
    a(f'v_lshlrev_b32 v{ST}, 16, v{ST+2}')
    a(f'v_and_b32 v{ST+1}, 0xffff0000, v{ST+2}')
    a(f'v_add_f32 v{ST+1}, {hx(1e-5)}, v{ST+1}')
    a(f'v_add_u32 v{t0}, v{t0}, v{t1}')
    a(f'v_cvt_pk_bf16_f32 v{ST+1}, v{ST+1}, v{ST+1}')
    a(f'v_and_b32 v{ST+1}, 0xffff0000, v{ST+1}')
    a(f'v_sqrt_f32 v{ST+1}, v{ST+1}')
    for j in range(8):
        a(f'v_mov_b32_dpp v{MM+j}, v{ST} row_newbcast:{j} row_mask:0xf bank_mask:0xf')
    a(f'v_cvt_pk_bf16_f32 v{ST+1}, v{ST+1}, v{ST+1}')
    a(f'v_and_b32 v{ST+1}, 0xffff0000, v{ST+1}')
    a(f'v_rcp_f32 v{ST+1}, v{ST+1}')
    a(f's_mul_i32 s{S_T}, s{S_WI}, 384')
    a(f's_mul_i32 s{S_T2}, s{S_WJ}, 48')
    a(f's_add_u32 s{S_T}, s{S_T}, s{S_T2}')
    a(f'v_add_u32 v{t0}, s{S_T}, v{t0}')
    a(f'v_lshlrev_b32 v{V_US}, 4, v{t0}')
    for j in range(8):
        a(f'v_mov_b32_dpp v{RR+j}, v{ST+1} row_newbcast:{j} row_mask:0xf bank_mask:0xf')
    a(f's_lshl_b32 s{S_T}, s{S_CB}, 5')
    a(f's_add_u32 s{S_T}, s{S_T}, s{S_RB}')
    a(f's_lshl_b32 s{S_FZA}, s{S_T}, 2')
    a(f's_add_u32 s{S_FZA}, s{S_FZA}, {WS_FZ}')
    a(f's_mul_i32 s{S_T}, s{S_T}, 12288')
    a(f's_add_u32 s{S_T}, s{S_T}, {WS_Z}')
    for phi in range(3):
        for tau in range(2):
            T = [V_T, V_T + 4]
            def both(f):
                for hh in range(2): a(f(ACC2 + 4 * (3 * tau + phi) + 2 * hh, T[hh], 4 * tau + 2 * hh, hh))
            both(lambda c, t, r, hh: f'v_lshlrev_b32 v{t}, 16, v{c}')
            both(lambda c, t, r, hh: f'v_and_b32 v{t+1}, 0xffff0000, v{c}')
            both(lambda c, t, r, hh: f'v_pk_add_f32 {vr(t,2)}, {vr(t,2)}, {vr(MM+r,2)} neg_lo:[0,1] neg_hi:[0,1]')
            both(lambda c, t, r, hh: f'v_cvt_pk_bf16_f32 v{t+2}, v{t}, v{t+1}')
            both(lambda c, t, r, hh: f'v_lshlrev_b32 v{t}, 16, v{t+2}')
            both(lambda c, t, r, hh: f'v_and_b32 v{t+1}, 0xffff0000, v{t+2}')
            both(lambda c, t, r, hh: f'v_pk_mul_f32 {vr(t,2)}, {vr(t,2)}, {vr(RR+r,2)}')
            both(lambda c, t, r, hh: f'v_cvt_pk_bf16_f32 v{ZQ+4*phi+2*tau+hh}, v{t}, v{t+1}')
        a(f'buffer_store_dwordx4 {vr(ZQ+4*phi,4)}, v{V_US}, {srd(SRD_WS)}, s{S_T} offen offset:{256*phi} sc1')
    vm.issue('z', 3)
```

```python
import numpy as np
from gen import *
import gen as _g
_stamp0 = stamp
PST = {'start': None}
def stamp(a, i, base=18):
    if PST['start'] is not None and i not in (0, 15): return
    if PST.get('clk') and _g.PROF['on']:
        m = {1: 3, 2: 4, 9: 5, 10: 6, 0: 7, 15: 8}
        if i in (3, 4, 5, 6, 7, 8): return
        if i in m:
            a('s_memtime s[14:15]')
            a('s_waitcnt lgkmcnt(0)')
            a(f's_mov_b32 s{base+m[i]}, s14')
    _stamp0(a, i, base)
def sstamp(a, stage):
    if PST['start'] is None: return
    k = stage - PST['start']
    if 0 <= k < 14: _stamp0(a, 1 + k)

SLOT = 20480
BOFF = 8192
S_RB, S_CB, S_WI, S_WJ = 82, 83, 86, 87
S_KC, S_AO, S_BO, S_T, S_T2, S_CNT = 88, 89, 90, 91, 92, 93
S_ABASE, S_BBASE = 94, 95
S_M_A, S_M_B, S_M_C = 3, 4, 5
S_K1 = 6
S_ONE = 8
S_KC0 = 10
S_FZA = 11
S_TMP2 = 12
S_WOB = 76
S_ROT = 78
CTR = 19456
V_L = 1
V_AD = 2
V_BD = 4
V_AR = 7
V_BR = 11
V_UR, V_US = 13, 14
V_T = 16
ACC2, ACC1, WF, XF = 24, 48, 72, 96
t0, t1, t2, t3 = V_T, V_T + 1, V_T + 2, V_T + 3
ST, MM, RR, ZQ, BSP, K0V = 96, 112, 120, 128, 140, 142
LN = 3 * SLOT

class VM:
    def __init__(self): self.ops = []
    def issue(self, tag, n=1): self.ops += [tag] * n
    def n_after(self, tag):
        idx = max(i for i, t in enumerate(self.ops) if t == tag)
        return len(self.ops) - 1 - idx

def gelu2(a, cs, k0v, after):
    T = [V_T, V_T + 4]
    def both(f):
        for c, t in zip(cs, T): a(f(c, t))
    both(lambda c, t: f'v_cvt_pk_bf16_f32 v{t+2}, v{c}, v{c+1}')
    both(lambda c, t: f'v_lshlrev_b32 v{t}, 16, v{t+2}')
    both(lambda c, t: f'v_and_b32 v{t+1}, 0xffff0000, v{t+2}')
    both(lambda c, t: f'v_pk_mul_f32 {vr(t+2,2)}, {vr(t,2)}, {vr(t,2)}')
    both(lambda c, t: f'v_pk_fma_f32 {vr(t+2,2)}, {vr(t+2,2)}, {sp(S_K1)}, {vr(k0v,2)}')
    both(lambda c, t: f'v_pk_mul_f32 {vr(t+2,2)}, {vr(t+2,2)}, {vr(t,2)}')
    both(lambda c, t: f'v_exp_f32 v{t+2}, v{t+2}')
    both(lambda c, t: f'v_exp_f32 v{t+3}, v{t+3}')
    both(lambda c, t: f'v_pk_add_f32 {vr(t+2,2)}, {vr(t+2,2)}, {sp(S_ONE)}')
    both(lambda c, t: f'v_rcp_f32 v{t+2}, v{t+2}')
    both(lambda c, t: f'v_rcp_f32 v{t+3}, v{t+3}')
    both(lambda c, t: f'v_pk_mul_f32 {vr(t+2,2)}, {vr(t+2,2)}, {vr(t,2)}')
    steps = [after(c, t) for c, t in zip(cs, T)]
    for x, y in zip(*steps):
        a(x); a(y)

def gelu_packed(regs, k0v):
    T = [V_T, V_T + 4]
    L = []
    def both(f):
        for c, t in zip(regs, T): L.append(f(c, t))
    both(lambda c, t: f'v_lshlrev_b32 v{t}, 16, v{c}')
    both(lambda c, t: f'v_and_b32 v{t+1}, 0xffff0000, v{c}')
    both(lambda c, t: f'v_pk_mul_f32 {vr(t+2,2)}, {vr(t,2)}, {vr(t,2)}')
    both(lambda c, t: f'v_pk_fma_f32 {vr(t+2,2)}, {vr(t+2,2)}, {sp(S_K1)}, {vr(k0v,2)}')
    both(lambda c, t: f'v_pk_mul_f32 {vr(t+2,2)}, {vr(t+2,2)}, {vr(t,2)}')
    both(lambda c, t: f'v_exp_f32 v{t+2}, v{t+2}')
    both(lambda c, t: f'v_exp_f32 v{t+3}, v{t+3}')
    both(lambda c, t: f'v_pk_add_f32 {vr(t+2,2)}, {vr(t+2,2)}, {sp(S_ONE)}')
    both(lambda c, t: f'v_rcp_f32 v{t+2}, v{t+2}')
    both(lambda c, t: f'v_rcp_f32 v{t+3}, v{t+3}')
    both(lambda c, t: f'v_pk_mul_f32 {vr(t+2,2)}, {vr(t+2,2)}, {vr(t,2)}')
    both(lambda c, t: f'v_cvt_pk_bf16_f32 v{c}, v{t+2}, v{t+3}')
    return L

def flag_store(a, sreg, vtmp):
    a(f'v_mov_b32 v{vtmp}, s{S_TAG}')
    a(f's_mov_b64 {sp(S_TMP2)}, exec')
    a('s_mov_b64 exec, 1')
    a(f'buffer_store_dword v{vtmp}, off, {srd(SRD_WS)}, s{sreg} sc1')
    a(f's_mov_b64 exec, {sp(S_TMP2)}')

def gemm_role(a, opt):
    vm = VM()
    PST['start'] = opt.get('pst')
    PST['clk'] = opt.get('clk')
    stop = opt.get('stop', 99)
    OC = {0: '', 1: 'sc1', 2: 'nt', 3: 'sc0 sc1'}[opt.get('oc', 0)]
    LNS = opt.get('lns', 16)
    LDS_ = opt.get('lds', 15)
    FZS = opt.get('fzs', 1)
    assert LNS + FZS <= 19 and 13 <= LDS_ < LNS
    c0 = np.sqrt(2 / np.pi)
    k0 = -2 * c0 * LOG2E; k1 = k0 * 0.044715
    a(f's_setprio {opt.get("prio", 2)}')
    stamp(a, 0)
    if opt.get('tk', 0):
        CT = 20480 - 64
        a(f's_cmp_lg_u32 s{S_W}, 0')
        a('s_cbranch_scc1 L_tk_wait')
        mk_srd(a, SRD_X, P_DBG, 256)
        a(f's_getreg_b32 s{S_T}, hwreg(HW_REG_XCC_ID, 0, 3)')
        a(f's_mov_b64 {sp(S_TMP2)}, exec')
        a('s_mov_b64 exec, 1')
        a(f's_mov_b32 s{S_KC}, 8')
        a.lab('L_tk_try')
        a('v_mov_b32 v2, 1')
        a(f's_lshl_b32 s{S_CNT}, s{S_T}, 5')
        a(f'buffer_atomic_add v2, off, {srd(SRD_X)}, s{S_CNT} sc0 sc1')
        a('s_waitcnt vmcnt(0)')
        a(f'v_readfirstlane_b32 s{S_T2}, v2')
        a(f's_cmp_lt_u32 s{S_T2}, 32')
        a('s_cbranch_scc1 L_tk_got')
        a(f's_add_u32 s{S_T}, s{S_T}, 1')
        a(f's_and_b32 s{S_T}, s{S_T}, 7')
        a(f's_sub_u32 s{S_KC}, s{S_KC}, 1')
        a(f's_cmp_lg_u32 s{S_KC}, 0')
        a('s_cbranch_scc1 L_tk_try')
        a.lab('L_tk_got')
        a(f's_lshl_b32 s{S_T2}, s{S_T2}, 3')
        a(f's_or_b32 s{S_T2}, s{S_T2}, s{S_T}')
        a(f'v_mov_b32 v2, s{S_T2}')
        a(f'v_mov_b32 v3, {CT}')
        a('ds_write_b32 v3, v2')
        a('s_waitcnt lgkmcnt(0)')
        a(f's_mov_b64 exec, {sp(S_TMP2)}')
        a.lab('L_tk_wait')
        a('s_barrier')
        a(f'v_mov_b32 v3, {CT}')
        a('ds_read_b32 v2, v3')
        a('s_waitcnt lgkmcnt(0)')
        a(f'v_readfirstlane_b32 s{S_CNT}, v2')
        a('s_barrier')
        a(f's_and_b32 s{S_T}, s{S_CNT}, 7')
        a(f's_lshr_b32 s{S_T2}, s{S_CNT}, 3')
        a(f's_and_b32 s{S_T2}, s{S_T2}, 31')
    else:
        a(f's_and_b32 s{S_T}, s2, 7')
        a(f's_lshr_b32 s{S_T2}, s2, 3')
    a(f's_lshr_b32 s{S_RB}, s{S_T}, 1')
    a(f's_lshl_b32 s{S_RB}, s{S_RB}, 3')
    a(f's_lshr_b32 s{S_CNT}, s{S_T2}, 2')
    a(f's_add_u32 s{S_RB}, s{S_RB}, s{S_CNT}')
    a(f's_and_b32 s{S_CB}, s{S_T}, 1')
    a(f's_lshl_b32 s{S_CB}, s{S_CB}, 2')
    a(f's_and_b32 s{S_CNT}, s{S_T2}, 3')
    a(f's_add_u32 s{S_CB}, s{S_CB}, s{S_CNT}')
    a(f's_lshr_b32 s{S_WI}, s{S_W}, 1')
    a(f's_and_b32 s{S_WJ}, s{S_W}, 1')
    mk_srd(a, SRD_X, P_U, 2048 * 640 * 2)
    mk_srd(a, SRD_WIN, P_WIN, 640 * 1536 * 2)
    a(f's_mul_i32 s{S_KC}, s{S_CB}, 3')
    a(f's_add_u32 s{S_KC}, s{S_KC}, s{S_RB}')
    a(f's_mul_i32 s{S_T}, s{S_KC}, 205')
    a(f's_lshr_b32 s{S_T}, s{S_T}, 11')
    a(f's_mul_i32 s{S_T}, s{S_T}, 10')
    a(f's_sub_u32 s{S_KC}, s{S_KC}, s{S_T}')
    if opt.get('rot1', 0) == 3: a(f's_mov_b32 s{S_KC}, s{S_CB}')
    a(f's_mov_b32 s{S_KC0}, s{S_KC}')
    if opt.get('rot1') == 1: a(f's_mov_b32 s{S_KC}, 0')
    if opt.get('rot1') == 2:
        a(f's_lshr_b32 s{S_KC}, s{S_RB}, 3')
    a(f's_lshl_b32 s{S_M_A}, s{S_W}, 11')
    a(f's_mul_i32 s{S_M_B}, s{S_W}, 3072')
    a(f's_add_u32 s{S_M_B}, s{S_M_B}, {BOFF}')
    a(f's_mul_i32 s{S_ABASE}, s{S_RB}, {64*1280}')
    a(f's_mul_i32 s{S_BBASE}, s{S_CB}, 192')
    a(f's_add_u32 s{S_BBASE}, s{S_BBASE}, 1536')
    def row_dma_offsets(pitch):
        a(f'v_lshrrev_b32 v{t0}, 3, v{V_L}')
        a(f'v_and_b32 v{t1}, 7, v{V_L}')
        a(f'v_bfe_u32 v{t2}, v{V_L}, 4, 1')
        a(f'v_xor_b32 v{t1}, v{t1}, v{t2}')
        a(f's_lshl_b32 s{S_T}, s{S_W}, 4')
        a(f'v_add_u32 v{t0}, s{S_T}, v{t0}')
        a(f'v_mul_u32_u24 v{t0}, {pitch}, v{t0}')
        a(f's_lshl_b32 s{S_T}, s{S_WJ}, 2')
        a(f'v_xor_b32 v{t1}, s{S_T}, v{t1}')
        a(f'v_lshl_add_u32 v{V_AD}, v{t1}, 4, v{t0}')
        a(f'v_xor_b32 v{t1}, 2, v{t1}')
        a(f'v_lshl_add_u32 v{V_AD+1}, v{t1}, 4, v{t0}')
        a(f'v_add_u32 v{V_AD+1}, {8*pitch-1024}, v{V_AD+1}')
    row_dma_offsets(1280)
    def run_units(units, track=True):
        for (lines, tag) in units:
            for l in lines: a(l)
            if track: vm.issue(tag, 1)
    def dma_p1_A(stage, kc=None):
        slot = (stage & 3) * SLOT
        return [([f's_lshl_b32 s{S_AO}, s{S_KC}, 7', f's_add_u32 s{S_AO}, s{S_AO}, s{S_ABASE}', f's_add_u32 m0, s{S_M_A}, {slot}',
                  f'buffer_load_dwordx4 v{V_AD}, {srd(SRD_X)}, s{S_AO} offen lds'], ('A', stage)),
                ([f'buffer_load_dwordx4 v{V_AD+1}, {srd(SRD_X)}, s{S_AO} offen offset:1024 lds'], ('A', stage))]
    def dma_p1_B(stage):
        slot = (stage & 3) * SLOT
        U = []
        pre = [f's_mul_i32 s{S_BO}, s{S_KC}, {64*3072}', f's_add_u32 s{S_BO}, s{S_BO}, s{S_BBASE}', f's_add_u32 m0, s{S_M_B}, {slot}', f's_add_u32 s{S_KC}, s{S_KC}, 1']
        for j in range(3):
            L = (pre if j == 0 else []) + [f'buffer_load_dwordx4 v{V_BD+j}, {srd(SRD_WIN)}, s{S_BO} offen offset:{1024*j} lds']
            if j == 2:
                L += [f's_cmp_eq_u32 s{S_KC}, 10', f's_cselect_b32 s{S_KC}, 0, s{S_KC}']
                if stage == 9: L += [f's_sub_u32 s{S_BBASE}, s{S_BBASE}, 1536']
            U.append((L, ('B', stage)))
        return U
    def dma_p1(stage): return (dma_p1_A(stage) if stage < 10 else []) + dma_p1_B(stage)
    vm.issue('epoch')
    run_units(dma_p1_A(0))
    a(f's_mul_i32 s{S_T}, s{S_W}, 192')
    for j in range(3):
        a(f'v_add_u32 v{t0}, s{S_T}, v{V_L}')
        if j: a(f'v_add_u32 v{t0}, {64*j}, v{t0}')
        a(f'v_mul_u32_u24 v{t1}, 43691, v{t0}')
        a(f'v_lshrrev_b32 v{t1}, 19, v{t1}')
        a(f'v_mul_u32_u24 v{t2}, 12, v{t1}')
        a(f'v_sub_u32 v{t0}, v{t0}, v{t2}')
        a(f'v_bfe_u32 v{t2}, v{t1}, 3, 1')
        a(f'v_mad_u32_u24 v{t0}, v{t2}, 6, v{t0}')
        a(f'v_subrev_u32 v{t2}, 12, v{t0}')
        a(f'v_min_u32 v{t0}, v{t0}, v{t2}')
        a(f'v_mul_u32_u24 v{t1}, 3072, v{t1}')
        a(f'v_lshl_add_u32 v{V_BD+j}, v{t0}, 4, v{t1}')
        if j: a(f'v_subrev_u32 v{V_BD+j}, {1024*j}, v{V_BD+j}')
    run_units(dma_p1_B(0))
    for s in range(1, 4): run_units(dma_p1(s))
    mk_srd(a, SRD_WSP, P_WSP, 2048 * 2048 * 2)
    mk_srd(a, SRD_OUT, P_OUT, 2048 * 640 * 2)
    PAT7 = ([-1, -1, 9, 9], [-1, 9, 9])
    PAT = {5: ([0, 2, 4], [1, 3]), 3: ([1, 4], [2]), 2: ([1], [2]), 0: ([], [])}
    if opt.get('pat') == 1: PAT = {5: ([9, 9, 9], [9, 9]), 3: ([9, 9], [9]), 2: ([9], [9]), 0: ([], [])}
    if opt.get('pat') == 2: PAT = {5: ([9, 9, 9, 9, 9], []), 3: ([9, 9, 9], []), 2: ([9, 9], []), 0: ([], [])}
    if opt.get('pat', 3) == 3: PAT = {5: ([-1, -1, 9], [-1, 9]), 3: ([-1, 9], [9]), 2: ([9], [9]), 0: ([], [])}
    def with_units(mf_lines, pos_units, track=True):
        for (p, u) in pos_units:
            if p < 0: run_units([u], track)
        for i, l in enumerate(mf_lines):
            a(l)
            for (p, u) in pos_units:
                if p == i: run_units([u], track)
        for (p, u) in pos_units:
            if p >= len(mf_lines): run_units([u], track)
    def split_units(U):
        first, second = PAT[len(U)] if len(U) in PAT else PAT7 if len(U) == 7 else ([-1, 9], [-1, 9])
        return list(zip(first, U[:len(first)])), list(zip(second, U[len(first):]))
    def lane_mq():
        a(f'v_and_b32 v{t0}, 15, v{V_L}')
        a(f'v_lshrrev_b32 v{t1}, 4, v{V_L}')
    lane_mq()
    a(f'v_lshrrev_b32 v{t2}, 2, v{t0}')
    a(f'v_lshlrev_b32 v{t3}, 3, v{t2}')
    a(f'v_and_b32 v{V_AR}, 3, v{t0}')
    a(f'v_add_u32 v{t3}, v{t3}, v{V_AR}')
    a(f's_lshl_b32 s{S_T}, s{S_WI}, 5')
    a(f'v_add_u32 v{t3}, s{S_T}, v{t3}')
    a(f'v_lshlrev_b32 v{t3}, 7, v{t3}')
    a(f'v_lshlrev_b32 v{t2}, 1, v{t2}')
    a(f'v_bfe_u32 v{V_AR}, v{t0}, 1, 1')
    a(f'v_or_b32 v{t2}, v{t2}, v{V_AR}')
    a(f'v_xor_b32 v{t2}, v{t2}, v{t1}')
    a(f'v_lshl_add_u32 v{V_AR}, v{t2}, 4, v{t3}')
    a(f'v_xor_b32 v{V_AR+1}, 64, v{V_AR}')
    a(f'v_add_u32 v{V_AR+2}, {2*SLOT}, v{V_AR}')
    a(f'v_add_u32 v{V_AR+3}, {2*SLOT}, v{V_AR+1}')
    a(f'v_lshrrev_b32 v{t2}, 2, v{t0}')
    a(f'v_lshl_add_u32 v{t2}, v{t1}, 3, v{t2}')
    a(f'v_mul_u32_u24 v{t2}, 192, v{t2}')
    a(f'v_and_b32 v{t3}, 1, v{t1}')
    a(f'v_xor_b32 v{t3}, s{S_WJ}, v{t3}')
    a(f'v_mul_u32_u24 v{t3}, 96, v{t3}')
    a(f'v_add_u32 v{t2}, v{t2}, v{t3}')
    a(f'v_and_b32 v{t3}, 3, v{V_L}')
    a(f'v_lshl_add_u32 v{V_BR}, v{t3}, 3, v{t2}')
    a(f'v_add_u32 v{V_BR}, {BOFF}, v{V_BR}')
    a(f'v_add_u32 v{V_BR+1}, {2*SLOT}, v{V_BR}')
    a(f'v_lshrrev_b32 v{t2}, 2, v{t0}')
    a(f'v_lshl_add_u32 v{t3}, v{t1}, 3, v{t2}')
    a(f'v_lshlrev_b32 v{V_UR}, 7, v{t3}')
    a(f'v_lshrrev_b32 v{t2}, 1, v{t2}')
    a(f'v_lshl_or_b32 v{t2}, v{t1}, 1, v{t2}')
    a(f'v_bfe_u32 v{t3}, v{V_L}, 1, 1')
    a(f's_lshl_b32 s{S_T}, s{S_W}, 1')
    a(f'v_add_u32 v{t3}, s{S_T}, v{t3}')
    a(f'v_xor_b32 v{t3}, v{t3}, v{t2}')
    a(f'v_lshl_add_u32 v{V_UR}, v{t3}, 4, v{V_UR}')
    a(f'v_and_b32 v{t3}, 1, v{V_L}')
    a(f'v_lshl_add_u32 v{V_UR}, v{t3}, 3, v{V_UR}')
    a(f's_lshl_b32 s{S_T}, s{S_W}, 4')
    a(f'v_add_u32 v{V_US}, s{S_T}, v{t0}')
    a(f'v_lshlrev_b32 v{V_US}, 12, v{V_US}')
    a(f'v_lshl_add_u32 v{V_US}, v{t1}, 4, v{V_US}')
    a(f's_mov_b32 s{S_K1}, {hx(k1)}')
    a(f's_mov_b32 s{S_K1+1}, {hx(k1)}')
    a(f's_mov_b32 s{S_ONE}, 1.0')
    a(f's_mov_b32 s{S_ONE+1}, 1.0')
    a(f's_waitcnt vmcnt({vm.n_after("epoch")})')
    a(f'v_readfirstlane_b32 s{S_TAG}, v127')
    a(f's_add_u32 s{S_TAG}, s{S_TAG}, 1')

    def ar(stage, ks): return V_AR + ks + (2 if (stage & 2) else 0)
    def so(stage): return (stage & 1) * SLOT
    def br(stage): return V_BR + (1 if (stage & 2) else 0)
    def reads_p1(stage, ks):
        n = 0
        if stage < 10:
            for tau in range(2):
                a(f'ds_read_b128 {vr(XF+16*stage+8*ks+4*tau,4)}, v{ar(stage,ks)} offset:{so(stage)+512*tau}'); n += 1
        for phi in range(3):
            for half in range(2):
                a(f'ds_read_b64_tr_b16 {vr(WF+12*ks+4*phi+2*half,2)}, v{br(stage)} offset:{so(stage)+6144*ks+768*half+32*phi}'); n += 1
        return n
    def mfma_p1(stage, ks):
        i = stage % 10
        L = []
        for tau in range(2):
            for phi in range(3):
                x = vr(XF + 16 * i + 8 * ks + 4 * tau, 4); w = vr(WF + 12 * ks + 4 * phi, 4)
                if stage < 10:
                    c = vr(ACC2 + 4 * (3 * tau + phi), 4)
                    L.append(f'v_mfma_f32_16x16x32_bf16 {c}, {x}, {w}, {c if (i or ks) else 0}')
                else:
                    c = vr(ACC1 + 4 * (2 * phi + tau), 4)
                    L.append(f'v_mfma_f32_16x16x32_bf16 {c}, {w}, {x}, {c if (i or ks) else 0}')
        return L
    def dma_p2_A(stage):
        slot = (stage & 3) * SLOT
        return [([f's_lshl_b32 s{S_AO}, s{S_KC}, 7', f's_add_u32 s{S_AO}, s{S_AO}, s{S_ABASE}', f's_add_u32 m0, s{S_M_A}, {slot}', f's_add_u32 s{S_KC}, s{S_KC}, 1',
                  f'buffer_load_dwordx4 v{V_AD}, {srd(SRD_WSP)}, s{S_AO} offen lds'], ('A', stage)),
                ([f'buffer_load_dwordx4 v{V_AD+1}, {srd(SRD_WSP)}, s{S_AO} offen offset:1024 lds', f's_and_b32 s{S_KC}, s{S_KC}, 31'], ('A', stage))]
    S_KZ = S_KC0
    def dma_p2_B(stage):
        slot = (stage & 3) * SLOT
        U = []
        for j in range(3):
            L = [f's_mul_i32 s{S_BO}, s{S_KZ}, 12288', f's_add_u32 s{S_BO}, s{S_BO}, s{S_BBASE}', f's_add_u32 m0, s{S_M_B}, {slot}', f's_add_u32 s{S_KZ}, s{S_KZ}, 1'] if j == 0 else []
            L += [f'buffer_load_dwordx4 v{V_BD}, {srd(SRD_WS)}, s{S_BO} offen offset:{1024*j} sc1 lds']
            if j == 2: L += [f's_and_b32 s{S_KZ}, s{S_KZ}, 31']
            U.append((L, ('B', stage)))
        return U
    def rot2(dst):
        m = opt.get('rot2', 5)
        if m == 1:
            a(f's_lshl_b32 s{dst}, s{S_CB}, 3')
            a(f's_add_u32 s{dst}, s{dst}, s{S_RB}')
        elif m == 2:
            a(f's_lshl_b32 s{dst}, s{S_CB}, 1')
            a(f's_add_u32 s{dst}, s{dst}, s{S_RB}')
            a(f's_lshl_b32 s{dst}, s{dst}, 2')
        elif m == 3:
            a(f's_lshl_b32 s{dst}, s{S_CB}, 1')
            a(f's_add_u32 s{dst}, s{dst}, s{S_RB}')
            a(f's_lshl_b32 s{dst}, s{dst}, 2')
            a(f's_lshr_b32 s{S_T2}, s{S_RB}, 3')
            a(f's_add_u32 s{dst}, s{dst}, s{S_T2}')
        elif m == 4:
            a(f's_mov_b32 s{dst}, s{S_RB}')
        elif m == 5:
            a(f's_and_b32 s{dst}, s{S_RB}, 24')
        a(f's_and_b32 s{dst}, s{dst}, 31')
    def ut_chunk(extra):
        if extra:
            a(f's_add_u32 s{S_T}, s{S_KC0}, {extra}')
            a(f's_sub_u32 s{S_T2}, s{S_T}, 10')
            a(f's_min_u32 s{S_T}, s{S_T}, s{S_T2}')
        else:
            a(f's_mov_b32 s{S_T}, s{S_KC0}')
    V_A4 = 144
    def wsp_setup():
        a(f'v_lshrrev_b32 v{t0}, 3, v{V_L}')
        a(f'v_lshlrev_b32 v{t0}, 12, v{t0}')
        a(f'v_and_b32 v{t1}, 7, v{V_L}')
        a(f'v_bfe_u32 v{t2}, v{V_L}, 4, 1')
        a(f'v_xor_b32 v{t1}, v{t1}, v{t2}')
        for j in range(4):
            a(f'v_xor_b32 v{t2}, {2*j}, v{t1}')
            a(f'v_lshl_add_u32 v{VA4(j)}, v{t2}, 4, v{t0}')
            if j: a(f'v_add_u32 v{VA4(j)}, {8*j*4096-1024*j}, v{VA4(j)}')
        a(f's_lshl_b32 s{S_ABASE}, s{S_RB}, 18')
        a(f's_mul_i32 s{S_M_A}, s{S_W}, {SLOT}')
        rot2(S_KA)
        a(f's_add_u32 s{S_KA}, s{S_KA}, s{S_W}')
    def VA4(j): return (V_AD, V_AD + 1, V_UR + 0 if False else 15, 0)[j]
    S_KA = S_M_C
    def adma(par):
        U = []
        for gq in range(8):
            L = []
            if gq == 0:
                L += [f's_and_b32 s{S_KA}, s{S_KA}, 31', f's_lshl_b32 s{S_A2}, s{S_KA}, 7', f's_add_u32 s{S_A2}, s{S_A2}, s{S_ABASE}', f's_add_u32 s{S_KA}, s{S_KA}, 4']
            if gq == 4:
                L += [f's_add_u32 s{S_A2}, s{S_A2}, 131072']
            L += [f's_add_u32 m0, s{S_M_A}, {8192*par+4096*(gq>>2)}']
            L += [f'buffer_load_dwordx4 v{VA4(gq&3)}, {srd(SRD_WSP)}, s{S_A2} offen offset:{1024*(gq&3)} lds']
            U.append((L, ('A2', par)))
        return U
    S_A2 = 77
    U2 = 8 if opt.get('rot1', 0) == 3 else 4
    UT = V_T
    pend = []
    a(f's_waitcnt vmcnt({vm.n_after(("B", 0))})')
    a('s_barrier')
    stamp(a, 1)
    reads_p1(0, 0)
    for s in range(20):
        if s == 10:
            stamp(a, 2)
            e1_z2(a, opt, vm, k0)
            stamp(a, 3)
        if s == LDS_:
            e2_loads(a, vm)
        if s == LNS:
            stamp(a, 4)
            e2_layernorm(a, opt, vm)
            if opt.get('kd') == 2:
                a(f's_cmp_lg_u32 s{S_W}, 3')
                a('s_cbranch_scc1 L_fs2_skip')
                a(f's_lshl_b32 s{S_T}, s2, 2')
                a(f's_add_u32 s{S_T}, s{S_T}, {WS_FS+1024}')
                flag_store(a, S_T, 18)
                a.lab('L_fs2_skip')
            stamp(a, 5)
        n1 = reads_p1(s, 1)
        ut = s in (0, U2)
        if ut:
            if s == U2:
                a(f's_cmp_ge_u32 s{S_CB}, 2')
                a('s_cbranch_scc1 L_ut2_skip')
            for h2 in range(2):
                for half in range(2):
                    a(f'ds_read_b64_tr_b16 {vr(UT+4*h2+2*half,2)}, v{V_UR} offset:{(s&3)*SLOT+4096*h2+512*half}')
            if s == U2:
                a.lab('L_ut2_skip')
        a(f's_waitcnt lgkmcnt({n1+4 if s == 0 else n1})')
        with_units(mfma_p1(s, 0), pend); pend = []
        if s < 19:
            n = vm.n_after(('B', s + 1))
            if s == LNS + FZS: n = min(n, vm.n_after('z'))
            a(f's_waitcnt vmcnt({n}) lgkmcnt(0)')
        elif s == LNS + FZS:
            a(f's_waitcnt vmcnt({vm.n_after("z")}) lgkmcnt(0)')
        else:
            a('s_waitcnt lgkmcnt(0)')
        a('s_barrier')
        sstamp(a, s)
        if ut:
            if s == U2:
                a(f's_cmp_ge_u32 s{S_CB}, 2')
                a('s_cbranch_scc1 L_us2_skip')
            ut_chunk(s)
            a(f's_lshl_b32 s{S_T}, s{S_T}, 18')
            a(f's_lshl_b32 s{S_T2}, s{S_RB}, 7')
            a(f's_add_u32 s{S_T}, s{S_T}, s{S_T2}')
            a(f's_add_u32 s{S_T}, s{S_T}, {WS_UT}')
            for h2 in range(2):
                a(f'buffer_store_dwordx4 {vr(UT+4*h2,4)}, v{V_US}, {srd(SRD_WS)}, s{S_T} offen offset:{64*h2} sc1')
            if s == U2:
                a.lab('L_us2_skip')
            else:
                vm.issue('ut0', 2)
        if s in (3, U2 + 3):
            a(f's_cmp_lg_u32 s{S_W}, 0')
            a(f's_cbranch_scc1 L_fu{s}_skip')
            if s == U2 + 3:
                a(f's_cmp_ge_u32 s{S_CB}, 2')
                a(f's_cbranch_scc1 L_fu{s}_skip')
            ut_chunk(s - 3)
            a(f's_lshl_b32 s{S_T}, s{S_T}, 5')
            a(f's_add_u32 s{S_T}, s{S_T}, s{S_RB}')
            a(f's_lshl_b32 s{S_T}, s{S_T}, 2')
            a(f's_add_u32 s{S_T}, s{S_T}, {WS_FU}')
            flag_store(a, S_T, V_T)
            a.lab(f'L_fu{s}_skip')
        if s == LNS + FZS:
            a(f's_cmp_lg_u32 s{S_W}, 0')
            a('s_cbranch_scc1 L_fz_skip')
            flag_store(a, S_FZA, V_T)
            a.lab('L_fz_skip')
            stamp(a, 6)
        if s + 4 < 20:
            U = dma_p1(s + 4)
        else:
            U = []
        if s == 12:
            wsp_setup()
        A0S = opt.get('a0s', LNS)
        if s in (A0S, A0S + 1):
            U = U + adma(0)[4 * (s - A0S): 4 * (s - A0S) + 4]
        now, pend = split_units(U)
        if s + 1 in (10, LNS, 20):
            now = now + [(99, u) for (_, u) in pend]; pend = []
        if s < 19:
            reads_p1(s + 1, 0)
        with_units(mfma_p1(s, 1), now)
    stamp(a, 7)
    run_units(adma(1))
    V_PA = 141
    rot2(S_ROT)
    a(f's_add_u32 s{S_T}, s{S_ROT}, s{S_W}')
    a(f'v_lshl_add_u32 v{V_PA}, v{V_L}, 2, s{S_T}')
    a(f'v_and_b32 v{V_PA}, 31, v{V_PA}')
    a(f'v_lshlrev_b32 v{V_PA}, 2, v{V_PA}')
    a(f's_lshl_b32 s{S_T}, s{S_CB}, 7')
    a(f's_add_u32 s{S_T}, s{S_T}, {WS_FZ}')
    a(f'v_add_u32 v{V_PA}, s{S_T}, v{V_PA}')
    if opt.get('no_side') != 1:
        a(f'v_subrev_u32 v{t0}, 8, v{V_L}')
        a(f'v_min_u32 v{t0}, 5, v{t0}')
        a(f's_mul_i32 s{S_T}, s{S_CB}, 24')
        a(f's_mul_i32 s{S_T2}, s{S_W}, 6')
        a(f's_add_u32 s{S_T}, s{S_T}, s{S_T2}')
        a(f'v_add_u32 v{t0}, s{S_T}, v{t0}')
        a(f'v_lshlrev_b32 v{t0}, 2, v{t0}')
        a(f'v_add_u32 v{t0}, {WS_FW}, v{t0}')
        a(f'v_cmp_gt_u32 vcc, 8, v{V_L}')
        a(f'v_cndmask_b32 v{V_PA}, v{t0}, v{V_PA}, vcc')
    V_FL = 140
    S_RDY = 84
    def flags_load():
        a(f'buffer_load_dword v{V_FL}, v{V_PA}, {srd(SRD_WS)}, 0 offen sc1')
    nspin = [0]
    def need_bit(idx, mask=False, fresh=False):
        n = nspin[0]; nspin[0] += 1
        def test():
            if mask:
                a(f's_andn2_b32 s{S_T2}, {idx}, s{S_RDY}')
                a(f's_cbranch_scc0 L_nb{n}_ok')
            else:
                a(f's_bitcmp1_b32 s{S_RDY}, {idx}')
                a(f's_cbranch_scc1 L_nb{n}_ok')
        if fresh:
            a(f'v_cmp_eq_u32 s[{S_RDY}:{S_RDY+1}], s{S_TAG}, v{V_FL}')
        test()
        a(f's_mov_b32 s{S_CNT}, {SPIN_MAX}')
        a.lab(f'L_nb{n}_spin')
        flags_load()
        a('s_waitcnt vmcnt(0)')
        a(f'v_cmp_eq_u32 s[{S_RDY}:{S_RDY+1}], s{S_TAG}, v{V_FL}')
        test()
        if opt.get('psl'): a(f's_sleep {opt["psl"]}')
        a(f's_sub_u32 s{S_CNT}, s{S_CNT}, 1')
        a(f's_cmp_lg_u32 s{S_CNT}, 0')
        a(f's_cbranch_scc1 L_nb{n}_spin')
        a.lab(f'L_nb{n}_ok')
    a(f's_mov_b64 s[{S_RDY}:{S_RDY+1}], 0')
    a(f'v_mov_b32 v{K0V}, {hx(k0)}')
    a(f'v_mov_b32 v{K0V+1}, {hx(k0)}')
    V_ZW = V_US
    lane_mq()
    a(f'v_lshrrev_b32 v{t2}, 2, v{t0}')
    a(f'v_lshlrev_b32 v{t2}, 3, v{t2}')
    a(f'v_and_b32 v{t3}, 3, v{t0}')
    a(f'v_add_u32 v{t2}, v{t2}, v{t3}')
    a(f'v_lshlrev_b32 v{t2}, 3, v{t2}')
    a(f'v_mul_u32_u24 v{t3}, {SLOT}, v{t1}')
    a(f'v_add_u32 v{t2}, v{t2}, v{t3}')
    a(f's_mul_i32 s{S_T}, s{S_WJ}, 1536')
    a(f's_lshl_b32 s{S_T2}, s{S_WI}, 8')
    a(f's_add_u32 s{S_T}, s{S_T}, s{S_T2}')
    a(f's_add_u32 s{S_T}, s{S_T}, 16384')
    a(f'v_add_u32 v{V_ZW}, s{S_T}, v{t2}')
    Z1Q = 128
    def z1_group(i):
        phi, tau = i >> 1, i & 1
        cs = [ACC1 + 4 * i, ACC1 + 4 * i + 2]
        a(f'v_cvt_pk_bf16_f32 v{Z1Q+2*i}, v{cs[0]}, v{cs[0]+1}')
        a(f'v_cvt_pk_bf16_f32 v{Z1Q+2*i+1}, v{cs[1]}, v{cs[1]+1}')
        a(f'ds_write_b64 v{V_ZW}, {vr(Z1Q+2*i,2)} offset:{512*phi+32*tau}')
    NG1 = 6
    a(f'v_mov_b32 v{t2}, {CTR}')
    a(f'v_mov_b32 v{t3}, 8')
    a(f'ds_write_b32 v{t2}, v{t3}')
    for i in range(NG1): z1_group(i)
    G2 = 24
    ZR = 144
    AF = 120
    Z1R = 240
    V_ZD, V_A2R = V_BD, V_AR
    a(f'v_and_b32 v{t0}, 31, v{V_L}')
    a(f'v_lshrrev_b32 v{t1}, 5, v{V_L}')
    a(f's_lshl_b32 s{S_T}, s{S_W}, 3')
    a(f'v_add_u32 v{t3}, s{S_T}, v{t0}')
    a(f'v_and_b32 v{t3}, 31, v{t3}')
    a(f'v_mul_u32_u24 v{t2}, 96, v{t1}')
    a(f'v_add_u32 v{t2}, v{t2}, v{t3}')
    a(f'v_lshlrev_b32 v{V_ZD}, 4, v{t2}')
    a(f'v_lshrrev_b32 v{t2}, 3, v{t0}')
    a(f'v_lshlrev_b32 v{t2}, 1, v{t2}')
    a(f'v_bfe_u32 v{t3}, v{t0}, 1, 1')
    a(f'v_or_b32 v{t2}, v{t2}, v{t3}')
    a(f'v_xor_b32 v{t2}, v{t2}, v{t1}')
    a(f'v_lshlrev_b32 v{t3}, 7, v{t0}')
    a(f'v_lshl_add_u32 v{t2}, v{t2}, 4, v{t3}')
    a(f'v_add_u32 v{V_A2R}, s{S_M_A}, v{t2}')
    for ks in range(1, 4):
        a(f'v_xor_b32 v{t3}, {32*ks}, v{t2}')
        a(f'v_add_u32 v{V_A2R+ks}, s{S_M_A}, v{t3}')
    V_ZR = V_BR
    a(f's_lshl_b32 s{S_T}, s{S_WJ}, 1')
    a(f'v_add_u32 v{t2}, s{S_T}, v{t1}')
    a(f'v_mul_u32_u24 v{t2}, {SLOT}, v{t2}')
    a(f'v_lshl_add_u32 v{t2}, v{t0}, 3, v{t2}')
    a(f's_lshl_b32 s{S_T}, s{S_WI}, 9')
    a(f's_add_u32 s{S_T}, s{S_T}, 16384')
    a(f'v_add_u32 v{V_ZR}, s{S_T}, v{t2}')
    a(f's_lshl_b32 s{S_T}, s{S_RB}, 7')
    a(f'v_lshlrev_b32 v{t2}, 1, v{t0}')
    a(f'v_add_u32 v{t2}, s{S_T}, v{t2}')
    BS2 = 252
    a(f'global_load_ushort v{BS2}, v{t2}, {sp(P_BSP)}')
    a(f'global_load_ushort v{BS2+2}, v{t2}, {sp(P_BSP)} offset:64')
    rot2(S_KZ)
    a(f's_add_u32 s{S_KZ}, s{S_KZ}, s{S_W}')
    a(f's_mul_i32 s{S_BBASE}, s{S_CB}, {32*12288}')
    a(f's_add_u32 s{S_BBASE}, s{S_BBASE}, {WS_Z}')
    a('s_waitcnt lgkmcnt(0)')
    a('s_barrier')
    need_bit(0)
    stamp(a, 8)
    vm.ops = []
    def zld(par):
        U = []
        for ks in range(4):
            for ph in range(3):
                L = []
                if ks == 0 and ph == 0:
                    L += [f's_and_b32 s{S_KZ}, s{S_KZ}, 31', f's_mul_i32 s{S_BO}, s{S_KZ}, 12288', f's_add_u32 s{S_BO}, s{S_BO}, s{S_BBASE}', f's_add_u32 s{S_KZ}, s{S_KZ}, 4']
                elif ph == 0:
                    L += [f's_add_u32 s{S_BO}, s{S_BO}, 3072']
                L += [f'buffer_load_dwordx4 {vr(ZR+48*par+12*ks+4*ph,4)}, v{V_ZD}, {srd(SRD_WS)}, s{S_BO} offen offset:{512*ph} sc1']
                U.append((L, ('Z', par, ks)))
        return U
    run_units(zld(0))
    for i in range(NG1, 6): z1_group(i)
    for i in range(6):
        a(f'ds_read_b64 {vr(Z1R+2*i,2)}, v{V_ZR} offset:{1024*(i>>1)+256*(i&1)}')
    if opt.get('cg', 0) == 1 or opt.get('kd') == 1:
        a(f's_cmp_lg_u32 s{S_W}, 3')
        a('s_cbranch_scc1 L_fs_skip')
        a(f's_lshl_b32 s{S_T}, s2, 2')
        a(f's_add_u32 s{S_T}, s{S_T}, {WS_FS}')
        flag_store(a, S_T, 18)
        a.lab('L_fs_skip')
    def ards(par, ks):
        f = AF + 8 * (ks & 1)
        for tp in range(2):
            a(f'ds_read_b128 {vr(f+4*tp,4)}, v{V_A2R+ks} offset:{8192*par+4096*tp}')
    def chunk(par, loads, wo=None, fill=()):
        U = []
        if loads == 'AZ': U = adma(1 - par) + zld(1 - par)
        if loads == 'Z': U = zld(1 - par)
        if wo: U = wo
        per = (len(U) + 3) // 4
        issued = 0
        for ks in range(4):
            n = 3 * (3 - ks) + issued
            a(f's_waitcnt vmcnt({n}) lgkmcnt(0)')
            if ks < 3:
                ards(par, ks + 1)
            mine = U[issued: issued + per]
            f = AF + 8 * (ks & 1)
            k = 0
            for tp in range(2):
                for ph in range(3):
                    c = vr(G2 + 16 * (2 * ph + tp), 16)
                    a(f'v_mfma_f32_32x32x16_bf16 {c}, {vr(ZR+48*par+12*ks+4*ph,4)}, {vr(f+4*tp,4)}, {0 if (loads == "Z" and ks == 0) else c}')
                    if k < len(mine):
                        run_units([mine[k]], False); k += 1
                    for l in fill[6 * (6 * ks + 3 * tp + ph): 6 * (6 * ks + 3 * tp + ph) + 6]: a(l)
            while k < len(mine):
                run_units([mine[k]], False); k += 1
            issued += len(mine)
            if ks == 3 and loads:
                a('s_waitcnt vmcnt(12)')
                ards(1 - par, 0)
    V_L16 = V_BD + 1
    a(f'v_lshlrev_b32 v{V_L16}, 4, v{V_L}')
    a(f's_mul_i32 s{S_WOB}, s{S_CB}, {24*5120}')
    a(f's_mul_i32 s{S_T}, s{S_W}, {6*5120}')
    a(f's_add_u32 s{S_WOB}, s{S_WOB}, s{S_T}')
    a(f's_add_u32 s{S_WOB}, s{S_WOB}, {WS_WO}')
    V_RW = V_BD + 2
    a(f'v_add_u32 v{V_RW}, s{S_M_A}, v{V_L16}')
    V_RR = 12
    for d in range(1, 4):
        a(f's_sub_u32 s{S_T}, s{S_W}, {d}')
        a(f's_and_b32 s{S_T}, s{S_T}, 3')
        a(f's_mul_i32 s{S_T}, s{S_T}, {SLOT}')
        a(f's_add_u32 s{S_T}, s{S_T}, {6144*(d-1)}')
        a(f'v_add_u32 v{V_RR+d-1}, s{S_T}, v{V_L16}')
    V_CT, V_ONE, V_IX = 136, 137, 138
    a(f'v_mov_b32 v{V_CT}, {CTR}')
    a(f'v_mov_b32 v{V_ONE}, 1')
    a(f'v_mov_b32 v{V_IX}, s{S_W}')
    a(f'v_add_u32 v{V_IX}, 4, v{V_IX}')
    def grab():
        if not opt.get('dyn'):
            a(f'v_add_u32 v{V_IX}, 4, v{V_IX}')
            return
        a(f's_mov_b64 {sp(S_TMP2)}, exec')
        a('s_mov_b64 exec, 1')
        a(f'ds_add_rtn_u32 v{V_IX}, v{V_CT}, v{V_ONE}')
        a(f's_mov_b64 exec, {sp(S_TMP2)}')
    def take(par):
        a('s_waitcnt lgkmcnt(0)')
        a(f'v_readfirstlane_b32 s{S_T}, v{V_IX}')
        a(f's_cmp_ge_u32 s{S_T}, 32')
        a(f's_cbranch_scc1 L_p2_tail{par}')
        a(f's_add_u32 s{S_KA}, s{S_T}, s{S_ROT}')
        a(f's_mov_b32 s{S_KZ}, s{S_KA}')
        a(f's_lshr_b32 s{S_T}, s{S_T}, 2')
        need_bit(f's{S_T}', fresh=True)
        flags_load()
        grab()
    stamp(a, 9)
    a('s_waitcnt lgkmcnt(0)')
    ards(0, 0)
    grab()
    GL = []
    for i in range(6): GL += gelu_packed([Z1R + 2 * i, Z1R + 2 * i + 1], K0V)
    assert len(GL) == 144
    need_bit(1)
    flags_load()
    if opt.get('nofill'):
        for l in GL: a(l)
        GL = ()
    chunk(0, 'Z', fill=GL)
    a.lab('L_p2_loop')
    take(1)
    chunk(1, 'AZ')
    take(0)
    chunk(0, 'AZ')
    a('s_branch L_p2_loop')
    WOS = [144, 164, 192, 212]
    def wold(kk):
        U = []
        for dl in range(5):
            L = [f's_add_u32 s{S_BO}, s{S_WOB}, {5120*kk+(4096 if dl == 4 else 0)}'] if dl in (0, 4) else []
            L += [f'buffer_load_dwordx4 {vr(WOS[kk&3]+4*dl,4)}, v{V_L16}, {srd(SRD_WS)}, s{S_BO} offen offset:{1024*(dl&3)} sc1']
            U.append((L, ('WO', kk)))
        return U
    for par in (1, 0):
        a.lab(f'L_p2_tail{par}')
        other = ZR + 48 * (1 - par)
        AFR = {0: 120, 1: 128, 2: other + 40, 3: 16}
        for ks in range(1, 4):
            for tp in range(2):
                a(f'ds_read_b128 {vr(AFR[ks]+4*tp,4)}, v{V_A2R+ks} offset:{8192*par+4096*tp}')
        a('s_waitcnt vmcnt(0) lgkmcnt(0)')
        if opt.get('no_side') != 1:
            need_bit(0x3f00, mask=True, fresh=True)
        early, late = ((0, 1), (2, 3)) if par == 1 else ((2, 3), (0, 1))
        WOU = wold(early[0]) + wold(early[1])
        k = 0
        def wr(i):
            for d in range(1, 4):
                a(f'ds_write_b128 v{V_RW}, {vr(G2+16*i+4*d,4)} offset:{6144*(d-1)+1024*i}')
        for i in range(6):
            ph, tp = i >> 1, i & 1
            c = vr(G2 + 16 * i, 16)
            for ks in range(4):
                a(f'v_mfma_f32_32x32x16_bf16 {c}, {vr(ZR+48*par+12*ks+4*ph,4)}, {vr(AFR[ks]+4*tp,4)}, {c}')
                if ks in (0, 2) and k < len(WOU):
                    run_units([WOU[k]], False); k += 1
                if ks == 2 and i > 0: wr(i - 1)
        wr(5)
        run_units(wold(late[0]) + wold(late[1]), False)
        if par == 1:
            a('s_branch L_red_done')
    a.lab('L_red_done')
    stamp(a, 10)
    vm.ops = []
    a('s_waitcnt lgkmcnt(0)')
    a('s_barrier')
    for i in range(6):
        for j in range(3):
            a(f'ds_read_b128 {vr(G2+16*i+4+4*j,4)}, v{V_RR+j} offset:{1024*i}')
    a(f'v_lshlrev_b32 v{BS2+1}, 16, v{BS2}')
    a(f'v_lshlrev_b32 v{BS2+3}, 16, v{BS2+2}')
    a(f'v_lshlrev_b32 v{BS2}, 16, v{BS2}')
    a(f'v_lshlrev_b32 v{BS2+2}, 16, v{BS2+2}')
    a(f's_mul_i32 s{S_ABASE}, s{S_RB}, 98304')
    a(f's_add_u32 s{S_ABASE}, s{S_ABASE}, {WS_P}')
    a(f's_mul_i32 s{S_T}, s{S_CB}, 12288')
    a(f's_add_u32 s{S_T}, s{S_T}, s{S_ABASE}')
    a(f's_lshl_b32 s{S_T2}, s{S_W}, 10')
    a(f's_add_u32 s{S_T}, s{S_T}, s{S_T2}')
    PQ = 120
    for ph in range(3):
        for tp in range(2):
            i = 2 * ph + tp
            a(f's_waitcnt lgkmcnt({min(15, 3*(5-i))})')
            T = [V_T, V_T + 4]
            def both(f):
                for hh in range(2): a(f(G2 + 16 * i + 2 * hh, T[hh], hh))
            both(lambda c, t, hh: f'v_pk_add_f32 {vr(c,2)}, {vr(c,2)}, {vr(c+4,2)}')
            both(lambda c, t, hh: f'v_pk_add_f32 {vr(c+8,2)}, {vr(c+8,2)}, {vr(c+12,2)}')
            both(lambda c, t, hh: f'v_pk_add_f32 {vr(c,2)}, {vr(c,2)}, {vr(c+8,2)}')
            both(lambda c, t, hh: f'v_cvt_pk_bf16_f32 v{t+2}, v{c}, v{c+1}')
            both(lambda c, t, hh: f'v_lshlrev_b32 v{t}, 16, v{t+2}')
            both(lambda c, t, hh: f'v_and_b32 v{t+1}, 0xffff0000, v{t+2}')
            both(lambda c, t, hh: f'v_pk_add_f32 {vr(t,2)}, {vr(t,2)}, {vr(BS2+2*tp,2)}')
            both(lambda c, t, hh: f'v_cvt_pk_bf16_f32 v{t+2}, v{t}, v{t+1}')
            both(lambda c, t, hh: f'v_lshlrev_b32 v{c}, 16, v{Z1R+2*i+hh}')
            both(lambda c, t, hh: f'v_and_b32 v{c+1}, 0xffff0000, v{Z1R+2*i+hh}')
            both(lambda c, t, hh: f'v_lshlrev_b32 v{t}, 16, v{t+2}')
            both(lambda c, t, hh: f'v_and_b32 v{t+1}, 0xffff0000, v{t+2}')
            both(lambda c, t, hh: f'v_pk_mul_f32 {vr(t,2)}, {vr(t,2)}, {vr(c,2)}')
            both(lambda c, t, hh: f'v_cvt_pk_bf16_f32 v{PQ+4*ph+2*tp+hh}, v{t}, v{t+1}')
        q = PQ + 4 * ph
        a(f'v_permlane32_swap_b32 v{q}, v{q+2}')
        a(f'v_permlane32_swap_b32 v{q+1}, v{q+3}')
        a(f'buffer_store_dwordx4 {vr(q,4)}, v{V_L16}, {srd(SRD_WS)}, s{S_T} offen sc1')
        if ph < 2: a(f's_add_u32 s{S_T}, s{S_T}, 4096')
    a('s_barrier')
    a(f's_mul_i32 s{S_M_B}, s{S_W}, 15360')
    for j in range(10):
        if j % 4 == 0:
            a(f's_add_u32 m0, s{S_M_B}, {1024*j}')
            a(f's_add_u32 s{S_BO}, s{S_WOB}, {4*5120+1024*j}')
        a(f'buffer_load_dwordx4 v{V_L16}, {srd(SRD_WS)}, s{S_BO} offen offset:{1024*(j%4)} sc1 lds')
    a.fence(2)
    lane_mq()
    V_PP = 7
    a(f'v_and_b32 v{V_PP}, 7, v{V_L}')
    a(f'v_lshlrev_b32 v{V_PP}, 2, v{V_PP}')
    a(f's_lshl_b32 s{S_T}, s{S_RB}, 7')
    a(f's_add_u32 s{S_T}, s{S_T}, {WS_FP}')
    a(f's_lshl_b32 s{S_T2}, s{S_W}, 5')
    a(f's_add_u32 s{S_T2}, s{S_T2}, s{S_T}')
    V_PL0, V_PL1 = 8, 9
    a(f's_lshl_b32 s{S_AO}, s{S_RB}, 5')
    a(f's_add_u32 s{S_AO}, s{S_AO}, {WS_FG}')
    a(f'v_add_u32 v{V_PL0}, s{S_AO}, v{V_PP}')
    a(f'v_add_u32 v{V_PP}, s{S_T2}, v{V_PP}')
    a(f's_lshl_b32 s{S_T2}, s{S_CB}, 4')
    a(f's_add_u32 s{S_T}, s{S_T}, s{S_T2}')
    a(f's_lshl_b32 s{S_T2}, s{S_W}, 2')
    a(f's_add_u32 s{S_T}, s{S_T}, s{S_T2}')
    a(f's_mul_i32 s{S_T2}, s{S_CB}, 320')
    a(f's_add_u32 s{S_T2}, s{S_T2}, {WS_FA}')
    a(f'v_lshlrev_b32 v{V_PL1}, 2, v{V_L}')
    a(f'v_add_u32 v{V_PL1}, s{S_T2}, v{V_PL1}')
    a(f'v_lshlrev_b32 v{t3}, 2, v{t0}')
    a(f'v_add_u32 v{t3}, s{S_T2}, v{t3}')
    a(f'v_add_u32 v{t3}, 256, v{t3}')
    a(f'v_bfe_u32 v{t2}, v{V_L}, 4, 1')
    a(f'v_cmp_eq_u32 vcc, 1, v{t2}')
    a(f'v_cndmask_b32 v{V_PL0}, v{V_PL0}, v{t3}, vcc')
    V_AW, V_O1, V_O2, V_ATR, V_AG, V_PF = 248, 10, 11, 12, 250, 2
    ATR, GT = [136, 140, 184], 188
    a(f's_lshl_b32 s{S_AO}, s{S_W}, 7')
    a(f'v_add_u32 v{t2}, s{S_AO}, v{V_L}')
    a(f's_lshl_b32 s{S_AO}, s{S_WJ}, 6')
    a(f's_add_u32 s{S_AO}, s{S_AO}, 512')
    a(f'v_add_u32 v{t3}, s{S_AO}, v{V_L}')
    ATL = 61440
    a(f'v_lshlrev_b32 v{V_AW}, 4, v{t2}')
    a(f'v_lshlrev_b32 v{V_AW+1}, 4, v{t3}')
    a(f'v_add_u32 v{V_AW}, {ATL}, v{V_AW}')
    a(f'v_add_u32 v{V_AW+1}, {ATL}, v{V_AW+1}')
    for k, tt in enumerate((t2, t3)):
        a(f'v_lshrrev_b32 v{V_AG+k}, 3, v{tt}')
        a(f'v_and_b32 v{tt}, 7, v{tt}')
        a(f'v_lshlrev_b32 v{V_AG+k}, 12, v{V_AG+k}')
        a(f'v_lshl_add_u32 v{V_AG+k}, v{tt}, 4, v{V_AG+k}')
    a(f's_lshl_b32 s{S_AO}, s{S_RB}, 6')
    a(f's_lshl_b32 s{S_BO}, s{S_W}, 4')
    a(f's_add_u32 s{S_AO}, s{S_AO}, s{S_BO}')
    a(f'v_add_u32 v{t2}, s{S_AO}, v{t0}')
    a(f'v_lshlrev_b32 v{V_AG+2}, 3, v{t2}')
    a(f'v_add_u32 v{V_AG+2}, {WS_G}, v{V_AG+2}')
    a(f'v_mul_u32_u24 v{t2}, 1280, v{t2}')
    a(f's_mul_i32 s{S_AO}, s{S_CB}, 160')
    a(f'v_add_u32 v{t2}, s{S_AO}, v{t2}')
    a(f'v_and_b32 v{t3}, 1, v{t1}')
    a(f'v_lshl_add_u32 v{V_O1}, v{t3}, 5, v{t2}')
    a(f'v_lshrrev_b32 v{t3}, 1, v{t1}')
    a(f'v_lshl_add_u32 v{V_O1}, v{t3}, 4, v{V_O1}')
    a(f'v_lshl_add_u32 v{V_O2}, v{t1}, 3, v{t2}')
    a(f'v_add_u32 v{V_O2}, 128, v{V_O2}')
    a(f'v_lshl_add_u32 v{t2}, v{t1}, 6, v{t0}')
    a(f'v_lshlrev_b32 v{t2}, 4, v{t2}')
    VPF = [2, 3, 4, 6]
    for tt in range(4):
        a(f's_add_u32 s{S_AO}, s{S_W}, {tt}')
        a(f's_and_b32 s{S_AO}, s{S_AO}, 3')
        a(f's_lshl_b32 s{S_AO}, s{S_AO}, 8')
        a(f'v_add_u32 v{VPF[tt]}, s{S_AO}, v{t2}')
    a(f's_mul_i32 s{S_AO}, s{S_W}, 24576')
    a(f's_add_u32 s{S_ABASE}, s{S_ABASE}, s{S_AO}')
    a(f'v_lshrrev_b32 v{t2}, 2, v{t0}')
    a(f'v_lshl_add_u32 v{t2}, v{t1}, 2, v{t2}')
    a(f'v_lshlrev_b32 v{t2}, 7, v{t2}')
    a(f'v_and_b32 v{t3}, 3, v{V_L}')
    a(f'v_lshl_add_u32 v{t2}, v{t3}, 3, v{t2}')
    a(f's_lshl_b32 s{S_AO}, s{S_W}, 5')
    a(f's_add_u32 s{S_AO}, s{S_AO}, {ATL}')
    a(f'v_add_u32 v{V_ATR}, s{S_AO}, v{t2}')
    O3 = 24
    a('s_waitcnt vmcnt(10)')
    flag_store(a, S_T, V_T)
    stamp(a, 11)
    if not opt.get('no_side'):
        a(f'buffer_load_dword v20, v{V_PL0}, {srd(SRD_WS)}, 0 offen sc1')
        a(f'buffer_load_dword v21, v{V_PL1}, {srd(SRD_WS)}, 0 offen sc1')
    a(f's_mov_b32 s{S_CNT}, {SPIN_MAX}')
    a(f'buffer_load_dword v16, v{V_PP}, {srd(SRD_WS)}, 0 offen sc1')
    a.lab('L_pp_spin')
    a(f'buffer_load_dword v17, v{V_PP}, {srd(SRD_WS)}, 0 offen sc1')
    a('s_waitcnt vmcnt(1)')
    a(f'v_cmp_ne_u32 vcc, s{S_TAG}, v16')
    a('s_cbranch_vccz L_pp_done')
    a(f'buffer_load_dword v16, v{V_PP}, {srd(SRD_WS)}, 0 offen sc1')
    a('s_waitcnt vmcnt(1)')
    a(f'v_cmp_ne_u32 vcc, s{S_TAG}, v17')
    a('s_cbranch_vccz L_pp_done')
    if opt.get('psl'): a(f's_sleep {opt["psl"]}')
    a(f's_sub_u32 s{S_CNT}, s{S_CNT}, 1')
    a(f's_cmp_lg_u32 s{S_CNT}, 0')
    a('s_cbranch_scc1 L_pp_spin')
    a.lab('L_pp_done')
    stamp(a, 12)
    vm.ops = []
    NPS = 3
    PFS = [104, 120, 232]
    V_AG2 = [V_AG, V_AG + 1, V_AG + 2]
    def pld(kk):
        U = []
        for tt in range(4):
            L = [f's_add_u32 s{S_AO}, s{S_ABASE}, {4096*kk}'] if tt == 0 else []
            L += [f'buffer_load_dwordx4 {vr(PFS[kk%NPS]+4*tt,4)}, v{VPF[tt]}, {srd(SRD_WS)}, s{S_AO} offen sc1']
            U.append((L, ('P', kk)))
        return U
    for kk in range(3): run_units(pld(kk))
    if not opt.get('no_side'):
        a(f'v_cmp_ne_u32 vcc, s{S_TAG}, v20')
        a(f'v_cmp_ne_u32 s[84:85], s{S_TAG}, v21')
        a('s_or_b64 vcc, vcc, s[84:85]')
        a('s_cbranch_vccnz L_pa_late')
    def at_loads():
        a(f's_mul_i32 s{S_T}, s{S_CB}, {80*4096}')
        a(f's_lshl_b32 s{S_T2}, s{S_RB}, 7')
        a(f's_add_u32 s{S_T}, s{S_T}, s{S_T2}')
        a(f's_add_u32 s{S_T}, s{S_T}, {WS_AT}')
        a(f's_add_u32 s{S_T2}, s{S_T}, {8*4096}')
        a(f'buffer_load_dwordx4 {vr(ATR[0],4)}, v{V_AG2[0]}, {srd(SRD_WS)}, s{S_T} offen sc1')
        a(f'buffer_load_dwordx4 {vr(ATR[1],4)}, v{V_AG2[0]}, {srd(SRD_WS)}, s{S_T2} offen sc1')
        a(f'buffer_load_dwordx4 {vr(ATR[2],4)}, v{V_AG2[1]}, {srd(SRD_WS)}, s{S_T} offen sc1')
        a(f'buffer_load_dwordx2 {vr(GT,2)}, v{V_AG2[2]}, {srd(SRD_WS)}, 0 offen sc1')
    at_loads()
    vm.issue('at', 4)
    a(f's_mov_b32 s{S_KZ}, 0')
    if not opt.get('no_side'):
        a('s_branch L_pa_go')
        a.lab('L_pa_late')
        for k in range(4):
            a(f'buffer_load_dword v22, off, {srd(SRD_WS)}, 0')
        a(f's_mov_b32 s{S_KZ}, 1')
        a.lab('L_pa_go')
    stamp(a, 13)
    V_W3, V_R3 = 13, 14
    VR3 = [14, 15, 0]
    a(f's_mul_i32 s{S_T}, s{S_W}, 15360')
    a(f'v_add_u32 v{V_W3}, s{S_T}, v{V_L16}')
    for d in range(1, 4):
        a(f's_sub_u32 s{S_T}, s{S_W}, {d}')
        a(f's_and_b32 s{S_T}, s{S_T}, 3')
        a(f's_mul_i32 s{S_T}, s{S_T}, 15360')
        a(f's_add_u32 s{S_T}, s{S_T}, {5120*(d-1)}')
        a(f'v_add_u32 v{VR3[d-1]}, s{S_T}, v{V_L16}')
    def wr3(tt):
        for dl in range(5):
            a(f'ds_write_b128 v{V_W3}, {vr(O3+4*(5*tt+dl),4)} offset:{5120*(tt-1)+1024*dl}')
    for kk in range(6):
        need = vm.n_after(('P', kk))
        a(f's_waitcnt vmcnt({need})' + (' lgkmcnt(5)' if kk == 4 else ' lgkmcnt(0)' if kk == 5 else ''))
        for tt in ((0, 1, 2, 3) if kk < 5 else (1, 2, 3, 0)):
            for dl in range(5):
                c = vr(O3 + 4 * (5 * tt + dl), 4)
                a(f'v_mfma_f32_16x16x32_bf16 {c}, {vr(WOS[kk&3]+4*dl,4)}, {vr(PFS[kk%NPS]+4*tt,4)}, {c if kk else 0}')
            if kk == 5 and tt != 1: wr3((tt - 1) & 3)
        if kk + 3 < 6: run_units(pld(kk + 3))
        if kk + 4 < 6:
            for dl in range(5):
                a(f'ds_read_b128 {vr(WOS[kk&3]+4*dl,4)}, v{V_W3} offset:{5120*kk+1024*dl}')
    stamp(a, 14)
    if not opt.get('no_side'):
        a(f's_cmp_eq_u32 s{S_KZ}, 0')
        a('s_cbranch_scc1 L_pa_ok')
        poll(a, 'L_pa', [(V_PL0, '0'), (V_PL1, '0')], 20, S_CNT)
        at_loads()
        a.lab('L_pa_ok')
    a('s_waitcnt vmcnt(0)')
    a(f'v_mov_b32 v{GT+2}, v{GT+1}')
    a(f'v_mov_b32 v{GT+3}, v{GT+1}')
    a(f'v_mov_b32 v{GT+1}, v{GT}')
    a(f'ds_write_b128 v{V_AW}, {vr(ATR[0],4)}')
    a(f'ds_write_b128 v{V_AW}, {vr(ATR[1],4)} offset:1024')
    a(f'ds_write_b128 v{V_AW+1}, {vr(ATR[2],4)}')
    a('s_waitcnt lgkmcnt(0)')
    a('s_barrier')
    AV = 104
    for dl in range(5):
        for j in range(3):
            a(f'ds_read_b128 {vr(O3+4*(5*(j+1)+dl),4)}, v{VR3[j]} offset:{1024*dl}')
        a(f'ds_read_b64_tr_b16 {vr(AV+2*dl,2)}, v{V_ATR} offset:{2048*dl}')
    RQ = 116
    for dl in range(5):
        a(f's_waitcnt lgkmcnt({min(15, 4*(4-dl))})')
        T = [V_T, V_T + 4]
        def both(f):
            for hh in range(2): a(f(O3 + 4 * dl + 2 * hh, T[hh], AV + 2 * dl + hh, hh))
        both(lambda c, t, av, hh: f'v_pk_add_f32 {vr(c,2)}, {vr(c,2)}, {vr(c+20,2)}')
        both(lambda c, t, av, hh: f'v_pk_add_f32 {vr(c+40,2)}, {vr(c+40,2)}, {vr(c+60,2)}')
        both(lambda c, t, av, hh: f'v_pk_add_f32 {vr(c,2)}, {vr(c,2)}, {vr(c+40,2)}')
        both(lambda c, t, av, hh: f'v_cvt_pk_bf16_f32 v{t+2}, v{c}, v{c+1}')
        both(lambda c, t, av, hh: f'v_lshlrev_b32 v{t}, 16, v{av}')
        both(lambda c, t, av, hh: f'v_and_b32 v{t+1}, 0xffff0000, v{av}')
        both(lambda c, t, av, hh: f'v_lshlrev_b32 v{c}, 16, v{t+2}')
        both(lambda c, t, av, hh: f'v_and_b32 v{c+1}, 0xffff0000, v{t+2}')
        both(lambda c, t, av, hh: f'v_pk_mul_f32 {vr(t,2)}, {vr(t,2)}, {vr(GT,2)}')
        both(lambda c, t, av, hh: f'v_pk_mul_f32 {vr(c,2)}, {vr(c,2)}, {vr(GT+2,2)}')
        both(lambda c, t, av, hh: f'v_cvt_pk_bf16_f32 v{t+2}, v{t}, v{t+1}')
        both(lambda c, t, av, hh: f'v_cvt_pk_bf16_f32 v{t+3}, v{c}, v{c+1}')
        both(lambda c, t, av, hh: f'v_lshlrev_b32 v{t}, 16, v{t+2}')
        both(lambda c, t, av, hh: f'v_and_b32 v{t+1}, 0xffff0000, v{t+2}')
        both(lambda c, t, av, hh: f'v_lshlrev_b32 v{c}, 16, v{t+3}')
        both(lambda c, t, av, hh: f'v_and_b32 v{c+1}, 0xffff0000, v{t+3}')
        both(lambda c, t, av, hh: f'v_pk_add_f32 {vr(t,2)}, {vr(t,2)}, {vr(c,2)}')
        both(lambda c, t, av, hh: f'v_cvt_pk_bf16_f32 v{RQ+2*dl+hh}, v{t}, v{t+1}')
        if dl in (1, 3):
            q = RQ + 2 * (dl - 1)
            a(f'v_permlane16_swap_b32 v{q}, v{q+2}')
            a(f'v_permlane16_swap_b32 v{q+1}, v{q+3}')
            a(f'buffer_store_dwordx4 {vr(q,4)}, v{V_O1}, {srd(SRD_OUT)}, 0 offen offset:{32*(dl-1)} {OC}')
        if dl == 4:
            a(f'buffer_store_dwordx2 {vr(RQ+8,2)}, v{V_O2}, {srd(SRD_OUT)}, 0 offen {OC}')
    if _g.PROF['on']:
        a('s_waitcnt vmcnt(0)')
    stamp(a, 15)
    stamp_dump(a, 16)
    a('s_endpgm')

def poll1(a, name, vaddrs, vtmp, scount):
    a(f's_cmp_lg_u32 s{S_W}, 0')
    a(f's_cbranch_scc1 {name}_out')
    va = vaddrs[0]
    a(f's_mov_b32 s{scount}, {SPIN_MAX}')
    a(f'buffer_load_dword v{vtmp}, v{va}, {srd(SRD_WS)}, 0 offen sc1')
    a.lab(f'{name}_spin')
    a(f'buffer_load_dword v{vtmp+1}, v{va}, {srd(SRD_WS)}, 0 offen sc1')
    a('s_waitcnt vmcnt(1)')
    a(f'v_cmp_ne_u32 vcc, s{S_TAG}, v{vtmp}')
    a(f's_cbranch_vccz {name}_done')
    a(f'buffer_load_dword v{vtmp}, v{va}, {srd(SRD_WS)}, 0 offen sc1')
    a('s_waitcnt vmcnt(1)')
    a(f'v_cmp_ne_u32 vcc, s{S_TAG}, v{vtmp+1}')
    a(f's_cbranch_vccz {name}_done')
    a(f's_sub_u32 s{scount}, s{scount}, 1')
    a(f's_cmp_lg_u32 s{scount}, 0')
    a(f's_cbranch_scc1 {name}_spin')
    a.lab(f'{name}_done')
    a.lab(f'{name}_out')
    a('s_barrier')

def e1_z2(a, opt, vm, k0):
    SS, QQ = ACC1, ACC1 + 8
    K0 = ACC1 + 16
    pf = opt.get('gpf', 0)
    if pf:
        a(f's_lshl_b32 s{S_T}, s{S_RB}, 18')
        a(f's_and_b32 s{S_T2}, s{S_CB}, 3')
        a(f's_lshl_b32 s{S_T2}, s{S_T2}, 16')
        a(f's_add_u32 s{S_T}, s{S_T}, s{S_T2}')
        a(f's_lshl_b32 s{S_T2}, s{S_W}, 14')
        a(f's_add_u32 s{S_T}, s{S_T}, s{S_T2}')
        a(f'v_lshlrev_b32 v{t0}, {7 if pf == 128 else 6}, v{V_L}')
        for i in range(16384 // (64 * pf)):
            a(f'buffer_load_dword v{ACC1+20+i}, v{t0}, {srd(SRD_WSP)}, s{S_T} offen')
            a(f's_add_u32 s{S_T}, s{S_T}, {64*pf}')
            vm.issue('pf', 1)
    a(f'v_mov_b32 v{K0}, {hx(k0)}')
    a(f'v_mov_b32 v{K0+1}, {hx(k0)}')
    first = {}
    for phi in range(3):
        for tau in range(2):
            cs = [ACC2 + 4 * (3 * tau + phi) + 2 * hh for hh in range(2)]
            def after(c, t):
                r = 4 * tau + (c - cs[0])
                L = [f'v_cvt_pk_bf16_f32 v{c}, v{t+2}, v{t+3}']
                if phi == 0:
                    L += [f'v_lshlrev_b32 v{SS+r}, 16, v{c}', f'v_and_b32 v{SS+r+1}, 0xffff0000, v{c}',
                          f'v_pk_mul_f32 {vr(QQ+r,2)}, {vr(SS+r,2)}, {vr(SS+r,2)}']
                else:
                    L += [f'v_lshlrev_b32 v{t}, 16, v{c}', f'v_and_b32 v{t+1}, 0xffff0000, v{c}',
                          f'v_pk_add_f32 {vr(SS+r,2)}, {vr(SS+r,2)}, {vr(t,2)}', f'v_pk_fma_f32 {vr(QQ+r,2)}, {vr(t,2)}, {vr(t,2)}, {vr(QQ+r,2)}']
                return L
            gelu2(a, cs, K0, after)
    for j in range(8):
        a(f'v_add_f32_dpp v{SS+j}, v{SS+j}, v{SS+j} row_ror:8 row_mask:0xf bank_mask:0x3')
    for j in range(8):
        a(f'v_add_f32_dpp v{SS+j}, v{QQ+j}, v{QQ+j} row_ror:8 row_mask:0xf bank_mask:0xc')
    for j in range(4):
        a(f'v_add_f32_dpp v{SS+j}, v{SS+j}, v{SS+j} row_half_mirror row_mask:0xf bank_mask:0x5')
    for j in range(4):
        a(f'v_add_f32_dpp v{SS+j}, v{SS+j+4}, v{SS+j+4} row_half_mirror row_mask:0xf bank_mask:0xa')
    a(f'v_and_b32 v{t0}, 15, v{V_L}')
    a(f'v_lshrrev_b32 v{t1}, 4, v{V_L}')
    a(f'v_and_b32 v{t2}, 3, v{V_L}')
    for qp in ('[3,2,1,0]', '[1,0,3,2]'):
        for j in range(4):
            a(f'v_add_f32_dpp v{SS+j}, v{SS+j}, v{SS+j} quad_perm:{qp} row_mask:0xf bank_mask:0xf')
    GQ = V_T + 4
    a(f'v_cmp_eq_u32 vcc, 1, v{t2}')
    a(f'v_cmp_eq_u32 s[84:85], 2, v{t2}')
    a(f'v_cmp_eq_u32 {sp(S_TMP2)}, 3, v{t2}')
    a(f'v_lshl_add_u32 v{t2}, v{t0}, 2, v{t1}')
    a(f'v_cndmask_b32 v{GQ}, v{SS}, v{SS+1}, vcc')
    a(f'v_cndmask_b32 v{GQ}, v{GQ}, v{SS+2}, s[84:85]')
    a(f'v_cndmask_b32 v{GQ}, v{GQ}, v{SS+3}, {sp(S_TMP2)}')
    a(f'v_mov_b32 v{GQ+2}, s{S_TAG}')
    a(f'v_mov_b32 v{GQ+3}, s{S_TAG}')
    a(f'v_mov_b32_dpp v{GQ+1}, v{GQ} row_ror:8 row_mask:0xf bank_mask:0xf')
    a(f's_lshl_b32 s{S_T}, s{S_WI}, 5')
    a(f'v_add_u32 v{t2}, s{S_T}, v{t2}')
    a(f'v_lshlrev_b32 v{t2}, 8, v{t2}')
    a(f's_lshl_b32 s{S_T}, s{S_RB}, 14')
    a(f's_lshl_b32 s{S_T2}, s{S_CB}, 5')
    a(f's_add_u32 s{S_T}, s{S_T}, s{S_T2}')
    a(f's_lshl_b32 s{S_T2}, s{S_WJ}, 4')
    a(f's_add_u32 s{S_T}, s{S_T}, s{S_T2}')
    a(f's_add_u32 s{S_T}, s{S_T}, {WS_ST}')
    a(f'v_cmp_gt_u32 vcc, 8, v{t0}')
    a(f's_and_saveexec_b64 {sp(S_TMP2)}, vcc')
    a(f'buffer_store_dwordx4 {vr(GQ,4)}, v{t2}, {srd(SRD_WS)}, s{S_T} offen sc1')
    a(f's_mov_b64 exec, {sp(S_TMP2)}')
    vm.issue('st', 1)
    if pf:
        a(f's_waitcnt vmcnt({vm.n_after("pf")})')

V_SA = 13
def e2_loads(a, vm):
    a(f'v_lshlrev_b32 v{V_SA}, 4, v{V_L}')
    a(f's_lshl_b32 s{S_T}, s{S_RB}, 14')
    a(f's_lshl_b32 s{S_T2}, s{S_WI}, 13')
    a(f's_add_u32 s{S_T}, s{S_T}, s{S_T2}')
    a(f's_add_u32 s{S_T}, s{S_T}, {WS_ST}')
    a(f'v_add_u32 v{V_SA}, s{S_T}, v{V_SA}')
    st_loads(a)
    vm.issue('stl', 8)

def st_loads(a):
    a(f's_movk_i32 s{S_T2}, 4096')
    for k in range(8):
        a(f'buffer_load_dwordx4 {vr(ST+4*k,4)}, v{V_SA}, {srd(SRD_WS)}, {"0" if k < 4 else "s%d" % S_T2} offen offset:{1024*(k&3)} sc1')

def e2_layernorm(a, opt, vm):
    a('; ---- LayerNorm hand-off')
    a(f's_mov_b32 s{S_CNT}, {SPIN_MAX}')
    a(f's_waitcnt vmcnt({vm.n_after("stl")})')
    a.lab('L_ln_check')
    a(f'v_and_b32 v{t0}, v{ST+2}, v{ST+3}')
    a(f'v_or_b32 v{t1}, v{ST+2}, v{ST+3}')
    for k in range(1, 8):
        a(f'v_and_b32 v{t0}, v{t0}, v{ST+4*k+2}')
        a(f'v_or3_b32 v{t1}, v{t1}, v{ST+4*k+2}, v{ST+4*k+3}')
        a(f'v_and_b32 v{t0}, v{t0}, v{ST+4*k+3}')
    a(f'v_cmp_ne_u32 vcc, s{S_TAG}, v{t0}')
    a(f'v_cmp_ne_u32 s[84:85], s{S_TAG}, v{t1}')
    a('s_or_b64 vcc, vcc, s[84:85]')
    a('s_cbranch_vccz L_ln_done')
    st_loads(a)
    a('s_waitcnt vmcnt(0)')
    a(f's_sub_u32 s{S_CNT}, s{S_CNT}, 1')
    a(f's_cmp_lg_u32 s{S_CNT}, 0')
    a('s_cbranch_scc1 L_ln_check')
    a.lab('L_ln_done')
    S_ = lambda k: ST + 4 * k
    Q_ = lambda k: ST + 4 * k + 1
    for k in range(8):
        a(f'v_add_f32_dpp v{S_(k)}, v{S_(k)}, v{S_(k)} row_ror:8 row_mask:0xf bank_mask:0x3')
    for k in range(8):
        a(f'v_add_f32_dpp v{S_(k)}, v{Q_(k)}, v{Q_(k)} row_ror:8 row_mask:0xf bank_mask:0xc')
    for k in range(4):
        a(f'v_add_f32_dpp v{S_(k)}, v{S_(k)}, v{S_(k)} row_half_mirror row_mask:0xf bank_mask:0x5')
    for k in range(4):
        a(f'v_add_f32_dpp v{S_(k)}, v{S_(k+4)}, v{S_(k+4)} row_half_mirror row_mask:0xf bank_mask:0xa')
    a(f'v_and_b32 v{t0}, 15, v{V_L}')
    a(f'v_lshrrev_b32 v{t1}, 4, v{V_L}')
    a(f'v_and_b32 v{t2}, 3, v{V_L}')
    for qp in ('[3,2,1,0]', '[1,0,3,2]'):
        for k in range(4):
            a(f'v_add_f32_dpp v{S_(k)}, v{S_(k)}, v{S_(k)} quad_perm:{qp} row_mask:0xf bank_mask:0xf')
    a(f'v_cmp_eq_u32 vcc, 1, v{t2}')
    a(f'v_cmp_eq_u32 s[84:85], 2, v{t2}')
    a(f'v_cmp_eq_u32 {sp(S_TMP2)}, 3, v{t2}')
    a(f'v_mul_u32_u24 v{t1}, 96, v{t1}')
    a(f'v_cndmask_b32 v{ST}, v{ST}, v{S_(1)}, vcc')
    a(f'v_cndmask_b32 v{ST}, v{ST}, v{S_(2)}, s[84:85]')
    a(f'v_cndmask_b32 v{ST}, v{ST}, v{S_(3)}, {sp(S_TMP2)}')
    a(f'v_mov_b32_dpp v{ST+1}, v{ST} row_ror:8 row_mask:0xf bank_mask:0xf')
    a(f'v_mul_f32 v{ST}, {hx(1/768)}, v{ST}')
    a(f'v_mul_f32 v{ST+1}, {hx(1/768)}, v{ST+1}')
    a(f'v_fma_f32 v{ST+1}, -v{ST}, v{ST}, v{ST+1}')
    a(f'v_max_f32 v{ST+1}, 0, v{ST+1}')
    a(f'v_cvt_pk_bf16_f32 v{ST+2}, v{ST}, v{ST+1}')
    a(f'v_lshlrev_b32 v{ST}, 16, v{ST+2}')
    a(f'v_and_b32 v{ST+1}, 0xffff0000, v{ST+2}')
    a(f'v_add_f32 v{ST+1}, {hx(1e-5)}, v{ST+1}')
    a(f'v_add_u32 v{t0}, v{t0}, v{t1}')
    a(f'v_cvt_pk_bf16_f32 v{ST+1}, v{ST+1}, v{ST+1}')
    a(f'v_and_b32 v{ST+1}, 0xffff0000, v{ST+1}')
    a(f'v_sqrt_f32 v{ST+1}, v{ST+1}')
    for j in range(8):
        a(f'v_mov_b32_dpp v{MM+j}, v{ST} row_newbcast:{j} row_mask:0xf bank_mask:0xf')
    a(f'v_cvt_pk_bf16_f32 v{ST+1}, v{ST+1}, v{ST+1}')
    a(f'v_and_b32 v{ST+1}, 0xffff0000, v{ST+1}')
    a(f'v_rcp_f32 v{ST+1}, v{ST+1}')
    a(f's_mul_i32 s{S_T}, s{S_WI}, 384')
    a(f's_mul_i32 s{S_T2}, s{S_WJ}, 48')
    a(f's_add_u32 s{S_T}, s{S_T}, s{S_T2}')
    a(f'v_add_u32 v{t0}, s{S_T}, v{t0}')
    a(f'v_lshlrev_b32 v{V_US}, 4, v{t0}')
    for j in range(8):
        a(f'v_mov_b32_dpp v{RR+j}, v{ST+1} row_newbcast:{j} row_mask:0xf bank_mask:0xf')
    a(f's_lshl_b32 s{S_T}, s{S_CB}, 5')
    a(f's_add_u32 s{S_T}, s{S_T}, s{S_RB}')
    a(f's_lshl_b32 s{S_FZA}, s{S_T}, 2')
    a(f's_add_u32 s{S_FZA}, s{S_FZA}, {WS_FZ}')
    a(f's_mul_i32 s{S_T}, s{S_T}, 12288')
    a(f's_add_u32 s{S_T}, s{S_T}, {WS_Z}')
    for phi in range(3):
        for tau in range(2):
            T = [V_T, V_T + 4]
            def both(f):
                for hh in range(2): a(f(ACC2 + 4 * (3 * tau + phi) + 2 * hh, T[hh], 4 * tau + 2 * hh, hh))
            both(lambda c, t, r, hh: f'v_lshlrev_b32 v{t}, 16, v{c}')
            both(lambda c, t, r, hh: f'v_and_b32 v{t+1}, 0xffff0000, v{c}')
            both(lambda c, t, r, hh: f'v_pk_add_f32 {vr(t,2)}, {vr(t,2)}, {vr(MM+r,2)} neg_lo:[0,1] neg_hi:[0,1]')
            both(lambda c, t, r, hh: f'v_cvt_pk_bf16_f32 v{t+2}, v{t}, v{t+1}')
            both(lambda c, t, r, hh: f'v_lshlrev_b32 v{t}, 16, v{t+2}')
            both(lambda c, t, r, hh: f'v_and_b32 v{t+1}, 0xffff0000, v{t+2}')
            both(lambda c, t, r, hh: f'v_pk_mul_f32 {vr(t,2)}, {vr(t,2)}, {vr(RR+r,2)}')
            both(lambda c, t, r, hh: f'v_cvt_pk_bf16_f32 v{ZQ+4*phi+2*tau+hh}, v{t}, v{t+1}')
        a(f'buffer_store_dwordx4 {vr(ZQ+4*phi,4)}, v{V_US}, {srd(SRD_WS)}, s{S_T} offen offset:{256*phi} sc1')
    vm.issue('z', 3)
```

```python
import numpy as np
from gen import *
import gen as _g
_stamp0 = stamp
PST = {'start': None}
def stamp(a, i, base=18):
    if PST['start'] is not None and i not in (0, 15): return
    if PST.get('clk') and _g.PROF['on']:
        m = {1: 3, 2: 4, 9: 5, 10: 6, 0: 7, 15: 8}
        if i in (3, 4, 5, 6, 7, 8): return
        if i in m:
            a('s_memtime s[14:15]')
            a('s_waitcnt lgkmcnt(0)')
            a(f's_mov_b32 s{base+m[i]}, s14')
    _stamp0(a, i, base)
def sstamp(a, stage):
    if PST['start'] is None: return
    k = stage - PST['start']
    if 0 <= k < 14: _stamp0(a, 1 + k)

SLOT = 20480
BOFF = 8192
S_RB, S_CB, S_WI, S_WJ = 82, 83, 86, 87
S_KC, S_AO, S_BO, S_T, S_T2, S_CNT = 88, 89, 90, 91, 92, 93
S_ABASE, S_BBASE = 94, 95
S_M_A, S_M_B, S_M_C = 3, 4, 5
S_K1 = 6
S_ONE = 8
S_KC0 = 10
S_FZA = 11
S_TMP2 = 12
S_WOB = 76
S_ROT = 78
CTR = 19456
V_L = 1
V_AD = 2
V_BD = 4
V_AR = 7
V_BR = 11
V_UR, V_US = 13, 14
V_T = 16
ACC2, ACC1, WF, XF = 24, 48, 72, 96
t0, t1, t2, t3 = V_T, V_T + 1, V_T + 2, V_T + 3
ST, MM, RR, ZQ, BSP, K0V = 96, 112, 120, 128, 140, 142
LN = 3 * SLOT

class VM:
    def __init__(self): self.ops = []
    def issue(self, tag, n=1): self.ops += [tag] * n
    def n_after(self, tag):
        idx = max(i for i, t in enumerate(self.ops) if t == tag)
        return len(self.ops) - 1 - idx

def gelu2(a, cs, k0v, after):
    T = [V_T, V_T + 4]
    def both(f):
        for c, t in zip(cs, T): a(f(c, t))
    both(lambda c, t: f'v_cvt_pk_bf16_f32 v{t+2}, v{c}, v{c+1}')
    both(lambda c, t: f'v_lshlrev_b32 v{t}, 16, v{t+2}')
    both(lambda c, t: f'v_and_b32 v{t+1}, 0xffff0000, v{t+2}')
    both(lambda c, t: f'v_pk_mul_f32 {vr(t+2,2)}, {vr(t,2)}, {vr(t,2)}')
    both(lambda c, t: f'v_pk_fma_f32 {vr(t+2,2)}, {vr(t+2,2)}, {sp(S_K1)}, {vr(k0v,2)}')
    both(lambda c, t: f'v_pk_mul_f32 {vr(t+2,2)}, {vr(t+2,2)}, {vr(t,2)}')
    both(lambda c, t: f'v_exp_f32 v{t+2}, v{t+2}')
    both(lambda c, t: f'v_exp_f32 v{t+3}, v{t+3}')
    both(lambda c, t: f'v_pk_add_f32 {vr(t+2,2)}, {vr(t+2,2)}, {sp(S_ONE)}')
    both(lambda c, t: f'v_rcp_f32 v{t+2}, v{t+2}')
    both(lambda c, t: f'v_rcp_f32 v{t+3}, v{t+3}')
    both(lambda c, t: f'v_pk_mul_f32 {vr(t+2,2)}, {vr(t+2,2)}, {vr(t,2)}')
    steps = [after(c, t) for c, t in zip(cs, T)]
    for x, y in zip(*steps):
        a(x); a(y)

def gelu_packed(regs, k0v):
    T = [V_T, V_T + 4]
    L = []
    def both(f):
        for c, t in zip(regs, T): L.append(f(c, t))
    both(lambda c, t: f'v_lshlrev_b32 v{t}, 16, v{c}')
    both(lambda c, t: f'v_and_b32 v{t+1}, 0xffff0000, v{c}')
    both(lambda c, t: f'v_pk_mul_f32 {vr(t+2,2)}, {vr(t,2)}, {vr(t,2)}')
    both(lambda c, t: f'v_pk_fma_f32 {vr(t+2,2)}, {vr(t+2,2)}, {sp(S_K1)}, {vr(k0v,2)}')
    both(lambda c, t: f'v_pk_mul_f32 {vr(t+2,2)}, {vr(t+2,2)}, {vr(t,2)}')
    both(lambda c, t: f'v_exp_f32 v{t+2}, v{t+2}')
    both(lambda c, t: f'v_exp_f32 v{t+3}, v{t+3}')
    both(lambda c, t: f'v_pk_add_f32 {vr(t+2,2)}, {vr(t+2,2)}, {sp(S_ONE)}')
    both(lambda c, t: f'v_rcp_f32 v{t+2}, v{t+2}')
    both(lambda c, t: f'v_rcp_f32 v{t+3}, v{t+3}')
    both(lambda c, t: f'v_pk_mul_f32 {vr(t+2,2)}, {vr(t+2,2)}, {vr(t,2)}')
    both(lambda c, t: f'v_cvt_pk_bf16_f32 v{c}, v{t+2}, v{t+3}')
    return L

def flag_store(a, sreg, vtmp):
    a(f'v_mov_b32 v{vtmp}, s{S_TAG}')
    a(f's_mov_b64 {sp(S_TMP2)}, exec')
    a('s_mov_b64 exec, 1')
    a(f'buffer_store_dword v{vtmp}, off, {srd(SRD_WS)}, s{sreg} sc1')
    a(f's_mov_b64 exec, {sp(S_TMP2)}')

def gemm_role(a, opt):
    vm = VM()
    PST['start'] = opt.get('pst')
    PST['clk'] = opt.get('clk')
    stop = opt.get('stop', 99)
    OC = {0: '', 1: 'sc1', 2: 'nt', 3: 'sc0 sc1'}[opt.get('oc', 0)]
    LNS = opt.get('lns', 16)
    LDS_ = opt.get('lds', 15)
    FZS = opt.get('fzs', 1)
    assert LNS + FZS <= 19 and 13 <= LDS_ < LNS
    c0 = np.sqrt(2 / np.pi)
    k0 = -2 * c0 * LOG2E; k1 = k0 * 0.044715
    a(f's_setprio {opt.get("prio", 2)}')
    stamp(a, 0)
    if opt.get('tk', 0):
        CT = 20480 - 64
        a(f's_cmp_lg_u32 s{S_W}, 0')
        a('s_cbranch_scc1 L_tk_wait')
        mk_srd(a, SRD_X, P_DBG, 256)
        a(f's_getreg_b32 s{S_T}, hwreg(HW_REG_XCC_ID, 0, 3)')
        a(f's_mov_b64 {sp(S_TMP2)}, exec')
        a('s_mov_b64 exec, 1')
        a(f's_mov_b32 s{S_KC}, 8')
        a.lab('L_tk_try')
        a('v_mov_b32 v2, 1')
        a(f's_lshl_b32 s{S_CNT}, s{S_T}, 5')
        a(f'buffer_atomic_add v2, off, {srd(SRD_X)}, s{S_CNT} sc0 sc1')
        a('s_waitcnt vmcnt(0)')
        a(f'v_readfirstlane_b32 s{S_T2}, v2')
        a(f's_cmp_lt_u32 s{S_T2}, 32')
        a('s_cbranch_scc1 L_tk_got')
        a(f's_add_u32 s{S_T}, s{S_T}, 1')
        a(f's_and_b32 s{S_T}, s{S_T}, 7')
        a(f's_sub_u32 s{S_KC}, s{S_KC}, 1')
        a(f's_cmp_lg_u32 s{S_KC}, 0')
        a('s_cbranch_scc1 L_tk_try')
        a.lab('L_tk_got')
        a(f's_lshl_b32 s{S_T2}, s{S_T2}, 3')
        a(f's_or_b32 s{S_T2}, s{S_T2}, s{S_T}')
        a(f'v_mov_b32 v2, s{S_T2}')
        a(f'v_mov_b32 v3, {CT}')
        a('ds_write_b32 v3, v2')
        a('s_waitcnt lgkmcnt(0)')
        a(f's_mov_b64 exec, {sp(S_TMP2)}')
        a.lab('L_tk_wait')
        a('s_barrier')
        a(f'v_mov_b32 v3, {CT}')
        a('ds_read_b32 v2, v3')
        a('s_waitcnt lgkmcnt(0)')
        a(f'v_readfirstlane_b32 s{S_CNT}, v2')
        a('s_barrier')
        a(f's_and_b32 s{S_T}, s{S_CNT}, 7')
        a(f's_lshr_b32 s{S_T2}, s{S_CNT}, 3')
        a(f's_and_b32 s{S_T2}, s{S_T2}, 31')
    else:
        a(f's_and_b32 s{S_T}, s2, 7')
        a(f's_lshr_b32 s{S_T2}, s2, 3')
    a(f's_lshr_b32 s{S_RB}, s{S_T}, 1')
    a(f's_lshl_b32 s{S_RB}, s{S_RB}, 3')
    a(f's_lshr_b32 s{S_CNT}, s{S_T2}, 2')
    a(f's_add_u32 s{S_RB}, s{S_RB}, s{S_CNT}')
    a(f's_and_b32 s{S_CB}, s{S_T}, 1')
    a(f's_lshl_b32 s{S_CB}, s{S_CB}, 2')
    a(f's_and_b32 s{S_CNT}, s{S_T2}, 3')
    a(f's_add_u32 s{S_CB}, s{S_CB}, s{S_CNT}')
    a(f's_lshr_b32 s{S_WI}, s{S_W}, 1')
    a(f's_and_b32 s{S_WJ}, s{S_W}, 1')
    mk_srd(a, SRD_X, P_U, 2048 * 640 * 2)
    mk_srd(a, SRD_WIN, P_WIN, 640 * 1536 * 2)
    a(f's_mul_i32 s{S_KC}, s{S_CB}, 3')
    a(f's_add_u32 s{S_KC}, s{S_KC}, s{S_RB}')
    a(f's_mul_i32 s{S_T}, s{S_KC}, 205')
    a(f's_lshr_b32 s{S_T}, s{S_T}, 11')
    a(f's_mul_i32 s{S_T}, s{S_T}, 10')
    a(f's_sub_u32 s{S_KC}, s{S_KC}, s{S_T}')
    if opt.get('rot1', 0) == 3: a(f's_mov_b32 s{S_KC}, s{S_CB}')
    a(f's_mov_b32 s{S_KC0}, s{S_KC}')
    if opt.get('rot1') == 1: a(f's_mov_b32 s{S_KC}, 0')
    if opt.get('rot1') == 2:
        a(f's_lshr_b32 s{S_KC}, s{S_RB}, 3')
    a(f's_lshl_b32 s{S_M_A}, s{S_W}, 11')
    a(f's_mul_i32 s{S_M_B}, s{S_W}, 3072')
    a(f's_add_u32 s{S_M_B}, s{S_M_B}, {BOFF}')
    a(f's_mul_i32 s{S_ABASE}, s{S_RB}, {64*1280}')
    a(f's_mul_i32 s{S_BBASE}, s{S_CB}, 192')
    a(f's_add_u32 s{S_BBASE}, s{S_BBASE}, 1536')
    def row_dma_offsets(pitch):
        a(f'v_lshrrev_b32 v{t0}, 3, v{V_L}')
        a(f'v_and_b32 v{t1}, 7, v{V_L}')
        a(f'v_bfe_u32 v{t2}, v{V_L}, 4, 1')
        a(f'v_xor_b32 v{t1}, v{t1}, v{t2}')
        a(f's_lshl_b32 s{S_T}, s{S_W}, 4')
        a(f'v_add_u32 v{t0}, s{S_T}, v{t0}')
        a(f'v_mul_u32_u24 v{t0}, {pitch}, v{t0}')
        a(f's_lshl_b32 s{S_T}, s{S_WJ}, 2')
        a(f'v_xor_b32 v{t1}, s{S_T}, v{t1}')
        a(f'v_lshl_add_u32 v{V_AD}, v{t1}, 4, v{t0}')
        a(f'v_xor_b32 v{t1}, 2, v{t1}')
        a(f'v_lshl_add_u32 v{V_AD+1}, v{t1}, 4, v{t0}')
        a(f'v_add_u32 v{V_AD+1}, {8*pitch-1024}, v{V_AD+1}')
    row_dma_offsets(1280)
    def run_units(units, track=True):
        for (lines, tag) in units:
            for l in lines: a(l)
            if track: vm.issue(tag, 1)
    def dma_p1_A(stage, kc=None):
        slot = (stage & 3) * SLOT
        return [([f's_lshl_b32 s{S_AO}, s{S_KC}, 7', f's_add_u32 s{S_AO}, s{S_AO}, s{S_ABASE}', f's_add_u32 m0, s{S_M_A}, {slot}',
                  f'buffer_load_dwordx4 v{V_AD}, {srd(SRD_X)}, s{S_AO} offen lds'], ('A', stage)),
                ([f'buffer_load_dwordx4 v{V_AD+1}, {srd(SRD_X)}, s{S_AO} offen offset:1024 lds'], ('A', stage))]
    def dma_p1_B(stage):
        slot = (stage & 3) * SLOT
        U = []
        pre = [f's_mul_i32 s{S_BO}, s{S_KC}, {64*3072}', f's_add_u32 s{S_BO}, s{S_BO}, s{S_BBASE}', f's_add_u32 m0, s{S_M_B}, {slot}', f's_add_u32 s{S_KC}, s{S_KC}, 1']
        for j in range(3):
            L = (pre if j == 0 else []) + [f'buffer_load_dwordx4 v{V_BD+j}, {srd(SRD_WIN)}, s{S_BO} offen offset:{1024*j} lds']
            if j == 2:
                L += [f's_cmp_eq_u32 s{S_KC}, 10', f's_cselect_b32 s{S_KC}, 0, s{S_KC}']
                if stage == 9: L += [f's_sub_u32 s{S_BBASE}, s{S_BBASE}, 1536']
            U.append((L, ('B', stage)))
        return U
    def dma_p1(stage): return (dma_p1_A(stage) if stage < 10 else []) + dma_p1_B(stage)
    vm.issue('epoch')
    run_units(dma_p1_A(0))
    a(f's_mul_i32 s{S_T}, s{S_W}, 192')
    for j in range(3):
        a(f'v_add_u32 v{t0}, s{S_T}, v{V_L}')
        if j: a(f'v_add_u32 v{t0}, {64*j}, v{t0}')
        a(f'v_mul_u32_u24 v{t1}, 43691, v{t0}')
        a(f'v_lshrrev_b32 v{t1}, 19, v{t1}')
        a(f'v_mul_u32_u24 v{t2}, 12, v{t1}')
        a(f'v_sub_u32 v{t0}, v{t0}, v{t2}')
        a(f'v_bfe_u32 v{t2}, v{t1}, 3, 1')
        a(f'v_mad_u32_u24 v{t0}, v{t2}, 6, v{t0}')
        a(f'v_subrev_u32 v{t2}, 12, v{t0}')
        a(f'v_min_u32 v{t0}, v{t0}, v{t2}')
        a(f'v_mul_u32_u24 v{t1}, 3072, v{t1}')
        a(f'v_lshl_add_u32 v{V_BD+j}, v{t0}, 4, v{t1}')
        if j: a(f'v_subrev_u32 v{V_BD+j}, {1024*j}, v{V_BD+j}')
    run_units(dma_p1_B(0))
    for s in range(1, 4): run_units(dma_p1(s))
    mk_srd(a, SRD_WSP, P_WSP, 2048 * 2048 * 2)
    mk_srd(a, SRD_OUT, P_OUT, 2048 * 640 * 2)
    PAT7 = ([-1, -1, 9, 9], [-1, 9, 9])
    PAT = {5: ([0, 2, 4], [1, 3]), 3: ([1, 4], [2]), 2: ([1], [2]), 0: ([], [])}
    if opt.get('pat') == 1: PAT = {5: ([9, 9, 9], [9, 9]), 3: ([9, 9], [9]), 2: ([9], [9]), 0: ([], [])}
    if opt.get('pat') == 2: PAT = {5: ([9, 9, 9, 9, 9], []), 3: ([9, 9, 9], []), 2: ([9, 9], []), 0: ([], [])}
    if opt.get('pat', 3) == 3: PAT = {5: ([-1, -1, 9], [-1, 9]), 3: ([-1, 9], [9]), 2: ([9], [9]), 0: ([], [])}
    def with_units(mf_lines, pos_units, track=True):
        for (p, u) in pos_units:
            if p < 0: run_units([u], track)
        for i, l in enumerate(mf_lines):
            a(l)
            for (p, u) in pos_units:
                if p == i: run_units([u], track)
        for (p, u) in pos_units:
            if p >= len(mf_lines): run_units([u], track)
    def split_units(U):
        first, second = PAT[len(U)] if len(U) in PAT else PAT7 if len(U) == 7 else ([-1, 9], [-1, 9])
        return list(zip(first, U[:len(first)])), list(zip(second, U[len(first):]))
    def lane_mq():
        a(f'v_and_b32 v{t0}, 15, v{V_L}')
        a(f'v_lshrrev_b32 v{t1}, 4, v{V_L}')
    lane_mq()
    a(f'v_lshrrev_b32 v{t2}, 2, v{t0}')
    a(f'v_lshlrev_b32 v{t3}, 3, v{t2}')
    a(f'v_and_b32 v{V_AR}, 3, v{t0}')
    a(f'v_add_u32 v{t3}, v{t3}, v{V_AR}')
    a(f's_lshl_b32 s{S_T}, s{S_WI}, 5')
    a(f'v_add_u32 v{t3}, s{S_T}, v{t3}')
    a(f'v_lshlrev_b32 v{t3}, 7, v{t3}')
    a(f'v_lshlrev_b32 v{t2}, 1, v{t2}')
    a(f'v_bfe_u32 v{V_AR}, v{t0}, 1, 1')
    a(f'v_or_b32 v{t2}, v{t2}, v{V_AR}')
    a(f'v_xor_b32 v{t2}, v{t2}, v{t1}')
    a(f'v_lshl_add_u32 v{V_AR}, v{t2}, 4, v{t3}')
    a(f'v_xor_b32 v{V_AR+1}, 64, v{V_AR}')
    a(f'v_add_u32 v{V_AR+2}, {2*SLOT}, v{V_AR}')
    a(f'v_add_u32 v{V_AR+3}, {2*SLOT}, v{V_AR+1}')
    a(f'v_lshrrev_b32 v{t2}, 2, v{t0}')
    a(f'v_lshl_add_u32 v{t2}, v{t1}, 3, v{t2}')
    a(f'v_mul_u32_u24 v{t2}, 192, v{t2}')
    a(f'v_and_b32 v{t3}, 1, v{t1}')
    a(f'v_xor_b32 v{t3}, s{S_WJ}, v{t3}')
    a(f'v_mul_u32_u24 v{t3}, 96, v{t3}')
    a(f'v_add_u32 v{t2}, v{t2}, v{t3}')
    a(f'v_and_b32 v{t3}, 3, v{V_L}')
    a(f'v_lshl_add_u32 v{V_BR}, v{t3}, 3, v{t2}')
    a(f'v_add_u32 v{V_BR}, {BOFF}, v{V_BR}')
    a(f'v_add_u32 v{V_BR+1}, {2*SLOT}, v{V_BR}')
    a(f'v_lshrrev_b32 v{t2}, 2, v{t0}')
    a(f'v_lshl_add_u32 v{t3}, v{t1}, 3, v{t2}')
    a(f'v_lshlrev_b32 v{V_UR}, 7, v{t3}')
    a(f'v_lshrrev_b32 v{t2}, 1, v{t2}')
    a(f'v_lshl_or_b32 v{t2}, v{t1}, 1, v{t2}')
    a(f'v_bfe_u32 v{t3}, v{V_L}, 1, 1')
    a(f's_lshl_b32 s{S_T}, s{S_W}, 1')
    a(f'v_add_u32 v{t3}, s{S_T}, v{t3}')
    a(f'v_xor_b32 v{t3}, v{t3}, v{t2}')
    a(f'v_lshl_add_u32 v{V_UR}, v{t3}, 4, v{V_UR}')
    a(f'v_and_b32 v{t3}, 1, v{V_L}')
    a(f'v_lshl_add_u32 v{V_UR}, v{t3}, 3, v{V_UR}')
    a(f's_lshl_b32 s{S_T}, s{S_W}, 4')
    a(f'v_add_u32 v{V_US}, s{S_T}, v{t0}')
    a(f'v_lshlrev_b32 v{V_US}, 12, v{V_US}')
    a(f'v_lshl_add_u32 v{V_US}, v{t1}, 4, v{V_US}')
    a(f's_mov_b32 s{S_K1}, {hx(k1)}')
    a(f's_mov_b32 s{S_K1+1}, {hx(k1)}')
    a(f's_mov_b32 s{S_ONE}, 1.0')
    a(f's_mov_b32 s{S_ONE+1}, 1.0')
    a(f's_waitcnt vmcnt({vm.n_after("epoch")})')
    a(f'v_readfirstlane_b32 s{S_TAG}, v127')
    a(f's_add_u32 s{S_TAG}, s{S_TAG}, 1')

    def ar(stage, ks): return V_AR + ks + (2 if (stage & 2) else 0)
    def so(stage): return (stage & 1) * SLOT
    def br(stage): return V_BR + (1 if (stage & 2) else 0)
    def reads_p1(stage, ks):
        n = 0
        if stage < 10:
            for tau in range(2):
                a(f'ds_read_b128 {vr(XF+16*stage+8*ks+4*tau,4)}, v{ar(stage,ks)} offset:{so(stage)+512*tau}'); n += 1
        for phi in range(3):
            for half in range(2):
                a(f'ds_read_b64_tr_b16 {vr(WF+12*ks+4*phi+2*half,2)}, v{br(stage)} offset:{so(stage)+6144*ks+768*half+32*phi}'); n += 1
        return n
    def mfma_p1(stage, ks):
        i = stage % 10
        L = []
        for tau in range(2):
            for phi in range(3):
                x = vr(XF + 16 * i + 8 * ks + 4 * tau, 4); w = vr(WF + 12 * ks + 4 * phi, 4)
                if stage < 10:
                    c = vr(ACC2 + 4 * (3 * tau + phi), 4)
                    L.append(f'v_mfma_f32_16x16x32_bf16 {c}, {x}, {w}, {c if (i or ks) else 0}')
                else:
                    c = vr(ACC1 + 4 * (2 * phi + tau), 4)
                    L.append(f'v_mfma_f32_16x16x32_bf16 {c}, {w}, {x}, {c if (i or ks) else 0}')
        return L
    def dma_p2_A(stage):
        slot = (stage & 3) * SLOT
        return [([f's_lshl_b32 s{S_AO}, s{S_KC}, 7', f's_add_u32 s{S_AO}, s{S_AO}, s{S_ABASE}', f's_add_u32 m0, s{S_M_A}, {slot}', f's_add_u32 s{S_KC}, s{S_KC}, 1',
                  f'buffer_load_dwordx4 v{V_AD}, {srd(SRD_WSP)}, s{S_AO} offen lds'], ('A', stage)),
                ([f'buffer_load_dwordx4 v{V_AD+1}, {srd(SRD_WSP)}, s{S_AO} offen offset:1024 lds', f's_and_b32 s{S_KC}, s{S_KC}, 31'], ('A', stage))]
    S_KZ = S_KC0
    def dma_p2_B(stage):
        slot = (stage & 3) * SLOT
        U = []
        for j in range(3):
            L = [f's_mul_i32 s{S_BO}, s{S_KZ}, 12288', f's_add_u32 s{S_BO}, s{S_BO}, s{S_BBASE}', f's_add_u32 m0, s{S_M_B}, {slot}', f's_add_u32 s{S_KZ}, s{S_KZ}, 1'] if j == 0 else []
            L += [f'buffer_load_dwordx4 v{V_BD}, {srd(SRD_WS)}, s{S_BO} offen offset:{1024*j} sc1 lds']
            if j == 2: L += [f's_and_b32 s{S_KZ}, s{S_KZ}, 31']
            U.append((L, ('B', stage)))
        return U
    def rot2(dst):
        m = opt.get('rot2', 1)
        if m == 1:
            a(f's_lshl_b32 s{dst}, s{S_CB}, 3')
            a(f's_add_u32 s{dst}, s{dst}, s{S_RB}')
        elif m == 2:
            a(f's_lshl_b32 s{dst}, s{S_CB}, 1')
            a(f's_add_u32 s{dst}, s{dst}, s{S_RB}')
            a(f's_lshl_b32 s{dst}, s{dst}, 2')
        elif m == 3:
            a(f's_lshl_b32 s{dst}, s{S_CB}, 1')
            a(f's_add_u32 s{dst}, s{dst}, s{S_RB}')
            a(f's_lshl_b32 s{dst}, s{dst}, 2')
            a(f's_lshr_b32 s{S_T2}, s{S_RB}, 3')
            a(f's_add_u32 s{dst}, s{dst}, s{S_T2}')
        elif m == 4:
            a(f's_mov_b32 s{dst}, s{S_RB}')
        elif m == 5:
            a(f's_and_b32 s{dst}, s{S_RB}, 24')
        a(f's_and_b32 s{dst}, s{dst}, 31')
    def ut_chunk(extra):
        if extra:
            a(f's_add_u32 s{S_T}, s{S_KC0}, {extra}')
            a(f's_sub_u32 s{S_T2}, s{S_T}, 10')
            a(f's_min_u32 s{S_T}, s{S_T}, s{S_T2}')
        else:
            a(f's_mov_b32 s{S_T}, s{S_KC0}')
    V_A4 = 144
    def wsp_setup():
        a(f'v_lshrrev_b32 v{t0}, 3, v{V_L}')
        a(f'v_lshlrev_b32 v{t0}, 12, v{t0}')
        a(f'v_and_b32 v{t1}, 7, v{V_L}')
        a(f'v_bfe_u32 v{t2}, v{V_L}, 4, 1')
        a(f'v_xor_b32 v{t1}, v{t1}, v{t2}')
        for j in range(4):
            a(f'v_xor_b32 v{t2}, {2*j}, v{t1}')
            a(f'v_lshl_add_u32 v{VA4(j)}, v{t2}, 4, v{t0}')
            if j: a(f'v_add_u32 v{VA4(j)}, {8*j*4096-1024*j}, v{VA4(j)}')
        a(f's_lshl_b32 s{S_ABASE}, s{S_RB}, 18')
        a(f's_mul_i32 s{S_M_A}, s{S_W}, {SLOT}')
        rot2(S_KA)
        a(f's_add_u32 s{S_KA}, s{S_KA}, s{S_W}')
    def VA4(j): return (V_AD, V_AD + 1, V_UR + 0 if False else 15, 0)[j]
    S_KA = S_M_C
    def adma(par):
        U = []
        for gq in range(8):
            L = []
            if gq == 0:
                L += [f's_and_b32 s{S_KA}, s{S_KA}, {3 if opt.get("x_same") else 31}', f's_lshl_b32 s{S_A2}, s{S_KA}, 7', f's_add_u32 s{S_A2}, s{S_A2}, s{S_ABASE}', f's_add_u32 s{S_KA}, s{S_KA}, 4']
            if gq == 4:
                L += [f's_add_u32 s{S_A2}, s{S_A2}, 131072']
            L += [f's_add_u32 m0, s{S_M_A}, {8192*par+4096*(gq>>2)}']
            L += [f'buffer_load_dwordx4 v{VA4(gq&3)}, {srd(SRD_WSP)}, s{S_A2} offen offset:{1024*(gq&3)} lds']
            U.append((L, ('A2', par)))
        return U
    S_A2 = 77
    U2 = 8 if opt.get('rot1', 0) == 3 else 4
    UT = V_T
    pend = []
    a(f's_waitcnt vmcnt({vm.n_after(("B", 0))})')
    a('s_barrier')
    stamp(a, 1)
    reads_p1(0, 0)
    for s in range(20):
        if s == 10:
            stamp(a, 2)
            e1_z2(a, opt, vm, k0)
            stamp(a, 3)
        if s == LDS_:
            e2_loads(a, vm)
        if s == LNS:
            stamp(a, 4)
            e2_layernorm(a, opt, vm)
            if opt.get('kd') == 2 or opt.get('cg') == 3:
                a(f's_cmp_lg_u32 s{S_W}, 3')
                a('s_cbranch_scc1 L_fs2_skip')
                a(f's_lshl_b32 s{S_T}, s2, 2')
                a(f's_add_u32 s{S_T}, s{S_T}, {WS_FS+1024}')
                flag_store(a, S_T, 18)
                a.lab('L_fs2_skip')
            stamp(a, 5)
        n1 = reads_p1(s, 1)
        ut = s in (0, U2)
        if ut:
            if s == U2:
                a(f's_cmp_ge_u32 s{S_CB}, 2')
                a('s_cbranch_scc1 L_ut2_skip')
            for h2 in range(2):
                for half in range(2):
                    a(f'ds_read_b64_tr_b16 {vr(UT+4*h2+2*half,2)}, v{V_UR} offset:{(s&3)*SLOT+4096*h2+512*half}')
            if s == U2:
                a.lab('L_ut2_skip')
        a(f's_waitcnt lgkmcnt({n1+4 if s == 0 else n1})')
        with_units(mfma_p1(s, 0), pend); pend = []
        if s < 19:
            n = vm.n_after(('B', s + 1))
            if s == LNS + FZS: n = min(n, vm.n_after('z'))
            a(f's_waitcnt vmcnt({n}) lgkmcnt(0)')
        elif s == LNS + FZS:
            a(f's_waitcnt vmcnt({vm.n_after("z")}) lgkmcnt(0)')
        else:
            a('s_waitcnt lgkmcnt(0)')
        a('s_barrier')
        sstamp(a, s)
        if ut:
            if s == U2:
                a(f's_cmp_ge_u32 s{S_CB}, 2')
                a('s_cbranch_scc1 L_us2_skip')
            ut_chunk(s)
            a(f's_lshl_b32 s{S_T}, s{S_T}, 18')
            a(f's_lshl_b32 s{S_T2}, s{S_RB}, 7')
            a(f's_add_u32 s{S_T}, s{S_T}, s{S_T2}')
            a(f's_add_u32 s{S_T}, s{S_T}, {WS_UT}')
            for h2 in range(2):
                a(f'buffer_store_dwordx4 {vr(UT+4*h2,4)}, v{V_US}, {srd(SRD_WS)}, s{S_T} offen offset:{64*h2} sc1')
            if s == U2:
                a.lab('L_us2_skip')
            else:
                vm.issue('ut0', 2)
        if s in (3, U2 + 3):
            a(f's_cmp_lg_u32 s{S_W}, 0')
            a(f's_cbranch_scc1 L_fu{s}_skip')
            if s == U2 + 3:
                a(f's_cmp_ge_u32 s{S_CB}, 2')
                a(f's_cbranch_scc1 L_fu{s}_skip')
            ut_chunk(s - 3)
            a(f's_lshl_b32 s{S_T}, s{S_T}, 5')
            a(f's_add_u32 s{S_T}, s{S_T}, s{S_RB}')
            a(f's_lshl_b32 s{S_T}, s{S_T}, 2')
            a(f's_add_u32 s{S_T}, s{S_T}, {WS_FU}')
            flag_store(a, S_T, V_T)
            a.lab(f'L_fu{s}_skip')
        if s == LNS + FZS:
            a(f's_cmp_lg_u32 s{S_W}, 0')
            a('s_cbranch_scc1 L_fz_skip')
            flag_store(a, S_FZA, V_T)
            a.lab('L_fz_skip')
            stamp(a, 6)
        if s + 4 < 20:
            U = dma_p1(s + 4)
        else:
            U = []
        if s == 12:
            wsp_setup()
        A0S = opt.get('a0s', LNS)
        if s in (A0S, A0S + 1):
            U = U + adma(0)[4 * (s - A0S): 4 * (s - A0S) + 4]
        now, pend = split_units(U)
        if s + 1 in (10, LNS, 20):
            now = now + [(99, u) for (_, u) in pend]; pend = []
        if s < 19:
            reads_p1(s + 1, 0)
        with_units(mfma_p1(s, 1), now)
    stamp(a, 7)
    run_units(adma(1))
    V_PA = 141
    rot2(S_ROT)
    a(f's_add_u32 s{S_T}, s{S_ROT}, s{S_W}')
    a(f'v_lshl_add_u32 v{V_PA}, v{V_L}, 2, s{S_T}')
    a(f'v_and_b32 v{V_PA}, 31, v{V_PA}')
    a(f'v_lshlrev_b32 v{V_PA}, 2, v{V_PA}')
    a(f's_lshl_b32 s{S_T}, s{S_CB}, 7')
    a(f's_add_u32 s{S_T}, s{S_T}, {WS_FZ}')
    a(f'v_add_u32 v{V_PA}, s{S_T}, v{V_PA}')
    if opt.get('no_side') != 1:
        a(f'v_subrev_u32 v{t0}, 8, v{V_L}')
        a(f'v_min_u32 v{t0}, 5, v{t0}')
        a(f's_mul_i32 s{S_T}, s{S_CB}, 24')
        a(f's_mul_i32 s{S_T2}, s{S_W}, 6')
        a(f's_add_u32 s{S_T}, s{S_T}, s{S_T2}')
        a(f'v_add_u32 v{t0}, s{S_T}, v{t0}')
        a(f'v_lshlrev_b32 v{t0}, 2, v{t0}')
        a(f'v_add_u32 v{t0}, {WS_FW}, v{t0}')
        a(f'v_cmp_gt_u32 vcc, 8, v{V_L}')
        a(f'v_cndmask_b32 v{V_PA}, v{t0}, v{V_PA}, vcc')
    V_FL = 140
    S_RDY = 84
    def flags_load():
        a(f'buffer_load_dword v{V_FL}, v{V_PA}, {srd(SRD_WS)}, 0 offen sc1')
    nspin = [0]
    def need_bit(idx, mask=False, fresh=False):
        n = nspin[0]; nspin[0] += 1
        def test():
            if mask:
                a(f's_andn2_b32 s{S_T2}, {idx}, s{S_RDY}')
                a(f's_cbranch_scc0 L_nb{n}_ok')
            else:
                a(f's_bitcmp1_b32 s{S_RDY}, {idx}')
                a(f's_cbranch_scc1 L_nb{n}_ok')
        if fresh:
            a(f'v_cmp_eq_u32 s[{S_RDY}:{S_RDY+1}], s{S_TAG}, v{V_FL}')
        test()
        a(f's_mov_b32 s{S_CNT}, {SPIN_MAX}')
        a.lab(f'L_nb{n}_spin')
        flags_load()
        a('s_waitcnt vmcnt(0)')
        a(f'v_cmp_eq_u32 s[{S_RDY}:{S_RDY+1}], s{S_TAG}, v{V_FL}')
        test()
        if opt.get('psl', 4): a(f's_sleep {opt.get("psl", 4)}')
        a(f's_sub_u32 s{S_CNT}, s{S_CNT}, 1')
        a(f's_cmp_lg_u32 s{S_CNT}, 0')
        a(f's_cbranch_scc1 L_nb{n}_spin')
        a.lab(f'L_nb{n}_ok')
    a(f's_mov_b64 s[{S_RDY}:{S_RDY+1}], 0')
    a(f'v_mov_b32 v{K0V}, {hx(k0)}')
    a(f'v_mov_b32 v{K0V+1}, {hx(k0)}')
    V_ZW = V_US
    lane_mq()
    a(f'v_lshrrev_b32 v{t2}, 2, v{t0}')
    a(f'v_lshlrev_b32 v{t2}, 3, v{t2}')
    a(f'v_and_b32 v{t3}, 3, v{t0}')
    a(f'v_add_u32 v{t2}, v{t2}, v{t3}')
    a(f'v_lshlrev_b32 v{t2}, 3, v{t2}')
    a(f'v_mul_u32_u24 v{t3}, {SLOT}, v{t1}')
    a(f'v_add_u32 v{t2}, v{t2}, v{t3}')
    a(f's_mul_i32 s{S_T}, s{S_WJ}, 1536')
    a(f's_lshl_b32 s{S_T2}, s{S_WI}, 8')
    a(f's_add_u32 s{S_T}, s{S_T}, s{S_T2}')
    a(f's_add_u32 s{S_T}, s{S_T}, 16384')
    a(f'v_add_u32 v{V_ZW}, s{S_T}, v{t2}')
    Z1Q = 128
    def z1_group(i):
        phi, tau = i >> 1, i & 1
        cs = [ACC1 + 4 * i, ACC1 + 4 * i + 2]
        a(f'v_cvt_pk_bf16_f32 v{Z1Q+2*i}, v{cs[0]}, v{cs[0]+1}')
        a(f'v_cvt_pk_bf16_f32 v{Z1Q+2*i+1}, v{cs[1]}, v{cs[1]+1}')
        a(f'ds_write_b64 v{V_ZW}, {vr(Z1Q+2*i,2)} offset:{512*phi+32*tau}')
    NG1 = 6
    a(f'v_mov_b32 v{t2}, {CTR}')
    a(f'v_mov_b32 v{t3}, 8')
    a(f'ds_write_b32 v{t2}, v{t3}')
    for i in range(NG1): z1_group(i)
    G2 = 24
    ZR = 144
    AF = 120
    Z1R = 240
    V_ZD, V_A2R = V_BD, V_AR
    a(f'v_and_b32 v{t0}, 31, v{V_L}')
    a(f'v_lshrrev_b32 v{t1}, 5, v{V_L}')
    a(f's_lshl_b32 s{S_T}, s{S_W}, 3')
    a(f'v_add_u32 v{t3}, s{S_T}, v{t0}')
    a(f'v_and_b32 v{t3}, 31, v{t3}')
    a(f'v_mul_u32_u24 v{t2}, 96, v{t1}')
    a(f'v_add_u32 v{t2}, v{t2}, v{t3}')
    a(f'v_lshlrev_b32 v{V_ZD}, 4, v{t2}')
    a(f'v_lshrrev_b32 v{t2}, 3, v{t0}')
    a(f'v_lshlrev_b32 v{t2}, 1, v{t2}')
    a(f'v_bfe_u32 v{t3}, v{t0}, 1, 1')
    a(f'v_or_b32 v{t2}, v{t2}, v{t3}')
    a(f'v_xor_b32 v{t2}, v{t2}, v{t1}')
    a(f'v_lshlrev_b32 v{t3}, 7, v{t0}')
    a(f'v_lshl_add_u32 v{t2}, v{t2}, 4, v{t3}')
    a(f'v_add_u32 v{V_A2R}, s{S_M_A}, v{t2}')
    for ks in range(1, 4):
        a(f'v_xor_b32 v{t3}, {32*ks}, v{t2}')
        a(f'v_add_u32 v{V_A2R+ks}, s{S_M_A}, v{t3}')
    V_ZR = V_BR
    a(f's_lshl_b32 s{S_T}, s{S_WJ}, 1')
    a(f'v_add_u32 v{t2}, s{S_T}, v{t1}')
    a(f'v_mul_u32_u24 v{t2}, {SLOT}, v{t2}')
    a(f'v_lshl_add_u32 v{t2}, v{t0}, 3, v{t2}')
    a(f's_lshl_b32 s{S_T}, s{S_WI}, 9')
    a(f's_add_u32 s{S_T}, s{S_T}, 16384')
    a(f'v_add_u32 v{V_ZR}, s{S_T}, v{t2}')
    a(f's_lshl_b32 s{S_T}, s{S_RB}, 7')
    a(f'v_lshlrev_b32 v{t2}, 1, v{t0}')
    a(f'v_add_u32 v{t2}, s{S_T}, v{t2}')
    BS2 = 252
    a(f'global_load_ushort v{BS2}, v{t2}, {sp(P_BSP)}')
    a(f'global_load_ushort v{BS2+2}, v{t2}, {sp(P_BSP)} offset:64')
    rot2(S_KZ)
    a(f's_add_u32 s{S_KZ}, s{S_KZ}, s{S_W}')
    a(f's_mul_i32 s{S_BBASE}, s{S_CB}, {32*12288}')
    a(f's_add_u32 s{S_BBASE}, s{S_BBASE}, {WS_Z}')
    a('s_waitcnt lgkmcnt(0)')
    a('s_barrier')
    need_bit(0)
    stamp(a, 8)
    vm.ops = []
    def zld(par):
        U = []
        for ks in range(4):
            for ph in range(3):
                L = []
                if ks == 0 and ph == 0:
                    L += [f's_and_b32 s{S_KZ}, s{S_KZ}, {3 if opt.get("x_same") else 31}', f's_mul_i32 s{S_BO}, s{S_KZ}, 12288', f's_add_u32 s{S_BO}, s{S_BO}, s{S_BBASE}', f's_add_u32 s{S_KZ}, s{S_KZ}, 4']
                elif ph == 0:
                    L += [f's_add_u32 s{S_BO}, s{S_BO}, 3072']
                L += [f'buffer_load_dwordx4 {vr(ZR+48*par+12*ks+4*ph,4)}, v{V_ZD}, {srd(SRD_WS)}, s{S_BO} offen offset:{512*ph} sc1']
                U.append((L, ('Z', par, ks)))
        return U
    vm.issue(('A2', 1), 1)
    run_units([(l, ('Z', 0, t[2])) for (l, t) in zld(0)])
    need_bit(1)
    run_units([(l, ('Z', 1, t[2])) for (l, t) in zld(1)])
    flags_load(); vm.issue('fl', 1)
    for i in range(NG1, 6): z1_group(i)
    for i in range(6):
        a(f'ds_read_b64 {vr(Z1R+2*i,2)}, v{V_ZR} offset:{1024*(i>>1)+256*(i&1)}')
    if opt.get('cg', 0) == 1 or opt.get('kd') == 1:
        a(f's_cmp_lg_u32 s{S_W}, 3')
        a('s_cbranch_scc1 L_fs_skip')
        a(f's_lshl_b32 s{S_T}, s2, 2')
        a(f's_add_u32 s{S_T}, s{S_T}, {WS_FS}')
        flag_store(a, S_T, 18)
        a.lab('L_fs_skip')
    def ards(par, ks):
        f = AF + 8 * (ks & 1)
        for tp in range(2):
            a(f'ds_read_b128 {vr(f+4*tp,4)}, v{V_A2R+ks} offset:{8192*par+4096*tp}')
    def chunk(i, fill=()):
        par = i & 1
        if i + 2 < 8:
            need_bit(i + 2, fresh=True)
        if i + 3 < 8 or i == 6:
            flags_load(); vm.issue('fl', 1)
        AU = [(l, ('A2', i + 1)) for (l, _) in adma(1 - par)] if 1 <= i < 7 else []
        ZU = [(l, ('Z', i + 2, t[2])) for (l, t) in zld(par)] if i + 2 < 8 else []
        for ks in range(4):
            a(f's_waitcnt vmcnt({vm.n_after(("Z", i, ks))}) lgkmcnt(0)')
            if ks < 3:
                ards(par, ks + 1)
            f = AF + 8 * (ks & 1)
            for tp in range(2):
                for ph in range(3):
                    m = 3 * tp + ph
                    c = vr(G2 + 16 * (2 * ph + tp), 16)
                    if not opt.get('x_nomfma'): a(f'v_mfma_f32_32x32x16_bf16 {c}, {vr(ZR+48*par+12*ks+4*ph,4)}, {vr(f+4*tp,4)}, {0 if (i == 0 and ks == 0) else c}')
                    if m < 3 and ks < 2 and AU: run_units(AU[4 * ks: 4 * ks + 2] if m == 0 else [AU[4 * ks + m + 1]])
                    if m >= 3 and ZU: run_units([ZU[3 * ks + m - 3]])
                    for l in fill[6 * (6 * ks + m): 6 * (6 * ks + m) + 6]: a(l)
        a(f's_waitcnt vmcnt({vm.n_after(("A2", i + 1))})')
        ards(1 - par, 0)
    V_L16 = V_BD + 1
    a(f'v_lshlrev_b32 v{V_L16}, 4, v{V_L}')
    a(f's_mul_i32 s{S_WOB}, s{S_CB}, {24*5120}')
    a(f's_mul_i32 s{S_T}, s{S_W}, {6*5120}')
    a(f's_add_u32 s{S_WOB}, s{S_WOB}, s{S_T}')
    a(f's_add_u32 s{S_WOB}, s{S_WOB}, {WS_WO}')
    V_RW = V_BD + 2
    a(f'v_add_u32 v{V_RW}, s{S_M_A}, v{V_L16}')
    V_RR = 12
    for d in range(1, 4):
        a(f's_sub_u32 s{S_T}, s{S_W}, {d}')
        a(f's_and_b32 s{S_T}, s{S_T}, 3')
        a(f's_mul_i32 s{S_T}, s{S_T}, {SLOT}')
        a(f's_add_u32 s{S_T}, s{S_T}, {6144*(d-1)}')
        a(f'v_add_u32 v{V_RR+d-1}, s{S_T}, v{V_L16}')
    stamp(a, 9)
    a('s_waitcnt lgkmcnt(0)')
    ards(0, 0)
    GL = []
    for i in range(6): GL += gelu_packed([Z1R + 2 * i, Z1R + 2 * i + 1], K0V)
    for i in range(7): chunk(i, GL if i == 0 else ())
    WOS = [144, 164, 192, 212]
    def wold(kk):
        U = []
        for dl in range(5):
            L = [f's_add_u32 s{S_BO}, s{S_WOB}, {5120*kk+(4096 if dl == 4 else 0)}'] if dl in (0, 4) else []
            L += [f'buffer_load_dwordx4 {vr(WOS[kk&3]+4*dl,4)}, v{V_L16}, {srd(SRD_WS)}, s{S_BO} offen offset:{1024*(dl&3)} sc1']
            U.append((L, ('WO', kk)))
        return U
    for par in (1,):
        a.lab(f'L_p2_tail{par}')
        other = ZR + 48 * (1 - par)
        AFR = {0: 120, 1: 128, 2: other + 40, 3: 16}
        for ks in range(1, 4):
            for tp in range(2):
                a(f'ds_read_b128 {vr(AFR[ks]+4*tp,4)}, v{V_A2R+ks} offset:{8192*par+4096*tp}')
        a('s_waitcnt vmcnt(0) lgkmcnt(0)')
        if opt.get('no_side') != 1:
            need_bit(0x3f00, mask=True, fresh=True)
        early, late = ((0, 1), (2, 3)) if par == 1 else ((2, 3), (0, 1))
        WOU = wold(early[0]) + wold(early[1])
        k = 0
        def wr(i):
            for d in range(1, 4):
                a(f'ds_write_b128 v{V_RW}, {vr(G2+16*i+4*d,4)} offset:{6144*(d-1)+1024*i}')
        for i in range(6):
            ph, tp = i >> 1, i & 1
            c = vr(G2 + 16 * i, 16)
            for ks in range(4):
                a(f'v_mfma_f32_32x32x16_bf16 {c}, {vr(ZR+48*par+12*ks+4*ph,4)}, {vr(AFR[ks]+4*tp,4)}, {c}')
                if ks in (0, 2) and k < len(WOU):
                    run_units([WOU[k]], False); k += 1
                if ks == 2 and i > 0: wr(i - 1)
        wr(5)
        run_units(wold(late[0]) + wold(late[1]), False)
    a.lab('L_red_done')
    stamp(a, 10)
    vm.ops = []
    a('s_waitcnt lgkmcnt(0)')
    a('s_barrier')
    for i in range(6):
        for j in range(3):
            a(f'ds_read_b128 {vr(G2+16*i+4+4*j,4)}, v{V_RR+j} offset:{1024*i}')
    a(f'v_lshlrev_b32 v{BS2+1}, 16, v{BS2}')
    a(f'v_lshlrev_b32 v{BS2+3}, 16, v{BS2+2}')
    a(f'v_lshlrev_b32 v{BS2}, 16, v{BS2}')
    a(f'v_lshlrev_b32 v{BS2+2}, 16, v{BS2+2}')
    a(f's_mul_i32 s{S_ABASE}, s{S_RB}, 98304')
    a(f's_add_u32 s{S_ABASE}, s{S_ABASE}, {WS_P}')
    a(f's_mul_i32 s{S_T}, s{S_CB}, 12288')
    a(f's_add_u32 s{S_T}, s{S_T}, s{S_ABASE}')
    a(f's_lshl_b32 s{S_T2}, s{S_W}, 10')
    a(f's_add_u32 s{S_T}, s{S_T}, s{S_T2}')
    PQ = 120
    for ph in range(3):
        for tp in range(2):
            i = 2 * ph + tp
            a(f's_waitcnt lgkmcnt({min(15, 3*(5-i))})')
            T = [V_T, V_T + 4]
            def both(f):
                for hh in range(2): a(f(G2 + 16 * i + 2 * hh, T[hh], hh))
            both(lambda c, t, hh: f'v_pk_add_f32 {vr(c,2)}, {vr(c,2)}, {vr(c+4,2)}')
            both(lambda c, t, hh: f'v_pk_add_f32 {vr(c+8,2)}, {vr(c+8,2)}, {vr(c+12,2)}')
            both(lambda c, t, hh: f'v_pk_add_f32 {vr(c,2)}, {vr(c,2)}, {vr(c+8,2)}')
            both(lambda c, t, hh: f'v_cvt_pk_bf16_f32 v{t+2}, v{c}, v{c+1}')
            both(lambda c, t, hh: f'v_lshlrev_b32 v{t}, 16, v{t+2}')
            both(lambda c, t, hh: f'v_and_b32 v{t+1}, 0xffff0000, v{t+2}')
            both(lambda c, t, hh: f'v_pk_add_f32 {vr(t,2)}, {vr(t,2)}, {vr(BS2+2*tp,2)}')
            both(lambda c, t, hh: f'v_cvt_pk_bf16_f32 v{t+2}, v{t}, v{t+1}')
            both(lambda c, t, hh: f'v_lshlrev_b32 v{c}, 16, v{Z1R+2*i+hh}')
            both(lambda c, t, hh: f'v_and_b32 v{c+1}, 0xffff0000, v{Z1R+2*i+hh}')
            both(lambda c, t, hh: f'v_lshlrev_b32 v{t}, 16, v{t+2}')
            both(lambda c, t, hh: f'v_and_b32 v{t+1}, 0xffff0000, v{t+2}')
            both(lambda c, t, hh: f'v_pk_mul_f32 {vr(t,2)}, {vr(t,2)}, {vr(c,2)}')
            both(lambda c, t, hh: f'v_cvt_pk_bf16_f32 v{PQ+4*ph+2*tp+hh}, v{t}, v{t+1}')
        q = PQ + 4 * ph
        a(f'v_permlane32_swap_b32 v{q}, v{q+2}')
        a(f'v_permlane32_swap_b32 v{q+1}, v{q+3}')
        a(f'buffer_store_dwordx4 {vr(q,4)}, v{V_L16}, {srd(SRD_WS)}, s{S_T} offen sc1')
        if ph < 2: a(f's_add_u32 s{S_T}, s{S_T}, 4096')
    a('s_barrier')
    a(f's_mul_i32 s{S_M_B}, s{S_W}, 15360')
    for j in range(10):
        if j % 4 == 0:
            a(f's_add_u32 m0, s{S_M_B}, {1024*j}')
            a(f's_add_u32 s{S_BO}, s{S_WOB}, {4*5120+1024*j}')
        a(f'buffer_load_dwordx4 v{V_L16}, {srd(SRD_WS)}, s{S_BO} offen offset:{1024*(j%4)} sc1 lds')
    a.fence(2)
    lane_mq()
    V_PP = 7
    a(f'v_and_b32 v{V_PP}, 7, v{V_L}')
    a(f'v_lshlrev_b32 v{V_PP}, 2, v{V_PP}')
    a(f's_lshl_b32 s{S_T}, s{S_RB}, 7')
    a(f's_add_u32 s{S_T}, s{S_T}, {WS_FP}')
    a(f's_lshl_b32 s{S_T2}, s{S_W}, 5')
    a(f's_add_u32 s{S_T2}, s{S_T2}, s{S_T}')
    V_PL0, V_PL1 = 8, 9
    a(f's_lshl_b32 s{S_AO}, s{S_RB}, 5')
    a(f's_add_u32 s{S_AO}, s{S_AO}, {WS_FG}')
    a(f'v_add_u32 v{V_PL0}, s{S_AO}, v{V_PP}')
    a(f'v_add_u32 v{V_PP}, s{S_T2}, v{V_PP}')
    a(f's_lshl_b32 s{S_T2}, s{S_CB}, 4')
    a(f's_add_u32 s{S_T}, s{S_T}, s{S_T2}')
    a(f's_lshl_b32 s{S_T2}, s{S_W}, 2')
    a(f's_add_u32 s{S_T}, s{S_T}, s{S_T2}')
    a(f's_mul_i32 s{S_T2}, s{S_CB}, 320')
    a(f's_add_u32 s{S_T2}, s{S_T2}, {WS_FA}')
    a(f'v_lshlrev_b32 v{V_PL1}, 2, v{V_L}')
    a(f'v_add_u32 v{V_PL1}, s{S_T2}, v{V_PL1}')
    a(f'v_lshlrev_b32 v{t3}, 2, v{t0}')
    a(f'v_add_u32 v{t3}, s{S_T2}, v{t3}')
    a(f'v_add_u32 v{t3}, 256, v{t3}')
    a(f'v_bfe_u32 v{t2}, v{V_L}, 4, 1')
    a(f'v_cmp_eq_u32 vcc, 1, v{t2}')
    a(f'v_cndmask_b32 v{V_PL0}, v{V_PL0}, v{t3}, vcc')
    V_AW, V_O1, V_O2, V_ATR, V_AG, V_PF = 248, 10, 11, 12, 250, 2
    ATR, GT = [136, 140, 184], 188
    a(f's_lshl_b32 s{S_AO}, s{S_W}, 7')
    a(f'v_add_u32 v{t2}, s{S_AO}, v{V_L}')
    a(f's_lshl_b32 s{S_AO}, s{S_WJ}, 6')
    a(f's_add_u32 s{S_AO}, s{S_AO}, 512')
    a(f'v_add_u32 v{t3}, s{S_AO}, v{V_L}')
    ATL = 61440
    a(f'v_lshlrev_b32 v{V_AW}, 4, v{t2}')
    a(f'v_lshlrev_b32 v{V_AW+1}, 4, v{t3}')
    a(f'v_add_u32 v{V_AW}, {ATL}, v{V_AW}')
    a(f'v_add_u32 v{V_AW+1}, {ATL}, v{V_AW+1}')
    for k, tt in enumerate((t2, t3)):
        a(f'v_lshrrev_b32 v{V_AG+k}, 3, v{tt}')
        a(f'v_and_b32 v{tt}, 7, v{tt}')
        a(f'v_lshlrev_b32 v{V_AG+k}, 12, v{V_AG+k}')
        a(f'v_lshl_add_u32 v{V_AG+k}, v{tt}, 4, v{V_AG+k}')
    a(f's_lshl_b32 s{S_AO}, s{S_RB}, 6')
    a(f's_lshl_b32 s{S_BO}, s{S_W}, 4')
    a(f's_add_u32 s{S_AO}, s{S_AO}, s{S_BO}')
    a(f'v_add_u32 v{t2}, s{S_AO}, v{t0}')
    a(f'v_lshlrev_b32 v{V_AG+2}, 3, v{t2}')
    a(f'v_add_u32 v{V_AG+2}, {WS_G}, v{V_AG+2}')
    a(f'v_mul_u32_u24 v{t2}, 1280, v{t2}')
    a(f's_mul_i32 s{S_AO}, s{S_CB}, 160')
    a(f'v_add_u32 v{t2}, s{S_AO}, v{t2}')
    a(f'v_and_b32 v{t3}, 1, v{t1}')
    a(f'v_lshl_add_u32 v{V_O1}, v{t3}, 5, v{t2}')
    a(f'v_lshrrev_b32 v{t3}, 1, v{t1}')
    a(f'v_lshl_add_u32 v{V_O1}, v{t3}, 4, v{V_O1}')
    a(f'v_lshl_add_u32 v{V_O2}, v{t1}, 3, v{t2}')
    a(f'v_add_u32 v{V_O2}, 128, v{V_O2}')
    a(f'v_lshl_add_u32 v{t2}, v{t1}, 6, v{t0}')
    a(f'v_lshlrev_b32 v{t2}, 4, v{t2}')
    VPF = [2, 3, 4, 6]
    for tt in range(4):
        a(f's_add_u32 s{S_AO}, s{S_W}, {tt}')
        a(f's_and_b32 s{S_AO}, s{S_AO}, 3')
        a(f's_lshl_b32 s{S_AO}, s{S_AO}, 8')
        a(f'v_add_u32 v{VPF[tt]}, s{S_AO}, v{t2}')
    a(f's_mul_i32 s{S_AO}, s{S_W}, 24576')
    a(f's_add_u32 s{S_ABASE}, s{S_ABASE}, s{S_AO}')
    a(f'v_lshrrev_b32 v{t2}, 2, v{t0}')
    a(f'v_lshl_add_u32 v{t2}, v{t1}, 2, v{t2}')
    a(f'v_lshlrev_b32 v{t2}, 7, v{t2}')
    a(f'v_and_b32 v{t3}, 3, v{V_L}')
    a(f'v_lshl_add_u32 v{t2}, v{t3}, 3, v{t2}')
    a(f's_lshl_b32 s{S_AO}, s{S_W}, 5')
    a(f's_add_u32 s{S_AO}, s{S_AO}, {ATL}')
    a(f'v_add_u32 v{V_ATR}, s{S_AO}, v{t2}')
    O3 = 24
    a('s_waitcnt vmcnt(10)')
    flag_store(a, S_T, V_T)
    stamp(a, 11)
    if not opt.get('no_side'):
        a(f'buffer_load_dword v20, v{V_PL0}, {srd(SRD_WS)}, 0 offen sc1')
        a(f'buffer_load_dword v21, v{V_PL1}, {srd(SRD_WS)}, 0 offen sc1')
    a(f's_mov_b32 s{S_CNT}, {SPIN_MAX}')
    a(f'buffer_load_dword v16, v{V_PP}, {srd(SRD_WS)}, 0 offen sc1')
    a.lab('L_pp_spin')
    a(f'buffer_load_dword v17, v{V_PP}, {srd(SRD_WS)}, 0 offen sc1')
    a('s_waitcnt vmcnt(1)')
    a(f'v_cmp_ne_u32 vcc, s{S_TAG}, v16')
    a('s_cbranch_vccz L_pp_done')
    a(f'buffer_load_dword v16, v{V_PP}, {srd(SRD_WS)}, 0 offen sc1')
    a('s_waitcnt vmcnt(1)')
    a(f'v_cmp_ne_u32 vcc, s{S_TAG}, v17')
    a('s_cbranch_vccz L_pp_done')
    if opt.get('psl', 4): a(f's_sleep {opt.get("psl", 4)}')
    a(f's_sub_u32 s{S_CNT}, s{S_CNT}, 1')
    a(f's_cmp_lg_u32 s{S_CNT}, 0')
    a('s_cbranch_scc1 L_pp_spin')
    a.lab('L_pp_done')
    stamp(a, 12)
    vm.ops = []
    NPS = 3
    PFS = [104, 120, 232]
    V_AG2 = [V_AG, V_AG + 1, V_AG + 2]
    def pld(kk):
        U = []
        for tt in range(4):
            L = [f's_add_u32 s{S_AO}, s{S_ABASE}, {4096*kk}'] if tt == 0 else []
            L += [f'buffer_load_dwordx4 {vr(PFS[kk%NPS]+4*tt,4)}, v{VPF[tt]}, {srd(SRD_WS)}, s{S_AO} offen sc1']
            U.append((L, ('P', kk)))
        return U
    for kk in range(3): run_units(pld(kk))
    if not opt.get('no_side'):
        a(f'v_cmp_ne_u32 vcc, s{S_TAG}, v20')
        a(f'v_cmp_ne_u32 s[84:85], s{S_TAG}, v21')
        a('s_or_b64 vcc, vcc, s[84:85]')
        a('s_cbranch_vccnz L_pa_late')
    def at_loads():
        a(f's_mul_i32 s{S_T}, s{S_CB}, {80*4096}')
        a(f's_lshl_b32 s{S_T2}, s{S_RB}, 7')
        a(f's_add_u32 s{S_T}, s{S_T}, s{S_T2}')
        a(f's_add_u32 s{S_T}, s{S_T}, {WS_AT}')
        a(f's_add_u32 s{S_T2}, s{S_T}, {8*4096}')
        a(f'buffer_load_dwordx4 {vr(ATR[0],4)}, v{V_AG2[0]}, {srd(SRD_WS)}, s{S_T} offen sc1')
        a(f'buffer_load_dwordx4 {vr(ATR[1],4)}, v{V_AG2[0]}, {srd(SRD_WS)}, s{S_T2} offen sc1')
        a(f'buffer_load_dwordx4 {vr(ATR[2],4)}, v{V_AG2[1]}, {srd(SRD_WS)}, s{S_T} offen sc1')
        a(f'buffer_load_dwordx2 {vr(GT,2)}, v{V_AG2[2]}, {srd(SRD_WS)}, 0 offen sc1')
    at_loads()
    vm.issue('at', 4)
    a(f's_mov_b32 s{S_KZ}, 0')
    if not opt.get('no_side'):
        a('s_branch L_pa_go')
        a.lab('L_pa_late')
        for k in range(4):
            a(f'buffer_load_dword v22, off, {srd(SRD_WS)}, 0')
        a(f's_mov_b32 s{S_KZ}, 1')
        a.lab('L_pa_go')
    stamp(a, 13)
    V_W3, V_R3 = 13, 14
    VR3 = [14, 15, 0]
    a(f's_mul_i32 s{S_T}, s{S_W}, 15360')
    a(f'v_add_u32 v{V_W3}, s{S_T}, v{V_L16}')
    for d in range(1, 4):
        a(f's_sub_u32 s{S_T}, s{S_W}, {d}')
        a(f's_and_b32 s{S_T}, s{S_T}, 3')
        a(f's_mul_i32 s{S_T}, s{S_T}, 15360')
        a(f's_add_u32 s{S_T}, s{S_T}, {5120*(d-1)}')
        a(f'v_add_u32 v{VR3[d-1]}, s{S_T}, v{V_L16}')
    def wr3(tt):
        for dl in range(5):
            a(f'ds_write_b128 v{V_W3}, {vr(O3+4*(5*tt+dl),4)} offset:{5120*(tt-1)+1024*dl}')
    for kk in range(6):
        need = vm.n_after(('P', kk))
        a(f's_waitcnt vmcnt({need})' + (' lgkmcnt(5)' if kk == 4 else ' lgkmcnt(0)' if kk == 5 else ''))
        for tt in ((0, 1, 2, 3) if kk < 5 else (1, 2, 3, 0)):
            for dl in range(5):
                c = vr(O3 + 4 * (5 * tt + dl), 4)
                a(f'v_mfma_f32_16x16x32_bf16 {c}, {vr(WOS[kk&3]+4*dl,4)}, {vr(PFS[kk%NPS]+4*tt,4)}, {c if kk else 0}')
            if kk == 5 and tt != 1: wr3((tt - 1) & 3)
        if kk + 3 < 6: run_units(pld(kk + 3))
        if kk + 4 < 6:
            for dl in range(5):
                a(f'ds_read_b128 {vr(WOS[kk&3]+4*dl,4)}, v{V_W3} offset:{5120*kk+1024*dl}')
    stamp(a, 14)
    if not opt.get('no_side'):
        a(f's_cmp_eq_u32 s{S_KZ}, 0')
        a('s_cbranch_scc1 L_pa_ok')
        poll(a, 'L_pa', [(V_PL0, '0'), (V_PL1, '0')], 20, S_CNT)
        at_loads()
        a.lab('L_pa_ok')
    a('s_waitcnt vmcnt(0)')
    a(f'v_mov_b32 v{GT+2}, v{GT+1}')
    a(f'v_mov_b32 v{GT+3}, v{GT+1}')
    a(f'v_mov_b32 v{GT+1}, v{GT}')
    a(f'ds_write_b128 v{V_AW}, {vr(ATR[0],4)}')
    a(f'ds_write_b128 v{V_AW}, {vr(ATR[1],4)} offset:1024')
    a(f'ds_write_b128 v{V_AW+1}, {vr(ATR[2],4)}')
    a('s_waitcnt lgkmcnt(0)')
    a('s_barrier')
    AV = 104
    for dl in range(5):
        for j in range(3):
            a(f'ds_read_b128 {vr(O3+4*(5*(j+1)+dl),4)}, v{VR3[j]} offset:{1024*dl}')
        a(f'ds_read_b64_tr_b16 {vr(AV+2*dl,2)}, v{V_ATR} offset:{2048*dl}')
    RQ = 116
    for dl in range(5):
        a(f's_waitcnt lgkmcnt({min(15, 4*(4-dl))})')
        T = [V_T, V_T + 4]
        def both(f):
            for hh in range(2): a(f(O3 + 4 * dl + 2 * hh, T[hh], AV + 2 * dl + hh, hh))
        both(lambda c, t, av, hh: f'v_pk_add_f32 {vr(c,2)}, {vr(c,2)}, {vr(c+20,2)}')
        both(lambda c, t, av, hh: f'v_pk_add_f32 {vr(c+40,2)}, {vr(c+40,2)}, {vr(c+60,2)}')
        both(lambda c, t, av, hh: f'v_pk_add_f32 {vr(c,2)}, {vr(c,2)}, {vr(c+40,2)}')
        both(lambda c, t, av, hh: f'v_cvt_pk_bf16_f32 v{t+2}, v{c}, v{c+1}')
        both(lambda c, t, av, hh: f'v_lshlrev_b32 v{t}, 16, v{av}')
        both(lambda c, t, av, hh: f'v_and_b32 v{t+1}, 0xffff0000, v{av}')
        both(lambda c, t, av, hh: f'v_lshlrev_b32 v{c}, 16, v{t+2}')
        both(lambda c, t, av, hh: f'v_and_b32 v{c+1}, 0xffff0000, v{t+2}')
        both(lambda c, t, av, hh: f'v_pk_mul_f32 {vr(t,2)}, {vr(t,2)}, {vr(GT,2)}')
        both(lambda c, t, av, hh: f'v_pk_mul_f32 {vr(c,2)}, {vr(c,2)}, {vr(GT+2,2)}')
        both(lambda c, t, av, hh: f'v_cvt_pk_bf16_f32 v{t+2}, v{t}, v{t+1}')
        both(lambda c, t, av, hh: f'v_cvt_pk_bf16_f32 v{t+3}, v{c}, v{c+1}')
        both(lambda c, t, av, hh: f'v_lshlrev_b32 v{t}, 16, v{t+2}')
        both(lambda c, t, av, hh: f'v_and_b32 v{t+1}, 0xffff0000, v{t+2}')
        both(lambda c, t, av, hh: f'v_lshlrev_b32 v{c}, 16, v{t+3}')
        both(lambda c, t, av, hh: f'v_and_b32 v{c+1}, 0xffff0000, v{t+3}')
        both(lambda c, t, av, hh: f'v_pk_add_f32 {vr(t,2)}, {vr(t,2)}, {vr(c,2)}')
        both(lambda c, t, av, hh: f'v_cvt_pk_bf16_f32 v{RQ+2*dl+hh}, v{t}, v{t+1}')
        if dl in (1, 3):
            q = RQ + 2 * (dl - 1)
            a(f'v_permlane16_swap_b32 v{q}, v{q+2}')
            a(f'v_permlane16_swap_b32 v{q+1}, v{q+3}')
            a(f'buffer_store_dwordx4 {vr(q,4)}, v{V_O1}, {srd(SRD_OUT)}, 0 offen offset:{32*(dl-1)} {OC}')
        if dl == 4:
            a(f'buffer_store_dwordx2 {vr(RQ+8,2)}, v{V_O2}, {srd(SRD_OUT)}, 0 offen {OC}')
    if _g.PROF['on']:
        a('s_waitcnt vmcnt(0)')
    stamp(a, 15)
    stamp_dump(a, 16)
    a('s_endpgm')

def poll1(a, name, vaddrs, vtmp, scount):
    a(f's_cmp_lg_u32 s{S_W}, 0')
    a(f's_cbranch_scc1 {name}_out')
    va = vaddrs[0]
    a(f's_mov_b32 s{scount}, {SPIN_MAX}')
    a(f'buffer_load_dword v{vtmp}, v{va}, {srd(SRD_WS)}, 0 offen sc1')
    a.lab(f'{name}_spin')
    a(f'buffer_load_dword v{vtmp+1}, v{va}, {srd(SRD_WS)}, 0 offen sc1')
    a('s_waitcnt vmcnt(1)')
    a(f'v_cmp_ne_u32 vcc, s{S_TAG}, v{vtmp}')
    a(f's_cbranch_vccz {name}_done')
    a(f'buffer_load_dword v{vtmp}, v{va}, {srd(SRD_WS)}, 0 offen sc1')
    a('s_waitcnt vmcnt(1)')
    a(f'v_cmp_ne_u32 vcc, s{S_TAG}, v{vtmp+1}')
    a(f's_cbranch_vccz {name}_done')
    a(f's_sub_u32 s{scount}, s{scount}, 1')
    a(f's_cmp_lg_u32 s{scount}, 0')
    a(f's_cbranch_scc1 {name}_spin')
    a.lab(f'{name}_done')
    a.lab(f'{name}_out')
    a('s_barrier')

def e1_z2(a, opt, vm, k0):
    SS, QQ = ACC1, ACC1 + 8
    K0 = ACC1 + 16
    pf = opt.get('gpf', 0)
    if pf:
        a(f's_lshl_b32 s{S_T}, s{S_RB}, 18')
        a(f's_and_b32 s{S_T2}, s{S_CB}, 3')
        a(f's_lshl_b32 s{S_T2}, s{S_T2}, 16')
        a(f's_add_u32 s{S_T}, s{S_T}, s{S_T2}')
        a(f's_lshl_b32 s{S_T2}, s{S_W}, 14')
        a(f's_add_u32 s{S_T}, s{S_T}, s{S_T2}')
        a(f'v_lshlrev_b32 v{t0}, {7 if pf == 128 else 6}, v{V_L}')
        for i in range(16384 // (64 * pf)):
            a(f'buffer_load_dword v{ACC1+20+i}, v{t0}, {srd(SRD_WSP)}, s{S_T} offen')
            a(f's_add_u32 s{S_T}, s{S_T}, {64*pf}')
            vm.issue('pf', 1)
    a(f'v_mov_b32 v{K0}, {hx(k0)}')
    a(f'v_mov_b32 v{K0+1}, {hx(k0)}')
    first = {}
    for phi in range(3):
        for tau in range(2):
            cs = [ACC2 + 4 * (3 * tau + phi) + 2 * hh for hh in range(2)]
            def after(c, t):
                r = 4 * tau + (c - cs[0])
                L = [f'v_cvt_pk_bf16_f32 v{c}, v{t+2}, v{t+3}']
                if phi == 0:
                    L += [f'v_lshlrev_b32 v{SS+r}, 16, v{c}', f'v_and_b32 v{SS+r+1}, 0xffff0000, v{c}',
                          f'v_pk_mul_f32 {vr(QQ+r,2)}, {vr(SS+r,2)}, {vr(SS+r,2)}']
                else:
                    L += [f'v_lshlrev_b32 v{t}, 16, v{c}', f'v_and_b32 v{t+1}, 0xffff0000, v{c}',
                          f'v_pk_add_f32 {vr(SS+r,2)}, {vr(SS+r,2)}, {vr(t,2)}', f'v_pk_fma_f32 {vr(QQ+r,2)}, {vr(t,2)}, {vr(t,2)}, {vr(QQ+r,2)}']
                return L
            gelu2(a, cs, K0, after)
    for j in range(8):
        a(f'v_add_f32_dpp v{SS+j}, v{SS+j}, v{SS+j} row_ror:8 row_mask:0xf bank_mask:0x3')
    for j in range(8):
        a(f'v_add_f32_dpp v{SS+j}, v{QQ+j}, v{QQ+j} row_ror:8 row_mask:0xf bank_mask:0xc')
    for j in range(4):
        a(f'v_add_f32_dpp v{SS+j}, v{SS+j}, v{SS+j} row_half_mirror row_mask:0xf bank_mask:0x5')
    for j in range(4):
        a(f'v_add_f32_dpp v{SS+j}, v{SS+j+4}, v{SS+j+4} row_half_mirror row_mask:0xf bank_mask:0xa')
    a(f'v_and_b32 v{t0}, 15, v{V_L}')
    a(f'v_lshrrev_b32 v{t1}, 4, v{V_L}')
    a(f'v_and_b32 v{t2}, 3, v{V_L}')
    for qp in ('[3,2,1,0]', '[1,0,3,2]'):
        for j in range(4):
            a(f'v_add_f32_dpp v{SS+j}, v{SS+j}, v{SS+j} quad_perm:{qp} row_mask:0xf bank_mask:0xf')
    GQ = V_T + 4
    a(f'v_cmp_eq_u32 vcc, 1, v{t2}')
    a(f'v_cmp_eq_u32 s[84:85], 2, v{t2}')
    a(f'v_cmp_eq_u32 {sp(S_TMP2)}, 3, v{t2}')
    a(f'v_lshl_add_u32 v{t2}, v{t0}, 2, v{t1}')
    a(f'v_cndmask_b32 v{GQ}, v{SS}, v{SS+1}, vcc')
    a(f'v_cndmask_b32 v{GQ}, v{GQ}, v{SS+2}, s[84:85]')
    a(f'v_cndmask_b32 v{GQ}, v{GQ}, v{SS+3}, {sp(S_TMP2)}')
    a(f'v_mov_b32 v{GQ+2}, s{S_TAG}')
    a(f'v_mov_b32 v{GQ+3}, s{S_TAG}')
    a(f'v_mov_b32_dpp v{GQ+1}, v{GQ} row_ror:8 row_mask:0xf bank_mask:0xf')
    a(f's_lshl_b32 s{S_T}, s{S_WI}, 5')
    a(f'v_add_u32 v{t2}, s{S_T}, v{t2}')
    a(f'v_lshlrev_b32 v{t2}, 8, v{t2}')
    a(f's_lshl_b32 s{S_T}, s{S_RB}, 14')
    a(f's_lshl_b32 s{S_T2}, s{S_CB}, 5')
    a(f's_add_u32 s{S_T}, s{S_T}, s{S_T2}')
    a(f's_lshl_b32 s{S_T2}, s{S_WJ}, 4')
    a(f's_add_u32 s{S_T}, s{S_T}, s{S_T2}')
    a(f's_add_u32 s{S_T}, s{S_T}, {WS_ST}')
    a(f'v_cmp_gt_u32 vcc, 8, v{t0}')
    a(f's_and_saveexec_b64 {sp(S_TMP2)}, vcc')
    a(f'buffer_store_dwordx4 {vr(GQ,4)}, v{t2}, {srd(SRD_WS)}, s{S_T} offen sc1')
    a(f's_mov_b64 exec, {sp(S_TMP2)}')
    vm.issue('st', 1)
    if pf:
        a(f's_waitcnt vmcnt({vm.n_after("pf")})')

V_SA = 13
def e2_loads(a, vm):
    a(f'v_lshlrev_b32 v{V_SA}, 4, v{V_L}')
    a(f's_lshl_b32 s{S_T}, s{S_RB}, 14')
    a(f's_lshl_b32 s{S_T2}, s{S_WI}, 13')
    a(f's_add_u32 s{S_T}, s{S_T}, s{S_T2}')
    a(f's_add_u32 s{S_T}, s{S_T}, {WS_ST}')
    a(f'v_add_u32 v{V_SA}, s{S_T}, v{V_SA}')
    st_loads(a)
    vm.issue('stl', 8)

def st_loads(a):
    a(f's_movk_i32 s{S_T2}, 4096')
    for k in range(8):
        a(f'buffer_load_dwordx4 {vr(ST+4*k,4)}, v{V_SA}, {srd(SRD_WS)}, {"0" if k < 4 else "s%d" % S_T2} offen offset:{1024*(k&3)} sc1')

def e2_layernorm(a, opt, vm):
    a('; ---- LayerNorm hand-off')
    a(f's_mov_b32 s{S_CNT}, {SPIN_MAX}')
    a(f's_waitcnt vmcnt({vm.n_after("stl")})')
    a.lab('L_ln_check')
    a(f'v_and_b32 v{t0}, v{ST+2}, v{ST+3}')
    a(f'v_or_b32 v{t1}, v{ST+2}, v{ST+3}')
    for k in range(1, 8):
        a(f'v_and_b32 v{t0}, v{t0}, v{ST+4*k+2}')
        a(f'v_or3_b32 v{t1}, v{t1}, v{ST+4*k+2}, v{ST+4*k+3}')
        a(f'v_and_b32 v{t0}, v{t0}, v{ST+4*k+3}')
    a(f'v_cmp_ne_u32 vcc, s{S_TAG}, v{t0}')
    a(f'v_cmp_ne_u32 s[84:85], s{S_TAG}, v{t1}')
    a('s_or_b64 vcc, vcc, s[84:85]')
    a('s_cbranch_vccz L_ln_done')
    st_loads(a)
    a('s_waitcnt vmcnt(0)')
    a(f's_sub_u32 s{S_CNT}, s{S_CNT}, 1')
    a(f's_cmp_lg_u32 s{S_CNT}, 0')
    a('s_cbranch_scc1 L_ln_check')
    a.lab('L_ln_done')
    S_ = lambda k: ST + 4 * k
    Q_ = lambda k: ST + 4 * k + 1
    for k in range(8):
        a(f'v_add_f32_dpp v{S_(k)}, v{S_(k)}, v{S_(k)} row_ror:8 row_mask:0xf bank_mask:0x3')
    for k in range(8):
        a(f'v_add_f32_dpp v{S_(k)}, v{Q_(k)}, v{Q_(k)} row_ror:8 row_mask:0xf bank_mask:0xc')
    for k in range(4):
        a(f'v_add_f32_dpp v{S_(k)}, v{S_(k)}, v{S_(k)} row_half_mirror row_mask:0xf bank_mask:0x5')
    for k in range(4):
        a(f'v_add_f32_dpp v{S_(k)}, v{S_(k+4)}, v{S_(k+4)} row_half_mirror row_mask:0xf bank_mask:0xa')
    a(f'v_and_b32 v{t0}, 15, v{V_L}')
    a(f'v_lshrrev_b32 v{t1}, 4, v{V_L}')
    a(f'v_and_b32 v{t2}, 3, v{V_L}')
    for qp in ('[3,2,1,0]', '[1,0,3,2]'):
        for k in range(4):
            a(f'v_add_f32_dpp v{S_(k)}, v{S_(k)}, v{S_(k)} quad_perm:{qp} row_mask:0xf bank_mask:0xf')
    a(f'v_cmp_eq_u32 vcc, 1, v{t2}')
    a(f'v_cmp_eq_u32 s[84:85], 2, v{t2}')
    a(f'v_cmp_eq_u32 {sp(S_TMP2)}, 3, v{t2}')
    a(f'v_mul_u32_u24 v{t1}, 96, v{t1}')
    a(f'v_cndmask_b32 v{ST}, v{ST}, v{S_(1)}, vcc')
    a(f'v_cndmask_b32 v{ST}, v{ST}, v{S_(2)}, s[84:85]')
    a(f'v_cndmask_b32 v{ST}, v{ST}, v{S_(3)}, {sp(S_TMP2)}')
    a(f'v_mov_b32_dpp v{ST+1}, v{ST} row_ror:8 row_mask:0xf bank_mask:0xf')
    a(f'v_mul_f32 v{ST}, {hx(1/768)}, v{ST}')
    a(f'v_mul_f32 v{ST+1}, {hx(1/768)}, v{ST+1}')
    a(f'v_fma_f32 v{ST+1}, -v{ST}, v{ST}, v{ST+1}')
    a(f'v_max_f32 v{ST+1}, 0, v{ST+1}')
    a(f'v_cvt_pk_bf16_f32 v{ST+2}, v{ST}, v{ST+1}')
    a(f'v_lshlrev_b32 v{ST}, 16, v{ST+2}')
    a(f'v_and_b32 v{ST+1}, 0xffff0000, v{ST+2}')
    a(f'v_add_f32 v{ST+1}, {hx(1e-5)}, v{ST+1}')
    a(f'v_add_u32 v{t0}, v{t0}, v{t1}')
    a(f'v_cvt_pk_bf16_f32 v{ST+1}, v{ST+1}, v{ST+1}')
    a(f'v_and_b32 v{ST+1}, 0xffff0000, v{ST+1}')
    a(f'v_sqrt_f32 v{ST+1}, v{ST+1}')
    for j in range(8):
        a(f'v_mov_b32_dpp v{MM+j}, v{ST} row_newbcast:{j} row_mask:0xf bank_mask:0xf')
    a(f'v_cvt_pk_bf16_f32 v{ST+1}, v{ST+1}, v{ST+1}')
    a(f'v_and_b32 v{ST+1}, 0xffff0000, v{ST+1}')
    a(f'v_rcp_f32 v{ST+1}, v{ST+1}')
    a(f's_mul_i32 s{S_T}, s{S_WI}, 384')
    a(f's_mul_i32 s{S_T2}, s{S_WJ}, 48')
    a(f's_add_u32 s{S_T}, s{S_T}, s{S_T2}')
    a(f'v_add_u32 v{t0}, s{S_T}, v{t0}')
    a(f'v_lshlrev_b32 v{V_US}, 4, v{t0}')
    for j in range(8):
        a(f'v_mov_b32_dpp v{RR+j}, v{ST+1} row_newbcast:{j} row_mask:0xf bank_mask:0xf')
    a(f's_lshl_b32 s{S_T}, s{S_CB}, 5')
    a(f's_add_u32 s{S_T}, s{S_T}, s{S_RB}')
    a(f's_lshl_b32 s{S_FZA}, s{S_T}, 2')
    a(f's_add_u32 s{S_FZA}, s{S_FZA}, {WS_FZ}')
    a(f's_mul_i32 s{S_T}, s{S_T}, 12288')
    a(f's_add_u32 s{S_T}, s{S_T}, {WS_Z}')
    for phi in range(3):
        for tau in range(2):
            T = [V_T, V_T + 4]
            def both(f):
                for hh in range(2): a(f(ACC2 + 4 * (3 * tau + phi) + 2 * hh, T[hh], 4 * tau + 2 * hh, hh))
            both(lambda c, t, r, hh: f'v_lshlrev_b32 v{t}, 16, v{c}')
            both(lambda c, t, r, hh: f'v_and_b32 v{t+1}, 0xffff0000, v{c}')
            both(lambda c, t, r, hh: f'v_pk_add_f32 {vr(t,2)}, {vr(t,2)}, {vr(MM+r,2)} neg_lo:[0,1] neg_hi:[0,1]')
            both(lambda c, t, r, hh: f'v_cvt_pk_bf16_f32 v{t+2}, v{t}, v{t+1}')
            both(lambda c, t, r, hh: f'v_lshlrev_b32 v{t}, 16, v{t+2}')
            both(lambda c, t, r, hh: f'v_and_b32 v{t+1}, 0xffff0000, v{t+2}')
            both(lambda c, t, r, hh: f'v_pk_mul_f32 {vr(t,2)}, {vr(t,2)}, {vr(RR+r,2)}')
            both(lambda c, t, r, hh: f'v_cvt_pk_bf16_f32 v{ZQ+4*phi+2*tau+hh}, v{t}, v{t+1}')
        a(f'buffer_store_dwordx4 {vr(ZQ+4*phi,4)}, v{V_US}, {srd(SRD_WS)}, s{S_T} offen offset:{256*phi} sc1')
    vm.issue('z', 3)
```

```python
import sys, struct
import numpy as np
sys.path.insert(0, 'gen')
from asmlib import Asm

KNAME = 'gated_mix__ssm_conv_s4__mixer_gmlp__prompt_kernel'

def f2u(x): return struct.unpack('<I', struct.pack('<f', x))[0]
def hx(x): return '0x%08x' % f2u(x)

WS_EPOCH = 0x0
WS_FZ = 0x1000
WS_FU = 0x2000
WS_FP = 0x3000
WS_FA = 0x4000
WS_FG = 0x5000
WS_FS = 0x7000
WS_FW = 0x6000
WS_WO = 0xD00000
WS_G = 0x8000
WS_ST = 0x10000
WS_Z = 0x100000
WS_P = 0x400000
WS_UT = 0x700000
WS_AT = 0xA00000
WS_DBG = 0x1000000
WS_SIZE = 0x4000000

P_U, P_ARE, P_AIM, P_BRE, P_BIM, P_CRE, P_CIM, P_LDT = 16, 18, 20, 22, 24, 26, 28, 30
P_DSK, P_BX, P_WIN, P_WSP, P_BSP, P_WOUT, P_GW, P_OUT = 32, 34, 36, 38, 40, 42, 44, 46
P_DBG, P_WS = 48, 50
SRD_X, SRD_WIN, SRD_WSP, SRD_WOUT, SRD_WS, SRD_OUT = 52, 56, 60, 64, 68, 72
S_TAG, S_W = 80, 81
def srd(n): return f's[{n}:{n+3}]'
def sp(n): return f's[{n}:{n+1}]'
def vr(a, n): return f'v[{a}:{a+n-1}]'

LOG2E = 1.4426950408889634
SPIN_MAX = 100000

def mk_srd(a, dst, ptr, size):
    a(f's_mov_b32 s{dst}, s{ptr}')
    a(f's_and_b32 s{dst+1}, s{ptr+1}, 0xffff')
    a(f's_mov_b32 s{dst+2}, {size}')
    a(f's_mov_b32 s{dst+3}, 0x00020000')

def cmul(a, dst, x, y, tmp):
    a(f'v_pk_mul_f32 {vr(tmp,2)}, {vr(x,2)}, {vr(y,2)} op_sel:[0,0] op_sel_hi:[0,1]')
    a(f'v_pk_fma_f32 {vr(dst,2)}, {vr(x,2)}, {vr(y,2)}, {vr(tmp,2)} op_sel:[1,1,0] op_sel_hi:[1,0,1] neg_lo:[1,0,0]')

PROF = {'on': False}
PSL = [2]
WS_PROF = 0x2000000
def stamp(a, i, base=18):
    if not PROF['on']: return
    a('s_memrealtime s[14:15]')
    a('s_waitcnt lgkmcnt(0)')
    a(f's_mov_b32 s{base+i}, s14')
def stamp_dump(a, n, base=18):
    if not PROF['on']: return
    if PROF.get('dbg'):
        if base != 18: return
        a('s_mov_b64 exec, 1')
        mk_srd(a, 52, P_DBG, 256)
        a(f's_not_b32 s{base}, s{base}')
        for i in range(n):
            a(f'v_mov_b32 v2, s{base+i}')
            a(f'buffer_atomic_umax v2, off, s[52:55], 0 offset:{4*i} sc1')
        a('s_waitcnt vmcnt(0)')
        return
    a('s_mov_b64 exec, 1')
    a('s_lshl_b32 s14, s2, 2')
    a(f's_add_u32 s14, s14, s{S_W}')
    a('s_lshl_b32 s14, s14, 6')
    a(f's_add_u32 s14, s14, {WS_PROF}')
    for i in range(n):
        a(f'v_mov_b32 v2, s{base+i}')
        a(f'buffer_store_dword v2, off, {srd(SRD_WS)}, s14 offset:{4*i}')
    a('s_waitcnt vmcnt(0)')

def poll(a, name, loads, vtmp, scount, nlanes_mask=None):
    a(f's_mov_b32 s{scount}, {SPIN_MAX}')
    a.lab(f'{name}_spin')
    for i, (va, so) in enumerate(loads):
        a(f'buffer_load_dword v{vtmp+i}, v{va}, {srd(SRD_WS)}, {so} offen sc1')
    a('s_waitcnt vmcnt(0)')
    a(f'v_cmp_ne_u32 vcc, s{S_TAG}, v{vtmp}')
    for i in range(1, len(loads)):
        a(f'v_cmp_ne_u32 s[84:85], s{S_TAG}, v{vtmp+i}')
        a('s_or_b64 vcc, vcc, s[84:85]')
    a(f's_cbranch_vccz {name}_done')
    a(f's_sleep {PSL[0]}')
    a(f's_sub_u32 s{scount}, s{scount}, 1')
    a(f's_cmp_lg_u32 s{scount}, 0')
    a(f's_cbranch_scc1 {name}_spin')
    a.lab(f'{name}_done')

WAVE_LDS = 26624
CP = 4160
UOFF = 16640
def get_tag(a, n):
    a(f's_waitcnt vmcnt({n})')
    a(f'v_readfirstlane_b32 s{S_TAG}, v127')
    a(f's_add_u32 s{S_TAG}, s{S_TAG}, 1')

def side_channel(a, opt):
    sD, sLB, sT, sT2, sUns = 82, 83, 86, 87, 88
    vL = 1
    if opt.get('sprio'): a(f's_setprio {opt["sprio"]}')
    stamp(a, 0, 52)
    a(f's_mul_i32 s{sLB}, s{S_W}, {WAVE_LDS}')
    a(f's_mul_i32 s{sT}, s{sD}, 384')
    a(f'v_lshlrev_b32 v2, 1, v{vL}')
    a(f'v_add_u32 v2, s{sT}, v2')
    PR = 10
    arrs = [P_ARE, P_AIM, P_BRE, P_BIM, P_CRE, P_CIM]
    a(f's_lshl_b32 s{sT}, s{sD}, 1')
    a(f'v_mov_b32 v3, s{sT}')
    a(f'global_load_ushort v28, v3, {sp(P_LDT)}')
    a(f'global_load_ushort v29, v3, {sp(P_DSK)}')
    for ch in range(3):
        for k, p in enumerate(arrs):
            a(f'global_load_ushort v{PR+6*ch+k}, v2, {sp(p)} offset:{128*ch}')
    vWr, vRd = 104, 4
    a(f'v_and_b32 v6, 7, v{vL}')
    a(f'v_lshlrev_b32 v7, 7, v{vL}')
    a(f'v_add_u32 v7, s{sLB}, v7')
    for p in range(8):
        a(f'v_xor_b32 v8, {p}, v6')
        a(f'v_lshl_add_u32 v{vWr+p}, v8, 4, v7')
    a(f'v_lshrrev_b32 v6, 5, v{vL}')
    a(f'v_bfe_u32 v7, v{vL}, 3, 1')
    a('v_lshl_add_u32 v6, v6, 2, v7')
    a(f'v_bfe_u32 v7, v{vL}, 2, 1')
    a('v_lshlrev_b32 v7, 2, v7')
    a(f'v_bfe_u32 v8, v{vL}, 4, 1')
    a('v_lshl_add_u32 v7, v8, 1, v7')
    a(f'v_bfe_u32 v8, v{vL}, 1, 1')
    a('v_add_u32 v7, v7, v8')
    a(f'v_and_b32 v9, 1, v{vL}')
    a('v_lshlrev_b32 v9, 3, v9')
    a(f'v_add_u32 v9, s{sLB}, v9')
    for i in range(2):
        if i: a('v_add_u32 v6, 2, v6')
        a('v_xor_b32 v8, v7, v6')
        a(f'v_lshl_add_u32 v{vRd+i}, v8, 4, v9')
        a(f'v_lshl_add_u32 v{vRd+i}, v6, 7, v{vRd+i}')
    a(f'v_and_b32 v6, 31, v{vL}')
    a(f'v_lshrrev_b32 v7, 5, v{vL}')
    hi = struct.unpack('<f', struct.pack('<I', f2u(LOG2E) & 0xFFFFF000))[0]
    lo = LOG2E - hi
    get_tag(a, 18)
    a('v_lshlrev_b32 v28, 16, v28')
    a('v_lshlrev_b32 v29, 16, v29')
    a(f'v_mul_f32 v8, {hx(hi)}, v28')
    a('v_rndne_f32 v9, v8')
    a('v_sub_f32 v8, v8, v9')
    a(f'v_fmac_f32 v8, {hx(lo)}, v28')
    a('v_exp_f32 v8, v8')
    a('v_cvt_i32_f32 v9, v9')
    a('v_ldexp_f32 v8, v8, v9')
    a('v_cvt_pk_bf16_f32 v8, v8, v8')
    a('v_lshlrev_b32 v28, 16, v8')
    a('s_waitcnt vmcnt(0)')
    for i in range(18):
        a(f'v_lshlrev_b32 v{PR+i}, 16, v{PR+i}')
    WR = 32
    AW = 38
    for ch in range(3):
        b = PR + 6 * ch
        a(f'v_mul_f32 v{b}, v28, v{b}')
        a(f'v_mul_f32 v{b+1}, v28, v{b+1}')
        a(f'v_mul_f32 v{b+2}, v28, v{b+2}')
        a(f'v_mul_f32 v{b+3}, v28, v{b+3}')
        a(f'v_mul_f32 v{AW+2*ch}, {hx(LOG2E)}, v{b}')
        a(f'v_mul_f32 v{AW+2*ch+1}, {hx(1/(2*np.pi))}, v{b+1}')
        cmul(a, WR + 2 * ch, b + 4, b + 2, 8)
    a(f'v_max3_f32 v8, abs(v{WR}), abs(v{WR+1}), abs(v{WR+2})')
    a(f'v_max3_f32 v8, v8, abs(v{WR+3}), abs(v{WR+4})')
    a(f'v_max_f32 v8, v8, abs(v{WR+5})')
    for r in (8, 4, 2, 1):
        a(f'v_max_f32_dpp v8, v8, v8 row_ror:{r} row_mask:0xf bank_mask:0xf')
    a(f'v_readlane_b32 s{sT}, v8, 0')
    a(f'v_readlane_b32 s{sT2}, v8, 16')
    a(f's_max_u32 s{sT}, s{sT}, s{sT2}')
    a(f'v_readlane_b32 s{sT2}, v8, 32')
    a(f's_max_u32 s{sT}, s{sT}, s{sT2}')
    a(f'v_readlane_b32 s{sT2}, v8, 48')
    a(f's_max_u32 s{sT}, s{sT}, s{sT2}')
    a(f's_lshr_b32 s{sT}, s{sT}, 23')
    a(f's_min_u32 s{sT}, s{sT}, 252')
    a(f's_add_u32 s{sUns}, s{sT}, 1')
    a(f's_lshl_b32 s{sUns}, s{sUns}, 23')
    a(f's_sub_u32 s{sT}, 253, s{sT}')
    a(f's_lshl_b32 s{sT}, s{sT}, 23')
    for i in range(6):
        a(f'v_mul_f32 v{WR+i}, s{sT}, v{WR+i}')
    kd = opt.get('kd', 0)
    if kd and not opt.get('no_gemm'):
        if kd == 1:
            a('s_lshl_b32 s92, s2, 2')
            a(f's_add_u32 s92, s92, {WS_FS-1024}')
        else:
            a('s_lshl_b32 s92, s2, 2')
            a(f's_add_u32 s92, s92, {WS_FS-1024+1024}')
        wait_word(a, 'L_kd', 92, 8)
    stamp(a, 7, 52)
    D = 72
    for i in range(16):
        a(f'v_mov_b32 v{D+i}, 0')
    E1, E8, GG = 44, 46, 48
    X = 112
    T = 8
    PKX = 168
    PKY = 200
    YA = 50
    FR = 88
    YB = 8192
    sCnt = 89
    UR = 232
    a(f's_lshr_b32 s90, s{sD}, 6')
    a('s_lshl_b32 s90, s90, 7')
    a(f's_add_u32 s90, s90, {WS_FU}')
    a('v_lshlrev_b32 v248, 2, v6')
    a(f'v_lshlrev_b32 v249, 4, v{vL}')
    a(f's_lshl_b32 s92, s{sD}, 12')
    a(f's_add_u32 s92, s92, {WS_UT}')
    a('s_mov_b32 s91, 1')
    def u_loads():
        for it in range(4):
            a(f'buffer_load_dwordx4 {vr(UR+4*it,4)}, v249, {srd(SRD_WS)}, s92 offen offset:{1024*it} sc1')
    a(f's_mov_b32 s{sCnt}, 3')
    a.lab('L_kg_chunk')
    if opt.get('eu'):
        a(f's_cmp_gt_u32 s{sCnt}, {opt["eu"]}')
        a('s_cbranch_scc1 L_u_nl')
        a(f'buffer_load_dword v250, v248, {srd(SRD_WS)}, s90 offen sc1')
        a.lab('L_u_nl')
    def cexp(dst, P):
        if P == 1:
            a(f'v_exp_f32 v{T}, v{AW}')
            a(f'v_fract_f32 v{T+1}, v{AW+1}')
        else:
            a(f'v_mul_f32 v{T}, {hx(float(P))}, v{AW}')
            a(f'v_mul_f32 v{T+1}, {hx(float(P))}, v{AW+1}')
            a(f'v_exp_f32 v{T}, v{T}')
            a(f'v_fract_f32 v{T+1}, v{T+1}')
        a(f'v_cos_f32 v{dst}, v{T+1}')
        a(f'v_sin_f32 v{dst+1}, v{T+1}')
        a(f'v_pk_mul_f32 {vr(dst,2)}, {vr(dst,2)}, {vr(T,2)} op_sel:[0,0] op_sel_hi:[1,0]')
    cexp(E8, 8); cexp(E1, 1); cexp(GG, 256)
    def row_of(h, reg): return 8 * (reg >> 2) + 4 * h + (reg & 3)
    def flush(pk, base, j):
        if opt.get('kg_nowr'): return
        a(f'ds_write_b128 v{vWr+j}, {vr(pk+4*j,4)} offset:{base}')
        a(f'ds_write_b128 v{vWr+4+j}, {vr(pk+16+4*j,4)} offset:{base}')
    one = 54
    a(f'v_mov_b32 v{one}, 1.0')
    a(f'v_mov_b32 v{one+1}, 0')
    prev = None
    for k in range(32):
        if k == 0: cur = one
        elif k == 1: cur = E8
        else:
            cur = YA + 2 * (k & 1)
            cmul(a, cur, prev, E8, T)
        if k & 1:
            a(f'v_cvt_pk_f16_f32 v{PKY+(k>>1)}, v{prev}, v{cur}')
            a(f'v_cvt_pk_f16_f32 v{PKY+16+(k>>1)}, -v{prev+1}, -v{cur+1}')
            if (k & 7) == 7: flush(PKY, YB, k >> 3)
        prev = cur
    if opt.get('eu'):
        a(f's_cmp_gt_u32 s{sCnt}, {opt["eu"]}')
        a('s_cbranch_scc1 L_u_skip')
        a('s_cmp_eq_u32 s91, 0')
        a('s_cbranch_scc1 L_u_skip')
        a('s_waitcnt vmcnt(0)')
        a(f'v_cmp_ne_u32 vcc, s{S_TAG}, v250')
        a('s_cbranch_vccnz L_u_skip')
        u_loads()
        a('s_mov_b32 s91, 0')
        a.lab('L_u_skip')
    val = {0: WR}
    nxt = [X]
    def mk(P, src, mul):
        val[P] = nxt[0]; nxt[0] += 2
        cmul(a, val[P], val[src], mul, T)
    rows = {}
    for k in range(8): rows[row_of(0, k)] = k
    for k, P in enumerate((256, 256, 258, 260, 260, 260, 262, 264)): rows[row_of(1, k)] = P
    for k, P in enumerate((512, 516, 520, 1024, 1032, 1280, 1288)): rows[row_of(0, 8 + k)] = P
    for k, P in enumerate((768, 772, 776, 1536, 1544, 1792, 1800)): rows[row_of(1, 8 + k)] = P
    rows[27] = 1288; rows[31] = 1800
    done = set()
    def pack_ready():
        for r in range(0, 32, 2):
            if r in done or rows[r] not in val or rows[r + 1] not in val: continue
            done.add(r)
            p, q = val[rows[r]], val[rows[r + 1]]
            a(f'v_cvt_pk_f16_f32 v{PKX+(r>>1)}, v{p}, v{q}')
            a(f'v_cvt_pk_f16_f32 v{PKX+16+(r>>1)}, v{p+1}, v{q+1}')
            j = r >> 3
            if all((8 * j + e) in done for e in (0, 2, 4, 6)): flush(PKX, 0, j)
    order = [(k, k - 1, E1) for k in range(1, 9)] + [(256 + k, k, GG) for k in (0, 2, 4, 6, 8)]
    for b in (512, 768): order += [(b + k, b - 256 + k, GG) for k in (0, 4, 8)]
    for b in (1024, 1280, 1536, 1792): order += [(b + k, b - 256 + k, GG) for k in (0, 8)]
    for (P, src, mul) in order:
        mk(P, src, mul); pack_ready()
    assert len(done) == 16
    def rd(ks):
        f = FR + 8 * (ks & 1)
        for i in range(2):
            a(f'ds_read_b64_tr_b16 {vr(f+2*i,2)}, v{vRd+i} offset:{1024*ks}')
        for i in range(2):
            a(f'ds_read_b64_tr_b16 {vr(f+4+2*i,2)}, v{vRd+i} offset:{YB+1024*ks}')
    rd(0); rd(1)
    for i in range(4):
        a(f'v_mov_b32 v{WR+i}, v{WR+2+i}')
    for i in range(4):
        a(f'v_mov_b32 v{AW+i}, v{AW+2+i}')
    for ks in range(8):
        f = FR + 8 * (ks & 1)
        a('s_waitcnt lgkmcnt(4)' if ks < 7 else 's_waitcnt lgkmcnt(0)')
        a(f'v_mfma_f32_32x32x16_f16 {vr(D,16)}, {vr(f,4)}, {vr(f+4,4)}, {vr(D,16)}')
        if ks + 2 < 8: rd(ks + 2)
    a(f's_sub_u32 s{sCnt}, s{sCnt}, 1')
    a(f's_cmp_lg_u32 s{sCnt}, 0')
    a('s_cbranch_scc1 L_kg_chunk')
    stamp(a, 1, 52)
    a(f'v_lshlrev_b32 v10, 4, v6')
    a(f'v_sub_u32 v10, {16*255}, v10')
    a(f'v_add_u32 v10, s{sLB}, v10')
    a(f'v_lshlrev_b32 v11, 9, v7')
    a(f'v_sub_u32 v12, v10, v11')
    a(f'v_subrev_u32 v12, 1024, v12')
    a(f'v_sub_u32 v13, v10, v11')
    a(f'v_sub_u32 v13, v13, v11')
    a(f'v_subrev_u32 v13, 2560, v13')
    a(f'v_and_b32 v14, 1, v{vL}')
    a('v_cmp_eq_u32 vcc, 0, v14')
    a.fence(8)
    for i in range(15):
        a(f'v_mul_f32 v{D+i}, s{sUns}, v{D+i}')
    O = 16
    O = 88
    for j in range(4):
        a(f'v_cvt_pk_bf16_f32 v{O+j}, v{D+7-2*j}, v{D+6-2*j}')
    a(f'ds_write_b128 v12, {vr(O,4)} offset:1024')
    w0, w4, w8 = D + 8, D + 9, D + 10
    for j, (lo_, hi_) in enumerate([(w8, w8), (w4, w4), (w4, w0), (w0, w0)]):
        a(f'v_cvt_pk_bf16_f32 v{O+4+j}, v{lo_}, v{hi_}')
    a(f'ds_write_b128 v12, {vr(O+4,4)}')
    for s, (x0, x8, off) in enumerate([(D + 11, D + 12, 512), (D + 13, D + 14, 0)]):
        q = O + 8 + 4 * s
        a(f'v_cndmask_b32 v14, v{x8}, v{x0}, vcc')
        a(f'v_cvt_pk_bf16_f32 v{q}, v{x8}, v{x8}')
        a(f'v_cvt_pk_bf16_f32 v{q+1}, v{x8}, v14')
        a(f'v_cvt_pk_bf16_f32 v{q+2}, v{x0}, v{x0}')
        a(f'v_mov_b32 v{q+3}, v{q+2}')
        a(f'ds_write_b128 v13, {vr(q,4)} offset:{off}')
    a(f'v_lshrrev_b32 v10, 2, v{vL}')
    a(f'v_mul_u32_u24 v10, {CP}, v10')
    a(f'v_and_b32 v11, 3, v{vL}')
    a(f'v_lshl_add_u32 v10, v11, 4, v10')
    a(f'v_add_u32 v10, 4096, v10')
    a(f'v_subrev_u32 v11, 16, v{vL}')
    a(f'v_min_u32 v11, 29, v11')
    a(f'v_lshlrev_b32 v11, 4, v11')
    a(f'v_add_u32 v11, {UOFF}, v11')
    a(f'v_cmp_gt_u32 vcc, 16, v{vL}')
    a('v_cndmask_b32 v10, v11, v10, vcc')
    a(f'v_add_u32 v10, s{sLB}, v10')
    for i in range(4):
        a(f'v_mov_b32 v{16+i}, 0')
    a(f'ds_write_b128 v10, v[16:19]')
    a(f'v_lshlrev_b32 v10, 4, v{vL}')
    a(f'v_add_u32 v10, s{sLB}, v10')
    Wd = 32
    for it in range(4):
        a(f'ds_read_b128 {vr(Wd+8*it,4)}, v10 offset:{1024*it}')
        a(f'ds_read_b64 {vr(Wd+8*it+4,2)}, v10 offset:{1024*it+16}')
    for it in range(4):
        w = Wd + 8 * it
        q = 64 + 12 * (it & 1)
        a(f's_waitcnt lgkmcnt({min(15, 6 - 2*it + 3*it)})' if False else f's_waitcnt lgkmcnt({(3-it)*2 + (3*it if it else 0) if False else 0})' if it == 0 else '; (already waited)')
        for k in range(4):
            a(f'v_alignbyte_b32 v{q+k}, v{w+k+1}, v{w+k}, 2')
        a(f'ds_write_b128 v10, {vr(q,4)} offset:{CP+1024*it}')
        for k in range(4):
            a(f'v_mov_b32 v{q+4+k}, v{w+k+1}')
        a(f'ds_write_b128 v10, {vr(q+4,4)} offset:{2*CP+1024*it}')
        for k in range(4):
            a(f'v_alignbyte_b32 v{q+8+k}, v{w+k+2}, v{w+k+1}, 2')
        a(f'ds_write_b128 v10, {vr(q+8,4)} offset:{3*CP+1024*it}')
    if opt.get('dump_k'):
        a('s_waitcnt lgkmcnt(0)')
        a(f's_mul_i32 s{sT}, s{sD}, 17408')
        a(f's_add_u32 s{sT}, s{sT}, {WS_DBG}')
        a(f'v_lshlrev_b32 v11, 4, v{vL}')
        for it in range(17):
            a(f'ds_read_b128 v[16:19], v10 offset:{1024*it}')
            a('s_waitcnt lgkmcnt(0)')
            a(f'buffer_store_dwordx4 v[16:19], v11, {srd(SRD_WS)}, s{sT} offen')
            a(f's_add_u32 s{sT}, s{sT}, 1024')
        a('s_waitcnt vmcnt(0)')
    stamp(a, 2, 52)
    a('s_cmp_eq_u32 s91, 0')
    a('s_cbranch_scc1 L_u_have')
    poll(a, 'L_pu', [(248, 's90')], 12, 89)
    u_loads()
    a.lab('L_u_have')
    stamp(a, 3, 52)
    a(f's_lshl_b32 s{sT}, s{sD}, 12')
    vKA, vUB = 4, 5
    a(f'v_and_b32 v12, 15, v{vL}')
    a(f'v_lshrrev_b32 v13, 4, v{vL}')
    a('v_sub_u32 v14, 3, v12')
    a('v_and_b32 v14, 3, v14')
    a(f'v_mul_u32_u24 v{vKA}, {CP}, v14')
    a('v_add_u32 v15, v12, v14')
    a('v_sub_u32 v15, 2031, v15')
    a('v_lshl_add_u32 v15, v13, 3, v15')
    a(f'v_lshl_add_u32 v{vKA}, v15, 1, v{vKA}')
    a(f'v_subrev_u32 v{vKA}, {512*7}, v{vKA}')
    a(f'v_add_u32 v{vKA}, s{sLB}, v{vKA}')
    a(f'v_lshlrev_b32 v{vUB}, 5, v12')
    a(f'v_lshl_add_u32 v{vUB}, v13, 4, v{vUB}')
    a(f'v_add_u32 v{vUB}, {UOFF+448}, v{vUB}')
    a(f'v_add_u32 v{vUB}, s{sLB}, v{vUB}')
    a('v_lshlrev_b32 v6, 5, v12')
    a('v_lshl_add_u32 v6, v13, 3, v6')
    a(f'v_add_u32 v6, {UOFF+480}, v6')
    a(f'v_add_u32 v6, s{sLB}, v6')
    a('v_lshlrev_b32 v7, 5, v12')
    a('v_lshrrev_b32 v15, 1, v13')
    a('v_lshl_add_u32 v7, v15, 4, v7')
    a('v_and_b32 v15, 1, v13')
    a('v_lshl_add_u32 v7, v15, 9, v7')
    ACC = 64
    for i in range(32):
        a(f'v_mov_b32 v{ACC+i}, 0')
    for it in range(4):
        a(f's_waitcnt vmcnt({3-it})')
        a(f'ds_write_b128 v10, {vr(UR+4*it,4)} offset:{UOFF+480+1024*it}')
    if opt.get('cg', 0) and not opt.get('no_gemm'):
        if opt.get('cg', 0) == 1:
            a('s_lshl_b32 s92, s2, 2')
            a(f's_add_u32 s92, s92, {WS_FS-1024}')
        elif opt.get('cg', 0) == 3:
            a('s_lshl_b32 s92, s2, 2')
            a(f's_add_u32 s92, s92, {WS_FS}')
        else:
            a('s_sub_u32 s90, s2, 256')
            rbcb(a, 90, 91, 92, 93)
            a('s_lshl_b32 s92, s92, 5')
            a('s_add_u32 s92, s92, s91')
            a('s_lshl_b32 s92, s92, 2')
            a(f's_add_u32 s92, s92, {WS_FZ}')
        wait_word(a, 'L_cg', 92, opt.get('cgs', 4))
    FA = [96, 160]
    def loads(s):
        L = []
        for g in range(8):
            L.append(f'ds_read_b64 {vr(FA[s]+4*g,2)}, v{vKA} offset:{512*(7-g)}')
            L.append(f'ds_read_b64 {vr(FA[s]+4*g+2,2)}, v{vKA} offset:{512*(7-g)+8}')
            L.append(f'ds_read_b128 {vr(FA[s]+32+4*g,4)}, v{vUB} offset:{512*g}')
        return L
    stamp(a, 4, 52)
    for l in loads(0): a(l)
    a(f's_mov_b32 s{sCnt}, 4')
    a.lab('L_conv')
    for s in range(2):
        a(f'v_subrev_u32 v{vKA}, 64, v{vKA}')
        a(f'v_subrev_u32 v{vUB}, 64, v{vUB}')
        a('s_waitcnt lgkmcnt(0)')
        nxt = loads(1 - s)
        pairs = [(g, i) for tot in range(8) for g in range(tot + 1) for i in [tot - g]]
        pairs = sorted(pairs, key=lambda p: (p[0], p[1]))
        k = 0
        for idx, (g, i) in enumerate(pairs):
            jt = g + i
            a(f'v_mfma_f32_16x16x32_bf16 {vr(ACC+4*jt,4)}, {vr(FA[s]+4*g,4)}, {vr(FA[s]+32+4*i,4)}, {vr(ACC+4*jt,4)}')
            if k < len(nxt) and idx >= 2:
                a(nxt[k]); k += 1
        while k < len(nxt):
            a(nxt[k]); k += 1
    a(f's_sub_u32 s{sCnt}, s{sCnt}, 1')
    a(f's_cmp_lg_u32 s{sCnt}, 0')
    a('s_cbranch_scc1 L_conv')
    a('s_waitcnt lgkmcnt(0)')
    stamp(a, 5, 52)
    a('v_mov_b32 v28, v29')
    UU = 32
    for jt in range(8):
        a(f'ds_read_b64 {vr(UU+2*jt,2)}, v6 offset:{512*jt}')
    a(f's_add_u32 s{sT2}, s{sT}, {WS_AT}')
    a('s_waitcnt lgkmcnt(0)')
    RES = 96
    for jt in range(8):
        c = ACC + 4 * jt
        t = 112 + 8 * (jt & 1)
        a(f'v_cvt_pk_bf16_f32 v{t}, v{c}, v{c+1}')
        a(f'v_cvt_pk_bf16_f32 v{t+1}, v{c+2}, v{c+3}')
        a(f'v_lshlrev_b32 v{c}, 16, v{UU+2*jt}')
        a(f'v_and_b32 v{c+1}, 0xffff0000, v{UU+2*jt}')
        a(f'v_lshlrev_b32 v{c+2}, 16, v{UU+2*jt+1}')
        a(f'v_and_b32 v{c+3}, 0xffff0000, v{UU+2*jt+1}')
        a(f'v_pk_mul_f32 {vr(c,2)}, {vr(c,2)}, {vr(28,2)}')
        a(f'v_pk_mul_f32 {vr(c+2,2)}, {vr(c+2,2)}, {vr(28,2)}')
        a(f'v_cvt_pk_bf16_f32 v{t+2}, v{c}, v{c+1}')
        a(f'v_cvt_pk_bf16_f32 v{t+3}, v{c+2}, v{c+3}')
        a(f'v_lshlrev_b32 v{c}, 16, v{t}')
        a(f'v_and_b32 v{c+1}, 0xffff0000, v{t}')
        a(f'v_lshlrev_b32 v{c+2}, 16, v{t+1}')
        a(f'v_and_b32 v{c+3}, 0xffff0000, v{t+1}')
        a(f'v_lshlrev_b32 v{t+4}, 16, v{t+2}')
        a(f'v_and_b32 v{t+5}, 0xffff0000, v{t+2}')
        a(f'v_lshlrev_b32 v{t+6}, 16, v{t+3}')
        a(f'v_and_b32 v{t+7}, 0xffff0000, v{t+3}')
        a(f'v_pk_add_f32 {vr(c,2)}, {vr(c,2)}, {vr(t+4,2)}')
        a(f'v_pk_add_f32 {vr(c+2,2)}, {vr(c+2,2)}, {vr(t+6,2)}')
        q = RES + 4 * (jt >> 1) + 2 * (jt & 1)
        a(f'v_cvt_pk_bf16_f32 v{q}, v{c}, v{c+1}')
        a(f'v_cvt_pk_bf16_f32 v{q+1}, v{c+2}, v{c+3}')
        if jt & 1:
            q0 = RES + 4 * (jt >> 1)
            a(f'v_permlane16_swap_b32 v{q0}, v{q0+2}')
            a(f'v_permlane16_swap_b32 v{q0+1}, v{q0+3}')
            a(f'buffer_store_dwordx4 {vr(q0,4)}, v7, {srd(SRD_WS)}, s{sT2} offen offset:{1024*(jt>>1)} sc1')
    a('s_waitcnt vmcnt(0)')
    a(f's_lshl_b32 s{sT}, s{sD}, 2')
    a(f's_add_u32 s{sT}, s{sT}, {WS_FA}')
    a(f'v_mov_b32 v8, s{S_TAG}')
    a('s_mov_b64 exec, 1')
    a(f'buffer_store_dword v8, off, {srd(SRD_WS)}, s{sT} sc1')
    stamp(a, 6, 52)
    stamp_dump(a, 8, 52)
    a('s_endpgm')

def rbcb(a, sidx, srb, scb, st):
    a(f's_and_b32 s{st}, s{sidx}, 7')
    a(f's_lshr_b32 s{srb}, s{st}, 1')
    a(f's_lshl_b32 s{srb}, s{srb}, 3')
    a(f's_lshr_b32 s{scb}, s{sidx}, 5')
    a(f's_add_u32 s{srb}, s{srb}, s{scb}')
    a(f's_and_b32 s{scb}, s{st}, 1')
    a(f's_lshl_b32 s{scb}, s{scb}, 2')
    a(f's_bfe_u32 s{st}, s{sidx}, 0x20003')
    a(f's_add_u32 s{scb}, s{scb}, s{st}')

def wait_word(a, name, saddr, sleep=8):
    a(f's_mov_b32 s89, {SPIN_MAX}')
    a.lab(f'{name}_spin')
    a(f'buffer_load_dword v8, off, {srd(SRD_WS)}, s{saddr} sc1')
    a('s_waitcnt vmcnt(0)')
    a(f'v_cmp_ne_u32 vcc, s{S_TAG}, v8')
    a(f's_cbranch_vccz {name}_done')
    a(f's_sleep {sleep}')
    a('s_sub_u32 s89, s89, 1')
    a('s_cmp_lg_u32 s89, 0')
    a(f's_cbranch_scc1 {name}_spin')
    a.lab(f'{name}_done')

def wait_fu(a, name, srb, st):
    a(f's_lshl_b32 s{st}, s{srb}, 2')
    a(f's_add_u32 s{st}, s{st}, {WS_FU}')
    wait_word(a, name, st)

def side_gate(a, opt):
    sK, sT = 82, 86
    vL = 1
    a(f's_sub_u32 s{sK}, s2, 256')
    rbcb(a, sK, 90, 91, 92)
    if opt.get('dly', 0):
        wait_fu(a, 'L_gw', 90, 92)
    a(f's_mul_i32 s{sT}, s{sK}, {8*1280}')
    a(f'v_lshrrev_b32 v2, 3, v{vL}')
    a(f'v_and_b32 v3, 7, v{vL}')
    a('v_lshlrev_b32 v4, 4, v3')
    a('v_mul_u32_u24 v5, 1280, v2')
    a('v_add_u32 v5, v5, v4')
    a(f'v_add_u32 v5, s{sT}, v5')
    XR, WR = 16, 56
    for it in range(10):
        a(f'global_load_dwordx4 {vr(XR+4*it,4)}, v5, {sp(P_U)} offset:{128*it}')
        a(f'global_load_dwordx4 {vr(WR+4*it,4)}, v4, {sp(P_GW)} offset:{128*it}')
    get_tag(a, 20)
    a('v_mov_b32 v6, 0')
    a('v_mov_b32 v7, 0')
    for it in range(10):
        a(f's_waitcnt vmcnt({18-2*it})')
        for k in range(4):
            x, w = XR + 4 * it + k, WR + 4 * it + k
            a(f'v_lshlrev_b32 v8, 16, v{x}')
            a(f'v_and_b32 v9, 0xffff0000, v{x}')
            a(f'v_lshlrev_b32 v10, 16, v{w}')
            a(f'v_and_b32 v11, 0xffff0000, v{w}')
            a('v_pk_mul_f32 v[8:9], v[8:9], v[10:11]')
            a('v_cvt_pk_bf16_f32 v12, v8, v9')
            a('v_lshlrev_b32 v8, 16, v12')
            a('v_and_b32 v9, 0xffff0000, v12')
            a('v_pk_add_f32 v[6:7], v[6:7], v[8:9]')
    a('v_add_f32 v6, v6, v7')
    a('v_add_f32_dpp v6, v6, v6 quad_perm:[1,0,3,2] row_mask:0xf bank_mask:0xf')
    a('v_add_f32_dpp v6, v6, v6 quad_perm:[2,3,0,1] row_mask:0xf bank_mask:0xf')
    a('v_add_f32_dpp v6, v6, v6 row_half_mirror row_mask:0xf bank_mask:0xf')
    a('v_cvt_pk_bf16_f32 v6, v6, v6')
    a('v_lshlrev_b32 v6, 16, v6')
    a(f'v_mul_f32 v6, {hx(-LOG2E)}, v6')
    a('v_exp_f32 v6, v6')
    a('v_add_f32 v6, 1.0, v6')
    a('v_rcp_f32 v6, v6')
    a('v_cvt_pk_bf16_f32 v6, v6, v6')
    a('v_lshlrev_b32 v8, 16, v6')
    a('v_sub_f32 v9, 1.0, v8')
    a('v_cvt_pk_bf16_f32 v9, v9, v9')
    a('v_lshlrev_b32 v9, 16, v9')
    a(f's_lshl_b32 s{sT}, s{sK}, 6')
    a(f's_add_u32 s{sT}, s{sT}, {WS_G}')
    a('v_lshlrev_b32 v10, 3, v2')
    a('v_cmp_eq_u32 vcc, 0, v3')
    a('s_and_saveexec_b64 s[84:85], vcc')
    a(f'buffer_store_dwordx2 v[8:9], v10, {srd(SRD_WS)}, s{sT} offen sc1')
    a('s_waitcnt vmcnt(0)')
    a(f's_lshl_b32 s{sT}, s{sK}, 2')
    a(f's_add_u32 s{sT}, s{sT}, {WS_FG}')
    a(f'v_mov_b32 v8, s{S_TAG}')
    a('s_mov_b64 exec, 1')
    a(f'buffer_store_dword v8, off, {srd(SRD_WS)}, s{sT} sc1')
    pf = opt.get('pf', 0)
    if pf:
        a('s_mov_b64 exec, -1')
        mk_srd(a, SRD_WSP, P_WSP, 2048 * 2048 * 2)
        if opt.get('pft', 1):
            a('s_lshl_b32 s92, s90, 14')
            a('s_lshl_b32 s93, s91, 5')
            a('s_add_u32 s92, s92, s93')
            a(f's_add_u32 s92, s92, {WS_ST+8}')
            wait_word(a, 'L_gs', 92)
        a('s_lshl_b32 s92, s90, 18')
        a('s_and_b32 s93, s91, 3')
        a('s_lshl_b32 s93, s93, 16')
        a('s_add_u32 s92, s92, s93')
        a(f'v_lshlrev_b32 v2, {7 if pf == 128 else 6}, v{vL}')
        for i in range(65536 // (64 * pf)):
            a(f'buffer_load_dword v{10+i}, v2, {srd(SRD_WSP)}, s92 offen')
            a(f's_add_u32 s92, s92, {64*pf}')
    a('s_endpgm')

def side_retile(a, opt):
    vL = 1
    mk_srd(a, SRD_WOUT, P_WOUT, 768 * 640 * 2)
    if opt.get('dly', 0):
        a('s_and_b32 s90, s2, 31')
        wait_fu(a, 'L_rw', 90, 92)
    a('s_sub_u32 s82, s2, 384')
    a('s_lshl_b32 s82, s82, 1')
    LB = 2 * WAVE_LDS
    for j in range(5):
        a(f'v_add_u32 v2, {64*j}, v{vL}')
        a('v_mul_u32_u24 v3, 52429, v2')
        a('v_lshrrev_b32 v3, 19, v3')
        a('v_mul_u32_u24 v4, 10, v3')
        a('v_sub_u32 v2, v2, v4')
        a('v_mul_u32_u24 v3, 1280, v3')
        a(f'v_lshl_add_u32 v{10+j}, v2, 4, v3')
    for un in range(2):
        a(f's_add_u32 s83, s82, {un}')
        a('s_mul_i32 s86, s83, 43691')
        a('s_lshr_b32 s86, s86, 20')
        a('s_mul_i32 s87, s86, 24')
        a('s_sub_u32 s87, s83, s87')
        a('s_mul_i32 s87, s87, 40960')
        a('s_mul_i32 s86, s86, 160')
        a('s_add_u32 s88, s86, s87')
        for j in range(5):
            a(f's_mov_b32 m0, {LB+5120*un+1024*j}')
            a(f'buffer_load_dwordx4 v{10+j}, {srd(SRD_WOUT)}, s88 offen lds')
    a(f'v_lshrrev_b32 v2, 4, v{vL}')
    a(f'v_bfe_u32 v3, v{vL}, 2, 2')
    a('v_lshl_add_u32 v2, v2, 3, v3')
    a('v_mul_u32_u24 v2, 160, v2')
    a(f'v_and_b32 v3, 3, v{vL}')
    a('v_lshl_add_u32 v2, v3, 3, v2')
    a(f'v_add_u32 v2, {LB}, v2')
    a(f'v_lshlrev_b32 v5, 4, v{vL}')
    a('s_mul_i32 s86, s82, 5120')
    a(f's_add_u32 s86, s86, {WS_WO}')
    get_tag(a, 0)
    for un in range(2):
        for dl in range(5):
            for half in range(2):
                a(f'ds_read_b64_tr_b16 {vr(16+20*un+4*dl+2*half,2)}, v2 offset:{5120*un+640*half+32*dl}')
    a('s_waitcnt lgkmcnt(0)')
    for un in range(2):
        for dl in range(5):
            if dl == 4: a('s_add_u32 s86, s86, 4096')
            a(f'buffer_store_dwordx4 {vr(16+20*un+4*dl,4)}, v5, {srd(SRD_WS)}, s86 offen offset:{1024*(dl%4)} sc1')
        a('s_add_u32 s86, s86, 1024')
    a('s_waitcnt vmcnt(0)')
    a('s_lshl_b32 s86, s82, 2')
    a(f's_add_u32 s86, s86, {WS_FW}')
    a(f'v_mov_b32 v8, s{S_TAG}')
    a(f'v_mov_b32 v9, s{S_TAG}')
    a('s_mov_b64 exec, 1')
    a(f'buffer_store_dwordx2 v[8:9], off, {srd(SRD_WS)}, s86 sc1')
    a('s_endpgm')

def side_keeper(a, opt):
    vL = 1
    get_tag(a, 0)
    a(f'v_lshlrev_b32 v2, 2, v{vL}')
    loads = [(2, WS_FZ + 256 * i) for i in range(4)] + [(2, WS_FA + 256 * i) for i in range(10)] + [(2, WS_FG + 256 * i) for i in range(4)]
    a(f's_mov_b32 s86, {WS_FZ}')
    a(f's_mov_b32 s87, {WS_FA}')
    a(f's_mov_b32 s88, {WS_FG}')
    a(f's_mov_b32 s90, {WS_FW}')
    L = [(2, f's86 offen offset:{256*i} ;') for i in range(4)]
    a(f's_mov_b32 s89, {SPIN_MAX}')
    a.lab('L_keep_spin')
    n = 0
    for base, cnt in (((86, 4), (87, 10), (88, 4), (90, 3)) if not opt.get('no_side') else ((86, 4),)):
        for i in range(cnt):
            a(f'buffer_load_dword v{8+n}, v2, {srd(SRD_WS)}, s{base} offen offset:{256*i} sc1'); n += 1
    a('s_waitcnt vmcnt(0)')
    a(f'v_cmp_ne_u32 vcc, s{S_TAG}, v8')
    for i in range(1, n):
        a(f'v_cmp_ne_u32 s[84:85], s{S_TAG}, v{8+i}')
        a('s_or_b64 vcc, vcc, s[84:85]')
    a('s_cbranch_vccz L_keep_done')
    a(f's_sleep {opt.get("ksl", 64)}')
    a('s_sub_u32 s89, s89, 1')
    a('s_cmp_lg_u32 s89, 0')
    a('s_cbranch_scc1 L_keep_spin')
    a.lab('L_keep_done')
    a(f'v_mov_b32 v8, s{S_TAG}')
    a('s_mov_b64 exec, 1')
    a(f'buffer_store_dword v8, off, {srd(SRD_WS)}, 0 sc1')
    a('s_endpgm')

HEADER = """
"""

def build(opt):
    PROF['on'] = bool(opt.get('prof'))
    PROF['dbg'] = bool(opt.get('dbg'))
    PSL[0] = opt.get('ssl', 2)
    import asmlib
    asmlib.TRANS_WS = opt.get('tws', 2)
    asmlib.PRE_TRANS_WS = opt.get('ptw', 0)
    a = Asm()
    a.raw(f'; @launch kernel={KNAME} grid=(512,1,1) block=(256,1,1) lds=81920' if not opt.get('plain') else '; @launch grid=(512,1,1) block=(256,1,1) lds=81920')
    for l in HEADER.strip('\n').split('\n'): a.raw(l)
    a.raw('.amdgcn_target "amdgcn-amd-amdhsa--gfx950"')
    a.raw('.text')
    a.raw(f'.globl {KNAME}')
    a.raw('.p2align 8')
    a.raw(f'.type {KNAME},@function')
    a.lab(KNAME)
    a('s_cmp_ge_u32 s2, 512')
    a('s_cbranch_scc1 L_end')
    a('s_load_dwordx16 s[16:31], s[0:1], 0')
    a('s_load_dwordx16 s[32:47], s[0:1], 64')
    a('s_load_dwordx4 s[48:51], s[0:1], 128')
    a('v_and_b32 v1, 63, v0')
    a('v_lshrrev_b32 v2, 6, v0')
    a(f'v_readfirstlane_b32 s{S_W}, v2')
    a('s_waitcnt lgkmcnt(0)')
    mk_srd(a, SRD_WS, P_WS, WS_SIZE)
    a(f'buffer_load_dword v127, off, {srd(SRD_WS)}, 0 sc1')
    a('s_cmp_lt_u32 s2, 256')
    a('s_cbranch_scc1 L_gemm')
    if opt.get('no_side') == 1:
        a('s_cmp_eq_u32 s2, 511')
        a('s_cbranch_scc0 L_end')
        a(f's_cmp_eq_u32 s{S_W}, 2')
        a('s_cbranch_scc0 L_end')
    a(f's_cmp_eq_u32 s{S_W}, 3')
    a('s_cbranch_scc1 L_gate')
    if opt.get('no_side') == 2:
        a('s_cmp_ge_u32 s2, 384')
        a('s_cbranch_scc0 L_end')
        a(f's_cmp_eq_u32 s{S_W}, 2')
        a('s_cbranch_scc0 L_end')
    a(f's_lshl_b32 s82, s{S_W}, 8')
    a('s_add_u32 s82, s82, s2')
    a('s_sub_u32 s82, s82, 256')
    a('s_cmp_lt_u32 s82, 640')
    a('s_cbranch_scc1 L_chan')
    a('s_cmp_eq_u32 s2, 511')
    a('s_cbranch_scc1 L_keep')
    a('s_cmp_lt_u32 s2, 480')
    a('s_cbranch_scc1 L_retile')
    a.lab('L_end')
    a('s_endpgm')
    a.lab('L_chan')
    side_channel(a, opt)
    a.lab('L_gate')
    side_gate(a, opt)
    a.lab('L_retile')
    side_retile(a, opt)
    a.lab('L_keep')
    side_keeper(a, opt)
    a.lab('L_gemm')
    if opt.get('no_gemm'):
        a('s_endpgm')
    else:
        import gen_gemm
        gen_gemm.gemm_role(a, opt)
    a.raw('.section .rodata,"a"')
    a.raw('.p2align 6')
    a.raw(f'.amdhsa_kernel {KNAME}')
    a.raw('  .amdhsa_next_free_vgpr 256')
    a.raw('  .amdhsa_next_free_sgpr 96')
    a.raw('  .amdhsa_accum_offset 256')
    a.raw('  .amdhsa_group_segment_fixed_size 0')
    a.raw('  .amdhsa_kernarg_size 144')
    a.raw('  .amdhsa_user_sgpr_count 2')
    a.raw('  .amdhsa_user_sgpr_kernarg_segment_ptr 1')
    a.raw('  .amdhsa_system_sgpr_workgroup_id_x 1')
    a.raw('.end_amdhsa_kernel')
    return a.text()

if __name__ == '__main__':
    opt = {}
    for x in sys.argv[2:]:
        k, _, v = x.partition('=')
        opt[k] = int(v) if v else 1
    import gen as _self
    open(sys.argv[1], 'w').write(_self.build(opt))
```

```python
import numpy as np
from gen import *
import gen as _g
_stamp0 = stamp
PST = {'start': None}
def stamp(a, i, base=18):
    if PST['start'] is not None and i not in (0, 15): return
    if PST.get('clk') and _g.PROF['on']:
        m = {1: 3, 2: 4, 9: 5, 10: 6, 0: 7, 15: 8}
        if i in (3, 4, 5, 6, 7, 8): return
        if i in m:
            a('s_memtime s[14:15]')
            a('s_waitcnt lgkmcnt(0)')
            a(f's_mov_b32 s{base+m[i]}, s14')
    _stamp0(a, i, base)
def sstamp(a, stage):
    if PST['start'] is None: return
    k = stage - PST['start']
    if 0 <= k < 14: _stamp0(a, 1 + k)

SLOT = 20480
BOFF = 8192
S_RB, S_CB, S_WI, S_WJ = 82, 83, 86, 87
S_KC, S_AO, S_BO, S_T, S_T2, S_CNT = 88, 89, 90, 91, 92, 93
S_ABASE, S_BBASE = 94, 95
S_M_A, S_M_B, S_M_C = 3, 4, 5
S_K1 = 6
S_ONE = 8
S_KC0 = 10
S_FZA = 11
S_TMP2 = 12
S_WOB = 76
S_ROT = 78
CTR = 19456
V_L = 1
V_AD = 2
V_BD = 4
V_AR = 7
V_BR = 11
V_UR, V_US = 13, 14
V_T = 16
ACC2, ACC1, WF, XF = 24, 48, 72, 96
t0, t1, t2, t3 = V_T, V_T + 1, V_T + 2, V_T + 3
ST, MM, RR, ZQ, BSP, K0V = 96, 112, 120, 128, 140, 142
LN = 3 * SLOT

class VM:
    def __init__(self): self.ops = []
    def issue(self, tag, n=1): self.ops += [tag] * n
    def n_after(self, tag):
        idx = max(i for i, t in enumerate(self.ops) if t == tag)
        return len(self.ops) - 1 - idx

def gelu2(a, cs, k0v, after):
    T = [V_T, V_T + 4]
    def both(f):
        for c, t in zip(cs, T): a(f(c, t))
    both(lambda c, t: f'v_cvt_pk_bf16_f32 v{t+2}, v{c}, v{c+1}')
    both(lambda c, t: f'v_lshlrev_b32 v{t}, 16, v{t+2}')
    both(lambda c, t: f'v_and_b32 v{t+1}, 0xffff0000, v{t+2}')
    both(lambda c, t: f'v_pk_mul_f32 {vr(t+2,2)}, {vr(t,2)}, {vr(t,2)}')
    both(lambda c, t: f'v_pk_fma_f32 {vr(t+2,2)}, {vr(t+2,2)}, {sp(S_K1)}, {vr(k0v,2)}')
    both(lambda c, t: f'v_pk_mul_f32 {vr(t+2,2)}, {vr(t+2,2)}, {vr(t,2)}')
    both(lambda c, t: f'v_exp_f32 v{t+2}, v{t+2}')
    both(lambda c, t: f'v_exp_f32 v{t+3}, v{t+3}')
    both(lambda c, t: f'v_pk_add_f32 {vr(t+2,2)}, {vr(t+2,2)}, {sp(S_ONE)}')
    both(lambda c, t: f'v_rcp_f32 v{t+2}, v{t+2}')
    both(lambda c, t: f'v_rcp_f32 v{t+3}, v{t+3}')
    both(lambda c, t: f'v_pk_mul_f32 {vr(t+2,2)}, {vr(t+2,2)}, {vr(t,2)}')
    steps = [after(c, t) for c, t in zip(cs, T)]
    for x, y in zip(*steps):
        a(x); a(y)

def gelu_packed(regs, k0v):
    T = [V_T, V_T + 4]
    L = []
    def both(f):
        for c, t in zip(regs, T): L.append(f(c, t))
    both(lambda c, t: f'v_lshlrev_b32 v{t}, 16, v{c}')
    both(lambda c, t: f'v_and_b32 v{t+1}, 0xffff0000, v{c}')
    both(lambda c, t: f'v_pk_mul_f32 {vr(t+2,2)}, {vr(t,2)}, {vr(t,2)}')
    both(lambda c, t: f'v_pk_fma_f32 {vr(t+2,2)}, {vr(t+2,2)}, {sp(S_K1)}, {vr(k0v,2)}')
    both(lambda c, t: f'v_pk_mul_f32 {vr(t+2,2)}, {vr(t+2,2)}, {vr(t,2)}')
    both(lambda c, t: f'v_exp_f32 v{t+2}, v{t+2}')
    both(lambda c, t: f'v_exp_f32 v{t+3}, v{t+3}')
    both(lambda c, t: f'v_pk_add_f32 {vr(t+2,2)}, {vr(t+2,2)}, {sp(S_ONE)}')
    both(lambda c, t: f'v_rcp_f32 v{t+2}, v{t+2}')
    both(lambda c, t: f'v_rcp_f32 v{t+3}, v{t+3}')
    both(lambda c, t: f'v_pk_mul_f32 {vr(t+2,2)}, {vr(t+2,2)}, {vr(t,2)}')
    both(lambda c, t: f'v_cvt_pk_bf16_f32 v{c}, v{t+2}, v{t+3}')
    return L

def flag_store(a, sreg, vtmp):
    a(f'v_mov_b32 v{vtmp}, s{S_TAG}')
    a(f's_mov_b64 {sp(S_TMP2)}, exec')
    a('s_mov_b64 exec, 1')
    a(f'buffer_store_dword v{vtmp}, off, {srd(SRD_WS)}, s{sreg} sc1')
    a(f's_mov_b64 exec, {sp(S_TMP2)}')

def gemm_role(a, opt):
    vm = VM()
    PST['start'] = opt.get('pst')
    PST['clk'] = opt.get('clk')
    stop = opt.get('stop', 99)
    OC = {0: '', 1: 'sc1', 2: 'nt', 3: 'sc0 sc1'}[opt.get('oc', 0)]
    LNS = opt.get('lns', 16)
    LDS_ = opt.get('lds', 15)
    FZS = opt.get('fzs', 1)
    assert LNS + FZS <= 19 and 13 <= LDS_ < LNS
    c0 = np.sqrt(2 / np.pi)
    k0 = -2 * c0 * LOG2E; k1 = k0 * 0.044715
    a(f's_setprio {opt.get("prio", 2)}')
    if opt.get('tk', 0):
        CT = 20480 - 64
        a(f's_cmp_lg_u32 s{S_W}, 0')
        a('s_cbranch_scc1 L_tk_wait')
        mk_srd(a, SRD_X, P_DBG, 256)
        a(f's_getreg_b32 s{S_T}, hwreg(HW_REG_XCC_ID, 0, 3)')
        a(f's_mov_b64 {sp(S_TMP2)}, exec')
        a('s_mov_b64 exec, 1')
        a(f's_mov_b32 s{S_KC}, 8')
        a.lab('L_tk_try')
        a('v_mov_b32 v2, 1')
        a(f's_lshl_b32 s{S_CNT}, s{S_T}, 5')
        a(f'buffer_atomic_add v2, off, {srd(SRD_X)}, s{S_CNT} sc0 sc1')
        a('s_waitcnt vmcnt(0)')
        a(f'v_readfirstlane_b32 s{S_T2}, v2')
        a(f's_cmp_lt_u32 s{S_T2}, 32')
        a('s_cbranch_scc1 L_tk_got')
        a(f's_add_u32 s{S_T}, s{S_T}, 1')
        a(f's_and_b32 s{S_T}, s{S_T}, 7')
        a(f's_sub_u32 s{S_KC}, s{S_KC}, 1')
        a(f's_cmp_lg_u32 s{S_KC}, 0')
        a('s_cbranch_scc1 L_tk_try')
        a.lab('L_tk_got')
        a(f's_lshl_b32 s{S_T2}, s{S_T2}, 3')
        a(f's_or_b32 s{S_T2}, s{S_T2}, s{S_T}')
        a(f'v_mov_b32 v2, s{S_T2}')
        a(f'v_mov_b32 v3, {CT}')
        a('ds_write_b32 v3, v2')
        a('s_waitcnt lgkmcnt(0)')
        a(f's_mov_b64 exec, {sp(S_TMP2)}')
        a.lab('L_tk_wait')
        a('s_barrier')
        a(f'v_mov_b32 v3, {CT}')
        a('ds_read_b32 v2, v3')
        a('s_waitcnt lgkmcnt(0)')
        a(f'v_readfirstlane_b32 s{S_CNT}, v2')
        a('s_barrier')
        a(f's_and_b32 s{S_T}, s{S_CNT}, 7')
        a(f's_lshr_b32 s{S_T2}, s{S_CNT}, 3')
        a(f's_and_b32 s{S_T2}, s{S_T2}, 31')
    else:
        a(f's_and_b32 s{S_T}, s2, 7')
        a(f's_lshr_b32 s{S_T2}, s2, 3')
    a(f's_lshr_b32 s{S_RB}, s{S_T}, 1')
    a(f's_lshl_b32 s{S_RB}, s{S_RB}, 3')
    a(f's_lshr_b32 s{S_CNT}, s{S_T2}, 2')
    a(f's_add_u32 s{S_RB}, s{S_RB}, s{S_CNT}')
    a(f's_and_b32 s{S_CB}, s{S_T}, 1')
    a(f's_lshl_b32 s{S_CB}, s{S_CB}, 2')
    a(f's_and_b32 s{S_CNT}, s{S_T2}, 3')
    a(f's_add_u32 s{S_CB}, s{S_CB}, s{S_CNT}')
    a(f's_lshr_b32 s{S_WI}, s{S_W}, 1')
    a(f's_and_b32 s{S_WJ}, s{S_W}, 1')
    a(f's_mul_i32 s{S_KC}, s{S_CB}, 3')
    a(f's_add_u32 s{S_KC}, s{S_KC}, s{S_RB}')
    a(f's_mul_i32 s{S_T}, s{S_KC}, 205')
    a(f's_lshr_b32 s{S_T}, s{S_T}, 11')
    a(f's_mul_i32 s{S_T}, s{S_T}, 10')
    a(f's_sub_u32 s{S_KC}, s{S_KC}, s{S_T}')
    if opt.get('rot1', 0) == 3: a(f's_mov_b32 s{S_KC}, s{S_CB}')
    a(f's_mov_b32 s{S_KC0}, s{S_KC}')
    if opt.get('rot1') == 1: a(f's_mov_b32 s{S_KC}, 0')
    if opt.get('rot1') == 2:
        a(f's_lshr_b32 s{S_KC}, s{S_RB}, 3')
    a(f's_lshl_b32 s{S_M_A}, s{S_W}, 11')
    a(f's_mul_i32 s{S_M_B}, s{S_W}, 3072')
    a(f's_add_u32 s{S_M_B}, s{S_M_B}, {BOFF}')
    a(f's_mul_i32 s{S_ABASE}, s{S_RB}, {64*1280}')
    a(f's_mul_i32 s{S_BBASE}, s{S_CB}, 192')
    a(f's_add_u32 s{S_BBASE}, s{S_BBASE}, 1536')
    def row_dma_offsets(pitch):
        a(f'v_lshrrev_b32 v{t0}, 3, v{V_L}')
        a(f'v_and_b32 v{t1}, 7, v{V_L}')
        a(f'v_bfe_u32 v{t2}, v{V_L}, 4, 1')
        a(f'v_xor_b32 v{t1}, v{t1}, v{t2}')
        a(f's_lshl_b32 s{S_T}, s{S_W}, 4')
        a(f'v_add_u32 v{t0}, s{S_T}, v{t0}')
        a(f'v_mul_u32_u24 v{t0}, {pitch}, v{t0}')
        a(f's_lshl_b32 s{S_T}, s{S_WJ}, 2')
        a(f'v_xor_b32 v{t1}, s{S_T}, v{t1}')
        a(f'v_lshl_add_u32 v{V_AD}, v{t1}, 4, v{t0}')
        a(f'v_xor_b32 v{t1}, 2, v{t1}')
        a(f'v_lshl_add_u32 v{V_AD+1}, v{t1}, 4, v{t0}')
        a(f'v_add_u32 v{V_AD+1}, {8*pitch-1024}, v{V_AD+1}')
    row_dma_offsets(1280)
    def run_units(units, track=True):
        for (lines, tag) in units:
            for l in lines: a(l)
            if track: vm.issue(tag, 1)
    def dma_p1_A(stage, kc=None):
        slot = (stage & 3) * SLOT
        return [([f's_lshl_b32 s{S_AO}, s{S_KC}, 7', f's_add_u32 s{S_AO}, s{S_AO}, s{S_ABASE}', f's_add_u32 m0, s{S_M_A}, {slot}',
                  f'buffer_load_dwordx4 v{V_AD}, {srd(SRD_X)}, s{S_AO} offen lds'], ('A', stage)),
                ([f'buffer_load_dwordx4 v{V_AD+1}, {srd(SRD_X)}, s{S_AO} offen offset:1024 lds'], ('A', stage))]
    def dma_p1_B(stage):
        slot = (stage & 3) * SLOT
        U = []
        pre = [f's_mul_i32 s{S_BO}, s{S_KC}, {64*3072}', f's_add_u32 s{S_BO}, s{S_BO}, s{S_BBASE}', f's_add_u32 m0, s{S_M_B}, {slot}', f's_add_u32 s{S_KC}, s{S_KC}, 1']
        for j in range(3):
            L = (pre if j == 0 else []) + [f'buffer_load_dwordx4 v{V_BD+j}, {srd(SRD_WIN)}, s{S_BO} offen offset:{1024*j} lds']
            if j == 2:
                L += [f's_cmp_eq_u32 s{S_KC}, 10', f's_cselect_b32 s{S_KC}, 0, s{S_KC}']
                if stage == 9: L += [f's_sub_u32 s{S_BBASE}, s{S_BBASE}, 1536']
            U.append((L, ('B', stage)))
        return U
    def dma_p1(stage): return (dma_p1_A(stage) if stage < 10 else []) + dma_p1_B(stage)
    a(f's_mul_i32 s{S_T}, s{S_W}, 192')
    for j in range(3):
        a(f'v_add_u32 v{t0}, s{S_T}, v{V_L}')
        if j: a(f'v_add_u32 v{t0}, {64*j}, v{t0}')
        a(f'v_mul_u32_u24 v{t1}, 43691, v{t0}')
        a(f'v_lshrrev_b32 v{t1}, 19, v{t1}')
        a(f'v_mul_u32_u24 v{t2}, 12, v{t1}')
        a(f'v_sub_u32 v{t0}, v{t0}, v{t2}')
        a(f'v_bfe_u32 v{t2}, v{t1}, 3, 1')
        a(f'v_mad_u32_u24 v{t0}, v{t2}, 6, v{t0}')
        a(f'v_subrev_u32 v{t2}, 12, v{t0}')
        a(f'v_min_u32 v{t0}, v{t0}, v{t2}')
        a(f'v_mul_u32_u24 v{t1}, 3072, v{t1}')
        a(f'v_lshl_add_u32 v{V_BD+j}, v{t0}, 4, v{t1}')
        if j: a(f'v_subrev_u32 v{V_BD+j}, {1024*j}, v{V_BD+j}')
    a('s_waitcnt lgkmcnt(0)')
    stamp(a, 0)
    mk_srd(a, SRD_X, P_U, 2048 * 640 * 2)
    mk_srd(a, SRD_WIN, P_WIN, 640 * 1536 * 2)
    for s in range(0, 4): run_units(dma_p1(s))
    mk_srd(a, SRD_WS, P_WS, WS_SIZE)
    a(f'buffer_load_dword v15, off, {srd(SRD_WS)}, 0 sc1')
    vm.issue('epoch')
    mk_srd(a, SRD_WSP, P_WSP, 2048 * 2048 * 2)
    mk_srd(a, SRD_OUT, P_OUT, 2048 * 640 * 2)
    PAT7 = ([-1, -1, 9, 9], [-1, 9, 9])
    PAT = {5: ([0, 2, 4], [1, 3]), 3: ([1, 4], [2]), 2: ([1], [2]), 0: ([], [])}
    if opt.get('pat') == 1: PAT = {5: ([9, 9, 9], [9, 9]), 3: ([9, 9], [9]), 2: ([9], [9]), 0: ([], [])}
    if opt.get('pat') == 2: PAT = {5: ([9, 9, 9, 9, 9], []), 3: ([9, 9, 9], []), 2: ([9, 9], []), 0: ([], [])}
    if opt.get('pat', 3) == 3: PAT = {5: ([-1, -1, 9], [-1, 9]), 3: ([-1, 9], [9]), 2: ([9], [9]), 0: ([], [])}
    def with_units(mf_lines, pos_units, track=True):
        for (p, u) in pos_units:
            if p < 0: run_units([u], track)
        for i, l in enumerate(mf_lines):
            a(l)
            for (p, u) in pos_units:
                if p == i: run_units([u], track)
        for (p, u) in pos_units:
            if p >= len(mf_lines): run_units([u], track)
    def split_units(U):
        first, second = PAT[len(U)] if len(U) in PAT else PAT7 if len(U) == 7 else ([-1, 9], [-1, 9])
        return list(zip(first, U[:len(first)])), list(zip(second, U[len(first):]))
    def lane_mq():
        a(f'v_and_b32 v{t0}, 15, v{V_L}')
        a(f'v_lshrrev_b32 v{t1}, 4, v{V_L}')
    lane_mq()
    a(f'v_lshrrev_b32 v{t2}, 2, v{t0}')
    a(f'v_lshlrev_b32 v{t3}, 3, v{t2}')
    a(f'v_and_b32 v{V_AR}, 3, v{t0}')
    a(f'v_add_u32 v{t3}, v{t3}, v{V_AR}')
    a(f's_lshl_b32 s{S_T}, s{S_WI}, 5')
    a(f'v_add_u32 v{t3}, s{S_T}, v{t3}')
    a(f'v_lshlrev_b32 v{t3}, 7, v{t3}')
    a(f'v_lshlrev_b32 v{t2}, 1, v{t2}')
    a(f'v_bfe_u32 v{V_AR}, v{t0}, 1, 1')
    a(f'v_or_b32 v{t2}, v{t2}, v{V_AR}')
    a(f'v_xor_b32 v{t2}, v{t2}, v{t1}')
    a(f'v_lshl_add_u32 v{V_AR}, v{t2}, 4, v{t3}')
    a(f'v_xor_b32 v{V_AR+1}, 64, v{V_AR}')
    a(f'v_add_u32 v{V_AR+2}, {2*SLOT}, v{V_AR}')
    a(f'v_add_u32 v{V_AR+3}, {2*SLOT}, v{V_AR+1}')
    a(f'v_lshrrev_b32 v{t2}, 2, v{t0}')
    a(f'v_lshl_add_u32 v{t2}, v{t1}, 3, v{t2}')
    a(f'v_mul_u32_u24 v{t2}, 192, v{t2}')
    a(f'v_and_b32 v{t3}, 1, v{t1}')
    a(f'v_xor_b32 v{t3}, s{S_WJ}, v{t3}')
    a(f'v_mul_u32_u24 v{t3}, 96, v{t3}')
    a(f'v_add_u32 v{t2}, v{t2}, v{t3}')
    a(f'v_and_b32 v{t3}, 3, v{V_L}')
    a(f'v_lshl_add_u32 v{V_BR}, v{t3}, 3, v{t2}')
    a(f'v_add_u32 v{V_BR}, {BOFF}, v{V_BR}')
    a(f'v_add_u32 v{V_BR+1}, {2*SLOT}, v{V_BR}')
    a(f'v_lshrrev_b32 v{t2}, 2, v{t0}')
    a(f'v_lshl_add_u32 v{t3}, v{t1}, 3, v{t2}')
    a(f'v_lshlrev_b32 v{V_UR}, 7, v{t3}')
    a(f'v_lshrrev_b32 v{t2}, 1, v{t2}')
    a(f'v_lshl_or_b32 v{t2}, v{t1}, 1, v{t2}')
    a(f'v_bfe_u32 v{t3}, v{V_L}, 1, 1')
    a(f's_lshl_b32 s{S_T}, s{S_W}, 1')
    a(f'v_add_u32 v{t3}, s{S_T}, v{t3}')
    a(f'v_xor_b32 v{t3}, v{t3}, v{t2}')
    a(f'v_lshl_add_u32 v{V_UR}, v{t3}, 4, v{V_UR}')
    a(f'v_and_b32 v{t3}, 1, v{V_L}')
    a(f'v_lshl_add_u32 v{V_UR}, v{t3}, 3, v{V_UR}')
    a(f's_lshl_b32 s{S_T}, s{S_W}, 4')
    a(f'v_add_u32 v{V_US}, s{S_T}, v{t0}')
    a(f'v_lshlrev_b32 v{V_US}, 12, v{V_US}')
    a(f'v_lshl_add_u32 v{V_US}, v{t1}, 4, v{V_US}')
    a(f's_mov_b32 s{S_K1}, {hx(k1)}')
    a(f's_mov_b32 s{S_K1+1}, {hx(k1)}')
    a(f's_mov_b32 s{S_ONE}, 1.0')
    a(f's_mov_b32 s{S_ONE+1}, 1.0')

    def ar(stage, ks): return V_AR + ks + (2 if (stage & 2) else 0)
    def so(stage): return (stage & 1) * SLOT
    def br(stage): return V_BR + (1 if (stage & 2) else 0)
    def reads_p1(stage, ks):
        n = 0
        if stage < 10:
            for tau in range(2):
                a(f'ds_read_b128 {vr(XF+16*stage+8*ks+4*tau,4)}, v{ar(stage,ks)} offset:{so(stage)+512*tau}'); n += 1
        for phi in range(3):
            for half in range(2):
                a(f'ds_read_b64_tr_b16 {vr(WF+12*ks+4*phi+2*half,2)}, v{br(stage)} offset:{so(stage)+6144*ks+768*half+32*phi}'); n += 1
        return n
    def mfma_p1(stage, ks):
        i = stage % 10
        L = []
        for tau in range(2):
            for phi in range(3):
                x = vr(XF + 16 * i + 8 * ks + 4 * tau, 4); w = vr(WF + 12 * ks + 4 * phi, 4)
                if stage < 10:
                    c = vr(ACC2 + 4 * (3 * tau + phi), 4)
                    L.append(f'v_mfma_f32_16x16x32_bf16 {c}, {x}, {w}, {c if (i or ks) else 0}')
                else:
                    c = vr(ACC1 + 4 * (2 * phi + tau), 4)
                    L.append(f'v_mfma_f32_16x16x32_bf16 {c}, {w}, {x}, {c if (i or ks) else 0}')
        return L
    def dma_p2_A(stage):
        slot = (stage & 3) * SLOT
        return [([f's_lshl_b32 s{S_AO}, s{S_KC}, 7', f's_add_u32 s{S_AO}, s{S_AO}, s{S_ABASE}', f's_add_u32 m0, s{S_M_A}, {slot}', f's_add_u32 s{S_KC}, s{S_KC}, 1',
                  f'buffer_load_dwordx4 v{V_AD}, {srd(SRD_WSP)}, s{S_AO} offen lds'], ('A', stage)),
                ([f'buffer_load_dwordx4 v{V_AD+1}, {srd(SRD_WSP)}, s{S_AO} offen offset:1024 lds', f's_and_b32 s{S_KC}, s{S_KC}, 31'], ('A', stage))]
    S_KZ = S_KC0
    def dma_p2_B(stage):
        slot = (stage & 3) * SLOT
        U = []
        for j in range(3):
            L = [f's_mul_i32 s{S_BO}, s{S_KZ}, 12288', f's_add_u32 s{S_BO}, s{S_BO}, s{S_BBASE}', f's_add_u32 m0, s{S_M_B}, {slot}', f's_add_u32 s{S_KZ}, s{S_KZ}, 1'] if j == 0 else []
            L += [f'buffer_load_dwordx4 v{V_BD}, {srd(SRD_WS)}, s{S_BO} offen offset:{1024*j} sc1 lds']
            if j == 2: L += [f's_and_b32 s{S_KZ}, s{S_KZ}, 31']
            U.append((L, ('B', stage)))
        return U
    def rot2(dst):
        m = opt.get('rot2', 1)
        if m == 1:
            a(f's_lshl_b32 s{dst}, s{S_CB}, 3')
            a(f's_add_u32 s{dst}, s{dst}, s{S_RB}')
        elif m == 2:
            a(f's_lshl_b32 s{dst}, s{S_CB}, 1')
            a(f's_add_u32 s{dst}, s{dst}, s{S_RB}')
            a(f's_lshl_b32 s{dst}, s{dst}, 2')
        elif m == 3:
            a(f's_lshl_b32 s{dst}, s{S_CB}, 1')
            a(f's_add_u32 s{dst}, s{dst}, s{S_RB}')
            a(f's_lshl_b32 s{dst}, s{dst}, 2')
            a(f's_lshr_b32 s{S_T2}, s{S_RB}, 3')
            a(f's_add_u32 s{dst}, s{dst}, s{S_T2}')
        elif m == 4:
            a(f's_mov_b32 s{dst}, s{S_RB}')
        elif m == 5:
            a(f's_and_b32 s{dst}, s{S_RB}, 24')
        a(f's_and_b32 s{dst}, s{dst}, 31')
    def ut_chunk(extra):
        if extra:
            a(f's_add_u32 s{S_T}, s{S_KC0}, {extra}')
            a(f's_sub_u32 s{S_T2}, s{S_T}, 10')
            a(f's_min_u32 s{S_T}, s{S_T}, s{S_T2}')
        else:
            a(f's_mov_b32 s{S_T}, s{S_KC0}')
    V_A4 = 144
    def wsp_setup():
        a(f'v_lshrrev_b32 v{t0}, 3, v{V_L}')
        a(f'v_lshlrev_b32 v{t0}, 12, v{t0}')
        a(f'v_and_b32 v{t1}, 7, v{V_L}')
        a(f'v_bfe_u32 v{t2}, v{V_L}, 4, 1')
        a(f'v_xor_b32 v{t1}, v{t1}, v{t2}')
        for j in range(4):
            a(f'v_xor_b32 v{t2}, {2*j}, v{t1}')
            a(f'v_lshl_add_u32 v{VA4(j)}, v{t2}, 4, v{t0}')
            if j: a(f'v_add_u32 v{VA4(j)}, {8*j*4096-1024*j}, v{VA4(j)}')
        a(f's_lshl_b32 s{S_ABASE}, s{S_RB}, 18')
        a(f's_mul_i32 s{S_M_A}, s{S_W}, {SLOT}')
        rot2(S_KA)
        a(f's_add_u32 s{S_KA}, s{S_KA}, s{S_W}')
    def VA4(j): return (V_AD, V_AD + 1, V_UR + 0 if False else 15, 0)[j]
    S_KA = S_M_C
    def adma(par):
        U = []
        for gq in range(8):
            L = []
            if gq == 0:
                L += [f's_and_b32 s{S_KA}, s{S_KA}, {3 if opt.get("x_same") else 31}', f's_lshl_b32 s{S_A2}, s{S_KA}, 7', f's_add_u32 s{S_A2}, s{S_A2}, s{S_ABASE}', f's_add_u32 s{S_KA}, s{S_KA}, 4']
            if gq == 4:
                L += [f's_add_u32 s{S_A2}, s{S_A2}, 131072']
            L += [f's_add_u32 m0, s{S_M_A}, {8192*par+4096*(gq>>2)}']
            L += [f'buffer_load_dwordx4 v{VA4(gq&3)}, {srd(SRD_WSP)}, s{S_A2} offen offset:{1024*(gq&3)} lds']
            U.append((L, ('A2', par)))
        return U
    S_A2 = 77
    U2 = 8 if opt.get('rot1', 0) == 3 else 4
    UT = V_T
    pend = []
    a(f's_waitcnt vmcnt({vm.n_after(("B", 0))})')
    a('s_barrier')
    stamp(a, 1)
    reads_p1(0, 0)
    for s in range(20):
        if s == 10:
            stamp(a, 2)
            e1_z2(a, opt, vm, k0)
            stamp(a, 3)
        if s == LDS_:
            e2_loads(a, vm)
        if s == LNS:
            stamp(a, 4)
            e2_layernorm(a, opt, vm)
            if opt.get('kd') == 2 or opt.get('cg') == 3:
                a(f's_cmp_lg_u32 s{S_W}, 3')
                a('s_cbranch_scc1 L_fs2_skip')
                a(f's_lshl_b32 s{S_T}, s2, 2')
                a(f's_add_u32 s{S_T}, s{S_T}, {WS_FS+1024}')
                flag_store(a, S_T, 18)
                a.lab('L_fs2_skip')
            stamp(a, 5)
        n1 = reads_p1(s, 1)
        ut = s in (0, U2)
        if ut:
            if s == U2:
                a(f's_cmp_ge_u32 s{S_CB}, 2')
                a('s_cbranch_scc1 L_ut2_skip')
            for h2 in range(2):
                for half in range(2):
                    a(f'ds_read_b64_tr_b16 {vr(UT+4*h2+2*half,2)}, v{V_UR} offset:{(s&3)*SLOT+4096*h2+512*half}')
            if s == U2:
                a.lab('L_ut2_skip')
        a(f's_waitcnt lgkmcnt({n1+4 if s == 0 else n1})')
        with_units(mfma_p1(s, 0), pend); pend = []
        if s < 19:
            n = vm.n_after(('B', s + 1))
            if s == LNS + FZS: n = min(n, vm.n_after('z'))
            a(f's_waitcnt vmcnt({n}) lgkmcnt(0)')
        elif s == LNS + FZS:
            a(f's_waitcnt vmcnt({vm.n_after("z")}) lgkmcnt(0)')
        else:
            a('s_waitcnt lgkmcnt(0)')
        a('s_barrier')
        sstamp(a, s)
        if ut:
            if s == U2:
                a(f's_cmp_ge_u32 s{S_CB}, 2')
                a('s_cbranch_scc1 L_us2_skip')
            ut_chunk(s)
            a(f's_lshl_b32 s{S_T}, s{S_T}, 18')
            a(f's_lshl_b32 s{S_T2}, s{S_RB}, 7')
            a(f's_add_u32 s{S_T}, s{S_T}, s{S_T2}')
            a(f's_add_u32 s{S_T}, s{S_T}, {WS_UT}')
            for h2 in range(2):
                a(f'buffer_store_dwordx4 {vr(UT+4*h2,4)}, v{V_US}, {srd(SRD_WS)}, s{S_T} offen offset:{64*h2} sc1')
            if s == U2:
                a.lab('L_us2_skip')
            else:
                vm.issue('ut0', 2)
        if s == 3:
            a(f'v_readfirstlane_b32 s{S_TAG}, v15')
            a(f's_add_u32 s{S_TAG}, s{S_TAG}, 1')
        if s in (3, U2 + 3):
            a(f's_cmp_lg_u32 s{S_W}, 0')
            a(f's_cbranch_scc1 L_fu{s}_skip')
            if s == U2 + 3:
                a(f's_cmp_ge_u32 s{S_CB}, 2')
                a(f's_cbranch_scc1 L_fu{s}_skip')
            ut_chunk(s - 3)
            a(f's_lshl_b32 s{S_T}, s{S_T}, 5')
            a(f's_add_u32 s{S_T}, s{S_T}, s{S_RB}')
            a(f's_lshl_b32 s{S_T}, s{S_T}, 2')
            a(f's_add_u32 s{S_T}, s{S_T}, {WS_FU}')
            flag_store(a, S_T, V_T)
            a.lab(f'L_fu{s}_skip')
        if s == LNS + FZS:
            a(f's_cmp_lg_u32 s{S_W}, 0')
            a('s_cbranch_scc1 L_fz_skip')
            flag_store(a, S_FZA, V_T)
            a.lab('L_fz_skip')
            stamp(a, 6)
        if s + 4 < 20:
            U = dma_p1(s + 4)
        else:
            U = []
        if s == 12:
            wsp_setup()
        A0S = opt.get('a0s', 13)
        if s in (A0S, A0S + 1):
            U = U + adma(0)[4 * (s - A0S): 4 * (s - A0S) + 4]
        now, pend = split_units(U)
        if s + 1 in (10, LNS, 20):
            now = now + [(99, u) for (_, u) in pend]; pend = []
        if s < 19:
            reads_p1(s + 1, 0)
        with_units(mfma_p1(s, 1), now)
    stamp(a, 7)
    run_units(adma(1))
    V_PA = 141
    rot2(S_ROT)
    a(f's_add_u32 s{S_T}, s{S_ROT}, s{S_W}')
    a(f'v_lshl_add_u32 v{V_PA}, v{V_L}, 2, s{S_T}')
    a(f'v_and_b32 v{V_PA}, 31, v{V_PA}')
    a(f'v_lshlrev_b32 v{V_PA}, 2, v{V_PA}')
    a(f's_lshl_b32 s{S_T}, s{S_CB}, 7')
    a(f's_add_u32 s{S_T}, s{S_T}, {WS_FZ}')
    a(f'v_add_u32 v{V_PA}, s{S_T}, v{V_PA}')
    if opt.get('no_side') != 1:
        a(f'v_subrev_u32 v{t0}, 8, v{V_L}')
        a(f'v_min_u32 v{t0}, 5, v{t0}')
        a(f's_mul_i32 s{S_T}, s{S_CB}, 24')
        a(f's_mul_i32 s{S_T2}, s{S_W}, 6')
        a(f's_add_u32 s{S_T}, s{S_T}, s{S_T2}')
        a(f'v_add_u32 v{t0}, s{S_T}, v{t0}')
        a(f'v_lshlrev_b32 v{t0}, 2, v{t0}')
        a(f'v_add_u32 v{t0}, {WS_FW}, v{t0}')
        a(f'v_cmp_gt_u32 vcc, 8, v{V_L}')
        a(f'v_cndmask_b32 v{V_PA}, v{t0}, v{V_PA}, vcc')
    V_FL = 140
    S_RDY = 84
    def flags_load():
        a(f'buffer_load_dword v{V_FL}, v{V_PA}, {srd(SRD_WS)}, 0 offen sc1')
    nspin = [0]
    def need_bit(idx, mask=False, fresh=False):
        n = nspin[0]; nspin[0] += 1
        def test():
            if mask:
                a(f's_andn2_b32 s{S_T2}, {idx}, s{S_RDY}')
                a(f's_cbranch_scc0 L_nb{n}_ok')
            else:
                a(f's_bitcmp1_b32 s{S_RDY}, {idx}')
                a(f's_cbranch_scc1 L_nb{n}_ok')
        if fresh:
            a(f'v_cmp_eq_u32 s[{S_RDY}:{S_RDY+1}], s{S_TAG}, v{V_FL}')
        test()
        a(f's_mov_b32 s{S_CNT}, {SPIN_MAX}')
        a.lab(f'L_nb{n}_spin')
        flags_load()
        a('s_waitcnt vmcnt(0)')
        a(f'v_cmp_eq_u32 s[{S_RDY}:{S_RDY+1}], s{S_TAG}, v{V_FL}')
        test()
        if opt.get('psl', 4): a(f's_sleep {opt.get("psl", 4)}')
        a(f's_sub_u32 s{S_CNT}, s{S_CNT}, 1')
        a(f's_cmp_lg_u32 s{S_CNT}, 0')
        a(f's_cbranch_scc1 L_nb{n}_spin')
        a.lab(f'L_nb{n}_ok')
    a(f's_mov_b64 s[{S_RDY}:{S_RDY+1}], 0')
    a(f'v_mov_b32 v{K0V}, {hx(k0)}')
    a(f'v_mov_b32 v{K0V+1}, {hx(k0)}')
    V_ZW = V_US
    lane_mq()
    a(f'v_lshrrev_b32 v{t2}, 2, v{t0}')
    a(f'v_lshlrev_b32 v{t2}, 3, v{t2}')
    a(f'v_and_b32 v{t3}, 3, v{t0}')
    a(f'v_add_u32 v{t2}, v{t2}, v{t3}')
    a(f'v_lshlrev_b32 v{t2}, 3, v{t2}')
    a(f'v_mul_u32_u24 v{t3}, {SLOT}, v{t1}')
    a(f'v_add_u32 v{t2}, v{t2}, v{t3}')
    a(f's_mul_i32 s{S_T}, s{S_WJ}, 1536')
    a(f's_lshl_b32 s{S_T2}, s{S_WI}, 8')
    a(f's_add_u32 s{S_T}, s{S_T}, s{S_T2}')
    a(f's_add_u32 s{S_T}, s{S_T}, 16384')
    a(f'v_add_u32 v{V_ZW}, s{S_T}, v{t2}')
    Z1Q = 128
    def z1_group(i):
        phi, tau = i >> 1, i & 1
        cs = [ACC1 + 4 * i, ACC1 + 4 * i + 2]
        a(f'v_cvt_pk_bf16_f32 v{Z1Q+2*i}, v{cs[0]}, v{cs[0]+1}')
        a(f'v_cvt_pk_bf16_f32 v{Z1Q+2*i+1}, v{cs[1]}, v{cs[1]+1}')
        a(f'ds_write_b64 v{V_ZW}, {vr(Z1Q+2*i,2)} offset:{512*phi+32*tau}')
    NG1 = 6
    a(f'v_mov_b32 v{t2}, {CTR}')
    a(f'v_mov_b32 v{t3}, 8')
    a(f'ds_write_b32 v{t2}, v{t3}')
    for i in range(NG1): z1_group(i)
    G2 = 24
    ZR = 144
    AF = 120
    Z1R = 240
    V_ZD, V_A2R = V_BD, V_AR
    a(f'v_and_b32 v{t0}, 31, v{V_L}')
    a(f'v_lshrrev_b32 v{t1}, 5, v{V_L}')
    a(f's_lshl_b32 s{S_T}, s{S_W}, 3')
    a(f'v_add_u32 v{t3}, s{S_T}, v{t0}')
    a(f'v_and_b32 v{t3}, 31, v{t3}')
    a(f'v_mul_u32_u24 v{t2}, 96, v{t1}')
    a(f'v_add_u32 v{t2}, v{t2}, v{t3}')
    a(f'v_lshlrev_b32 v{V_ZD}, 4, v{t2}')
    a(f'v_lshrrev_b32 v{t2}, 3, v{t0}')
    a(f'v_lshlrev_b32 v{t2}, 1, v{t2}')
    a(f'v_bfe_u32 v{t3}, v{t0}, 1, 1')
    a(f'v_or_b32 v{t2}, v{t2}, v{t3}')
    a(f'v_xor_b32 v{t2}, v{t2}, v{t1}')
    a(f'v_lshlrev_b32 v{t3}, 7, v{t0}')
    a(f'v_lshl_add_u32 v{t2}, v{t2}, 4, v{t3}')
    a(f'v_add_u32 v{V_A2R}, s{S_M_A}, v{t2}')
    for ks in range(1, 4):
        a(f'v_xor_b32 v{t3}, {32*ks}, v{t2}')
        a(f'v_add_u32 v{V_A2R+ks}, s{S_M_A}, v{t3}')
    V_ZR = V_BR
    a(f's_lshl_b32 s{S_T}, s{S_WJ}, 1')
    a(f'v_add_u32 v{t2}, s{S_T}, v{t1}')
    a(f'v_mul_u32_u24 v{t2}, {SLOT}, v{t2}')
    a(f'v_lshl_add_u32 v{t2}, v{t0}, 3, v{t2}')
    a(f's_lshl_b32 s{S_T}, s{S_WI}, 9')
    a(f's_add_u32 s{S_T}, s{S_T}, 16384')
    a(f'v_add_u32 v{V_ZR}, s{S_T}, v{t2}')
    a(f's_lshl_b32 s{S_T}, s{S_RB}, 7')
    a(f'v_lshlrev_b32 v{t2}, 1, v{t0}')
    a(f'v_add_u32 v{t2}, s{S_T}, v{t2}')
    BS2 = 252
    a(f'global_load_ushort v{BS2}, v{t2}, {sp(P_BSP)}')
    a(f'global_load_ushort v{BS2+2}, v{t2}, {sp(P_BSP)} offset:64')
    rot2(S_KZ)
    a(f's_add_u32 s{S_KZ}, s{S_KZ}, s{S_W}')
    a(f's_mul_i32 s{S_BBASE}, s{S_CB}, {32*12288}')
    a(f's_add_u32 s{S_BBASE}, s{S_BBASE}, {WS_Z}')
    a('s_waitcnt lgkmcnt(0)')
    a('s_barrier')
    need_bit(0)
    stamp(a, 8)
    vm.ops = []
    def zld(par):
        U = []
        for ks in range(4):
            for ph in range(3):
                L = []
                if ks == 0 and ph == 0:
                    L += [f's_and_b32 s{S_KZ}, s{S_KZ}, {3 if opt.get("x_same") else 31}', f's_mul_i32 s{S_BO}, s{S_KZ}, 12288', f's_add_u32 s{S_BO}, s{S_BO}, s{S_BBASE}', f's_add_u32 s{S_KZ}, s{S_KZ}, 4']
                elif ph == 0:
                    L += [f's_add_u32 s{S_BO}, s{S_BO}, 3072']
                L += [f'buffer_load_dwordx4 {vr(ZR+48*par+12*ks+4*ph,4)}, v{V_ZD}, {srd(SRD_WS)}, s{S_BO} offen offset:{512*ph} sc1']
                U.append((L, ('Z', par, ks)))
        return U
    vm.issue(('A2', 1), 1)
    run_units([(l, ('Z', 0, t[2])) for (l, t) in zld(0)])
    need_bit(1)
    run_units([(l, ('Z', 1, t[2])) for (l, t) in zld(1)])
    flags_load(); vm.issue('fl', 1)
    for i in range(NG1, 6): z1_group(i)
    for i in range(6):
        a(f'ds_read_b64 {vr(Z1R+2*i,2)}, v{V_ZR} offset:{1024*(i>>1)+256*(i&1)}')
    if opt.get('cg', 0) == 1 or opt.get('kd') == 1:
        a(f's_cmp_lg_u32 s{S_W}, 3')
        a('s_cbranch_scc1 L_fs_skip')
        a(f's_lshl_b32 s{S_T}, s2, 2')
        a(f's_add_u32 s{S_T}, s{S_T}, {WS_FS}')
        flag_store(a, S_T, 18)
        a.lab('L_fs_skip')
    def ards(par, ks):
        f = AF + 8 * (ks & 1)
        for tp in range(2):
            a(f'ds_read_b128 {vr(f+4*tp,4)}, v{V_A2R+ks} offset:{8192*par+4096*tp}')
    def chunk(i, fill=()):
        par = i & 1
        if i + 2 < 8:
            need_bit(i + 2, fresh=True)
        if i + 3 < 8 or i == 6:
            flags_load(); vm.issue('fl', 1)
        AU = [(l, ('A2', i + 1)) for (l, _) in adma(1 - par)] if 1 <= i < 7 else []
        ZU = [(l, ('Z', i + 2, t[2])) for (l, t) in zld(par)] if i + 2 < 8 else []
        for ks in range(4):
            a(f's_waitcnt vmcnt({vm.n_after(("Z", i, ks))}) lgkmcnt(0)')
            if ks < 3:
                ards(par, ks + 1)
            f = AF + 8 * (ks & 1)
            for tp in range(2):
                for ph in range(3):
                    m = 3 * tp + ph
                    c = vr(G2 + 16 * (2 * ph + tp), 16)
                    if not opt.get('x_nomfma'): a(f'v_mfma_f32_32x32x16_bf16 {c}, {vr(ZR+48*par+12*ks+4*ph,4)}, {vr(f+4*tp,4)}, {0 if (i == 0 and ks == 0) else c}')
                    if m < 3 and ks < 2 and AU: run_units(AU[4 * ks: 4 * ks + 2] if m == 0 else [AU[4 * ks + m + 1]])
                    if m >= 3 and ZU: run_units([ZU[3 * ks + m - 3]])
                    for l in fill[6 * (6 * ks + m): 6 * (6 * ks + m) + 6]: a(l)
        a(f's_waitcnt vmcnt({vm.n_after(("A2", i + 1))})')
        ards(1 - par, 0)
    V_L16 = V_BD + 1
    a(f'v_lshlrev_b32 v{V_L16}, 4, v{V_L}')
    a(f's_mul_i32 s{S_WOB}, s{S_CB}, {24*5120}')
    a(f's_mul_i32 s{S_T}, s{S_W}, {6*5120}')
    a(f's_add_u32 s{S_WOB}, s{S_WOB}, s{S_T}')
    a(f's_add_u32 s{S_WOB}, s{S_WOB}, {WS_WO}')
    V_RW = V_BD + 2
    a(f'v_add_u32 v{V_RW}, s{S_M_A}, v{V_L16}')
    V_RR = 12
    for d in range(1, 4):
        a(f's_sub_u32 s{S_T}, s{S_W}, {d}')
        a(f's_and_b32 s{S_T}, s{S_T}, 3')
        a(f's_mul_i32 s{S_T}, s{S_T}, {SLOT}')
        a(f's_add_u32 s{S_T}, s{S_T}, {6144*(d-1)}')
        a(f'v_add_u32 v{V_RR+d-1}, s{S_T}, v{V_L16}')
    stamp(a, 9)
    a('s_waitcnt lgkmcnt(0)')
    ards(0, 0)
    GL = []
    for i in range(6): GL += gelu_packed([Z1R + 2 * i, Z1R + 2 * i + 1], K0V)
    for i in range(7): chunk(i, GL if i == 0 else ())
    WOS = [144, 164, 192, 212]
    def wold(kk):
        U = []
        for dl in range(5):
            L = [f's_add_u32 s{S_BO}, s{S_WOB}, {5120*kk+(4096 if dl == 4 else 0)}'] if dl in (0, 4) else []
            L += [f'buffer_load_dwordx4 {vr(WOS[kk&3]+4*dl,4)}, v{V_L16}, {srd(SRD_WS)}, s{S_BO} offen offset:{1024*(dl&3)} sc1']
            U.append((L, ('WO', kk)))
        return U
    for par in (1,):
        a.lab(f'L_p2_tail{par}')
        other = ZR + 48 * (1 - par)
        AFR = {0: 120, 1: 128, 2: other + 40, 3: 16}
        for ks in range(1, 4):
            for tp in range(2):
                a(f'ds_read_b128 {vr(AFR[ks]+4*tp,4)}, v{V_A2R+ks} offset:{8192*par+4096*tp}')
        a('s_waitcnt vmcnt(0) lgkmcnt(0)')
        if opt.get('no_side') != 1:
            need_bit(0x3f00, mask=True, fresh=True)
        early, late = ((0, 1), (2, 3)) if par == 1 else ((2, 3), (0, 1))
        WOU = wold(early[0]) + wold(early[1])
        k = 0
        def wr(i):
            for d in range(1, 4):
                a(f'ds_write_b128 v{V_RW}, {vr(G2+16*i+4*d,4)} offset:{6144*(d-1)+1024*i}')
        for i in range(6):
            ph, tp = i >> 1, i & 1
            c = vr(G2 + 16 * i, 16)
            for ks in range(4):
                a(f'v_mfma_f32_32x32x16_bf16 {c}, {vr(ZR+48*par+12*ks+4*ph,4)}, {vr(AFR[ks]+4*tp,4)}, {c}')
                if ks in (0, 2) and k < len(WOU):
                    run_units([WOU[k]], False); k += 1
                if ks == 2 and i > 0: wr(i - 1)
        wr(5)
        run_units(wold(late[0]) + wold(late[1]), False)
    a.lab('L_red_done')
    stamp(a, 10)
    vm.ops = []
    a('s_waitcnt lgkmcnt(0)')
    a('s_barrier')
    for i in range(6):
        for j in range(3):
            a(f'ds_read_b128 {vr(G2+16*i+4+4*j,4)}, v{V_RR+j} offset:{1024*i}')
    a(f'v_lshlrev_b32 v{BS2+1}, 16, v{BS2}')
    a(f'v_lshlrev_b32 v{BS2+3}, 16, v{BS2+2}')
    a(f'v_lshlrev_b32 v{BS2}, 16, v{BS2}')
    a(f'v_lshlrev_b32 v{BS2+2}, 16, v{BS2+2}')
    a(f's_mul_i32 s{S_ABASE}, s{S_RB}, 98304')
    a(f's_add_u32 s{S_ABASE}, s{S_ABASE}, {WS_P}')
    a(f's_mul_i32 s{S_T}, s{S_CB}, 12288')
    a(f's_add_u32 s{S_T}, s{S_T}, s{S_ABASE}')
    a(f's_lshl_b32 s{S_T2}, s{S_W}, 10')
    a(f's_add_u32 s{S_T}, s{S_T}, s{S_T2}')
    PQ = 120
    for ph in range(3):
        for tp in range(2):
            i = 2 * ph + tp
            a(f's_waitcnt lgkmcnt({min(15, 3*(5-i))})')
            T = [V_T, V_T + 4]
            def both(f):
                for hh in range(2): a(f(G2 + 16 * i + 2 * hh, T[hh], hh))
            both(lambda c, t, hh: f'v_pk_add_f32 {vr(c,2)}, {vr(c,2)}, {vr(c+4,2)}')
            both(lambda c, t, hh: f'v_pk_add_f32 {vr(c+8,2)}, {vr(c+8,2)}, {vr(c+12,2)}')
            both(lambda c, t, hh: f'v_pk_add_f32 {vr(c,2)}, {vr(c,2)}, {vr(c+8,2)}')
            both(lambda c, t, hh: f'v_cvt_pk_bf16_f32 v{t+2}, v{c}, v{c+1}')
            both(lambda c, t, hh: f'v_lshlrev_b32 v{t}, 16, v{t+2}')
            both(lambda c, t, hh: f'v_and_b32 v{t+1}, 0xffff0000, v{t+2}')
            both(lambda c, t, hh: f'v_pk_add_f32 {vr(t,2)}, {vr(t,2)}, {vr(BS2+2*tp,2)}')
            both(lambda c, t, hh: f'v_cvt_pk_bf16_f32 v{t+2}, v{t}, v{t+1}')
            both(lambda c, t, hh: f'v_lshlrev_b32 v{c}, 16, v{Z1R+2*i+hh}')
            both(lambda c, t, hh: f'v_and_b32 v{c+1}, 0xffff0000, v{Z1R+2*i+hh}')
            both(lambda c, t, hh: f'v_lshlrev_b32 v{t}, 16, v{t+2}')
            both(lambda c, t, hh: f'v_and_b32 v{t+1}, 0xffff0000, v{t+2}')
            both(lambda c, t, hh: f'v_pk_mul_f32 {vr(t,2)}, {vr(t,2)}, {vr(c,2)}')
            both(lambda c, t, hh: f'v_cvt_pk_bf16_f32 v{PQ+4*ph+2*tp+hh}, v{t}, v{t+1}')
        q = PQ + 4 * ph
        a(f'v_permlane32_swap_b32 v{q}, v{q+2}')
        a(f'v_permlane32_swap_b32 v{q+1}, v{q+3}')
        a(f'buffer_store_dwordx4 {vr(q,4)}, v{V_L16}, {srd(SRD_WS)}, s{S_T} offen sc1')
        if ph < 2: a(f's_add_u32 s{S_T}, s{S_T}, 4096')
    a('s_barrier')
    a(f's_mul_i32 s{S_M_B}, s{S_W}, 15360')
    for j in range(10):
        if j % 4 == 0:
            a(f's_add_u32 m0, s{S_M_B}, {1024*j}')
            a(f's_add_u32 s{S_BO}, s{S_WOB}, {4*5120+1024*j}')
        a(f'buffer_load_dwordx4 v{V_L16}, {srd(SRD_WS)}, s{S_BO} offen offset:{1024*(j%4)} sc1 lds')
    a.fence(2)
    lane_mq()
    V_PP = 7
    a(f'v_and_b32 v{V_PP}, 7, v{V_L}')
    a(f'v_lshlrev_b32 v{V_PP}, 2, v{V_PP}')
    a(f's_lshl_b32 s{S_T}, s{S_RB}, 7')
    a(f's_add_u32 s{S_T}, s{S_T}, {WS_FP}')
    a(f's_lshl_b32 s{S_T2}, s{S_W}, 5')
    a(f's_add_u32 s{S_T2}, s{S_T2}, s{S_T}')
    V_PL0, V_PL1 = 8, 9
    a(f's_lshl_b32 s{S_AO}, s{S_RB}, 5')
    a(f's_add_u32 s{S_AO}, s{S_AO}, {WS_FG}')
    a(f'v_add_u32 v{V_PL0}, s{S_AO}, v{V_PP}')
    a(f'v_add_u32 v{V_PP}, s{S_T2}, v{V_PP}')
    a(f's_lshl_b32 s{S_T2}, s{S_CB}, 4')
    a(f's_add_u32 s{S_T}, s{S_T}, s{S_T2}')
    a(f's_lshl_b32 s{S_T2}, s{S_W}, 2')
    a(f's_add_u32 s{S_T}, s{S_T}, s{S_T2}')
    a(f's_mul_i32 s{S_T2}, s{S_CB}, 320')
    a(f's_add_u32 s{S_T2}, s{S_T2}, {WS_FA}')
    a(f'v_lshlrev_b32 v{V_PL1}, 2, v{V_L}')
    a(f'v_add_u32 v{V_PL1}, s{S_T2}, v{V_PL1}')
    a(f'v_lshlrev_b32 v{t3}, 2, v{t0}')
    a(f'v_add_u32 v{t3}, s{S_T2}, v{t3}')
    a(f'v_add_u32 v{t3}, 256, v{t3}')
    a(f'v_bfe_u32 v{t2}, v{V_L}, 4, 1')
    a(f'v_cmp_eq_u32 vcc, 1, v{t2}')
    a(f'v_cndmask_b32 v{V_PL0}, v{V_PL0}, v{t3}, vcc')
    V_AW, V_O1, V_O2, V_ATR, V_AG, V_PF = 248, 10, 11, 12, 250, 2
    ATR, GT = [136, 140, 184], 188
    a(f's_lshl_b32 s{S_AO}, s{S_W}, 7')
    a(f'v_add_u32 v{t2}, s{S_AO}, v{V_L}')
    a(f's_lshl_b32 s{S_AO}, s{S_WJ}, 6')
    a(f's_add_u32 s{S_AO}, s{S_AO}, 512')
    a(f'v_add_u32 v{t3}, s{S_AO}, v{V_L}')
    ATL = 61440
    a(f'v_lshlrev_b32 v{V_AW}, 4, v{t2}')
    a(f'v_lshlrev_b32 v{V_AW+1}, 4, v{t3}')
    a(f'v_add_u32 v{V_AW}, {ATL}, v{V_AW}')
    a(f'v_add_u32 v{V_AW+1}, {ATL}, v{V_AW+1}')
    for k, tt in enumerate((t2, t3)):
        a(f'v_lshrrev_b32 v{V_AG+k}, 3, v{tt}')
        a(f'v_and_b32 v{tt}, 7, v{tt}')
        a(f'v_lshlrev_b32 v{V_AG+k}, 12, v{V_AG+k}')
        a(f'v_lshl_add_u32 v{V_AG+k}, v{tt}, 4, v{V_AG+k}')
    a(f's_lshl_b32 s{S_AO}, s{S_RB}, 6')
    a(f's_lshl_b32 s{S_BO}, s{S_W}, 4')
    a(f's_add_u32 s{S_AO}, s{S_AO}, s{S_BO}')
    a(f'v_add_u32 v{t2}, s{S_AO}, v{t0}')
    a(f'v_lshlrev_b32 v{V_AG+2}, 3, v{t2}')
    a(f'v_add_u32 v{V_AG+2}, {WS_G}, v{V_AG+2}')
    a(f'v_mul_u32_u24 v{t2}, 1280, v{t2}')
    a(f's_mul_i32 s{S_AO}, s{S_CB}, 160')
    a(f'v_add_u32 v{t2}, s{S_AO}, v{t2}')
    a(f'v_and_b32 v{t3}, 1, v{t1}')
    a(f'v_lshl_add_u32 v{V_O1}, v{t3}, 5, v{t2}')
    a(f'v_lshrrev_b32 v{t3}, 1, v{t1}')
    a(f'v_lshl_add_u32 v{V_O1}, v{t3}, 4, v{V_O1}')
    a(f'v_lshl_add_u32 v{V_O2}, v{t1}, 3, v{t2}')
    a(f'v_add_u32 v{V_O2}, 128, v{V_O2}')
    a(f'v_lshl_add_u32 v{t2}, v{t1}, 6, v{t0}')
    a(f'v_lshlrev_b32 v{t2}, 4, v{t2}')
    VPF = [2, 3, 4, 6]
    for tt in range(4):
        a(f's_add_u32 s{S_AO}, s{S_W}, {tt}')
        a(f's_and_b32 s{S_AO}, s{S_AO}, 3')
        a(f's_lshl_b32 s{S_AO}, s{S_AO}, 8')
        a(f'v_add_u32 v{VPF[tt]}, s{S_AO}, v{t2}')
    a(f's_mul_i32 s{S_AO}, s{S_W}, 24576')
    a(f's_add_u32 s{S_ABASE}, s{S_ABASE}, s{S_AO}')
    a(f'v_lshrrev_b32 v{t2}, 2, v{t0}')
    a(f'v_lshl_add_u32 v{t2}, v{t1}, 2, v{t2}')
    a(f'v_lshlrev_b32 v{t2}, 7, v{t2}')
    a(f'v_and_b32 v{t3}, 3, v{V_L}')
    a(f'v_lshl_add_u32 v{t2}, v{t3}, 3, v{t2}')
    a(f's_lshl_b32 s{S_AO}, s{S_W}, 5')
    a(f's_add_u32 s{S_AO}, s{S_AO}, {ATL}')
    a(f'v_add_u32 v{V_ATR}, s{S_AO}, v{t2}')
    O3 = 24
    a('s_waitcnt vmcnt(10)')
    flag_store(a, S_T, V_T)
    stamp(a, 11)
    if not opt.get('no_side'):
        a(f'buffer_load_dword v20, v{V_PL0}, {srd(SRD_WS)}, 0 offen sc1')
        a(f'buffer_load_dword v21, v{V_PL1}, {srd(SRD_WS)}, 0 offen sc1')
    a(f's_mov_b32 s{S_CNT}, {SPIN_MAX}')
    a(f'buffer_load_dword v16, v{V_PP}, {srd(SRD_WS)}, 0 offen sc1')
    a.lab('L_pp_spin')
    a(f'buffer_load_dword v17, v{V_PP}, {srd(SRD_WS)}, 0 offen sc1')
    a('s_waitcnt vmcnt(1)')
    a(f'v_cmp_ne_u32 vcc, s{S_TAG}, v16')
    a('s_cbranch_vccz L_pp_done')
    a(f'buffer_load_dword v16, v{V_PP}, {srd(SRD_WS)}, 0 offen sc1')
    a('s_waitcnt vmcnt(1)')
    a(f'v_cmp_ne_u32 vcc, s{S_TAG}, v17')
    a('s_cbranch_vccz L_pp_done')
    if opt.get('psl', 4): a(f's_sleep {opt.get("psl", 4)}')
    a(f's_sub_u32 s{S_CNT}, s{S_CNT}, 1')
    a(f's_cmp_lg_u32 s{S_CNT}, 0')
    a('s_cbranch_scc1 L_pp_spin')
    a.lab('L_pp_done')
    stamp(a, 12)
    vm.ops = []
    NPS = 3
    PFS = [104, 120, 232]
    V_AG2 = [V_AG, V_AG + 1, V_AG + 2]
    def pld(kk):
        U = []
        for tt in range(4):
            L = [f's_add_u32 s{S_AO}, s{S_ABASE}, {4096*kk}'] if tt == 0 else []
            L += [f'buffer_load_dwordx4 {vr(PFS[kk%NPS]+4*tt,4)}, v{VPF[tt]}, {srd(SRD_WS)}, s{S_AO} offen sc1']
            U.append((L, ('P', kk)))
        return U
    for kk in range(3): run_units(pld(kk))
    if not opt.get('no_side'):
        a(f'v_cmp_ne_u32 vcc, s{S_TAG}, v20')
        a(f'v_cmp_ne_u32 s[84:85], s{S_TAG}, v21')
        a('s_or_b64 vcc, vcc, s[84:85]')
        a('s_cbranch_vccnz L_pa_late')
    def at_loads():
        a(f's_mul_i32 s{S_T}, s{S_CB}, {80*4096}')
        a(f's_lshl_b32 s{S_T2}, s{S_RB}, 7')
        a(f's_add_u32 s{S_T}, s{S_T}, s{S_T2}')
        a(f's_add_u32 s{S_T}, s{S_T}, {WS_AT}')
        a(f's_add_u32 s{S_T2}, s{S_T}, {8*4096}')
        a(f'buffer_load_dwordx4 {vr(ATR[0],4)}, v{V_AG2[0]}, {srd(SRD_WS)}, s{S_T} offen sc1')
        a(f'buffer_load_dwordx4 {vr(ATR[1],4)}, v{V_AG2[0]}, {srd(SRD_WS)}, s{S_T2} offen sc1')
        a(f'buffer_load_dwordx4 {vr(ATR[2],4)}, v{V_AG2[1]}, {srd(SRD_WS)}, s{S_T} offen sc1')
        a(f'buffer_load_dwordx2 {vr(GT,2)}, v{V_AG2[2]}, {srd(SRD_WS)}, 0 offen sc1')
    at_loads()
    vm.issue('at', 4)
    a(f's_mov_b32 s{S_KZ}, 0')
    if not opt.get('no_side'):
        a('s_branch L_pa_go')
        a.lab('L_pa_late')
        for k in range(4):
            a(f'buffer_load_dword v22, off, {srd(SRD_WS)}, 0')
        a(f's_mov_b32 s{S_KZ}, 1')
        a.lab('L_pa_go')
    stamp(a, 13)
    V_W3, V_R3 = 13, 14
    VR3 = [14, 15, 0]
    a(f's_mul_i32 s{S_T}, s{S_W}, 15360')
    a(f'v_add_u32 v{V_W3}, s{S_T}, v{V_L16}')
    for d in range(1, 4):
        a(f's_sub_u32 s{S_T}, s{S_W}, {d}')
        a(f's_and_b32 s{S_T}, s{S_T}, 3')
        a(f's_mul_i32 s{S_T}, s{S_T}, 15360')
        a(f's_add_u32 s{S_T}, s{S_T}, {5120*(d-1)}')
        a(f'v_add_u32 v{VR3[d-1]}, s{S_T}, v{V_L16}')
    def wr3(tt):
        for dl in range(5):
            a(f'ds_write_b128 v{V_W3}, {vr(O3+4*(5*tt+dl),4)} offset:{5120*(tt-1)+1024*dl}')
    for kk in range(6):
        need = vm.n_after(('P', kk))
        a(f's_waitcnt vmcnt({need})' + (' lgkmcnt(5)' if kk == 4 else ' lgkmcnt(0)' if kk == 5 else ''))
        for tt in ((0, 1, 2, 3) if kk < 5 else (1, 2, 3, 0)):
            for dl in range(5):
                c = vr(O3 + 4 * (5 * tt + dl), 4)
                a(f'v_mfma_f32_16x16x32_bf16 {c}, {vr(WOS[kk&3]+4*dl,4)}, {vr(PFS[kk%NPS]+4*tt,4)}, {c if kk else 0}')
            if kk == 5 and tt != 1: wr3((tt - 1) & 3)
        if kk + 3 < 6: run_units(pld(kk + 3))
        if kk + 4 < 6:
            for dl in range(5):
                a(f'ds_read_b128 {vr(WOS[kk&3]+4*dl,4)}, v{V_W3} offset:{5120*kk+1024*dl}')
    stamp(a, 14)
    if not opt.get('no_side'):
        a(f's_cmp_eq_u32 s{S_KZ}, 0')
        a('s_cbranch_scc1 L_pa_ok')
        poll(a, 'L_pa', [(V_PL0, '0'), (V_PL1, '0')], 20, S_CNT)
        at_loads()
        a.lab('L_pa_ok')
    a('s_waitcnt vmcnt(0)')
    a(f'v_mov_b32 v{GT+2}, v{GT+1}')
    a(f'v_mov_b32 v{GT+3}, v{GT+1}')
    a(f'v_mov_b32 v{GT+1}, v{GT}')
    a(f'ds_write_b128 v{V_AW}, {vr(ATR[0],4)}')
    a(f'ds_write_b128 v{V_AW}, {vr(ATR[1],4)} offset:1024')
    a(f'ds_write_b128 v{V_AW+1}, {vr(ATR[2],4)}')
    a('s_waitcnt lgkmcnt(0)')
    a('s_barrier')
    AV = 104
    for dl in range(5):
        for j in range(3):
            a(f'ds_read_b128 {vr(O3+4*(5*(j+1)+dl),4)}, v{VR3[j]} offset:{1024*dl}')
        a(f'ds_read_b64_tr_b16 {vr(AV+2*dl,2)}, v{V_ATR} offset:{2048*dl}')
    RQ = 116
    for dl in range(5):
        a(f's_waitcnt lgkmcnt({min(15, 4*(4-dl))})')
        T = [V_T, V_T + 4]
        def both(f):
            for hh in range(2): a(f(O3 + 4 * dl + 2 * hh, T[hh], AV + 2 * dl + hh, hh))
        both(lambda c, t, av, hh: f'v_pk_add_f32 {vr(c,2)}, {vr(c,2)}, {vr(c+20,2)}')
        both(lambda c, t, av, hh: f'v_pk_add_f32 {vr(c+40,2)}, {vr(c+40,2)}, {vr(c+60,2)}')
        both(lambda c, t, av, hh: f'v_pk_add_f32 {vr(c,2)}, {vr(c,2)}, {vr(c+40,2)}')
        both(lambda c, t, av, hh: f'v_cvt_pk_bf16_f32 v{t+2}, v{c}, v{c+1}')
        both(lambda c, t, av, hh: f'v_lshlrev_b32 v{t}, 16, v{av}')
        both(lambda c, t, av, hh: f'v_and_b32 v{t+1}, 0xffff0000, v{av}')
        both(lambda c, t, av, hh: f'v_lshlrev_b32 v{c}, 16, v{t+2}')
        both(lambda c, t, av, hh: f'v_and_b32 v{c+1}, 0xffff0000, v{t+2}')
        both(lambda c, t, av, hh: f'v_pk_mul_f32 {vr(t,2)}, {vr(t,2)}, {vr(GT,2)}')
        both(lambda c, t, av, hh: f'v_pk_mul_f32 {vr(c,2)}, {vr(c,2)}, {vr(GT+2,2)}')
        both(lambda c, t, av, hh: f'v_cvt_pk_bf16_f32 v{t+2}, v{t}, v{t+1}')
        both(lambda c, t, av, hh: f'v_cvt_pk_bf16_f32 v{t+3}, v{c}, v{c+1}')
        both(lambda c, t, av, hh: f'v_lshlrev_b32 v{t}, 16, v{t+2}')
        both(lambda c, t, av, hh: f'v_and_b32 v{t+1}, 0xffff0000, v{t+2}')
        both(lambda c, t, av, hh: f'v_lshlrev_b32 v{c}, 16, v{t+3}')
        both(lambda c, t, av, hh: f'v_and_b32 v{c+1}, 0xffff0000, v{t+3}')
        both(lambda c, t, av, hh: f'v_pk_add_f32 {vr(t,2)}, {vr(t,2)}, {vr(c,2)}')
        both(lambda c, t, av, hh: f'v_cvt_pk_bf16_f32 v{RQ+2*dl+hh}, v{t}, v{t+1}')
        if dl in (1, 3):
            q = RQ + 2 * (dl - 1)
            a(f'v_permlane16_swap_b32 v{q}, v{q+2}')
            a(f'v_permlane16_swap_b32 v{q+1}, v{q+3}')
            a(f'buffer_store_dwordx4 {vr(q,4)}, v{V_O1}, {srd(SRD_OUT)}, 0 offen offset:{32*(dl-1)} {OC}')
        if dl == 4:
            a(f'buffer_store_dwordx2 {vr(RQ+8,2)}, v{V_O2}, {srd(SRD_OUT)}, 0 offen {OC}')
    if _g.PROF['on']:
        a('s_waitcnt vmcnt(0)')
    stamp(a, 15)
    stamp_dump(a, 16)
    a('s_endpgm')

def poll1(a, name, vaddrs, vtmp, scount):
    a(f's_cmp_lg_u32 s{S_W}, 0')
    a(f's_cbranch_scc1 {name}_out')
    va = vaddrs[0]
    a(f's_mov_b32 s{scount}, {SPIN_MAX}')
    a(f'buffer_load_dword v{vtmp}, v{va}, {srd(SRD_WS)}, 0 offen sc1')
    a.lab(f'{name}_spin')
    a(f'buffer_load_dword v{vtmp+1}, v{va}, {srd(SRD_WS)}, 0 offen sc1')
    a('s_waitcnt vmcnt(1)')
    a(f'v_cmp_ne_u32 vcc, s{S_TAG}, v{vtmp}')
    a(f's_cbranch_vccz {name}_done')
    a(f'buffer_load_dword v{vtmp}, v{va}, {srd(SRD_WS)}, 0 offen sc1')
    a('s_waitcnt vmcnt(1)')
    a(f'v_cmp_ne_u32 vcc, s{S_TAG}, v{vtmp+1}')
    a(f's_cbranch_vccz {name}_done')
    a(f's_sub_u32 s{scount}, s{scount}, 1')
    a(f's_cmp_lg_u32 s{scount}, 0')
    a(f's_cbranch_scc1 {name}_spin')
    a.lab(f'{name}_done')
    a.lab(f'{name}_out')
    a('s_barrier')

def e1_z2(a, opt, vm, k0):
    SS, QQ = ACC1, ACC1 + 8
    K0 = ACC1 + 16
    pf = opt.get('gpf', 0)
    if pf:
        a(f's_lshl_b32 s{S_T}, s{S_RB}, 18')
        a(f's_and_b32 s{S_T2}, s{S_CB}, 3')
        a(f's_lshl_b32 s{S_T2}, s{S_T2}, 16')
        a(f's_add_u32 s{S_T}, s{S_T}, s{S_T2}')
        a(f's_lshl_b32 s{S_T2}, s{S_W}, 14')
        a(f's_add_u32 s{S_T}, s{S_T}, s{S_T2}')
        a(f'v_lshlrev_b32 v{t0}, {7 if pf == 128 else 6}, v{V_L}')
        for i in range(16384 // (64 * pf)):
            a(f'buffer_load_dword v{ACC1+20+i}, v{t0}, {srd(SRD_WSP)}, s{S_T} offen')
            a(f's_add_u32 s{S_T}, s{S_T}, {64*pf}')
            vm.issue('pf', 1)
    a(f'v_mov_b32 v{K0}, {hx(k0)}')
    a(f'v_mov_b32 v{K0+1}, {hx(k0)}')
    first = {}
    for phi in range(3):
        for tau in range(2):
            cs = [ACC2 + 4 * (3 * tau + phi) + 2 * hh for hh in range(2)]
            def after(c, t):
                r = 4 * tau + (c - cs[0])
                L = [f'v_cvt_pk_bf16_f32 v{c}, v{t+2}, v{t+3}']
                if phi == 0:
                    L += [f'v_lshlrev_b32 v{SS+r}, 16, v{c}', f'v_and_b32 v{SS+r+1}, 0xffff0000, v{c}',
                          f'v_pk_mul_f32 {vr(QQ+r,2)}, {vr(SS+r,2)}, {vr(SS+r,2)}']
                else:
                    L += [f'v_lshlrev_b32 v{t}, 16, v{c}', f'v_and_b32 v{t+1}, 0xffff0000, v{c}',
                          f'v_pk_add_f32 {vr(SS+r,2)}, {vr(SS+r,2)}, {vr(t,2)}', f'v_pk_fma_f32 {vr(QQ+r,2)}, {vr(t,2)}, {vr(t,2)}, {vr(QQ+r,2)}']
                return L
            gelu2(a, cs, K0, after)
    for j in range(8):
        a(f'v_add_f32_dpp v{SS+j}, v{SS+j}, v{SS+j} row_ror:8 row_mask:0xf bank_mask:0x3')
    for j in range(8):
        a(f'v_add_f32_dpp v{SS+j}, v{QQ+j}, v{QQ+j} row_ror:8 row_mask:0xf bank_mask:0xc')
    for j in range(4):
        a(f'v_add_f32_dpp v{SS+j}, v{SS+j}, v{SS+j} row_half_mirror row_mask:0xf bank_mask:0x5')
    for j in range(4):
        a(f'v_add_f32_dpp v{SS+j}, v{SS+j+4}, v{SS+j+4} row_half_mirror row_mask:0xf bank_mask:0xa')
    a(f'v_and_b32 v{t0}, 15, v{V_L}')
    a(f'v_lshrrev_b32 v{t1}, 4, v{V_L}')
    a(f'v_and_b32 v{t2}, 3, v{V_L}')
    for qp in ('[3,2,1,0]', '[1,0,3,2]'):
        for j in range(4):
            a(f'v_add_f32_dpp v{SS+j}, v{SS+j}, v{SS+j} quad_perm:{qp} row_mask:0xf bank_mask:0xf')
    GQ = V_T + 4
    a(f'v_cmp_eq_u32 vcc, 1, v{t2}')
    a(f'v_cmp_eq_u32 s[84:85], 2, v{t2}')
    a(f'v_cmp_eq_u32 {sp(S_TMP2)}, 3, v{t2}')
    a(f'v_lshl_add_u32 v{t2}, v{t0}, 2, v{t1}')
    a(f'v_cndmask_b32 v{GQ}, v{SS}, v{SS+1}, vcc')
    a(f'v_cndmask_b32 v{GQ}, v{GQ}, v{SS+2}, s[84:85]')
    a(f'v_cndmask_b32 v{GQ}, v{GQ}, v{SS+3}, {sp(S_TMP2)}')
    a(f'v_mov_b32 v{GQ+2}, s{S_TAG}')
    a(f'v_mov_b32 v{GQ+3}, s{S_TAG}')
    a(f'v_mov_b32_dpp v{GQ+1}, v{GQ} row_ror:8 row_mask:0xf bank_mask:0xf')
    a(f's_lshl_b32 s{S_T}, s{S_WI}, 5')
    a(f'v_add_u32 v{t2}, s{S_T}, v{t2}')
    a(f'v_lshlrev_b32 v{t2}, 8, v{t2}')
    a(f's_lshl_b32 s{S_T}, s{S_RB}, 14')
    a(f's_lshl_b32 s{S_T2}, s{S_CB}, 5')
    a(f's_add_u32 s{S_T}, s{S_T}, s{S_T2}')
    a(f's_lshl_b32 s{S_T2}, s{S_WJ}, 4')
    a(f's_add_u32 s{S_T}, s{S_T}, s{S_T2}')
    a(f's_add_u32 s{S_T}, s{S_T}, {WS_ST}')
    a(f'v_cmp_gt_u32 vcc, 8, v{t0}')
    a(f's_and_saveexec_b64 {sp(S_TMP2)}, vcc')
    a(f'buffer_store_dwordx4 {vr(GQ,4)}, v{t2}, {srd(SRD_WS)}, s{S_T} offen sc1')
    a(f's_mov_b64 exec, {sp(S_TMP2)}')
    vm.issue('st', 1)
    if pf:
        a(f's_waitcnt vmcnt({vm.n_after("pf")})')

V_SA = 13
def e2_loads(a, vm):
    a(f'v_lshlrev_b32 v{V_SA}, 4, v{V_L}')
    a(f's_lshl_b32 s{S_T}, s{S_RB}, 14')
    a(f's_lshl_b32 s{S_T2}, s{S_WI}, 13')
    a(f's_add_u32 s{S_T}, s{S_T}, s{S_T2}')
    a(f's_add_u32 s{S_T}, s{S_T}, {WS_ST}')
    a(f'v_add_u32 v{V_SA}, s{S_T}, v{V_SA}')
    st_loads(a)
    vm.issue('stl', 8)

def st_loads(a):
    a(f's_movk_i32 s{S_T2}, 4096')
    for k in range(8):
        a(f'buffer_load_dwordx4 {vr(ST+4*k,4)}, v{V_SA}, {srd(SRD_WS)}, {"0" if k < 4 else "s%d" % S_T2} offen offset:{1024*(k&3)} sc1')

def e2_layernorm(a, opt, vm):
    a('; ---- LayerNorm hand-off')
    a(f's_mov_b32 s{S_CNT}, {SPIN_MAX}')
    a(f's_waitcnt vmcnt({vm.n_after("stl")})')
    a.lab('L_ln_check')
    a(f'v_and_b32 v{t0}, v{ST+2}, v{ST+3}')
    a(f'v_or_b32 v{t1}, v{ST+2}, v{ST+3}')
    for k in range(1, 8):
        a(f'v_and_b32 v{t0}, v{t0}, v{ST+4*k+2}')
        a(f'v_or3_b32 v{t1}, v{t1}, v{ST+4*k+2}, v{ST+4*k+3}')
        a(f'v_and_b32 v{t0}, v{t0}, v{ST+4*k+3}')
    a(f'v_cmp_ne_u32 vcc, s{S_TAG}, v{t0}')
    a(f'v_cmp_ne_u32 s[84:85], s{S_TAG}, v{t1}')
    a('s_or_b64 vcc, vcc, s[84:85]')
    a('s_cbranch_vccz L_ln_done')
    st_loads(a)
    a('s_waitcnt vmcnt(0)')
    a(f's_sub_u32 s{S_CNT}, s{S_CNT}, 1')
    a(f's_cmp_lg_u32 s{S_CNT}, 0')
    a('s_cbranch_scc1 L_ln_check')
    a.lab('L_ln_done')
    S_ = lambda k: ST + 4 * k
    Q_ = lambda k: ST + 4 * k + 1
    for k in range(8):
        a(f'v_add_f32_dpp v{S_(k)}, v{S_(k)}, v{S_(k)} row_ror:8 row_mask:0xf bank_mask:0x3')
    for k in range(8):
        a(f'v_add_f32_dpp v{S_(k)}, v{Q_(k)}, v{Q_(k)} row_ror:8 row_mask:0xf bank_mask:0xc')
    for k in range(4):
        a(f'v_add_f32_dpp v{S_(k)}, v{S_(k)}, v{S_(k)} row_half_mirror row_mask:0xf bank_mask:0x5')
    for k in range(4):
        a(f'v_add_f32_dpp v{S_(k)}, v{S_(k+4)}, v{S_(k+4)} row_half_mirror row_mask:0xf bank_mask:0xa')
    a(f'v_and_b32 v{t0}, 15, v{V_L}')
    a(f'v_lshrrev_b32 v{t1}, 4, v{V_L}')
    a(f'v_and_b32 v{t2}, 3, v{V_L}')
    for qp in ('[3,2,1,0]', '[1,0,3,2]'):
        for k in range(4):
            a(f'v_add_f32_dpp v{S_(k)}, v{S_(k)}, v{S_(k)} quad_perm:{qp} row_mask:0xf bank_mask:0xf')
    a(f'v_cmp_eq_u32 vcc, 1, v{t2}')
    a(f'v_cmp_eq_u32 s[84:85], 2, v{t2}')
    a(f'v_cmp_eq_u32 {sp(S_TMP2)}, 3, v{t2}')
    a(f'v_mul_u32_u24 v{t1}, 96, v{t1}')
    a(f'v_cndmask_b32 v{ST}, v{ST}, v{S_(1)}, vcc')
    a(f'v_cndmask_b32 v{ST}, v{ST}, v{S_(2)}, s[84:85]')
    a(f'v_cndmask_b32 v{ST}, v{ST}, v{S_(3)}, {sp(S_TMP2)}')
    a(f'v_mov_b32_dpp v{ST+1}, v{ST} row_ror:8 row_mask:0xf bank_mask:0xf')
    a(f'v_mul_f32 v{ST}, {hx(1/768)}, v{ST}')
    a(f'v_mul_f32 v{ST+1}, {hx(1/768)}, v{ST+1}')
    a(f'v_fma_f32 v{ST+1}, -v{ST}, v{ST}, v{ST+1}')
    a(f'v_max_f32 v{ST+1}, 0, v{ST+1}')
    a(f'v_cvt_pk_bf16_f32 v{ST+2}, v{ST}, v{ST+1}')
    a(f'v_lshlrev_b32 v{ST}, 16, v{ST+2}')
    a(f'v_and_b32 v{ST+1}, 0xffff0000, v{ST+2}')
    a(f'v_add_f32 v{ST+1}, {hx(1e-5)}, v{ST+1}')
    a(f'v_add_u32 v{t0}, v{t0}, v{t1}')
    a(f'v_cvt_pk_bf16_f32 v{ST+1}, v{ST+1}, v{ST+1}')
    a(f'v_and_b32 v{ST+1}, 0xffff0000, v{ST+1}')
    a(f'v_sqrt_f32 v{ST+1}, v{ST+1}')
    for j in range(8):
        a(f'v_mov_b32_dpp v{MM+j}, v{ST} row_newbcast:{j} row_mask:0xf bank_mask:0xf')
    a(f'v_cvt_pk_bf16_f32 v{ST+1}, v{ST+1}, v{ST+1}')
    a(f'v_and_b32 v{ST+1}, 0xffff0000, v{ST+1}')
    a(f'v_rcp_f32 v{ST+1}, v{ST+1}')
    a(f's_mul_i32 s{S_T}, s{S_WI}, 384')
    a(f's_mul_i32 s{S_T2}, s{S_WJ}, 48')
    a(f's_add_u32 s{S_T}, s{S_T}, s{S_T2}')
    a(f'v_add_u32 v{t0}, s{S_T}, v{t0}')
    a(f'v_lshlrev_b32 v{V_US}, 4, v{t0}')
    for j in range(8):
        a(f'v_mov_b32_dpp v{RR+j}, v{ST+1} row_newbcast:{j} row_mask:0xf bank_mask:0xf')
    a(f's_lshl_b32 s{S_T}, s{S_CB}, 5')
    a(f's_add_u32 s{S_T}, s{S_T}, s{S_RB}')
    a(f's_lshl_b32 s{S_FZA}, s{S_T}, 2')
    a(f's_add_u32 s{S_FZA}, s{S_FZA}, {WS_FZ}')
    a(f's_mul_i32 s{S_T}, s{S_T}, 12288')
    a(f's_add_u32 s{S_T}, s{S_T}, {WS_Z}')
    for phi in range(3):
        for tau in range(2):
            T = [V_T, V_T + 4]
            def both(f):
                for hh in range(2): a(f(ACC2 + 4 * (3 * tau + phi) + 2 * hh, T[hh], 4 * tau + 2 * hh, hh))
            both(lambda c, t, r, hh: f'v_lshlrev_b32 v{t}, 16, v{c}')
            both(lambda c, t, r, hh: f'v_and_b32 v{t+1}, 0xffff0000, v{c}')
            both(lambda c, t, r, hh: f'v_pk_add_f32 {vr(t,2)}, {vr(t,2)}, {vr(MM+r,2)} neg_lo:[0,1] neg_hi:[0,1]')
            both(lambda c, t, r, hh: f'v_cvt_pk_bf16_f32 v{t+2}, v{t}, v{t+1}')
            both(lambda c, t, r, hh: f'v_lshlrev_b32 v{t}, 16, v{t+2}')
            both(lambda c, t, r, hh: f'v_and_b32 v{t+1}, 0xffff0000, v{t+2}')
            both(lambda c, t, r, hh: f'v_pk_mul_f32 {vr(t,2)}, {vr(t,2)}, {vr(RR+r,2)}')
            both(lambda c, t, r, hh: f'v_cvt_pk_bf16_f32 v{ZQ+4*phi+2*tau+hh}, v{t}, v{t+1}')
        a(f'buffer_store_dwordx4 {vr(ZQ+4*phi,4)}, v{V_US}, {srd(SRD_WS)}, s{S_T} offen offset:{256*phi} sc1')
    vm.issue('z', 3)
```

```python
import sys, struct
import numpy as np
sys.path.insert(0, 'gen')
from asmlib import Asm

KNAME = 'gated_mix__ssm_conv_s4__mixer_gmlp__prompt_kernel'

def f2u(x): return struct.unpack('<I', struct.pack('<f', x))[0]
def hx(x): return '0x%08x' % f2u(x)

WS_EPOCH = 0x0
WS_FZ = 0x1000
WS_FU = 0x2000
WS_FP = 0x3000
WS_FA = 0x4000
WS_FG = 0x5000
WS_FS = 0x7000
WS_FW = 0x6000
WS_WO = 0xD00000
WS_G = 0x8000
WS_ST = 0x10000
WS_Z = 0x100000
WS_P = 0x400000
WS_UT = 0x700000
WS_AT = 0xA00000
WS_DBG = 0x1000000
WS_SIZE = 0x4000000

P_U, P_ARE, P_AIM, P_BRE, P_BIM, P_CRE, P_CIM, P_LDT = 16, 18, 20, 22, 24, 26, 28, 30
P_DSK, P_BX, P_WIN, P_WSP, P_BSP, P_WOUT, P_GW, P_OUT = 32, 34, 36, 38, 40, 42, 44, 46
P_DBG, P_WS = 48, 50
SRD_X, SRD_WIN, SRD_WSP, SRD_WOUT, SRD_WS, SRD_OUT = 52, 56, 60, 64, 68, 72
S_TAG, S_W = 80, 81
def srd(n): return f's[{n}:{n+3}]'
def sp(n): return f's[{n}:{n+1}]'
def vr(a, n): return f'v[{a}:{a+n-1}]'

LOG2E = 1.4426950408889634
SPIN_MAX = 100000

def mk_srd(a, dst, ptr, size):
    a(f's_mov_b32 s{dst}, s{ptr}')
    a(f's_and_b32 s{dst+1}, s{ptr+1}, 0xffff')
    a(f's_mov_b32 s{dst+2}, {size}')
    a(f's_mov_b32 s{dst+3}, 0x00020000')

def cmul(a, dst, x, y, tmp):
    a(f'v_pk_mul_f32 {vr(tmp,2)}, {vr(x,2)}, {vr(y,2)} op_sel:[0,0] op_sel_hi:[0,1]')
    a(f'v_pk_fma_f32 {vr(dst,2)}, {vr(x,2)}, {vr(y,2)}, {vr(tmp,2)} op_sel:[1,1,0] op_sel_hi:[1,0,1] neg_lo:[1,0,0]')

PROF = {'on': False}
PSL = [2]
WS_PROF = 0x2000000
def stamp(a, i, base=18):
    if not PROF['on']: return
    a('s_memrealtime s[14:15]')
    a('s_waitcnt lgkmcnt(0)')
    a(f's_mov_b32 s{base+i}, s14')
def stamp_dump(a, n, base=18):
    if not PROF['on']: return
    if PROF.get('dbg'):
        if base != 18: return
        a('s_mov_b64 exec, 1')
        mk_srd(a, 52, P_DBG, 256)
        a(f's_not_b32 s{base}, s{base}')
        for i in range(n):
            a(f'v_mov_b32 v2, s{base+i}')
            a(f'buffer_atomic_umax v2, off, s[52:55], 0 offset:{4*i} sc1')
        a('s_waitcnt vmcnt(0)')
        return
    a('s_mov_b64 exec, 1')
    a('s_lshl_b32 s14, s2, 2')
    a(f's_add_u32 s14, s14, s{S_W}')
    a('s_lshl_b32 s14, s14, 6')
    a(f's_add_u32 s14, s14, {WS_PROF}')
    for i in range(n):
        a(f'v_mov_b32 v2, s{base+i}')
        a(f'buffer_store_dword v2, off, {srd(SRD_WS)}, s14 offset:{4*i}')
    a('s_waitcnt vmcnt(0)')

def poll(a, name, loads, vtmp, scount, nlanes_mask=None):
    a(f's_mov_b32 s{scount}, {SPIN_MAX}')
    a.lab(f'{name}_spin')
    for i, (va, so) in enumerate(loads):
        a(f'buffer_load_dword v{vtmp+i}, v{va}, {srd(SRD_WS)}, {so} offen sc1')
    a('s_waitcnt vmcnt(0)')
    a(f'v_cmp_ne_u32 vcc, s{S_TAG}, v{vtmp}')
    for i in range(1, len(loads)):
        a(f'v_cmp_ne_u32 s[84:85], s{S_TAG}, v{vtmp+i}')
        a('s_or_b64 vcc, vcc, s[84:85]')
    a(f's_cbranch_vccz {name}_done')
    a(f's_sleep {PSL[0]}')
    a(f's_sub_u32 s{scount}, s{scount}, 1')
    a(f's_cmp_lg_u32 s{scount}, 0')
    a(f's_cbranch_scc1 {name}_spin')
    a.lab(f'{name}_done')

WAVE_LDS = 26624
CP = 4160
UOFF = 16640
def get_tag(a, n):
    a(f's_waitcnt vmcnt({n})')
    a(f'v_readfirstlane_b32 s{S_TAG}, v127')
    a(f's_add_u32 s{S_TAG}, s{S_TAG}, 1')

def side_channel(a, opt):
    sD, sLB, sT, sT2, sUns = 82, 83, 86, 87, 88
    vL = 1
    if opt.get('sprio'): a(f's_setprio {opt["sprio"]}')
    stamp(a, 0, 52)
    a(f's_mul_i32 s{sLB}, s{S_W}, {WAVE_LDS}')
    a(f's_mul_i32 s{sT}, s{sD}, 384')
    a(f'v_lshlrev_b32 v2, 1, v{vL}')
    a(f'v_add_u32 v2, s{sT}, v2')
    PR = 10
    arrs = [P_ARE, P_AIM, P_BRE, P_BIM, P_CRE, P_CIM]
    a(f's_lshl_b32 s{sT}, s{sD}, 1')
    a(f'v_mov_b32 v3, s{sT}')
    a(f'global_load_ushort v28, v3, {sp(P_LDT)}')
    a(f'global_load_ushort v29, v3, {sp(P_DSK)}')
    for ch in range(3):
        for k, p in enumerate(arrs):
            a(f'global_load_ushort v{PR+6*ch+k}, v2, {sp(p)} offset:{128*ch}')
    vWr, vRd = 104, 4
    a(f'v_and_b32 v6, 7, v{vL}')
    a(f'v_lshlrev_b32 v7, 7, v{vL}')
    a(f'v_add_u32 v7, s{sLB}, v7')
    for p in range(8):
        a(f'v_xor_b32 v8, {p}, v6')
        a(f'v_lshl_add_u32 v{vWr+p}, v8, 4, v7')
    a(f'v_lshrrev_b32 v6, 5, v{vL}')
    a(f'v_bfe_u32 v7, v{vL}, 3, 1')
    a('v_lshl_add_u32 v6, v6, 2, v7')
    a(f'v_bfe_u32 v7, v{vL}, 2, 1')
    a('v_lshlrev_b32 v7, 2, v7')
    a(f'v_bfe_u32 v8, v{vL}, 4, 1')
    a('v_lshl_add_u32 v7, v8, 1, v7')
    a(f'v_bfe_u32 v8, v{vL}, 1, 1')
    a('v_add_u32 v7, v7, v8')
    a(f'v_and_b32 v9, 1, v{vL}')
    a('v_lshlrev_b32 v9, 3, v9')
    a(f'v_add_u32 v9, s{sLB}, v9')
    for i in range(2):
        if i: a('v_add_u32 v6, 2, v6')
        a('v_xor_b32 v8, v7, v6')
        a(f'v_lshl_add_u32 v{vRd+i}, v8, 4, v9')
        a(f'v_lshl_add_u32 v{vRd+i}, v6, 7, v{vRd+i}')
    a(f'v_and_b32 v6, 31, v{vL}')
    a(f'v_lshrrev_b32 v7, 5, v{vL}')
    hi = struct.unpack('<f', struct.pack('<I', f2u(LOG2E) & 0xFFFFF000))[0]
    lo = LOG2E - hi
    get_tag(a, 18)
    a('v_lshlrev_b32 v28, 16, v28')
    a('v_lshlrev_b32 v29, 16, v29')
    a(f'v_mul_f32 v8, {hx(hi)}, v28')
    a('v_rndne_f32 v9, v8')
    a('v_sub_f32 v8, v8, v9')
    a(f'v_fmac_f32 v8, {hx(lo)}, v28')
    a('v_exp_f32 v8, v8')
    a('v_cvt_i32_f32 v9, v9')
    a('v_ldexp_f32 v8, v8, v9')
    a('v_cvt_pk_bf16_f32 v8, v8, v8')
    a('v_lshlrev_b32 v28, 16, v8')
    a('s_waitcnt vmcnt(0)')
    for i in range(18):
        a(f'v_lshlrev_b32 v{PR+i}, 16, v{PR+i}')
    WR = 32
    AW = 38
    for ch in range(3):
        b = PR + 6 * ch
        a(f'v_mul_f32 v{b}, v28, v{b}')
        a(f'v_mul_f32 v{b+1}, v28, v{b+1}')
        a(f'v_mul_f32 v{b+2}, v28, v{b+2}')
        a(f'v_mul_f32 v{b+3}, v28, v{b+3}')
        a(f'v_mul_f32 v{AW+2*ch}, {hx(LOG2E)}, v{b}')
        a(f'v_mul_f32 v{AW+2*ch+1}, {hx(1/(2*np.pi))}, v{b+1}')
        cmul(a, WR + 2 * ch, b + 4, b + 2, 8)
    a(f'v_max3_f32 v8, abs(v{WR}), abs(v{WR+1}), abs(v{WR+2})')
    a(f'v_max3_f32 v8, v8, abs(v{WR+3}), abs(v{WR+4})')
    a(f'v_max_f32 v8, v8, abs(v{WR+5})')
    for r in (8, 4, 2, 1):
        a(f'v_max_f32_dpp v8, v8, v8 row_ror:{r} row_mask:0xf bank_mask:0xf')
    a(f'v_readlane_b32 s{sT}, v8, 0')
    a(f'v_readlane_b32 s{sT2}, v8, 16')
    a(f's_max_u32 s{sT}, s{sT}, s{sT2}')
    a(f'v_readlane_b32 s{sT2}, v8, 32')
    a(f's_max_u32 s{sT}, s{sT}, s{sT2}')
    a(f'v_readlane_b32 s{sT2}, v8, 48')
    a(f's_max_u32 s{sT}, s{sT}, s{sT2}')
    a(f's_lshr_b32 s{sT}, s{sT}, 23')
    a(f's_min_u32 s{sT}, s{sT}, 252')
    a(f's_add_u32 s{sUns}, s{sT}, 1')
    a(f's_lshl_b32 s{sUns}, s{sUns}, 23')
    a(f's_sub_u32 s{sT}, 253, s{sT}')
    a(f's_lshl_b32 s{sT}, s{sT}, 23')
    for i in range(6):
        a(f'v_mul_f32 v{WR+i}, s{sT}, v{WR+i}')
    kd = opt.get('kd', 0)
    if kd and not opt.get('no_gemm'):
        if kd == 1:
            a('s_lshl_b32 s92, s2, 2')
            a(f's_add_u32 s92, s92, {WS_FS-1024}')
        else:
            a('s_lshl_b32 s92, s2, 2')
            a(f's_add_u32 s92, s92, {WS_FS-1024+1024}')
        wait_word(a, 'L_kd', 92, 8)
    stamp(a, 7, 52)
    D = 72
    for i in range(16):
        a(f'v_mov_b32 v{D+i}, 0')
    E1, E8, GG = 44, 46, 48
    X = 112
    T = 8
    PKX = 168
    PKY = 200
    YA = 50
    FR = 88
    YB = 8192
    sCnt = 89
    UR = 232
    a(f's_lshr_b32 s90, s{sD}, 6')
    a('s_lshl_b32 s90, s90, 7')
    a(f's_add_u32 s90, s90, {WS_FU}')
    a('v_lshlrev_b32 v248, 2, v6')
    a(f'v_lshlrev_b32 v249, 4, v{vL}')
    a(f's_lshl_b32 s92, s{sD}, 12')
    a(f's_add_u32 s92, s92, {WS_UT}')
    a('s_mov_b32 s91, 1')
    def u_loads():
        for it in range(4):
            a(f'buffer_load_dwordx4 {vr(UR+4*it,4)}, v249, {srd(SRD_WS)}, s92 offen offset:{1024*it} sc1')
    a(f's_mov_b32 s{sCnt}, {opt.get("kgn", 3)}')
    a.lab('L_kg_chunk')
    if opt.get('eu'):
        a(f's_cmp_gt_u32 s{sCnt}, {opt["eu"]}')
        a('s_cbranch_scc1 L_u_nl')
        a(f'buffer_load_dword v250, v248, {srd(SRD_WS)}, s90 offen sc1')
        a.lab('L_u_nl')
    def cexp(dst, P):
        if P == 1:
            a(f'v_exp_f32 v{T}, v{AW}')
            a(f'v_fract_f32 v{T+1}, v{AW+1}')
        else:
            a(f'v_mul_f32 v{T}, {hx(float(P))}, v{AW}')
            a(f'v_mul_f32 v{T+1}, {hx(float(P))}, v{AW+1}')
            a(f'v_exp_f32 v{T}, v{T}')
            a(f'v_fract_f32 v{T+1}, v{T+1}')
        a(f'v_cos_f32 v{dst}, v{T+1}')
        a(f'v_sin_f32 v{dst+1}, v{T+1}')
        a(f'v_pk_mul_f32 {vr(dst,2)}, {vr(dst,2)}, {vr(T,2)} op_sel:[0,0] op_sel_hi:[1,0]')
    cexp(E8, 8); cexp(E1, 1); cexp(GG, 256)
    def row_of(h, reg): return 8 * (reg >> 2) + 4 * h + (reg & 3)
    def flush(pk, base, j):
        if opt.get('kg_nowr'): return
        a(f'ds_write_b128 v{vWr+j}, {vr(pk+4*j,4)} offset:{base}')
        a(f'ds_write_b128 v{vWr+4+j}, {vr(pk+16+4*j,4)} offset:{base}')
    one = 54
    a(f'v_mov_b32 v{one}, 1.0')
    a(f'v_mov_b32 v{one+1}, 0')
    prev = None
    for k in range(32):
        if k == 0: cur = one
        elif k == 1: cur = E8
        else:
            cur = YA + 2 * (k & 1)
            cmul(a, cur, prev, E8, T)
        if k & 1:
            a(f'v_cvt_pk_f16_f32 v{PKY+(k>>1)}, v{prev}, v{cur}')
            a(f'v_cvt_pk_f16_f32 v{PKY+16+(k>>1)}, -v{prev+1}, -v{cur+1}')
            if (k & 7) == 7: flush(PKY, YB, k >> 3)
        prev = cur
    if opt.get('eu'):
        a(f's_cmp_gt_u32 s{sCnt}, {opt["eu"]}')
        a('s_cbranch_scc1 L_u_skip')
        a('s_cmp_eq_u32 s91, 0')
        a('s_cbranch_scc1 L_u_skip')
        a('s_waitcnt vmcnt(0)')
        a(f'v_cmp_ne_u32 vcc, s{S_TAG}, v250')
        a('s_cbranch_vccnz L_u_skip')
        u_loads()
        a('s_mov_b32 s91, 0')
        a.lab('L_u_skip')
    val = {0: WR}
    nxt = [X]
    def mk(P, src, mul):
        val[P] = nxt[0]; nxt[0] += 2
        cmul(a, val[P], val[src], mul, T)
    rows = {}
    for k in range(8): rows[row_of(0, k)] = k
    for k, P in enumerate((256, 256, 258, 260, 260, 260, 262, 264)): rows[row_of(1, k)] = P
    for k, P in enumerate((512, 516, 520, 1024, 1032, 1280, 1288)): rows[row_of(0, 8 + k)] = P
    for k, P in enumerate((768, 772, 776, 1536, 1544, 1792, 1800)): rows[row_of(1, 8 + k)] = P
    rows[27] = 1288; rows[31] = 1800
    done = set()
    def pack_ready():
        for r in range(0, 32, 2):
            if r in done or rows[r] not in val or rows[r + 1] not in val: continue
            done.add(r)
            p, q = val[rows[r]], val[rows[r + 1]]
            a(f'v_cvt_pk_f16_f32 v{PKX+(r>>1)}, v{p}, v{q}')
            a(f'v_cvt_pk_f16_f32 v{PKX+16+(r>>1)}, v{p+1}, v{q+1}')
            j = r >> 3
            if all((8 * j + e) in done for e in (0, 2, 4, 6)): flush(PKX, 0, j)
    order = [(k, k - 1, E1) for k in range(1, 9)] + [(256 + k, k, GG) for k in (0, 2, 4, 6, 8)]
    for b in (512, 768): order += [(b + k, b - 256 + k, GG) for k in (0, 4, 8)]
    for b in (1024, 1280, 1536, 1792): order += [(b + k, b - 256 + k, GG) for k in (0, 8)]
    for (P, src, mul) in order:
        mk(P, src, mul); pack_ready()
    assert len(done) == 16
    def rd(ks):
        f = FR + 8 * (ks & 1)
        for i in range(2):
            a(f'ds_read_b64_tr_b16 {vr(f+2*i,2)}, v{vRd+i} offset:{1024*ks}')
        for i in range(2):
            a(f'ds_read_b64_tr_b16 {vr(f+4+2*i,2)}, v{vRd+i} offset:{YB+1024*ks}')
    rd(0); rd(1)
    for i in range(4):
        a(f'v_mov_b32 v{WR+i}, v{WR+2+i}')
    for i in range(4):
        a(f'v_mov_b32 v{AW+i}, v{AW+2+i}')
    for ks in range(8):
        f = FR + 8 * (ks & 1)
        a('s_waitcnt lgkmcnt(4)' if ks < 7 else 's_waitcnt lgkmcnt(0)')
        a(f'v_mfma_f32_32x32x16_f16 {vr(D,16)}, {vr(f,4)}, {vr(f+4,4)}, {vr(D,16)}')
        if ks + 2 < 8: rd(ks + 2)
    a(f's_sub_u32 s{sCnt}, s{sCnt}, 1')
    a(f's_cmp_lg_u32 s{sCnt}, 0')
    a('s_cbranch_scc1 L_kg_chunk')
    stamp(a, 1, 52)
    a(f'v_lshlrev_b32 v10, 4, v6')
    a(f'v_sub_u32 v10, {16*255}, v10')
    a(f'v_add_u32 v10, s{sLB}, v10')
    a(f'v_lshlrev_b32 v11, 9, v7')
    a(f'v_sub_u32 v12, v10, v11')
    a(f'v_subrev_u32 v12, 1024, v12')
    a(f'v_sub_u32 v13, v10, v11')
    a(f'v_sub_u32 v13, v13, v11')
    a(f'v_subrev_u32 v13, 2560, v13')
    a(f'v_and_b32 v14, 1, v{vL}')
    a('v_cmp_eq_u32 vcc, 0, v14')
    a.fence(8)
    for i in range(15):
        a(f'v_mul_f32 v{D+i}, s{sUns}, v{D+i}')
    O = 16
    O = 88
    for j in range(4):
        a(f'v_cvt_pk_bf16_f32 v{O+j}, v{D+7-2*j}, v{D+6-2*j}')
    a(f'ds_write_b128 v12, {vr(O,4)} offset:1024')
    w0, w4, w8 = D + 8, D + 9, D + 10
    for j, (lo_, hi_) in enumerate([(w8, w8), (w4, w4), (w4, w0), (w0, w0)]):
        a(f'v_cvt_pk_bf16_f32 v{O+4+j}, v{lo_}, v{hi_}')
    a(f'ds_write_b128 v12, {vr(O+4,4)}')
    for s, (x0, x8, off) in enumerate([(D + 11, D + 12, 512), (D + 13, D + 14, 0)]):
        q = O + 8 + 4 * s
        a(f'v_cndmask_b32 v14, v{x8}, v{x0}, vcc')
        a(f'v_cvt_pk_bf16_f32 v{q}, v{x8}, v{x8}')
        a(f'v_cvt_pk_bf16_f32 v{q+1}, v{x8}, v14')
        a(f'v_cvt_pk_bf16_f32 v{q+2}, v{x0}, v{x0}')
        a(f'v_mov_b32 v{q+3}, v{q+2}')
        a(f'ds_write_b128 v13, {vr(q,4)} offset:{off}')
    a(f'v_lshrrev_b32 v10, 2, v{vL}')
    a(f'v_mul_u32_u24 v10, {CP}, v10')
    a(f'v_and_b32 v11, 3, v{vL}')
    a(f'v_lshl_add_u32 v10, v11, 4, v10')
    a(f'v_add_u32 v10, 4096, v10')
    a(f'v_subrev_u32 v11, 16, v{vL}')
    a(f'v_min_u32 v11, 29, v11')
    a(f'v_lshlrev_b32 v11, 4, v11')
    a(f'v_add_u32 v11, {UOFF}, v11')
    a(f'v_cmp_gt_u32 vcc, 16, v{vL}')
    a('v_cndmask_b32 v10, v11, v10, vcc')
    a(f'v_add_u32 v10, s{sLB}, v10')
    for i in range(4):
        a(f'v_mov_b32 v{16+i}, 0')
    a(f'ds_write_b128 v10, v[16:19]')
    a(f'v_lshlrev_b32 v10, 4, v{vL}')
    a(f'v_add_u32 v10, s{sLB}, v10')
    Wd = 32
    for it in range(4):
        a(f'ds_read_b128 {vr(Wd+8*it,4)}, v10 offset:{1024*it}')
        a(f'ds_read_b64 {vr(Wd+8*it+4,2)}, v10 offset:{1024*it+16}')
    for it in range(4):
        w = Wd + 8 * it
        q = 64 + 12 * (it & 1)
        a(f's_waitcnt lgkmcnt({min(15, 6 - 2*it + 3*it)})' if False else f's_waitcnt lgkmcnt({(3-it)*2 + (3*it if it else 0) if False else 0})' if it == 0 else '; (already waited)')
        for k in range(4):
            a(f'v_alignbyte_b32 v{q+k}, v{w+k+1}, v{w+k}, 2')
        a(f'ds_write_b128 v10, {vr(q,4)} offset:{CP+1024*it}')
        for k in range(4):
            a(f'v_mov_b32 v{q+4+k}, v{w+k+1}')
        a(f'ds_write_b128 v10, {vr(q+4,4)} offset:{2*CP+1024*it}')
        for k in range(4):
            a(f'v_alignbyte_b32 v{q+8+k}, v{w+k+2}, v{w+k+1}, 2')
        a(f'ds_write_b128 v10, {vr(q+8,4)} offset:{3*CP+1024*it}')
    if opt.get('dump_k'):
        a('s_waitcnt lgkmcnt(0)')
        a(f's_mul_i32 s{sT}, s{sD}, 17408')
        a(f's_add_u32 s{sT}, s{sT}, {WS_DBG}')
        a(f'v_lshlrev_b32 v11, 4, v{vL}')
        for it in range(17):
            a(f'ds_read_b128 v[16:19], v10 offset:{1024*it}')
            a('s_waitcnt lgkmcnt(0)')
            a(f'buffer_store_dwordx4 v[16:19], v11, {srd(SRD_WS)}, s{sT} offen')
            a(f's_add_u32 s{sT}, s{sT}, 1024')
        a('s_waitcnt vmcnt(0)')
    stamp(a, 2, 52)
    a('s_cmp_eq_u32 s91, 0')
    a('s_cbranch_scc1 L_u_have')
    poll(a, 'L_pu', [(248, 's90')], 12, 89)
    u_loads()
    a.lab('L_u_have')
    stamp(a, 3, 52)
    a(f's_lshl_b32 s{sT}, s{sD}, 12')
    vKA, vUB = 4, 5
    a(f'v_and_b32 v12, 15, v{vL}')
    a(f'v_lshrrev_b32 v13, 4, v{vL}')
    a('v_sub_u32 v14, 3, v12')
    a('v_and_b32 v14, 3, v14')
    a(f'v_mul_u32_u24 v{vKA}, {CP}, v14')
    a('v_add_u32 v15, v12, v14')
    a('v_sub_u32 v15, 2031, v15')
    a('v_lshl_add_u32 v15, v13, 3, v15')
    a(f'v_lshl_add_u32 v{vKA}, v15, 1, v{vKA}')
    a(f'v_subrev_u32 v{vKA}, {512*7}, v{vKA}')
    a(f'v_add_u32 v{vKA}, s{sLB}, v{vKA}')
    a(f'v_lshlrev_b32 v{vUB}, 5, v12')
    a(f'v_lshl_add_u32 v{vUB}, v13, 4, v{vUB}')
    a(f'v_add_u32 v{vUB}, {UOFF+448}, v{vUB}')
    a(f'v_add_u32 v{vUB}, s{sLB}, v{vUB}')
    a('v_lshlrev_b32 v6, 5, v12')
    a('v_lshl_add_u32 v6, v13, 3, v6')
    a(f'v_add_u32 v6, {UOFF+480}, v6')
    a(f'v_add_u32 v6, s{sLB}, v6')
    a('v_lshlrev_b32 v7, 5, v12')
    a('v_lshrrev_b32 v15, 1, v13')
    a('v_lshl_add_u32 v7, v15, 4, v7')
    a('v_and_b32 v15, 1, v13')
    a('v_lshl_add_u32 v7, v15, 9, v7')
    ACC = 64
    for i in range(32):
        a(f'v_mov_b32 v{ACC+i}, 0')
    for it in range(4):
        a(f's_waitcnt vmcnt({3-it})')
        a(f'ds_write_b128 v10, {vr(UR+4*it,4)} offset:{UOFF+480+1024*it}')
    if opt.get('cg', 0) and not opt.get('no_gemm'):
        if opt.get('cg', 0) == 1:
            a('s_lshl_b32 s92, s2, 2')
            a(f's_add_u32 s92, s92, {WS_FS-1024}')
        elif opt.get('cg', 0) == 3:
            a('s_lshl_b32 s92, s2, 2')
            a(f's_add_u32 s92, s92, {WS_FS}')
        else:
            a('s_sub_u32 s90, s2, 256')
            rbcb(a, 90, 91, 92, 93)
            a('s_lshl_b32 s92, s92, 5')
            a('s_add_u32 s92, s92, s91')
            a('s_lshl_b32 s92, s92, 2')
            a(f's_add_u32 s92, s92, {WS_FZ}')
        wait_word(a, 'L_cg', 92, opt.get('cgs', 4))
    FA = [96, 160]
    def loads(s):
        L = []
        for g in range(8):
            L.append(f'ds_read_b64 {vr(FA[s]+4*g,2)}, v{vKA} offset:{512*(7-g)}')
            L.append(f'ds_read_b64 {vr(FA[s]+4*g+2,2)}, v{vKA} offset:{512*(7-g)+8}')
            L.append(f'ds_read_b128 {vr(FA[s]+32+4*g,4)}, v{vUB} offset:{512*g}')
        return L
    stamp(a, 4, 52)
    for l in loads(0): a(l)
    a(f's_mov_b32 s{sCnt}, {opt.get("cvn", 4)}')
    a.lab('L_conv')
    for s in range(2):
        a(f'v_subrev_u32 v{vKA}, 64, v{vKA}')
        a(f'v_subrev_u32 v{vUB}, 64, v{vUB}')
        a('s_waitcnt lgkmcnt(0)')
        nxt = loads(1 - s)
        pairs = [(g, i) for tot in range(8) for g in range(tot + 1) for i in [tot - g]]
        pairs = sorted(pairs, key=lambda p: (p[0], p[1]))
        k = 0
        for idx, (g, i) in enumerate(pairs):
            jt = g + i
            a(f'v_mfma_f32_16x16x32_bf16 {vr(ACC+4*jt,4)}, {vr(FA[s]+4*g,4)}, {vr(FA[s]+32+4*i,4)}, {vr(ACC+4*jt,4)}')
            if k < len(nxt) and idx >= 2:
                a(nxt[k]); k += 1
        while k < len(nxt):
            a(nxt[k]); k += 1
    a(f's_sub_u32 s{sCnt}, s{sCnt}, 1')
    a(f's_cmp_lg_u32 s{sCnt}, 0')
    a('s_cbranch_scc1 L_conv')
    a('s_waitcnt lgkmcnt(0)')
    stamp(a, 5, 52)
    a('v_mov_b32 v28, v29')
    UU = 32
    for jt in range(8):
        a(f'ds_read_b64 {vr(UU+2*jt,2)}, v6 offset:{512*jt}')
    a(f's_add_u32 s{sT2}, s{sT}, {WS_AT}')
    a('s_waitcnt lgkmcnt(0)')
    RES = 96
    for jt in range(8):
        c = ACC + 4 * jt
        t = 112 + 8 * (jt & 1)
        a(f'v_cvt_pk_bf16_f32 v{t}, v{c}, v{c+1}')
        a(f'v_cvt_pk_bf16_f32 v{t+1}, v{c+2}, v{c+3}')
        a(f'v_lshlrev_b32 v{c}, 16, v{UU+2*jt}')
        a(f'v_and_b32 v{c+1}, 0xffff0000, v{UU+2*jt}')
        a(f'v_lshlrev_b32 v{c+2}, 16, v{UU+2*jt+1}')
        a(f'v_and_b32 v{c+3}, 0xffff0000, v{UU+2*jt+1}')
        a(f'v_pk_mul_f32 {vr(c,2)}, {vr(c,2)}, {vr(28,2)}')
        a(f'v_pk_mul_f32 {vr(c+2,2)}, {vr(c+2,2)}, {vr(28,2)}')
        a(f'v_cvt_pk_bf16_f32 v{t+2}, v{c}, v{c+1}')
        a(f'v_cvt_pk_bf16_f32 v{t+3}, v{c+2}, v{c+3}')
        a(f'v_lshlrev_b32 v{c}, 16, v{t}')
        a(f'v_and_b32 v{c+1}, 0xffff0000, v{t}')
        a(f'v_lshlrev_b32 v{c+2}, 16, v{t+1}')
        a(f'v_and_b32 v{c+3}, 0xffff0000, v{t+1}')
        a(f'v_lshlrev_b32 v{t+4}, 16, v{t+2}')
        a(f'v_and_b32 v{t+5}, 0xffff0000, v{t+2}')
        a(f'v_lshlrev_b32 v{t+6}, 16, v{t+3}')
        a(f'v_and_b32 v{t+7}, 0xffff0000, v{t+3}')
        a(f'v_pk_add_f32 {vr(c,2)}, {vr(c,2)}, {vr(t+4,2)}')
        a(f'v_pk_add_f32 {vr(c+2,2)}, {vr(c+2,2)}, {vr(t+6,2)}')
        q = RES + 4 * (jt >> 1) + 2 * (jt & 1)
        a(f'v_cvt_pk_bf16_f32 v{q}, v{c}, v{c+1}')
        a(f'v_cvt_pk_bf16_f32 v{q+1}, v{c+2}, v{c+3}')
        if jt & 1:
            q0 = RES + 4 * (jt >> 1)
            a(f'v_permlane16_swap_b32 v{q0}, v{q0+2}')
            a(f'v_permlane16_swap_b32 v{q0+1}, v{q0+3}')
            a(f'buffer_store_dwordx4 {vr(q0,4)}, v7, {srd(SRD_WS)}, s{sT2} offen offset:{1024*(jt>>1)} sc1')
    a('s_waitcnt vmcnt(0)')
    a(f's_lshl_b32 s{sT}, s{sD}, 2')
    a(f's_add_u32 s{sT}, s{sT}, {WS_FA}')
    a(f'v_mov_b32 v8, s{S_TAG}')
    a('s_mov_b64 exec, 1')
    a(f'buffer_store_dword v8, off, {srd(SRD_WS)}, s{sT} sc1')
    stamp(a, 6, 52)
    stamp_dump(a, 8, 52)
    a('s_endpgm')

def rbcb(a, sidx, srb, scb, st):
    a(f's_and_b32 s{st}, s{sidx}, 7')
    a(f's_lshr_b32 s{srb}, s{st}, 1')
    a(f's_lshl_b32 s{srb}, s{srb}, 3')
    a(f's_lshr_b32 s{scb}, s{sidx}, 5')
    a(f's_add_u32 s{srb}, s{srb}, s{scb}')
    a(f's_and_b32 s{scb}, s{st}, 1')
    a(f's_lshl_b32 s{scb}, s{scb}, 2')
    a(f's_bfe_u32 s{st}, s{sidx}, 0x20003')
    a(f's_add_u32 s{scb}, s{scb}, s{st}')

def wait_word(a, name, saddr, sleep=8):
    a(f's_mov_b32 s89, {SPIN_MAX}')
    a.lab(f'{name}_spin')
    a(f'buffer_load_dword v8, off, {srd(SRD_WS)}, s{saddr} sc1')
    a('s_waitcnt vmcnt(0)')
    a(f'v_cmp_ne_u32 vcc, s{S_TAG}, v8')
    a(f's_cbranch_vccz {name}_done')
    a(f's_sleep {sleep}')
    a('s_sub_u32 s89, s89, 1')
    a('s_cmp_lg_u32 s89, 0')
    a(f's_cbranch_scc1 {name}_spin')
    a.lab(f'{name}_done')

def wait_fu(a, name, srb, st):
    a(f's_lshl_b32 s{st}, s{srb}, 2')
    a(f's_add_u32 s{st}, s{st}, {WS_FU}')
    wait_word(a, name, st)

def side_gate(a, opt):
    sK, sT = 82, 86
    vL = 1
    a(f's_sub_u32 s{sK}, s2, 256')
    rbcb(a, sK, 90, 91, 92)
    if opt.get('dly', 0):
        wait_fu(a, 'L_gw', 90, 92)
    a(f's_mul_i32 s{sT}, s{sK}, {8*1280}')
    a(f'v_lshrrev_b32 v2, 3, v{vL}')
    a(f'v_and_b32 v3, 7, v{vL}')
    a('v_lshlrev_b32 v4, 4, v3')
    a('v_mul_u32_u24 v5, 1280, v2')
    a('v_add_u32 v5, v5, v4')
    a(f'v_add_u32 v5, s{sT}, v5')
    XR, WR = 16, 56
    for it in range(10):
        a(f'global_load_dwordx4 {vr(XR+4*it,4)}, v5, {sp(P_U)} offset:{128*it}')
        a(f'global_load_dwordx4 {vr(WR+4*it,4)}, v4, {sp(P_GW)} offset:{128*it}')
    get_tag(a, 20)
    a('v_mov_b32 v6, 0')
    a('v_mov_b32 v7, 0')
    for it in range(10):
        a(f's_waitcnt vmcnt({18-2*it})')
        for k in range(4):
            x, w = XR + 4 * it + k, WR + 4 * it + k
            a(f'v_lshlrev_b32 v8, 16, v{x}')
            a(f'v_and_b32 v9, 0xffff0000, v{x}')
            a(f'v_lshlrev_b32 v10, 16, v{w}')
            a(f'v_and_b32 v11, 0xffff0000, v{w}')
            a('v_pk_mul_f32 v[8:9], v[8:9], v[10:11]')
            a('v_cvt_pk_bf16_f32 v12, v8, v9')
            a('v_lshlrev_b32 v8, 16, v12')
            a('v_and_b32 v9, 0xffff0000, v12')
            a('v_pk_add_f32 v[6:7], v[6:7], v[8:9]')
    a('v_add_f32 v6, v6, v7')
    a('v_add_f32_dpp v6, v6, v6 quad_perm:[1,0,3,2] row_mask:0xf bank_mask:0xf')
    a('v_add_f32_dpp v6, v6, v6 quad_perm:[2,3,0,1] row_mask:0xf bank_mask:0xf')
    a('v_add_f32_dpp v6, v6, v6 row_half_mirror row_mask:0xf bank_mask:0xf')
    a('v_cvt_pk_bf16_f32 v6, v6, v6')
    a('v_lshlrev_b32 v6, 16, v6')
    a(f'v_mul_f32 v6, {hx(-LOG2E)}, v6')
    a('v_exp_f32 v6, v6')
    a('v_add_f32 v6, 1.0, v6')
    a('v_rcp_f32 v6, v6')
    a('v_cvt_pk_bf16_f32 v6, v6, v6')
    a('v_lshlrev_b32 v8, 16, v6')
    a('v_sub_f32 v9, 1.0, v8')
    a('v_cvt_pk_bf16_f32 v9, v9, v9')
    a('v_lshlrev_b32 v9, 16, v9')
    a(f's_lshl_b32 s{sT}, s{sK}, 6')
    a(f's_add_u32 s{sT}, s{sT}, {WS_G}')
    a('v_lshlrev_b32 v10, 3, v2')
    a('v_cmp_eq_u32 vcc, 0, v3')
    a('s_and_saveexec_b64 s[84:85], vcc')
    a(f'buffer_store_dwordx2 v[8:9], v10, {srd(SRD_WS)}, s{sT} offen sc1')
    a('s_waitcnt vmcnt(0)')
    a(f's_lshl_b32 s{sT}, s{sK}, 2')
    a(f's_add_u32 s{sT}, s{sT}, {WS_FG}')
    a(f'v_mov_b32 v8, s{S_TAG}')
    a('s_mov_b64 exec, 1')
    a(f'buffer_store_dword v8, off, {srd(SRD_WS)}, s{sT} sc1')
    pf = opt.get('pf', 0)
    if pf:
        a('s_mov_b64 exec, -1')
        mk_srd(a, SRD_WSP, P_WSP, 2048 * 2048 * 2)
        if opt.get('pft', 1):
            a('s_lshl_b32 s92, s90, 14')
            a('s_lshl_b32 s93, s91, 5')
            a('s_add_u32 s92, s92, s93')
            a(f's_add_u32 s92, s92, {WS_ST+4}')
            wait_word(a, 'L_gs', 92)
        a('s_lshl_b32 s92, s90, 18')
        a('s_and_b32 s93, s91, 3')
        a('s_lshl_b32 s93, s93, 16')
        a('s_add_u32 s92, s92, s93')
        a(f'v_lshlrev_b32 v2, {7 if pf == 128 else 6}, v{vL}')
        for i in range(65536 // (64 * pf)):
            a(f'buffer_load_dword v{10+i}, v2, {srd(SRD_WSP)}, s92 offen')
            a(f's_add_u32 s92, s92, {64*pf}')
    a('s_endpgm')

def side_retile(a, opt):
    vL = 1
    mk_srd(a, SRD_WOUT, P_WOUT, 768 * 640 * 2)
    if opt.get('dly', 0):
        a('s_and_b32 s90, s2, 31')
        wait_fu(a, 'L_rw', 90, 92)
    a('s_sub_u32 s82, s2, 384')
    a('s_lshl_b32 s82, s82, 1')
    LB = 2 * WAVE_LDS
    for j in range(5):
        a(f'v_add_u32 v2, {64*j}, v{vL}')
        a('v_mul_u32_u24 v3, 52429, v2')
        a('v_lshrrev_b32 v3, 19, v3')
        a('v_mul_u32_u24 v4, 10, v3')
        a('v_sub_u32 v2, v2, v4')
        a('v_mul_u32_u24 v3, 1280, v3')
        a(f'v_lshl_add_u32 v{10+j}, v2, 4, v3')
    for un in range(2):
        a(f's_add_u32 s83, s82, {un}')
        a('s_mul_i32 s86, s83, 43691')
        a('s_lshr_b32 s86, s86, 20')
        a('s_mul_i32 s87, s86, 24')
        a('s_sub_u32 s87, s83, s87')
        a('s_mul_i32 s87, s87, 40960')
        a('s_mul_i32 s86, s86, 160')
        a('s_add_u32 s88, s86, s87')
        for j in range(5):
            a(f's_mov_b32 m0, {LB+5120*un+1024*j}')
            a(f'buffer_load_dwordx4 v{10+j}, {srd(SRD_WOUT)}, s88 offen lds')
    a(f'v_lshrrev_b32 v2, 4, v{vL}')
    a(f'v_bfe_u32 v3, v{vL}, 2, 2')
    a('v_lshl_add_u32 v2, v2, 3, v3')
    a('v_mul_u32_u24 v2, 160, v2')
    a(f'v_and_b32 v3, 3, v{vL}')
    a('v_lshl_add_u32 v2, v3, 3, v2')
    a(f'v_add_u32 v2, {LB}, v2')
    a(f'v_lshlrev_b32 v5, 4, v{vL}')
    a('s_mul_i32 s86, s82, 5120')
    a(f's_add_u32 s86, s86, {WS_WO}')
    get_tag(a, 0)
    for un in range(2):
        for dl in range(5):
            for half in range(2):
                a(f'ds_read_b64_tr_b16 {vr(16+20*un+4*dl+2*half,2)}, v2 offset:{5120*un+640*half+32*dl}')
    a('s_waitcnt lgkmcnt(0)')
    for un in range(2):
        for dl in range(5):
            if dl == 4: a('s_add_u32 s86, s86, 4096')
            a(f'buffer_store_dwordx4 {vr(16+20*un+4*dl,4)}, v5, {srd(SRD_WS)}, s86 offen offset:{1024*(dl%4)} sc1')
        a('s_add_u32 s86, s86, 1024')
    a('s_waitcnt vmcnt(0)')
    a('s_lshl_b32 s86, s82, 2')
    a(f's_add_u32 s86, s86, {WS_FW}')
    a(f'v_mov_b32 v8, s{S_TAG}')
    a(f'v_mov_b32 v9, s{S_TAG}')
    a('s_mov_b64 exec, 1')
    a(f'buffer_store_dwordx2 v[8:9], off, {srd(SRD_WS)}, s86 sc1')
    a('s_endpgm')

def side_keeper(a, opt):
    vL = 1
    get_tag(a, 0)
    a(f'v_lshlrev_b32 v2, 2, v{vL}')
    loads = [(2, WS_FZ + 256 * i) for i in range(4)] + [(2, WS_FA + 256 * i) for i in range(10)] + [(2, WS_FG + 256 * i) for i in range(4)]
    a(f's_mov_b32 s86, {WS_FZ}')
    a(f's_mov_b32 s87, {WS_FA}')
    a(f's_mov_b32 s88, {WS_FG}')
    a(f's_mov_b32 s90, {WS_FW}')
    L = [(2, f's86 offen offset:{256*i} ;') for i in range(4)]
    a(f's_mov_b32 s89, {SPIN_MAX}')
    a.lab('L_keep_spin')
    n = 0
    for base, cnt in (((86, 4), (87, 10), (88, 4), (90, 3)) if not opt.get('no_side') else ((86, 4),)):
        for i in range(cnt):
            a(f'buffer_load_dword v{8+n}, v2, {srd(SRD_WS)}, s{base} offen offset:{256*i} sc1'); n += 1
    a('s_waitcnt vmcnt(0)')
    a(f'v_cmp_ne_u32 vcc, s{S_TAG}, v8')
    for i in range(1, n):
        a(f'v_cmp_ne_u32 s[84:85], s{S_TAG}, v{8+i}')
        a('s_or_b64 vcc, vcc, s[84:85]')
    a('s_cbranch_vccz L_keep_done')
    a(f's_sleep {opt.get("ksl", 64)}')
    a('s_sub_u32 s89, s89, 1')
    a('s_cmp_lg_u32 s89, 0')
    a('s_cbranch_scc1 L_keep_spin')
    a.lab('L_keep_done')
    a(f'v_mov_b32 v8, s{S_TAG}')
    a('s_mov_b64 exec, 1')
    a(f'buffer_store_dword v8, off, {srd(SRD_WS)}, 0 sc1')
    a('s_endpgm')

HEADER = """
"""

def build(opt):
    PROF['on'] = bool(opt.get('prof'))
    PROF['dbg'] = bool(opt.get('dbg'))
    PSL[0] = opt.get('ssl', 2)
    import asmlib
    asmlib.TRANS_WS = opt.get('tws', 1)
    asmlib.PRE_TRANS_WS = opt.get('ptw', 0)
    a = Asm()
    a.raw(f'; @launch kernel={KNAME} grid=(512,1,1) block=(256,1,1) lds=81920' if not opt.get('plain') else '; @launch grid=(512,1,1) block=(256,1,1) lds=81920')
    for l in HEADER.strip('\n').split('\n'): a.raw(l)
    a.raw('.amdgcn_target "amdgcn-amd-amdhsa--gfx950"')
    a.raw('.text')
    a.raw(f'.globl {KNAME}')
    a.raw('.p2align 8')
    a.raw(f'.type {KNAME},@function')
    a.lab(KNAME)
    a('s_cmp_ge_u32 s2, 512')
    a('s_cbranch_scc1 L_end')
    a('s_load_dwordx16 s[16:31], s[0:1], 0')
    a('s_load_dwordx16 s[32:47], s[0:1], 64')
    a('s_load_dwordx4 s[48:51], s[0:1], 128')
    a('v_and_b32 v1, 63, v0')
    a('v_lshrrev_b32 v2, 6, v0')
    a(f'v_readfirstlane_b32 s{S_W}, v2')
    if opt.get('swap'):
        a('s_xor_b32 s2, s2, 256')
    a('s_cmp_ge_u32 s2, 256')
    a('s_cbranch_scc1 L_side')
    a.lab('L_gemm')
    if opt.get('no_gemm'):
        a('s_endpgm')
    else:
        import gen_gemm
        gen_gemm.gemm_role(a, opt)
    a.lab('L_side')
    a('s_waitcnt lgkmcnt(0)')
    mk_srd(a, SRD_WS, P_WS, WS_SIZE)
    a(f'buffer_load_dword v127, off, {srd(SRD_WS)}, 0 sc1')
    if opt.get('no_side') == 1:
        a('s_cmp_eq_u32 s2, 511')
        a('s_cbranch_scc0 L_end')
        a(f's_cmp_eq_u32 s{S_W}, 2')
        a('s_cbranch_scc0 L_end')
    a(f's_cmp_eq_u32 s{S_W}, 3')
    a('s_cbranch_scc1 L_gate')
    if opt.get('no_side') == 2:
        a('s_cmp_ge_u32 s2, 384')
        a('s_cbranch_scc0 L_end')
        a(f's_cmp_eq_u32 s{S_W}, 2')
        a('s_cbranch_scc0 L_end')
    a(f's_lshl_b32 s82, s{S_W}, 8')
    a('s_add_u32 s82, s82, s2')
    a('s_sub_u32 s82, s82, 256')
    a('s_cmp_lt_u32 s82, 640')
    a('s_cbranch_scc1 L_chan')
    a('s_cmp_eq_u32 s2, 511')
    a('s_cbranch_scc1 L_keep')
    a('s_cmp_lt_u32 s2, 480')
    a('s_cbranch_scc1 L_retile')
    a.lab('L_end')
    a('s_endpgm')
    a.lab('L_chan')
    side_channel(a, opt)
    a.lab('L_gate')
    side_gate(a, opt)
    a.lab('L_retile')
    side_retile(a, opt)
    a.lab('L_keep')
    side_keeper(a, opt)
    a.raw('.section .rodata,"a"')
    a.raw('.p2align 6')
    a.raw(f'.amdhsa_kernel {KNAME}')
    a.raw('  .amdhsa_next_free_vgpr 256')
    a.raw('  .amdhsa_next_free_sgpr 96')
    a.raw('  .amdhsa_accum_offset 256')
    a.raw('  .amdhsa_group_segment_fixed_size 0')
    a.raw('  .amdhsa_kernarg_size 144')
    a.raw('  .amdhsa_user_sgpr_count 2')
    a.raw('  .amdhsa_user_sgpr_kernarg_segment_ptr 1')
    a.raw('  .amdhsa_system_sgpr_workgroup_id_x 1')
    a.raw('.end_amdhsa_kernel')
    return a.text()

if __name__ == '__main__':
    opt = {}
    for x in sys.argv[2:]:
        k, _, v = x.partition('=')
        opt[k] = int(v) if v else 1
    import gen as _self
    open(sys.argv[1], 'w').write(_self.build(opt))
```

```python
import numpy as np
from gen import *
import gen as _g
_stamp0 = stamp
PST = {'start': None}
def stamp(a, i, base=18):
    if PST['start'] is not None and i not in (0, 15): return
    if PST.get('clk') and _g.PROF['on']:
        m = {1: 3, 2: 4, 9: 5, 10: 6, 0: 7, 15: 8}
        if i in (3, 4, 5, 6, 7, 8): return
        if i in m:
            a('s_memtime s[14:15]')
            a('s_waitcnt lgkmcnt(0)')
            a(f's_mov_b32 s{base+m[i]}, s14')
    _stamp0(a, i, base)
def sstamp(a, stage):
    if PST['start'] is None: return
    k = stage - PST['start']
    if 0 <= k < 14: _stamp0(a, 1 + k)

SLOT = 20480
BOFF = 8192
S_RB, S_CB, S_WI, S_WJ = 82, 83, 86, 87
S_KC, S_AO, S_BO, S_T, S_T2, S_CNT = 88, 89, 90, 91, 92, 93
S_ABASE, S_BBASE = 94, 95
S_M_A, S_M_B, S_M_C = 3, 4, 5
S_K1 = 6
S_ONE = 8
S_KC0 = 10
S_FZA = 11
S_TMP2 = 12
S_WOB = 76
S_ROT = 78
CTR = 19456
V_L = 1
V_AD = 2
V_BD = 4
V_AR = 7
V_BR = 11
V_UR, V_US = 13, 14
V_T = 16
ACC2, ACC1, WF, XF = 24, 48, 72, 96
t0, t1, t2, t3 = V_T, V_T + 1, V_T + 2, V_T + 3
ST, MM, RR, ZQ, BSP, K0V = 96, 112, 120, 128, 140, 142
LN = 3 * SLOT

class VM:
    def __init__(self): self.ops = []
    def issue(self, tag, n=1): self.ops += [tag] * n
    def n_after(self, tag):
        idx = max(i for i, t in enumerate(self.ops) if t == tag)
        return len(self.ops) - 1 - idx

def gelu2(a, cs, k0v, after):
    T = [V_T, V_T + 4]
    def both(f):
        for c, t in zip(cs, T): a(f(c, t))
    both(lambda c, t: f'v_cvt_pk_bf16_f32 v{t+2}, v{c}, v{c+1}')
    both(lambda c, t: f'v_lshlrev_b32 v{t}, 16, v{t+2}')
    both(lambda c, t: f'v_and_b32 v{t+1}, 0xffff0000, v{t+2}')
    both(lambda c, t: f'v_pk_mul_f32 {vr(t+2,2)}, {vr(t,2)}, {vr(t,2)}')
    both(lambda c, t: f'v_pk_fma_f32 {vr(t+2,2)}, {vr(t+2,2)}, {sp(S_K1)}, {vr(k0v,2)}')
    both(lambda c, t: f'v_pk_mul_f32 {vr(t+2,2)}, {vr(t+2,2)}, {vr(t,2)}')
    both(lambda c, t: f'v_exp_f32 v{t+2}, v{t+2}')
    both(lambda c, t: f'v_exp_f32 v{t+3}, v{t+3}')
    both(lambda c, t: f'v_pk_add_f32 {vr(t+2,2)}, {vr(t+2,2)}, {sp(S_ONE)}')
    both(lambda c, t: f'v_rcp_f32 v{t+2}, v{t+2}')
    both(lambda c, t: f'v_rcp_f32 v{t+3}, v{t+3}')
    both(lambda c, t: f'v_pk_mul_f32 {vr(t+2,2)}, {vr(t+2,2)}, {vr(t,2)}')
    steps = [after(c, t) for c, t in zip(cs, T)]
    for x, y in zip(*steps):
        a(x); a(y)

def gelu_packed(regs, k0v):
    T = [V_T, V_T + 4]
    L = []
    def both(f):
        for c, t in zip(regs, T): L.append(f(c, t))
    both(lambda c, t: f'v_lshlrev_b32 v{t}, 16, v{c}')
    both(lambda c, t: f'v_and_b32 v{t+1}, 0xffff0000, v{c}')
    both(lambda c, t: f'v_pk_mul_f32 {vr(t+2,2)}, {vr(t,2)}, {vr(t,2)}')
    both(lambda c, t: f'v_pk_fma_f32 {vr(t+2,2)}, {vr(t+2,2)}, {sp(S_K1)}, {vr(k0v,2)}')
    both(lambda c, t: f'v_pk_mul_f32 {vr(t+2,2)}, {vr(t+2,2)}, {vr(t,2)}')
    both(lambda c, t: f'v_exp_f32 v{t+2}, v{t+2}')
    both(lambda c, t: f'v_exp_f32 v{t+3}, v{t+3}')
    both(lambda c, t: f'v_pk_add_f32 {vr(t+2,2)}, {vr(t+2,2)}, {sp(S_ONE)}')
    both(lambda c, t: f'v_rcp_f32 v{t+2}, v{t+2}')
    both(lambda c, t: f'v_rcp_f32 v{t+3}, v{t+3}')
    both(lambda c, t: f'v_pk_mul_f32 {vr(t+2,2)}, {vr(t+2,2)}, {vr(t,2)}')
    both(lambda c, t: f'v_cvt_pk_bf16_f32 v{c}, v{t+2}, v{t+3}')
    return L

def flag_store(a, sreg, vtmp):
    a(f'v_mov_b32 v{vtmp}, s{S_TAG}')
    a(f's_mov_b64 {sp(S_TMP2)}, exec')
    a('s_mov_b64 exec, 1')
    a(f'buffer_store_dword v{vtmp}, off, {srd(SRD_WS)}, s{sreg} sc1')
    a(f's_mov_b64 exec, {sp(S_TMP2)}')

def gemm_role(a, opt):
    vm = VM()
    PST['start'] = opt.get('pst')
    PST['clk'] = opt.get('clk')
    stop = opt.get('stop', 99)
    OC = {0: '', 1: 'sc1', 2: 'nt', 3: 'sc0 sc1'}[opt.get('oc', 0)]
    LNS = opt.get('lns', 16)
    LDS_ = opt.get('lds', 15)
    FZS = opt.get('fzs', 1)
    assert LNS + FZS <= 19 and 13 <= LDS_ < LNS
    c0 = np.sqrt(2 / np.pi)
    k0 = -2 * c0 * LOG2E; k1 = k0 * 0.044715
    a(f's_setprio {opt.get("prio", 2)}')
    if opt.get('tk', 0):
        CT = 20480 - 64
        a(f's_cmp_lg_u32 s{S_W}, 0')
        a('s_cbranch_scc1 L_tk_wait')
        mk_srd(a, SRD_X, P_DBG, 256)
        a(f's_getreg_b32 s{S_T}, hwreg(HW_REG_XCC_ID, 0, 3)')
        a(f's_mov_b64 {sp(S_TMP2)}, exec')
        a('s_mov_b64 exec, 1')
        a(f's_mov_b32 s{S_KC}, 8')
        a.lab('L_tk_try')
        a('v_mov_b32 v2, 1')
        a(f's_lshl_b32 s{S_CNT}, s{S_T}, 5')
        a(f'buffer_atomic_add v2, off, {srd(SRD_X)}, s{S_CNT} sc0 sc1')
        a('s_waitcnt vmcnt(0)')
        a(f'v_readfirstlane_b32 s{S_T2}, v2')
        a(f's_cmp_lt_u32 s{S_T2}, 32')
        a('s_cbranch_scc1 L_tk_got')
        a(f's_add_u32 s{S_T}, s{S_T}, 1')
        a(f's_and_b32 s{S_T}, s{S_T}, 7')
        a(f's_sub_u32 s{S_KC}, s{S_KC}, 1')
        a(f's_cmp_lg_u32 s{S_KC}, 0')
        a('s_cbranch_scc1 L_tk_try')
        a.lab('L_tk_got')
        a(f's_lshl_b32 s{S_T2}, s{S_T2}, 3')
        a(f's_or_b32 s{S_T2}, s{S_T2}, s{S_T}')
        a(f'v_mov_b32 v2, s{S_T2}')
        a(f'v_mov_b32 v3, {CT}')
        a('ds_write_b32 v3, v2')
        a('s_waitcnt lgkmcnt(0)')
        a(f's_mov_b64 exec, {sp(S_TMP2)}')
        a.lab('L_tk_wait')
        a('s_barrier')
        a(f'v_mov_b32 v3, {CT}')
        a('ds_read_b32 v2, v3')
        a('s_waitcnt lgkmcnt(0)')
        a(f'v_readfirstlane_b32 s{S_CNT}, v2')
        a('s_barrier')
        a(f's_and_b32 s{S_T}, s{S_CNT}, 7')
        a(f's_lshr_b32 s{S_T2}, s{S_CNT}, 3')
        a(f's_and_b32 s{S_T2}, s{S_T2}, 31')
    else:
        a(f's_and_b32 s{S_T}, s2, 7')
        a(f's_lshr_b32 s{S_T2}, s2, 3')
    a(f's_lshr_b32 s{S_RB}, s{S_T}, 1')
    a(f's_lshl_b32 s{S_RB}, s{S_RB}, 3')
    a(f's_lshr_b32 s{S_CNT}, s{S_T2}, 2')
    a(f's_add_u32 s{S_RB}, s{S_RB}, s{S_CNT}')
    a(f's_and_b32 s{S_CB}, s{S_T}, 1')
    a(f's_lshl_b32 s{S_CB}, s{S_CB}, 2')
    a(f's_and_b32 s{S_CNT}, s{S_T2}, 3')
    a(f's_add_u32 s{S_CB}, s{S_CB}, s{S_CNT}')
    a(f's_lshr_b32 s{S_WI}, s{S_W}, 1')
    a(f's_and_b32 s{S_WJ}, s{S_W}, 1')
    a(f's_mul_i32 s{S_KC}, s{S_CB}, 3')
    a(f's_add_u32 s{S_KC}, s{S_KC}, s{S_RB}')
    a(f's_mul_i32 s{S_T}, s{S_KC}, 205')
    a(f's_lshr_b32 s{S_T}, s{S_T}, 11')
    a(f's_mul_i32 s{S_T}, s{S_T}, 10')
    a(f's_sub_u32 s{S_KC}, s{S_KC}, s{S_T}')
    if opt.get('rot1', 0) == 3: a(f's_mov_b32 s{S_KC}, s{S_CB}')
    a(f's_mov_b32 s{S_KC0}, s{S_KC}')
    if opt.get('rot1') == 1: a(f's_mov_b32 s{S_KC}, 0')
    if opt.get('rot1') == 2:
        a(f's_lshr_b32 s{S_KC}, s{S_RB}, 3')
    a(f's_lshl_b32 s{S_M_A}, s{S_W}, 11')
    a(f's_mul_i32 s{S_M_B}, s{S_W}, 3072')
    a(f's_add_u32 s{S_M_B}, s{S_M_B}, {BOFF}')
    a(f's_mul_i32 s{S_ABASE}, s{S_RB}, {64*1280}')
    a(f's_mul_i32 s{S_BBASE}, s{S_CB}, 192')
    a(f's_add_u32 s{S_BBASE}, s{S_BBASE}, 1536')
    def row_dma_offsets(pitch):
        a(f'v_lshrrev_b32 v{t0}, 3, v{V_L}')
        a(f'v_and_b32 v{t1}, 7, v{V_L}')
        a(f'v_bfe_u32 v{t2}, v{V_L}, 4, 1')
        a(f'v_xor_b32 v{t1}, v{t1}, v{t2}')
        a(f's_lshl_b32 s{S_T}, s{S_W}, 4')
        a(f'v_add_u32 v{t0}, s{S_T}, v{t0}')
        a(f'v_mul_u32_u24 v{t0}, {pitch}, v{t0}')
        a(f's_lshl_b32 s{S_T}, s{S_WJ}, 2')
        a(f'v_xor_b32 v{t1}, s{S_T}, v{t1}')
        a(f'v_lshl_add_u32 v{V_AD}, v{t1}, 4, v{t0}')
        a(f'v_xor_b32 v{t1}, 2, v{t1}')
        a(f'v_lshl_add_u32 v{V_AD+1}, v{t1}, 4, v{t0}')
        a(f'v_add_u32 v{V_AD+1}, {8*pitch-1024}, v{V_AD+1}')
    row_dma_offsets(1280)
    def run_units(units, track=True):
        for (lines, tag) in units:
            for l in lines: a(l)
            if track: vm.issue(tag, 1)
    def dma_p1_A(stage, kc=None):
        slot = (stage & 3) * SLOT
        return [([f's_lshl_b32 s{S_AO}, s{S_KC}, 7', f's_add_u32 s{S_AO}, s{S_AO}, s{S_ABASE}', f's_add_u32 m0, s{S_M_A}, {slot}',
                  f'buffer_load_dwordx4 v{V_AD}, {srd(SRD_X)}, s{S_AO} offen lds'], ('A', stage)),
                ([f'buffer_load_dwordx4 v{V_AD+1}, {srd(SRD_X)}, s{S_AO} offen offset:1024 lds'], ('A', stage))]
    def dma_p1_B(stage):
        slot = (stage & 3) * SLOT
        U = []
        pre = [f's_mul_i32 s{S_BO}, s{S_KC}, {64*3072}', f's_add_u32 s{S_BO}, s{S_BO}, s{S_BBASE}', f's_add_u32 m0, s{S_M_B}, {slot}', f's_add_u32 s{S_KC}, s{S_KC}, 1']
        for j in range(3):
            L = (pre if j == 0 else []) + [f'buffer_load_dwordx4 v{V_BD+j}, {srd(SRD_WIN)}, s{S_BO} offen offset:{1024*j} lds']
            if j == 2:
                L += [f's_cmp_eq_u32 s{S_KC}, 10', f's_cselect_b32 s{S_KC}, 0, s{S_KC}']
                if stage == 9: L += [f's_sub_u32 s{S_BBASE}, s{S_BBASE}, 1536']
            U.append((L, ('B', stage)))
        return U
    def dma_p1(stage): return (dma_p1_A(stage) if stage < 10 else []) + dma_p1_B(stage)
    a(f's_mul_i32 s{S_T}, s{S_W}, 192')
    for j in range(3):
        a(f'v_add_u32 v{t0}, s{S_T}, v{V_L}')
        if j: a(f'v_add_u32 v{t0}, {64*j}, v{t0}')
        a(f'v_mul_u32_u24 v{t1}, 43691, v{t0}')
        a(f'v_lshrrev_b32 v{t1}, 19, v{t1}')
        a(f'v_mul_u32_u24 v{t2}, 12, v{t1}')
        a(f'v_sub_u32 v{t0}, v{t0}, v{t2}')
        a(f'v_bfe_u32 v{t2}, v{t1}, 3, 1')
        a(f'v_mad_u32_u24 v{t0}, v{t2}, 6, v{t0}')
        a(f'v_subrev_u32 v{t2}, 12, v{t0}')
        a(f'v_min_u32 v{t0}, v{t0}, v{t2}')
        a(f'v_mul_u32_u24 v{t1}, 3072, v{t1}')
        a(f'v_lshl_add_u32 v{V_BD+j}, v{t0}, 4, v{t1}')
        if j: a(f'v_subrev_u32 v{V_BD+j}, {1024*j}, v{V_BD+j}')
    a('s_waitcnt lgkmcnt(0)')
    stamp(a, 0)
    mk_srd(a, SRD_X, P_U, 2048 * 640 * 2)
    mk_srd(a, SRD_WIN, P_WIN, 640 * 1536 * 2)
    for s in range(0, 4): run_units(dma_p1(s))
    mk_srd(a, SRD_WS, P_WS, WS_SIZE)
    a(f'buffer_load_dword v15, off, {srd(SRD_WS)}, 0 sc1')
    vm.issue('epoch')
    mk_srd(a, SRD_WSP, P_WSP, 2048 * 2048 * 2)
    mk_srd(a, SRD_OUT, P_OUT, 2048 * 640 * 2)
    PAT7 = ([-1, -1, 9, 9], [-1, 9, 9])
    PAT = {5: ([0, 2, 4], [1, 3]), 3: ([1, 4], [2]), 2: ([1], [2]), 0: ([], [])}
    if opt.get('pat') == 1: PAT = {5: ([9, 9, 9], [9, 9]), 3: ([9, 9], [9]), 2: ([9], [9]), 0: ([], [])}
    if opt.get('pat') == 2: PAT = {5: ([9, 9, 9, 9, 9], []), 3: ([9, 9, 9], []), 2: ([9, 9], []), 0: ([], [])}
    if opt.get('pat', 3) == 3: PAT = {5: ([-1, -1, 9], [-1, 9]), 3: ([-1, 9], [9]), 2: ([9], [9]), 0: ([], [])}
    def with_units(mf_lines, pos_units, track=True):
        for (p, u) in pos_units:
            if p < 0: run_units([u], track)
        for i, l in enumerate(mf_lines):
            a(l)
            for (p, u) in pos_units:
                if p == i: run_units([u], track)
        for (p, u) in pos_units:
            if p >= len(mf_lines): run_units([u], track)
    def split_units(U):
        first, second = PAT[len(U)] if len(U) in PAT else PAT7 if len(U) == 7 else ([-1, 9], [-1, 9]) if len(U) == 4 else ([-1, -1] + [9] * (len(U) - 2), [])
        return list(zip(first, U[:len(first)])), list(zip(second, U[len(first):]))
    def lane_mq():
        a(f'v_and_b32 v{t0}, 15, v{V_L}')
        a(f'v_lshrrev_b32 v{t1}, 4, v{V_L}')
    lane_mq()
    a(f'v_lshrrev_b32 v{t2}, 2, v{t0}')
    a(f'v_lshlrev_b32 v{t3}, 3, v{t2}')
    a(f'v_and_b32 v{V_AR}, 3, v{t0}')
    a(f'v_add_u32 v{t3}, v{t3}, v{V_AR}')
    a(f's_lshl_b32 s{S_T}, s{S_WI}, 5')
    a(f'v_add_u32 v{t3}, s{S_T}, v{t3}')
    a(f'v_lshlrev_b32 v{t3}, 7, v{t3}')
    a(f'v_lshlrev_b32 v{t2}, 1, v{t2}')
    a(f'v_bfe_u32 v{V_AR}, v{t0}, 1, 1')
    a(f'v_or_b32 v{t2}, v{t2}, v{V_AR}')
    a(f'v_xor_b32 v{t2}, v{t2}, v{t1}')
    a(f'v_lshl_add_u32 v{V_AR}, v{t2}, 4, v{t3}')
    a(f'v_xor_b32 v{V_AR+1}, 64, v{V_AR}')
    a(f'v_add_u32 v{V_AR+2}, {2*SLOT}, v{V_AR}')
    a(f'v_add_u32 v{V_AR+3}, {2*SLOT}, v{V_AR+1}')
    a(f'v_lshrrev_b32 v{t2}, 2, v{t0}')
    a(f'v_lshl_add_u32 v{t2}, v{t1}, 3, v{t2}')
    a(f'v_mul_u32_u24 v{t2}, 192, v{t2}')
    a(f'v_and_b32 v{t3}, 1, v{t1}')
    a(f'v_xor_b32 v{t3}, s{S_WJ}, v{t3}')
    a(f'v_mul_u32_u24 v{t3}, 96, v{t3}')
    a(f'v_add_u32 v{t2}, v{t2}, v{t3}')
    a(f'v_and_b32 v{t3}, 3, v{V_L}')
    a(f'v_lshl_add_u32 v{V_BR}, v{t3}, 3, v{t2}')
    a(f'v_add_u32 v{V_BR}, {BOFF}, v{V_BR}')
    a(f'v_add_u32 v{V_BR+1}, {2*SLOT}, v{V_BR}')
    a(f'v_lshrrev_b32 v{t2}, 2, v{t0}')
    a(f'v_lshl_add_u32 v{t3}, v{t1}, 3, v{t2}')
    a(f'v_lshlrev_b32 v{V_UR}, 7, v{t3}')
    a(f'v_lshrrev_b32 v{t2}, 1, v{t2}')
    a(f'v_lshl_or_b32 v{t2}, v{t1}, 1, v{t2}')
    a(f'v_bfe_u32 v{t3}, v{V_L}, 1, 1')
    a(f's_lshl_b32 s{S_T}, s{S_W}, 1')
    a(f'v_add_u32 v{t3}, s{S_T}, v{t3}')
    a(f'v_xor_b32 v{t3}, v{t3}, v{t2}')
    a(f'v_lshl_add_u32 v{V_UR}, v{t3}, 4, v{V_UR}')
    a(f'v_and_b32 v{t3}, 1, v{V_L}')
    a(f'v_lshl_add_u32 v{V_UR}, v{t3}, 3, v{V_UR}')
    a(f's_lshl_b32 s{S_T}, s{S_W}, 4')
    a(f'v_add_u32 v{V_US}, s{S_T}, v{t0}')
    a(f'v_lshlrev_b32 v{V_US}, 12, v{V_US}')
    a(f'v_lshl_add_u32 v{V_US}, v{t1}, 4, v{V_US}')
    a(f's_mov_b32 s{S_K1}, {hx(k1)}')
    a(f's_mov_b32 s{S_K1+1}, {hx(k1)}')
    a(f's_mov_b32 s{S_ONE}, 1.0')
    a(f's_mov_b32 s{S_ONE+1}, 1.0')

    def ar(stage, ks): return V_AR + ks + (2 if (stage & 2) else 0)
    def so(stage): return (stage & 1) * SLOT
    def br(stage): return V_BR + (1 if (stage & 2) else 0)
    def reads_p1(stage, ks):
        n = 0
        if stage < 10:
            for tau in range(2):
                a(f'ds_read_b128 {vr(XF+16*stage+8*ks+4*tau,4)}, v{ar(stage,ks)} offset:{so(stage)+512*tau}'); n += 1
        for phi in range(3):
            for half in range(2):
                a(f'ds_read_b64_tr_b16 {vr(WF+12*ks+4*phi+2*half,2)}, v{br(stage)} offset:{so(stage)+6144*ks+768*half+32*phi}'); n += 1
        return n
    def mfma_p1(stage, ks):
        i = stage % 10
        L = []
        for tau in range(2):
            for phi in range(3):
                x = vr(XF + 16 * i + 8 * ks + 4 * tau, 4); w = vr(WF + 12 * ks + 4 * phi, 4)
                if stage < 10:
                    c = vr(ACC2 + 4 * (3 * tau + phi), 4)
                    L.append(f'v_mfma_f32_16x16x32_bf16 {c}, {x}, {w}, {c if (i or ks) else 0}')
                else:
                    c = vr(ACC1 + 4 * (2 * phi + tau), 4)
                    L.append(f'v_mfma_f32_16x16x32_bf16 {c}, {w}, {x}, {c if (i or ks) else 0}')
        return L
    def dma_p2_A(stage):
        slot = (stage & 3) * SLOT
        return [([f's_lshl_b32 s{S_AO}, s{S_KC}, 7', f's_add_u32 s{S_AO}, s{S_AO}, s{S_ABASE}', f's_add_u32 m0, s{S_M_A}, {slot}', f's_add_u32 s{S_KC}, s{S_KC}, 1',
                  f'buffer_load_dwordx4 v{V_AD}, {srd(SRD_WSP)}, s{S_AO} offen lds'], ('A', stage)),
                ([f'buffer_load_dwordx4 v{V_AD+1}, {srd(SRD_WSP)}, s{S_AO} offen offset:1024 lds', f's_and_b32 s{S_KC}, s{S_KC}, 31'], ('A', stage))]
    S_KZ = S_KC0
    def dma_p2_B(stage):
        slot = (stage & 3) * SLOT
        U = []
        for j in range(3):
            L = [f's_mul_i32 s{S_BO}, s{S_KZ}, 12288', f's_add_u32 s{S_BO}, s{S_BO}, s{S_BBASE}', f's_add_u32 m0, s{S_M_B}, {slot}', f's_add_u32 s{S_KZ}, s{S_KZ}, 1'] if j == 0 else []
            L += [f'buffer_load_dwordx4 v{V_BD}, {srd(SRD_WS)}, s{S_BO} offen offset:{1024*j} sc1 lds']
            if j == 2: L += [f's_and_b32 s{S_KZ}, s{S_KZ}, 31']
            U.append((L, ('B', stage)))
        return U
    def rot2(dst):
        m = opt.get('rot2', 1)
        if m == 1:
            a(f's_lshl_b32 s{dst}, s{S_CB}, 3')
            a(f's_add_u32 s{dst}, s{dst}, s{S_RB}')
        elif m == 2:
            a(f's_lshl_b32 s{dst}, s{S_CB}, 1')
            a(f's_add_u32 s{dst}, s{dst}, s{S_RB}')
            a(f's_lshl_b32 s{dst}, s{dst}, 2')
        elif m == 3:
            a(f's_lshl_b32 s{dst}, s{S_CB}, 1')
            a(f's_add_u32 s{dst}, s{dst}, s{S_RB}')
            a(f's_lshl_b32 s{dst}, s{dst}, 2')
            a(f's_lshr_b32 s{S_T2}, s{S_RB}, 3')
            a(f's_add_u32 s{dst}, s{dst}, s{S_T2}')
        elif m == 4:
            a(f's_mov_b32 s{dst}, s{S_RB}')
        elif m == 5:
            a(f's_and_b32 s{dst}, s{S_RB}, 24')
        a(f's_and_b32 s{dst}, s{dst}, 31')
    def ut_chunk(extra):
        if extra:
            a(f's_add_u32 s{S_T}, s{S_KC0}, {extra}')
            a(f's_sub_u32 s{S_T2}, s{S_T}, 10')
            a(f's_min_u32 s{S_T}, s{S_T}, s{S_T2}')
        else:
            a(f's_mov_b32 s{S_T}, s{S_KC0}')
    V_A4 = 144
    def wsp_setup():
        a(f'v_lshrrev_b32 v{t0}, 3, v{V_L}')
        a(f'v_lshlrev_b32 v{t0}, 12, v{t0}')
        a(f'v_and_b32 v{t1}, 7, v{V_L}')
        a(f'v_bfe_u32 v{t2}, v{V_L}, 4, 1')
        a(f'v_xor_b32 v{t1}, v{t1}, v{t2}')
        for j in range(4):
            a(f'v_xor_b32 v{t2}, {2*j}, v{t1}')
            a(f'v_lshl_add_u32 v{VA4(j)}, v{t2}, 4, v{t0}')
            if j: a(f'v_add_u32 v{VA4(j)}, {8*j*4096-1024*j}, v{VA4(j)}')
        a(f's_lshl_b32 s{S_ABASE}, s{S_RB}, 18')
        a(f's_mul_i32 s{S_M_A}, s{S_W}, {SLOT}')
        rot2(S_KA)
        a(f's_add_u32 s{S_KA}, s{S_KA}, s{S_W}')
    def VA4(j): return (V_AD, V_AD + 1, V_UR + 0 if False else 15, 0)[j]
    S_KA = S_M_C
    def adma(par):
        U = []
        for gq in range(8):
            L = []
            if gq == 0:
                L += [f's_and_b32 s{S_KA}, s{S_KA}, {3 if opt.get("x_same") else 31}', f's_lshl_b32 s{S_A2}, s{S_KA}, 7', f's_add_u32 s{S_A2}, s{S_A2}, s{S_ABASE}', f's_add_u32 s{S_KA}, s{S_KA}, 4']
            if gq == 4:
                L += [f's_add_u32 s{S_A2}, s{S_A2}, 131072']
            L += [f's_add_u32 m0, s{S_M_A}, {8192*par+4096*(gq>>2)}']
            L += [f'buffer_load_dwordx4 v{VA4(gq&3)}, {srd(SRD_WSP)}, s{S_A2} offen offset:{1024*(gq&3)} lds']
            U.append((L, ('A2', par)))
        return U
    S_A2 = 77
    U2 = 8 if opt.get('rot1', 0) == 3 else 4
    UT = V_T
    pend = []
    a(f's_waitcnt vmcnt({vm.n_after(("B", 0))})')
    a('s_barrier')
    stamp(a, 1)
    reads_p1(0, 0)
    for s in range(20):
        if s == 10:
            stamp(a, 2)
            e1_z2(a, opt, vm, k0)
            stamp(a, 3)
        if s == LDS_:
            e2_loads(a, vm)
        if s == LNS:
            stamp(a, 4)
            e2_layernorm(a, opt, vm)
            if opt.get('kd') == 2 or opt.get('cg') == 3:
                a(f's_cmp_lg_u32 s{S_W}, 3')
                a('s_cbranch_scc1 L_fs2_skip')
                a(f's_lshl_b32 s{S_T}, s2, 2')
                a(f's_add_u32 s{S_T}, s{S_T}, {WS_FS+1024}')
                flag_store(a, S_T, 18)
                a.lab('L_fs2_skip')
            stamp(a, 5)
        n1 = reads_p1(s, 1)
        ut = s in (0, U2)
        if ut:
            if s == U2:
                a(f's_cmp_ge_u32 s{S_CB}, 2')
                a('s_cbranch_scc1 L_ut2_skip')
            for h2 in range(2):
                for half in range(2):
                    a(f'ds_read_b64_tr_b16 {vr(UT+4*h2+2*half,2)}, v{V_UR} offset:{(s&3)*SLOT+4096*h2+512*half}')
            if s == U2:
                a.lab('L_ut2_skip')
        a(f's_waitcnt lgkmcnt({n1+4 if s == 0 else n1})')
        with_units(mfma_p1(s, 0), pend); pend = []
        if s < 19:
            n = vm.n_after(('B', s + 1))
            if s == LNS + FZS: n = min(n, vm.n_after('z'))
            a(f's_waitcnt vmcnt({n}) lgkmcnt(0)')
        elif s == LNS + FZS:
            a(f's_waitcnt vmcnt({vm.n_after("z")}) lgkmcnt(0)')
        else:
            a('s_waitcnt lgkmcnt(0)')
        a('s_barrier')
        sstamp(a, s)
        if ut:
            if s == U2:
                a(f's_cmp_ge_u32 s{S_CB}, 2')
                a('s_cbranch_scc1 L_us2_skip')
            ut_chunk(s)
            a(f's_lshl_b32 s{S_T}, s{S_T}, 18')
            a(f's_lshl_b32 s{S_T2}, s{S_RB}, 7')
            a(f's_add_u32 s{S_T}, s{S_T}, s{S_T2}')
            a(f's_add_u32 s{S_T}, s{S_T}, {WS_UT}')
            for h2 in range(2):
                a(f'buffer_store_dwordx4 {vr(UT+4*h2,4)}, v{V_US}, {srd(SRD_WS)}, s{S_T} offen offset:{64*h2} sc1')
            if s == U2:
                a.lab('L_us2_skip')
            else:
                vm.issue('ut0', 2)
        if s == 3:
            a(f'v_readfirstlane_b32 s{S_TAG}, v15')
            a(f's_add_u32 s{S_TAG}, s{S_TAG}, 1')
        if s in (3, U2 + 3):
            a(f's_cmp_lg_u32 s{S_W}, 0')
            a(f's_cbranch_scc1 L_fu{s}_skip')
            if s == U2 + 3:
                a(f's_cmp_ge_u32 s{S_CB}, 2')
                a(f's_cbranch_scc1 L_fu{s}_skip')
            ut_chunk(s - 3)
            a(f's_lshl_b32 s{S_T}, s{S_T}, 5')
            a(f's_add_u32 s{S_T}, s{S_T}, s{S_RB}')
            a(f's_lshl_b32 s{S_T}, s{S_T}, 2')
            a(f's_add_u32 s{S_T}, s{S_T}, {WS_FU}')
            flag_store(a, S_T, V_T)
            a.lab(f'L_fu{s}_skip')
        if s == LNS + FZS:
            a(f's_cmp_lg_u32 s{S_W}, 0')
            a('s_cbranch_scc1 L_fz_skip')
            flag_store(a, S_FZA, V_T)
            a.lab('L_fz_skip')
            stamp(a, 6)
        if s + 4 < 20:
            U = dma_p1(s + 4)
        else:
            U = []
        if s == min(12, opt.get('a0s', 13)):
            wsp_setup()
        A0S = opt.get('a0s', 13)
        if A0S == 9:
            if s == 9: U = U + adma(0)
        elif s in (A0S, A0S + 1):
            U = U + adma(0)[4 * (s - A0S): 4 * (s - A0S) + 4]
        now, pend = split_units(U)
        if s + 1 in (10, LNS, 20):
            now = now + [(99, u) for (_, u) in pend]; pend = []
        if s < 19:
            reads_p1(s + 1, 0)
        with_units(mfma_p1(s, 1), now)
    stamp(a, 7)
    run_units(adma(1))
    V_PA = 141
    rot2(S_ROT)
    a(f's_add_u32 s{S_T}, s{S_ROT}, s{S_W}')
    a(f'v_lshl_add_u32 v{V_PA}, v{V_L}, 2, s{S_T}')
    a(f'v_and_b32 v{V_PA}, 31, v{V_PA}')
    a(f'v_lshlrev_b32 v{V_PA}, 2, v{V_PA}')
    a(f's_lshl_b32 s{S_T}, s{S_CB}, 7')
    a(f's_add_u32 s{S_T}, s{S_T}, {WS_FZ}')
    a(f'v_add_u32 v{V_PA}, s{S_T}, v{V_PA}')
    if opt.get('no_side') != 1:
        a(f'v_subrev_u32 v{t0}, 8, v{V_L}')
        a(f'v_min_u32 v{t0}, 5, v{t0}')
        a(f's_mul_i32 s{S_T}, s{S_CB}, 24')
        a(f's_mul_i32 s{S_T2}, s{S_W}, 6')
        a(f's_add_u32 s{S_T}, s{S_T}, s{S_T2}')
        a(f'v_add_u32 v{t0}, s{S_T}, v{t0}')
        a(f'v_lshlrev_b32 v{t0}, 2, v{t0}')
        a(f'v_add_u32 v{t0}, {WS_FW}, v{t0}')
        a(f'v_cmp_gt_u32 vcc, 8, v{V_L}')
        a(f'v_cndmask_b32 v{V_PA}, v{t0}, v{V_PA}, vcc')
    V_FL = 140
    S_RDY = 84
    def flags_load():
        a(f'buffer_load_dword v{V_FL}, v{V_PA}, {srd(SRD_WS)}, 0 offen sc1')
    nspin = [0]
    def need_bit(idx, mask=False, fresh=False):
        n = nspin[0]; nspin[0] += 1
        def test():
            if mask:
                a(f's_andn2_b32 s{S_T2}, {idx}, s{S_RDY}')
                a(f's_cbranch_scc0 L_nb{n}_ok')
            else:
                a(f's_bitcmp1_b32 s{S_RDY}, {idx}')
                a(f's_cbranch_scc1 L_nb{n}_ok')
        if fresh:
            a(f'v_cmp_eq_u32 s[{S_RDY}:{S_RDY+1}], s{S_TAG}, v{V_FL}')
        test()
        a(f's_mov_b32 s{S_CNT}, {SPIN_MAX}')
        a.lab(f'L_nb{n}_spin')
        flags_load()
        a('s_waitcnt vmcnt(0)')
        a(f'v_cmp_eq_u32 s[{S_RDY}:{S_RDY+1}], s{S_TAG}, v{V_FL}')
        test()
        if opt.get('psl', 4): a(f's_sleep {opt.get("psl", 4)}')
        a(f's_sub_u32 s{S_CNT}, s{S_CNT}, 1')
        a(f's_cmp_lg_u32 s{S_CNT}, 0')
        a(f's_cbranch_scc1 L_nb{n}_spin')
        a.lab(f'L_nb{n}_ok')
    a(f's_mov_b64 s[{S_RDY}:{S_RDY+1}], 0')
    a(f'v_mov_b32 v{K0V}, {hx(k0)}')
    a(f'v_mov_b32 v{K0V+1}, {hx(k0)}')
    V_ZW = V_US
    lane_mq()
    a(f'v_lshrrev_b32 v{t2}, 2, v{t0}')
    a(f'v_lshlrev_b32 v{t2}, 3, v{t2}')
    a(f'v_and_b32 v{t3}, 3, v{t0}')
    a(f'v_add_u32 v{t2}, v{t2}, v{t3}')
    a(f'v_lshlrev_b32 v{t2}, 3, v{t2}')
    a(f'v_mul_u32_u24 v{t3}, {SLOT}, v{t1}')
    a(f'v_add_u32 v{t2}, v{t2}, v{t3}')
    a(f's_mul_i32 s{S_T}, s{S_WJ}, 1536')
    a(f's_lshl_b32 s{S_T2}, s{S_WI}, 8')
    a(f's_add_u32 s{S_T}, s{S_T}, s{S_T2}')
    a(f's_add_u32 s{S_T}, s{S_T}, 16384')
    a(f'v_add_u32 v{V_ZW}, s{S_T}, v{t2}')
    Z1Q = 128
    def z1_group(i):
        phi, tau = i >> 1, i & 1
        cs = [ACC1 + 4 * i, ACC1 + 4 * i + 2]
        a(f'v_cvt_pk_bf16_f32 v{Z1Q+2*i}, v{cs[0]}, v{cs[0]+1}')
        a(f'v_cvt_pk_bf16_f32 v{Z1Q+2*i+1}, v{cs[1]}, v{cs[1]+1}')
        a(f'ds_write_b64 v{V_ZW}, {vr(Z1Q+2*i,2)} offset:{512*phi+32*tau}')
    NG1 = 6
    a(f'v_mov_b32 v{t2}, {CTR}')
    a(f'v_mov_b32 v{t3}, 8')
    a(f'ds_write_b32 v{t2}, v{t3}')
    for i in range(NG1): z1_group(i)
    G2 = 24
    ZR = 144
    AF = 120
    Z1R = 240
    V_ZD, V_A2R = V_BD, V_AR
    a(f'v_and_b32 v{t0}, 31, v{V_L}')
    a(f'v_lshrrev_b32 v{t1}, 5, v{V_L}')
    a(f's_lshl_b32 s{S_T}, s{S_W}, 3')
    a(f'v_add_u32 v{t3}, s{S_T}, v{t0}')
    a(f'v_and_b32 v{t3}, 31, v{t3}')
    a(f'v_mul_u32_u24 v{t2}, 96, v{t1}')
    a(f'v_add_u32 v{t2}, v{t2}, v{t3}')
    a(f'v_lshlrev_b32 v{V_ZD}, 4, v{t2}')
    a(f'v_lshrrev_b32 v{t2}, 3, v{t0}')
    a(f'v_lshlrev_b32 v{t2}, 1, v{t2}')
    a(f'v_bfe_u32 v{t3}, v{t0}, 1, 1')
    a(f'v_or_b32 v{t2}, v{t2}, v{t3}')
    a(f'v_xor_b32 v{t2}, v{t2}, v{t1}')
    a(f'v_lshlrev_b32 v{t3}, 7, v{t0}')
    a(f'v_lshl_add_u32 v{t2}, v{t2}, 4, v{t3}')
    a(f'v_add_u32 v{V_A2R}, s{S_M_A}, v{t2}')
    for ks in range(1, 4):
        a(f'v_xor_b32 v{t3}, {32*ks}, v{t2}')
        a(f'v_add_u32 v{V_A2R+ks}, s{S_M_A}, v{t3}')
    V_ZR = V_BR
    a(f's_lshl_b32 s{S_T}, s{S_WJ}, 1')
    a(f'v_add_u32 v{t2}, s{S_T}, v{t1}')
    a(f'v_mul_u32_u24 v{t2}, {SLOT}, v{t2}')
    a(f'v_lshl_add_u32 v{t2}, v{t0}, 3, v{t2}')
    a(f's_lshl_b32 s{S_T}, s{S_WI}, 9')
    a(f's_add_u32 s{S_T}, s{S_T}, 16384')
    a(f'v_add_u32 v{V_ZR}, s{S_T}, v{t2}')
    a(f's_lshl_b32 s{S_T}, s{S_RB}, 7')
    a(f'v_lshlrev_b32 v{t2}, 1, v{t0}')
    a(f'v_add_u32 v{t2}, s{S_T}, v{t2}')
    BS2 = 252
    a(f'global_load_ushort v{BS2}, v{t2}, {sp(P_BSP)}')
    a(f'global_load_ushort v{BS2+2}, v{t2}, {sp(P_BSP)} offset:64')
    rot2(S_KZ)
    a(f's_add_u32 s{S_KZ}, s{S_KZ}, s{S_W}')
    a(f's_mul_i32 s{S_BBASE}, s{S_CB}, {32*12288}')
    a(f's_add_u32 s{S_BBASE}, s{S_BBASE}, {WS_Z}')
    a('s_waitcnt lgkmcnt(0)')
    a('s_barrier')
    need_bit(0)
    stamp(a, 8)
    vm.ops = []
    def zld(par):
        U = []
        for ks in range(4):
            for ph in range(3):
                L = []
                if ks == 0 and ph == 0:
                    L += [f's_and_b32 s{S_KZ}, s{S_KZ}, {3 if opt.get("x_same") else 31}', f's_mul_i32 s{S_BO}, s{S_KZ}, 12288', f's_add_u32 s{S_BO}, s{S_BO}, s{S_BBASE}', f's_add_u32 s{S_KZ}, s{S_KZ}, 4']
                elif ph == 0:
                    L += [f's_add_u32 s{S_BO}, s{S_BO}, 3072']
                L += [f'buffer_load_dwordx4 {vr(ZR+48*par+12*ks+4*ph,4)}, v{V_ZD}, {srd(SRD_WS)}, s{S_BO} offen offset:{512*ph} sc1']
                U.append((L, ('Z', par, ks)))
        return U
    vm.issue(('A2', 1), 1)
    run_units([(l, ('Z', 0, t[2])) for (l, t) in zld(0)])
    need_bit(1)
    run_units([(l, ('Z', 1, t[2])) for (l, t) in zld(1)])
    flags_load(); vm.issue('fl', 1)
    for i in range(NG1, 6): z1_group(i)
    for i in range(6):
        a(f'ds_read_b64 {vr(Z1R+2*i,2)}, v{V_ZR} offset:{1024*(i>>1)+256*(i&1)}')
    if opt.get('cg', 0) == 1 or opt.get('kd') == 1:
        a(f's_cmp_lg_u32 s{S_W}, 3')
        a('s_cbranch_scc1 L_fs_skip')
        a(f's_lshl_b32 s{S_T}, s2, 2')
        a(f's_add_u32 s{S_T}, s{S_T}, {WS_FS}')
        flag_store(a, S_T, 18)
        a.lab('L_fs_skip')
    def ards(par, ks):
        f = AF + 8 * (ks & 1)
        for tp in range(2):
            a(f'ds_read_b128 {vr(f+4*tp,4)}, v{V_A2R+ks} offset:{8192*par+4096*tp}')
    def chunk(i, fill=()):
        par = i & 1
        if i + 2 < 8:
            need_bit(i + 2, fresh=True)
        if i + 3 < 8 or i == 6:
            flags_load(); vm.issue('fl', 1)
        AU = [(l, ('A2', i + 1)) for (l, _) in adma(1 - par)] if 1 <= i < 7 else []
        ZU = [(l, ('Z', i + 2, t[2])) for (l, t) in zld(par)] if i + 2 < 8 else []
        for ks in range(4):
            a(f's_waitcnt vmcnt({vm.n_after(("Z", i, ks))}) lgkmcnt(0)')
            if ks < 3:
                ards(par, ks + 1)
            f = AF + 8 * (ks & 1)
            for tp in range(2):
                for ph in range(3):
                    m = 3 * tp + ph
                    c = vr(G2 + 16 * (2 * ph + tp), 16)
                    if not opt.get('x_nomfma'): a(f'v_mfma_f32_32x32x16_bf16 {c}, {vr(ZR+48*par+12*ks+4*ph,4)}, {vr(f+4*tp,4)}, {0 if (i == 0 and ks == 0) else c}')
                    if m < 3 and ks < 2 and AU: run_units(AU[4 * ks: 4 * ks + 2] if m == 0 else [AU[4 * ks + m + 1]])
                    if m >= 3 and ZU: run_units([ZU[3 * ks + m - 3]])
                    for l in fill[6 * (6 * ks + m): 6 * (6 * ks + m) + 6]: a(l)
        a(f's_waitcnt vmcnt({vm.n_after(("A2", i + 1))})')
        ards(1 - par, 0)
    V_L16 = V_BD + 1
    a(f'v_lshlrev_b32 v{V_L16}, 4, v{V_L}')
    a(f's_mul_i32 s{S_WOB}, s{S_CB}, {24*5120}')
    a(f's_mul_i32 s{S_T}, s{S_W}, {6*5120}')
    a(f's_add_u32 s{S_WOB}, s{S_WOB}, s{S_T}')
    a(f's_add_u32 s{S_WOB}, s{S_WOB}, {WS_WO}')
    V_RW = V_BD + 2
    a(f'v_add_u32 v{V_RW}, s{S_M_A}, v{V_L16}')
    V_RR = 12
    for d in range(1, 4):
        a(f's_sub_u32 s{S_T}, s{S_W}, {d}')
        a(f's_and_b32 s{S_T}, s{S_T}, 3')
        a(f's_mul_i32 s{S_T}, s{S_T}, {SLOT}')
        a(f's_add_u32 s{S_T}, s{S_T}, {6144*(d-1)}')
        a(f'v_add_u32 v{V_RR+d-1}, s{S_T}, v{V_L16}')
    stamp(a, 9)
    a('s_waitcnt lgkmcnt(0)')
    ards(0, 0)
    GL = []
    for i in range(6): GL += gelu_packed([Z1R + 2 * i, Z1R + 2 * i + 1], K0V)
    for i in range(7): chunk(i, GL if i == 0 else ())
    WOS = [144, 164, 192, 212]
    def wold(kk):
        U = []
        for dl in range(5):
            L = [f's_add_u32 s{S_BO}, s{S_WOB}, {5120*kk+(4096 if dl == 4 else 0)}'] if dl in (0, 4) else []
            L += [f'buffer_load_dwordx4 {vr(WOS[kk&3]+4*dl,4)}, v{V_L16}, {srd(SRD_WS)}, s{S_BO} offen offset:{1024*(dl&3)} sc1']
            U.append((L, ('WO', kk)))
        return U
    for par in (1,):
        a.lab(f'L_p2_tail{par}')
        other = ZR + 48 * (1 - par)
        AFR = {0: 120, 1: 128, 2: other + 40, 3: 16}
        for ks in range(1, 4):
            for tp in range(2):
                a(f'ds_read_b128 {vr(AFR[ks]+4*tp,4)}, v{V_A2R+ks} offset:{8192*par+4096*tp}')
        a('s_waitcnt vmcnt(0) lgkmcnt(0)')
        if opt.get('no_side') != 1:
            need_bit(0x3f00, mask=True, fresh=True)
        early, late = ((0, 1), (2, 3)) if par == 1 else ((2, 3), (0, 1))
        WOU = wold(early[0]) + wold(early[1])
        k = 0
        def wr(i):
            for d in range(1, 4):
                a(f'ds_write_b128 v{V_RW}, {vr(G2+16*i+4*d,4)} offset:{6144*(d-1)+1024*i}')
        for i in range(6):
            ph, tp = i >> 1, i & 1
            c = vr(G2 + 16 * i, 16)
            for ks in range(4):
                a(f'v_mfma_f32_32x32x16_bf16 {c}, {vr(ZR+48*par+12*ks+4*ph,4)}, {vr(AFR[ks]+4*tp,4)}, {c}')
                if ks in (0, 2) and k < len(WOU):
                    run_units([WOU[k]], False); k += 1
                if ks == 2 and i > 0: wr(i - 1)
        wr(5)
        run_units(wold(late[0]) + wold(late[1]), False)
    a.lab('L_red_done')
    stamp(a, 10)
    vm.ops = []
    a('s_waitcnt lgkmcnt(0)')
    a('s_barrier')
    for i in range(6):
        for j in range(3):
            a(f'ds_read_b128 {vr(G2+16*i+4+4*j,4)}, v{V_RR+j} offset:{1024*i}')
    a(f'v_lshlrev_b32 v{BS2+1}, 16, v{BS2}')
    a(f'v_lshlrev_b32 v{BS2+3}, 16, v{BS2+2}')
    a(f'v_lshlrev_b32 v{BS2}, 16, v{BS2}')
    a(f'v_lshlrev_b32 v{BS2+2}, 16, v{BS2+2}')
    a(f's_mul_i32 s{S_ABASE}, s{S_RB}, 98304')
    a(f's_add_u32 s{S_ABASE}, s{S_ABASE}, {WS_P}')
    a(f's_mul_i32 s{S_T}, s{S_CB}, 12288')
    a(f's_add_u32 s{S_T}, s{S_T}, s{S_ABASE}')
    a(f's_lshl_b32 s{S_T2}, s{S_W}, 10')
    a(f's_add_u32 s{S_T}, s{S_T}, s{S_T2}')
    PQ = 120
    for ph in range(3):
        for tp in range(2):
            i = 2 * ph + tp
            a(f's_waitcnt lgkmcnt({min(15, 3*(5-i))})')
            T = [V_T, V_T + 4]
            def both(f):
                for hh in range(2): a(f(G2 + 16 * i + 2 * hh, T[hh], hh))
            both(lambda c, t, hh: f'v_pk_add_f32 {vr(c,2)}, {vr(c,2)}, {vr(c+4,2)}')
            both(lambda c, t, hh: f'v_pk_add_f32 {vr(c+8,2)}, {vr(c+8,2)}, {vr(c+12,2)}')
            both(lambda c, t, hh: f'v_pk_add_f32 {vr(c,2)}, {vr(c,2)}, {vr(c+8,2)}')
            both(lambda c, t, hh: f'v_cvt_pk_bf16_f32 v{t+2}, v{c}, v{c+1}')
            both(lambda c, t, hh: f'v_lshlrev_b32 v{t}, 16, v{t+2}')
            both(lambda c, t, hh: f'v_and_b32 v{t+1}, 0xffff0000, v{t+2}')
            both(lambda c, t, hh: f'v_pk_add_f32 {vr(t,2)}, {vr(t,2)}, {vr(BS2+2*tp,2)}')
            both(lambda c, t, hh: f'v_cvt_pk_bf16_f32 v{t+2}, v{t}, v{t+1}')
            both(lambda c, t, hh: f'v_lshlrev_b32 v{c}, 16, v{Z1R+2*i+hh}')
            both(lambda c, t, hh: f'v_and_b32 v{c+1}, 0xffff0000, v{Z1R+2*i+hh}')
            both(lambda c, t, hh: f'v_lshlrev_b32 v{t}, 16, v{t+2}')
            both(lambda c, t, hh: f'v_and_b32 v{t+1}, 0xffff0000, v{t+2}')
            both(lambda c, t, hh: f'v_pk_mul_f32 {vr(t,2)}, {vr(t,2)}, {vr(c,2)}')
            both(lambda c, t, hh: f'v_cvt_pk_bf16_f32 v{PQ+4*ph+2*tp+hh}, v{t}, v{t+1}')
        q = PQ + 4 * ph
        a(f'v_permlane32_swap_b32 v{q}, v{q+2}')
        a(f'v_permlane32_swap_b32 v{q+1}, v{q+3}')
        a(f'buffer_store_dwordx4 {vr(q,4)}, v{V_L16}, {srd(SRD_WS)}, s{S_T} offen sc1')
        if ph < 2: a(f's_add_u32 s{S_T}, s{S_T}, 4096')
    a('s_barrier')
    a(f's_mul_i32 s{S_M_B}, s{S_W}, 15360')
    for j in range(10):
        if j % 4 == 0:
            a(f's_add_u32 m0, s{S_M_B}, {1024*j}')
            a(f's_add_u32 s{S_BO}, s{S_WOB}, {4*5120+1024*j}')
        a(f'buffer_load_dwordx4 v{V_L16}, {srd(SRD_WS)}, s{S_BO} offen offset:{1024*(j%4)} sc1 lds')
    a.fence(2)
    lane_mq()
    V_PP = 7
    a(f'v_and_b32 v{V_PP}, 7, v{V_L}')
    a(f'v_lshlrev_b32 v{V_PP}, 2, v{V_PP}')
    a(f's_lshl_b32 s{S_T}, s{S_RB}, 7')
    a(f's_add_u32 s{S_T}, s{S_T}, {WS_FP}')
    a(f's_lshl_b32 s{S_T2}, s{S_W}, 5')
    a(f's_add_u32 s{S_T2}, s{S_T2}, s{S_T}')
    V_PL0, V_PL1 = 8, 9
    a(f's_lshl_b32 s{S_AO}, s{S_RB}, 5')
    a(f's_add_u32 s{S_AO}, s{S_AO}, {WS_FG}')
    a(f'v_add_u32 v{V_PL0}, s{S_AO}, v{V_PP}')
    a(f'v_add_u32 v{V_PP}, s{S_T2}, v{V_PP}')
    a(f's_lshl_b32 s{S_T2}, s{S_CB}, 4')
    a(f's_add_u32 s{S_T}, s{S_T}, s{S_T2}')
    a(f's_lshl_b32 s{S_T2}, s{S_W}, 2')
    a(f's_add_u32 s{S_T}, s{S_T}, s{S_T2}')
    a(f's_mul_i32 s{S_T2}, s{S_CB}, 320')
    a(f's_add_u32 s{S_T2}, s{S_T2}, {WS_FA}')
    a(f'v_lshlrev_b32 v{V_PL1}, 2, v{V_L}')
    a(f'v_add_u32 v{V_PL1}, s{S_T2}, v{V_PL1}')
    a(f'v_lshlrev_b32 v{t3}, 2, v{t0}')
    a(f'v_add_u32 v{t3}, s{S_T2}, v{t3}')
    a(f'v_add_u32 v{t3}, 256, v{t3}')
    a(f'v_bfe_u32 v{t2}, v{V_L}, 4, 1')
    a(f'v_cmp_eq_u32 vcc, 1, v{t2}')
    a(f'v_cndmask_b32 v{V_PL0}, v{V_PL0}, v{t3}, vcc')
    V_AW, V_O1, V_O2, V_ATR, V_AG, V_PF = 248, 10, 11, 12, 250, 2
    ATR, GT = [136, 140, 184], 188
    a(f's_lshl_b32 s{S_AO}, s{S_W}, 7')
    a(f'v_add_u32 v{t2}, s{S_AO}, v{V_L}')
    a(f's_lshl_b32 s{S_AO}, s{S_WJ}, 6')
    a(f's_add_u32 s{S_AO}, s{S_AO}, 512')
    a(f'v_add_u32 v{t3}, s{S_AO}, v{V_L}')
    ATL = 61440
    a(f'v_lshlrev_b32 v{V_AW}, 4, v{t2}')
    a(f'v_lshlrev_b32 v{V_AW+1}, 4, v{t3}')
    a(f'v_add_u32 v{V_AW}, {ATL}, v{V_AW}')
    a(f'v_add_u32 v{V_AW+1}, {ATL}, v{V_AW+1}')
    for k, tt in enumerate((t2, t3)):
        a(f'v_lshrrev_b32 v{V_AG+k}, 3, v{tt}')
        a(f'v_and_b32 v{tt}, 7, v{tt}')
        a(f'v_lshlrev_b32 v{V_AG+k}, 12, v{V_AG+k}')
        a(f'v_lshl_add_u32 v{V_AG+k}, v{tt}, 4, v{V_AG+k}')
    a(f's_lshl_b32 s{S_AO}, s{S_RB}, 6')
    a(f's_lshl_b32 s{S_BO}, s{S_W}, 4')
    a(f's_add_u32 s{S_AO}, s{S_AO}, s{S_BO}')
    a(f'v_add_u32 v{t2}, s{S_AO}, v{t0}')
    a(f'v_lshlrev_b32 v{V_AG+2}, 3, v{t2}')
    a(f'v_add_u32 v{V_AG+2}, {WS_G}, v{V_AG+2}')
    a(f'v_mul_u32_u24 v{t2}, 1280, v{t2}')
    a(f's_mul_i32 s{S_AO}, s{S_CB}, 160')
    a(f'v_add_u32 v{t2}, s{S_AO}, v{t2}')
    a(f'v_and_b32 v{t3}, 1, v{t1}')
    a(f'v_lshl_add_u32 v{V_O1}, v{t3}, 5, v{t2}')
    a(f'v_lshrrev_b32 v{t3}, 1, v{t1}')
    a(f'v_lshl_add_u32 v{V_O1}, v{t3}, 4, v{V_O1}')
    a(f'v_lshl_add_u32 v{V_O2}, v{t1}, 3, v{t2}')
    a(f'v_add_u32 v{V_O2}, 128, v{V_O2}')
    a(f'v_lshl_add_u32 v{t2}, v{t1}, 6, v{t0}')
    a(f'v_lshlrev_b32 v{t2}, 4, v{t2}')
    VPF = [2, 3, 4, 6]
    for tt in range(4):
        a(f's_add_u32 s{S_AO}, s{S_W}, {tt}')
        a(f's_and_b32 s{S_AO}, s{S_AO}, 3')
        a(f's_lshl_b32 s{S_AO}, s{S_AO}, 8')
        a(f'v_add_u32 v{VPF[tt]}, s{S_AO}, v{t2}')
    a(f's_mul_i32 s{S_AO}, s{S_W}, 24576')
    a(f's_add_u32 s{S_ABASE}, s{S_ABASE}, s{S_AO}')
    a(f'v_lshrrev_b32 v{t2}, 2, v{t0}')
    a(f'v_lshl_add_u32 v{t2}, v{t1}, 2, v{t2}')
    a(f'v_lshlrev_b32 v{t2}, 7, v{t2}')
    a(f'v_and_b32 v{t3}, 3, v{V_L}')
    a(f'v_lshl_add_u32 v{t2}, v{t3}, 3, v{t2}')
    a(f's_lshl_b32 s{S_AO}, s{S_W}, 5')
    a(f's_add_u32 s{S_AO}, s{S_AO}, {ATL}')
    a(f'v_add_u32 v{V_ATR}, s{S_AO}, v{t2}')
    O3 = 24
    a('s_waitcnt vmcnt(10)')
    flag_store(a, S_T, V_T)
    stamp(a, 11)
    if not opt.get('no_side'):
        a(f'buffer_load_dword v20, v{V_PL0}, {srd(SRD_WS)}, 0 offen sc1')
        a(f'buffer_load_dword v21, v{V_PL1}, {srd(SRD_WS)}, 0 offen sc1')
    if opt.get('p3b', 1):
        V_PA, V_FL = V_PP, 253
        a(f's_mov_b64 s[{S_RDY}:{S_RDY+1}], 0')
        need_bit(0x0f, mask=True)
    else:
        a(f's_mov_b32 s{S_CNT}, {SPIN_MAX}')
        a(f'buffer_load_dword v16, v{V_PP}, {srd(SRD_WS)}, 0 offen sc1')
        a.lab('L_pp_spin')
        a(f'buffer_load_dword v17, v{V_PP}, {srd(SRD_WS)}, 0 offen sc1')
        a('s_waitcnt vmcnt(1)')
        a(f'v_cmp_ne_u32 vcc, s{S_TAG}, v16')
        a('s_cbranch_vccz L_pp_done')
        a(f'buffer_load_dword v16, v{V_PP}, {srd(SRD_WS)}, 0 offen sc1')
        a('s_waitcnt vmcnt(1)')
        a(f'v_cmp_ne_u32 vcc, s{S_TAG}, v17')
        a('s_cbranch_vccz L_pp_done')
        if opt.get('psl', 4): a(f's_sleep {opt.get("psl", 4)}')
        a(f's_sub_u32 s{S_CNT}, s{S_CNT}, 1')
        a(f's_cmp_lg_u32 s{S_CNT}, 0')
        a('s_cbranch_scc1 L_pp_spin')
        a.lab('L_pp_done')
    stamp(a, 12)
    vm.ops = []
    NPS = 3
    PFS = [104, 120, 228 - 228 + 232]
    V_AG2 = [V_AG, V_AG + 1, V_AG + 2]
    def pld(kk):
        U = []
        for tt in range(4):
            L = [f's_add_u32 s{S_AO}, s{S_ABASE}, {4096*kk}'] if tt == 0 else []
            L += [f'buffer_load_dwordx4 {vr(PFS[kk%NPS]+4*tt,4)}, v{VPF[tt]}, {srd(SRD_WS)}, s{S_AO} offen sc1']
            U.append((L, ('P', kk)))
        return U
    for kk in range(3): run_units(pld(kk))
    if opt.get('p3b', 1):
        flags_load(); vm.issue('fl', 1)
    if not opt.get('no_side'):
        a(f'v_cmp_ne_u32 vcc, s{S_TAG}, v20')
        a(f'v_cmp_ne_u32 s[84:85], s{S_TAG}, v21')
        a('s_or_b64 vcc, vcc, s[84:85]')
        a('s_cbranch_vccnz L_pa_late')
    def at_loads():
        a(f's_mul_i32 s{S_T}, s{S_CB}, {80*4096}')
        a(f's_lshl_b32 s{S_T2}, s{S_RB}, 7')
        a(f's_add_u32 s{S_T}, s{S_T}, s{S_T2}')
        a(f's_add_u32 s{S_T}, s{S_T}, {WS_AT}')
        a(f's_add_u32 s{S_T2}, s{S_T}, {8*4096}')
        a(f'buffer_load_dwordx4 {vr(ATR[0],4)}, v{V_AG2[0]}, {srd(SRD_WS)}, s{S_T} offen sc1')
        a(f'buffer_load_dwordx4 {vr(ATR[1],4)}, v{V_AG2[0]}, {srd(SRD_WS)}, s{S_T2} offen sc1')
        a(f'buffer_load_dwordx4 {vr(ATR[2],4)}, v{V_AG2[1]}, {srd(SRD_WS)}, s{S_T} offen sc1')
        a(f'buffer_load_dwordx2 {vr(GT,2)}, v{V_AG2[2]}, {srd(SRD_WS)}, 0 offen sc1')
    at_loads()
    vm.issue('at', 4)
    a(f's_mov_b32 s{S_KZ}, 0')
    if not opt.get('no_side'):
        a('s_branch L_pa_go')
        a.lab('L_pa_late')
        for k in range(4):
            a(f'buffer_load_dword v22, off, {srd(SRD_WS)}, 0')
        a(f's_mov_b32 s{S_KZ}, 1')
        a.lab('L_pa_go')
    stamp(a, 13)
    V_W3, V_R3 = 13, 14
    VR3 = [14, 15, 0]
    a(f's_mul_i32 s{S_T}, s{S_W}, 15360')
    a(f'v_add_u32 v{V_W3}, s{S_T}, v{V_L16}')
    for d in range(1, 4):
        a(f's_sub_u32 s{S_T}, s{S_W}, {d}')
        a(f's_and_b32 s{S_T}, s{S_T}, 3')
        a(f's_mul_i32 s{S_T}, s{S_T}, 15360')
        a(f's_add_u32 s{S_T}, s{S_T}, {5120*(d-1)}')
        a(f'v_add_u32 v{VR3[d-1]}, s{S_T}, v{V_L16}')
    def wr3(tt):
        for dl in range(5):
            a(f'ds_write_b128 v{V_W3}, {vr(O3+4*(5*tt+dl),4)} offset:{5120*(tt-1)+1024*dl}')
    for kk in range(6):
        need = vm.n_after(('P', kk))
        a(f's_waitcnt vmcnt({need})' + (' lgkmcnt(5)' if kk == 4 else ' lgkmcnt(0)' if kk == 5 else ''))
        for tt in ((0, 1, 2, 3) if kk < 5 else (1, 2, 3, 0)):
            for dl in range(5):
                c = vr(O3 + 4 * (5 * tt + dl), 4)
                a(f'v_mfma_f32_16x16x32_bf16 {c}, {vr(WOS[kk&3]+4*dl,4)}, {vr(PFS[kk%NPS]+4*tt,4)}, {c if kk else 0}')
            if kk == 5 and tt != 1: wr3((tt - 1) & 3)
        if kk == 0 and opt.get('p3b', 1):
            a(f's_waitcnt vmcnt({vm.n_after("fl")})')
            need_bit(0xf0, mask=True, fresh=True)
        if kk + 3 < 6: run_units(pld(kk + 3))
        if kk + 4 < 6:
            for dl in range(5):
                a(f'ds_read_b128 {vr(WOS[kk&3]+4*dl,4)}, v{V_W3} offset:{5120*kk+1024*dl}')
    stamp(a, 14)
    if not opt.get('no_side'):
        a(f's_cmp_eq_u32 s{S_KZ}, 0')
        a('s_cbranch_scc1 L_pa_ok')
        poll(a, 'L_pa', [(V_PL0, '0'), (V_PL1, '0')], 20, S_CNT)
        at_loads()
        a.lab('L_pa_ok')
    a('s_waitcnt vmcnt(0)')
    a(f'v_mov_b32 v{GT+2}, v{GT+1}')
    a(f'v_mov_b32 v{GT+3}, v{GT+1}')
    a(f'v_mov_b32 v{GT+1}, v{GT}')
    a(f'ds_write_b128 v{V_AW}, {vr(ATR[0],4)}')
    a(f'ds_write_b128 v{V_AW}, {vr(ATR[1],4)} offset:1024')
    a(f'ds_write_b128 v{V_AW+1}, {vr(ATR[2],4)}')
    a('s_waitcnt lgkmcnt(0)')
    a('s_barrier')
    AV = 104
    for dl in range(5):
        for j in range(3):
            a(f'ds_read_b128 {vr(O3+4*(5*(j+1)+dl),4)}, v{VR3[j]} offset:{1024*dl}')
        a(f'ds_read_b64_tr_b16 {vr(AV+2*dl,2)}, v{V_ATR} offset:{2048*dl}')
    RQ = 116
    for dl in range(5):
        a(f's_waitcnt lgkmcnt({min(15, 4*(4-dl))})')
        T = [V_T, V_T + 4]
        def both(f):
            for hh in range(2): a(f(O3 + 4 * dl + 2 * hh, T[hh], AV + 2 * dl + hh, hh))
        both(lambda c, t, av, hh: f'v_pk_add_f32 {vr(c,2)}, {vr(c,2)}, {vr(c+20,2)}')
        both(lambda c, t, av, hh: f'v_pk_add_f32 {vr(c+40,2)}, {vr(c+40,2)}, {vr(c+60,2)}')
        both(lambda c, t, av, hh: f'v_pk_add_f32 {vr(c,2)}, {vr(c,2)}, {vr(c+40,2)}')
        both(lambda c, t, av, hh: f'v_cvt_pk_bf16_f32 v{t+2}, v{c}, v{c+1}')
        both(lambda c, t, av, hh: f'v_lshlrev_b32 v{t}, 16, v{av}')
        both(lambda c, t, av, hh: f'v_and_b32 v{t+1}, 0xffff0000, v{av}')
        both(lambda c, t, av, hh: f'v_lshlrev_b32 v{c}, 16, v{t+2}')
        both(lambda c, t, av, hh: f'v_and_b32 v{c+1}, 0xffff0000, v{t+2}')
        both(lambda c, t, av, hh: f'v_pk_mul_f32 {vr(t,2)}, {vr(t,2)}, {vr(GT,2)}')
        both(lambda c, t, av, hh: f'v_pk_mul_f32 {vr(c,2)}, {vr(c,2)}, {vr(GT+2,2)}')
        both(lambda c, t, av, hh: f'v_cvt_pk_bf16_f32 v{t+2}, v{t}, v{t+1}')
        both(lambda c, t, av, hh: f'v_cvt_pk_bf16_f32 v{t+3}, v{c}, v{c+1}')
        both(lambda c, t, av, hh: f'v_lshlrev_b32 v{t}, 16, v{t+2}')
        both(lambda c, t, av, hh: f'v_and_b32 v{t+1}, 0xffff0000, v{t+2}')
        both(lambda c, t, av, hh: f'v_lshlrev_b32 v{c}, 16, v{t+3}')
        both(lambda c, t, av, hh: f'v_and_b32 v{c+1}, 0xffff0000, v{t+3}')
        both(lambda c, t, av, hh: f'v_pk_add_f32 {vr(t,2)}, {vr(t,2)}, {vr(c,2)}')
        both(lambda c, t, av, hh: f'v_cvt_pk_bf16_f32 v{RQ+2*dl+hh}, v{t}, v{t+1}')
        if dl in (1, 3):
            q = RQ + 2 * (dl - 1)
            a(f'v_permlane16_swap_b32 v{q}, v{q+2}')
            a(f'v_permlane16_swap_b32 v{q+1}, v{q+3}')
            a(f'buffer_store_dwordx4 {vr(q,4)}, v{V_O1}, {srd(SRD_OUT)}, 0 offen offset:{32*(dl-1)} {OC}')
        if dl == 4:
            a(f'buffer_store_dwordx2 {vr(RQ+8,2)}, v{V_O2}, {srd(SRD_OUT)}, 0 offen {OC}')
    if _g.PROF['on']:
        a('s_waitcnt vmcnt(0)')
    stamp(a, 15)
    stamp_dump(a, 16)
    a('s_endpgm')

def poll1(a, name, vaddrs, vtmp, scount):
    a(f's_cmp_lg_u32 s{S_W}, 0')
    a(f's_cbranch_scc1 {name}_out')
    va = vaddrs[0]
    a(f's_mov_b32 s{scount}, {SPIN_MAX}')
    a(f'buffer_load_dword v{vtmp}, v{va}, {srd(SRD_WS)}, 0 offen sc1')
    a.lab(f'{name}_spin')
    a(f'buffer_load_dword v{vtmp+1}, v{va}, {srd(SRD_WS)}, 0 offen sc1')
    a('s_waitcnt vmcnt(1)')
    a(f'v_cmp_ne_u32 vcc, s{S_TAG}, v{vtmp}')
    a(f's_cbranch_vccz {name}_done')
    a(f'buffer_load_dword v{vtmp}, v{va}, {srd(SRD_WS)}, 0 offen sc1')
    a('s_waitcnt vmcnt(1)')
    a(f'v_cmp_ne_u32 vcc, s{S_TAG}, v{vtmp+1}')
    a(f's_cbranch_vccz {name}_done')
    a(f's_sub_u32 s{scount}, s{scount}, 1')
    a(f's_cmp_lg_u32 s{scount}, 0')
    a(f's_cbranch_scc1 {name}_spin')
    a.lab(f'{name}_done')
    a.lab(f'{name}_out')
    a('s_barrier')

def e1_z2(a, opt, vm, k0):
    SS, QQ = ACC1, ACC1 + 8
    K0 = ACC1 + 16
    pf = opt.get('gpf', 0)
    if pf:
        a(f's_lshl_b32 s{S_T}, s{S_RB}, 18')
        a(f's_and_b32 s{S_T2}, s{S_CB}, 3')
        a(f's_lshl_b32 s{S_T2}, s{S_T2}, 16')
        a(f's_add_u32 s{S_T}, s{S_T}, s{S_T2}')
        a(f's_lshl_b32 s{S_T2}, s{S_W}, 14')
        a(f's_add_u32 s{S_T}, s{S_T}, s{S_T2}')
        a(f'v_lshlrev_b32 v{t0}, {7 if pf == 128 else 6}, v{V_L}')
        for i in range(16384 // (64 * pf)):
            a(f'buffer_load_dword v{ACC1+20+i}, v{t0}, {srd(SRD_WSP)}, s{S_T} offen')
            a(f's_add_u32 s{S_T}, s{S_T}, {64*pf}')
            vm.issue('pf', 1)
    a(f'v_mov_b32 v{K0}, {hx(k0)}')
    a(f'v_mov_b32 v{K0+1}, {hx(k0)}')
    first = {}
    for phi in range(3):
        for tau in range(2):
            cs = [ACC2 + 4 * (3 * tau + phi) + 2 * hh for hh in range(2)]
            def after(c, t):
                r = 4 * tau + (c - cs[0])
                L = [f'v_cvt_pk_bf16_f32 v{c}, v{t+2}, v{t+3}']
                if phi == 0:
                    L += [f'v_lshlrev_b32 v{SS+r}, 16, v{c}', f'v_and_b32 v{SS+r+1}, 0xffff0000, v{c}',
                          f'v_pk_mul_f32 {vr(QQ+r,2)}, {vr(SS+r,2)}, {vr(SS+r,2)}']
                else:
                    L += [f'v_lshlrev_b32 v{t}, 16, v{c}', f'v_and_b32 v{t+1}, 0xffff0000, v{c}',
                          f'v_pk_add_f32 {vr(SS+r,2)}, {vr(SS+r,2)}, {vr(t,2)}', f'v_pk_fma_f32 {vr(QQ+r,2)}, {vr(t,2)}, {vr(t,2)}, {vr(QQ+r,2)}']
                return L
            gelu2(a, cs, K0, after)
    for j in range(8):
        a(f'v_add_f32_dpp v{SS+j}, v{SS+j}, v{SS+j} row_ror:8 row_mask:0xf bank_mask:0x3')
    for j in range(8):
        a(f'v_add_f32_dpp v{SS+j}, v{QQ+j}, v{QQ+j} row_ror:8 row_mask:0xf bank_mask:0xc')
    for j in range(4):
        a(f'v_add_f32_dpp v{SS+j}, v{SS+j}, v{SS+j} row_half_mirror row_mask:0xf bank_mask:0x5')
    for j in range(4):
        a(f'v_add_f32_dpp v{SS+j}, v{SS+j+4}, v{SS+j+4} row_half_mirror row_mask:0xf bank_mask:0xa')
    a(f'v_and_b32 v{t0}, 15, v{V_L}')
    a(f'v_lshrrev_b32 v{t1}, 4, v{V_L}')
    a(f'v_and_b32 v{t2}, 3, v{V_L}')
    for qp in ('[3,2,1,0]', '[1,0,3,2]'):
        for j in range(4):
            a(f'v_add_f32_dpp v{SS+j}, v{SS+j}, v{SS+j} quad_perm:{qp} row_mask:0xf bank_mask:0xf')
    GQ = V_T + 4
    a(f'v_cmp_eq_u32 vcc, 1, v{t2}')
    a(f'v_cmp_eq_u32 s[84:85], 2, v{t2}')
    a(f'v_cmp_eq_u32 {sp(S_TMP2)}, 3, v{t2}')
    a(f'v_lshl_add_u32 v{t2}, v{t0}, 2, v{t1}')
    a(f'v_cndmask_b32 v{GQ}, v{SS}, v{SS+1}, vcc')
    a(f'v_cndmask_b32 v{GQ}, v{GQ}, v{SS+2}, s[84:85]')
    a(f'v_cndmask_b32 v{GQ}, v{GQ}, v{SS+3}, {sp(S_TMP2)}')
    a(f'v_mov_b32 v{GQ+2}, s{S_TAG}')
    a(f'v_mov_b32 v{GQ+3}, s{S_TAG}')
    a(f'v_mov_b32_dpp v{GQ+1}, v{GQ} row_ror:8 row_mask:0xf bank_mask:0xf')
    a(f's_lshl_b32 s{S_T}, s{S_WI}, 5')
    a(f'v_add_u32 v{t2}, s{S_T}, v{t2}')
    a(f'v_lshlrev_b32 v{t2}, 8, v{t2}')
    a(f's_lshl_b32 s{S_T}, s{S_RB}, 14')
    a(f's_lshl_b32 s{S_T2}, s{S_CB}, 5')
    a(f's_add_u32 s{S_T}, s{S_T}, s{S_T2}')
    a(f's_lshl_b32 s{S_T2}, s{S_WJ}, 4')
    a(f's_add_u32 s{S_T}, s{S_T}, s{S_T2}')
    a(f's_add_u32 s{S_T}, s{S_T}, {WS_ST}')
    a(f'v_cmp_gt_u32 vcc, 8, v{t0}')
    a(f's_and_saveexec_b64 {sp(S_TMP2)}, vcc')
    a(f'buffer_store_dwordx4 {vr(GQ,4)}, v{t2}, {srd(SRD_WS)}, s{S_T} offen sc1')
    a(f's_mov_b64 exec, {sp(S_TMP2)}')
    vm.issue('st', 1)
    if pf:
        a(f's_waitcnt vmcnt({vm.n_after("pf")})')

V_SA = 13
def e2_loads(a, vm):
    a(f'v_lshlrev_b32 v{V_SA}, 4, v{V_L}')
    a(f's_lshl_b32 s{S_T}, s{S_RB}, 14')
    a(f's_lshl_b32 s{S_T2}, s{S_WI}, 13')
    a(f's_add_u32 s{S_T}, s{S_T}, s{S_T2}')
    a(f's_add_u32 s{S_T}, s{S_T}, {WS_ST}')
    a(f'v_add_u32 v{V_SA}, s{S_T}, v{V_SA}')
    st_loads(a)
    vm.issue('stl', 8)

def st_loads(a):
    a(f's_movk_i32 s{S_T2}, 4096')
    for k in range(8):
        a(f'buffer_load_dwordx4 {vr(ST+4*k,4)}, v{V_SA}, {srd(SRD_WS)}, {"0" if k < 4 else "s%d" % S_T2} offen offset:{1024*(k&3)} sc1')

def e2_layernorm(a, opt, vm):
    a('; ---- LayerNorm hand-off')
    a(f's_mov_b32 s{S_CNT}, {SPIN_MAX}')
    a(f's_waitcnt vmcnt({vm.n_after("stl")})')
    a.lab('L_ln_check')
    a(f'v_and_b32 v{t0}, v{ST+2}, v{ST+3}')
    a(f'v_or_b32 v{t1}, v{ST+2}, v{ST+3}')
    for k in range(1, 8):
        a(f'v_and_b32 v{t0}, v{t0}, v{ST+4*k+2}')
        a(f'v_or3_b32 v{t1}, v{t1}, v{ST+4*k+2}, v{ST+4*k+3}')
        a(f'v_and_b32 v{t0}, v{t0}, v{ST+4*k+3}')
    a(f'v_cmp_ne_u32 vcc, s{S_TAG}, v{t0}')
    a(f'v_cmp_ne_u32 s[84:85], s{S_TAG}, v{t1}')
    a('s_or_b64 vcc, vcc, s[84:85]')
    a('s_cbranch_vccz L_ln_done')
    st_loads(a)
    a('s_waitcnt vmcnt(0)')
    a(f's_sub_u32 s{S_CNT}, s{S_CNT}, 1')
    a(f's_cmp_lg_u32 s{S_CNT}, 0')
    a('s_cbranch_scc1 L_ln_check')
    a.lab('L_ln_done')
    S_ = lambda k: ST + 4 * k
    Q_ = lambda k: ST + 4 * k + 1
    for k in range(8):
        a(f'v_add_f32_dpp v{S_(k)}, v{S_(k)}, v{S_(k)} row_ror:8 row_mask:0xf bank_mask:0x3')
    for k in range(8):
        a(f'v_add_f32_dpp v{S_(k)}, v{Q_(k)}, v{Q_(k)} row_ror:8 row_mask:0xf bank_mask:0xc')
    for k in range(4):
        a(f'v_add_f32_dpp v{S_(k)}, v{S_(k)}, v{S_(k)} row_half_mirror row_mask:0xf bank_mask:0x5')
    for k in range(4):
        a(f'v_add_f32_dpp v{S_(k)}, v{S_(k+4)}, v{S_(k+4)} row_half_mirror row_mask:0xf bank_mask:0xa')
    a(f'v_and_b32 v{t0}, 15, v{V_L}')
    a(f'v_lshrrev_b32 v{t1}, 4, v{V_L}')
    a(f'v_and_b32 v{t2}, 3, v{V_L}')
    for qp in ('[3,2,1,0]', '[1,0,3,2]'):
        for k in range(4):
            a(f'v_add_f32_dpp v{S_(k)}, v{S_(k)}, v{S_(k)} quad_perm:{qp} row_mask:0xf bank_mask:0xf')
    a(f'v_cmp_eq_u32 vcc, 1, v{t2}')
    a(f'v_cmp_eq_u32 s[84:85], 2, v{t2}')
    a(f'v_cmp_eq_u32 {sp(S_TMP2)}, 3, v{t2}')
    a(f'v_mul_u32_u24 v{t1}, 96, v{t1}')
    a(f'v_cndmask_b32 v{ST}, v{ST}, v{S_(1)}, vcc')
    a(f'v_cndmask_b32 v{ST}, v{ST}, v{S_(2)}, s[84:85]')
    a(f'v_cndmask_b32 v{ST}, v{ST}, v{S_(3)}, {sp(S_TMP2)}')
    a(f'v_mov_b32_dpp v{ST+1}, v{ST} row_ror:8 row_mask:0xf bank_mask:0xf')
    a(f'v_mul_f32 v{ST}, {hx(1/768)}, v{ST}')
    a(f'v_mul_f32 v{ST+1}, {hx(1/768)}, v{ST+1}')
    a(f'v_fma_f32 v{ST+1}, -v{ST}, v{ST}, v{ST+1}')
    a(f'v_max_f32 v{ST+1}, 0, v{ST+1}')
    a(f'v_cvt_pk_bf16_f32 v{ST+2}, v{ST}, v{ST+1}')
    a(f'v_lshlrev_b32 v{ST}, 16, v{ST+2}')
    a(f'v_and_b32 v{ST+1}, 0xffff0000, v{ST+2}')
    a(f'v_add_f32 v{ST+1}, {hx(1e-5)}, v{ST+1}')
    a(f'v_add_u32 v{t0}, v{t0}, v{t1}')
    a(f'v_cvt_pk_bf16_f32 v{ST+1}, v{ST+1}, v{ST+1}')
    a(f'v_and_b32 v{ST+1}, 0xffff0000, v{ST+1}')
    a(f'v_sqrt_f32 v{ST+1}, v{ST+1}')
    for j in range(8):
        a(f'v_mov_b32_dpp v{MM+j}, v{ST} row_newbcast:{j} row_mask:0xf bank_mask:0xf')
    a(f'v_cvt_pk_bf16_f32 v{ST+1}, v{ST+1}, v{ST+1}')
    a(f'v_and_b32 v{ST+1}, 0xffff0000, v{ST+1}')
    a(f'v_rcp_f32 v{ST+1}, v{ST+1}')
    a(f's_mul_i32 s{S_T}, s{S_WI}, 384')
    a(f's_mul_i32 s{S_T2}, s{S_WJ}, 48')
    a(f's_add_u32 s{S_T}, s{S_T}, s{S_T2}')
    a(f'v_add_u32 v{t0}, s{S_T}, v{t0}')
    a(f'v_lshlrev_b32 v{V_US}, 4, v{t0}')
    for j in range(8):
        a(f'v_mov_b32_dpp v{RR+j}, v{ST+1} row_newbcast:{j} row_mask:0xf bank_mask:0xf')
    a(f's_lshl_b32 s{S_T}, s{S_CB}, 5')
    a(f's_add_u32 s{S_T}, s{S_T}, s{S_RB}')
    a(f's_lshl_b32 s{S_FZA}, s{S_T}, 2')
    a(f's_add_u32 s{S_FZA}, s{S_FZA}, {WS_FZ}')
    a(f's_mul_i32 s{S_T}, s{S_T}, 12288')
    a(f's_add_u32 s{S_T}, s{S_T}, {WS_Z}')
    for phi in range(3):
        for tau in range(2):
            T = [V_T, V_T + 4]
            def both(f):
                for hh in range(2): a(f(ACC2 + 4 * (3 * tau + phi) + 2 * hh, T[hh], 4 * tau + 2 * hh, hh))
            both(lambda c, t, r, hh: f'v_lshlrev_b32 v{t}, 16, v{c}')
            both(lambda c, t, r, hh: f'v_and_b32 v{t+1}, 0xffff0000, v{c}')
            both(lambda c, t, r, hh: f'v_pk_add_f32 {vr(t,2)}, {vr(t,2)}, {vr(MM+r,2)} neg_lo:[0,1] neg_hi:[0,1]')
            both(lambda c, t, r, hh: f'v_cvt_pk_bf16_f32 v{t+2}, v{t}, v{t+1}')
            both(lambda c, t, r, hh: f'v_lshlrev_b32 v{t}, 16, v{t+2}')
            both(lambda c, t, r, hh: f'v_and_b32 v{t+1}, 0xffff0000, v{t+2}')
            both(lambda c, t, r, hh: f'v_pk_mul_f32 {vr(t,2)}, {vr(t,2)}, {vr(RR+r,2)}')
            both(lambda c, t, r, hh: f'v_cvt_pk_bf16_f32 v{ZQ+4*phi+2*tau+hh}, v{t}, v{t+1}')
        a(f'buffer_store_dwordx4 {vr(ZQ+4*phi,4)}, v{V_US}, {srd(SRD_WS)}, s{S_T} offen offset:{256*phi} sc1')
    vm.issue('z', 3)
```

```python
import numpy as np
from gen import *
import gen as _g
_stamp0 = stamp
PST = {'start': None}
def stamp(a, i, base=18):
    if PST['start'] is not None and i not in (0, 15): return
    if PST.get('clk') and _g.PROF['on']:
        m = {1: 3, 2: 4, 9: 5, 10: 6, 0: 7, 15: 8}
        if i in (3, 4, 5, 6, 7, 8): return
        if i in m:
            a('s_memtime s[14:15]')
            a('s_waitcnt lgkmcnt(0)')
            a(f's_mov_b32 s{base+m[i]}, s14')
    _stamp0(a, i, base)
def sstamp(a, stage):
    if PST['start'] is None: return
    k = stage - PST['start']
    if 0 <= k < 14: _stamp0(a, 1 + k)

SLOT = 20480
BOFF = 8192
S_RB, S_CB, S_WI, S_WJ = 82, 83, 86, 87
S_KC, S_AO, S_BO, S_T, S_T2, S_CNT = 88, 89, 90, 91, 92, 93
S_ABASE, S_BBASE = 94, 95
S_M_A, S_M_B, S_M_C = 3, 4, 5
S_K1 = 6
S_ONE = 8
S_KC0 = 10
S_FZA = 11
S_TMP2 = 12
S_WOB = 76
S_ROT = 78
CTR = 19456
V_L = 1
V_AD = 2
V_BD = 4
V_AR = 7
V_BR = 11
V_UR, V_US = 13, 14
V_T = 16
ACC2, ACC1, WF, XF = 24, 48, 72, 96
t0, t1, t2, t3 = V_T, V_T + 1, V_T + 2, V_T + 3
ST, MM, RR, ZQ, BSP, K0V = 96, 112, 120, 128, 140, 142
LN = 3 * SLOT

class VM:
    def __init__(self): self.ops = []
    def issue(self, tag, n=1): self.ops += [tag] * n
    def n_after(self, tag):
        idx = max(i for i, t in enumerate(self.ops) if t == tag)
        return len(self.ops) - 1 - idx

def gelu2(a, cs, k0v, after):
    T = [V_T, V_T + 4]
    def both(f):
        for c, t in zip(cs, T): a(f(c, t))
    both(lambda c, t: f'v_cvt_pk_bf16_f32 v{t+2}, v{c}, v{c+1}')
    both(lambda c, t: f'v_lshlrev_b32 v{t}, 16, v{t+2}')
    both(lambda c, t: f'v_and_b32 v{t+1}, 0xffff0000, v{t+2}')
    both(lambda c, t: f'v_pk_mul_f32 {vr(t+2,2)}, {vr(t,2)}, {vr(t,2)}')
    both(lambda c, t: f'v_pk_fma_f32 {vr(t+2,2)}, {vr(t+2,2)}, {sp(S_K1)}, {vr(k0v,2)}')
    both(lambda c, t: f'v_pk_mul_f32 {vr(t+2,2)}, {vr(t+2,2)}, {vr(t,2)}')
    both(lambda c, t: f'v_exp_f32 v{t+2}, v{t+2}')
    both(lambda c, t: f'v_exp_f32 v{t+3}, v{t+3}')
    both(lambda c, t: f'v_pk_add_f32 {vr(t+2,2)}, {vr(t+2,2)}, {sp(S_ONE)}')
    both(lambda c, t: f'v_rcp_f32 v{t+2}, v{t+2}')
    both(lambda c, t: f'v_rcp_f32 v{t+3}, v{t+3}')
    both(lambda c, t: f'v_pk_mul_f32 {vr(t+2,2)}, {vr(t+2,2)}, {vr(t,2)}')
    steps = [after(c, t) for c, t in zip(cs, T)]
    for x, y in zip(*steps):
        a(x); a(y)

def gelu_packed(regs, k0v):
    T = [V_T, V_T + 4]
    L = []
    def both(f):
        for c, t in zip(regs, T): L.append(f(c, t))
    both(lambda c, t: f'v_lshlrev_b32 v{t}, 16, v{c}')
    both(lambda c, t: f'v_and_b32 v{t+1}, 0xffff0000, v{c}')
    both(lambda c, t: f'v_pk_mul_f32 {vr(t+2,2)}, {vr(t,2)}, {vr(t,2)}')
    both(lambda c, t: f'v_pk_fma_f32 {vr(t+2,2)}, {vr(t+2,2)}, {sp(S_K1)}, {vr(k0v,2)}')
    both(lambda c, t: f'v_pk_mul_f32 {vr(t+2,2)}, {vr(t+2,2)}, {vr(t,2)}')
    both(lambda c, t: f'v_exp_f32 v{t+2}, v{t+2}')
    both(lambda c, t: f'v_exp_f32 v{t+3}, v{t+3}')
    both(lambda c, t: f'v_pk_add_f32 {vr(t+2,2)}, {vr(t+2,2)}, {sp(S_ONE)}')
    both(lambda c, t: f'v_rcp_f32 v{t+2}, v{t+2}')
    both(lambda c, t: f'v_rcp_f32 v{t+3}, v{t+3}')
    both(lambda c, t: f'v_pk_mul_f32 {vr(t+2,2)}, {vr(t+2,2)}, {vr(t,2)}')
    both(lambda c, t: f'v_cvt_pk_bf16_f32 v{c}, v{t+2}, v{t+3}')
    return L

def flag_store(a, sreg, vtmp):
    a(f'v_mov_b32 v{vtmp}, s{S_TAG}')
    a(f's_mov_b64 {sp(S_TMP2)}, exec')
    a('s_mov_b64 exec, 1')
    a(f'buffer_store_dword v{vtmp}, off, {srd(SRD_WS)}, s{sreg} sc1')
    a(f's_mov_b64 exec, {sp(S_TMP2)}')

def gemm_role(a, opt):
    vm = VM()
    PST['start'] = opt.get('pst')
    PST['clk'] = opt.get('clk')
    stop = opt.get('stop', 99)
    OC = {0: '', 1: 'sc1', 2: 'nt', 3: 'sc0 sc1'}[opt.get('oc', 0)]
    LNS = opt.get('lns', 16)
    LDS_ = opt.get('lds', 15)
    FZS = opt.get('fzs', 1)
    assert LNS + FZS <= 19 and 13 <= LDS_ < LNS
    c0 = np.sqrt(2 / np.pi)
    k0 = -2 * c0 * LOG2E; k1 = k0 * 0.044715
    a(f's_setprio {opt.get("prio", 2)}')
    if opt.get('tk', 0):
        CT = 20480 - 64
        a(f's_cmp_lg_u32 s{S_W}, 0')
        a('s_cbranch_scc1 L_tk_wait')
        mk_srd(a, SRD_X, P_DBG, 256)
        a(f's_getreg_b32 s{S_T}, hwreg(HW_REG_XCC_ID, 0, 3)')
        a(f's_mov_b64 {sp(S_TMP2)}, exec')
        a('s_mov_b64 exec, 1')
        a(f's_mov_b32 s{S_KC}, 8')
        a.lab('L_tk_try')
        a('v_mov_b32 v2, 1')
        a(f's_lshl_b32 s{S_CNT}, s{S_T}, 5')
        a(f'buffer_atomic_add v2, off, {srd(SRD_X)}, s{S_CNT} sc0 sc1')
        a('s_waitcnt vmcnt(0)')
        a(f'v_readfirstlane_b32 s{S_T2}, v2')
        a(f's_cmp_lt_u32 s{S_T2}, 32')
        a('s_cbranch_scc1 L_tk_got')
        a(f's_add_u32 s{S_T}, s{S_T}, 1')
        a(f's_and_b32 s{S_T}, s{S_T}, 7')
        a(f's_sub_u32 s{S_KC}, s{S_KC}, 1')
        a(f's_cmp_lg_u32 s{S_KC}, 0')
        a('s_cbranch_scc1 L_tk_try')
        a.lab('L_tk_got')
        a(f's_lshl_b32 s{S_T2}, s{S_T2}, 3')
        a(f's_or_b32 s{S_T2}, s{S_T2}, s{S_T}')
        a(f'v_mov_b32 v2, s{S_T2}')
        a(f'v_mov_b32 v3, {CT}')
        a('ds_write_b32 v3, v2')
        a('s_waitcnt lgkmcnt(0)')
        a(f's_mov_b64 exec, {sp(S_TMP2)}')
        a.lab('L_tk_wait')
        a('s_barrier')
        a(f'v_mov_b32 v3, {CT}')
        a('ds_read_b32 v2, v3')
        a('s_waitcnt lgkmcnt(0)')
        a(f'v_readfirstlane_b32 s{S_CNT}, v2')
        a('s_barrier')
        a(f's_and_b32 s{S_T}, s{S_CNT}, 7')
        a(f's_lshr_b32 s{S_T2}, s{S_CNT}, 3')
        a(f's_and_b32 s{S_T2}, s{S_T2}, 31')
    else:
        a(f's_and_b32 s{S_T}, s2, 7')
        a(f's_lshr_b32 s{S_T2}, s2, 3')
    a(f's_lshr_b32 s{S_RB}, s{S_T}, 1')
    a(f's_lshl_b32 s{S_RB}, s{S_RB}, 3')
    a(f's_lshr_b32 s{S_CNT}, s{S_T2}, 2')
    a(f's_add_u32 s{S_RB}, s{S_RB}, s{S_CNT}')
    a(f's_and_b32 s{S_CB}, s{S_T}, 1')
    a(f's_lshl_b32 s{S_CB}, s{S_CB}, 2')
    a(f's_and_b32 s{S_CNT}, s{S_T2}, 3')
    a(f's_add_u32 s{S_CB}, s{S_CB}, s{S_CNT}')
    a(f's_lshr_b32 s{S_WI}, s{S_W}, 1')
    a(f's_and_b32 s{S_WJ}, s{S_W}, 1')
    a(f's_mul_i32 s{S_KC}, s{S_CB}, 3')
    a(f's_add_u32 s{S_KC}, s{S_KC}, s{S_RB}')
    a(f's_mul_i32 s{S_T}, s{S_KC}, 205')
    a(f's_lshr_b32 s{S_T}, s{S_T}, 11')
    a(f's_mul_i32 s{S_T}, s{S_T}, 10')
    a(f's_sub_u32 s{S_KC}, s{S_KC}, s{S_T}')
    if opt.get('rot1', 0) == 3: a(f's_mov_b32 s{S_KC}, s{S_CB}')
    a(f's_mov_b32 s{S_KC0}, s{S_KC}')
    if opt.get('rot1') == 1: a(f's_mov_b32 s{S_KC}, 0')
    if opt.get('rot1') == 2:
        a(f's_lshr_b32 s{S_KC}, s{S_RB}, 3')
    a(f's_lshl_b32 s{S_M_A}, s{S_W}, 11')
    a(f's_mul_i32 s{S_M_B}, s{S_W}, 3072')
    a(f's_add_u32 s{S_M_B}, s{S_M_B}, {BOFF}')
    a(f's_mul_i32 s{S_ABASE}, s{S_RB}, {64*1280}')
    a(f's_mul_i32 s{S_BBASE}, s{S_CB}, 192')
    a(f's_add_u32 s{S_BBASE}, s{S_BBASE}, 1536')
    def row_dma_offsets(pitch):
        a(f'v_lshrrev_b32 v{t0}, 3, v{V_L}')
        a(f'v_and_b32 v{t1}, 7, v{V_L}')
        a(f'v_bfe_u32 v{t2}, v{V_L}, 4, 1')
        a(f'v_xor_b32 v{t1}, v{t1}, v{t2}')
        a(f's_lshl_b32 s{S_T}, s{S_W}, 4')
        a(f'v_add_u32 v{t0}, s{S_T}, v{t0}')
        a(f'v_mul_u32_u24 v{t0}, {pitch}, v{t0}')
        a(f's_lshl_b32 s{S_T}, s{S_WJ}, 2')
        a(f'v_xor_b32 v{t1}, s{S_T}, v{t1}')
        a(f'v_lshl_add_u32 v{V_AD}, v{t1}, 4, v{t0}')
        a(f'v_xor_b32 v{t1}, 2, v{t1}')
        a(f'v_lshl_add_u32 v{V_AD+1}, v{t1}, 4, v{t0}')
        a(f'v_add_u32 v{V_AD+1}, {8*pitch-1024}, v{V_AD+1}')
    row_dma_offsets(1280)
    def run_units(units, track=True):
        for (lines, tag) in units:
            for l in lines: a(l)
            if track: vm.issue(tag, 1)
    def dma_p1_A(stage, kc=None):
        slot = (stage & 3) * SLOT
        return [([f's_lshl_b32 s{S_AO}, s{S_KC}, 7', f's_add_u32 s{S_AO}, s{S_AO}, s{S_ABASE}', f's_add_u32 m0, s{S_M_A}, {slot}',
                  f'buffer_load_dwordx4 v{V_AD}, {srd(SRD_X)}, s{S_AO} offen lds'], ('A', stage)),
                ([f'buffer_load_dwordx4 v{V_AD+1}, {srd(SRD_X)}, s{S_AO} offen offset:1024 lds'], ('A', stage))]
    def dma_p1_B(stage):
        slot = (stage & 3) * SLOT
        U = []
        pre = [f's_mul_i32 s{S_BO}, s{S_KC}, {64*3072}', f's_add_u32 s{S_BO}, s{S_BO}, s{S_BBASE}', f's_add_u32 m0, s{S_M_B}, {slot}', f's_add_u32 s{S_KC}, s{S_KC}, 1']
        for j in range(3):
            L = (pre if j == 0 else []) + [f'buffer_load_dwordx4 v{V_BD+j}, {srd(SRD_WIN)}, s{S_BO} offen offset:{1024*j} lds']
            if j == 2:
                L += [f's_cmp_eq_u32 s{S_KC}, 10', f's_cselect_b32 s{S_KC}, 0, s{S_KC}']
                if stage == 9: L += [f's_sub_u32 s{S_BBASE}, s{S_BBASE}, 1536']
            U.append((L, ('B', stage)))
        return U
    def dma_p1(stage): return (dma_p1_A(stage) if stage < 10 else []) + dma_p1_B(stage)
    a(f's_mul_i32 s{S_T}, s{S_W}, 192')
    for j in range(3):
        a(f'v_add_u32 v{t0}, s{S_T}, v{V_L}')
        if j: a(f'v_add_u32 v{t0}, {64*j}, v{t0}')
        a(f'v_mul_u32_u24 v{t1}, 43691, v{t0}')
        a(f'v_lshrrev_b32 v{t1}, 19, v{t1}')
        a(f'v_mul_u32_u24 v{t2}, 12, v{t1}')
        a(f'v_sub_u32 v{t0}, v{t0}, v{t2}')
        a(f'v_bfe_u32 v{t2}, v{t1}, 3, 1')
        a(f'v_mad_u32_u24 v{t0}, v{t2}, 6, v{t0}')
        a(f'v_subrev_u32 v{t2}, 12, v{t0}')
        a(f'v_min_u32 v{t0}, v{t0}, v{t2}')
        a(f'v_mul_u32_u24 v{t1}, 3072, v{t1}')
        a(f'v_lshl_add_u32 v{V_BD+j}, v{t0}, 4, v{t1}')
        if j: a(f'v_subrev_u32 v{V_BD+j}, {1024*j}, v{V_BD+j}')
    a('s_waitcnt lgkmcnt(0)')
    stamp(a, 0)
    mk_srd(a, SRD_X, P_U, 2048 * 640 * 2)
    mk_srd(a, SRD_WIN, P_WIN, 640 * 1536 * 2)
    NP0 = opt.get('np0', 4)
    for s in range(0, NP0): run_units(dma_p1(s))
    mk_srd(a, SRD_WSP, P_WSP, 2048 * 2048 * 2)
    mk_srd(a, SRD_OUT, P_OUT, 2048 * 640 * 2)
    PAT7 = ([-1, -1, 9, 9], [-1, 9, 9])
    PAT = {5: ([0, 2, 4], [1, 3]), 3: ([1, 4], [2]), 2: ([1], [2]), 0: ([], [])}
    if opt.get('pat') == 1: PAT = {5: ([9, 9, 9], [9, 9]), 3: ([9, 9], [9]), 2: ([9], [9]), 0: ([], [])}
    if opt.get('pat') == 2: PAT = {5: ([9, 9, 9, 9, 9], []), 3: ([9, 9, 9], []), 2: ([9, 9], []), 0: ([], [])}
    if opt.get('pat', 3) == 3: PAT = {5: ([-1, -1, 9], [-1, 9]), 3: ([-1, 9], [9]), 2: ([9], [9]), 0: ([], [])}
    def with_units(mf_lines, pos_units, track=True):
        for (p, u) in pos_units:
            if p < 0: run_units([u], track)
        for i, l in enumerate(mf_lines):
            a(l)
            for (p, u) in pos_units:
                if p == i: run_units([u], track)
        for (p, u) in pos_units:
            if p >= len(mf_lines): run_units([u], track)
    def split_units(U):
        first, second = PAT[len(U)] if len(U) in PAT else PAT7 if len(U) == 7 else ([-1, 9], [-1, 9]) if len(U) == 4 else ([-1, -1] + [9] * (len(U) - 2), [])
        return list(zip(first, U[:len(first)])), list(zip(second, U[len(first):]))
    def lane_mq():
        a(f'v_and_b32 v{t0}, 15, v{V_L}')
        a(f'v_lshrrev_b32 v{t1}, 4, v{V_L}')
    lane_mq()
    a(f'v_lshrrev_b32 v{t2}, 2, v{t0}')
    a(f'v_lshlrev_b32 v{t3}, 3, v{t2}')
    a(f'v_and_b32 v{V_AR}, 3, v{t0}')
    a(f'v_add_u32 v{t3}, v{t3}, v{V_AR}')
    a(f's_lshl_b32 s{S_T}, s{S_WI}, 5')
    a(f'v_add_u32 v{t3}, s{S_T}, v{t3}')
    a(f'v_lshlrev_b32 v{t3}, 7, v{t3}')
    a(f'v_lshlrev_b32 v{t2}, 1, v{t2}')
    a(f'v_bfe_u32 v{V_AR}, v{t0}, 1, 1')
    a(f'v_or_b32 v{t2}, v{t2}, v{V_AR}')
    a(f'v_xor_b32 v{t2}, v{t2}, v{t1}')
    a(f'v_lshl_add_u32 v{V_AR}, v{t2}, 4, v{t3}')
    a(f'v_xor_b32 v{V_AR+1}, 64, v{V_AR}')
    a(f'v_add_u32 v{V_AR+2}, {2*SLOT}, v{V_AR}')
    a(f'v_add_u32 v{V_AR+3}, {2*SLOT}, v{V_AR+1}')
    a(f'v_lshrrev_b32 v{t2}, 2, v{t0}')
    a(f'v_lshl_add_u32 v{t2}, v{t1}, 3, v{t2}')
    a(f'v_mul_u32_u24 v{t2}, 192, v{t2}')
    a(f'v_and_b32 v{t3}, 1, v{t1}')
    a(f'v_xor_b32 v{t3}, s{S_WJ}, v{t3}')
    a(f'v_mul_u32_u24 v{t3}, 96, v{t3}')
    a(f'v_add_u32 v{t2}, v{t2}, v{t3}')
    a(f'v_and_b32 v{t3}, 3, v{V_L}')
    a(f'v_lshl_add_u32 v{V_BR}, v{t3}, 3, v{t2}')
    a(f'v_add_u32 v{V_BR}, {BOFF}, v{V_BR}')
    a(f'v_add_u32 v{V_BR+1}, {2*SLOT}, v{V_BR}')
    a(f'v_lshrrev_b32 v{t2}, 2, v{t0}')
    a(f'v_lshl_add_u32 v{t3}, v{t1}, 3, v{t2}')
    a(f'v_lshlrev_b32 v{V_UR}, 7, v{t3}')
    a(f'v_lshrrev_b32 v{t2}, 1, v{t2}')
    a(f'v_lshl_or_b32 v{t2}, v{t1}, 1, v{t2}')
    a(f'v_bfe_u32 v{t3}, v{V_L}, 1, 1')
    a(f's_lshl_b32 s{S_T}, s{S_W}, 1')
    a(f'v_add_u32 v{t3}, s{S_T}, v{t3}')
    a(f'v_xor_b32 v{t3}, v{t3}, v{t2}')
    a(f'v_lshl_add_u32 v{V_UR}, v{t3}, 4, v{V_UR}')
    a(f'v_and_b32 v{t3}, 1, v{V_L}')
    a(f'v_lshl_add_u32 v{V_UR}, v{t3}, 3, v{V_UR}')
    a(f's_lshl_b32 s{S_T}, s{S_W}, 4')
    a(f'v_add_u32 v{V_US}, s{S_T}, v{t0}')
    a(f'v_lshlrev_b32 v{V_US}, 12, v{V_US}')
    a(f'v_lshl_add_u32 v{V_US}, v{t1}, 4, v{V_US}')
    a(f's_mov_b32 s{S_K1}, {hx(k1)}')
    a(f's_mov_b32 s{S_K1+1}, {hx(k1)}')
    a(f's_mov_b32 s{S_ONE}, 1.0')
    a(f's_mov_b32 s{S_ONE+1}, 1.0')
    for s in range(NP0, 4): run_units(dma_p1(s))
    mk_srd(a, SRD_WS, P_WS, WS_SIZE)
    a(f'buffer_load_dword v15, off, {srd(SRD_WS)}, 0 sc1')
    vm.issue('epoch')
    T1 = opt.get('t1', 0)
    if T1:
        a(f's_lshl_b32 s{S_T}, s{S_RB}, 18')
        a(f's_and_b32 s{S_T2}, s{S_CB}, {3 if T1 == 2 else 7}')
        a(f's_lshl_b32 s{S_T2}, s{S_T2}, {16 if T1 == 2 else 15}')
        a(f's_add_u32 s{S_T}, s{S_T}, s{S_T2}')
        a(f's_mul_i32 s{S_T2}, s{S_W}, {T1*8192}')
        a(f's_add_u32 s{S_T}, s{S_T}, s{S_T2}')
        a(f'v_lshlrev_b32 v{t0}, 7, v{V_L}')
        for j in range(T1):
            a(f'buffer_load_dword v0, v{t0}, {srd(SRD_WSP)}, s{S_T} offen')
            a(f's_add_u32 s{S_T}, s{S_T}, 8192')
            vm.issue('t1', 1)

    def ar(stage, ks): return V_AR + ks + (2 if (stage & 2) else 0)
    def so(stage): return (stage & 1) * SLOT
    def br(stage): return V_BR + (1 if (stage & 2) else 0)
    def reads_p1(stage, ks):
        n = 0
        if stage < 10:
            for tau in range(2):
                a(f'ds_read_b128 {vr(XF+16*stage+8*ks+4*tau,4)}, v{ar(stage,ks)} offset:{so(stage)+512*tau}'); n += 1
        for phi in range(3):
            for half in range(2):
                a(f'ds_read_b64_tr_b16 {vr(WF+12*ks+4*phi+2*half,2)}, v{br(stage)} offset:{so(stage)+6144*ks+768*half+32*phi}'); n += 1
        return n
    def mfma_p1(stage, ks):
        i = stage % 10
        L = []
        for tau in range(2):
            for phi in range(3):
                x = vr(XF + 16 * i + 8 * ks + 4 * tau, 4); w = vr(WF + 12 * ks + 4 * phi, 4)
                if stage < 10:
                    c = vr(ACC2 + 4 * (3 * tau + phi), 4)
                    L.append(f'v_mfma_f32_16x16x32_bf16 {c}, {x}, {w}, {c if (i or ks) else 0}')
                else:
                    c = vr(ACC1 + 4 * (2 * phi + tau), 4)
                    L.append(f'v_mfma_f32_16x16x32_bf16 {c}, {w}, {x}, {c if (i or ks) else 0}')
        return L
    def dma_p2_A(stage):
        slot = (stage & 3) * SLOT
        return [([f's_lshl_b32 s{S_AO}, s{S_KC}, 7', f's_add_u32 s{S_AO}, s{S_AO}, s{S_ABASE}', f's_add_u32 m0, s{S_M_A}, {slot}', f's_add_u32 s{S_KC}, s{S_KC}, 1',
                  f'buffer_load_dwordx4 v{V_AD}, {srd(SRD_WSP)}, s{S_AO} offen lds'], ('A', stage)),
                ([f'buffer_load_dwordx4 v{V_AD+1}, {srd(SRD_WSP)}, s{S_AO} offen offset:1024 lds', f's_and_b32 s{S_KC}, s{S_KC}, 31'], ('A', stage))]
    S_KZ = S_KC0
    def dma_p2_B(stage):
        slot = (stage & 3) * SLOT
        U = []
        for j in range(3):
            L = [f's_mul_i32 s{S_BO}, s{S_KZ}, 12288', f's_add_u32 s{S_BO}, s{S_BO}, s{S_BBASE}', f's_add_u32 m0, s{S_M_B}, {slot}', f's_add_u32 s{S_KZ}, s{S_KZ}, 1'] if j == 0 else []
            L += [f'buffer_load_dwordx4 v{V_BD}, {srd(SRD_WS)}, s{S_BO} offen offset:{1024*j} sc1 lds']
            if j == 2: L += [f's_and_b32 s{S_KZ}, s{S_KZ}, 31']
            U.append((L, ('B', stage)))
        return U
    def rot2(dst):
        m = opt.get('rot2', 1)
        if m == 1:
            a(f's_lshl_b32 s{dst}, s{S_CB}, 3')
            a(f's_add_u32 s{dst}, s{dst}, s{S_RB}')
        elif m == 2:
            a(f's_lshl_b32 s{dst}, s{S_CB}, 1')
            a(f's_add_u32 s{dst}, s{dst}, s{S_RB}')
            a(f's_lshl_b32 s{dst}, s{dst}, 2')
        elif m == 3:
            a(f's_lshl_b32 s{dst}, s{S_CB}, 1')
            a(f's_add_u32 s{dst}, s{dst}, s{S_RB}')
            a(f's_lshl_b32 s{dst}, s{dst}, 2')
            a(f's_lshr_b32 s{S_T2}, s{S_RB}, 3')
            a(f's_add_u32 s{dst}, s{dst}, s{S_T2}')
        elif m == 4:
            a(f's_mov_b32 s{dst}, s{S_RB}')
        elif m == 5:
            a(f's_and_b32 s{dst}, s{S_RB}, 24')
        a(f's_and_b32 s{dst}, s{dst}, 31')
    def ut_chunk(extra):
        if extra:
            a(f's_add_u32 s{S_T}, s{S_KC0}, {extra}')
            a(f's_sub_u32 s{S_T2}, s{S_T}, 10')
            a(f's_min_u32 s{S_T}, s{S_T}, s{S_T2}')
        else:
            a(f's_mov_b32 s{S_T}, s{S_KC0}')
    V_A4 = 144
    def wsp_setup():
        a(f'v_lshrrev_b32 v{t0}, 3, v{V_L}')
        a(f'v_lshlrev_b32 v{t0}, 12, v{t0}')
        a(f'v_and_b32 v{t1}, 7, v{V_L}')
        a(f'v_bfe_u32 v{t2}, v{V_L}, 4, 1')
        a(f'v_xor_b32 v{t1}, v{t1}, v{t2}')
        for j in range(4):
            a(f'v_xor_b32 v{t2}, {2*j}, v{t1}')
            a(f'v_lshl_add_u32 v{VA4(j)}, v{t2}, 4, v{t0}')
            if j: a(f'v_add_u32 v{VA4(j)}, {8*j*4096-1024*j}, v{VA4(j)}')
        a(f's_lshl_b32 s{S_ABASE}, s{S_RB}, 18')
        a(f's_mul_i32 s{S_M_A}, s{S_W}, {SLOT}')
        rot2(S_KA)
        a(f's_add_u32 s{S_KA}, s{S_KA}, s{S_W}')
    def VA4(j): return (V_AD, V_AD + 1, V_UR + 0 if False else 15, 0)[j]
    S_KA = S_M_C
    def adma(par):
        U = []
        for gq in range(8):
            L = []
            if gq == 0:
                L += [f's_and_b32 s{S_KA}, s{S_KA}, {3 if opt.get("x_same") else 31}', f's_lshl_b32 s{S_A2}, s{S_KA}, 7', f's_add_u32 s{S_A2}, s{S_A2}, s{S_ABASE}', f's_add_u32 s{S_KA}, s{S_KA}, 4']
            if gq == 4:
                L += [f's_add_u32 s{S_A2}, s{S_A2}, 131072']
            L += [f's_add_u32 m0, s{S_M_A}, {8192*par+4096*(gq>>2)}']
            L += [f'buffer_load_dwordx4 v{VA4(gq&3)}, {srd(SRD_WSP)}, s{S_A2} offen offset:{1024*(gq&3)} lds']
            U.append((L, ('A2', par)))
        return U
    S_A2 = 77
    U2 = 8 if opt.get('rot1', 0) == 3 else 4
    UT = V_T
    pend = []
    a(f's_waitcnt vmcnt({vm.n_after(("B", 0))})')
    a('s_barrier')
    stamp(a, 1)
    reads_p1(0, 0)
    for s in range(20):
        if s == 10:
            stamp(a, 2)
            e1_z2(a, opt, vm, k0)
            stamp(a, 3)
        if s == LDS_:
            e2_loads(a, vm)
        if s == LNS:
            stamp(a, 4)
            e2_layernorm(a, opt, vm)
            if opt.get('kd') == 2 or opt.get('cg') == 3:
                a(f's_cmp_lg_u32 s{S_W}, 3')
                a('s_cbranch_scc1 L_fs2_skip')
                a(f's_lshl_b32 s{S_T}, s2, 2')
                a(f's_add_u32 s{S_T}, s{S_T}, {WS_FS+1024}')
                flag_store(a, S_T, 18)
                a.lab('L_fs2_skip')
            stamp(a, 5)
        n1 = reads_p1(s, 1)
        ut = s in (0, U2)
        if ut:
            if s == U2:
                a(f's_cmp_ge_u32 s{S_CB}, 2')
                a('s_cbranch_scc1 L_ut2_skip')
            for h2 in range(2):
                for half in range(2):
                    a(f'ds_read_b64_tr_b16 {vr(UT+4*h2+2*half,2)}, v{V_UR} offset:{(s&3)*SLOT+4096*h2+512*half}')
            if s == U2:
                a.lab('L_ut2_skip')
        a(f's_waitcnt lgkmcnt({n1+4 if s == 0 else n1})')
        with_units(mfma_p1(s, 0), pend); pend = []
        if s < 19:
            n = vm.n_after(('B', s + 1))
            if s == LNS + FZS: n = min(n, vm.n_after('z'))
            a(f's_waitcnt vmcnt({n}) lgkmcnt(0)')
        elif s == LNS + FZS:
            a(f's_waitcnt vmcnt({vm.n_after("z")}) lgkmcnt(0)')
        else:
            a('s_waitcnt lgkmcnt(0)')
        a('s_barrier')
        sstamp(a, s)
        if ut:
            if s == U2:
                a(f's_cmp_ge_u32 s{S_CB}, 2')
                a('s_cbranch_scc1 L_us2_skip')
            ut_chunk(s)
            a(f's_lshl_b32 s{S_T}, s{S_T}, 18')
            a(f's_lshl_b32 s{S_T2}, s{S_RB}, 7')
            a(f's_add_u32 s{S_T}, s{S_T}, s{S_T2}')
            a(f's_add_u32 s{S_T}, s{S_T}, {WS_UT}')
            for h2 in range(2):
                a(f'buffer_store_dwordx4 {vr(UT+4*h2,4)}, v{V_US}, {srd(SRD_WS)}, s{S_T} offen offset:{64*h2} sc1')
            if s == U2:
                a.lab('L_us2_skip')
            else:
                vm.issue('ut0', 2)
        if s == 3:
            a(f'v_readfirstlane_b32 s{S_TAG}, v15')
            a(f's_add_u32 s{S_TAG}, s{S_TAG}, 1')
        if s in (3, U2 + 3):
            a(f's_cmp_lg_u32 s{S_W}, 0')
            a(f's_cbranch_scc1 L_fu{s}_skip')
            if s == U2 + 3:
                a(f's_cmp_ge_u32 s{S_CB}, 2')
                a(f's_cbranch_scc1 L_fu{s}_skip')
            ut_chunk(s - 3)
            a(f's_lshl_b32 s{S_T}, s{S_T}, 5')
            a(f's_add_u32 s{S_T}, s{S_T}, s{S_RB}')
            a(f's_lshl_b32 s{S_T}, s{S_T}, 2')
            a(f's_add_u32 s{S_T}, s{S_T}, {WS_FU}')
            flag_store(a, S_T, V_T)
            a.lab(f'L_fu{s}_skip')
        if s == LNS + FZS:
            a(f's_cmp_lg_u32 s{S_W}, 0')
            a('s_cbranch_scc1 L_fz_skip')
            flag_store(a, S_FZA, V_T)
            a.lab('L_fz_skip')
            stamp(a, 6)
        if s + 4 < 20:
            U = dma_p1(s + 4)
        else:
            U = []
        if s == min(12, opt.get('a0s', 13)):
            wsp_setup()
        A0S = opt.get('a0s', 13)
        if A0S == 9:
            if s == 9: U = U + adma(0)
        elif s in (A0S, A0S + 1):
            U = U + adma(0)[4 * (s - A0S): 4 * (s - A0S) + 4]
        TP = opt.get('tp', 0)
        if TP:
            T0, TS = opt.get('tp0', 3), opt.get('tps', 4)
            for j in range(TP):
                for w in range(4):
                    if s == T0 + TS * j + (w * TS) // 4:
                        a(f's_cmp_lg_u32 s{S_W}, {w}')
                        a(f's_cbranch_scc1 L_tp{j}_{w}')
                        a(f's_lshl_b32 s{S_T}, s{S_RB}, 18')
                        a(f's_and_b32 s{S_T2}, s{S_CB}, {3 if TP == 2 else 7}')
                        a(f's_lshl_b32 s{S_T2}, s{S_T2}, {16 if TP == 2 else 15}')
                        a(f's_add_u32 s{S_T}, s{S_T}, s{S_T2}')
                        a(f's_add_u32 s{S_T}, s{S_T}, {(TP * w + j) * 8192}')
                        a(f'v_lshlrev_b32 v0, 7, v{V_L}')
                        a(f'buffer_load_dword v0, v0, {srd(SRD_WSP)}, s{S_T} offen')
                        a.lab(f'L_tp{j}_{w}')
        now, pend = split_units(U)
        if s + 1 in (10, LNS, 20):
            now = now + [(99, u) for (_, u) in pend]; pend = []
        if s < 19:
            reads_p1(s + 1, 0)
        with_units(mfma_p1(s, 1), now)
    stamp(a, 7)
    run_units(adma(1))
    V_PA = 141
    rot2(S_ROT)
    a(f's_add_u32 s{S_T}, s{S_ROT}, s{S_W}')
    a(f'v_lshl_add_u32 v{V_PA}, v{V_L}, 2, s{S_T}')
    a(f'v_and_b32 v{V_PA}, 31, v{V_PA}')
    a(f'v_lshlrev_b32 v{V_PA}, 2, v{V_PA}')
    a(f's_lshl_b32 s{S_T}, s{S_CB}, 7')
    a(f's_add_u32 s{S_T}, s{S_T}, {WS_FZ}')
    a(f'v_add_u32 v{V_PA}, s{S_T}, v{V_PA}')
    if opt.get('no_side') != 1:
        a(f'v_subrev_u32 v{t0}, 8, v{V_L}')
        a(f'v_min_u32 v{t0}, 5, v{t0}')
        a(f's_mul_i32 s{S_T}, s{S_CB}, 24')
        a(f's_mul_i32 s{S_T2}, s{S_W}, 6')
        a(f's_add_u32 s{S_T}, s{S_T}, s{S_T2}')
        a(f'v_add_u32 v{t0}, s{S_T}, v{t0}')
        a(f'v_lshlrev_b32 v{t0}, 2, v{t0}')
        a(f'v_add_u32 v{t0}, {WS_FW}, v{t0}')
        a(f'v_cmp_gt_u32 vcc, 8, v{V_L}')
        a(f'v_cndmask_b32 v{V_PA}, v{t0}, v{V_PA}, vcc')
    V_FL = 140
    S_RDY = 84
    def flags_load():
        a(f'buffer_load_dword v{V_FL}, v{V_PA}, {srd(SRD_WS)}, 0 offen sc1')
    nspin = [0]
    def need_bit(idx, mask=False, fresh=False):
        n = nspin[0]; nspin[0] += 1
        def test():
            if mask:
                a(f's_andn2_b32 s{S_T2}, {idx}, s{S_RDY}')
                a(f's_cbranch_scc0 L_nb{n}_ok')
            else:
                a(f's_bitcmp1_b32 s{S_RDY}, {idx}')
                a(f's_cbranch_scc1 L_nb{n}_ok')
        if fresh:
            a(f'v_cmp_eq_u32 s[{S_RDY}:{S_RDY+1}], s{S_TAG}, v{V_FL}')
        test()
        a(f's_mov_b32 s{S_CNT}, {SPIN_MAX}')
        a.lab(f'L_nb{n}_spin')
        flags_load()
        a('s_waitcnt vmcnt(0)')
        a(f'v_cmp_eq_u32 s[{S_RDY}:{S_RDY+1}], s{S_TAG}, v{V_FL}')
        test()
        if opt.get('psl', 4): a(f's_sleep {opt.get("psl", 4)}')
        a(f's_sub_u32 s{S_CNT}, s{S_CNT}, 1')
        a(f's_cmp_lg_u32 s{S_CNT}, 0')
        a(f's_cbranch_scc1 L_nb{n}_spin')
        a.lab(f'L_nb{n}_ok')
    a(f's_mov_b64 s[{S_RDY}:{S_RDY+1}], 0')
    a(f'v_mov_b32 v{K0V}, {hx(k0)}')
    a(f'v_mov_b32 v{K0V+1}, {hx(k0)}')
    V_ZW = V_US
    lane_mq()
    a(f'v_lshrrev_b32 v{t2}, 2, v{t0}')
    a(f'v_lshlrev_b32 v{t2}, 3, v{t2}')
    a(f'v_and_b32 v{t3}, 3, v{t0}')
    a(f'v_add_u32 v{t2}, v{t2}, v{t3}')
    a(f'v_lshlrev_b32 v{t2}, 3, v{t2}')
    a(f'v_mul_u32_u24 v{t3}, {SLOT}, v{t1}')
    a(f'v_add_u32 v{t2}, v{t2}, v{t3}')
    a(f's_mul_i32 s{S_T}, s{S_WJ}, 1536')
    a(f's_lshl_b32 s{S_T2}, s{S_WI}, 8')
    a(f's_add_u32 s{S_T}, s{S_T}, s{S_T2}')
    a(f's_add_u32 s{S_T}, s{S_T}, 16384')
    a(f'v_add_u32 v{V_ZW}, s{S_T}, v{t2}')
    Z1Q = 128
    def z1_group(i):
        phi, tau = i >> 1, i & 1
        cs = [ACC1 + 4 * i, ACC1 + 4 * i + 2]
        a(f'v_cvt_pk_bf16_f32 v{Z1Q+2*i}, v{cs[0]}, v{cs[0]+1}')
        a(f'v_cvt_pk_bf16_f32 v{Z1Q+2*i+1}, v{cs[1]}, v{cs[1]+1}')
        a(f'ds_write_b64 v{V_ZW}, {vr(Z1Q+2*i,2)} offset:{512*phi+32*tau}')
    NG1 = 6
    a(f'v_mov_b32 v{t2}, {CTR}')
    a(f'v_mov_b32 v{t3}, 8')
    a(f'ds_write_b32 v{t2}, v{t3}')
    for i in range(NG1): z1_group(i)
    G2 = 24
    ZR = 144
    AF = 120
    Z1R = 240
    V_ZD, V_A2R = V_BD, V_AR
    a(f'v_and_b32 v{t0}, 31, v{V_L}')
    a(f'v_lshrrev_b32 v{t1}, 5, v{V_L}')
    a(f's_lshl_b32 s{S_T}, s{S_W}, 3')
    a(f'v_add_u32 v{t3}, s{S_T}, v{t0}')
    a(f'v_and_b32 v{t3}, 31, v{t3}')
    a(f'v_mul_u32_u24 v{t2}, 96, v{t1}')
    a(f'v_add_u32 v{t2}, v{t2}, v{t3}')
    a(f'v_lshlrev_b32 v{V_ZD}, 4, v{t2}')
    a(f'v_lshrrev_b32 v{t2}, 3, v{t0}')
    a(f'v_lshlrev_b32 v{t2}, 1, v{t2}')
    a(f'v_bfe_u32 v{t3}, v{t0}, 1, 1')
    a(f'v_or_b32 v{t2}, v{t2}, v{t3}')
    a(f'v_xor_b32 v{t2}, v{t2}, v{t1}')
    a(f'v_lshlrev_b32 v{t3}, 7, v{t0}')
    a(f'v_lshl_add_u32 v{t2}, v{t2}, 4, v{t3}')
    a(f'v_add_u32 v{V_A2R}, s{S_M_A}, v{t2}')
    for ks in range(1, 4):
        a(f'v_xor_b32 v{t3}, {32*ks}, v{t2}')
        a(f'v_add_u32 v{V_A2R+ks}, s{S_M_A}, v{t3}')
    V_ZR = V_BR
    a(f's_lshl_b32 s{S_T}, s{S_WJ}, 1')
    a(f'v_add_u32 v{t2}, s{S_T}, v{t1}')
    a(f'v_mul_u32_u24 v{t2}, {SLOT}, v{t2}')
    a(f'v_lshl_add_u32 v{t2}, v{t0}, 3, v{t2}')
    a(f's_lshl_b32 s{S_T}, s{S_WI}, 9')
    a(f's_add_u32 s{S_T}, s{S_T}, 16384')
    a(f'v_add_u32 v{V_ZR}, s{S_T}, v{t2}')
    a(f's_lshl_b32 s{S_T}, s{S_RB}, 7')
    a(f'v_lshlrev_b32 v{t2}, 1, v{t0}')
    a(f'v_add_u32 v{t2}, s{S_T}, v{t2}')
    BS2 = 252
    a(f'global_load_ushort v{BS2}, v{t2}, {sp(P_BSP)}')
    a(f'global_load_ushort v{BS2+2}, v{t2}, {sp(P_BSP)} offset:64')
    rot2(S_KZ)
    a(f's_add_u32 s{S_KZ}, s{S_KZ}, s{S_W}')
    a(f's_mul_i32 s{S_BBASE}, s{S_CB}, {32*12288}')
    a(f's_add_u32 s{S_BBASE}, s{S_BBASE}, {WS_Z}')
    a('s_waitcnt lgkmcnt(0)')
    a('s_barrier')
    need_bit(0)
    stamp(a, 8)
    vm.ops = []
    def zld(par):
        U = []
        for ks in range(4):
            for ph in range(3):
                L = []
                if ks == 0 and ph == 0:
                    L += [f's_and_b32 s{S_KZ}, s{S_KZ}, {3 if opt.get("x_same") else 31}', f's_mul_i32 s{S_BO}, s{S_KZ}, 12288', f's_add_u32 s{S_BO}, s{S_BO}, s{S_BBASE}', f's_add_u32 s{S_KZ}, s{S_KZ}, 4']
                elif ph == 0:
                    L += [f's_add_u32 s{S_BO}, s{S_BO}, 3072']
                L += [f'buffer_load_dwordx4 {vr(ZR+48*par+12*ks+4*ph,4)}, v{V_ZD}, {srd(SRD_WS)}, s{S_BO} offen offset:{512*ph} sc1']
                U.append((L, ('Z', par, ks)))
        return U
    vm.issue(('A2', 1), 1)
    run_units([(l, ('Z', 0, t[2])) for (l, t) in zld(0)])
    need_bit(1)
    run_units([(l, ('Z', 1, t[2])) for (l, t) in zld(1)])
    flags_load(); vm.issue('fl', 1)
    for i in range(NG1, 6): z1_group(i)
    for i in range(6):
        a(f'ds_read_b64 {vr(Z1R+2*i,2)}, v{V_ZR} offset:{1024*(i>>1)+256*(i&1)}')
    if opt.get('cg', 0) == 1 or opt.get('kd') == 1:
        a(f's_cmp_lg_u32 s{S_W}, 3')
        a('s_cbranch_scc1 L_fs_skip')
        a(f's_lshl_b32 s{S_T}, s2, 2')
        a(f's_add_u32 s{S_T}, s{S_T}, {WS_FS}')
        flag_store(a, S_T, 18)
        a.lab('L_fs_skip')
    def ards(par, ks):
        f = AF + 8 * (ks & 1)
        for tp in range(2):
            a(f'ds_read_b128 {vr(f+4*tp,4)}, v{V_A2R+ks} offset:{8192*par+4096*tp}')
    def chunk(i, fill=()):
        par = i & 1
        if i + 2 < 8:
            need_bit(i + 2, fresh=True)
        if i + 3 < 8 or i == 6:
            flags_load(); vm.issue('fl', 1)
        AU = [(l, ('A2', i + 1)) for (l, _) in adma(1 - par)] if 1 <= i < 7 else []
        ZU = [(l, ('Z', i + 2, t[2])) for (l, t) in zld(par)] if i + 2 < 8 else []
        for ks in range(4):
            a(f's_waitcnt vmcnt({vm.n_after(("Z", i, ks))}) lgkmcnt(0)')
            if ks < 3:
                ards(par, ks + 1)
            f = AF + 8 * (ks & 1)
            for tp in range(2):
                for ph in range(3):
                    m = 3 * tp + ph
                    c = vr(G2 + 16 * (2 * ph + tp), 16)
                    if not opt.get('x_nomfma'): a(f'v_mfma_f32_32x32x16_bf16 {c}, {vr(ZR+48*par+12*ks+4*ph,4)}, {vr(f+4*tp,4)}, {0 if (i == 0 and ks == 0) else c}')
                    if m < 3 and ks < 2 and AU: run_units(AU[4 * ks: 4 * ks + 2] if m == 0 else [AU[4 * ks + m + 1]])
                    if m >= 3 and ZU: run_units([ZU[3 * ks + m - 3]])
                    for l in fill[6 * (6 * ks + m): 6 * (6 * ks + m) + 6]: a(l)
        a(f's_waitcnt vmcnt({vm.n_after(("A2", i + 1))})')
        ards(1 - par, 0)
    V_L16 = V_BD + 1
    a(f'v_lshlrev_b32 v{V_L16}, 4, v{V_L}')
    a(f's_mul_i32 s{S_WOB}, s{S_CB}, {24*5120}')
    a(f's_mul_i32 s{S_T}, s{S_W}, {6*5120}')
    a(f's_add_u32 s{S_WOB}, s{S_WOB}, s{S_T}')
    a(f's_add_u32 s{S_WOB}, s{S_WOB}, {WS_WO}')
    V_RW = V_BD + 2
    a(f'v_add_u32 v{V_RW}, s{S_M_A}, v{V_L16}')
    V_RR = 12
    for d in range(1, 4):
        a(f's_sub_u32 s{S_T}, s{S_W}, {d}')
        a(f's_and_b32 s{S_T}, s{S_T}, 3')
        a(f's_mul_i32 s{S_T}, s{S_T}, {SLOT}')
        a(f's_add_u32 s{S_T}, s{S_T}, {6144*(d-1)}')
        a(f'v_add_u32 v{V_RR+d-1}, s{S_T}, v{V_L16}')
    stamp(a, 9)
    a('s_waitcnt lgkmcnt(0)')
    ards(0, 0)
    GL = []
    for i in range(6): GL += gelu_packed([Z1R + 2 * i, Z1R + 2 * i + 1], K0V)
    for i in range(7): chunk(i, GL if i == 0 else ())
    WOS = [144, 164, 192, 212]
    def wold(kk):
        U = []
        for dl in range(5):
            L = [f's_add_u32 s{S_BO}, s{S_WOB}, {5120*kk+(4096 if dl == 4 else 0)}'] if dl in (0, 4) else []
            L += [f'buffer_load_dwordx4 {vr(WOS[kk&3]+4*dl,4)}, v{V_L16}, {srd(SRD_WS)}, s{S_BO} offen offset:{1024*(dl&3)} sc1']
            U.append((L, ('WO', kk)))
        return U
    for par in (1,):
        a.lab(f'L_p2_tail{par}')
        other = ZR + 48 * (1 - par)
        AFR = {0: 120, 1: 128, 2: other + 40, 3: 16}
        for ks in range(1, 4):
            for tp in range(2):
                a(f'ds_read_b128 {vr(AFR[ks]+4*tp,4)}, v{V_A2R+ks} offset:{8192*par+4096*tp}')
        a('s_waitcnt vmcnt(0) lgkmcnt(0)')
        if opt.get('no_side') != 1:
            need_bit(0x3f00, mask=True, fresh=True)
        early, late = ((0, 1), (2, 3)) if par == 1 else ((2, 3), (0, 1))
        WOU = wold(early[0]) + wold(early[1])
        k = 0
        def wr(i):
            for d in range(1, 4):
                a(f'ds_write_b128 v{V_RW}, {vr(G2+16*i+4*d,4)} offset:{6144*(d-1)+1024*i}')
        for i in range(6):
            ph, tp = i >> 1, i & 1
            c = vr(G2 + 16 * i, 16)
            for ks in range(4):
                a(f'v_mfma_f32_32x32x16_bf16 {c}, {vr(ZR+48*par+12*ks+4*ph,4)}, {vr(AFR[ks]+4*tp,4)}, {c}')
                if ks in (0, 2) and k < len(WOU):
                    run_units([WOU[k]], False); k += 1
                if ks == 2 and i > 0: wr(i - 1)
        wr(5)
        run_units(wold(late[0]) + wold(late[1]), False)
    a.lab('L_red_done')
    stamp(a, 10)
    vm.ops = []
    a('s_waitcnt lgkmcnt(0)')
    a('s_barrier')
    for i in range(6):
        for j in range(3):
            a(f'ds_read_b128 {vr(G2+16*i+4+4*j,4)}, v{V_RR+j} offset:{1024*i}')
    a(f'v_lshlrev_b32 v{BS2+1}, 16, v{BS2}')
    a(f'v_lshlrev_b32 v{BS2+3}, 16, v{BS2+2}')
    a(f'v_lshlrev_b32 v{BS2}, 16, v{BS2}')
    a(f'v_lshlrev_b32 v{BS2+2}, 16, v{BS2+2}')
    a(f's_mul_i32 s{S_ABASE}, s{S_RB}, 98304')
    a(f's_add_u32 s{S_ABASE}, s{S_ABASE}, {WS_P}')
    a(f's_mul_i32 s{S_T}, s{S_CB}, 12288')
    a(f's_add_u32 s{S_T}, s{S_T}, s{S_ABASE}')
    a(f's_lshl_b32 s{S_T2}, s{S_W}, 10')
    a(f's_add_u32 s{S_T}, s{S_T}, s{S_T2}')
    PQ = 120
    for ph in range(3):
        for tp in range(2):
            i = 2 * ph + tp
            a(f's_waitcnt lgkmcnt({min(15, 3*(5-i))})')
            T = [V_T, V_T + 4]
            def both(f):
                for hh in range(2): a(f(G2 + 16 * i + 2 * hh, T[hh], hh))
            both(lambda c, t, hh: f'v_pk_add_f32 {vr(c,2)}, {vr(c,2)}, {vr(c+4,2)}')
            both(lambda c, t, hh: f'v_pk_add_f32 {vr(c+8,2)}, {vr(c+8,2)}, {vr(c+12,2)}')
            both(lambda c, t, hh: f'v_pk_add_f32 {vr(c,2)}, {vr(c,2)}, {vr(c+8,2)}')
            both(lambda c, t, hh: f'v_cvt_pk_bf16_f32 v{t+2}, v{c}, v{c+1}')
            both(lambda c, t, hh: f'v_lshlrev_b32 v{t}, 16, v{t+2}')
            both(lambda c, t, hh: f'v_and_b32 v{t+1}, 0xffff0000, v{t+2}')
            both(lambda c, t, hh: f'v_pk_add_f32 {vr(t,2)}, {vr(t,2)}, {vr(BS2+2*tp,2)}')
            both(lambda c, t, hh: f'v_cvt_pk_bf16_f32 v{t+2}, v{t}, v{t+1}')
            both(lambda c, t, hh: f'v_lshlrev_b32 v{c}, 16, v{Z1R+2*i+hh}')
            both(lambda c, t, hh: f'v_and_b32 v{c+1}, 0xffff0000, v{Z1R+2*i+hh}')
            both(lambda c, t, hh: f'v_lshlrev_b32 v{t}, 16, v{t+2}')
            both(lambda c, t, hh: f'v_and_b32 v{t+1}, 0xffff0000, v{t+2}')
            both(lambda c, t, hh: f'v_pk_mul_f32 {vr(t,2)}, {vr(t,2)}, {vr(c,2)}')
            both(lambda c, t, hh: f'v_cvt_pk_bf16_f32 v{PQ+4*ph+2*tp+hh}, v{t}, v{t+1}')
        q = PQ + 4 * ph
        a(f'v_permlane32_swap_b32 v{q}, v{q+2}')
        a(f'v_permlane32_swap_b32 v{q+1}, v{q+3}')
        a(f'buffer_store_dwordx4 {vr(q,4)}, v{V_L16}, {srd(SRD_WS)}, s{S_T} offen sc1')
        if ph < 2: a(f's_add_u32 s{S_T}, s{S_T}, 4096')
    a('s_barrier')
    a(f's_mul_i32 s{S_M_B}, s{S_W}, 15360')
    for j in range(10):
        if j % 4 == 0:
            a(f's_add_u32 m0, s{S_M_B}, {1024*j}')
            a(f's_add_u32 s{S_BO}, s{S_WOB}, {4*5120+1024*j}')
        a(f'buffer_load_dwordx4 v{V_L16}, {srd(SRD_WS)}, s{S_BO} offen offset:{1024*(j%4)} sc1 lds')
    a.fence(2)
    lane_mq()
    V_PP = 7
    a(f'v_and_b32 v{V_PP}, 7, v{V_L}')
    a(f'v_lshlrev_b32 v{V_PP}, 2, v{V_PP}')
    a(f's_lshl_b32 s{S_T}, s{S_RB}, 7')
    a(f's_add_u32 s{S_T}, s{S_T}, {WS_FP}')
    a(f's_lshl_b32 s{S_T2}, s{S_W}, 5')
    a(f's_add_u32 s{S_T2}, s{S_T2}, s{S_T}')
    V_PL0, V_PL1 = 8, 9
    a(f's_lshl_b32 s{S_AO}, s{S_RB}, 5')
    a(f's_add_u32 s{S_AO}, s{S_AO}, {WS_FG}')
    a(f'v_add_u32 v{V_PL0}, s{S_AO}, v{V_PP}')
    a(f'v_add_u32 v{V_PP}, s{S_T2}, v{V_PP}')
    a(f's_lshl_b32 s{S_T2}, s{S_CB}, 4')
    a(f's_add_u32 s{S_T}, s{S_T}, s{S_T2}')
    a(f's_lshl_b32 s{S_T2}, s{S_W}, 2')
    a(f's_add_u32 s{S_T}, s{S_T}, s{S_T2}')
    a(f's_mul_i32 s{S_T2}, s{S_CB}, 320')
    a(f's_add_u32 s{S_T2}, s{S_T2}, {WS_FA}')
    a(f'v_lshlrev_b32 v{V_PL1}, 2, v{V_L}')
    a(f'v_add_u32 v{V_PL1}, s{S_T2}, v{V_PL1}')
    a(f'v_lshlrev_b32 v{t3}, 2, v{t0}')
    a(f'v_add_u32 v{t3}, s{S_T2}, v{t3}')
    a(f'v_add_u32 v{t3}, 256, v{t3}')
    a(f'v_bfe_u32 v{t2}, v{V_L}, 4, 1')
    a(f'v_cmp_eq_u32 vcc, 1, v{t2}')
    a(f'v_cndmask_b32 v{V_PL0}, v{V_PL0}, v{t3}, vcc')
    V_AW, V_O1, V_O2, V_ATR, V_AG, V_PF = 248, 10, 11, 12, 250, 2
    ATR, GT = [136, 140, 184], 188
    a(f's_lshl_b32 s{S_AO}, s{S_W}, 7')
    a(f'v_add_u32 v{t2}, s{S_AO}, v{V_L}')
    a(f's_lshl_b32 s{S_AO}, s{S_WJ}, 6')
    a(f's_add_u32 s{S_AO}, s{S_AO}, 512')
    a(f'v_add_u32 v{t3}, s{S_AO}, v{V_L}')
    ATL = 61440
    a(f'v_lshlrev_b32 v{V_AW}, 4, v{t2}')
    a(f'v_lshlrev_b32 v{V_AW+1}, 4, v{t3}')
    a(f'v_add_u32 v{V_AW}, {ATL}, v{V_AW}')
    a(f'v_add_u32 v{V_AW+1}, {ATL}, v{V_AW+1}')
    for k, tt in enumerate((t2, t3)):
        a(f'v_lshrrev_b32 v{V_AG+k}, 3, v{tt}')
        a(f'v_and_b32 v{tt}, 7, v{tt}')
        a(f'v_lshlrev_b32 v{V_AG+k}, 12, v{V_AG+k}')
        a(f'v_lshl_add_u32 v{V_AG+k}, v{tt}, 4, v{V_AG+k}')
    a(f's_lshl_b32 s{S_AO}, s{S_RB}, 6')
    a(f's_lshl_b32 s{S_BO}, s{S_W}, 4')
    a(f's_add_u32 s{S_AO}, s{S_AO}, s{S_BO}')
    a(f'v_add_u32 v{t2}, s{S_AO}, v{t0}')
    a(f'v_lshlrev_b32 v{V_AG+2}, 3, v{t2}')
    a(f'v_add_u32 v{V_AG+2}, {WS_G}, v{V_AG+2}')
    a(f'v_mul_u32_u24 v{t2}, 1280, v{t2}')
    a(f's_mul_i32 s{S_AO}, s{S_CB}, 160')
    a(f'v_add_u32 v{t2}, s{S_AO}, v{t2}')
    a(f'v_and_b32 v{t3}, 1, v{t1}')
    a(f'v_lshl_add_u32 v{V_O1}, v{t3}, 5, v{t2}')
    a(f'v_lshrrev_b32 v{t3}, 1, v{t1}')
    a(f'v_lshl_add_u32 v{V_O1}, v{t3}, 4, v{V_O1}')
    a(f'v_lshl_add_u32 v{V_O2}, v{t1}, 3, v{t2}')
    a(f'v_add_u32 v{V_O2}, 128, v{V_O2}')
    a(f'v_lshl_add_u32 v{t2}, v{t1}, 6, v{t0}')
    a(f'v_lshlrev_b32 v{t2}, 4, v{t2}')
    VPF = [2, 3, 4, 6]
    for tt in range(4):
        a(f's_add_u32 s{S_AO}, s{S_W}, {tt}')
        a(f's_and_b32 s{S_AO}, s{S_AO}, 3')
        a(f's_lshl_b32 s{S_AO}, s{S_AO}, 8')
        a(f'v_add_u32 v{VPF[tt]}, s{S_AO}, v{t2}')
    a(f's_mul_i32 s{S_AO}, s{S_W}, 24576')
    a(f's_add_u32 s{S_ABASE}, s{S_ABASE}, s{S_AO}')
    a(f'v_lshrrev_b32 v{t2}, 2, v{t0}')
    a(f'v_lshl_add_u32 v{t2}, v{t1}, 2, v{t2}')
    a(f'v_lshlrev_b32 v{t2}, 7, v{t2}')
    a(f'v_and_b32 v{t3}, 3, v{V_L}')
    a(f'v_lshl_add_u32 v{t2}, v{t3}, 3, v{t2}')
    a(f's_lshl_b32 s{S_AO}, s{S_W}, 5')
    a(f's_add_u32 s{S_AO}, s{S_AO}, {ATL}')
    a(f'v_add_u32 v{V_ATR}, s{S_AO}, v{t2}')
    O3 = 24
    a('s_waitcnt vmcnt(10)')
    flag_store(a, S_T, V_T)
    stamp(a, 11)
    if not opt.get('no_side'):
        a(f'buffer_load_dword v20, v{V_PL0}, {srd(SRD_WS)}, 0 offen sc1')
        a(f'buffer_load_dword v21, v{V_PL1}, {srd(SRD_WS)}, 0 offen sc1')
    if opt.get('p3b', 1):
        V_PA, V_FL = V_PP, 253
        a(f's_mov_b64 s[{S_RDY}:{S_RDY+1}], 0')
        need_bit(0x0f, mask=True)
    else:
        a(f's_mov_b32 s{S_CNT}, {SPIN_MAX}')
        a(f'buffer_load_dword v16, v{V_PP}, {srd(SRD_WS)}, 0 offen sc1')
        a.lab('L_pp_spin')
        a(f'buffer_load_dword v17, v{V_PP}, {srd(SRD_WS)}, 0 offen sc1')
        a('s_waitcnt vmcnt(1)')
        a(f'v_cmp_ne_u32 vcc, s{S_TAG}, v16')
        a('s_cbranch_vccz L_pp_done')
        a(f'buffer_load_dword v16, v{V_PP}, {srd(SRD_WS)}, 0 offen sc1')
        a('s_waitcnt vmcnt(1)')
        a(f'v_cmp_ne_u32 vcc, s{S_TAG}, v17')
        a('s_cbranch_vccz L_pp_done')
        if opt.get('psl', 4): a(f's_sleep {opt.get("psl", 4)}')
        a(f's_sub_u32 s{S_CNT}, s{S_CNT}, 1')
        a(f's_cmp_lg_u32 s{S_CNT}, 0')
        a('s_cbranch_scc1 L_pp_spin')
        a.lab('L_pp_done')
    stamp(a, 12)
    vm.ops = []
    NPS = 3
    PFS = [104, 120, 228 - 228 + 232]
    V_AG2 = [V_AG, V_AG + 1, V_AG + 2]
    def pld(kk):
        U = []
        for tt in range(4):
            L = [f's_add_u32 s{S_AO}, s{S_ABASE}, {4096*kk}'] if tt == 0 else []
            L += [f'buffer_load_dwordx4 {vr(PFS[kk%NPS]+4*tt,4)}, v{VPF[tt]}, {srd(SRD_WS)}, s{S_AO} offen sc1']
            U.append((L, ('P', kk)))
        return U
    for kk in range(3): run_units(pld(kk))
    if opt.get('p3b', 1):
        flags_load(); vm.issue('fl', 1)
    if not opt.get('no_side'):
        a(f'v_cmp_ne_u32 vcc, s{S_TAG}, v20')
        a(f'v_cmp_ne_u32 s[84:85], s{S_TAG}, v21')
        a('s_or_b64 vcc, vcc, s[84:85]')
        a('s_cbranch_vccnz L_pa_late')
    def at_loads():
        a(f's_mul_i32 s{S_T}, s{S_CB}, {80*4096}')
        a(f's_lshl_b32 s{S_T2}, s{S_RB}, 7')
        a(f's_add_u32 s{S_T}, s{S_T}, s{S_T2}')
        a(f's_add_u32 s{S_T}, s{S_T}, {WS_AT}')
        a(f's_add_u32 s{S_T2}, s{S_T}, {8*4096}')
        a(f'buffer_load_dwordx4 {vr(ATR[0],4)}, v{V_AG2[0]}, {srd(SRD_WS)}, s{S_T} offen sc1')
        a(f'buffer_load_dwordx4 {vr(ATR[1],4)}, v{V_AG2[0]}, {srd(SRD_WS)}, s{S_T2} offen sc1')
        a(f'buffer_load_dwordx4 {vr(ATR[2],4)}, v{V_AG2[1]}, {srd(SRD_WS)}, s{S_T} offen sc1')
        a(f'buffer_load_dwordx2 {vr(GT,2)}, v{V_AG2[2]}, {srd(SRD_WS)}, 0 offen sc1')
    at_loads()
    vm.issue('at', 4)
    a(f's_mov_b32 s{S_KZ}, 0')
    if not opt.get('no_side'):
        a('s_branch L_pa_go')
        a.lab('L_pa_late')
        for k in range(4):
            a(f'buffer_load_dword v22, off, {srd(SRD_WS)}, 0')
        a(f's_mov_b32 s{S_KZ}, 1')
        a.lab('L_pa_go')
    stamp(a, 13)
    V_W3, V_R3 = 13, 14
    VR3 = [14, 15, 0]
    a(f's_mul_i32 s{S_T}, s{S_W}, 15360')
    a(f'v_add_u32 v{V_W3}, s{S_T}, v{V_L16}')
    for d in range(1, 4):
        a(f's_sub_u32 s{S_T}, s{S_W}, {d}')
        a(f's_and_b32 s{S_T}, s{S_T}, 3')
        a(f's_mul_i32 s{S_T}, s{S_T}, 15360')
        a(f's_add_u32 s{S_T}, s{S_T}, {5120*(d-1)}')
        a(f'v_add_u32 v{VR3[d-1]}, s{S_T}, v{V_L16}')
    def wr3(tt):
        for dl in range(5):
            a(f'ds_write_b128 v{V_W3}, {vr(O3+4*(5*tt+dl),4)} offset:{5120*(tt-1)+1024*dl}')
    for kk in range(6):
        need = vm.n_after(('P', kk))
        a(f's_waitcnt vmcnt({need})' + (' lgkmcnt(5)' if kk == 4 else ' lgkmcnt(0)' if kk == 5 else ''))
        for tt in ((0, 1, 2, 3) if kk < 5 else (1, 2, 3, 0)):
            for dl in range(5):
                c = vr(O3 + 4 * (5 * tt + dl), 4)
                a(f'v_mfma_f32_16x16x32_bf16 {c}, {vr(WOS[kk&3]+4*dl,4)}, {vr(PFS[kk%NPS]+4*tt,4)}, {c if kk else 0}')
            if kk == 5 and tt != 1: wr3((tt - 1) & 3)
        if kk == 0 and opt.get('p3b', 1):
            a(f's_waitcnt vmcnt({vm.n_after("fl")})')
            need_bit(0xf0, mask=True, fresh=True)
        if kk + 3 < 6: run_units(pld(kk + 3))
        if kk + 4 < 6:
            for dl in range(5):
                a(f'ds_read_b128 {vr(WOS[kk&3]+4*dl,4)}, v{V_W3} offset:{5120*kk+1024*dl}')
    stamp(a, 14)
    if not opt.get('no_side'):
        a(f's_cmp_eq_u32 s{S_KZ}, 0')
        a('s_cbranch_scc1 L_pa_ok')
        poll(a, 'L_pa', [(V_PL0, '0'), (V_PL1, '0')], 20, S_CNT)
        at_loads()
        a.lab('L_pa_ok')
    a('s_waitcnt vmcnt(0)')
    a(f'v_mov_b32 v{GT+2}, v{GT+1}')
    a(f'v_mov_b32 v{GT+3}, v{GT+1}')
    a(f'v_mov_b32 v{GT+1}, v{GT}')
    a(f'ds_write_b128 v{V_AW}, {vr(ATR[0],4)}')
    a(f'ds_write_b128 v{V_AW}, {vr(ATR[1],4)} offset:1024')
    a(f'ds_write_b128 v{V_AW+1}, {vr(ATR[2],4)}')
    a('s_waitcnt lgkmcnt(0)')
    a('s_barrier')
    AV = 104
    for dl in range(5):
        for j in range(3):
            a(f'ds_read_b128 {vr(O3+4*(5*(j+1)+dl),4)}, v{VR3[j]} offset:{1024*dl}')
        a(f'ds_read_b64_tr_b16 {vr(AV+2*dl,2)}, v{V_ATR} offset:{2048*dl}')
    RQ = 116
    for dl in range(5):
        a(f's_waitcnt lgkmcnt({min(15, 4*(4-dl))})')
        T = [V_T, V_T + 4]
        def both(f):
            for hh in range(2): a(f(O3 + 4 * dl + 2 * hh, T[hh], AV + 2 * dl + hh, hh))
        both(lambda c, t, av, hh: f'v_pk_add_f32 {vr(c,2)}, {vr(c,2)}, {vr(c+20,2)}')
        both(lambda c, t, av, hh: f'v_pk_add_f32 {vr(c+40,2)}, {vr(c+40,2)}, {vr(c+60,2)}')
        both(lambda c, t, av, hh: f'v_pk_add_f32 {vr(c,2)}, {vr(c,2)}, {vr(c+40,2)}')
        both(lambda c, t, av, hh: f'v_cvt_pk_bf16_f32 v{t+2}, v{c}, v{c+1}')
        both(lambda c, t, av, hh: f'v_lshlrev_b32 v{t}, 16, v{av}')
        both(lambda c, t, av, hh: f'v_and_b32 v{t+1}, 0xffff0000, v{av}')
        both(lambda c, t, av, hh: f'v_lshlrev_b32 v{c}, 16, v{t+2}')
        both(lambda c, t, av, hh: f'v_and_b32 v{c+1}, 0xffff0000, v{t+2}')
        both(lambda c, t, av, hh: f'v_pk_mul_f32 {vr(t,2)}, {vr(t,2)}, {vr(GT,2)}')
        both(lambda c, t, av, hh: f'v_pk_mul_f32 {vr(c,2)}, {vr(c,2)}, {vr(GT+2,2)}')
        both(lambda c, t, av, hh: f'v_cvt_pk_bf16_f32 v{t+2}, v{t}, v{t+1}')
        both(lambda c, t, av, hh: f'v_cvt_pk_bf16_f32 v{t+3}, v{c}, v{c+1}')
        both(lambda c, t, av, hh: f'v_lshlrev_b32 v{t}, 16, v{t+2}')
        both(lambda c, t, av, hh: f'v_and_b32 v{t+1}, 0xffff0000, v{t+2}')
        both(lambda c, t, av, hh: f'v_lshlrev_b32 v{c}, 16, v{t+3}')
        both(lambda c, t, av, hh: f'v_and_b32 v{c+1}, 0xffff0000, v{t+3}')
        both(lambda c, t, av, hh: f'v_pk_add_f32 {vr(t,2)}, {vr(t,2)}, {vr(c,2)}')
        both(lambda c, t, av, hh: f'v_cvt_pk_bf16_f32 v{RQ+2*dl+hh}, v{t}, v{t+1}')
        if dl in (1, 3):
            q = RQ + 2 * (dl - 1)
            a(f'v_permlane16_swap_b32 v{q}, v{q+2}')
            a(f'v_permlane16_swap_b32 v{q+1}, v{q+3}')
            a(f'buffer_store_dwordx4 {vr(q,4)}, v{V_O1}, {srd(SRD_OUT)}, 0 offen offset:{32*(dl-1)} {OC}')
        if dl == 4:
            a(f'buffer_store_dwordx2 {vr(RQ+8,2)}, v{V_O2}, {srd(SRD_OUT)}, 0 offen {OC}')
    if _g.PROF['on']:
        a('s_waitcnt vmcnt(0)')
    stamp(a, 15)
    stamp_dump(a, 16)
    a('s_endpgm')

def poll1(a, name, vaddrs, vtmp, scount):
    a(f's_cmp_lg_u32 s{S_W}, 0')
    a(f's_cbranch_scc1 {name}_out')
    va = vaddrs[0]
    a(f's_mov_b32 s{scount}, {SPIN_MAX}')
    a(f'buffer_load_dword v{vtmp}, v{va}, {srd(SRD_WS)}, 0 offen sc1')
    a.lab(f'{name}_spin')
    a(f'buffer_load_dword v{vtmp+1}, v{va}, {srd(SRD_WS)}, 0 offen sc1')
    a('s_waitcnt vmcnt(1)')
    a(f'v_cmp_ne_u32 vcc, s{S_TAG}, v{vtmp}')
    a(f's_cbranch_vccz {name}_done')
    a(f'buffer_load_dword v{vtmp}, v{va}, {srd(SRD_WS)}, 0 offen sc1')
    a('s_waitcnt vmcnt(1)')
    a(f'v_cmp_ne_u32 vcc, s{S_TAG}, v{vtmp+1}')
    a(f's_cbranch_vccz {name}_done')
    a(f's_sub_u32 s{scount}, s{scount}, 1')
    a(f's_cmp_lg_u32 s{scount}, 0')
    a(f's_cbranch_scc1 {name}_spin')
    a.lab(f'{name}_done')
    a.lab(f'{name}_out')
    a('s_barrier')

def e1_z2(a, opt, vm, k0):
    SS, QQ = ACC1, ACC1 + 8
    K0 = ACC1 + 16
    pf = opt.get('gpf', 0)
    if pf:
        a(f's_lshl_b32 s{S_T}, s{S_RB}, 18')
        a(f's_and_b32 s{S_T2}, s{S_CB}, 3')
        a(f's_lshl_b32 s{S_T2}, s{S_T2}, 16')
        a(f's_add_u32 s{S_T}, s{S_T}, s{S_T2}')
        a(f's_lshl_b32 s{S_T2}, s{S_W}, 14')
        a(f's_add_u32 s{S_T}, s{S_T}, s{S_T2}')
        a(f'v_lshlrev_b32 v{t0}, {7 if pf == 128 else 6}, v{V_L}')
        for i in range(16384 // (64 * pf)):
            a(f'buffer_load_dword v{ACC1+20+i}, v{t0}, {srd(SRD_WSP)}, s{S_T} offen')
            a(f's_add_u32 s{S_T}, s{S_T}, {64*pf}')
            vm.issue('pf', 1)
    a(f'v_mov_b32 v{K0}, {hx(k0)}')
    a(f'v_mov_b32 v{K0+1}, {hx(k0)}')
    first = {}
    for phi in range(3):
        for tau in range(2):
            cs = [ACC2 + 4 * (3 * tau + phi) + 2 * hh for hh in range(2)]
            def after(c, t):
                r = 4 * tau + (c - cs[0])
                L = [f'v_cvt_pk_bf16_f32 v{c}, v{t+2}, v{t+3}']
                if phi == 0:
                    L += [f'v_lshlrev_b32 v{SS+r}, 16, v{c}', f'v_and_b32 v{SS+r+1}, 0xffff0000, v{c}',
                          f'v_pk_mul_f32 {vr(QQ+r,2)}, {vr(SS+r,2)}, {vr(SS+r,2)}']
                else:
                    L += [f'v_lshlrev_b32 v{t}, 16, v{c}', f'v_and_b32 v{t+1}, 0xffff0000, v{c}',
                          f'v_pk_add_f32 {vr(SS+r,2)}, {vr(SS+r,2)}, {vr(t,2)}', f'v_pk_fma_f32 {vr(QQ+r,2)}, {vr(t,2)}, {vr(t,2)}, {vr(QQ+r,2)}']
                return L
            gelu2(a, cs, K0, after)
    for j in range(8):
        a(f'v_add_f32_dpp v{SS+j}, v{SS+j}, v{SS+j} row_ror:8 row_mask:0xf bank_mask:0x3')
    for j in range(8):
        a(f'v_add_f32_dpp v{SS+j}, v{QQ+j}, v{QQ+j} row_ror:8 row_mask:0xf bank_mask:0xc')
    for j in range(4):
        a(f'v_add_f32_dpp v{SS+j}, v{SS+j}, v{SS+j} row_half_mirror row_mask:0xf bank_mask:0x5')
    for j in range(4):
        a(f'v_add_f32_dpp v{SS+j}, v{SS+j+4}, v{SS+j+4} row_half_mirror row_mask:0xf bank_mask:0xa')
    a(f'v_and_b32 v{t0}, 15, v{V_L}')
    a(f'v_lshrrev_b32 v{t1}, 4, v{V_L}')
    a(f'v_and_b32 v{t2}, 3, v{V_L}')
    for qp in ('[3,2,1,0]', '[1,0,3,2]'):
        for j in range(4):
            a(f'v_add_f32_dpp v{SS+j}, v{SS+j}, v{SS+j} quad_perm:{qp} row_mask:0xf bank_mask:0xf')
    GQ = V_T + 4
    a(f'v_cmp_eq_u32 vcc, 1, v{t2}')
    a(f'v_cmp_eq_u32 s[84:85], 2, v{t2}')
    a(f'v_cmp_eq_u32 {sp(S_TMP2)}, 3, v{t2}')
    a(f'v_lshl_add_u32 v{t2}, v{t0}, 2, v{t1}')
    a(f'v_cndmask_b32 v{GQ}, v{SS}, v{SS+1}, vcc')
    a(f'v_cndmask_b32 v{GQ}, v{GQ}, v{SS+2}, s[84:85]')
    a(f'v_cndmask_b32 v{GQ}, v{GQ}, v{SS+3}, {sp(S_TMP2)}')
    a(f'v_mov_b32 v{GQ+1}, s{S_TAG}')
    a(f'v_mov_b32 v{GQ+3}, s{S_TAG}')
    a(f'v_mov_b32_dpp v{GQ+2}, v{GQ} row_ror:8 row_mask:0xf bank_mask:0xf')
    a(f's_lshl_b32 s{S_T}, s{S_WI}, 5')
    a(f'v_add_u32 v{t2}, s{S_T}, v{t2}')
    a(f'v_lshlrev_b32 v{t2}, 8, v{t2}')
    a(f's_lshl_b32 s{S_T}, s{S_RB}, 14')
    a(f's_lshl_b32 s{S_T2}, s{S_CB}, 5')
    a(f's_add_u32 s{S_T}, s{S_T}, s{S_T2}')
    a(f's_lshl_b32 s{S_T2}, s{S_WJ}, 4')
    a(f's_add_u32 s{S_T}, s{S_T}, s{S_T2}')
    a(f's_add_u32 s{S_T}, s{S_T}, {WS_ST}')
    a(f'v_cmp_gt_u32 vcc, 8, v{t0}')
    a(f's_and_saveexec_b64 {sp(S_TMP2)}, vcc')
    a(f'buffer_store_dwordx4 {vr(GQ,4)}, v{t2}, {srd(SRD_WS)}, s{S_T} offen sc1')
    a(f's_mov_b64 exec, {sp(S_TMP2)}')
    vm.issue('st', 1)
    if pf:
        a(f's_waitcnt vmcnt({vm.n_after("pf")})')

V_SA = 13
def e2_loads(a, vm):
    a(f'v_lshlrev_b32 v{V_SA}, 4, v{V_L}')
    a(f's_lshl_b32 s{S_T}, s{S_RB}, 14')
    a(f's_lshl_b32 s{S_T2}, s{S_WI}, 13')
    a(f's_add_u32 s{S_T}, s{S_T}, s{S_T2}')
    a(f's_add_u32 s{S_T}, s{S_T}, {WS_ST}')
    a(f'v_add_u32 v{V_SA}, s{S_T}, v{V_SA}')
    st_loads(a)
    vm.issue('stl', 8)

def st_loads(a):
    a(f's_movk_i32 s{S_T2}, 4096')
    for k in range(8):
        a(f'buffer_load_dwordx4 {vr(ST+4*k,4)}, v{V_SA}, {srd(SRD_WS)}, {"0" if k < 4 else "s%d" % S_T2} offen offset:{1024*(k&3)} sc1')

def e2_layernorm(a, opt, vm):
    a('; ---- LayerNorm hand-off')
    a(f's_mov_b32 s{S_CNT}, {SPIN_MAX}')
    a(f's_waitcnt vmcnt({vm.n_after("stl")})')
    a.lab('L_ln_check')
    a(f'v_min_u32 v{t0}, v{ST+1}, v{ST+3}')
    a(f'v_max_u32 v{t1}, v{ST+1}, v{ST+3}')
    for k in range(1, 8):
        a(f'v_min3_u32 v{t0}, v{t0}, v{ST+4*k+1}, v{ST+4*k+3}')
        a(f'v_max3_u32 v{t1}, v{t1}, v{ST+4*k+1}, v{ST+4*k+3}')
    a(f'v_cmp_ne_u32 vcc, s{S_TAG}, v{t0}')
    a(f'v_cmp_ne_u32 s[84:85], s{S_TAG}, v{t1}')
    a('s_or_b64 vcc, vcc, s[84:85]')
    a('s_cbranch_vccz L_ln_done')
    st_loads(a)
    a('s_waitcnt vmcnt(0)')
    a(f's_sub_u32 s{S_CNT}, s{S_CNT}, 1')
    a(f's_cmp_lg_u32 s{S_CNT}, 0')
    a('s_cbranch_scc1 L_ln_check')
    a.lab('L_ln_done')
    S_ = lambda k: ST + 4 * k
    Q_ = lambda k: ST + 4 * k + 2
    for k in range(8):
        a(f'v_add_f32_dpp v{S_(k)}, v{S_(k)}, v{S_(k)} row_ror:8 row_mask:0xf bank_mask:0x3')
    for k in range(8):
        a(f'v_add_f32_dpp v{S_(k)}, v{Q_(k)}, v{Q_(k)} row_ror:8 row_mask:0xf bank_mask:0xc')
    for k in range(4):
        a(f'v_add_f32_dpp v{S_(k)}, v{S_(k)}, v{S_(k)} row_half_mirror row_mask:0xf bank_mask:0x5')
    for k in range(4):
        a(f'v_add_f32_dpp v{S_(k)}, v{S_(k+4)}, v{S_(k+4)} row_half_mirror row_mask:0xf bank_mask:0xa')
    a(f'v_and_b32 v{t0}, 15, v{V_L}')
    a(f'v_lshrrev_b32 v{t1}, 4, v{V_L}')
    a(f'v_and_b32 v{t2}, 3, v{V_L}')
    for qp in ('[3,2,1,0]', '[1,0,3,2]'):
        for k in range(4):
            a(f'v_add_f32_dpp v{S_(k)}, v{S_(k)}, v{S_(k)} quad_perm:{qp} row_mask:0xf bank_mask:0xf')
    a(f'v_cmp_eq_u32 vcc, 1, v{t2}')
    a(f'v_cmp_eq_u32 s[84:85], 2, v{t2}')
    a(f'v_cmp_eq_u32 {sp(S_TMP2)}, 3, v{t2}')
    a(f'v_mul_u32_u24 v{t1}, 96, v{t1}')
    a(f'v_cndmask_b32 v{ST}, v{ST}, v{S_(1)}, vcc')
    a(f'v_cndmask_b32 v{ST}, v{ST}, v{S_(2)}, s[84:85]')
    a(f'v_cndmask_b32 v{ST}, v{ST}, v{S_(3)}, {sp(S_TMP2)}')
    a(f'v_mov_b32_dpp v{ST+1}, v{ST} row_ror:8 row_mask:0xf bank_mask:0xf')
    a(f'v_mul_f32 v{ST}, {hx(1/768)}, v{ST}')
    a(f'v_mul_f32 v{ST+1}, {hx(1/768)}, v{ST+1}')
    a(f'v_fma_f32 v{ST+1}, -v{ST}, v{ST}, v{ST+1}')
    a(f'v_max_f32 v{ST+1}, 0, v{ST+1}')
    a(f'v_cvt_pk_bf16_f32 v{ST+2}, v{ST}, v{ST+1}')
    a(f'v_lshlrev_b32 v{ST}, 16, v{ST+2}')
    a(f'v_and_b32 v{ST+1}, 0xffff0000, v{ST+2}')
    a(f'v_add_f32 v{ST+1}, {hx(1e-5)}, v{ST+1}')
    a(f'v_add_u32 v{t0}, v{t0}, v{t1}')
    a(f'v_cvt_pk_bf16_f32 v{ST+1}, v{ST+1}, v{ST+1}')
    a(f'v_and_b32 v{ST+1}, 0xffff0000, v{ST+1}')
    a(f'v_sqrt_f32 v{ST+1}, v{ST+1}')
    for j in range(8):
        a(f'v_mov_b32_dpp v{MM+j}, v{ST} row_newbcast:{j} row_mask:0xf bank_mask:0xf')
    a(f'v_cvt_pk_bf16_f32 v{ST+1}, v{ST+1}, v{ST+1}')
    a(f'v_and_b32 v{ST+1}, 0xffff0000, v{ST+1}')
    a(f'v_rcp_f32 v{ST+1}, v{ST+1}')
    a(f's_mul_i32 s{S_T}, s{S_WI}, 384')
    a(f's_mul_i32 s{S_T2}, s{S_WJ}, 48')
    a(f's_add_u32 s{S_T}, s{S_T}, s{S_T2}')
    a(f'v_add_u32 v{t0}, s{S_T}, v{t0}')
    a(f'v_lshlrev_b32 v{V_US}, 4, v{t0}')
    for j in range(8):
        a(f'v_mov_b32_dpp v{RR+j}, v{ST+1} row_newbcast:{j} row_mask:0xf bank_mask:0xf')
    a(f's_lshl_b32 s{S_T}, s{S_CB}, 5')
    a(f's_add_u32 s{S_T}, s{S_T}, s{S_RB}')
    a(f's_lshl_b32 s{S_FZA}, s{S_T}, 2')
    a(f's_add_u32 s{S_FZA}, s{S_FZA}, {WS_FZ}')
    a(f's_mul_i32 s{S_T}, s{S_T}, 12288')
    a(f's_add_u32 s{S_T}, s{S_T}, {WS_Z}')
    for phi in range(3):
        for tau in range(2):
            T = [V_T, V_T + 4]
            def both(f):
                for hh in range(2): a(f(ACC2 + 4 * (3 * tau + phi) + 2 * hh, T[hh], 4 * tau + 2 * hh, hh))
            both(lambda c, t, r, hh: f'v_lshlrev_b32 v{t}, 16, v{c}')
            both(lambda c, t, r, hh: f'v_and_b32 v{t+1}, 0xffff0000, v{c}')
            both(lambda c, t, r, hh: f'v_pk_add_f32 {vr(t,2)}, {vr(t,2)}, {vr(MM+r,2)} neg_lo:[0,1] neg_hi:[0,1]')
            both(lambda c, t, r, hh: f'v_cvt_pk_bf16_f32 v{t+2}, v{t}, v{t+1}')
            both(lambda c, t, r, hh: f'v_lshlrev_b32 v{t}, 16, v{t+2}')
            both(lambda c, t, r, hh: f'v_and_b32 v{t+1}, 0xffff0000, v{t+2}')
            both(lambda c, t, r, hh: f'v_pk_mul_f32 {vr(t,2)}, {vr(t,2)}, {vr(RR+r,2)}')
            both(lambda c, t, r, hh: f'v_cvt_pk_bf16_f32 v{ZQ+4*phi+2*tau+hh}, v{t}, v{t+1}')
        a(f'buffer_store_dwordx4 {vr(ZQ+4*phi,4)}, v{V_US}, {srd(SRD_WS)}, s{S_T} offen offset:{256*phi} sc1')
    vm.issue('z', 3)
```

```python
import numpy as np
from gen import *
import gen as _g
_stamp0 = stamp
PST = {'start': None}
def stamp(a, i, base=18):
    if PST['start'] is not None and i not in (0, 15): return
    if PST.get('clk') and _g.PROF['on']:
        m = {1: 3, 2: 4, 9: 5, 10: 6, 0: 7, 15: 8}
        if i in (3, 4, 5, 6, 7, 8): return
        if i in m:
            a('s_memtime s[14:15]')
            a('s_waitcnt lgkmcnt(0)')
            a(f's_mov_b32 s{base+m[i]}, s14')
    _stamp0(a, i, base)
def sstamp(a, stage):
    if PST['start'] is None: return
    k = stage - PST['start']
    if 0 <= k < 14: _stamp0(a, 1 + k)

SLOT = 20480
BOFF = 8192
S_RB, S_CB, S_WI, S_WJ = 82, 83, 86, 87
S_KC, S_AO, S_BO, S_T, S_T2, S_CNT = 88, 89, 90, 91, 92, 93
S_ABASE, S_BBASE = 94, 95
S_M_A, S_M_B, S_M_C = 3, 4, 5
S_K1 = 6
S_ONE = 8
S_KC0 = 10
S_FZA = 11
S_TMP2 = 12
S_WOB = 76
S_ROT = 78
CTR = 19456
V_L = 1
V_AD = 2
V_BD = 4
V_AR = 7
V_BR = 11
V_UR, V_US = 13, 14
V_T = 16
ACC2, ACC1, WF, XF = 24, 48, 72, 96
t0, t1, t2, t3 = V_T, V_T + 1, V_T + 2, V_T + 3
ST, MM, RR, ZQ, BSP, K0V = 96, 112, 120, 128, 140, 142
LN = 3 * SLOT

class VM:
    def __init__(self): self.ops = []
    def issue(self, tag, n=1): self.ops += [tag] * n
    def n_after(self, tag):
        idx = max(i for i, t in enumerate(self.ops) if t == tag)
        return len(self.ops) - 1 - idx

def gelu2(a, cs, k0v, after):
    T = [V_T, V_T + 4]
    def both(f):
        for c, t in zip(cs, T): a(f(c, t))
    both(lambda c, t: f'v_cvt_pk_bf16_f32 v{t+2}, v{c}, v{c+1}')
    both(lambda c, t: f'v_lshlrev_b32 v{t}, 16, v{t+2}')
    both(lambda c, t: f'v_and_b32 v{t+1}, 0xffff0000, v{t+2}')
    both(lambda c, t: f'v_pk_mul_f32 {vr(t+2,2)}, {vr(t,2)}, {vr(t,2)}')
    both(lambda c, t: f'v_pk_fma_f32 {vr(t+2,2)}, {vr(t+2,2)}, {sp(S_K1)}, {vr(k0v,2)}')
    both(lambda c, t: f'v_pk_mul_f32 {vr(t+2,2)}, {vr(t+2,2)}, {vr(t,2)}')
    both(lambda c, t: f'v_exp_f32 v{t+2}, v{t+2}')
    both(lambda c, t: f'v_exp_f32 v{t+3}, v{t+3}')
    both(lambda c, t: f'v_pk_add_f32 {vr(t+2,2)}, {vr(t+2,2)}, {sp(S_ONE)}')
    both(lambda c, t: f'v_rcp_f32 v{t+2}, v{t+2}')
    both(lambda c, t: f'v_rcp_f32 v{t+3}, v{t+3}')
    both(lambda c, t: f'v_pk_mul_f32 {vr(t+2,2)}, {vr(t+2,2)}, {vr(t,2)}')
    steps = [after(c, t) for c, t in zip(cs, T)]
    for x, y in zip(*steps):
        a(x); a(y)

def gelu_packed(regs, k0v):
    T = [V_T, V_T + 4]
    L = []
    def both(f):
        for c, t in zip(regs, T): L.append(f(c, t))
    both(lambda c, t: f'v_lshlrev_b32 v{t}, 16, v{c}')
    both(lambda c, t: f'v_and_b32 v{t+1}, 0xffff0000, v{c}')
    both(lambda c, t: f'v_pk_mul_f32 {vr(t+2,2)}, {vr(t,2)}, {vr(t,2)}')
    both(lambda c, t: f'v_pk_fma_f32 {vr(t+2,2)}, {vr(t+2,2)}, {sp(S_K1)}, {vr(k0v,2)}')
    both(lambda c, t: f'v_pk_mul_f32 {vr(t+2,2)}, {vr(t+2,2)}, {vr(t,2)}')
    both(lambda c, t: f'v_exp_f32 v{t+2}, v{t+2}')
    both(lambda c, t: f'v_exp_f32 v{t+3}, v{t+3}')
    both(lambda c, t: f'v_pk_add_f32 {vr(t+2,2)}, {vr(t+2,2)}, {sp(S_ONE)}')
    both(lambda c, t: f'v_rcp_f32 v{t+2}, v{t+2}')
    both(lambda c, t: f'v_rcp_f32 v{t+3}, v{t+3}')
    both(lambda c, t: f'v_pk_mul_f32 {vr(t+2,2)}, {vr(t+2,2)}, {vr(t,2)}')
    both(lambda c, t: f'v_cvt_pk_bf16_f32 v{c}, v{t+2}, v{t+3}')
    return L

def flag_store(a, sreg, vtmp):
    a(f'v_mov_b32 v{vtmp}, s{S_TAG}')
    a(f's_mov_b64 {sp(S_TMP2)}, exec')
    a('s_mov_b64 exec, 1')
    a(f'buffer_store_dword v{vtmp}, off, {srd(SRD_WS)}, s{sreg} sc1')
    a(f's_mov_b64 exec, {sp(S_TMP2)}')

def gemm_role(a, opt):
    vm = VM()
    PST['start'] = opt.get('pst')
    PST['clk'] = opt.get('clk')
    stop = opt.get('stop', 99)
    OC = {0: '', 1: 'sc1', 2: 'nt', 3: 'sc0 sc1'}[opt.get('oc', 0)]
    LNS = opt.get('lns', 16)
    LDS_ = opt.get('lds', 15)
    FZS = opt.get('fzs', 1)
    assert LNS + FZS <= 19 and 13 <= LDS_ < LNS
    c0 = np.sqrt(2 / np.pi)
    k0 = -2 * c0 * LOG2E; k1 = k0 * 0.044715
    a(f's_setprio {opt.get("prio", 2)}')
    if opt.get('tk', 0):
        CT = 20480 - 64
        a(f's_cmp_lg_u32 s{S_W}, 0')
        a('s_cbranch_scc1 L_tk_wait')
        mk_srd(a, SRD_X, P_DBG, 256)
        a(f's_getreg_b32 s{S_T}, hwreg(HW_REG_XCC_ID, 0, 3)')
        a(f's_mov_b64 {sp(S_TMP2)}, exec')
        a('s_mov_b64 exec, 1')
        a(f's_mov_b32 s{S_KC}, 8')
        a.lab('L_tk_try')
        a('v_mov_b32 v2, 1')
        a(f's_lshl_b32 s{S_CNT}, s{S_T}, 5')
        a(f'buffer_atomic_add v2, off, {srd(SRD_X)}, s{S_CNT} sc0 sc1')
        a('s_waitcnt vmcnt(0)')
        a(f'v_readfirstlane_b32 s{S_T2}, v2')
        a(f's_cmp_lt_u32 s{S_T2}, 32')
        a('s_cbranch_scc1 L_tk_got')
        a(f's_add_u32 s{S_T}, s{S_T}, 1')
        a(f's_and_b32 s{S_T}, s{S_T}, 7')
        a(f's_sub_u32 s{S_KC}, s{S_KC}, 1')
        a(f's_cmp_lg_u32 s{S_KC}, 0')
        a('s_cbranch_scc1 L_tk_try')
        a.lab('L_tk_got')
        a(f's_lshl_b32 s{S_T2}, s{S_T2}, 3')
        a(f's_or_b32 s{S_T2}, s{S_T2}, s{S_T}')
        a(f'v_mov_b32 v2, s{S_T2}')
        a(f'v_mov_b32 v3, {CT}')
        a('ds_write_b32 v3, v2')
        a('s_waitcnt lgkmcnt(0)')
        a(f's_mov_b64 exec, {sp(S_TMP2)}')
        a.lab('L_tk_wait')
        a('s_barrier')
        a(f'v_mov_b32 v3, {CT}')
        a('ds_read_b32 v2, v3')
        a('s_waitcnt lgkmcnt(0)')
        a(f'v_readfirstlane_b32 s{S_CNT}, v2')
        a('s_barrier')
        a(f's_and_b32 s{S_T}, s{S_CNT}, 7')
        a(f's_lshr_b32 s{S_T2}, s{S_CNT}, 3')
        a(f's_and_b32 s{S_T2}, s{S_T2}, 31')
    else:
        a(f's_and_b32 s{S_T}, s2, 7')
        a(f's_lshr_b32 s{S_T2}, s2, 3')
    a(f's_lshr_b32 s{S_RB}, s{S_T}, 1')
    a(f's_lshl_b32 s{S_RB}, s{S_RB}, 3')
    a(f's_lshr_b32 s{S_CNT}, s{S_T2}, 2')
    a(f's_add_u32 s{S_RB}, s{S_RB}, s{S_CNT}')
    a(f's_and_b32 s{S_CB}, s{S_T}, 1')
    a(f's_lshl_b32 s{S_CB}, s{S_CB}, 2')
    a(f's_and_b32 s{S_CNT}, s{S_T2}, 3')
    a(f's_add_u32 s{S_CB}, s{S_CB}, s{S_CNT}')
    a(f's_lshr_b32 s{S_WI}, s{S_W}, 1')
    a(f's_and_b32 s{S_WJ}, s{S_W}, 1')
    a(f's_mul_i32 s{S_KC}, s{S_CB}, 3')
    a(f's_add_u32 s{S_KC}, s{S_KC}, s{S_RB}')
    a(f's_mul_i32 s{S_T}, s{S_KC}, 205')
    a(f's_lshr_b32 s{S_T}, s{S_T}, 11')
    a(f's_mul_i32 s{S_T}, s{S_T}, 10')
    a(f's_sub_u32 s{S_KC}, s{S_KC}, s{S_T}')
    if opt.get('rot1', 0) == 3: a(f's_mov_b32 s{S_KC}, s{S_CB}')
    a(f's_mov_b32 s{S_KC0}, s{S_KC}')
    if opt.get('rot1') == 1: a(f's_mov_b32 s{S_KC}, 0')
    if opt.get('rot1') == 2:
        a(f's_lshr_b32 s{S_KC}, s{S_RB}, 3')
    a(f's_lshl_b32 s{S_M_A}, s{S_W}, 11')
    a(f's_mul_i32 s{S_M_B}, s{S_W}, 3072')
    a(f's_add_u32 s{S_M_B}, s{S_M_B}, {BOFF}')
    a(f's_mul_i32 s{S_ABASE}, s{S_RB}, {64*1280}')
    a(f's_mul_i32 s{S_BBASE}, s{S_CB}, 192')
    a(f's_add_u32 s{S_BBASE}, s{S_BBASE}, 1536')
    def row_dma_offsets(pitch):
        a(f'v_lshrrev_b32 v{t0}, 3, v{V_L}')
        a(f'v_and_b32 v{t1}, 7, v{V_L}')
        a(f'v_bfe_u32 v{t2}, v{V_L}, 4, 1')
        a(f'v_xor_b32 v{t1}, v{t1}, v{t2}')
        a(f's_lshl_b32 s{S_T}, s{S_W}, 4')
        a(f'v_add_u32 v{t0}, s{S_T}, v{t0}')
        a(f'v_mul_u32_u24 v{t0}, {pitch}, v{t0}')
        a(f's_lshl_b32 s{S_T}, s{S_WJ}, 2')
        a(f'v_xor_b32 v{t1}, s{S_T}, v{t1}')
        a(f'v_lshl_add_u32 v{V_AD}, v{t1}, 4, v{t0}')
        a(f'v_xor_b32 v{t1}, 2, v{t1}')
        a(f'v_lshl_add_u32 v{V_AD+1}, v{t1}, 4, v{t0}')
        a(f'v_add_u32 v{V_AD+1}, {8*pitch-1024}, v{V_AD+1}')
    row_dma_offsets(1280)
    def run_units(units, track=True):
        for (lines, tag) in units:
            for l in lines: a(l)
            if track: vm.issue(tag, 1)
    def dma_p1_A(stage, kc=None):
        slot = (stage & 3) * SLOT
        return [([f's_lshl_b32 s{S_AO}, s{S_KC}, 7', f's_add_u32 s{S_AO}, s{S_AO}, s{S_ABASE}', f's_add_u32 m0, s{S_M_A}, {slot}',
                  f'buffer_load_dwordx4 v{V_AD}, {srd(SRD_X)}, s{S_AO} offen lds'], ('A', stage)),
                ([f'buffer_load_dwordx4 v{V_AD+1}, {srd(SRD_X)}, s{S_AO} offen offset:1024 lds'], ('A', stage))]
    def dma_p1_B(stage):
        slot = (stage & 3) * SLOT
        U = []
        pre = [f's_mul_i32 s{S_BO}, s{S_KC}, {64*3072}', f's_add_u32 s{S_BO}, s{S_BO}, s{S_BBASE}', f's_add_u32 m0, s{S_M_B}, {slot}', f's_add_u32 s{S_KC}, s{S_KC}, 1']
        for j in range(3):
            L = (pre if j == 0 else []) + [f'buffer_load_dwordx4 v{V_BD+j}, {srd(SRD_WIN)}, s{S_BO} offen offset:{1024*j} lds']
            if j == 2:
                L += [f's_cmp_eq_u32 s{S_KC}, 10', f's_cselect_b32 s{S_KC}, 0, s{S_KC}']
                if stage == 9: L += [f's_sub_u32 s{S_BBASE}, s{S_BBASE}, 1536']
            U.append((L, ('B', stage)))
        return U
    def dma_p1(stage): return (dma_p1_A(stage) if stage < 10 else []) + dma_p1_B(stage)
    a(f's_mul_i32 s{S_T}, s{S_W}, 192')
    for j in range(3):
        a(f'v_add_u32 v{t0}, s{S_T}, v{V_L}')
        if j: a(f'v_add_u32 v{t0}, {64*j}, v{t0}')
        a(f'v_mul_u32_u24 v{t1}, 43691, v{t0}')
        a(f'v_lshrrev_b32 v{t1}, 19, v{t1}')
        a(f'v_mul_u32_u24 v{t2}, 12, v{t1}')
        a(f'v_sub_u32 v{t0}, v{t0}, v{t2}')
        a(f'v_bfe_u32 v{t2}, v{t1}, 3, 1')
        a(f'v_mad_u32_u24 v{t0}, v{t2}, 6, v{t0}')
        a(f'v_subrev_u32 v{t2}, 12, v{t0}')
        a(f'v_min_u32 v{t0}, v{t0}, v{t2}')
        a(f'v_mul_u32_u24 v{t1}, 3072, v{t1}')
        a(f'v_lshl_add_u32 v{V_BD+j}, v{t0}, 4, v{t1}')
        if j: a(f'v_subrev_u32 v{V_BD+j}, {1024*j}, v{V_BD+j}')
    a('s_waitcnt lgkmcnt(0)')
    stamp(a, 0)
    mk_srd(a, SRD_X, P_U, 2048 * 640 * 2)
    mk_srd(a, SRD_WIN, P_WIN, 640 * 1536 * 2)
    NP0 = opt.get('np0', 4)
    for s in range(0, NP0): run_units(dma_p1(s))
    mk_srd(a, SRD_WSP, P_WSP, 2048 * 2048 * 2)
    mk_srd(a, SRD_OUT, P_OUT, 2048 * 640 * 2)
    PAT7 = ([-1, -1, 9, 9], [-1, 9, 9])
    PAT = {5: ([0, 2, 4], [1, 3]), 3: ([1, 4], [2]), 2: ([1], [2]), 0: ([], [])}
    if opt.get('pat') == 1: PAT = {5: ([9, 9, 9], [9, 9]), 3: ([9, 9], [9]), 2: ([9], [9]), 0: ([], [])}
    if opt.get('pat') == 2: PAT = {5: ([9, 9, 9, 9, 9], []), 3: ([9, 9, 9], []), 2: ([9, 9], []), 0: ([], [])}
    if opt.get('pat', 3) == 3: PAT = {5: ([-1, -1, 9], [-1, 9]), 3: ([-1, 9], [9]), 2: ([9], [9]), 0: ([], [])}
    def with_units(mf_lines, pos_units, track=True):
        for (p, u) in pos_units:
            if p < 0: run_units([u], track)
        for i, l in enumerate(mf_lines):
            a(l)
            for (p, u) in pos_units:
                if p == i: run_units([u], track)
        for (p, u) in pos_units:
            if p >= len(mf_lines): run_units([u], track)
    def split_units(U):
        first, second = PAT[len(U)] if len(U) in PAT else PAT7 if len(U) == 7 else ([-1, 9], [-1, 9]) if len(U) == 4 else ([-1, -1] + [9] * (len(U) - 2), [])
        return list(zip(first, U[:len(first)])), list(zip(second, U[len(first):]))
    def lane_mq():
        a(f'v_and_b32 v{t0}, 15, v{V_L}')
        a(f'v_lshrrev_b32 v{t1}, 4, v{V_L}')
    lane_mq()
    a(f'v_lshrrev_b32 v{t2}, 2, v{t0}')
    a(f'v_lshlrev_b32 v{t3}, 3, v{t2}')
    a(f'v_and_b32 v{V_AR}, 3, v{t0}')
    a(f'v_add_u32 v{t3}, v{t3}, v{V_AR}')
    a(f's_lshl_b32 s{S_T}, s{S_WI}, 5')
    a(f'v_add_u32 v{t3}, s{S_T}, v{t3}')
    a(f'v_lshlrev_b32 v{t3}, 7, v{t3}')
    a(f'v_lshlrev_b32 v{t2}, 1, v{t2}')
    a(f'v_bfe_u32 v{V_AR}, v{t0}, 1, 1')
    a(f'v_or_b32 v{t2}, v{t2}, v{V_AR}')
    a(f'v_xor_b32 v{t2}, v{t2}, v{t1}')
    a(f'v_lshl_add_u32 v{V_AR}, v{t2}, 4, v{t3}')
    a(f'v_xor_b32 v{V_AR+1}, 64, v{V_AR}')
    a(f'v_add_u32 v{V_AR+2}, {2*SLOT}, v{V_AR}')
    a(f'v_add_u32 v{V_AR+3}, {2*SLOT}, v{V_AR+1}')
    a(f'v_lshrrev_b32 v{t2}, 2, v{t0}')
    a(f'v_lshl_add_u32 v{t2}, v{t1}, 3, v{t2}')
    a(f'v_mul_u32_u24 v{t2}, 192, v{t2}')
    a(f'v_and_b32 v{t3}, 1, v{t1}')
    a(f'v_xor_b32 v{t3}, s{S_WJ}, v{t3}')
    a(f'v_mul_u32_u24 v{t3}, 96, v{t3}')
    a(f'v_add_u32 v{t2}, v{t2}, v{t3}')
    a(f'v_and_b32 v{t3}, 3, v{V_L}')
    a(f'v_lshl_add_u32 v{V_BR}, v{t3}, 3, v{t2}')
    a(f'v_add_u32 v{V_BR}, {BOFF}, v{V_BR}')
    a(f'v_add_u32 v{V_BR+1}, {2*SLOT}, v{V_BR}')
    a(f'v_lshrrev_b32 v{t2}, 2, v{t0}')
    a(f'v_lshl_add_u32 v{t3}, v{t1}, 3, v{t2}')
    a(f'v_lshlrev_b32 v{V_UR}, 7, v{t3}')
    a(f'v_lshrrev_b32 v{t2}, 1, v{t2}')
    a(f'v_lshl_or_b32 v{t2}, v{t1}, 1, v{t2}')
    a(f'v_bfe_u32 v{t3}, v{V_L}, 1, 1')
    a(f's_lshl_b32 s{S_T}, s{S_W}, 1')
    a(f'v_add_u32 v{t3}, s{S_T}, v{t3}')
    a(f'v_xor_b32 v{t3}, v{t3}, v{t2}')
    a(f'v_lshl_add_u32 v{V_UR}, v{t3}, 4, v{V_UR}')
    a(f'v_and_b32 v{t3}, 1, v{V_L}')
    a(f'v_lshl_add_u32 v{V_UR}, v{t3}, 3, v{V_UR}')
    a(f's_lshl_b32 s{S_T}, s{S_W}, 4')
    a(f'v_add_u32 v{V_US}, s{S_T}, v{t0}')
    a(f'v_lshlrev_b32 v{V_US}, 12, v{V_US}')
    a(f'v_lshl_add_u32 v{V_US}, v{t1}, 4, v{V_US}')
    a(f's_mov_b32 s{S_K1}, {hx(k1)}')
    a(f's_mov_b32 s{S_K1+1}, {hx(k1)}')
    a(f's_mov_b32 s{S_ONE}, 1.0')
    a(f's_mov_b32 s{S_ONE+1}, 1.0')
    for s in range(NP0, 4): run_units(dma_p1(s))
    mk_srd(a, SRD_WS, P_WS, WS_SIZE)
    a(f'buffer_load_dword v15, off, {srd(SRD_WS)}, 0 sc1')
    vm.issue('epoch')
    T1 = opt.get('t1', 0)
    if T1:
        a(f's_lshl_b32 s{S_T}, s{S_RB}, 18')
        a(f's_and_b32 s{S_T2}, s{S_CB}, {3 if T1 == 2 else 7}')
        a(f's_lshl_b32 s{S_T2}, s{S_T2}, {16 if T1 == 2 else 15}')
        a(f's_add_u32 s{S_T}, s{S_T}, s{S_T2}')
        a(f's_mul_i32 s{S_T2}, s{S_W}, {T1*8192}')
        a(f's_add_u32 s{S_T}, s{S_T}, s{S_T2}')
        a(f'v_lshlrev_b32 v{t0}, 7, v{V_L}')
        for j in range(T1):
            a(f'buffer_load_dword v0, v{t0}, {srd(SRD_WSP)}, s{S_T} offen')
            a(f's_add_u32 s{S_T}, s{S_T}, 8192')
            vm.issue('t1', 1)

    def ar(stage, ks): return V_AR + ks + (2 if (stage & 2) else 0)
    def so(stage): return (stage & 1) * SLOT
    def br(stage): return V_BR + (1 if (stage & 2) else 0)
    def reads_p1(stage, ks):
        n = 0
        if stage < 10:
            for tau in range(2):
                a(f'ds_read_b128 {vr(XF+16*stage+8*ks+4*tau,4)}, v{ar(stage,ks)} offset:{so(stage)+512*tau}'); n += 1
        for phi in range(3):
            for half in range(2):
                a(f'ds_read_b64_tr_b16 {vr(WF+12*ks+4*phi+2*half,2)}, v{br(stage)} offset:{so(stage)+6144*ks+768*half+32*phi}'); n += 1
        return n
    def mfma_p1(stage, ks):
        i = stage % 10
        L = []
        for tau in range(2):
            for phi in range(3):
                x = vr(XF + 16 * i + 8 * ks + 4 * tau, 4); w = vr(WF + 12 * ks + 4 * phi, 4)
                if stage < 10:
                    c = vr(ACC2 + 4 * (3 * tau + phi), 4)
                    L.append(f'v_mfma_f32_16x16x32_bf16 {c}, {x}, {w}, {c if (i or ks) else 0}')
                else:
                    c = vr(ACC1 + 4 * (2 * phi + tau), 4)
                    L.append(f'v_mfma_f32_16x16x32_bf16 {c}, {w}, {x}, {c if (i or ks) else 0}')
        return L
    def dma_p2_A(stage):
        slot = (stage & 3) * SLOT
        return [([f's_lshl_b32 s{S_AO}, s{S_KC}, 7', f's_add_u32 s{S_AO}, s{S_AO}, s{S_ABASE}', f's_add_u32 m0, s{S_M_A}, {slot}', f's_add_u32 s{S_KC}, s{S_KC}, 1',
                  f'buffer_load_dwordx4 v{V_AD}, {srd(SRD_WSP)}, s{S_AO} offen lds'], ('A', stage)),
                ([f'buffer_load_dwordx4 v{V_AD+1}, {srd(SRD_WSP)}, s{S_AO} offen offset:1024 lds', f's_and_b32 s{S_KC}, s{S_KC}, 31'], ('A', stage))]
    S_KZ = S_KC0
    def dma_p2_B(stage):
        slot = (stage & 3) * SLOT
        U = []
        for j in range(3):
            L = [f's_mul_i32 s{S_BO}, s{S_KZ}, 12288', f's_add_u32 s{S_BO}, s{S_BO}, s{S_BBASE}', f's_add_u32 m0, s{S_M_B}, {slot}', f's_add_u32 s{S_KZ}, s{S_KZ}, 1'] if j == 0 else []
            L += [f'buffer_load_dwordx4 v{V_BD}, {srd(SRD_WS)}, s{S_BO} offen offset:{1024*j} sc1 lds']
            if j == 2: L += [f's_and_b32 s{S_KZ}, s{S_KZ}, 31']
            U.append((L, ('B', stage)))
        return U
    def rot2(dst):
        m = opt.get('rot2', 1)
        if m == 1:
            a(f's_lshl_b32 s{dst}, s{S_CB}, 3')
            a(f's_add_u32 s{dst}, s{dst}, s{S_RB}')
        elif m == 2:
            a(f's_lshl_b32 s{dst}, s{S_CB}, 1')
            a(f's_add_u32 s{dst}, s{dst}, s{S_RB}')
            a(f's_lshl_b32 s{dst}, s{dst}, 2')
        elif m == 3:
            a(f's_lshl_b32 s{dst}, s{S_CB}, 1')
            a(f's_add_u32 s{dst}, s{dst}, s{S_RB}')
            a(f's_lshl_b32 s{dst}, s{dst}, 2')
            a(f's_lshr_b32 s{S_T2}, s{S_RB}, 3')
            a(f's_add_u32 s{dst}, s{dst}, s{S_T2}')
        elif m == 6:
            a(f's_lshl_b32 s{dst}, s{S_CB}, 3')
            a(f's_add_u32 s{dst}, s{dst}, s{S_RB}')
            a(f's_and_b32 s{S_T2}, s{S_CB}, 4')
            a(f's_add_u32 s{dst}, s{dst}, s{S_T2}')
        elif m == 7:
            a(f's_lshl_b32 s{dst}, s{S_CB}, 1')
            a(f's_add_u32 s{dst}, s{dst}, s{S_RB}')
            a(f's_lshr_b32 s{S_T2}, s{S_CB}, 2')
            a(f's_add_u32 s{dst}, s{dst}, s{S_T2}')
            a(f's_lshl_b32 s{dst}, s{dst}, 2')
        elif m == 4:
            a(f's_mov_b32 s{dst}, s{S_RB}')
        elif m == 5:
            a(f's_and_b32 s{dst}, s{S_RB}, 24')
        a(f's_and_b32 s{dst}, s{dst}, 31')
    def ut_chunk(extra):
        if extra:
            a(f's_add_u32 s{S_T}, s{S_KC0}, {extra}')
            a(f's_sub_u32 s{S_T2}, s{S_T}, 10')
            a(f's_min_u32 s{S_T}, s{S_T}, s{S_T2}')
        else:
            a(f's_mov_b32 s{S_T}, s{S_KC0}')
    V_A4 = 144
    def wsp_setup():
        a(f'v_lshrrev_b32 v{t0}, 3, v{V_L}')
        a(f'v_lshlrev_b32 v{t0}, 12, v{t0}')
        a(f'v_and_b32 v{t1}, 7, v{V_L}')
        a(f'v_bfe_u32 v{t2}, v{V_L}, 4, 1')
        a(f'v_xor_b32 v{t1}, v{t1}, v{t2}')
        for j in range(4):
            a(f'v_xor_b32 v{t2}, {2*j}, v{t1}')
            a(f'v_lshl_add_u32 v{VA4(j)}, v{t2}, 4, v{t0}')
            if j: a(f'v_add_u32 v{VA4(j)}, {8*j*4096-1024*j}, v{VA4(j)}')
        a(f's_lshl_b32 s{S_ABASE}, s{S_RB}, 18')
        a(f's_mul_i32 s{S_M_A}, s{S_W}, {SLOT}')
        rot2(S_KA)
        a(f's_add_u32 s{S_KA}, s{S_KA}, s{S_W}')
    def VA4(j): return (V_AD, V_AD + 1, V_UR + 0 if False else 15, 0)[j]
    S_KA = S_M_C
    def adma(par):
        U = []
        for gq in range(8):
            L = []
            if gq == 0:
                L += [f's_and_b32 s{S_KA}, s{S_KA}, {3 if opt.get("x_same") else 31}', f's_lshl_b32 s{S_A2}, s{S_KA}, 7', f's_add_u32 s{S_A2}, s{S_A2}, s{S_ABASE}', f's_add_u32 s{S_KA}, s{S_KA}, 4']
            if gq == 4:
                L += [f's_add_u32 s{S_A2}, s{S_A2}, 131072']
            L += [f's_add_u32 m0, s{S_M_A}, {8192*par+4096*(gq>>2)}']
            L += [f'buffer_load_dwordx4 v{VA4(gq&3)}, {srd(SRD_WSP)}, s{S_A2} offen offset:{1024*(gq&3)} lds']
            U.append((L, ('A2', par)))
        return U
    S_A2 = 77
    U2 = 8 if opt.get('rot1', 0) == 3 else 4
    UT = V_T
    pend = []
    a(f's_waitcnt vmcnt({vm.n_after(("B", 0))})')
    a('s_barrier')
    stamp(a, 1)
    reads_p1(0, 0)
    for s in range(20):
        if s == 10:
            stamp(a, 2)
            e1_z2(a, opt, vm, k0)
            stamp(a, 3)
        if s == LDS_:
            e2_loads(a, vm)
        if s == LNS:
            stamp(a, 4)
            e2_layernorm(a, opt, vm)
            if opt.get('kd') == 2 or opt.get('cg') == 3:
                a(f's_cmp_lg_u32 s{S_W}, 3')
                a('s_cbranch_scc1 L_fs2_skip')
                a(f's_lshl_b32 s{S_T}, s2, 2')
                a(f's_add_u32 s{S_T}, s{S_T}, {WS_FS+1024}')
                flag_store(a, S_T, 18)
                a.lab('L_fs2_skip')
            stamp(a, 5)
        n1 = reads_p1(s, 1)
        ut = s in (0, U2)
        if ut:
            if s == U2:
                a(f's_cmp_ge_u32 s{S_CB}, 2')
                a('s_cbranch_scc1 L_ut2_skip')
            for h2 in range(2):
                for half in range(2):
                    a(f'ds_read_b64_tr_b16 {vr(UT+4*h2+2*half,2)}, v{V_UR} offset:{(s&3)*SLOT+4096*h2+512*half}')
            if s == U2:
                a.lab('L_ut2_skip')
        a(f's_waitcnt lgkmcnt({n1+4 if s == 0 else n1})')
        with_units(mfma_p1(s, 0), pend); pend = []
        if s < 19:
            n = vm.n_after(('B', s + 1))
            if s == LNS + FZS: n = min(n, vm.n_after('z'))
            a(f's_waitcnt vmcnt({n}) lgkmcnt(0)')
        elif s == LNS + FZS:
            a(f's_waitcnt vmcnt({vm.n_after("z")}) lgkmcnt(0)')
        else:
            a('s_waitcnt lgkmcnt(0)')
        a('s_barrier')
        sstamp(a, s)
        if ut:
            if s == U2:
                a(f's_cmp_ge_u32 s{S_CB}, 2')
                a('s_cbranch_scc1 L_us2_skip')
            ut_chunk(s)
            a(f's_lshl_b32 s{S_T}, s{S_T}, 18')
            a(f's_lshl_b32 s{S_T2}, s{S_RB}, 7')
            a(f's_add_u32 s{S_T}, s{S_T}, s{S_T2}')
            a(f's_add_u32 s{S_T}, s{S_T}, {WS_UT}')
            for h2 in range(2):
                a(f'buffer_store_dwordx4 {vr(UT+4*h2,4)}, v{V_US}, {srd(SRD_WS)}, s{S_T} offen offset:{64*h2} sc1')
            if s == U2:
                a.lab('L_us2_skip')
            else:
                vm.issue('ut0', 2)
        if s == 3:
            a(f'v_readfirstlane_b32 s{S_TAG}, v15')
            a(f's_add_u32 s{S_TAG}, s{S_TAG}, 1')
        if s in (3, U2 + 3):
            a(f's_cmp_lg_u32 s{S_W}, 0')
            a(f's_cbranch_scc1 L_fu{s}_skip')
            if s == U2 + 3:
                a(f's_cmp_ge_u32 s{S_CB}, 2')
                a(f's_cbranch_scc1 L_fu{s}_skip')
            ut_chunk(s - 3)
            a(f's_lshl_b32 s{S_T}, s{S_T}, 5')
            a(f's_add_u32 s{S_T}, s{S_T}, s{S_RB}')
            a(f's_lshl_b32 s{S_T}, s{S_T}, 2')
            a(f's_add_u32 s{S_T}, s{S_T}, {WS_FU}')
            flag_store(a, S_T, V_T)
            a.lab(f'L_fu{s}_skip')
        if s == LNS + FZS:
            a(f's_cmp_lg_u32 s{S_W}, 0')
            a('s_cbranch_scc1 L_fz_skip')
            flag_store(a, S_FZA, V_T)
            a.lab('L_fz_skip')
            stamp(a, 6)
        if s + 4 < 20:
            U = dma_p1(s + 4)
        else:
            U = []
        if s == min(12, opt.get('a0s', 13)):
            wsp_setup()
        A0S = opt.get('a0s', 13)
        if A0S == 9:
            if s == 9: U = U + adma(0)
        elif s in (A0S, A0S + 1):
            U = U + adma(0)[4 * (s - A0S): 4 * (s - A0S) + 4]
        TP = opt.get('tp', 0)
        if TP:
            T0, TS = opt.get('tp0', 3), opt.get('tps', 4)
            for j in range(TP):
                for w in range(4):
                    if s == T0 + TS * j + (w * TS) // 4:
                        a(f's_cmp_lg_u32 s{S_W}, {w}')
                        a(f's_cbranch_scc1 L_tp{j}_{w}')
                        a(f's_lshl_b32 s{S_T}, s{S_RB}, 18')
                        a(f's_and_b32 s{S_T2}, s{S_CB}, {3 if TP == 2 else 7}')
                        a(f's_lshl_b32 s{S_T2}, s{S_T2}, {16 if TP == 2 else 15}')
                        a(f's_add_u32 s{S_T}, s{S_T}, s{S_T2}')
                        a(f's_add_u32 s{S_T}, s{S_T}, {(TP * w + j) * 8192}')
                        a(f'v_lshlrev_b32 v0, 7, v{V_L}')
                        a(f'buffer_load_dword v0, v0, {srd(SRD_WSP)}, s{S_T} offen')
                        a.lab(f'L_tp{j}_{w}')
        now, pend = split_units(U)
        if s + 1 in (10, LNS, 20):
            now = now + [(99, u) for (_, u) in pend]; pend = []
        if s < 19:
            reads_p1(s + 1, 0)
        with_units(mfma_p1(s, 1), now)
    stamp(a, 7)
    A1L = opt.get('a1l', 0)
    if not A1L: run_units(adma(1))
    V_PA = 141
    rot2(S_ROT)
    a(f's_add_u32 s{S_T}, s{S_ROT}, s{S_W}')
    a(f'v_lshl_add_u32 v{V_PA}, v{V_L}, 2, s{S_T}')
    a(f'v_and_b32 v{V_PA}, 31, v{V_PA}')
    a(f'v_lshlrev_b32 v{V_PA}, 2, v{V_PA}')
    a(f's_lshl_b32 s{S_T}, s{S_CB}, 7')
    a(f's_add_u32 s{S_T}, s{S_T}, {WS_FZ}')
    a(f'v_add_u32 v{V_PA}, s{S_T}, v{V_PA}')
    if opt.get('no_side') != 1:
        a(f'v_subrev_u32 v{t0}, 8, v{V_L}')
        a(f'v_min_u32 v{t0}, 5, v{t0}')
        a(f's_mul_i32 s{S_T}, s{S_CB}, 24')
        a(f's_mul_i32 s{S_T2}, s{S_W}, 6')
        a(f's_add_u32 s{S_T}, s{S_T}, s{S_T2}')
        a(f'v_add_u32 v{t0}, s{S_T}, v{t0}')
        a(f'v_lshlrev_b32 v{t0}, 2, v{t0}')
        a(f'v_add_u32 v{t0}, {WS_FW}, v{t0}')
        a(f'v_cmp_gt_u32 vcc, 8, v{V_L}')
        a(f'v_cndmask_b32 v{V_PA}, v{t0}, v{V_PA}, vcc')
    V_FL = 140
    S_RDY = 84
    def flags_load():
        a(f'buffer_load_dword v{V_FL}, v{V_PA}, {srd(SRD_WS)}, 0 offen sc1')
    nspin = [0]
    def need_bit(idx, mask=False, fresh=False):
        n = nspin[0]; nspin[0] += 1
        def test():
            if mask:
                a(f's_andn2_b32 s{S_T2}, {idx}, s{S_RDY}')
                a(f's_cbranch_scc0 L_nb{n}_ok')
            else:
                a(f's_bitcmp1_b32 s{S_RDY}, {idx}')
                a(f's_cbranch_scc1 L_nb{n}_ok')
        if fresh:
            a(f'v_cmp_eq_u32 s[{S_RDY}:{S_RDY+1}], s{S_TAG}, v{V_FL}')
        test()
        a(f's_mov_b32 s{S_CNT}, {SPIN_MAX}')
        a.lab(f'L_nb{n}_spin')
        flags_load()
        a('s_waitcnt vmcnt(0)')
        a(f'v_cmp_eq_u32 s[{S_RDY}:{S_RDY+1}], s{S_TAG}, v{V_FL}')
        test()
        if opt.get('psl', 4): a(f's_sleep {opt.get("psl", 4)}')
        a(f's_sub_u32 s{S_CNT}, s{S_CNT}, 1')
        a(f's_cmp_lg_u32 s{S_CNT}, 0')
        a(f's_cbranch_scc1 L_nb{n}_spin')
        a.lab(f'L_nb{n}_ok')
    a(f's_mov_b64 s[{S_RDY}:{S_RDY+1}], 0')
    a(f'v_mov_b32 v{K0V}, {hx(k0)}')
    a(f'v_mov_b32 v{K0V+1}, {hx(k0)}')
    V_ZW = V_US
    lane_mq()
    a(f'v_lshrrev_b32 v{t2}, 2, v{t0}')
    a(f'v_lshlrev_b32 v{t2}, 3, v{t2}')
    a(f'v_and_b32 v{t3}, 3, v{t0}')
    a(f'v_add_u32 v{t2}, v{t2}, v{t3}')
    a(f'v_lshlrev_b32 v{t2}, 3, v{t2}')
    a(f'v_mul_u32_u24 v{t3}, {SLOT}, v{t1}')
    a(f'v_add_u32 v{t2}, v{t2}, v{t3}')
    a(f's_mul_i32 s{S_T}, s{S_WJ}, 1536')
    a(f's_lshl_b32 s{S_T2}, s{S_WI}, 8')
    a(f's_add_u32 s{S_T}, s{S_T}, s{S_T2}')
    a(f's_add_u32 s{S_T}, s{S_T}, 16384')
    a(f'v_add_u32 v{V_ZW}, s{S_T}, v{t2}')
    Z1Q = 128
    def z1_group(i):
        phi, tau = i >> 1, i & 1
        cs = [ACC1 + 4 * i, ACC1 + 4 * i + 2]
        a(f'v_cvt_pk_bf16_f32 v{Z1Q+2*i}, v{cs[0]}, v{cs[0]+1}')
        a(f'v_cvt_pk_bf16_f32 v{Z1Q+2*i+1}, v{cs[1]}, v{cs[1]+1}')
        a(f'ds_write_b64 v{V_ZW}, {vr(Z1Q+2*i,2)} offset:{512*phi+32*tau}')
    NG1 = 6
    a(f'v_mov_b32 v{t2}, {CTR}')
    a(f'v_mov_b32 v{t3}, 8')
    a(f'ds_write_b32 v{t2}, v{t3}')
    for i in range(NG1): z1_group(i)
    G2 = 24
    ZR = 144
    AF = 120
    Z1R = 240
    V_ZD, V_A2R = V_BD, V_AR
    a(f'v_and_b32 v{t0}, 31, v{V_L}')
    a(f'v_lshrrev_b32 v{t1}, 5, v{V_L}')
    a(f's_lshl_b32 s{S_T}, s{S_W}, 3')
    a(f'v_add_u32 v{t3}, s{S_T}, v{t0}')
    a(f'v_and_b32 v{t3}, 31, v{t3}')
    a(f'v_mul_u32_u24 v{t2}, 96, v{t1}')
    a(f'v_add_u32 v{t2}, v{t2}, v{t3}')
    a(f'v_lshlrev_b32 v{V_ZD}, 4, v{t2}')
    a(f'v_lshrrev_b32 v{t2}, 3, v{t0}')
    a(f'v_lshlrev_b32 v{t2}, 1, v{t2}')
    a(f'v_bfe_u32 v{t3}, v{t0}, 1, 1')
    a(f'v_or_b32 v{t2}, v{t2}, v{t3}')
    a(f'v_xor_b32 v{t2}, v{t2}, v{t1}')
    a(f'v_lshlrev_b32 v{t3}, 7, v{t0}')
    a(f'v_lshl_add_u32 v{t2}, v{t2}, 4, v{t3}')
    a(f'v_add_u32 v{V_A2R}, s{S_M_A}, v{t2}')
    for ks in range(1, 4):
        a(f'v_xor_b32 v{t3}, {32*ks}, v{t2}')
        a(f'v_add_u32 v{V_A2R+ks}, s{S_M_A}, v{t3}')
    V_ZR = V_BR
    a(f's_lshl_b32 s{S_T}, s{S_WJ}, 1')
    a(f'v_add_u32 v{t2}, s{S_T}, v{t1}')
    a(f'v_mul_u32_u24 v{t2}, {SLOT}, v{t2}')
    a(f'v_lshl_add_u32 v{t2}, v{t0}, 3, v{t2}')
    a(f's_lshl_b32 s{S_T}, s{S_WI}, 9')
    a(f's_add_u32 s{S_T}, s{S_T}, 16384')
    a(f'v_add_u32 v{V_ZR}, s{S_T}, v{t2}')
    a(f's_lshl_b32 s{S_T}, s{S_RB}, 7')
    a(f'v_lshlrev_b32 v{t2}, 1, v{t0}')
    a(f'v_add_u32 v{t2}, s{S_T}, v{t2}')
    BS2 = 252
    a(f'global_load_ushort v{BS2}, v{t2}, {sp(P_BSP)}')
    a(f'global_load_ushort v{BS2+2}, v{t2}, {sp(P_BSP)} offset:64')
    rot2(S_KZ)
    a(f's_add_u32 s{S_KZ}, s{S_KZ}, s{S_W}')
    a(f's_mul_i32 s{S_BBASE}, s{S_CB}, {32*12288}')
    a(f's_add_u32 s{S_BBASE}, s{S_BBASE}, {WS_Z}')
    a('s_waitcnt lgkmcnt(0)')
    a('s_barrier')
    need_bit(0)
    stamp(a, 8)
    vm.ops = []
    def zld(par):
        U = []
        for ks in range(4):
            for ph in range(3):
                L = []
                if ks == 0 and ph == 0:
                    L += [f's_and_b32 s{S_KZ}, s{S_KZ}, {3 if opt.get("x_same") else 31}', f's_mul_i32 s{S_BO}, s{S_KZ}, 12288', f's_add_u32 s{S_BO}, s{S_BO}, s{S_BBASE}', f's_add_u32 s{S_KZ}, s{S_KZ}, 4']
                elif ph == 0:
                    L += [f's_add_u32 s{S_BO}, s{S_BO}, 3072']
                L += [f'buffer_load_dwordx4 {vr(ZR+48*par+12*ks+4*ph,4)}, v{V_ZD}, {srd(SRD_WS)}, s{S_BO} offen offset:{512*ph} sc1']
                U.append((L, ('Z', par, ks)))
        return U
    if not A1L: vm.issue(('A2', 1), 1)
    run_units([(l, ('Z', 0, t[2])) for (l, t) in zld(0)])
    if A1L == 1: run_units([(l, ('A2', 1)) for (l, _) in adma(1)])
    need_bit(1)
    run_units([(l, ('Z', 1, t[2])) for (l, t) in zld(1)])
    if A1L == 2: run_units([(l, ('A2', 1)) for (l, _) in adma(1)])
    flags_load(); vm.issue('fl', 1)
    for i in range(NG1, 6): z1_group(i)
    for i in range(6):
        a(f'ds_read_b64 {vr(Z1R+2*i,2)}, v{V_ZR} offset:{1024*(i>>1)+256*(i&1)}')
    if opt.get('cg', 0) == 1 or opt.get('kd') == 1:
        a(f's_cmp_lg_u32 s{S_W}, 3')
        a('s_cbranch_scc1 L_fs_skip')
        a(f's_lshl_b32 s{S_T}, s2, 2')
        a(f's_add_u32 s{S_T}, s{S_T}, {WS_FS}')
        flag_store(a, S_T, 18)
        a.lab('L_fs_skip')
    def ards(par, ks):
        f = AF + 8 * (ks & 1)
        for tp in range(2):
            a(f'ds_read_b128 {vr(f+4*tp,4)}, v{V_A2R+ks} offset:{8192*par+4096*tp}')
    def chunk(i, fill=()):
        par = i & 1
        if i + 2 < 8:
            need_bit(i + 2, fresh=True)
        if i + 3 < 8 or i == 6:
            flags_load(); vm.issue('fl', 1)
        AU = [(l, ('A2', i + 1)) for (l, _) in adma(1 - par)] if 1 <= i < 7 else []
        ZU = [(l, ('Z', i + 2, t[2])) for (l, t) in zld(par)] if i + 2 < 8 else []
        for ks in range(4):
            a(f's_waitcnt vmcnt({vm.n_after(("Z", i, ks))}) lgkmcnt(0)')
            if ks < 3:
                ards(par, ks + 1)
            f = AF + 8 * (ks & 1)
            for tp in range(2):
                for ph in range(3):
                    m = 3 * tp + ph
                    c = vr(G2 + 16 * (2 * ph + tp), 16)
                    if not opt.get('x_nomfma'): a(f'v_mfma_f32_32x32x16_bf16 {c}, {vr(ZR+48*par+12*ks+4*ph,4)}, {vr(f+4*tp,4)}, {0 if (i == 0 and ks == 0) else c}')
                    if m < 3 and ks < 2 and AU: run_units(AU[4 * ks: 4 * ks + 2] if m == 0 else [AU[4 * ks + m + 1]])
                    if m >= 3 and ZU: run_units([ZU[3 * ks + m - 3]])
                    for l in fill[6 * (6 * ks + m): 6 * (6 * ks + m) + 6]: a(l)
        a(f's_waitcnt vmcnt({vm.n_after(("A2", i + 1))})')
        ards(1 - par, 0)
    V_L16 = V_BD + 1
    a(f'v_lshlrev_b32 v{V_L16}, 4, v{V_L}')
    a(f's_mul_i32 s{S_WOB}, s{S_CB}, {24*5120}')
    a(f's_mul_i32 s{S_T}, s{S_W}, {6*5120}')
    a(f's_add_u32 s{S_WOB}, s{S_WOB}, s{S_T}')
    a(f's_add_u32 s{S_WOB}, s{S_WOB}, {WS_WO}')
    V_RW = V_BD + 2
    a(f'v_add_u32 v{V_RW}, s{S_M_A}, v{V_L16}')
    V_RR = 12
    for d in range(1, 4):
        a(f's_sub_u32 s{S_T}, s{S_W}, {d}')
        a(f's_and_b32 s{S_T}, s{S_T}, 3')
        a(f's_mul_i32 s{S_T}, s{S_T}, {SLOT}')
        a(f's_add_u32 s{S_T}, s{S_T}, {6144*(d-1)}')
        a(f'v_add_u32 v{V_RR+d-1}, s{S_T}, v{V_L16}')
    stamp(a, 9)
    a('s_waitcnt lgkmcnt(0)')
    ards(0, 0)
    GL = []
    for i in range(6): GL += gelu_packed([Z1R + 2 * i, Z1R + 2 * i + 1], K0V)
    for i in range(7): chunk(i, GL if i == 0 else ())
    WOS = [144, 164, 192, 212]
    def wold(kk):
        U = []
        for dl in range(5):
            L = [f's_add_u32 s{S_BO}, s{S_WOB}, {5120*kk+(4096 if dl == 4 else 0)}'] if dl in (0, 4) else []
            L += [f'buffer_load_dwordx4 {vr(WOS[kk&3]+4*dl,4)}, v{V_L16}, {srd(SRD_WS)}, s{S_BO} offen offset:{1024*(dl&3)} sc1']
            U.append((L, ('WO', kk)))
        return U
    for par in (1,):
        a.lab(f'L_p2_tail{par}')
        other = ZR + 48 * (1 - par)
        AFR = {0: 120, 1: 128, 2: other + 40, 3: 16}
        for ks in range(1, 4):
            for tp in range(2):
                a(f'ds_read_b128 {vr(AFR[ks]+4*tp,4)}, v{V_A2R+ks} offset:{8192*par+4096*tp}')
        a('s_waitcnt vmcnt(0) lgkmcnt(0)')
        if opt.get('no_side') != 1:
            need_bit(0x3f00, mask=True, fresh=True)
        early, late = ((0, 1), (2, 3)) if par == 1 else ((2, 3), (0, 1))
        WOU = wold(early[0]) + wold(early[1])
        k = 0
        def wr(i):
            for d in range(1, 4):
                a(f'ds_write_b128 v{V_RW}, {vr(G2+16*i+4*d,4)} offset:{6144*(d-1)+1024*i}')
        for i in range(6):
            ph, tp = i >> 1, i & 1
            c = vr(G2 + 16 * i, 16)
            for ks in range(4):
                a(f'v_mfma_f32_32x32x16_bf16 {c}, {vr(ZR+48*par+12*ks+4*ph,4)}, {vr(AFR[ks]+4*tp,4)}, {c}')
                if ks in (0, 2) and k < len(WOU):
                    run_units([WOU[k]], False); k += 1
                if ks == 2 and i > 0: wr(i - 1)
        wr(5)
        run_units(wold(late[0]) + wold(late[1]), False)
    a.lab('L_red_done')
    stamp(a, 10)
    vm.ops = []
    a('s_waitcnt lgkmcnt(0)')
    a('s_barrier')
    for i in range(6):
        for j in range(3):
            a(f'ds_read_b128 {vr(G2+16*i+4+4*j,4)}, v{V_RR+j} offset:{1024*i}')
    a(f'v_lshlrev_b32 v{BS2+1}, 16, v{BS2}')
    a(f'v_lshlrev_b32 v{BS2+3}, 16, v{BS2+2}')
    a(f'v_lshlrev_b32 v{BS2}, 16, v{BS2}')
    a(f'v_lshlrev_b32 v{BS2+2}, 16, v{BS2+2}')
    a(f's_mul_i32 s{S_ABASE}, s{S_RB}, 98304')
    a(f's_add_u32 s{S_ABASE}, s{S_ABASE}, {WS_P}')
    a(f's_mul_i32 s{S_T}, s{S_CB}, 12288')
    a(f's_add_u32 s{S_T}, s{S_T}, s{S_ABASE}')
    a(f's_lshl_b32 s{S_T2}, s{S_W}, 10')
    a(f's_add_u32 s{S_T}, s{S_T}, s{S_T2}')
    PQ = 120
    for ph in range(3):
        for tp in range(2):
            i = 2 * ph + tp
            a(f's_waitcnt lgkmcnt({min(15, 3*(5-i))})')
            T = [V_T, V_T + 4]
            def both(f):
                for hh in range(2): a(f(G2 + 16 * i + 2 * hh, T[hh], hh))
            both(lambda c, t, hh: f'v_pk_add_f32 {vr(c,2)}, {vr(c,2)}, {vr(c+4,2)}')
            both(lambda c, t, hh: f'v_pk_add_f32 {vr(c+8,2)}, {vr(c+8,2)}, {vr(c+12,2)}')
            both(lambda c, t, hh: f'v_pk_add_f32 {vr(c,2)}, {vr(c,2)}, {vr(c+8,2)}')
            both(lambda c, t, hh: f'v_cvt_pk_bf16_f32 v{t+2}, v{c}, v{c+1}')
            both(lambda c, t, hh: f'v_lshlrev_b32 v{t}, 16, v{t+2}')
            both(lambda c, t, hh: f'v_and_b32 v{t+1}, 0xffff0000, v{t+2}')
            both(lambda c, t, hh: f'v_pk_add_f32 {vr(t,2)}, {vr(t,2)}, {vr(BS2+2*tp,2)}')
            both(lambda c, t, hh: f'v_cvt_pk_bf16_f32 v{t+2}, v{t}, v{t+1}')
            both(lambda c, t, hh: f'v_lshlrev_b32 v{c}, 16, v{Z1R+2*i+hh}')
            both(lambda c, t, hh: f'v_and_b32 v{c+1}, 0xffff0000, v{Z1R+2*i+hh}')
            both(lambda c, t, hh: f'v_lshlrev_b32 v{t}, 16, v{t+2}')
            both(lambda c, t, hh: f'v_and_b32 v{t+1}, 0xffff0000, v{t+2}')
            both(lambda c, t, hh: f'v_pk_mul_f32 {vr(t,2)}, {vr(t,2)}, {vr(c,2)}')
            both(lambda c, t, hh: f'v_cvt_pk_bf16_f32 v{PQ+4*ph+2*tp+hh}, v{t}, v{t+1}')
        q = PQ + 4 * ph
        a(f'v_permlane32_swap_b32 v{q}, v{q+2}')
        a(f'v_permlane32_swap_b32 v{q+1}, v{q+3}')
        a(f'buffer_store_dwordx4 {vr(q,4)}, v{V_L16}, {srd(SRD_WS)}, s{S_T} offen sc1')
        if ph < 2: a(f's_add_u32 s{S_T}, s{S_T}, 4096')
    a('s_barrier')
    a(f's_mul_i32 s{S_M_B}, s{S_W}, 15360')
    for j in range(10):
        if j % 4 == 0:
            a(f's_add_u32 m0, s{S_M_B}, {1024*j}')
            a(f's_add_u32 s{S_BO}, s{S_WOB}, {4*5120+1024*j}')
        a(f'buffer_load_dwordx4 v{V_L16}, {srd(SRD_WS)}, s{S_BO} offen offset:{1024*(j%4)} sc1 lds')
    a.fence(2)
    lane_mq()
    V_PP = 7
    a(f'v_and_b32 v{V_PP}, 7, v{V_L}')
    a(f'v_lshlrev_b32 v{V_PP}, 2, v{V_PP}')
    a(f's_lshl_b32 s{S_T}, s{S_RB}, 7')
    a(f's_add_u32 s{S_T}, s{S_T}, {WS_FP}')
    a(f's_lshl_b32 s{S_T2}, s{S_W}, 5')
    a(f's_add_u32 s{S_T2}, s{S_T2}, s{S_T}')
    V_PL0, V_PL1 = 8, 9
    a(f's_lshl_b32 s{S_AO}, s{S_RB}, 5')
    a(f's_add_u32 s{S_AO}, s{S_AO}, {WS_FG}')
    a(f'v_add_u32 v{V_PL0}, s{S_AO}, v{V_PP}')
    a(f'v_add_u32 v{V_PP}, s{S_T2}, v{V_PP}')
    a(f's_lshl_b32 s{S_T2}, s{S_CB}, 4')
    a(f's_add_u32 s{S_T}, s{S_T}, s{S_T2}')
    a(f's_lshl_b32 s{S_T2}, s{S_W}, 2')
    a(f's_add_u32 s{S_T}, s{S_T}, s{S_T2}')
    a(f's_mul_i32 s{S_T2}, s{S_CB}, 320')
    a(f's_add_u32 s{S_T2}, s{S_T2}, {WS_FA}')
    a(f'v_lshlrev_b32 v{V_PL1}, 2, v{V_L}')
    a(f'v_add_u32 v{V_PL1}, s{S_T2}, v{V_PL1}')
    a(f'v_lshlrev_b32 v{t3}, 2, v{t0}')
    a(f'v_add_u32 v{t3}, s{S_T2}, v{t3}')
    a(f'v_add_u32 v{t3}, 256, v{t3}')
    a(f'v_bfe_u32 v{t2}, v{V_L}, 4, 1')
    a(f'v_cmp_eq_u32 vcc, 1, v{t2}')
    a(f'v_cndmask_b32 v{V_PL0}, v{V_PL0}, v{t3}, vcc')
    V_AW, V_O1, V_O2, V_ATR, V_AG, V_PF = 248, 10, 11, 12, 250, 2
    ATR, GT = [136, 140, 184], 188
    a(f's_lshl_b32 s{S_AO}, s{S_W}, 7')
    a(f'v_add_u32 v{t2}, s{S_AO}, v{V_L}')
    a(f's_lshl_b32 s{S_AO}, s{S_WJ}, 6')
    a(f's_add_u32 s{S_AO}, s{S_AO}, 512')
    a(f'v_add_u32 v{t3}, s{S_AO}, v{V_L}')
    ATL = 61440
    a(f'v_lshlrev_b32 v{V_AW}, 4, v{t2}')
    a(f'v_lshlrev_b32 v{V_AW+1}, 4, v{t3}')
    a(f'v_add_u32 v{V_AW}, {ATL}, v{V_AW}')
    a(f'v_add_u32 v{V_AW+1}, {ATL}, v{V_AW+1}')
    for k, tt in enumerate((t2, t3)):
        a(f'v_lshrrev_b32 v{V_AG+k}, 3, v{tt}')
        a(f'v_and_b32 v{tt}, 7, v{tt}')
        a(f'v_lshlrev_b32 v{V_AG+k}, 12, v{V_AG+k}')
        a(f'v_lshl_add_u32 v{V_AG+k}, v{tt}, 4, v{V_AG+k}')
    a(f's_lshl_b32 s{S_AO}, s{S_RB}, 6')
    a(f's_lshl_b32 s{S_BO}, s{S_W}, 4')
    a(f's_add_u32 s{S_AO}, s{S_AO}, s{S_BO}')
    a(f'v_add_u32 v{t2}, s{S_AO}, v{t0}')
    a(f'v_lshlrev_b32 v{V_AG+2}, 3, v{t2}')
    a(f'v_add_u32 v{V_AG+2}, {WS_G}, v{V_AG+2}')
    a(f'v_mul_u32_u24 v{t2}, 1280, v{t2}')
    a(f's_mul_i32 s{S_AO}, s{S_CB}, 160')
    a(f'v_add_u32 v{t2}, s{S_AO}, v{t2}')
    a(f'v_and_b32 v{t3}, 1, v{t1}')
    a(f'v_lshl_add_u32 v{V_O1}, v{t3}, 5, v{t2}')
    a(f'v_lshrrev_b32 v{t3}, 1, v{t1}')
    a(f'v_lshl_add_u32 v{V_O1}, v{t3}, 4, v{V_O1}')
    a(f'v_lshl_add_u32 v{V_O2}, v{t1}, 3, v{t2}')
    a(f'v_add_u32 v{V_O2}, 128, v{V_O2}')
    a(f'v_lshl_add_u32 v{t2}, v{t1}, 6, v{t0}')
    a(f'v_lshlrev_b32 v{t2}, 4, v{t2}')
    VPF = [2, 3, 4, 6]
    for tt in range(4):
        a(f's_add_u32 s{S_AO}, s{S_W}, {tt}')
        a(f's_and_b32 s{S_AO}, s{S_AO}, 3')
        a(f's_lshl_b32 s{S_AO}, s{S_AO}, 8')
        a(f'v_add_u32 v{VPF[tt]}, s{S_AO}, v{t2}')
    a(f's_mul_i32 s{S_AO}, s{S_W}, 24576')
    a(f's_add_u32 s{S_ABASE}, s{S_ABASE}, s{S_AO}')
    a(f'v_lshrrev_b32 v{t2}, 2, v{t0}')
    a(f'v_lshl_add_u32 v{t2}, v{t1}, 2, v{t2}')
    a(f'v_lshlrev_b32 v{t2}, 7, v{t2}')
    a(f'v_and_b32 v{t3}, 3, v{V_L}')
    a(f'v_lshl_add_u32 v{t2}, v{t3}, 3, v{t2}')
    a(f's_lshl_b32 s{S_AO}, s{S_W}, 5')
    a(f's_add_u32 s{S_AO}, s{S_AO}, {ATL}')
    a(f'v_add_u32 v{V_ATR}, s{S_AO}, v{t2}')
    O3 = 24
    a('s_waitcnt vmcnt(10)')
    flag_store(a, S_T, V_T)
    stamp(a, 11)
    if not opt.get('no_side'):
        a(f'buffer_load_dword v20, v{V_PL0}, {srd(SRD_WS)}, 0 offen sc1')
        a(f'buffer_load_dword v21, v{V_PL1}, {srd(SRD_WS)}, 0 offen sc1')
    if opt.get('p3b', 1):
        V_PA, V_FL = V_PP, 253
        a(f's_mov_b64 s[{S_RDY}:{S_RDY+1}], 0')
        need_bit(0x0f, mask=True)
    else:
        a(f's_mov_b32 s{S_CNT}, {SPIN_MAX}')
        a(f'buffer_load_dword v16, v{V_PP}, {srd(SRD_WS)}, 0 offen sc1')
        a.lab('L_pp_spin')
        a(f'buffer_load_dword v17, v{V_PP}, {srd(SRD_WS)}, 0 offen sc1')
        a('s_waitcnt vmcnt(1)')
        a(f'v_cmp_ne_u32 vcc, s{S_TAG}, v16')
        a('s_cbranch_vccz L_pp_done')
        a(f'buffer_load_dword v16, v{V_PP}, {srd(SRD_WS)}, 0 offen sc1')
        a('s_waitcnt vmcnt(1)')
        a(f'v_cmp_ne_u32 vcc, s{S_TAG}, v17')
        a('s_cbranch_vccz L_pp_done')
        if opt.get('psl', 4): a(f's_sleep {opt.get("psl", 4)}')
        a(f's_sub_u32 s{S_CNT}, s{S_CNT}, 1')
        a(f's_cmp_lg_u32 s{S_CNT}, 0')
        a('s_cbranch_scc1 L_pp_spin')
        a.lab('L_pp_done')
    stamp(a, 12)
    vm.ops = []
    NPS = 3
    PFS = [104, 120, 228 - 228 + 232]
    V_AG2 = [V_AG, V_AG + 1, V_AG + 2]
    def pld(kk):
        U = []
        for tt in range(4):
            L = [f's_add_u32 s{S_AO}, s{S_ABASE}, {4096*kk}'] if tt == 0 else []
            L += [f'buffer_load_dwordx4 {vr(PFS[kk%NPS]+4*tt,4)}, v{VPF[tt]}, {srd(SRD_WS)}, s{S_AO} offen sc1']
            U.append((L, ('P', kk)))
        return U
    for kk in range(3): run_units(pld(kk))
    if opt.get('p3b', 1):
        flags_load(); vm.issue('fl', 1)
    if not opt.get('no_side'):
        a(f'v_cmp_ne_u32 vcc, s{S_TAG}, v20')
        a(f'v_cmp_ne_u32 s[84:85], s{S_TAG}, v21')
        a('s_or_b64 vcc, vcc, s[84:85]')
        a('s_cbranch_vccnz L_pa_late')
    def at_loads():
        a(f's_mul_i32 s{S_T}, s{S_CB}, {80*4096}')
        a(f's_lshl_b32 s{S_T2}, s{S_RB}, 7')
        a(f's_add_u32 s{S_T}, s{S_T}, s{S_T2}')
        a(f's_add_u32 s{S_T}, s{S_T}, {WS_AT}')
        a(f's_add_u32 s{S_T2}, s{S_T}, {8*4096}')
        a(f'buffer_load_dwordx4 {vr(ATR[0],4)}, v{V_AG2[0]}, {srd(SRD_WS)}, s{S_T} offen sc1')
        a(f'buffer_load_dwordx4 {vr(ATR[1],4)}, v{V_AG2[0]}, {srd(SRD_WS)}, s{S_T2} offen sc1')
        a(f'buffer_load_dwordx4 {vr(ATR[2],4)}, v{V_AG2[1]}, {srd(SRD_WS)}, s{S_T} offen sc1')
        a(f'buffer_load_dwordx2 {vr(GT,2)}, v{V_AG2[2]}, {srd(SRD_WS)}, 0 offen sc1')
    at_loads()
    vm.issue('at', 4)
    a(f's_mov_b32 s{S_KZ}, 0')
    if not opt.get('no_side'):
        a('s_branch L_pa_go')
        a.lab('L_pa_late')
        for k in range(4):
            a(f'buffer_load_dword v22, off, {srd(SRD_WS)}, 0')
        a(f's_mov_b32 s{S_KZ}, 1')
        a.lab('L_pa_go')
    stamp(a, 13)
    V_W3, V_R3 = 13, 14
    VR3 = [14, 15, 0]
    a(f's_mul_i32 s{S_T}, s{S_W}, 15360')
    a(f'v_add_u32 v{V_W3}, s{S_T}, v{V_L16}')
    for d in range(1, 4):
        a(f's_sub_u32 s{S_T}, s{S_W}, {d}')
        a(f's_and_b32 s{S_T}, s{S_T}, 3')
        a(f's_mul_i32 s{S_T}, s{S_T}, 15360')
        a(f's_add_u32 s{S_T}, s{S_T}, {5120*(d-1)}')
        a(f'v_add_u32 v{VR3[d-1]}, s{S_T}, v{V_L16}')
    def wr3(tt):
        for dl in range(5):
            a(f'ds_write_b128 v{V_W3}, {vr(O3+4*(5*tt+dl),4)} offset:{5120*(tt-1)+1024*dl}')
    for kk in range(6):
        need = vm.n_after(('P', kk))
        a(f's_waitcnt vmcnt({need})' + (' lgkmcnt(5)' if kk == 4 else ' lgkmcnt(0)' if kk == 5 else ''))
        for tt in ((0, 1, 2, 3) if kk < 5 else (1, 2, 3, 0)):
            for dl in range(5):
                c = vr(O3 + 4 * (5 * tt + dl), 4)
                a(f'v_mfma_f32_16x16x32_bf16 {c}, {vr(WOS[kk&3]+4*dl,4)}, {vr(PFS[kk%NPS]+4*tt,4)}, {c if kk else 0}')
            if kk == 5 and tt != 1: wr3((tt - 1) & 3)
        if kk == 0 and opt.get('p3b', 1):
            a(f's_waitcnt vmcnt({vm.n_after("fl")})')
            need_bit(0xf0, mask=True, fresh=True)
        if kk + 3 < 6: run_units(pld(kk + 3))
        if kk + 4 < 6:
            for dl in range(5):
                a(f'ds_read_b128 {vr(WOS[kk&3]+4*dl,4)}, v{V_W3} offset:{5120*kk+1024*dl}')
    stamp(a, 14)
    if not opt.get('no_side'):
        a(f's_cmp_eq_u32 s{S_KZ}, 0')
        a('s_cbranch_scc1 L_pa_ok')
        poll(a, 'L_pa', [(V_PL0, '0'), (V_PL1, '0')], 20, S_CNT)
        at_loads()
        a.lab('L_pa_ok')
    a('s_waitcnt vmcnt(0)')
    a(f'v_mov_b32 v{GT+2}, v{GT+1}')
    a(f'v_mov_b32 v{GT+3}, v{GT+1}')
    a(f'v_mov_b32 v{GT+1}, v{GT}')
    a(f'ds_write_b128 v{V_AW}, {vr(ATR[0],4)}')
    a(f'ds_write_b128 v{V_AW}, {vr(ATR[1],4)} offset:1024')
    a(f'ds_write_b128 v{V_AW+1}, {vr(ATR[2],4)}')
    a('s_waitcnt lgkmcnt(0)')
    a('s_barrier')
    AV = 104
    for dl in range(5):
        for j in range(3):
            a(f'ds_read_b128 {vr(O3+4*(5*(j+1)+dl),4)}, v{VR3[j]} offset:{1024*dl}')
        a(f'ds_read_b64_tr_b16 {vr(AV+2*dl,2)}, v{V_ATR} offset:{2048*dl}')
    RQ = 116
    for dl in range(5):
        a(f's_waitcnt lgkmcnt({min(15, 4*(4-dl))})')
        T = [V_T, V_T + 4]
        def both(f):
            for hh in range(2): a(f(O3 + 4 * dl + 2 * hh, T[hh], AV + 2 * dl + hh, hh))
        both(lambda c, t, av, hh: f'v_pk_add_f32 {vr(c,2)}, {vr(c,2)}, {vr(c+20,2)}')
        both(lambda c, t, av, hh: f'v_pk_add_f32 {vr(c+40,2)}, {vr(c+40,2)}, {vr(c+60,2)}')
        both(lambda c, t, av, hh: f'v_pk_add_f32 {vr(c,2)}, {vr(c,2)}, {vr(c+40,2)}')
        both(lambda c, t, av, hh: f'v_cvt_pk_bf16_f32 v{t+2}, v{c}, v{c+1}')
        both(lambda c, t, av, hh: f'v_lshlrev_b32 v{t}, 16, v{av}')
        both(lambda c, t, av, hh: f'v_and_b32 v{t+1}, 0xffff0000, v{av}')
        both(lambda c, t, av, hh: f'v_lshlrev_b32 v{c}, 16, v{t+2}')
        both(lambda c, t, av, hh: f'v_and_b32 v{c+1}, 0xffff0000, v{t+2}')
        both(lambda c, t, av, hh: f'v_pk_mul_f32 {vr(t,2)}, {vr(t,2)}, {vr(GT,2)}')
        both(lambda c, t, av, hh: f'v_pk_mul_f32 {vr(c,2)}, {vr(c,2)}, {vr(GT+2,2)}')
        both(lambda c, t, av, hh: f'v_cvt_pk_bf16_f32 v{t+2}, v{t}, v{t+1}')
        both(lambda c, t, av, hh: f'v_cvt_pk_bf16_f32 v{t+3}, v{c}, v{c+1}')
        both(lambda c, t, av, hh: f'v_lshlrev_b32 v{t}, 16, v{t+2}')
        both(lambda c, t, av, hh: f'v_and_b32 v{t+1}, 0xffff0000, v{t+2}')
        both(lambda c, t, av, hh: f'v_lshlrev_b32 v{c}, 16, v{t+3}')
        both(lambda c, t, av, hh: f'v_and_b32 v{c+1}, 0xffff0000, v{t+3}')
        both(lambda c, t, av, hh: f'v_pk_add_f32 {vr(t,2)}, {vr(t,2)}, {vr(c,2)}')
        both(lambda c, t, av, hh: f'v_cvt_pk_bf16_f32 v{RQ+2*dl+hh}, v{t}, v{t+1}')
        if dl in (1, 3):
            q = RQ + 2 * (dl - 1)
            a(f'v_permlane16_swap_b32 v{q}, v{q+2}')
            a(f'v_permlane16_swap_b32 v{q+1}, v{q+3}')
            a(f'buffer_store_dwordx4 {vr(q,4)}, v{V_O1}, {srd(SRD_OUT)}, 0 offen offset:{32*(dl-1)} {OC}')
        if dl == 4:
            a(f'buffer_store_dwordx2 {vr(RQ+8,2)}, v{V_O2}, {srd(SRD_OUT)}, 0 offen {OC}')
    if _g.PROF['on']:
        a('s_waitcnt vmcnt(0)')
    stamp(a, 15)
    stamp_dump(a, 16)
    a('s_endpgm')

def poll1(a, name, vaddrs, vtmp, scount):
    a(f's_cmp_lg_u32 s{S_W}, 0')
    a(f's_cbranch_scc1 {name}_out')
    va = vaddrs[0]
    a(f's_mov_b32 s{scount}, {SPIN_MAX}')
    a(f'buffer_load_dword v{vtmp}, v{va}, {srd(SRD_WS)}, 0 offen sc1')
    a.lab(f'{name}_spin')
    a(f'buffer_load_dword v{vtmp+1}, v{va}, {srd(SRD_WS)}, 0 offen sc1')
    a('s_waitcnt vmcnt(1)')
    a(f'v_cmp_ne_u32 vcc, s{S_TAG}, v{vtmp}')
    a(f's_cbranch_vccz {name}_done')
    a(f'buffer_load_dword v{vtmp}, v{va}, {srd(SRD_WS)}, 0 offen sc1')
    a('s_waitcnt vmcnt(1)')
    a(f'v_cmp_ne_u32 vcc, s{S_TAG}, v{vtmp+1}')
    a(f's_cbranch_vccz {name}_done')
    a(f's_sub_u32 s{scount}, s{scount}, 1')
    a(f's_cmp_lg_u32 s{scount}, 0')
    a(f's_cbranch_scc1 {name}_spin')
    a.lab(f'{name}_done')
    a.lab(f'{name}_out')
    a('s_barrier')

def e1_z2(a, opt, vm, k0):
    SS, QQ = ACC1, ACC1 + 8
    K0 = ACC1 + 16
    pf = opt.get('gpf', 0)
    if pf:
        a(f's_lshl_b32 s{S_T}, s{S_RB}, 18')
        a(f's_and_b32 s{S_T2}, s{S_CB}, 3')
        a(f's_lshl_b32 s{S_T2}, s{S_T2}, 16')
        a(f's_add_u32 s{S_T}, s{S_T}, s{S_T2}')
        a(f's_lshl_b32 s{S_T2}, s{S_W}, 14')
        a(f's_add_u32 s{S_T}, s{S_T}, s{S_T2}')
        a(f'v_lshlrev_b32 v{t0}, {7 if pf == 128 else 6}, v{V_L}')
        for i in range(16384 // (64 * pf)):
            a(f'buffer_load_dword v{ACC1+20+i}, v{t0}, {srd(SRD_WSP)}, s{S_T} offen')
            a(f's_add_u32 s{S_T}, s{S_T}, {64*pf}')
            vm.issue('pf', 1)
    a(f'v_mov_b32 v{K0}, {hx(k0)}')
    a(f'v_mov_b32 v{K0+1}, {hx(k0)}')
    first = {}
    for phi in range(3):
        for tau in range(2):
            cs = [ACC2 + 4 * (3 * tau + phi) + 2 * hh for hh in range(2)]
            def after(c, t):
                r = 4 * tau + (c - cs[0])
                L = [f'v_cvt_pk_bf16_f32 v{c}, v{t+2}, v{t+3}']
                if phi == 0:
                    L += [f'v_lshlrev_b32 v{SS+r}, 16, v{c}', f'v_and_b32 v{SS+r+1}, 0xffff0000, v{c}',
                          f'v_pk_mul_f32 {vr(QQ+r,2)}, {vr(SS+r,2)}, {vr(SS+r,2)}']
                else:
                    L += [f'v_lshlrev_b32 v{t}, 16, v{c}', f'v_and_b32 v{t+1}, 0xffff0000, v{c}',
                          f'v_pk_add_f32 {vr(SS+r,2)}, {vr(SS+r,2)}, {vr(t,2)}', f'v_pk_fma_f32 {vr(QQ+r,2)}, {vr(t,2)}, {vr(t,2)}, {vr(QQ+r,2)}']
                return L
            gelu2(a, cs, K0, after)
    for j in range(8):
        a(f'v_add_f32_dpp v{SS+j}, v{SS+j}, v{SS+j} row_ror:8 row_mask:0xf bank_mask:0x3')
    for j in range(8):
        a(f'v_add_f32_dpp v{SS+j}, v{QQ+j}, v{QQ+j} row_ror:8 row_mask:0xf bank_mask:0xc')
    for j in range(4):
        a(f'v_add_f32_dpp v{SS+j}, v{SS+j}, v{SS+j} row_half_mirror row_mask:0xf bank_mask:0x5')
    for j in range(4):
        a(f'v_add_f32_dpp v{SS+j}, v{SS+j+4}, v{SS+j+4} row_half_mirror row_mask:0xf bank_mask:0xa')
    a(f'v_and_b32 v{t0}, 15, v{V_L}')
    a(f'v_lshrrev_b32 v{t1}, 4, v{V_L}')
    a(f'v_and_b32 v{t2}, 3, v{V_L}')
    for qp in ('[3,2,1,0]', '[1,0,3,2]'):
        for j in range(4):
            a(f'v_add_f32_dpp v{SS+j}, v{SS+j}, v{SS+j} quad_perm:{qp} row_mask:0xf bank_mask:0xf')
    GQ = V_T + 4
    a(f'v_cmp_eq_u32 vcc, 1, v{t2}')
    a(f'v_cmp_eq_u32 s[84:85], 2, v{t2}')
    a(f'v_cmp_eq_u32 {sp(S_TMP2)}, 3, v{t2}')
    a(f'v_lshl_add_u32 v{t2}, v{t0}, 2, v{t1}')
    a(f'v_cndmask_b32 v{GQ}, v{SS}, v{SS+1}, vcc')
    a(f'v_cndmask_b32 v{GQ}, v{GQ}, v{SS+2}, s[84:85]')
    a(f'v_cndmask_b32 v{GQ}, v{GQ}, v{SS+3}, {sp(S_TMP2)}')
    a(f'v_mov_b32 v{GQ+1}, s{S_TAG}')
    a(f'v_mov_b32 v{GQ+3}, s{S_TAG}')
    a(f'v_mov_b32_dpp v{GQ+2}, v{GQ} row_ror:8 row_mask:0xf bank_mask:0xf')
    a(f's_lshl_b32 s{S_T}, s{S_WI}, 5')
    a(f'v_add_u32 v{t2}, s{S_T}, v{t2}')
    a(f'v_lshlrev_b32 v{t2}, 8, v{t2}')
    a(f's_lshl_b32 s{S_T}, s{S_RB}, 14')
    a(f's_lshl_b32 s{S_T2}, s{S_CB}, 5')
    a(f's_add_u32 s{S_T}, s{S_T}, s{S_T2}')
    a(f's_lshl_b32 s{S_T2}, s{S_WJ}, 4')
    a(f's_add_u32 s{S_T}, s{S_T}, s{S_T2}')
    a(f's_add_u32 s{S_T}, s{S_T}, {WS_ST}')
    a(f'v_cmp_gt_u32 vcc, 8, v{t0}')
    a(f's_and_saveexec_b64 {sp(S_TMP2)}, vcc')
    a(f'buffer_store_dwordx4 {vr(GQ,4)}, v{t2}, {srd(SRD_WS)}, s{S_T} offen sc1')
    a(f's_mov_b64 exec, {sp(S_TMP2)}')
    vm.issue('st', 1)
    if pf:
        a(f's_waitcnt vmcnt({vm.n_after("pf")})')

V_SA = 13
def e2_loads(a, vm):
    a(f'v_lshlrev_b32 v{V_SA}, 4, v{V_L}')
    a(f's_lshl_b32 s{S_T}, s{S_RB}, 14')
    a(f's_lshl_b32 s{S_T2}, s{S_WI}, 13')
    a(f's_add_u32 s{S_T}, s{S_T}, s{S_T2}')
    a(f's_add_u32 s{S_T}, s{S_T}, {WS_ST}')
    a(f'v_add_u32 v{V_SA}, s{S_T}, v{V_SA}')
    st_loads(a)
    vm.issue('stl', 8)

def st_loads(a):
    a(f's_movk_i32 s{S_T2}, 4096')
    for k in range(8):
        a(f'buffer_load_dwordx4 {vr(ST+4*k,4)}, v{V_SA}, {srd(SRD_WS)}, {"0" if k < 4 else "s%d" % S_T2} offen offset:{1024*(k&3)} sc1')

def e2_layernorm(a, opt, vm):
    a('; ---- LayerNorm hand-off')
    a(f's_mov_b32 s{S_CNT}, {SPIN_MAX}')
    a(f's_waitcnt vmcnt({vm.n_after("stl")})')
    a.lab('L_ln_check')
    a(f'v_min_u32 v{t0}, v{ST+1}, v{ST+3}')
    a(f'v_max_u32 v{t1}, v{ST+1}, v{ST+3}')
    for k in range(1, 8):
        a(f'v_min3_u32 v{t0}, v{t0}, v{ST+4*k+1}, v{ST+4*k+3}')
        a(f'v_max3_u32 v{t1}, v{t1}, v{ST+4*k+1}, v{ST+4*k+3}')
    a(f'v_cmp_ne_u32 vcc, s{S_TAG}, v{t0}')
    a(f'v_cmp_ne_u32 s[84:85], s{S_TAG}, v{t1}')
    a('s_or_b64 vcc, vcc, s[84:85]')
    a('s_cbranch_vccz L_ln_done')
    st_loads(a)
    a('s_waitcnt vmcnt(0)')
    a(f's_sub_u32 s{S_CNT}, s{S_CNT}, 1')
    a(f's_cmp_lg_u32 s{S_CNT}, 0')
    a('s_cbranch_scc1 L_ln_check')
    a.lab('L_ln_done')
    S_ = lambda k: ST + 4 * k
    Q_ = lambda k: ST + 4 * k + 2
    for k in range(8):
        a(f'v_add_f32_dpp v{S_(k)}, v{S_(k)}, v{S_(k)} row_ror:8 row_mask:0xf bank_mask:0x3')
    for k in range(8):
        a(f'v_add_f32_dpp v{S_(k)}, v{Q_(k)}, v{Q_(k)} row_ror:8 row_mask:0xf bank_mask:0xc')
    for k in range(4):
        a(f'v_add_f32_dpp v{S_(k)}, v{S_(k)}, v{S_(k)} row_half_mirror row_mask:0xf bank_mask:0x5')
    for k in range(4):
        a(f'v_add_f32_dpp v{S_(k)}, v{S_(k+4)}, v{S_(k+4)} row_half_mirror row_mask:0xf bank_mask:0xa')
    a(f'v_and_b32 v{t0}, 15, v{V_L}')
    a(f'v_lshrrev_b32 v{t1}, 4, v{V_L}')
    a(f'v_and_b32 v{t2}, 3, v{V_L}')
    for qp in ('[3,2,1,0]', '[1,0,3,2]'):
        for k in range(4):
            a(f'v_add_f32_dpp v{S_(k)}, v{S_(k)}, v{S_(k)} quad_perm:{qp} row_mask:0xf bank_mask:0xf')
    a(f'v_cmp_eq_u32 vcc, 1, v{t2}')
    a(f'v_cmp_eq_u32 s[84:85], 2, v{t2}')
    a(f'v_cmp_eq_u32 {sp(S_TMP2)}, 3, v{t2}')
    a(f'v_mul_u32_u24 v{t1}, 96, v{t1}')
    a(f'v_cndmask_b32 v{ST}, v{ST}, v{S_(1)}, vcc')
    a(f'v_cndmask_b32 v{ST}, v{ST}, v{S_(2)}, s[84:85]')
    a(f'v_cndmask_b32 v{ST}, v{ST}, v{S_(3)}, {sp(S_TMP2)}')
    a(f'v_mov_b32_dpp v{ST+1}, v{ST} row_ror:8 row_mask:0xf bank_mask:0xf')
    a(f'v_mul_f32 v{ST}, {hx(1/768)}, v{ST}')
    a(f'v_mul_f32 v{ST+1}, {hx(1/768)}, v{ST+1}')
    a(f'v_fma_f32 v{ST+1}, -v{ST}, v{ST}, v{ST+1}')
    a(f'v_max_f32 v{ST+1}, 0, v{ST+1}')
    a(f'v_cvt_pk_bf16_f32 v{ST+2}, v{ST}, v{ST+1}')
    a(f'v_lshlrev_b32 v{ST}, 16, v{ST+2}')
    a(f'v_and_b32 v{ST+1}, 0xffff0000, v{ST+2}')
    a(f'v_add_f32 v{ST+1}, {hx(1e-5)}, v{ST+1}')
    a(f'v_add_u32 v{t0}, v{t0}, v{t1}')
    a(f'v_cvt_pk_bf16_f32 v{ST+1}, v{ST+1}, v{ST+1}')
    a(f'v_and_b32 v{ST+1}, 0xffff0000, v{ST+1}')
    a(f'v_sqrt_f32 v{ST+1}, v{ST+1}')
    for j in range(8):
        a(f'v_mov_b32_dpp v{MM+j}, v{ST} row_newbcast:{j} row_mask:0xf bank_mask:0xf')
    a(f'v_cvt_pk_bf16_f32 v{ST+1}, v{ST+1}, v{ST+1}')
    a(f'v_and_b32 v{ST+1}, 0xffff0000, v{ST+1}')
    a(f'v_rcp_f32 v{ST+1}, v{ST+1}')
    a(f's_mul_i32 s{S_T}, s{S_WI}, 384')
    a(f's_mul_i32 s{S_T2}, s{S_WJ}, 48')
    a(f's_add_u32 s{S_T}, s{S_T}, s{S_T2}')
    a(f'v_add_u32 v{t0}, s{S_T}, v{t0}')
    a(f'v_lshlrev_b32 v{V_US}, 4, v{t0}')
    for j in range(8):
        a(f'v_mov_b32_dpp v{RR+j}, v{ST+1} row_newbcast:{j} row_mask:0xf bank_mask:0xf')
    a(f's_lshl_b32 s{S_T}, s{S_CB}, 5')
    a(f's_add_u32 s{S_T}, s{S_T}, s{S_RB}')
    a(f's_lshl_b32 s{S_FZA}, s{S_T}, 2')
    a(f's_add_u32 s{S_FZA}, s{S_FZA}, {WS_FZ}')
    a(f's_mul_i32 s{S_T}, s{S_T}, 12288')
    a(f's_add_u32 s{S_T}, s{S_T}, {WS_Z}')
    for phi in range(3):
        for tau in range(2):
            T = [V_T, V_T + 4]
            def both(f):
                for hh in range(2): a(f(ACC2 + 4 * (3 * tau + phi) + 2 * hh, T[hh], 4 * tau + 2 * hh, hh))
            both(lambda c, t, r, hh: f'v_lshlrev_b32 v{t}, 16, v{c}')
            both(lambda c, t, r, hh: f'v_and_b32 v{t+1}, 0xffff0000, v{c}')
            both(lambda c, t, r, hh: f'v_pk_add_f32 {vr(t,2)}, {vr(t,2)}, {vr(MM+r,2)} neg_lo:[0,1] neg_hi:[0,1]')
            both(lambda c, t, r, hh: f'v_cvt_pk_bf16_f32 v{t+2}, v{t}, v{t+1}')
            both(lambda c, t, r, hh: f'v_lshlrev_b32 v{t}, 16, v{t+2}')
            both(lambda c, t, r, hh: f'v_and_b32 v{t+1}, 0xffff0000, v{t+2}')
            both(lambda c, t, r, hh: f'v_pk_mul_f32 {vr(t,2)}, {vr(t,2)}, {vr(RR+r,2)}')
            both(lambda c, t, r, hh: f'v_cvt_pk_bf16_f32 v{ZQ+4*phi+2*tau+hh}, v{t}, v{t+1}')
        a(f'buffer_store_dwordx4 {vr(ZQ+4*phi,4)}, v{V_US}, {srd(SRD_WS)}, s{S_T} offen offset:{256*phi} sc1')
    vm.issue('z', 3)
```
